```python
import torch

def _softmax(x, axis=-1):
    return torch.softmax(x, dim=axis)
def _gelu(x):
    return torch.nn.functional.gelu(x, approximate="tanh")
def _silu(x):
    return torch.nn.functional.silu(x)
def _sigmoid(x):
    return torch.sigmoid(x)
def _layernorm(x, axis=-1, eps=1e-5):
    m = x.mean(dim=axis, keepdim=True)
    v = x.var(dim=axis, keepdim=True, unbiased=False)
    return (x - m) / torch.sqrt(v + eps)
def _scatter_add(tgt, idx, src, axis=0):
    return tgt.clone().index_add_(axis, idx, src)
def _segment_sum(src, seg, n):
    out = torch.zeros((n,) + src.shape[1:], dtype=src.dtype)
    return out.index_add_(0, seg, src)
def _pad(x, pw):
    flat = tuple(v for pair in reversed(pw) for v in pair)
    return torch.nn.functional.pad(x, flat)

kernel_name = 'recurrent_scan__sliding_block_cached__moe_arch_mod__prompt'

def setup_inputs():

    _w = (lambda a: (lambda t: t.to(torch.bfloat16) if t.is_floating_point() else t)(torch.as_tensor(a)))
    def _A_setup():
        B, Sq, D = 1, 2048, 1024
        Hq, Hkv, Sk, Dh = 32, 4, 2048, 128
        assert Hq % Hkv == 0, (Hq, Hkv)
        return {
            "x": _w((lambda *s: torch.randn(*s, dtype=torch.bfloat16) * 0.05)(B, Sq, D)),
            "k_cache": _w((lambda *s: torch.randn(*s, dtype=torch.bfloat16) * 0.8)(B, Hkv, Sk, Dh)),
            "v_cache": _w((lambda *s: torch.randn(*s, dtype=torch.bfloat16) * 0.2)(B, Hkv, Sk, Dh)),
            "wq": _w((lambda *s: torch.randn(*s, dtype=torch.bfloat16) * 0.8)(D, Hq * Dh) * (D ** -0.5)),
            "wo": _w((lambda *s: torch.randn(*s, dtype=torch.bfloat16) * 0.2)(Hq * Dh, D) * ((Hq * Dh) ** -0.5)),
        }
    _A_in = _A_setup()

    def _B_setup():
        B, S, D, F, C = 1, 2048, 1024, 3584, 1
        return {
            "x": _w((lambda *s: torch.randn(*s, dtype=torch.bfloat16) * 0.05)(B, S, D)),
            "w_r": _w((lambda *s: torch.randn(*s, dtype=torch.bfloat16) * 0.2)(D)),
            "w_gate": _w((lambda *s: torch.randn(*s, dtype=torch.bfloat16) * 0.1)(D, F)),
            "w_up": _w((lambda *s: torch.randn(*s, dtype=torch.bfloat16) * 0.1)(D, F)),
            "w_down": _w((lambda *s: torch.randn(*s, dtype=torch.bfloat16) * 0.1)(F, D)),
        }
    _B_in = _B_setup()

    return {
        "A_x": _A_in["x"],
        "A_k_cache": _A_in["k_cache"],
        "A_v_cache": _A_in["v_cache"],
        "A_wq": _A_in["wq"],
        "A_wo": _A_in["wo"],
        "B_x": _B_in["x"],
        "B_w_r": _B_in["w_r"],
        "B_w_gate": _B_in["w_gate"],
        "B_w_up": _B_in["w_up"],
        "B_w_down": _B_in["w_down"],
    }

def reference(A_x, A_k_cache, A_v_cache, A_wq, A_wo, B_x, B_w_r, B_w_gate, B_w_up, B_w_down):
    def _A_ref(x, k_cache, v_cache, wq, wo):
        B, Sq, D = x.shape
        Hq, Dh = 32, 128
        Hkv, Sk = k_cache.shape[1], k_cache.shape[2]
        W = min(4096, max(256, Sk // 4))
        rep = Hq // Hkv
        q = (lambda x, *d: x.permute(*d))((x @ wq).reshape(B, Sq, Hq, Dh), 0, 2, 1, 3)
        k = (lambda x, n, axis: torch.repeat_interleave(x, n, dim=axis))(k_cache[:, :, Sk - W:, :], rep, axis=1)
        v = (lambda x, n, axis: torch.repeat_interleave(x, n, dim=axis))(v_cache[:, :, Sk - W:, :], rep, axis=1)
        scores = torch.einsum("bhqd,bhkd->bhqk", q, k) * (Dh ** -0.5)
        p = _softmax(scores, axis=-1)
        o = torch.einsum("bhqk,bhkd->bhqd", p, v)
        return (lambda x, *d: x.permute(*d))(o, 0, 2, 1, 3).reshape(B, Sq, Hq * Dh) @ wo

    def _B_ref(x, w_r, w_gate, w_up, w_down):
        B, S, D = x.shape
        C = 1
        r = x @ w_r
        idx = torch.argsort(-r, axis=-1)[:, :C]
        idx_e = (lambda x, n, axis: torch.repeat_interleave(x, n, dim=axis))(idx.reshape(B, C, 1), D, axis=2)
        x_sel = (lambda x, i, axis: torch.take_along_dim(x, i, dim=axis))(x, idx_e, axis=1)
        g = _silu(x_sel @ w_gate)
        u = x_sel @ w_up
        y = (g * u) @ w_down
        r_sel = _sigmoid((lambda x, i, axis: torch.take_along_dim(x, i, dim=axis))(r, idx, axis=1))
        y = y * r_sel.reshape(B, C, 1)
        b_off = (torch.arange(B) * S).reshape(B, 1)
        flat_idx = (idx + b_off).reshape(B * C)
        zero = (x * 0.0).reshape(B * S, D)
        upd = _scatter_add(zero, flat_idx, y.reshape(B * C, D), axis=0)
        return x + upd.reshape(B, S, D)

    x = A_x
    xn = _layernorm(x, axis=-1)
    s = _A_ref(xn, A_k_cache, A_v_cache, A_wq, A_wo)
    g = _silu(_B_ref(xn, B_w_r, B_w_gate, B_w_up, B_w_down))
    return x + s * g
```

```python
import re

def regs_of(tok):
    tok = tok.strip()
    tok = re.sub(r'^-', '', tok)
    m = re.match(r'^abs\((.*)\)$', tok)
    if m: tok = m.group(1)
    tok = tok.strip('|')
    m = re.match(r'^([vas])(\d+)$', tok)
    if m: return [(m.group(1), int(m.group(2)))]
    m = re.match(r'^([vas])\[(\d+):(\d+)\]$', tok)
    if m: return [(m.group(1), i) for i in range(int(m.group(2)), int(m.group(3)) + 1)]
    if tok in ('vcc', 'vcc_lo', 'vcc_hi'): return [('x', 'vcc')]
    if tok in ('exec', 'exec_lo', 'exec_hi'): return [('x', 'exec')]
    if tok == 'm0': return [('x', 'm0')]
    return []

TRANS = ('v_exp_f32', 'v_log_f32', 'v_rcp_f32', 'v_rsq_f32', 'v_sqrt_f32', 'v_sin_f32', 'v_cos_f32')

class Ins:
    def __init__(self, text):
        self.text = text
        t = text.split(';')[0].strip()
        self.label = None
        self.op = None
        self.w = []; self.r = []
        self.kind = 'other'
        if not t: return
        if t.endswith(':'):
            self.label = t[:-1]; self.kind = 'label'; return
        if t.startswith('.'):
            self.kind = 'dir'; return
        parts = t.split(None, 1)
        op = parts[0]; self.op = op
        rest = parts[1] if len(parts) > 1 else ''
        rest = re.sub(r'quad_perm:\[(\d),(\d),(\d),(\d)\]', r'quad_perm:[\1_\2_\3_\4]', rest)
        ops = [x.strip() for x in rest.split(',')] if rest else []
        mods = ''
        if ops:
            sp = ops[-1].split(None, 1)
            if len(sp) > 1 and not sp[0].startswith('abs('):
                ops[-1] = sp[0]; mods = sp[1]
        self.ops = ops; self.mods = mods
        base = op.replace('_e32', '').replace('_e64', '').replace('_dpp', '')
        self.base = base
        R = lambda i: regs_of(ops[i]) if i < len(ops) else []
        if op.startswith('v_mfma'):
            self.kind = 'mfma'
            self.w = R(0); self.a = R(1); self.b = R(2); self.c = R(3)
            self.r = self.a + self.b + self.c
            self.passes = 8 if '32x32' in op else 4
        elif op.startswith('v_'):
            self.kind = 'valu'
            self.dpp = ('quad_perm' in mods or 'row_' in mods or 'wave_' in mods)
            if base.startswith('v_permlane') and 'swap' in base:
                self.w = R(0) + R(1); self.r = R(0) + R(1); self.kind2 = 'permlane'
            elif base.startswith('v_cmp'):
                self.w = R(0); self.r = sum((R(i) for i in range(1, len(ops))), [])
                if base.startswith('v_cmpx'): self.w += [('x', 'exec')]
            elif base in ('v_add_co_u32', 'v_sub_co_u32', 'v_addc_co_u32', 'v_subb_co_u32', 'v_subrev_co_u32'):
                self.w = R(0) + R(1); self.r = sum((R(i) for i in range(2, len(ops))), [])
            else:
                self.w = R(0); self.r = sum((R(i) for i in range(1, len(ops))), [])
                if base in ('v_fmac_f32', 'v_dot2c_f32_bf16', 'v_pk_fmac_f16') or self.dpp:
                    self.r += R(0)
                if base == 'v_cndmask_b32' and len(ops) == 3: self.r += [('x', 'vcc')]
            self.trans = base in TRANS
        elif op.startswith('ds_'):
            self.kind = 'ds'
            if op.startswith('ds_read') or op.startswith('ds_bpermute') or op.startswith('ds_permute') or op.startswith('ds_swizzle'):
                self.w = R(0); self.r = sum((R(i) for i in range(1, len(ops))), [])
            else:
                self.r = sum((R(i) for i in range(len(ops))), [])
        elif op.startswith('buffer_') or op.startswith('global_'):
            self.kind = 'vmem'
            self.lds = bool(re.search(r'\blds\b', mods)) or '_lds_' in op
            if 'load' in op and not self.lds:
                self.w = R(0); self.r = sum((R(i) for i in range(1, len(ops))), [])
            elif 'atomic' in op and re.search(r'\bsc0\b', mods):
                self.w = R(0); self.r = sum((R(i) for i in range(len(ops))), [])
            else:
                self.r = sum((R(i) for i in range(len(ops))), [])
            if self.lds: self.r += [('x', 'm0')]
            self.store = ('store' in op or 'atomic' in op)
            self.wide = self.store and ('x3' in op or 'x4' in op)
            if self.wide:
                self.data = R(0) if op.startswith('buffer_') else R(1)
        elif op.startswith('s_'):
            self.kind = 'salu'
            if op in ('s_nop',):
                self.kind = 'nop'; self.n = int(ops[0], 0) + 1
            elif op.startswith('s_cbranch') or op == 's_branch':
                self.kind = 'branch'; self.target = ops[0]
            elif op in ('s_waitcnt', 's_barrier', 's_endpgm', 's_setprio', 's_sleep'):
                self.kind = 'misc'
            elif op.startswith('s_cmp'):
                self.r = sum((R(i) for i in range(len(ops))), [])
            elif op.startswith('s_load') or op.startswith('s_buffer_load') or op.startswith('s_memtime') or op.startswith('s_memrealtime'):
                self.kind = 'smem'; self.w = R(0); self.r = sum((R(i) for i in range(1, len(ops))), [])
            else:
                self.w = R(0); self.r = sum((R(i) for i in range(1, len(ops))), [])
                if 'saveexec' in op: self.w += [('x', 'exec')]; self.r += [('x', 'exec')]
    def states(self):
        if self.kind in ('label', 'dir') or self.op is None: return 0
        if self.kind == 'nop': return self.n
        return 1

def need(p, c):
    n = 0
    pw = set(p.w); cr = set(c.r); cw = set(c.w)
    isv = lambda S: {x for x in S if x[0] in 'va'}
    iss = lambda S: {x for x in S if x[0] == 's' or x == ('x', 'vcc')}
    if p.kind == 'valu':
        vw = isv(pw); sw = iss(pw)
        if c.kind == 'mfma' and vw & cr: n = max(n, 2)
        if c.kind == 'valu':
            if getattr(c, 'dpp', False) and vw & cr: n = max(n, 2)
            if getattr(c, 'kind2', '') == 'permlane' and vw & cr: n = max(n, 2)
            if c.base in ('v_readlane_b32', 'v_readfirstlane_b32') and vw & cr: n = max(n, 1)
            if p.trans and not c.trans and vw & cr: n = max(n, 1)
            if p.trans and vw & cr: n = max(n, 1)
            if sw & cr:
                n = max(n, 4 if c.base in ('v_readlane_b32', 'v_writelane_b32') else 2)
                if c.base == 'v_div_fmas_f32': n = max(n, 4)
            if ('x', 'exec') in pw:
                if getattr(c, 'dpp', False): n = max(n, 5)
                if c.base in ('v_readlane_b32', 'v_readfirstlane_b32', 'v_writelane_b32') or getattr(c, 'kind2', '') == 'permlane': n = max(n, 4)
        if c.kind == 'mfma' and ('x', 'exec') in pw: n = max(n, 4)
        if c.kind == 'vmem' and sw & cr: n = max(n, 5)
        if c.kind in ('salu', 'branch') and sw & cr: n = max(n, 1)
        if p.trans and c.kind in ('ds', 'vmem') and vw & cr: n = max(n, 1)
    if p.kind == 'salu':
        if ('x', 'm0') in pw and c.kind == 'vmem' and getattr(c, 'lds', False): n = max(n, 1)
    if p.kind == 'mfma':
        D = set(p.w)
        big = {8: 12, 4: 8}[p.passes]; ovl = {8: 10, 4: 6}[p.passes]; war = {8: 7, 4: 3}[p.passes]
        if c.kind == 'mfma':
            if D & (set(c.a) | set(c.b)): n = max(n, big)
            if D & set(c.c):
                if list(c.c) == list(p.w) and c.passes == p.passes: pass
                else: n = max(n, ovl)
            elif D & set(c.w):
                n = max(n, ovl)
        elif c.kind in ('valu', 'ds', 'vmem'):
            if D & (cr | cw): n = max(n, big)
            if c.kind == 'valu' and set(p.c) & cw: n = max(n, war)
            if c.kind in ('ds', 'vmem') and set(p.c) & cw: n = max(n, war)
    if p.kind == 'vmem' and getattr(p, 'wide', False):
        if set(p.data) & cw: n = max(n, 2 if c.kind == 'valu' else 1)
    if p.kind == 'ds' and p.op.startswith('ds_write') and ('b128' in p.op or 'b96' in p.op):
        pass
    return n

class Prog:
    def __init__(self):
        self.ins = []
    def __call__(self, text):
        for line in text.split('\n'):
            if line.strip(): self.ins.append(Ins(line.strip()))
    def label(self, name): self.ins.append(Ins(name + ':'))
    def fix_hazards(self, verbose=False):
        out = []
        WIN = 24
        def check_against(prev_list, c):
            dist = 0; req = 0
            for p in reversed(prev_list):
                if p.kind in ('label', 'dir') or p.op is None: continue
                k = need(p, c)
                if k > dist: req = max(req, k - dist)
                dist += p.states()
                if dist > WIN: break
            return req
        nins = 0
        for c in self.ins:
            if c.op is not None and c.kind not in ('label', 'dir'):
                hist = []
                for p in reversed(out):
                    if p.op in ('s_branch', 's_endpgm'): break
                    hist.append(p)
                    if len(hist) > 64: break
                hist.reverse()
                req = check_against(hist, c)
                if req:
                    if verbose: print("nop", req, "before", c.text)
                    nins += 1
                    while req > 0:
                        k = min(req, 16); out.append(Ins(f"s_nop {k-1}")); req -= k
            out.append(c)
        self.ins = out
        labels = {i.label: n for n, i in enumerate(self.ins) if i.label}
        changed = True
        while changed:
            changed = False
            labels = {i.label: n for n, i in enumerate(self.ins) if i.label}
            for n, b in enumerate(self.ins):
                if b.kind == 'branch' and b.target in labels:
                    hist = []
                    for p in reversed(self.ins[:n + 1]):
                        if p is not b and p.op in ('s_branch', 's_endpgm'): break
                        hist.append(p)
                        if len(hist) > 64: break
                    hist.reverse()
                    t = labels[b.target]
                    seq = list(hist); worst = 0; dist = 0
                    for c in self.ins[t:t + 40]:
                        if c.op is None or c.kind in ('label', 'dir'): continue
                        d = dist;
                        for p in reversed(hist):
                            if p.kind in ('label', 'dir') or p.op is None: continue
                            k = need(p, c)
                            if k > d: worst = max(worst, k - d)
                            d += p.states()
                            if d > WIN: break
                        dist += c.states()
                        if dist > WIN or c.op in ('s_branch', 's_endpgm'): break
                    if worst:
                        if verbose: print("branch-edge nop", worst, "before", b.text)
                        ins = []
                        while worst > 0:
                            k = min(worst, 16); ins.append(Ins(f"s_nop {k-1}")); worst -= k
                        self.ins[n:n] = ins
                        changed = True
                        break
        return nins
    def text(self):
        return "\n".join((i.text if i.kind in ('label', 'dir') else "    " + i.text) for i in self.ins) + "\n"
```

```python
from asmlib import Prog
WS_XN   = 0x0
WS_KEYS = 0x400000
WS_GU   = 0x410000
WS_YP   = 0x480000
WS_OT   = 0x800000

def wave_sum(p, v, t):
    p(f"""
    v_add_f32_dpp v{v}, v{v}, v{v} quad_perm:[1,0,3,2] row_mask:0xf bank_mask:0xf
    v_add_f32_dpp v{v}, v{v}, v{v} quad_perm:[2,3,0,1] row_mask:0xf bank_mask:0xf
    v_add_f32_dpp v{v}, v{v}, v{v} row_half_mirror row_mask:0xf bank_mask:0xf
    v_add_f32_dpp v{v}, v{v}, v{v} row_mirror row_mask:0xf bank_mask:0xf
    v_mov_b32 v{t}, v{v}
    v_permlane16_swap_b32 v{v}, v{t}
    v_add_f32 v{v}, v{v}, v{t}
    v_mov_b32 v{t}, v{v}
    v_permlane32_swap_b32 v{v}, v{t}
    v_add_f32 v{v}, v{v}, v{t}
    """)

def wave_max_u32(p, v, t):
    p(f"""
    v_max_u32_dpp v{v}, v{v}, v{v} quad_perm:[1,0,3,2] row_mask:0xf bank_mask:0xf
    v_max_u32_dpp v{v}, v{v}, v{v} quad_perm:[2,3,0,1] row_mask:0xf bank_mask:0xf
    v_max_u32_dpp v{v}, v{v}, v{v} row_half_mirror row_mask:0xf bank_mask:0xf
    v_max_u32_dpp v{v}, v{v}, v{v} row_mirror row_mask:0xf bank_mask:0xf
    v_mov_b32 v{t}, v{v}
    v_permlane16_swap_b32 v{v}, v{t}
    v_max_u32 v{v}, v{v}, v{t}
    v_mov_b32 v{t}, v{v}
    v_permlane32_swap_b32 v{v}, v{t}
    v_max_u32 v{v}, v{v}, v{t}
    """)

def kernel_header(p, name):
    p(f".globl {name}\n.p2align 8\n.type {name},@function")
    p.label(name)

def descriptor(name, nvgpr, accum, nsgpr=102):
    return f""".p2align 6
.amdhsa_kernel {name}
  .amdhsa_next_free_vgpr {nvgpr}
  .amdhsa_next_free_sgpr {nsgpr}
  .amdhsa_accum_offset {accum}
  .amdhsa_group_segment_fixed_size 0
  .amdhsa_kernarg_size 104
  .amdhsa_user_sgpr_count 2
  .amdhsa_user_sgpr_kernarg_segment_ptr 1
  .amdhsa_system_sgpr_workgroup_id_x 1
  .amdhsa_float_denorm_mode_32 3
  .amdhsa_float_denorm_mode_16_64 3
.end_amdhsa_kernel
"""
```

```python
from gen_common import *

def gen_k1(prefetch=True):
    p = Prog()
    name = "k1_ln_kernel"
    kernel_header(p, name)
    p("""
    s_cmp_ge_u32 s2, 256
    s_cbranch_scc1 K1_END
    s_load_dwordx4 s[4:7], s[0:1], 0
    s_load_dwordx4 s[8:11], s[0:1], 16
    s_load_dwordx2 s[12:13], s[0:1], 48
    s_load_dwordx2 s[14:15], s[0:1], 96
    v_and_b32 v1, 63, v0
    v_lshrrev_b32 v2, 6, v0
    v_lshlrev_b32 v3, 4, v1
    v_lshl_add_u32 v4, v2, 11, v3
    s_lshl_b32 s16, s2, 14
    v_add_u32 v4, s16, v4
    s_lshl_b32 s17, s2, 15
    v_lshlrev_b32 v5, 6, v0
    v_add_u32 v5, s17, v5
    s_lshr_b32 s18, s2, 6
    s_lshl_b32 s18, s18, 19
    s_and_b32 s19, s2, 63
    s_lshl_b32 s19, s19, 11
    s_add_u32 s18, s18, s19
    s_add_u32 s18, s18, 393216
    v_lshlrev_b32 v6, 2, v0
    v_add_u32 v6, s18, v6
    s_waitcnt lgkmcnt(0)
    global_load_dwordx4 v[8:11], v4, s[4:5]
    global_load_dwordx4 v[12:15], v4, s[4:5] offset:1024
    global_load_dwordx4 v[16:19], v3, s[12:13]
    global_load_dwordx4 v[20:23], v3, s[12:13] offset:1024
    """)
    npf = 0
    if prefetch:
        p("""
    global_load_dword v24, v5, s[10:11]
    global_load_dword v25, v6, s[6:7]
    global_load_dword v26, v6, s[8:9]
    """)
        npf = 3
    p("""
    v_and_b32 v7, 7, v1
    v_xor_b32 v7, v7, v2
    v_lshlrev_b32 v7, 4, v7
    v_lshl_add_u32 v7, v1, 7, v7
    """)
    p("""
    v_lshrrev_b32 v28, 3, v0
    v_and_b32 v29, 7, v28
    v_and_b32 v30, 7, v0
    v_xor_b32 v29, v29, v30
    v_lshlrev_b32 v29, 4, v29
    v_lshl_add_u32 v29, v28, 8, v29
    s_lshr_b32 s20, s2, 1
    s_lshl_b32 s20, s20, 15
    s_and_b32 s21, s2, 1
    s_lshl_b32 s21, s21, 7
    s_add_u32 s20, s20, s21
    v_add_u32 v29, s20, v29
    v_add_u32 v31, 0x4000, v29
    v_lshlrev_b32 v30, 4, v0
    """)
    F = 32
    p(f"s_waitcnt vmcnt({2+npf})")
    for i in range(8):
        p(f"v_lshlrev_b32 v{F+2*i}, 16, v{8+i}")
        p(f"v_and_b32 v{F+2*i+1}, 0xffff0000, v{8+i}")
    S = 48; T = 49
    p(f"v_add_f32 v{S}, v{F}, v{F+1}")
    p(f"v_add_f32 v{T}, v{F+2}, v{F+3}")
    for i in range(4, 16, 2):
        p(f"v_add_f32 v{S}, v{S}, v{F+i}")
        p(f"v_add_f32 v{T}, v{T}, v{F+i+1}")
    p(f"v_add_f32 v{S}, v{S}, v{T}")
    wave_sum(p, S, T)
    p(f"v_mul_f32 v{S}, 0x3a800000, v{S}")
    Q0 = 50; Q1 = 51; D = 52
    for i in range(16):
        p(f"v_sub_f32 v{D+i}, v{F+i}, v{S}")
    p(f"v_mul_f32 v{Q0}, v{D}, v{D}")
    p(f"v_mul_f32 v{Q1}, v{D+1}, v{D+1}")
    for i in range(2, 16, 2):
        p(f"v_fmac_f32 v{Q0}, v{D+i}, v{D+i}")
        p(f"v_fmac_f32 v{Q1}, v{D+i+1}, v{D+i+1}")
    p(f"v_add_f32 v{Q0}, v{Q0}, v{Q1}")
    wave_sum(p, Q0, T)
    p(f"""
    v_mul_f32 v{Q0}, 0x3a800000, v{Q0}
    v_cvt_pk_bf16_f32 v{T}, v{S}, v{Q0}
    v_lshlrev_b32 v{S}, 16, v{T}
    v_and_b32 v{Q0}, 0xffff0000, v{T}
    v_add_f32 v{Q0}, 0x3727c5ac, v{Q0}
    v_cvt_pk_bf16_f32 v{Q0}, v{Q0}, v{Q0}
    v_lshlrev_b32 v{Q0}, 16, v{Q0}
    v_sqrt_f32 v{Q0}, v{Q0}
    v_cvt_pk_bf16_f32 v{Q0}, v{Q0}, v{Q0}
    v_lshlrev_b32 v{Q0}, 16, v{Q0}
    v_rcp_f32 v{Q0}, v{Q0}
    """)
    for i in range(16):
        p(f"v_sub_f32 v{D+i}, v{F+i}, v{S}")
    for i in range(8):
        p(f"v_cvt_pk_bf16_f32 v{8+i}, v{D+2*i}, v{D+2*i+1}")
    for i in range(8):
        p(f"v_lshlrev_b32 v{D+2*i}, 16, v{8+i}")
        p(f"v_and_b32 v{D+2*i+1}, 0xffff0000, v{8+i}")
    for i in range(16):
        p(f"v_mul_f32 v{D+i}, v{D+i}, v{Q0}")
    for i in range(8):
        p(f"v_cvt_pk_bf16_f32 v{8+i}, v{D+2*i}, v{D+2*i+1}")
    p(f"""
    ds_write_b128 v7, v[8:11]
    ds_write_b128 v7, v[12:15] offset:8192
    s_waitcnt vmcnt({npf})
    """)
    for i in range(8):
        p(f"v_lshlrev_b32 v{D+2*i}, 16, v{8+i}")
        p(f"v_and_b32 v{D+2*i+1}, 0xffff0000, v{8+i}")
        p(f"v_lshlrev_b32 v{F+2*i}, 16, v{16+i}")
        p(f"v_and_b32 v{F+2*i+1}, 0xffff0000, v{16+i}")
    p(f"v_mul_f32 v{S}, v{D}, v{F}")
    p(f"v_mul_f32 v{Q1}, v{D+1}, v{F+1}")
    for i in range(2, 16, 2):
        p(f"v_fmac_f32 v{S}, v{D+i}, v{F+i}")
        p(f"v_fmac_f32 v{Q1}, v{D+i+1}, v{F+i+1}")
    p(f"v_add_f32 v{S}, v{S}, v{Q1}")
    wave_sum(p, S, T)
    p(f"""
    v_cvt_pk_bf16_f32 v{S}, v{S}, v{S}
    v_lshlrev_b32 v{S}, 16, v{S}
    v_ashrrev_i32 v{T}, 31, v{S}
    v_or_b32 v{T}, 0x80000000, v{T}
    v_xor_b32 v{S}, v{S}, v{T}
    v_and_b32 v{S}, 0xffff0000, v{S}
    s_lshl_b32 s21, s2, 3
    s_sub_u32 s21, 2047, s21
    v_sub_u32 v{T}, s21, v2
    v_or_b32 v{S}, v{S}, v{T}
    v_lshlrev_b32 v{T}, 2, v2
    ds_write_b32 v{T}, v{S} offset:16384
    s_waitcnt lgkmcnt(0)
    s_barrier
    v_mov_b32 v{T}, 0
    ds_read_b128 v[8:11], v30
    ds_read_b128 v[12:15], v30 offset:8192
    ds_read_b128 v[16:19], v{T} offset:16384
    ds_read_b128 v[20:23], v{T} offset:16400
    s_waitcnt lgkmcnt(3)
    global_store_dwordx4 v29, v[8:11], s[14:15]
    s_waitcnt lgkmcnt(2)
    global_store_dwordx4 v31, v[12:15], s[14:15]
    s_waitcnt lgkmcnt(0)
    v_max3_u32 v16, v16, v17, v18
    v_max3_u32 v20, v20, v21, v22
    v_max3_u32 v16, v16, v19, v23
    v_max_u32 v16, v16, v20
    s_lshl_b32 s21, s2, 2
    s_add_u32 s21, s21, {WS_KEYS}
    v_mov_b32 v17, s21
    v_cmp_eq_u32 vcc, 0, v0
    s_and_saveexec_b64 s[22:23], vcc
    s_cbranch_execz K1_END
    global_store_dword v17, v16, s[14:15]
    """)
    p.label("K1_END")
    p("s_endpgm")
    p.fix_hazards()
    return p.text(), descriptor(name, 72, 72, 32), f"; @launch kernel={name} grid=(256,1,1) block=(512,1,1) lds=16448"

if __name__ == "__main__":
    t, d, l = gen_k1()
    open("k1.s", "w").write(l + '\n.amdgcn_target "amdgcn-amd-amdhsa--gfx950"\n.text\n' + t + '.section .rodata,"a"\n' + d)
```

```python
from gen_common import *
import math

L_WQ = 0
L_K = 65536; KSL = 8704; NK = 5
L_V = L_K + NK * KSL; VSL = 8192; NV = 5
L_DUMMY = L_V + NV * VSL
L_FLAG = L_DUMMY + 1024
L_TOTAL = L_FLAG + 64

vA, vDq, vDq2, vL16, vDk, vDv, vKb, vK, vVb, vV, vO, vL0, vL1 = 3, 4, 5, 6, 7, 8, 9, 10, 11, 12, 13, 14, 15
ACC = 16; QP = 80; S = 112; NEGM = 144; P = 160; KF = 176; VF = 192; E = 208
AF = 192
BR = 212
vDf = 244; vXB = 245; vPF = 246; vT0 = 247; vT1 = 248; vPFa = 249; vPFb = 250
sW = 3
sHEAD, sRB, sG = 20, 21, 22
sN, sWq, sM, sB = 23, 24, 25, 26
sKsrc, sKd, sVsrc, sVd = 27, 28, 29, 30
sKr, sVr = 31, 32
sFsrc, sFd, sIDX = 33, 34, 35
SRD_WQ, SRD_XN, SRD_K, SRD_V, SRD_F, SRD_OT = 36, 40, 44, 48, 52, 56
sT0, sT1, sT2, sT3 = 60, 61, 62, 63
sKlim, sKbase, sVlim, sVbase = 64, 65, 66, 67
sRETRY = 68
sFF = 69
QSCALE = math.log2(math.e) / math.sqrt(128.0)
import struct
def fbits(x): return "0x%08x" % struct.unpack("<I", struct.pack("<f", x))[0]

D = 4

class LQ:
    def __init__(self): self.q = []
    def issue(self, tag): self.q.append(tag)
    def wait(self, p, tag):
        if tag not in self.q: return
        i = len(self.q) - 1 - self.q[::-1].index(tag)
        n = len(self.q) - 1 - i
        assert n <= 15
        p(f"s_waitcnt lgkmcnt({n})")
        self.q = self.q[i + 1:]

def srd(p, d, lo, hi, nrec):
    p(f"s_mov_b32 s{d}, s{lo}\ns_mov_b32 s{d+1}, s{hi}\ns_mov_b32 s{d+2}, {nrec}\ns_mov_b32 s{d+3}, 0x20000")

def gen_k2(ffn=True, slow=True, stamp=False, dbg=()):
    p = Prog()
    stamps = []
    def ST():
        if stamp:
            i = len(stamps); stamps.append(i)
            p(f"s_memtime s[{80+2*i}:{81+2*i}]")
            if i == 0: p("s_memrealtime s[96:97]")
            if i == 6: p("s_memrealtime s[98:99]")
    name = "k2_attn_kernel"
    kernel_header(p, name)
    p(f"""
    s_cmp_ge_u32 s2, 256
    s_cbranch_scc1 K2_END
    s_load_dwordx4 s[4:7], s[0:1], 8
    s_load_dwordx4 s[8:11], s[0:1], 24
    s_load_dwordx4 s[12:15], s[0:1], 56
    s_load_dwordx2 s[16:17], s[0:1], 72
    s_load_dwordx2 s[18:19], s[0:1], 96
    v_lshrrev_b32 v2, 6, v0
    v_and_b32 v1, 63, v0
    v_readfirstlane_b32 s{sW}, v2
    s_and_b32 s{sT0}, s2, 7
    s_lshr_b32 s{sT1}, s2, 3
    s_lshr_b32 s{sG}, s{sT0}, 1
    s_and_b32 s{sT0}, s{sT0}, 1
    s_lshl_b32 s{sT0}, s{sT0}, 2
    s_lshr_b32 s{sT2}, s{sT1}, 3
    s_add_u32 s{sRB}, s{sT0}, s{sT2}
    s_and_b32 s{sT1}, s{sT1}, 7
    s_lshl_b32 s{sHEAD}, s{sG}, 3
    s_add_u32 s{sHEAD}, s{sHEAD}, s{sT1}
    """)
    ST()
    p(f"""
    v_lshrrev_b32 v{vT0}, 4, v1
    v_and_b32 v{vT1}, 3, v1
    v_lshlrev_b32 v{vT1}, 4, v{vT1}
    v_lshl_add_u32 v{vT1}, v{vT0}, 6, v{vT1}
    v_bfe_u32 v{vT0}, v1, 2, 2
    v_lshl_add_u32 v{vDq}, v{vT0}, 13, v{vT1}
    v_add_u32 v{vDq2}, {32768-1024}, v{vDq}
    v_lshl_add_u32 v{vDv}, v{vT0}, 8, v{vT1}
    v_mul_u32_u24 v{vDf}, 7168, v{vT0}
    v_add_u32 v{vDf}, v{vDf}, v{vT1}
    v_lshlrev_b32 v{vL16}, 4, v1
    """)
    p(f"""
    v_and_b32 v{vT0}, 3, v1
    v_lshrrev_b32 v{vT1}, 2, v1
    v_lshlrev_b32 v{vT1}, 4, v{vT1}
    v_lshl_add_u32 v{vDk}, v{vT0}, 8, v{vT1}
    """)
    p(f"""
    v_bfe_u32 v{vT0}, v1, 1, 1
    v_and_b32 v{vT1}, 1, v1
    v_lshl_add_u32 v{vT0}, v{vT1}, 1, v{vT0}
    v_bfe_u32 v{vT1}, v1, 4, 1
    v_lshl_add_u32 v{vT0}, v{vT1}, 2, v{vT0}
    v_lshlrev_b32 v{vT0}, 3, v{vT0}
    v_bfe_u32 v{vT1}, v1, 2, 2
    v_lshl_add_u32 v{vT0}, v{vT1}, 6, v{vT0}
    v_lshrrev_b32 v{vT1}, 5, v1
    v_lshl_add_u32 v{vA}, v{vT1}, 11, v{vT0}
    v_lshl_add_u32 v{vVb}, v{vT1}, 10, v{vT0}
    v_add_u32 v{vVb}, {L_V}, v{vVb}
    """)
    p(f"""
    v_bfe_u32 v{vT0}, v1, 2, 3
    v_mul_u32_u24 v{vT0}, 1088, v{vT0}
    v_lshl_add_u32 v{vT0}, v{vT1}, 6, v{vT0}
    v_and_b32 v{vKb}, 3, v1
    v_lshl_add_u32 v{vKb}, v{vKb}, 4, v{vT0}
    v_add_u32 v{vKb}, {L_K}, v{vKb}
    """)
    p(f"""
    v_bfe_u32 v{vT0}, v1, 4, 1
    v_lshlrev_b32 v{vT0}, 10, v{vT0}
    v_lshl_add_u32 v{vT0}, v{vT1}, 8, v{vT0}
    v_and_b32 v{vO}, 15, v1
    v_lshl_add_u32 v{vO}, v{vO}, 4, v{vT0}
    v_bfe_u32 v{vT0}, v1, 4, 1
    v_lshlrev_b32 v{vT0}, 15, v{vT0}
    v_lshl_add_u32 v{vT0}, v{vT1}, 8, v{vT0}
    v_and_b32 v{vXB}, 15, v1
    v_lshl_add_u32 v{vXB}, v{vXB}, 4, v{vT0}
    s_waitcnt lgkmcnt(0)
    """)
    p(f"""
    s_lshl_b32 s{sT0}, s{sHEAD}, 8
    s_add_u32 s{SRD_WQ}, s8, s{sT0}
    s_addc_u32 s{SRD_WQ+1}, s9, 0
    s_sub_u32 s{SRD_WQ+2}, 0x800000, s{sT0}
    s_mov_b32 s{SRD_WQ+3}, 0x20000
    s_lshl_b32 s{sT0}, s{sRB}, 3
    s_add_u32 s{sT0}, s{sT0}, s{sW}
    s_lshl_b32 s{sT0}, s{sT0}, 16
    s_add_u32 s{SRD_XN}, s18, s{sT0}
    s_addc_u32 s{SRD_XN+1}, s19, 0
    s_mov_b32 s{SRD_XN+2}, 0x10000
    s_mov_b32 s{SRD_XN+3}, 0x20000
    s_lshl_b32 s{sT0}, s{sG}, 19
    s_add_u32 s{sT0}, s{sT0}, 393216
    s_add_u32 s{SRD_K}, s4, s{sT0}
    s_addc_u32 s{SRD_K+1}, s5, 0
    s_mov_b32 s{SRD_K+2}, 0x20000
    s_mov_b32 s{SRD_K+3}, 0x20000
    s_add_u32 s{SRD_V}, s6, s{sT0}
    s_addc_u32 s{SRD_V+1}, s7, 0
    s_mov_b32 s{SRD_V+2}, 0x20000
    s_mov_b32 s{SRD_V+3}, 0x20000
    s_lshl_b32 s{sWq}, s{sW}, 16
    s_lshl_b32 s{sM}, s{sW}, 11
    s_mov_b32 s{sB}, 0
    """)
    def dma_wq():
        p(f"""
    s_mov_b32 m0, s{sM}
    s_add_u32 s{sM}, s{sM}, 16384
    buffer_load_dwordx4 v{vDq}, s[{SRD_WQ}:{SRD_WQ+3}], s{sWq} offen lds
    buffer_load_dwordx4 v{vDq2}, s[{SRD_WQ}:{SRD_WQ+3}], s{sWq} offen offset:1024 lds
    s_and_b32 s{sM}, s{sM}, 0xffff
    s_add_u32 s{sWq}, s{sWq}, 524288
    """)
    def load_b(par, s):
        r = BR + (par * 4 + s) * 4
        p(f"buffer_load_dwordx4 v[{r}:{r+3}], v{vXB}, s[{SRD_XN}:{SRD_XN+3}], s{sB} offen offset:{s*512}")
    p(f"""
    v_add_u32 v{vT0}, {WS_KEYS}, v{vL16}
    global_load_dwordx4 v[{KF}:{KF+3}], v{vT0}, s[18:19]
    """)
    dma_wq(); dma_wq()
    for s in range(4): load_b(0, s)
    p(f"s_add_u32 s{sB}, s{sB}, 2048")
    dma_wq()
    for s in range(4): load_b(1, s)
    p(f"s_add_u32 s{sB}, s{sB}, 2048")
    p(f"""
    s_add_u32 s{SRD_OT}, s18, {WS_OT}
    s_addc_u32 s{SRD_OT+1}, s19, 0
    s_mov_b32 s{SRD_OT+2}, 0x1000000
    s_mov_b32 s{SRD_OT+3}, 0x20000
    s_mul_i32 s{sKbase}, s{sW}, 1088
    s_add_u32 s{sKbase}, s{sKbase}, {L_K}
    s_add_u32 s{sKlim}, s{sKbase}, {NK*KSL}
    s_lshl_b32 s{sVbase}, s{sW}, 10
    s_add_u32 s{sVbase}, s{sVbase}, {L_V}
    s_add_u32 s{sVlim}, s{sVbase}, {NV*VSL}
    s_mov_b32 s{sKd}, s{sKbase}
    s_mov_b32 s{sVd}, s{sVbase}
    s_lshl_b32 s{sKsrc}, s{sW}, 10
    s_lshl_b32 s{sVsrc}, s{sW}, 10
    s_mov_b32 s{sN}, 0
    s_mov_b32 s{sRETRY}, 0
    """)
    p(f"""
    s_lshr_b32 s{sT0}, s2, 2
    s_and_b32 s{sT1}, s2, 3
    s_cmp_ge_u32 s{sT0}, 28
    s_cselect_b32 s{SRD_F}, s14, s12
    s_cselect_b32 s{SRD_F+1}, s15, s13
    s_cselect_b32 s{sT2}, 28, 0
    s_sub_u32 s{sT2}, s{sT0}, s{sT2}
    s_lshl_b32 s{sT2}, s{sT2}, 8
    s_mul_i32 s{sT3}, s{sT1}, {256*7168}
    s_add_u32 s{sT2}, s{sT2}, s{sT3}
    s_add_u32 s{SRD_F}, s{SRD_F}, s{sT2}
    s_addc_u32 s{SRD_F+1}, s{SRD_F+1}, 0
    s_cmp_lt_u32 s2, 224
    s_cselect_b32 s{SRD_F+2}, {255*7168+256}, 0
    s_mov_b32 s{SRD_F+3}, 0x20000
    s_mul_i32 s{sFsrc}, s{sW}, {4*7168}
    s_lshl_b32 s{sFd}, s{sW}, 10
    """)
    for i in range(64): p(f"v_mov_b32 v{ACC+i}, 0")
    p(f"""
    s_waitcnt vmcnt(14)
    v_max3_u32 v{KF}, v{KF}, v{KF+1}, v{KF+2}
    v_max_u32 v{KF}, v{KF}, v{KF+3}
    """)
    wave_max_u32(p, KF, KF + 1)
    p(f"""
    v_readfirstlane_b32 s{sIDX}, v{KF}
    s_and_b32 s{sIDX}, s{sIDX}, 0x7ff
    s_sub_u32 s{sIDX}, 2047, s{sIDX}
    s_waitcnt vmcnt(10)
    s_barrier
    """)
    ST()
    if stamp: p("s_waitcnt lgkmcnt(0)")
    lq = LQ()
    def a_reads(dt, imm):
        r = AF + dt * 4
        p(f"ds_read_b64_tr_b16 v[{r}:{r+1}], v{vA} offset:{imm + dt*256}")
        p(f"ds_read_b64_tr_b16 v[{r+2}:{r+3}], v{vA} offset:{imm + 1024 + dt*256}")
    for dt in range(4): a_reads(dt, 0)
    def dma_k():
        p(f"""
    s_mov_b32 m0, s{sKd}
    s_add_u32 s{sKd}, s{sKd}, {KSL}
    buffer_load_dwordx4 v{vDk}, s[{SRD_K}:{SRD_K+3}], s{sKsrc} offen lds
    s_add_u32 s{sKsrc}, s{sKsrc}, 8192
    s_cmp_eq_u32 s{sKd}, s{sKlim}
    s_cselect_b32 s{sKd}, s{sKbase}, s{sKd}
    """)
    def dma_v():
        p(f"""
    s_mov_b32 m0, s{sVd}
    s_add_u32 s{sVd}, s{sVd}, {VSL}
    buffer_load_dwordx4 v{vDv}, s[{SRD_V}:{SRD_V+3}], s{sVsrc} offen lds
    s_add_u32 s{sVsrc}, s{sVsrc}, 8192
    s_cmp_eq_u32 s{sVd}, s{sVlim}
    s_cselect_b32 s{sVd}, s{sVbase}, s{sVd}
    """)
    def dma_f():
        p(f"""
    s_mov_b32 m0, s{sFd}
    s_add_u32 s{sFd}, s{sFd}, 8192
    buffer_load_dwordx4 v{vDf}, s[{SRD_F}:{SRD_F+3}], s{sFsrc} offen lds
    s_add_u32 s{sFsrc}, s{sFsrc}, {32*7168}
    s_cmp_ge_u32 s{sFd}, 65536
    s_cselect_b32 s{sFd}, {L_DUMMY}, s{sFd}
    """)
    p(".p2align 6")
    p.label("K2_P1")
    for par in range(2):
        dma_wq()
        if par == 0:
            p(f"s_cmp_lt_u32 s{sN}, 4\ns_cbranch_scc1 K2_P1_NOK")
            dma_k()
            p.label("K2_P1_NOK")
        else:
            p(f"s_sub_u32 s{sT0}, s{sN}, 5\ns_cmp_ge_u32 s{sT0}, 2\ns_cbranch_scc1 K2_P1_NOV")
            dma_v()
            p.label("K2_P1_NOV")
        for s in range(4):
            p("s_waitcnt vmcnt(11)")
            b = BR + (par * 4 + s) * 4
            for dt in range(4):
                a = AF + dt * 4
                p("s_waitcnt lgkmcnt(6)")
                p(f"v_mfma_f32_32x32x16_bf16 v[{ACC+16*dt}:{ACC+16*dt+15}], v[{a}:{a+3}], v[{b}:{b+3}], v[{ACC+16*dt}:{ACC+16*dt+15}]")
                if s < 3: imm = par * 16384 + (s + 1) * 4096
                elif par == 0: imm = 16384
                else:
                    imm = 0
                    if dt == 0: p(f"v_xor_b32 v{vA}, 0x8000, v{vA}")
                a_reads(dt, imm)
            load_b(par, s)
        p(f"s_add_u32 s{sB}, s{sB}, 2048")
        if par == 0:
            p("s_waitcnt vmcnt(10)\ns_barrier")
        else:
            p(f"""
    s_add_u32 s{sN}, s{sN}, 1
    s_cmp_eq_u32 s{sN}, 8
    s_cbranch_scc1 K2_P1_DONE
    s_waitcnt vmcnt(10)
    s_barrier
    s_branch K2_P1
    """)
    p.label("K2_P1_DONE")
    ST()
    if stamp: p("s_waitcnt lgkmcnt(0)")
    for i in range(8): lq.issue(("junk", i))
    p(f"s_mov_b32 s{sKr}, 0\ns_mov_b32 s{sVr}, 0\nv_mov_b32 v{vK}, v{vKb}\nv_mov_b32 v{vV}, v{vVb}")
    def k_read(j):
        if 'nok' in dbg: return
        r = KF + (j % D) * 4
        p(f"ds_read_b128 v[{r}:{r+3}], v{vK} offset:{j*128}")
        lq.issue(("K", j % D))
    def v_read(i):
        if 'nov' in dbg: return
        ks, dt = i >> 2, i & 3
        r = VF + (i % D) * 4
        p(f"ds_read_b64_tr_b16 v[{r}:{r+1}], v{vV} offset:{ks*4096 + dt*256}")
        lq.issue(("Va", i % D))
        p(f"ds_read_b64_tr_b16 v[{r+2}:{r+3}], v{vV} offset:{ks*4096 + 2048 + dt*256}")
        lq.issue(("V", i % D))
    def k_adv():
        p(f"""
    s_add_u32 s{sKr}, s{sKr}, {KSL}
    s_cmp_eq_u32 s{sKr}, {NK*KSL}
    s_cselect_b32 s{sKr}, 0, s{sKr}
    v_add_u32 v{vK}, s{sKr}, v{vKb}
    """)
    def v_adv():
        p(f"""
    s_add_u32 s{sVr}, s{sVr}, {VSL}
    s_cmp_eq_u32 s{sVr}, {NV*VSL}
    s_cselect_b32 s{sVr}, 0, s{sVr}
    v_add_u32 v{vV}, s{sVr}, v{vVb}
    """)
    p(f"s_mov_b32 s{sT0}, {fbits(QSCALE)}")
    for dt in range(4):
        for r in range(16):
            p(f"v_mul_f32 v{ACC+16*dt+r}, s{sT0}, v{ACC+16*dt+r}")
        for r in range(0, 16, 2):
            p(f"v_cvt_pk_bf16_f32 v{QP + dt*8 + r//2}, v{ACC+16*dt+r}, v{ACC+16*dt+r+1}")
    p.label("K2_P2_START")
    p("s_waitcnt lgkmcnt(0)"); lq.q = []
    for j in range(D): k_read(j)
    for i in range(64): p(f"v_mov_b32 v{ACC+i}, 0")
    p(f"v_mov_b32 v{vL0}, 0\nv_mov_b32 v{vL1}, 0")
    def qk(j, sbuf, cinit):
        lq.wait(p, ("K", j % D))
        k = KF + (j % D) * 4; q = QP + 4 * j; d = S + 16 * sbuf
        c = cinit if j == 0 else f"v[{d}:{d+15}]"
        p(f"v_mfma_f32_32x32x16_bf16 v[{d}:{d+15}], v[{k}:{k+3}], v[{q}:{q+3}], {c}")
    def pv(i, pbuf):
        lq.wait(p, ("V", i % D))
        ks, dt = i >> 2, i & 3
        v = VF + (i % D) * 4; b = P + 8 * pbuf + 4 * ks; d = ACC + 16 * dt
        p(f"v_mfma_f32_32x32x16_bf16 v[{d}:{d+15}], v[{v}:{v+3}], v[{b}:{b+3}], v[{d}:{d+15}]")
    for j in range(8):
        qk(j, 0, "0")
        if j + D == 8: k_adv()
        k_read((j + D) % 8)
    if slow:
        p(f"s_cmp_lg_u32 s{sRETRY}, 0\ns_cbranch_scc1 K2_HAVE_M")
    s0 = S
    p(f"""
    v_max3_f32 v{vT0}, v{s0}, v{s0+1}, v{s0+2}
    v_max3_f32 v{vT1}, v{s0+3}, v{s0+4}, v{s0+5}
    v_max3_f32 v{vT0}, v{vT0}, v{s0+6}, v{s0+7}
    v_max3_f32 v{vT1}, v{vT1}, v{s0+8}, v{s0+9}
    v_max3_f32 v{vT0}, v{vT0}, v{s0+10}, v{s0+11}
    v_max3_f32 v{vT1}, v{vT1}, v{s0+12}, v{s0+13}
    v_max3_f32 v{vT0}, v{vT0}, v{s0+14}, v{s0+15}
    v_max_f32 v{vT0}, v{vT0}, v{vT1}
    v_mov_b32 v{vT1}, v{vT0}
    v_permlane32_swap_b32 v{vT0}, v{vT1}
    v_max_f32 v{vT0}, v{vT0}, v{vT1}
    """)
    for i in range(16): p(f"v_sub_f32 v{NEGM+i}, 0, v{vT0}")
    if slow: p.label("K2_HAVE_M")
    for i in range(16): p(f"v_add_f32 v{s0+i}, v{s0+i}, v{NEGM}")
    p("s_waitcnt vmcnt(0)\ns_barrier")
    ST()
    if stamp: p("s_waitcnt lgkmcnt(0)")
    dma_k(); dma_k(); dma_v(); dma_v()
    p(f"""
    s_lshl_b32 s{sT0}, s2, 15
    v_lshlrev_b32 v{vPFa}, 6, v0
    v_add_u32 v{vPFb}, s{sT0}, v{vPFa}
    global_load_dword v{vPF}, v{vPFb}, s[10:11]
    s_mul_i32 s{sT0}, s2, 28672
    v_min_u32 v{vPFa}, {28672-64}, v{vPFa}
    v_add_u32 v{vPFb}, s{sT0}, v{vPFa}
    global_load_dword v{vPF}, v{vPFb}, s[16:17]
    """)
    NEG = f"v[{NEGM}:{NEGM+15}]"
    def iteration(t, doQK, doPV, prevSM, nextQK, nextPV):
        sb = t & 1
        for j in range(8):
            if doQK: qk(j, sb ^ 1, NEG)
            if (j > 0 or prevSM) and 'novalu' not in dbg:
                e = E + 2 * ((j - 1) & 1)
                pb = sb if j > 0 else sb ^ 1
                pr = P + 8 * pb + ((j - 1) & 7)
                p(f"v_add_f32 v{vL0}, v{vL0}, v{e}\nv_add_f32 v{vL1}, v{vL1}, v{e+1}\nv_cvt_pk_bf16_f32 v{pr}, v{e}, v{e+1}")
            if doPV: pv(j, sb ^ 1)
            e = E + 2 * (j & 1)
            if 'novalu' not in dbg and 'noexp' not in dbg: p(f"v_exp_f32 v{e}, v{S+16*sb+2*j}\nv_exp_f32 v{e+1}, v{S+16*sb+2*j+1}")
            jj = j + D
            if jj < 8:
                if doQK: k_read(jj)
                if doPV: v_read(jj)
            else:
                if jj == 8:
                    if nextQK: k_adv()
                    if nextPV and doPV: v_adv()
                if nextQK: k_read(jj - 8)
                if nextPV: v_read(jj - 8)
    iteration(0, True, False, False, True, True)
    p(f"s_mov_b32 s{sN}, 0")
    st = list(lq.q)
    p(".p2align 6")
    p.label("K2_P2")
    iteration(1, True, True, True, True, True)
    if 'nobar' not in dbg: p("s_waitcnt vmcnt(2)\ns_barrier")
    if 'nodma' not in dbg:
        dma_k(); dma_k(); dma_v(); dma_v(); dma_f(); dma_f()
    iteration(2, True, True, True, True, True)
    assert lq.q == st, (lq.q, st)
    p(f"""
    s_add_u32 s{sN}, s{sN}, 1
    s_cmp_lt_u32 s{sN}, 7
    s_cbranch_scc1 K2_P2
    """)
    iteration(15, False, True, True, False, True)
    e = E + 2
    p(f"v_add_f32 v{vL0}, v{vL0}, v{e}\nv_add_f32 v{vL1}, v{vL1}, v{e+1}\nv_cvt_pk_bf16_f32 v{P+8+7}, v{e}, v{e+1}")
    for i in range(8):
        pv(i, 1)
        if i + D < 8: v_read(i + D)
    ST()
    if stamp: p("s_waitcnt lgkmcnt(0)")
    p(f"""
    v_add_f32 v{vL0}, v{vL0}, v{vL1}
    v_mov_b32 v{vL1}, v{vL0}
    v_permlane32_swap_b32 v{vL0}, v{vL1}
    v_add_f32 v{vL0}, v{vL0}, v{vL1}
    """)
    if slow:
        p(f"""
    v_mov_b32 v{vT0}, 0x5d800000
    v_cmp_nle_f32 vcc, v{vL0}, v{vT0}
    s_cmp_lg_u64 vcc, 0
    s_cselect_b32 s{sT0}, 1, 0
    v_mov_b32 v{vT0}, s{sT0}
    s_lshl_b32 s{sT1}, s{sW}, 2
    s_add_u32 s{sT1}, s{sT1}, {L_FLAG}
    v_mov_b32 v{vT1}, s{sT1}
    ds_write_b32 v{vT1}, v{vT0}
    s_waitcnt lgkmcnt(0)
    s_barrier
    v_mov_b32 v{vT1}, {L_FLAG}
    ds_read_b128 v[{KF}:{KF+3}], v{vT1}
    ds_read_b128 v[{KF+4}:{KF+7}], v{vT1} offset:16
    """)
    if ffn:
        p(f"""
    s_lshr_b32 s{sT0}, s{sIDX}, 4
    s_lshl_b32 s{sT0}, s{sT0}, 15
    s_and_b32 s{sT1}, s2, 3
    s_lshl_b32 s{sT1}, s{sT1}, 13
    s_add_u32 s{sT0}, s{sT0}, s{sT1}
    s_lshr_b32 s{sT1}, s{sW}, 2
    s_lshl_b32 s{sT1}, s{sT1}, 12
    s_add_u32 s{sT0}, s{sT0}, s{sT1}
    s_and_b32 s{sT1}, s{sIDX}, 15
    s_lshl_b32 s{sT1}, s{sT1}, 4
    s_add_u32 s{sT0}, s{sT0}, s{sT1}
    v_lshrrev_b32 v{vT0}, 5, v1
    v_lshlrev_b32 v{vT0}, 8, v{vT0}
    v_add_u32 v{vT0}, s{sT0}, v{vT0}
    """)
        for s in range(8):
            p(f"global_load_dwordx4 v[{BR+4*s}:{BR+4*s+3}], v{vT0}, s[18:19] offset:{s*512}")
    if slow:
        p(f"""
    s_waitcnt lgkmcnt(0)
    v_or3_b32 v{KF}, v{KF}, v{KF+1}, v{KF+2}
    v_or3_b32 v{KF+4}, v{KF+4}, v{KF+5}, v{KF+6}
    v_or3_b32 v{KF}, v{KF}, v{KF+3}, v{KF+7}
    v_or_b32 v{KF}, v{KF}, v{KF+4}
    v_readfirstlane_b32 s{sT0}, v{KF}
    s_andn2_b32 s{sT0}, s{sT0}, s{sRETRY}
    s_cmp_lg_u32 s{sT0}, 0
    s_cbranch_scc1 K2_SLOW
    """)
    p(f"""
    v_rcp_f32 v{vL0}, v{vL0}
    s_lshl_b32 s{sT0}, s{sHEAD}, 19
    s_lshl_b32 s{sT1}, s{sRB}, 14
    s_add_u32 s{sT0}, s{sT0}, s{sT1}
    s_lshl_b32 s{sT1}, s{sW}, 11
    s_add_u32 s{sT0}, s{sT0}, s{sT1}
    """)
    for dt in range(4):
        for c in range(2):
            a = ACC + 16 * dt + 8 * c
            o = S + (dt * 2 + c) * 4
            for r in range(8): p(f"v_mul_f32 v{a+r}, v{a+r}, v{vL0}")
            for r in range(4): p(f"v_cvt_pk_bf16_f32 v{o+r}, v{a+2*r}, v{a+2*r+1}")
            p(f"buffer_store_dwordx4 v[{o}:{o+3}], v{vO}, s[{SRD_OT}:{SRD_OT+3}], s{sT0} offen offset:{c*512}")
        if dt < 3: p(f"s_add_u32 s{sT0}, s{sT0}, 131072")
    if stamp:
        ST()
        p("s_waitcnt vmcnt(0)")
        ST()
        p(f"""
    s_waitcnt lgkmcnt(0)
    s_lshl_b32 s{sT0}, s2, 3
    s_add_u32 s{sT0}, s{sT0}, s{sW}
    s_lshl_b32 s{sT0}, s{sT0}, 6
    s_add_u32 s{sT0}, s{sT0}, 0x3000000
    v_mov_b32 v{vT0}, s{sT0}
    """)
        p(f"s_sub_u32 s94, s98, s96")
        for i in range(8):
            p(f"v_mov_b32 v{vT1}, s{80+2*i}\nglobal_store_dword v{vT0}, v{vT1}, s[18:19] offset:{4*i}")
    if ffn:
        p(f"""
    s_cmp_ge_u32 s2, 224
    s_cbranch_scc1 K2_END
    s_and_b32 s{sT0}, s{sW}, 3
    s_lshl_b32 s{sT0}, s{sT0}, 8
    s_lshr_b32 s{sT1}, s{sW}, 2
    s_lshl_b32 s{sT1}, s{sT1}, 15
    s_add_u32 s{sT0}, s{sT0}, s{sT1}
    v_and_b32 v{vA}, 0x7fff, v{vA}
    v_add_u32 v{vA}, s{sT0}, v{vA}
    """)
        FA = QP
        for s in range(8):
            r = FA + 4 * s
            p(f"ds_read_b64_tr_b16 v[{r}:{r+1}], v{vA} offset:{s*4096}")
            p(f"ds_read_b64_tr_b16 v[{r+2}:{r+3}], v{vA} offset:{s*4096+1024}")
            if s == 6: pass
        p("s_waitcnt vmcnt(8) lgkmcnt(0)")
        for s in range(8):
            r = FA + 4 * s; b = BR + 4 * s
            c = "0" if s == 0 else f"v[{NEGM}:{NEGM+15}]"
            p(f"v_mfma_f32_32x32x16_bf16 v[{NEGM}:{NEGM+15}], v[{r}:{r+3}], v[{b}:{b+3}], {c}")
        p(f"""
    s_and_b32 s{sT0}, s2, 3
    s_lshl_b32 s{sT0}, s{sT0}, 1
    s_lshr_b32 s{sT1}, s{sW}, 2
    s_add_u32 s{sT0}, s{sT0}, s{sT1}
    s_mul_i32 s{sT0}, s{sT0}, {7168*4}
    s_lshr_b32 s{sT1}, s2, 2
    s_lshl_b32 s{sT1}, s{sT1}, 9
    s_add_u32 s{sT0}, s{sT0}, s{sT1}
    s_and_b32 s{sT1}, s{sW}, 3
    s_lshl_b32 s{sT1}, s{sT1}, 7
    s_add_u32 s{sT0}, s{sT0}, s{sT1}
    s_add_u32 s{sT0}, s{sT0}, {WS_GU}
    v_lshrrev_b32 v{vT0}, 5, v1
    v_lshlrev_b32 v{vT0}, 5, v{vT0}
    v_add_u32 v{vT0}, s{sT0}, v{vT0}
    v_and_b32 v{vT1}, 31, v1
    v_cmp_eq_u32 vcc, 0, v{vT1}
    s_and_saveexec_b64 s[{sT2}:{sT2+1}], vcc
    global_store_dwordx4 v{vT0}, v[{NEGM}:{NEGM+3}], s[18:19]
    global_store_dwordx4 v{vT0}, v[{NEGM+4}:{NEGM+7}], s[18:19] offset:16
    global_store_dwordx4 v{vT0}, v[{NEGM+8}:{NEGM+11}], s[18:19] offset:64
    global_store_dwordx4 v{vT0}, v[{NEGM+12}:{NEGM+15}], s[18:19] offset:80
    """)
    p.label("K2_END")
    p("s_endpgm")
    if slow:
        p.label("K2_SLOW")
        p(f"""
    s_mov_b32 s{sRETRY}, 1
    s_waitcnt vmcnt(0) lgkmcnt(0)
    v_and_b32 v{vT0}, 31, v1
    v_lshlrev_b32 v{vT0}, 8, v{vT0}
    v_lshrrev_b32 v{vT1}, 5, v1
    v_lshl_add_u32 v{vT0}, v{vT1}, 4, v{vT0}
    v_mov_b32 v{vT1}, 0xff800000
    s_mov_b32 s{sT0}, 0
    """)
        p.label("K2_SLOW_L")
        for j in range(8):
            p(f"buffer_load_dwordx4 v[{BR+4*j}:{BR+4*j+3}], v{vT0}, s[{SRD_K}:{SRD_K+3}], s{sT0} offen offset:{j*32}")
        p("s_waitcnt vmcnt(0)")
        for j in range(8):
            c = "0" if j == 0 else f"v[{S}:{S+15}]"
            p(f"v_mfma_f32_32x32x16_bf16 v[{S}:{S+15}], v[{BR+4*j}:{BR+4*j+3}], v[{QP+4*j}:{QP+4*j+3}], {c}")
        for i in range(0, 16, 2):
            p(f"v_max3_f32 v{vT1}, v{vT1}, v{S+i}, v{S+i+1}")
        p(f"""
    s_add_u32 s{sT0}, s{sT0}, 8192
    s_cmp_lt_u32 s{sT0}, 131072
    s_cbranch_scc1 K2_SLOW_L
    v_mov_b32 v{vT0}, v{vT1}
    v_permlane32_swap_b32 v{vT0}, v{vT1}
    v_max_f32 v{vT0}, v{vT0}, v{vT1}
    """)
        for i in range(16): p(f"v_sub_f32 v{NEGM+i}, 0, v{vT0}")
        p(f"""
    s_mov_b32 s{sKd}, s{sKbase}
    s_mov_b32 s{sVd}, s{sVbase}
    s_lshl_b32 s{sKsrc}, s{sW}, 10
    s_lshl_b32 s{sVsrc}, s{sW}, 10
    """)
        for _ in range(4): dma_k()
        for _ in range(2): dma_v()
        p(f"""
    s_mov_b32 s{sKr}, 0
    s_mov_b32 s{sVr}, 0
    v_mov_b32 v{vK}, v{vKb}
    v_mov_b32 v{vV}, v{vVb}
    s_waitcnt vmcnt(0)
    s_barrier
    s_branch K2_P2_START
    """)
    n = p.fix_hazards(verbose=True)
    return p.text(), descriptor(name, 256, 256, 100), f"; @launch kernel={name} grid=(256,1,1) block=(512,1,1) lds={L_TOTAL}"

if __name__ == "__main__":
    from gen_k1 import gen_k1
    import sys
    dbg = tuple(sys.argv[2].split(',')) if len(sys.argv) > 2 else ()
    ks = [gen_k1(), gen_k2(stamp=len(sys.argv) > 1, dbg=dbg, slow=not dbg)]
    open(sys.argv[3] if len(sys.argv) > 3 else "k12.s", "w").write("\n".join(k[2] for k in ks) + '\n.amdgcn_target "amdgcn-amd-amdhsa--gfx950"\n.text\n' + "".join(k[0] for k in ks) + '.section .rodata,"a"\n' + "".join(k[1] for k in ks))
```

```python
from gen_common import *

L_RED = 0
L_H = 98304
L_PW = 98304 + 1024
L_TOTAL = 98304 + 2048

RAW = 64; F = 192; XR = 224; GR = 240
AFR = 128
sW, sRT, sCT, sIT = 3, 16, 17, 18
sA, sBo = 19, 20
SRD_A, SRD_B, SRD_G = 24, 28, 32
sPL, sPH = 36, 37
sH0, sH1, sH2, sH3 = 38, 39, 40, 41
sT0, sT1, sT2, sT3 = 42, 43, 44, 45
sIDX, sKEY, sOWN = 46, 47, 48
sKG, sCG = 49, 50
LOG2E = "0x3fb8aa3b"

def rbf(p, v):
    p(f"v_cvt_pk_bf16_f32 v{v}, v{v}, v{v}\nv_lshlrev_b32 v{v}, 16, v{v}")

def silu(p, d, v, t):
    p(f"""
    v_mul_f32 v{t}, 0xbfb8aa3b, v{v}
    v_exp_f32 v{t}, v{t}
    v_add_f32 v{t}, 1.0, v{t}
    v_rcp_f32 v{t}, v{t}
    v_mul_f32 v{d}, v{v}, v{t}
    """)

def gen_k3(stamp=False, dbg=()):
    p = Prog()
    name = "k3_oproj_kernel"
    stamps = []
    def ST():
        if stamp:
            i = len(stamps); stamps.append(i)
            p(f"s_memtime s[{80+2*i}:{81+2*i}]")
            if i == 0: p("s_memrealtime s[96:97]")
    kernel_header(p, name)
    p(f"""
    s_cmp_ge_u32 s2, 256
    s_cbranch_scc1 K3_END
    s_load_dwordx2 s[4:5], s[0:1], 0
    s_load_dwordx2 s[6:7], s[0:1], 32
    s_load_dwordx4 s[8:11], s[0:1], 72
    s_load_dwordx4 s[12:15], s[0:1], 88
    """)
    ST()
    p(f"""
    v_lshrrev_b32 v2, 6, v0
    v_and_b32 v1, 63, v0
    v_readfirstlane_b32 s{sW}, v2
    s_and_b32 s{sT0}, s2, 7
    s_lshr_b32 s{sT1}, s2, 3
    s_lshr_b32 s{sRT}, s{sT0}, 1
    s_lshl_b32 s{sRT}, s{sRT}, 3
    s_and_b32 s{sT2}, s{sT1}, 7
    s_add_u32 s{sRT}, s{sRT}, s{sT2}
    s_and_b32 s{sCT}, s{sT0}, 1
    s_lshl_b32 s{sCT}, s{sCT}, 2
    s_lshr_b32 s{sT2}, s{sT1}, 3
    s_add_u32 s{sCT}, s{sCT}, s{sT2}
    s_lshr_b32 s{sKG}, s2, 4
    s_and_b32 s{sCG}, s2, 15
    v_lshlrev_b32 v2, 4, v1
    v_lshrrev_b32 v3, 4, v1
    v_lshlrev_b32 v3, 14, v3
    v_and_b32 v4, 15, v1
    v_lshl_add_u32 v3, v4, 4, v3
    v_add_u32 v4, 4096, v3
    v_add_u32 v5, 8192, v3
    v_add_u32 v6, 12288, v3
    s_mov_b32 s{sPL}, 0x05040100
    s_mov_b32 s{sPH}, 0x07060302
    s_lshl_b32 s{sA}, s{sRT}, 12
    s_lshl_b32 s{sBo}, s{sCT}, 8
    s_mov_b32 s{sIT}, 0
    """)
    p(f"""
    v_lshrrev_b32 v7, 3, v0
    v_lshlrev_b32 v7, 11, v7
    v_and_b32 v8, 7, v0
    v_lshl_add_u32 v7, v8, 4, v7
    s_mul_i32 s{sT0}, s{sKG}, {224*2048}
    s_lshl_b32 s{sT1}, s{sCG}, 7
    s_add_u32 s{sT0}, s{sT0}, s{sT1}
    v_add_u32 v7, s{sT0}, v7
    v_min_u32 v8, 223, v0
    s_mul_i32 s{sT0}, s{sKG}, 224
    v_add_lshl_u32 v8, v8, s{sT0}, 2
    v_add_u32 v9, {WS_KEYS}, v2
    s_waitcnt lgkmcnt(0)
    s_lshl_b32 s{sT0}, s{sW}, 22
    s_add_u32 s{sT0}, s{sT0}, {WS_OT}
    s_add_u32 s{SRD_A}, s14, s{sT0}
    s_addc_u32 s{SRD_A+1}, s15, 0
    s_mov_b32 s{SRD_A+2}, 0x400000
    s_mov_b32 s{SRD_A+3}, 0x20000
    s_lshl_b32 s{sT0}, s{sW}, 21
    s_add_u32 s{SRD_B}, s6, s{sT0}
    s_addc_u32 s{SRD_B+1}, s7, 0
    s_mov_b32 s{SRD_B+2}, 0x200000
    s_mov_b32 s{SRD_B+3}, 0x20000
    s_add_u32 s{SRD_G}, s14, {WS_GU}
    s_addc_u32 s{SRD_G+1}, s15, 0
    s_mov_b32 s{SRD_G+2}, {8*7168*4}
    s_mov_b32 s{SRD_G+3}, 0x20000
    """)
    def load_list(slot):
        L = []
        for i in range(4):
            a = AFR + slot * 16 + i * 4
            L.append(f"buffer_load_dwordx4 a[{a}:{a+3}], v2, s[{SRD_A}:{SRD_A+3}], s{sA} offen offset:{i*1024}")
        for i in range(8):
            r = RAW + slot * 32 + i * 4
            L.append(f"buffer_load_dwordx4 v[{r}:{r+3}], v{3 + i//2}, s[{SRD_B}:{SRD_B+3}], s{sBo} offen offset:{(i%2)*2048}")
        return L
    adv = f"s_add_u32 s{sA}, s{sA}, 131072\ns_add_u32 s{sBo}, s{sBo}, 65536"
    for l in load_list(0): p(l)
    p(adv)
    GUR = 12; WD = 28; KY = 56
    p(f"global_load_dwordx4 v[{KY}:{KY+3}], v9, s[14:15]")
    for q in range(16):
        off = (q % 8) * 28672 + (q // 8) * 14336
        p(f"s_mov_b32 s{sT0}, {off}\nbuffer_load_dword v{GUR+q}, v8, s[{SRD_G}:{SRD_G+3}], s{sT0} offen")
    for i in range(7):
        p(f"global_load_dwordx4 v[{WD+4*i}:{WD+4*i+3}], v7, s[8:9]")
        if i < 6: p("v_add_u32 v7, 0x10000, v7")
    for sl in (1, 2):
        for l in load_list(sl): p(l)
        p(adv)
    for i in range(128): p(f"v_accvgpr_write_b32 a{i}, 0")
    p(f"""
    s_mov_b32 s{sH0}, 0x6
    s_mov_b32 s{sH1}, 0x1
    s_mov_b32 s{sH2}, 0x1
    s_cmp_eq_u32 s{sW}, 0
    s_cselect_b32 s{sH3}, 0x3, 0
    """)
    def perm(slot, f, pp):
        j = f >> 1
        r0 = RAW + slot * 32 + (2 * pp) * 4 + j; r1 = RAW + slot * 32 + (2 * pp + 1) * 4 + j
        sel = sPH if f & 1 else sPL
        return f"v_perm_b32 v{F + (f & 1) * 4 + pp}, v{r1}, v{r0}, s{sel}"
    p("s_waitcnt vmcnt(48)")
    for pp in range(4): p(perm(0, 0, pp))
    ST()
    p(".p2align 6")
    p.label("K3_LOOP")
    for st in range(4):
        L = load_list((st + 3) & 3)
        li = 0
        for f in range(8):
            nslot, nf = (st, f + 1) if f < 7 else ((st + 1) & 3, 0)
            for i in range(4):
                d = (i * 8 + f) * 4; a = AFR + st * 16 + i * 4; b = F + (f & 1) * 4
                p(f"v_mfma_f32_16x16x32_bf16 a[{d}:{d+3}], a[{a}:{a+3}], v[{b}:{b+3}], a[{d}:{d+3}]")
                if i == 0:
                    if f == 7: p("s_waitcnt vmcnt(24)")
                    p(perm(nslot, nf, 0)); p(perm(nslot, nf, 1))
                elif i == 1:
                    p(perm(nslot, nf, 2)); p(perm(nslot, nf, 3))
                elif li < 12:
                    p(L[li]); li += 1
                    if li == 12: p(adv)
        p(f"s_bitcmp1_b32 s{sH0+st}, s{sIT}\ns_cbranch_scc1 K3_HOOK{st}")
        p.label(f"K3_RET{st}")
    p(f"""
    s_add_u32 s{sIT}, s{sIT}, 1
    s_cmp_lt_u32 s{sIT}, 8
    s_cbranch_scc1 K3_LOOP
    s_waitcnt vmcnt(0)
    """)
    ST()
    p(f"s_lshl_b32 s{sT0}, s{sW}, 13")
    for k in range(1, 4):
        pass
    for w in range(4):
        p(f"s_cmp_eq_u32 s{sW}, {w}\ns_cbranch_scc1 K3_RW{w}")
    for w in range(4):
        p.label(f"K3_RW{w}")
        for k in range(1, 4):
            i = (w + k) & 3; slot = 3 - k
            base = (i * 3 + slot) * 8192
            p(f"v_add_u32 v9, {base}, v2")
            for f in range(8):
                d = (i * 8 + f) * 4
                p(f"ds_write_b128 v9, a[{d}:{d+3}] offset:{f*1024}")
        for f in range(8):
            d = (w * 8 + f) * 4
            for r in range(4): p(f"v_accvgpr_read_b32 v{RAW + f*4 + r}, a{d+r}")
        if w < 3: p("s_branch K3_RJ")
    p.label("K3_RJ")
    XU = 96; GU_ = 128
    for r in range(4):
        for j in range(4):
            p(f"v_lshlrev_b32 v{XU + r*8 + 2*j}, 16, v{XR + r*4 + j}")
            p(f"v_and_b32 v{XU + r*8 + 2*j + 1}, 0xffff0000, v{XR + r*4 + j}")
            p(f"v_lshlrev_b32 v{GU_ + r*8 + 2*j}, 16, v{GR + r*4 + j}")
            p(f"v_and_b32 v{GU_ + r*8 + 2*j + 1}, 0xffff0000, v{GR + r*4 + j}")
    p(f"""
    s_mul_i32 s{sT0}, s{sW}, {3*8192}
    v_add_u32 v9, s{sT0}, v2
    s_waitcnt lgkmcnt(0)
    s_barrier
    """)
    RD = 160
    for sl in range(3):
        for f in range(8):
            r = RD + sl * 32 + f * 4
            p(f"ds_read_b128 v[{r}:{r+3}], v9 offset:{sl*8192 + f*1024}")
        if sl == 1: pass
    for sl in range(3):
        for f in range(8):
            n = 23 - (sl * 8 + f)
            if n <= 15 or (sl == 0 and f == 0): p(f"s_waitcnt lgkmcnt({min(n, 15)})")
            for r in range(4):
                p(f"v_add_f32 v{RAW + f*4 + r}, v{RAW + f*4 + r}, v{RD + sl*32 + f*4 + r}")
    for r in range(4):
        for f in range(8):
            p(f"v_fmac_f32 v{XU + r*8 + f}, v{RAW + f*4 + r}, v{GU_ + r*8 + f}")
        for j in range(4):
            p(f"v_cvt_pk_bf16_f32 v{RD + r*4 + j}, v{XU + r*8 + 2*j}, v{XU + r*8 + 2*j + 1}")
        p(f"global_store_dwordx4 v10, v[{RD + r*4}:{RD + r*4 + 3}], s[10:11] offset:{r*2048 if r < 2 else (r-2)*2048}" if r < 2 else
          f"global_store_dwordx4 v11, v[{RD + r*4}:{RD + r*4 + 3}], s[10:11] offset:{(r-2)*2048}")
    if stamp:
        ST()
        p("s_waitcnt vmcnt(0)")
        ST()
        p(f"""
    s_memrealtime s[98:99]
    s_waitcnt lgkmcnt(0)
    s_lshl_b32 s{sT0}, s2, 3
    s_add_u32 s{sT0}, s{sT0}, s{sW}
    s_lshl_b32 s{sT0}, s{sT0}, 6
    s_add_u32 s{sT0}, s{sT0}, 0x3100000
    v_mov_b32 v12, s{sT0}
    s_sub_u32 s94, s98, s96
    """)
        for i in range(8):
            p(f"v_mov_b32 v13, s{80+2*i}\nglobal_store_dword v12, v13, s[14:15] offset:{4*i}")
    p.label("K3_END")
    p("s_endpgm")

    p.label("K3_HOOK0")
    p(f"s_cmp_eq_u32 s{sIT}, 2\ns_cbranch_scc1 K3_HF")
    p(f"""
    s_lshl_b32 s{sT0}, s{sRT}, 2
    s_add_u32 s{sT0}, s{sT0}, s{sW}
    s_lshl_b32 s{sT1}, s{sT0}, 15
    s_lshl_b32 s{sT2}, s{sCT}, 8
    s_add_u32 s{sT2}, s{sT1}, s{sT2}
    v_lshrrev_b32 v12, 4, v1
    v_and_b32 v13, 15, v1
    v_lshlrev_b32 v10, 13, v12
    v_lshl_add_u32 v10, v13, 4, v10
    v_add_u32 v10, s{sT2}, v10
    v_add_u32 v11, 4096, v10
    s_lshl_b32 s{sT2}, s{sCT}, 12
    s_add_u32 s{sT2}, s{sT1}, s{sT2}
    v_lshlrev_b32 v14, 6, v12
    v_lshl_add_u32 v14, v13, 8, v14
    v_add_u32 v14, s{sT2}, v14
    global_load_dwordx4 v[{XR}:{XR+3}], v10, s[4:5]
    global_load_dwordx4 v[{XR+4}:{XR+7}], v10, s[4:5] offset:2048
    global_load_dwordx4 v[{XR+8}:{XR+11}], v11, s[4:5]
    global_load_dwordx4 v[{XR+12}:{XR+15}], v11, s[4:5] offset:2048
    global_load_dwordx4 v[{GR}:{GR+3}], v14, s[14:15]
    global_load_dwordx4 v[{GR+4}:{GR+7}], v14, s[14:15] offset:16
    global_load_dwordx4 v[{GR+8}:{GR+11}], v14, s[14:15] offset:32
    global_load_dwordx4 v[{GR+12}:{GR+15}], v14, s[14:15] offset:48
    s_branch K3_RET0
    """)
    p.label("K3_HF")
    for k in range(0, 16, 4):
        for u in range(4):
            p(f"v_lshlrev_b32 v{12+2*u}, 16, v{GR+k+u}\nv_and_b32 v{13+2*u}, 0xffff0000, v{GR+k+u}")
        for u in range(8): p(f"v_mul_f32 v{20+u}, 0xbfb8aa3b, v{12+u}")
        for u in range(8): p(f"v_exp_f32 v{20+u}, v{20+u}")
        for u in range(8): p(f"v_add_f32 v{20+u}, 1.0, v{20+u}")
        for u in range(8): p(f"v_rcp_f32 v{20+u}, v{20+u}")
        for u in range(8): p(f"v_mul_f32 v{12+u}, v{12+u}, v{20+u}")
        for u in range(4): p(f"v_cvt_pk_bf16_f32 v{GR+k+u}, v{12+2*u}, v{13+2*u}")
    p("s_branch K3_RET0")
    p.label("K3_HOOK1")
    p(f"""
    s_cmp_eq_u32 s{sIT}, 4
    s_cbranch_scc1 K3_HG0
    s_cmp_eq_u32 s{sIT}, 5
    s_cbranch_scc1 K3_HG1
    s_cmp_eq_u32 s{sIT}, 6
    s_cbranch_scc1 K3_HG2
    """)
    for q in range(1, 8):
        p(f"v_add_f32 v{GUR}, v{GUR}, v{GUR+q}\nv_add_f32 v{GUR+8}, v{GUR+8}, v{GUR+8+q}")
    rbf(p, GUR); rbf(p, GUR + 8)
    silu(p, GUR, GUR, GUR + 1)
    rbf(p, GUR)
    p(f"v_mul_f32 v{GUR}, v{GUR}, v{GUR+8}")
    rbf(p, GUR)
    p(f"""
    v_min_u32 v{GUR+1}, 223, v0
    v_lshlrev_b32 v{GUR+1}, 2, v{GUR+1}
    v_add_u32 v{GUR+1}, {L_H}, v{GUR+1}
    ds_write_b32 v{GUR+1}, v{GUR}
    v_max3_u32 v{KY}, v{KY}, v{KY+1}, v{KY+2}
    v_max_u32 v{KY}, v{KY}, v{KY+3}
    """)
    wave_max_u32(p, KY, KY + 1)
    p(f"""
    v_readfirstlane_b32 s{sKEY}, v{KY}
    s_and_b32 s{sIDX}, s{sKEY}, 0x7ff
    s_sub_u32 s{sIDX}, 2047, s{sIDX}
    s_lshl_b32 s{sT0}, s{sRT}, 2
    s_add_u32 s{sT0}, s{sT0}, s{sW}
    s_lshr_b32 s{sT1}, s{sIDX}, 4
    s_cmp_eq_u32 s{sT0}, s{sT1}
    s_cselect_b32 s{sH1}, 0x70, 0
    s_waitcnt lgkmcnt(0)
    s_barrier
    s_branch K3_RET1
    """)
    p.label("K3_HG0")
    p(f"""
    s_lshl_b32 s{sT0}, s{sCT}, 5
    v_mov_b32 v12, s{sT0}
    global_load_dword v13, v12, s[12:13] sc1
    s_branch K3_RET1
    """)
    p.label("K3_HG1")
    p(f"""
    v_readfirstlane_b32 s{sT0}, v13
    s_cmp_ge_u32 s{sT0}, 32
    s_cbranch_scc1 K3_HG1_OK
    """)
    p.label("K3_SPIN")
    p(f"""
    s_sleep 8
    global_load_dword v13, v12, s[12:13] sc1
    s_waitcnt vmcnt(0)
    v_readfirstlane_b32 s{sT0}, v13
    s_cmp_lt_u32 s{sT0}, 32
    s_cbranch_scc1 K3_SPIN
    """)
    p.label("K3_HG1_OK")
    p(f"""
    v_lshrrev_b32 v12, 4, v1
    v_and_b32 v13, 15, v1
    v_lshlrev_b32 v14, 14, v12
    v_lshl_add_u32 v14, v13, 5, v14
    s_lshl_b32 s{sT0}, s{sCT}, 9
    s_add_u32 s{sT0}, s{sT0}, {WS_YP}
    v_add_u32 v14, s{sT0}, v14
    """)
    for u in range(4):
        p(f"global_load_dwordx4 v[{16+8*u}:{19+8*u}], v14, s[14:15] sc1")
        p(f"global_load_dwordx4 v[{20+8*u}:{23+8*u}], v14, s[14:15] offset:16 sc1")
        if u < 3: p("v_add_u32 v14, 4096, v14")
    p(f"""
    s_lshr_b32 s{sT0}, s{sIDX}, 4
    s_lshl_b32 s{sT0}, s{sT0}, 15
    s_lshl_b32 s{sT1}, s{sCT}, 12
    s_add_u32 s{sT0}, s{sT0}, s{sT1}
    s_and_b32 s{sT1}, s{sIDX}, 15
    s_lshl_b32 s{sT1}, s{sT1}, 4
    s_add_u32 s{sT0}, s{sT0}, s{sT1}
    v_lshlrev_b32 v14, 8, v13
    v_add_u32 v14, s{sT0}, v14
    global_load_dwordx4 v[48:51], v14, s[14:15]
    s_branch K3_RET1
    """)
    p.label("K3_HG2")
    for c in range(8):
        p(f"v_add_f32 v{16+c}, v{16+c}, v{24+c}\nv_add_f32 v{32+c}, v{32+c}, v{40+c}")
    for c in range(8): p(f"v_add_f32 v{16+c}, v{16+c}, v{32+c}")
    for sw in ("v_permlane16_swap_b32", "v_permlane32_swap_b32"):
        for c in range(8): p(f"v_mov_b32 v{24+c}, v{16+c}")
        for c in range(8): p(f"{sw} v{16+c}, v{24+c}")
        for c in range(8): p(f"v_add_f32 v{16+c}, v{16+c}, v{24+c}")
    p(f"""
    s_and_b32 s{sT0}, s{sKEY}, 0xffff0000
    s_ashr_i32 s{sT1}, s{sT0}, 31
    s_not_b32 s{sT1}, s{sT1}
    s_or_b32 s{sT1}, s{sT1}, 0x80000000
    s_xor_b32 s{sT0}, s{sT0}, s{sT1}
    s_and_b32 s{sT0}, s{sT0}, 0xffff0000
    v_mov_b32 v12, s{sT0}
    v_mul_f32 v12, 0xbfb8aa3b, v12
    v_exp_f32 v12, v12
    v_add_f32 v12, 1.0, v12
    v_rcp_f32 v12, v12
    """)
    rbf(p, 12)
    for c in range(8): rbf(p, 16 + c)
    for c in range(8): p(f"v_mul_f32 v{16+c}, v{16+c}, v12")
    for c in range(8): rbf(p, 16 + c)
    for j in range(4):
        p(f"v_lshlrev_b32 v{24+2*j}, 16, v{48+j}\nv_and_b32 v{25+2*j}, 0xffff0000, v{48+j}")
    for c in range(8): p(f"v_add_f32 v{16+c}, v{16+c}, v{24+c}")
    for c in range(8): rbf(p, 16 + c)
    for c in range(8): silu(p, 16 + c, 16 + c, 24 + c)
    for j in range(4): p(f"v_cvt_pk_bf16_f32 v{32+j}, v{16+2*j}, v{17+2*j}")
    p(f"""
    v_lshrrev_b32 v12, 4, v1
    v_lshlrev_b32 v12, 2, v12
    s_and_b32 s{sT0}, s{sIDX}, 15
    """)
    for r in range(4):
        p(f"v_add_u32 v13, {r}, v12\nv_cmp_eq_u32 vcc, s{sT0}, v13")
        for j in range(4): p(f"v_cndmask_b32 v{GR+4*r+j}, v{GR+4*r+j}, v{32+j}, vcc")
    p("s_branch K3_RET1")
    p.label("K3_HOOK2")
    p(f"""
    v_lshrrev_b32 v12, 3, v0
    v_lshlrev_b32 v12, 2, v12
    v_add_u32 v12, {L_H}, v12
    """)
    for i in range(7): p(f"ds_read_b32 v{13+i}, v12 offset:{i*128}")
    AC = 20; T = 60
    p("s_waitcnt lgkmcnt(0)")
    for i in range(7):
        for j in range(4):
            w = WD + 4 * i + j
            p(f"v_lshlrev_b32 v{T}, 16, v{w}\nv_and_b32 v{T+1}, 0xffff0000, v{w}")
            if i == 0:
                p(f"v_mul_f32 v{AC+2*j}, v{T}, v13\nv_mul_f32 v{AC+2*j+1}, v{T+1}, v13")
            else:
                p(f"v_fmac_f32 v{AC+2*j}, v{T}, v{13+i}\nv_fmac_f32 v{AC+2*j+1}, v{T+1}, v{13+i}")
    for c in range(8): p(f"v_add_f32_dpp v{AC+c}, v{AC+c}, v{AC+c} row_ror:8 row_mask:0xf bank_mask:0xf")
    for sw in ("v_permlane16_swap_b32", "v_permlane32_swap_b32"):
        for c in range(8): p(f"v_mov_b32 v{28+c}, v{AC+c}")
        for c in range(8): p(f"{sw} v{AC+c}, v{28+c}")
        for c in range(8): p(f"v_add_f32 v{AC+c}, v{AC+c}, v{28+c}")
    p(f"""
    v_and_b32 v12, 7, v1
    v_lshlrev_b32 v12, 5, v12
    s_lshl_b32 s{sT0}, s{sW}, 8
    s_add_u32 s{sT0}, s{sT0}, {L_PW}
    v_add_u32 v12, s{sT0}, v12
    ds_write_b128 v12, v[{AC}:{AC+3}]
    ds_write_b128 v12, v[{AC+4}:{AC+7}] offset:16
    s_waitcnt lgkmcnt(0)
    s_barrier
    s_branch K3_RET2
    """)
    p.label("K3_HOOK3")
    p(f"""
    s_cmp_eq_u32 s{sIT}, 1
    s_cbranch_scc1 K3_HD
    v_lshlrev_b32 v12, 2, v1
    v_add_u32 v13, {L_PW}, v12
    ds_read_b32 v14, v13
    ds_read_b32 v15, v13 offset:256
    ds_read_b32 v16, v13 offset:512
    ds_read_b32 v17, v13 offset:768
    s_lshl_b32 s{sT0}, s{sKG}, 12
    s_lshl_b32 s{sT1}, s{sCG}, 8
    s_add_u32 s{sT0}, s{sT0}, s{sT1}
    s_add_u32 s{sT0}, s{sT0}, {WS_YP}
    v_add_u32 v12, s{sT0}, v12
    s_waitcnt lgkmcnt(0)
    v_add_f32 v14, v14, v15
    v_add_f32 v16, v16, v17
    v_add_f32 v14, v14, v16
    global_store_dword v12, v14, s[14:15] sc1
    s_branch K3_RET3
    """)
    p.label("K3_HD")
    p(f"""
    s_lshr_b32 s{sT0}, s{sCG}, 1
    s_lshl_b32 s{sT0}, s{sT0}, 5
    v_mov_b32 v12, s{sT0}
    v_mov_b32 v13, 1
    s_mov_b64 exec, 1
    global_atomic_add v12, v13, s[12:13] sc1
    s_mov_b64 exec, -1
    s_branch K3_RET3
    """)
    p.fix_hazards(verbose=False)
    return p.text(), descriptor(name, 512, 256, 100), f"; @launch kernel={name} grid=(256,1,1) block=(256,1,1) lds={L_TOTAL}"

def assemble(ks, fname):
    open(fname, "w").write("\n".join(k[2] for k in ks) + '\n.amdgcn_target "amdgcn-amd-amdhsa--gfx950"\n.text\n' + "".join(k[0] for k in ks) + '.section .rodata,"a"\n' + "".join(k[1] for k in ks))

if __name__ == "__main__":
    import sys
    from gen_k1 import gen_k1
    from gen_k2 import gen_k2
    st = len(sys.argv) > 1 and sys.argv[1] == "1"
    assemble([gen_k1(), gen_k2(stamp=st), gen_k3(stamp=st)], "k123.s")
```

```python
from gen_common import *

def gen_k1(prefetch=True, stamp=False):
    p = Prog()
    name = "k1_ln_kernel"
    kernel_header(p, name)
    p("""
    s_cmp_ge_u32 s2, 256
    s_cbranch_scc1 K1_END
    s_load_dwordx4 s[4:7], s[0:1], 0
    s_load_dwordx4 s[8:11], s[0:1], 16
    s_load_dwordx2 s[12:13], s[0:1], 48
    s_load_dwordx2 s[14:15], s[0:1], 96
    """)
    if stamp: p("s_memrealtime s[24:25]")
    p("""
    v_and_b32 v1, 63, v0
    v_lshrrev_b32 v2, 6, v0
    v_lshlrev_b32 v3, 4, v1
    v_lshl_add_u32 v4, v2, 11, v3
    s_lshl_b32 s16, s2, 14
    v_add_u32 v4, s16, v4
    s_lshl_b32 s17, s2, 15
    v_lshlrev_b32 v5, 6, v0
    v_add_u32 v5, s17, v5
    s_lshr_b32 s18, s2, 6
    s_lshl_b32 s18, s18, 19
    s_and_b32 s19, s2, 63
    s_lshl_b32 s19, s19, 11
    s_add_u32 s18, s18, s19
    s_add_u32 s18, s18, 393216
    v_lshlrev_b32 v6, 2, v0
    v_add_u32 v6, s18, v6
    s_waitcnt lgkmcnt(0)
    global_load_dwordx4 v[8:11], v4, s[4:5]
    global_load_dwordx4 v[12:15], v4, s[4:5] offset:1024
    global_load_dwordx4 v[16:19], v3, s[12:13]
    global_load_dwordx4 v[20:23], v3, s[12:13] offset:1024
    """)
    npf = 0
    if prefetch:
        p("""
    global_load_dword v24, v5, s[10:11]
    global_load_dword v25, v6, s[6:7]
    global_load_dword v26, v6, s[8:9]
    """)
        npf = 3
    p("""
    v_and_b32 v7, 7, v1
    v_xor_b32 v7, v7, v2
    v_lshlrev_b32 v7, 4, v7
    v_lshl_add_u32 v7, v1, 7, v7
    """)
    p("""
    v_lshrrev_b32 v28, 3, v0
    v_and_b32 v29, 7, v28
    v_and_b32 v30, 7, v0
    v_xor_b32 v29, v29, v30
    v_lshlrev_b32 v29, 4, v29
    v_lshl_add_u32 v29, v28, 8, v29
    s_lshr_b32 s20, s2, 1
    s_lshl_b32 s20, s20, 15
    s_and_b32 s21, s2, 1
    s_lshl_b32 s21, s21, 7
    s_add_u32 s20, s20, s21
    v_add_u32 v29, s20, v29
    v_add_u32 v31, 0x4000, v29
    v_lshlrev_b32 v30, 4, v0
    """)
    F = 32
    p(f"s_waitcnt vmcnt({2+npf})")
    for i in range(8):
        p(f"v_lshlrev_b32 v{F+2*i}, 16, v{8+i}")
        p(f"v_and_b32 v{F+2*i+1}, 0xffff0000, v{8+i}")
    S = 48; T = 49
    p(f"v_add_f32 v{S}, v{F}, v{F+1}")
    p(f"v_add_f32 v{T}, v{F+2}, v{F+3}")
    for i in range(4, 16, 2):
        p(f"v_add_f32 v{S}, v{S}, v{F+i}")
        p(f"v_add_f32 v{T}, v{T}, v{F+i+1}")
    p(f"v_add_f32 v{S}, v{S}, v{T}")
    wave_sum(p, S, T)
    p(f"v_mul_f32 v{S}, 0x3a800000, v{S}")
    Q0 = 50; Q1 = 51; D = 52
    for i in range(16):
        p(f"v_sub_f32 v{D+i}, v{F+i}, v{S}")
    p(f"v_mul_f32 v{Q0}, v{D}, v{D}")
    p(f"v_mul_f32 v{Q1}, v{D+1}, v{D+1}")
    for i in range(2, 16, 2):
        p(f"v_fmac_f32 v{Q0}, v{D+i}, v{D+i}")
        p(f"v_fmac_f32 v{Q1}, v{D+i+1}, v{D+i+1}")
    p(f"v_add_f32 v{Q0}, v{Q0}, v{Q1}")
    wave_sum(p, Q0, T)
    p(f"""
    v_mul_f32 v{Q0}, 0x3a800000, v{Q0}
    v_cvt_pk_bf16_f32 v{T}, v{S}, v{Q0}
    v_lshlrev_b32 v{S}, 16, v{T}
    v_and_b32 v{Q0}, 0xffff0000, v{T}
    v_add_f32 v{Q0}, 0x3727c5ac, v{Q0}
    v_cvt_pk_bf16_f32 v{Q0}, v{Q0}, v{Q0}
    v_lshlrev_b32 v{Q0}, 16, v{Q0}
    v_sqrt_f32 v{Q0}, v{Q0}
    v_cvt_pk_bf16_f32 v{Q0}, v{Q0}, v{Q0}
    v_lshlrev_b32 v{Q0}, 16, v{Q0}
    v_rcp_f32 v{Q0}, v{Q0}
    """)
    for i in range(16):
        p(f"v_sub_f32 v{D+i}, v{F+i}, v{S}")
    for i in range(8):
        p(f"v_cvt_pk_bf16_f32 v{8+i}, v{D+2*i}, v{D+2*i+1}")
    for i in range(8):
        p(f"v_lshlrev_b32 v{D+2*i}, 16, v{8+i}")
        p(f"v_and_b32 v{D+2*i+1}, 0xffff0000, v{8+i}")
    for i in range(16):
        p(f"v_mul_f32 v{D+i}, v{D+i}, v{Q0}")
    for i in range(8):
        p(f"v_cvt_pk_bf16_f32 v{8+i}, v{D+2*i}, v{D+2*i+1}")
    p(f"""
    ds_write_b128 v7, v[8:11]
    ds_write_b128 v7, v[12:15] offset:8192
    s_waitcnt vmcnt({npf})
    """)
    for i in range(8):
        p(f"v_lshlrev_b32 v{D+2*i}, 16, v{8+i}")
        p(f"v_and_b32 v{D+2*i+1}, 0xffff0000, v{8+i}")
        p(f"v_lshlrev_b32 v{F+2*i}, 16, v{16+i}")
        p(f"v_and_b32 v{F+2*i+1}, 0xffff0000, v{16+i}")
    p(f"v_mul_f32 v{S}, v{D}, v{F}")
    p(f"v_mul_f32 v{Q1}, v{D+1}, v{F+1}")
    for i in range(2, 16, 2):
        p(f"v_fmac_f32 v{S}, v{D+i}, v{F+i}")
        p(f"v_fmac_f32 v{Q1}, v{D+i+1}, v{F+i+1}")
    p(f"v_add_f32 v{S}, v{S}, v{Q1}")
    wave_sum(p, S, T)
    p(f"""
    v_cvt_pk_bf16_f32 v{S}, v{S}, v{S}
    v_lshlrev_b32 v{S}, 16, v{S}
    v_ashrrev_i32 v{T}, 31, v{S}
    v_or_b32 v{T}, 0x80000000, v{T}
    v_xor_b32 v{S}, v{S}, v{T}
    v_and_b32 v{S}, 0xffff0000, v{S}
    s_lshl_b32 s21, s2, 3
    s_sub_u32 s21, 2047, s21
    v_sub_u32 v{T}, s21, v2
    v_or_b32 v{S}, v{S}, v{T}
    v_lshlrev_b32 v{T}, 2, v2
    ds_write_b32 v{T}, v{S} offset:16384
    s_waitcnt lgkmcnt(0)
    s_barrier
    v_mov_b32 v{T}, 0
    ds_read_b128 v[8:11], v30
    ds_read_b128 v[12:15], v30 offset:8192
    ds_read_b128 v[16:19], v{T} offset:16384
    ds_read_b128 v[20:23], v{T} offset:16400
    s_waitcnt lgkmcnt(3)
    global_store_dwordx4 v29, v[8:11], s[14:15]
    s_waitcnt lgkmcnt(2)
    global_store_dwordx4 v31, v[12:15], s[14:15]
    s_waitcnt lgkmcnt(0)
    v_max3_u32 v16, v16, v17, v18
    v_max3_u32 v20, v20, v21, v22
    v_max3_u32 v16, v16, v19, v23
    v_max_u32 v16, v16, v20
    s_lshl_b32 s21, s2, 2
    s_add_u32 s21, s21, {WS_KEYS}
    v_mov_b32 v17, s21
    """)
    if stamp:
        p("""
    s_waitcnt vmcnt(0)
    s_memrealtime s[26:27]
    s_lshl_b32 s28, s2, 3
    v_add_u32 v18, s28, v2
    v_lshlrev_b32 v18, 6, v18
    v_add_u32 v18, 0x3200000, v18
    s_waitcnt lgkmcnt(0)
    v_mov_b32 v19, s24
    v_mov_b32 v20, s26
    global_store_dwordx2 v18, v[19:20], s[14:15] offset:32
    """.replace("v[19:20]", "v[20:21]").replace("v_mov_b32 v20, s26", "v_mov_b32 v21, s26").replace("v_mov_b32 v19, s24", "v_mov_b32 v20, s24"))
    p(f"""
    v_cmp_eq_u32 vcc, 0, v0
    s_and_saveexec_b64 s[22:23], vcc
    s_cbranch_execz K1_END
    global_store_dword v17, v16, s[14:15]
    """)
    p.label("K1_END")
    p("s_endpgm")
    p.fix_hazards()
    return p.text(), descriptor(name, 72, 72, 32), f"; @launch kernel={name} grid=(256,1,1) block=(512,1,1) lds=16448"

if __name__ == "__main__":
    t, d, l = gen_k1()
    open("k1.s", "w").write(l + '\n.amdgcn_target "amdgcn-amd-amdhsa--gfx950"\n.text\n' + t + '.section .rodata,"a"\n' + d)
```

```python
from gen_common import *
import math, struct

KSL = 8704; VSL = 8192
L_K = 65536
L_VB = L_K + 8 * KSL
L_FP = L_VB + 3 * VSL
L_TOTAL = L_FP + 4096
def Kofs(t): return (t % 8) * KSL
def Vslot(t):
    s = t % 11
    return ("B", s * VSL) if s < 3 else ("A", (s - 3) * VSL)
def Vabs(t):
    r, o = Vslot(t); return (L_VB if r == "B" else 0) + o

vDk, vDv, vKb, vVa, vVb, vO, vL0, vL1, vDf, vPF, vT0, vT1, vT2, vT3 = 2, 3, 4, 5, 6, 7, 8, 9, 10, 11, 12, 13, 14, 15
ACC = 16; QP = 80; S = 112; NEGM = 144; P = 160; KF = 176; VF = 192; E = 208
QA = 112; AF = 176
def BRr(buf, k): return (QP + buf * 16 + k * 4) if buf < 2 else (212 + (buf - 2) * 16 + k * 4)
FR = 212
vA0, vA1, vDq, vDq2, vXB0, vXB1 = 244, 245, 246, 247, 248, 249
FT = 244; FD = 248; XS = 252
sW = 3
sHEAD, sRB, sG = 20, 21, 22
sN, sWq, sM, sB = 23, 24, 25, 26
sKsrc, sKw, sVsrc, sVw = 27, 28, 29, 30
sPL, sPH = 31, 32
sFsrc, sIDX = 33, 35
SRD_WQ, SRD_XN, SRD_K, SRD_V, SRD_F, SRD_OT = 36, 40, 44, 48, 52, 56
sT0, sT1, sT2, sT3 = 60, 61, 62, 63
sOT = 64
QSCALE = math.log2(math.e) / math.sqrt(128.0)
def fbits(x): return "0x%08x" % struct.unpack("<I", struct.pack("<f", x))[0]
D = 4

class Q:
    def __init__(self, cnt, mx): self.q = []; self.cnt = cnt; self.mx = mx
    def issue(self, tag): self.q.append(tag)
    def wait(self, p, *tags):
        idx = [len(self.q) - 1 - self.q[::-1].index(t) for t in tags if t in self.q]
        if not idx: return
        i = max(idx)
        n = len(self.q) - 1 - i
        assert n <= self.mx, n
        p(f"s_waitcnt {self.cnt}({n})")
        self.q = self.q[i + 1:]

def gen_k2(ffn=True, slow=True, stamp=False, dbg=()):
    p = Prog()
    stamps = []
    def ST(wait=True):
        if stamp:
            i = len(stamps); stamps.append(i)
            p(f"s_memtime s[{80+2*i}:{81+2*i}]")
            if i == 0: p("s_memrealtime s[96:97]")
            if i == 6: p("s_memrealtime s[98:99]")
            if wait: p("s_waitcnt lgkmcnt(0)")
    name = "k2_attn_kernel"
    kernel_header(p, name)
    p(f"""
    s_cmp_ge_u32 s2, 256
    s_cbranch_scc1 K2_END
    s_load_dwordx4 s[8:11], s[0:1], 24
    s_load_dwordx2 s[18:19], s[0:1], 96
    s_load_dwordx4 s[4:7], s[0:1], 8
    s_load_dwordx4 s[12:15], s[0:1], 56
    s_load_dwordx2 s[16:17], s[0:1], 72
    v_lshrrev_b32 v{vT2}, 6, v0
    v_and_b32 v1, 63, v0
    v_readfirstlane_b32 s{sW}, v{vT2}
    s_and_b32 s{sT0}, s2, 7
    s_lshr_b32 s{sT1}, s2, 3
    s_lshr_b32 s{sG}, s{sT0}, 1
    s_and_b32 s{sT0}, s{sT0}, 1
    s_lshl_b32 s{sT0}, s{sT0}, 2
    s_lshr_b32 s{sT2}, s{sT1}, 3
    s_add_u32 s{sRB}, s{sT0}, s{sT2}
    s_and_b32 s{sT1}, s{sT1}, 7
    s_lshl_b32 s{sHEAD}, s{sG}, 3
    s_add_u32 s{sHEAD}, s{sHEAD}, s{sT1}
    """)
    ST(False)
    p(f"""
    v_lshrrev_b32 v{vT0}, 4, v1
    v_and_b32 v{vT1}, 3, v1
    v_lshlrev_b32 v{vT1}, 4, v{vT1}
    v_lshl_add_u32 v{vT1}, v{vT0}, 6, v{vT1}
    v_bfe_u32 v{vT3}, v1, 2, 2
    v_lshl_add_u32 v{vDq}, v{vT3}, 13, v{vT1}
    v_and_b32 v{vT2}, 1, v{vT2}
    v_lshlrev_b32 v{vT2}, 5, v{vT2}
    v_xor_b32 v{vDq}, v{vDq}, v{vT2}
    v_add_u32 v{vDq2}, {32768-1024}, v{vDq}
    v_lshlrev_b32 v{vXB0}, 4, v1
    v_add_u32 v{vXB1}, 0x8000, v{vXB0}
    s_lshl_b32 s{sWq}, s{sW}, 16
    s_lshl_b32 s{sM}, s{sW}, 11
    s_mov_b32 s{sB}, 0
    s_lshl_b32 s{sT0}, s{sHEAD}, 8
    s_lshl_b32 s{sT1}, s{sRB}, 3
    s_add_u32 s{sT1}, s{sT1}, s{sW}
    s_lshl_b32 s{sT1}, s{sT1}, 16
    v_add_u32 v{vPF}, {WS_KEYS}, v{vXB0}
    s_waitcnt lgkmcnt(0)
    s_add_u32 s{SRD_WQ}, s8, s{sT0}
    s_addc_u32 s{SRD_WQ+1}, s9, 0
    s_sub_u32 s{SRD_WQ+2}, 0x800000, s{sT0}
    s_mov_b32 s{SRD_WQ+3}, 0x20000
    s_add_u32 s{SRD_XN}, s18, s{sT1}
    s_addc_u32 s{SRD_XN+1}, s19, 0
    s_mov_b32 s{SRD_XN+2}, 0x10000
    s_mov_b32 s{SRD_XN+3}, 0x20000
    global_load_dwordx4 v[{E}:{E+3}], v{vPF}, s[18:19]
    """)
    def dma_wq(slot, e):
        if e == 0:
            return f"""s_add_u32 m0, s{sM}, {slot*16384}
    s_nop 0
    buffer_load_dwordx4 v{vDq}, s[{SRD_WQ}:{SRD_WQ+3}], s{sWq} offen lds"""
        return f"""s_add_u32 m0, s{sM}, {slot*16384}
    s_nop 0
    buffer_load_dwordx4 v{vDq2}, s[{SRD_WQ}:{SRD_WQ+3}], s{sWq} offen offset:1024 lds
    s_add_u32 s{sWq}, s{sWq}, 524288"""
    def load_b(buf, k):
        ct, u = k >> 1, k & 1
        r = BRr(buf, k)
        t = f"buffer_load_dwordx4 v[{r}:{r+3}], v{vXB1 if ct else vXB0}, s[{SRD_XN}:{SRD_XN+3}], s{sB} offen offset:{u*1024}"
        if k == 3: t += f"\ns_add_u32 s{sB}, s{sB}, 2048"
        return t
    for st in range(2):
        p(dma_wq(st, 0)); p(dma_wq(st, 1))
    for k in range(4): p(load_b(0, k))
    p(f"""
    v_lshl_add_u32 v{vDv}, v{vT3}, 8, v{vT1}
    v_mul_u32_u24 v{vDf}, {8*7168}, v{vT0}
    v_and_b32 v{vT1}, 15, v1
    v_lshl_add_u32 v{vDf}, v{vT1}, 4, v{vDf}
    v_and_b32 v{vT0}, 3, v1
    v_lshrrev_b32 v{vT1}, 2, v1
    v_lshlrev_b32 v{vT1}, 4, v{vT1}
    v_lshl_add_u32 v{vDk}, v{vT0}, 8, v{vT1}
    v_lshrrev_b32 v{vT1}, 4, v1
    v_lshlrev_b32 v{vA0}, 11, v{vT1}
    v_lshl_add_u32 v{vA0}, v{vT3}, 6, v{vA0}
    v_lshl_add_u32 v{vA0}, v{vT0}, 3, v{vA0}
    v_and_b32 v{vT1}, 1, v{vT1}
    v_lshl_add_u32 v{vA0}, v{vT1}, 5, v{vA0}
    v_xor_b32 v{vA1}, 32, v{vA0}
    v_bfe_u32 v{vT0}, v1, 1, 1
    v_and_b32 v{vT2}, 1, v1
    v_lshl_add_u32 v{vT0}, v{vT2}, 1, v{vT0}
    v_lshl_add_u32 v{vT0}, v{vT1}, 2, v{vT0}
    v_lshlrev_b32 v{vT0}, 3, v{vT0}
    v_lshl_add_u32 v{vT0}, v{vT3}, 6, v{vT0}
    v_lshrrev_b32 v{vT1}, 5, v1
    v_lshl_add_u32 v{vVa}, v{vT1}, 10, v{vT0}
    v_add_u32 v{vVb}, {L_VB}, v{vVa}
    v_bfe_u32 v{vT0}, v1, 2, 3
    v_mul_u32_u24 v{vT0}, 1088, v{vT0}
    v_lshl_add_u32 v{vT0}, v{vT1}, 6, v{vT0}
    v_and_b32 v{vKb}, 3, v1
    v_lshl_add_u32 v{vKb}, v{vKb}, 4, v{vT0}
    v_add_u32 v{vKb}, {L_K}, v{vKb}
    v_bfe_u32 v{vT0}, v1, 4, 1
    v_lshlrev_b32 v{vT0}, 10, v{vT0}
    v_lshl_add_u32 v{vT0}, v{vT1}, 8, v{vT0}
    v_and_b32 v{vO}, 15, v1
    v_lshl_add_u32 v{vO}, v{vO}, 4, v{vT0}
    s_lshl_b32 s{sT0}, s{sG}, 19
    s_add_u32 s{sT0}, s{sT0}, 393216
    s_add_u32 s{SRD_K}, s4, s{sT0}
    s_addc_u32 s{SRD_K+1}, s5, 0
    s_mov_b32 s{SRD_K+2}, 0x20000
    s_mov_b32 s{SRD_K+3}, 0x20000
    s_add_u32 s{SRD_V}, s6, s{sT0}
    s_addc_u32 s{SRD_V+1}, s7, 0
    s_mov_b32 s{SRD_V+2}, 0x20000
    s_mov_b32 s{SRD_V+3}, 0x20000
    s_add_u32 s{SRD_OT}, s18, {WS_OT}
    s_addc_u32 s{SRD_OT+1}, s19, 0
    s_mov_b32 s{SRD_OT+2}, 0x1000000
    s_mov_b32 s{SRD_OT+3}, 0x20000
    s_mul_i32 s{sKw}, s{sW}, 1088
    s_lshl_b32 s{sVw}, s{sW}, 10
    s_mov_b32 s{sKsrc}, s{sVw}
    s_mov_b32 s{sVsrc}, s{sVw}
    s_mov_b32 s{sN}, 0
    s_mov_b32 s{sPL}, 0x05040100
    s_mov_b32 s{sPH}, 0x07060302
    s_lshr_b32 s{sT0}, s2, 2
    s_and_b32 s{sT1}, s2, 3
    s_cmp_ge_u32 s{sT0}, 28
    s_cselect_b32 s{SRD_F}, s14, s12
    s_cselect_b32 s{SRD_F+1}, s15, s13
    s_cselect_b32 s{sT2}, 28, 0
    s_sub_u32 s{sT2}, s{sT0}, s{sT2}
    s_lshl_b32 s{sT2}, s{sT2}, 8
    s_mul_i32 s{sT3}, s{sT1}, {256*7168}
    s_add_u32 s{sT2}, s{sT2}, s{sT3}
    s_add_u32 s{SRD_F}, s{SRD_F}, s{sT2}
    s_addc_u32 s{SRD_F+1}, s{SRD_F+1}, 0
    s_cmp_lt_u32 s2, 224
    s_cselect_b32 s{SRD_F+2}, {255*7168+256}, 0
    s_mov_b32 s{SRD_F+3}, 0x20000
    s_mul_i32 s{sFsrc}, s{sW}, {32*7168}
    s_lshl_b32 s{sOT}, s{sHEAD}, 19
    s_lshl_b32 s{sT1}, s{sRB}, 14
    s_add_u32 s{sOT}, s{sOT}, s{sT1}
    s_lshl_b32 s{sT1}, s{sW}, 11
    s_add_u32 s{sOT}, s{sOT}, s{sT1}
    """)
    for i in range(64): p(f"v_mov_b32 v{QA+i}, 0")
    for k in range(4): p(load_b(1, k))
    p(dma_wq(2, 0)); p(dma_wq(2, 1))
    for k in range(4): p(load_b(2, k))
    for i in range(64): p(f"v_mov_b32 v{ACC+i}, 0")
    p(f"""
    v_mov_b32 v{vL0}, 0
    v_mov_b32 v{vL1}, 0
    s_waitcnt vmcnt(18)
    v_max3_u32 v{E}, v{E}, v{E+1}, v{E+2}
    v_max_u32 v{E}, v{E}, v{E+3}
    """)
    wave_max_u32(p, E, E + 1)
    p(f"""
    v_readfirstlane_b32 s{sIDX}, v{E}
    s_and_b32 s{sIDX}, s{sIDX}, 0x7ff
    s_sub_u32 s{sIDX}, 2047, s{sIDX}
    s_waitcnt vmcnt(10)
    s_barrier
    """)
    ST()
    lq = Q("lgkmcnt", 15); vq = Q("vmcnt", 63)
    def a_read(slot, T, u, t):
        r = AF + (T & 3) * 8 + u * 4 + t * 2
        p(f"ds_read_b64_tr_b16 v[{r}:{r+1}], v{vA1 if T & 1 else vA0} offset:{slot*16384 + u*8192 + t*1024 + (T>>1)*256}")
        lq.issue(("A", T & 3, u, t))
    def job_k(t):
        return (("K", t), f"""s_add_u32 m0, s{sKw}, {L_K + Kofs(t)}
    s_nop 0
    buffer_load_dwordx4 v{vDk}, s[{SRD_K}:{SRD_K+3}], s{sKsrc} offen lds
    s_add_u32 s{sKsrc}, s{sKsrc}, 8192""")
    def job_v(t):
        return (("V", t), f"""s_add_u32 m0, s{sVw}, {Vabs(t)}
    s_nop 0
    buffer_load_dwordx4 v{vDv}, s[{SRD_V}:{SRD_V+3}], s{sVsrc} offen lds
    s_add_u32 s{sVsrc}, s{sVsrc}, 8192""")
    def job_f(i):
        return (("F", i), f"""buffer_load_dwordx4 v[{FR+4*i}:{FR+4*i+3}], v{vDf}, s[{SRD_F}:{SRD_F+3}], s{sFsrc} offen
    s_add_u32 s{sFsrc}, s{sFsrc}, 7168""")
    def run(job):
        if not job: return
        if isinstance(job, str): p(job); return
        if callable(job): job(); return
        tag, code = job
        p(code); vq.issue(tag)
    def k_read(t, j):
        if 'nok' in dbg: return
        r = KF + (j % D) * 4
        p(f"ds_read_b128 v[{r}:{r+3}], v{vKb} offset:{Kofs(t) + j*128}")
        lq.issue(("K", j % D))
    def v_read(t, i):
        if 'nov' in dbg: return
        ks, dt = i >> 2, i & 3
        r = VF + (i % D) * 4
        reg, o = Vslot(t); va = vVb if reg == "B" else vVa
        p(f"ds_read_b64_tr_b16 v[{r}:{r+1}], v{va} offset:{o + ks*4096 + dt*256}")
        lq.issue(("Va", i % D))
        p(f"ds_read_b64_tr_b16 v[{r+2}:{r+3}], v{va} offset:{o + ks*4096 + 2048 + dt*256}")
        lq.issue(("V", i % D))
    LA = 3
    for T in range(LA):
        for u in range(2):
            for t in range(2): a_read(0, T, u, t)
    def stage(slot, vm, last=False):
        for T in range(8):
            a = AF + (T & 3) * 8
            Tn = T + LA; ns = slot
            if Tn >= 8: Tn -= 8; ns = (slot + 1) & 3
            rd = not (last and T + LA >= 8)
            k = 0
            for ct in range(2):
                for u in range(2):
                    d = QA + (T * 2 + ct) * 4; b = BRr(slot, ct * 2 + u)
                    lq.wait(p, ("A", T & 3, u, 1))
                    p(f"v_mfma_f32_16x16x32_bf16 v[{d}:{d+3}], v[{a+4*u}:{a+4*u+3}], v[{b}:{b+3}], v[{d}:{d+3}]")
                    if rd: a_read(ns, Tn, k >> 1, k & 1)
                    k += 1
            if T < len(vm): run(vm[T])
    def std_vm(slot):
        n = (slot + 3) & 3
        return [dma_wq(n, 0), dma_wq(n, 1), load_b(n, 0), load_b(n, 1), load_b(n, 2), load_b(n, 3)]
    st0 = list(lq.q)
    p(".p2align 6")
    p.label("K2_P1")
    for s4 in range(4):
        stage(s4, std_vm(s4))
        if s4 == 3:
            p(f"s_add_u32 s{sN}, s{sN}, 1\ns_cmp_lt_u32 s{sN}, 3")
        p("s_waitcnt vmcnt(10)\ns_barrier")
    assert lq.q == st0
    p("s_cbranch_scc1 K2_P1")
    vq.q = [("B14", k) for k in range(4)][0:0]
    vq.q = [("B13", 0)] * 4 + [("W14", 0), ("W14", 1)] + [("B14", k) for k in range(4)]
    sv = std_vm(0)
    stage(0, [(("W15", 0), sv[0]), (("W15", 1), sv[1])] + [(("B15", k), sv[2 + k]) for k in range(4)])
    vq.wait(p, ("W14", 1)); p("s_barrier")
    stage(1, [job_k(0), job_k(1), job_k(2), job_v(0), job_k(3), job_v(1), job_k(4), job_k(5)])
    vq.wait(p, ("W15", 1), ("B14", 3)); p("s_barrier")
    stage(2, [job_v(2), None, job_k(6), None, job_k(7)])
    vq.wait(p, ("B15", 3), ("K", 1)); p("s_barrier")
    stage(3, [], last=True)
    ST()
    if stamp: lq.q = []
    for j in range(D): k_read(0, j)
    p(f"s_mov_b32 s{sT0}, {fbits(QSCALE)}")
    for T in range(8):
        for ct in range(2):
            a = QA + (T * 2 + ct) * 4
            for r in range(4): p(f"v_mul_f32 v{a+r}, s{sT0}, v{a+r}")
        for ct in range(2):
            a = QA + (T * 2 + ct) * 4
            for k in range(2): p(f"v_cvt_pk_bf16_f32 v{QP + 4*T + 2*ct + k}, v{a+2*k}, v{a+2*k+1}")
        if T > 0:
            for k in range(2): p(f"v_permlane16_swap_b32 v{QP + 4*(T-1) + k}, v{QP + 4*(T-1) + 2 + k}")
    for k in range(2): p(f"v_permlane16_swap_b32 v{QP + 28 + k}, v{QP + 30 + k}")
    def qk(j, sbuf, cinit):
        lq.wait(p, ("K", j % D))
        k = KF + (j % D) * 4; q = QP + 4 * j; d = S + 16 * sbuf
        c = cinit if j == 0 else f"v[{d}:{d+15}]"
        p(f"v_mfma_f32_32x32x16_bf16 v[{d}:{d+15}], v[{k}:{k+3}], v[{q}:{q+3}], {c}")
    def pv(i, pbuf):
        lq.wait(p, ("V", i % D))
        ks, dt = i >> 2, i & 3
        v = VF + (i % D) * 4; b = P + 8 * pbuf + 4 * ks; d = ACC + 16 * dt
        p(f"v_mfma_f32_32x32x16_bf16 v[{d}:{d+15}], v[{v}:{v+3}], v[{b}:{b+3}], v[{d}:{d+15}]")
    for j in range(8):
        qk(j, 0, "0")
        k_read(0 if j + D < 8 else 1, (j + D) % 8)
    vq.wait(p, ("K", 3), ("V", 1)); p("s_barrier")
    ST()
    if stamp: lq.q = []
    s0 = S
    p(f"""
    v_max3_f32 v{vT0}, v{s0}, v{s0+1}, v{s0+2}
    v_max3_f32 v{vT1}, v{s0+3}, v{s0+4}, v{s0+5}
    v_max3_f32 v{vT0}, v{vT0}, v{s0+6}, v{s0+7}
    v_max3_f32 v{vT1}, v{vT1}, v{s0+8}, v{s0+9}
    v_max3_f32 v{vT0}, v{vT0}, v{s0+10}, v{s0+11}
    v_max3_f32 v{vT1}, v{vT1}, v{s0+12}, v{s0+13}
    v_max3_f32 v{vT0}, v{vT0}, v{s0+14}, v{s0+15}
    v_max_f32 v{vT0}, v{vT0}, v{vT1}
    v_mov_b32 v{vT1}, v{vT0}
    v_permlane32_swap_b32 v{vT0}, v{vT1}
    v_max_f32 v{vT0}, v{vT0}, v{vT1}
    """)
    for i in range(16): p(f"v_sub_f32 v{NEGM+i}, 0, v{vT0}")
    for i in range(16): p(f"v_sub_f32 v{s0+i}, v{s0+i}, v{vT0}")
    cold = 'nof' not in dbg
    SRD_P = 68; sPo = 72
    def pf(n):
        if not cold or 'nopf' in dbg: return None
        pre = ""
        if n == 0:
            pre = f"""s_lshl_b32 s{sT0}, s2, 15
    s_add_u32 s{SRD_P}, s10, s{sT0}
    s_addc_u32 s{SRD_P+1}, s11, 0
    s_mov_b32 s{SRD_P+2}, 0x8000
    s_mov_b32 s{SRD_P+3}, 0x20000
    s_mov_b32 s{sPo}, 0
    v_lshlrev_b32 v{vPF}, 4, v0
    """
        elif n == 4:
            pre = f"""s_mul_i32 s{sT0}, s2, 28672
    s_add_u32 s{SRD_P}, s16, s{sT0}
    s_addc_u32 s{SRD_P+1}, s17, 0
    s_mov_b32 s{SRD_P+2}, 28672
    s_mov_b32 s{sPo}, 0
    """
        return (("PF", n), pre + f"""s_add_u32 m0, s{sVw}, {L_K}
    s_nop 0
    buffer_load_dwordx4 v{vPF}, s[{SRD_P}:{SRD_P+3}], s{sPo} offen lds
    s_add_u32 s{sPo}, s{sPo}, 8192""")
    xsel = (("X", 0), f"""s_lshr_b32 s{sT0}, s{sIDX}, 4
    s_lshl_b32 s{sT0}, s{sT0}, 15
    s_and_b32 s{sT1}, s2, 3
    s_lshl_b32 s{sT1}, s{sT1}, 13
    s_add_u32 s{sT0}, s{sT0}, s{sT1}
    s_lshl_b32 s{sT1}, s{sW}, 10
    s_add_u32 s{sT0}, s{sT0}, s{sT1}
    s_and_b32 s{sT1}, s{sIDX}, 15
    s_lshl_b32 s{sT1}, s{sT1}, 4
    s_add_u32 s{sT0}, s{sT0}, s{sT1}
    v_lshrrev_b32 v{vT2}, 4, v1
    v_lshlrev_b32 v{vT2}, 8, v{vT2}
    v_add_u32 v{vT2}, s{sT0}, v{vT2}
    global_load_dwordx4 v[{XS}:{XS+3}], v{vT2}, s[18:19]""")
    def ffn_step(f):
        def go():
            if f == 0:
                vq.wait(p, ("X", 0), ("F", 7))
                p(f"""
    v_and_b32 v{vT2}, 15, v1
    v_lshlrev_b32 v{vT2}, 5, v{vT2}
    s_lshl_b32 s{sT0}, s{sW}, 9
    s_add_u32 s{sT0}, s{sT0}, {L_FP}
    v_add_u32 v{vT2}, s{sT0}, v{vT2}""")
            if f > 0:
                p(f"ds_write_b32 v{vT2}, v{FD} offset:{(f-1)*4}"); lq.issue(("FW", f - 1))
            if f < 8:
                j = f >> 1; sel = sPH if f & 1 else sPL
                for pp in range(4):
                    p(f"v_perm_b32 v{FT+pp}, v{FR+(2*pp+1)*4+j}, v{FR+(2*pp)*4+j}, s{sel}")
        return go
    def ffn_mfma():
        p(f"v_mfma_f32_16x16x32_bf16 v[{FD}:{FD+3}], v[{XS}:{XS+3}], v[{FT}:{FT+3}], 0")
    def ffn_final():
        p(f"""
    s_cmp_lg_u32 s{sW}, 0
    s_cbranch_scc1 K2_FSKIP
    s_cmp_ge_u32 s2, 224
    s_cbranch_scc1 K2_FSKIP
    v_lshlrev_b32 v{vT2}, 3, v1
    v_add_u32 v{vT3}, {L_FP}, v{vT2}""")
        for w in range(8): p(f"ds_read_b64 v[{FR+2*w}:{FR+2*w+1}], v{vT3} offset:{w*512}")
        p(f"""
    s_and_b32 s{sT0}, s2, 3
    s_mul_i32 s{sT0}, s{sT0}, {7168*4}
    s_lshr_b32 s{sT1}, s2, 2
    s_lshl_b32 s{sT1}, s{sT1}, 9
    s_add_u32 s{sT0}, s{sT0}, s{sT1}
    s_add_u32 s{sT0}, s{sT0}, {WS_GU}
    v_add_u32 v{vT2}, s{sT0}, v{vT2}
    s_waitcnt lgkmcnt(0)""")
        for w in range(1, 8):
            p(f"v_add_f32 v{FR}, v{FR}, v{FR+2*w}\nv_add_f32 v{FR+1}, v{FR+1}, v{FR+2*w+1}")
        p(f"global_store_dwordx2 v{vT2}, v[{FR}:{FR+1}], s[18:19]")
        p.label("K2_FSKIP")
    NEG = f"v[{NEGM}:{NEGM+15}]"
    def iteration(t, extra=(), mid=()):
        doQK = t < 15; doPV = t > 0; prevSM = t > 0
        sb = t & 1
        for j in range(8):
            if doQK: qk(j, sb ^ 1, NEG)
            if (j > 0 or prevSM) and 'novalu' not in dbg:
                e = E + 2 * ((j - 1) & 1)
                pb = sb if j > 0 else sb ^ 1
                pr = P + 8 * pb + ((j - 1) & 7)
                p(f"v_add_f32 v{vL0}, v{vL0}, v{e}\nv_add_f32 v{vL1}, v{vL1}, v{e+1}\nv_cvt_pk_bf16_f32 v{pr}, v{e}, v{e+1}")
            if j < len(mid): run(mid[j])
            if doPV: pv(j, sb ^ 1)
            e = E + 2 * (j & 1)
            if 'novalu' not in dbg: p(f"v_exp_f32 v{e}, v{S+16*sb+2*j}\nv_exp_f32 v{e+1}, v{S+16*sb+2*j+1}")
            jj = j + D
            if jj < 8:
                if doQK: k_read(t + 1, jj)
                if doPV: v_read(t - 1, jj)
            else:
                if t + 2 <= 15: k_read(t + 2, jj - 8)
                v_read(t, jj - 8)
            if j < len(extra): run(extra[j])
    F = lambda i: job_f(i) if (ffn and cold and 'nofl' not in dbg) else None
    sched = {
        0: [job_k(8), None, job_v(3), None, job_v(4), None, F(0)],
        1: [job_v(5), None, None, job_v(6), None, None, F(1)],
        2: [job_k(9), None, job_k(10), None, job_v(7), None, F(2)],
        3: [job_v(8), None, job_v(9), None, job_v(10), None, F(3)],
        4: [job_k(11), None, job_k(12), None, job_v(11), None, F(4)],
        5: [job_v(12), None, None, job_v(13), None, None, F(5)],
        6: [job_k(13), None, job_k(14), None, job_v(14), None, F(6)],
        7: [job_v(15), None, None, None, None, None, F(7)],
        8: [job_k(15), None, xsel if (ffn and cold) else None, None, pf(0)],
        9: [pf(1), None, None, None, pf(2)],
        10: [pf(3), None, None, None, pf(4)],
        11: [pf(5), None, None, None, pf(6)],
    }
    if 'nodma' in dbg: sched = {}
    for t in range(16):
        if t > 0 and t % 2 == 0:
            b = t // 2
            need = [("K", x) for x in range(2*b+4)] + [("V", x) for x in range(2*b+2)]
            if b == 6: need = [("K", x) for x in range(16)] + [("V", x) for x in range(16)]
            vq.wait(p, *need)
            if b == 7:
                if not (ffn and cold): pass
                else:
                    lq.wait(p, ("FW", 7)); p("s_barrier")
            elif 'nobar' not in dbg: p("s_barrier")
        extra = sched.get(t, []); mid = []
        if ffn and cold and t == 12:
            extra = [ffn_step(f) for f in range(8)]; mid = [None] + [ffn_mfma] * 7
        if ffn and cold and t == 13:
            extra = [None, ffn_step(8), None, pf(7)]; mid = [ffn_mfma]
        if ffn and cold and t == 14:
            extra = [None, None, ffn_final]
        iteration(t, extra, mid)
    e = E + 2
    p(f"v_add_f32 v{vL0}, v{vL0}, v{e}\nv_add_f32 v{vL1}, v{vL1}, v{e+1}\nv_cvt_pk_bf16_f32 v{P+8+7}, v{e}, v{e+1}")
    p(f"""
    v_add_f32 v{vL0}, v{vL0}, v{vL1}
    v_mov_b32 v{vL1}, v{vL0}
    """)
    for i in range(8):
        pv(i, 1)
        if i + D < 8: v_read(15, i + D)
        if i == 0:
            p(f"v_permlane32_swap_b32 v{vL0}, v{vL1}\nv_add_f32 v{vL0}, v{vL0}, v{vL1}")
        if i == 1:
            p(f"""
    v_mov_b32 v{vT1}, 0x5d800000
    v_cmp_nle_f32 vcc, v{vL0}, v{vT1}
    v_rcp_f32 v{vL1}, v{vL0}
    """)
    ST()
    if slow:
        p(f"s_cbranch_vccnz K2_SLOW")
        p.label("K2_SLOW_RET")
    for dt in range(4):
        for c in range(2):
            a = ACC + 16 * dt + 8 * c
            o = S + (dt * 2 + c) * 4
            for r in range(8): p(f"v_mul_f32 v{a+r}, v{a+r}, v{vL1}")
            for r in range(4): p(f"v_cvt_pk_bf16_f32 v{o+r}, v{a+2*r}, v{a+2*r+1}")
            p(f"buffer_store_dwordx4 v[{o}:{o+3}], v{vO}, s[{SRD_OT}:{SRD_OT+3}], s{sOT} offen offset:{c*512}")
        if dt < 3: p(f"s_add_u32 s{sOT}, s{sOT}, 131072")
    if stamp:
        ST(False)
        p("s_waitcnt vmcnt(0)")
        ST(False)
        p(f"""
    s_waitcnt lgkmcnt(0)
    s_lshl_b32 s{sT0}, s2, 3
    s_add_u32 s{sT0}, s{sT0}, s{sW}
    s_lshl_b32 s{sT0}, s{sT0}, 6
    s_add_u32 s{sT0}, s{sT0}, 0x3000000
    v_mov_b32 v{vT0}, s{sT0}
    s_sub_u32 s94, s98, s96
    """)
        for i in range(10):
            p(f"v_mov_b32 v{vT1}, s{80+2*i}\nglobal_store_dword v{vT0}, v{vT1}, s[18:19] offset:{4*i}")
    p.label("K2_END")
    p("s_endpgm")
    if slow:
        p.label("K2_SLOW")
        p(f"""
    s_waitcnt vmcnt(0) lgkmcnt(0)
    v_and_b32 v{vT0}, 31, v1
    v_lshlrev_b32 v{vT0}, 8, v{vT0}
    v_lshrrev_b32 v{vT1}, 5, v1
    v_lshl_add_u32 v{vT0}, v{vT1}, 4, v{vT0}
    v_and_b32 v{vT2}, 19, v1
    v_bfe_u32 v{vT3}, v1, 2, 1
    v_lshl_add_u32 v{vT2}, v{vT3}, 3, v{vT2}
    v_bfe_u32 v{vT3}, v1, 3, 1
    v_lshl_add_u32 v{vT2}, v{vT3}, 2, v{vT2}
    v_lshlrev_b32 v{vT2}, 1, v{vT2}
    v_lshl_add_u32 v{vT2}, v{vT1}, 10, v{vT2}
    v_mov_b32 v{vT1}, 0xff800000
    s_mov_b32 s{sT1}, 0
    """)
        KS = KF
        def slow_qk(c0):
            for j in range(8):
                p(f"buffer_load_dwordx4 v[{KS+4*j}:{KS+4*j+3}], v{vT0}, s[{SRD_K}:{SRD_K+3}], s{sT1} offen offset:{j*32}")
            p("s_waitcnt vmcnt(0)")
            for j in range(8):
                c = c0 if j == 0 else f"v[{S}:{S+15}]"
                p(f"v_mfma_f32_32x32x16_bf16 v[{S}:{S+15}], v[{KS+4*j}:{KS+4*j+3}], v[{QP+4*j}:{QP+4*j+3}], {c}")
        p.label("K2_SLOW_L1")
        slow_qk("0")
        for i in range(0, 16, 2):
            p(f"v_max3_f32 v{vT1}, v{vT1}, v{S+i}, v{S+i+1}")
        p(f"""
    s_add_u32 s{sT1}, s{sT1}, 8192
    s_cmp_lt_u32 s{sT1}, 131072
    s_cbranch_scc1 K2_SLOW_L1
    v_mov_b32 v{vT3}, v{vT1}
    v_permlane32_swap_b32 v{vT3}, v{vT1}
    v_max_f32 v{vT1}, v{vT3}, v{vT1}
    """)
        for i in range(16): p(f"v_sub_f32 v{NEGM+i}, 0, v{vT1}")
        for i in range(64): p(f"v_mov_b32 v{ACC+i}, 0")
        p(f"v_mov_b32 v{vL0}, 0\ns_mov_b32 s{sT1}, 0")
        p.label("K2_SLOW_L2")
        slow_qk(NEG)
        for i in range(16): p(f"v_exp_f32 v{S+i}, v{S+i}")
        for i in range(16): p(f"v_add_f32 v{vL0}, v{vL0}, v{S+i}")
        for i in range(8): p(f"v_cvt_pk_bf16_f32 v{P+i}, v{S+2*i}, v{S+2*i+1}")
        for ks in range(2):
            p(f"s_add_u32 s{sT2}, s{sT1}, {ks*4096}")
            TM = S + 16
            for dt in range(4):
                r = KS + dt * 4; d = ACC + 16 * dt
                for jj in range(8):
                    key = (jj & 3) + 8 * (jj >> 2)
                    p(f"buffer_load_ushort v{TM + jj}, v{vT2}, s[{SRD_V}:{SRD_V+3}], s{sT2} offen offset:{key*256 + dt*64}")
                p("s_waitcnt vmcnt(0)")
                for jj in range(4): p(f"v_lshl_or_b32 v{r+jj}, v{TM+2*jj+1}, 16, v{TM+2*jj}")
                p(f"v_mfma_f32_32x32x16_bf16 v[{d}:{d+15}], v[{r}:{r+3}], v[{P+4*ks}:{P+4*ks+3}], v[{d}:{d+15}]")
            p("s_nop 7")
        p(f"""
    s_add_u32 s{sT1}, s{sT1}, 8192
    s_cmp_lt_u32 s{sT1}, 131072
    s_cbranch_scc1 K2_SLOW_L2
    v_mov_b32 v{vL1}, v{vL0}
    v_permlane32_swap_b32 v{vL0}, v{vL1}
    v_add_f32 v{vL0}, v{vL0}, v{vL1}
    v_rcp_f32 v{vL1}, v{vL0}
    s_nop 7
    s_branch K2_SLOW_RET
    """)
    n = p.fix_hazards(verbose='v' in dbg)
    return p.text(), descriptor(name, 256, 256, 100), f"; @launch kernel={name} grid=(256,1,1) block=(512,1,1) lds={L_TOTAL}"

if __name__ == "__main__":
    from gen_k1 import gen_k1
    import sys
    dbg = tuple(sys.argv[2].split(',')) if len(sys.argv) > 2 else ()
    ks = [gen_k1(), gen_k2(stamp=len(sys.argv) > 1 and sys.argv[1] == "1", dbg=dbg)]
    open(sys.argv[3] if len(sys.argv) > 3 else "k12.s", "w").write("\n".join(k[2] for k in ks) + '\n.amdgcn_target "amdgcn-amd-amdhsa--gfx950"\n.text\n' + "".join(k[0] for k in ks) + '.section .rodata,"a"\n' + "".join(k[1] for k in ks))
```

```python
from gen_common import *

L_RED = 0
L_H = 98304
L_PW = 98304 + 1024
L_TOTAL = 98304 + 2048

RAW = 64; F = 192; XR = 224; GR = 240
AFR = 128
sW, sRT, sCT, sIT = 3, 16, 17, 18
sA, sBo = 19, 20
SRD_A, SRD_B, SRD_G = 24, 28, 32
sPL, sPH = 36, 37
sH0, sH1, sH2, sH3 = 38, 39, 40, 41
sT0, sT1, sT2, sT3 = 42, 43, 44, 45
sIDX, sKEY, sOWN = 46, 47, 48
sKG, sCG = 49, 50
LOG2E = "0x3fb8aa3b"

def rbf(p, v):
    p(f"v_cvt_pk_bf16_f32 v{v}, v{v}, v{v}\nv_lshlrev_b32 v{v}, 16, v{v}")

def silu(p, d, v, t):
    p(f"""
    v_mul_f32 v{t}, 0xbfb8aa3b, v{v}
    v_exp_f32 v{t}, v{t}
    v_add_f32 v{t}, 1.0, v{t}
    v_rcp_f32 v{t}, v{t}
    v_mul_f32 v{d}, v{v}, v{t}
    """)

def gen_k3(stamp=False, dbg=()):
    p = Prog()
    name = "k3_oproj_kernel"
    stamps = []
    def ST():
        if stamp:
            i = len(stamps); stamps.append(i)
            p(f"s_memtime s[{80+2*i}:{81+2*i}]")
            if i == 0: p("s_memrealtime s[96:97]")
    kernel_header(p, name)
    p(f"""
    s_cmp_ge_u32 s2, 256
    s_cbranch_scc1 K3_END
    s_load_dwordx2 s[4:5], s[0:1], 0
    s_load_dwordx2 s[6:7], s[0:1], 32
    s_load_dwordx4 s[8:11], s[0:1], 72
    s_load_dwordx4 s[12:15], s[0:1], 88
    """)
    ST()
    p(f"""
    v_lshrrev_b32 v2, 6, v0
    v_and_b32 v1, 63, v0
    v_readfirstlane_b32 s{sW}, v2
    s_and_b32 s{sT0}, s2, 7
    s_lshr_b32 s{sT1}, s2, 3
    s_lshr_b32 s{sRT}, s{sT0}, 1
    s_lshl_b32 s{sRT}, s{sRT}, 3
    s_and_b32 s{sT2}, s{sT1}, 7
    s_add_u32 s{sRT}, s{sRT}, s{sT2}
    s_and_b32 s{sCT}, s{sT0}, 1
    s_lshl_b32 s{sCT}, s{sCT}, 2
    s_lshr_b32 s{sT2}, s{sT1}, 3
    s_add_u32 s{sCT}, s{sCT}, s{sT2}
    s_lshr_b32 s{sKG}, s2, 4
    s_and_b32 s{sCG}, s2, 15
    v_lshlrev_b32 v2, 4, v1
    v_lshrrev_b32 v3, 4, v1
    v_lshlrev_b32 v3, 14, v3
    v_and_b32 v4, 15, v1
    v_lshl_add_u32 v3, v4, 4, v3
    v_add_u32 v4, 4096, v3
    v_add_u32 v5, 8192, v3
    v_add_u32 v6, 12288, v3
    s_mov_b32 s{sPL}, 0x05040100
    s_mov_b32 s{sPH}, 0x07060302
    s_lshl_b32 s{sA}, s{sRT}, 12
    s_lshl_b32 s{sBo}, s{sCT}, 8
    s_mov_b32 s{sIT}, 0
    """)
    p(f"""
    v_lshrrev_b32 v7, 3, v0
    v_lshlrev_b32 v7, 11, v7
    v_and_b32 v8, 7, v0
    v_lshl_add_u32 v7, v8, 4, v7
    s_mul_i32 s{sT0}, s{sKG}, {224*2048}
    s_lshl_b32 s{sT1}, s{sCG}, 7
    s_add_u32 s{sT0}, s{sT0}, s{sT1}
    v_add_u32 v7, s{sT0}, v7
    v_min_u32 v8, 223, v0
    s_mul_i32 s{sT0}, s{sKG}, 224
    v_add_lshl_u32 v8, v8, s{sT0}, 2
    v_add_u32 v9, {WS_KEYS}, v2
    s_waitcnt lgkmcnt(0)
    s_lshl_b32 s{sT0}, s{sW}, 22
    s_add_u32 s{sT0}, s{sT0}, {WS_OT}
    s_add_u32 s{SRD_A}, s14, s{sT0}
    s_addc_u32 s{SRD_A+1}, s15, 0
    s_mov_b32 s{SRD_A+2}, 0x400000
    s_mov_b32 s{SRD_A+3}, 0x20000
    s_lshl_b32 s{sT0}, s{sW}, 21
    s_add_u32 s{SRD_B}, s6, s{sT0}
    s_addc_u32 s{SRD_B+1}, s7, 0
    s_mov_b32 s{SRD_B+2}, 0x200000
    s_mov_b32 s{SRD_B+3}, 0x20000
    s_add_u32 s{SRD_G}, s14, {WS_GU}
    s_addc_u32 s{SRD_G+1}, s15, 0
    s_mov_b32 s{SRD_G+2}, {4*7168*4}
    s_mov_b32 s{SRD_G+3}, 0x20000
    """)
    def load_list(slot):
        L = []
        for i in range(4):
            a = AFR + slot * 16 + i * 4
            L.append(f"buffer_load_dwordx4 a[{a}:{a+3}], v2, s[{SRD_A}:{SRD_A+3}], s{sA} offen offset:{i*1024}")
        for i in range(8):
            r = RAW + slot * 32 + i * 4
            L.append(f"buffer_load_dwordx4 v[{r}:{r+3}], v{3 + i//2}, s[{SRD_B}:{SRD_B+3}], s{sBo} offen offset:{(i%2)*2048}")
        return L
    adv = f"s_add_u32 s{sA}, s{sA}, 131072\ns_add_u32 s{sBo}, s{sBo}, 65536"
    for l in load_list(0): p(l)
    p(adv)
    GUR = 12; WD = 28; KY = 56
    p(f"global_load_dwordx4 v[{KY}:{KY+3}], v9, s[14:15]")
    for q in range(8):
        off = (q % 4) * 28672 + (q // 4) * 14336
        p(f"s_mov_b32 s{sT0}, {off}\nbuffer_load_dword v{GUR+(q%4)+8*(q//4)}, v8, s[{SRD_G}:{SRD_G+3}], s{sT0} offen")
    for i in range(7):
        p(f"global_load_dwordx4 v[{WD+4*i}:{WD+4*i+3}], v7, s[8:9]")
        if i < 6: p("v_add_u32 v7, 0x10000, v7")
    for sl in (1, 2):
        for l in load_list(sl): p(l)
        p(adv)
    p(f"""
    s_lshl_b32 s{sT0}, s{sRT}, 2
    s_add_u32 s{sT0}, s{sT0}, s{sW}
    s_lshl_b32 s{sT1}, s{sT0}, 15
    s_lshl_b32 s{sT2}, s{sCT}, 8
    s_add_u32 s{sT2}, s{sT1}, s{sT2}
    v_lshrrev_b32 v10, 4, v1
    v_and_b32 v11, 15, v1
    v_lshlrev_b32 v10, 13, v10
    v_lshl_add_u32 v10, v11, 4, v10
    v_add_u32 v10, s{sT2}, v10
    v_add_u32 v11, 4096, v10
    """)
    for i in range(128): p(f"v_accvgpr_write_b32 a{i}, 0")
    p(f"""
    s_mov_b32 s{sH0}, 0x6
    s_mov_b32 s{sH1}, 0x1
    s_mov_b32 s{sH2}, 0x1
    s_cmp_eq_u32 s{sW}, 0
    s_cselect_b32 s{sH3}, 0x3, 0
    """)
    def perm(slot, f, pp):
        j = f >> 1
        r0 = RAW + slot * 32 + (2 * pp) * 4 + j; r1 = RAW + slot * 32 + (2 * pp + 1) * 4 + j
        sel = sPH if f & 1 else sPL
        return f"v_perm_b32 v{F + (f & 1) * 4 + pp}, v{r1}, v{r0}, s{sel}"
    p("s_waitcnt vmcnt(40)")
    for pp in range(4): p(perm(0, 0, pp))
    ST()
    p(".p2align 6")
    p.label("K3_LOOP")
    for st in range(4):
        L = load_list((st + 3) & 3)
        li = 0
        for f in range(8):
            nslot, nf = (st, f + 1) if f < 7 else ((st + 1) & 3, 0)
            for i in range(4):
                d = (i * 8 + f) * 4; a = AFR + st * 16 + i * 4; b = F + (f & 1) * 4
                p(f"v_mfma_f32_16x16x32_bf16 a[{d}:{d+3}], a[{a}:{a+3}], v[{b}:{b+3}], a[{d}:{d+3}]")
                if i == 0:
                    if f == 7: p("s_waitcnt vmcnt(24)")
                    p(perm(nslot, nf, 0)); p(perm(nslot, nf, 1))
                elif i == 1:
                    p(perm(nslot, nf, 2)); p(perm(nslot, nf, 3))
                elif li < 12:
                    p(L[li]); li += 1
                    if li == 12: p(adv)
        p(f"s_bitcmp1_b32 s{sH0+st}, s{sIT}\ns_cbranch_scc1 K3_HOOK{st}")
        p.label(f"K3_RET{st}")
    p(f"""
    s_add_u32 s{sIT}, s{sIT}, 1
    s_cmp_lt_u32 s{sIT}, 8
    s_cbranch_scc1 K3_LOOP
    s_waitcnt vmcnt(0)
    """)
    ST()
    p(f"s_lshl_b32 s{sT0}, s{sW}, 13")
    for k in range(1, 4):
        pass
    for w in range(4):
        p(f"s_cmp_eq_u32 s{sW}, {w}\ns_cbranch_scc1 K3_RW{w}")
    for w in range(4):
        p.label(f"K3_RW{w}")
        for k in range(1, 4):
            i = (w + k) & 3; slot = 3 - k
            base = (i * 3 + slot) * 8192
            p(f"v_add_u32 v9, {base}, v2")
            for f in range(8):
                d = (i * 8 + f) * 4
                p(f"ds_write_b128 v9, a[{d}:{d+3}] offset:{f*1024}")
        for f in range(8):
            d = (w * 8 + f) * 4
            for r in range(4): p(f"v_accvgpr_read_b32 v{RAW + f*4 + r}, a{d+r}")
        if w < 3: p("s_branch K3_RJ")
    p.label("K3_RJ")
    XU = 96; GU_ = 128
    for r in range(4):
        for j in range(4):
            p(f"v_lshlrev_b32 v{XU + r*8 + 2*j}, 16, v{XR + r*4 + j}")
            p(f"v_and_b32 v{XU + r*8 + 2*j + 1}, 0xffff0000, v{XR + r*4 + j}")
            p(f"v_lshlrev_b32 v{GU_ + r*8 + 2*j}, 16, v{GR + r*4 + j}")
            p(f"v_and_b32 v{GU_ + r*8 + 2*j + 1}, 0xffff0000, v{GR + r*4 + j}")
    p(f"""
    s_mul_i32 s{sT0}, s{sW}, {3*8192}
    v_add_u32 v9, s{sT0}, v2
    s_waitcnt lgkmcnt(0)
    s_barrier
    """)
    RD = 160
    for sl in range(3):
        for f in range(8):
            r = RD + sl * 32 + f * 4
            p(f"ds_read_b128 v[{r}:{r+3}], v9 offset:{sl*8192 + f*1024}")
        if sl == 1: pass
    for sl in range(3):
        for f in range(8):
            n = 23 - (sl * 8 + f)
            if n <= 15 or (sl == 0 and f == 0): p(f"s_waitcnt lgkmcnt({min(n, 15)})")
            for r in range(4):
                p(f"v_add_f32 v{RAW + f*4 + r}, v{RAW + f*4 + r}, v{RD + sl*32 + f*4 + r}")
    for r in range(4):
        for f in range(8):
            p(f"v_fmac_f32 v{XU + r*8 + f}, v{RAW + f*4 + r}, v{GU_ + r*8 + f}")
        for j in range(4):
            p(f"v_cvt_pk_bf16_f32 v{RD + r*4 + j}, v{XU + r*8 + 2*j}, v{XU + r*8 + 2*j + 1}")
        p(f"global_store_dwordx4 v10, v[{RD + r*4}:{RD + r*4 + 3}], s[10:11] offset:{r*2048 if r < 2 else (r-2)*2048}" if r < 2 else
          f"global_store_dwordx4 v11, v[{RD + r*4}:{RD + r*4 + 3}], s[10:11] offset:{(r-2)*2048}")
    if stamp:
        ST()
        p("s_waitcnt vmcnt(0)")
        ST()
        p(f"""
    s_memrealtime s[98:99]
    s_waitcnt lgkmcnt(0)
    s_lshl_b32 s{sT0}, s2, 3
    s_add_u32 s{sT0}, s{sT0}, s{sW}
    s_lshl_b32 s{sT0}, s{sT0}, 6
    s_add_u32 s{sT0}, s{sT0}, 0x3100000
    v_mov_b32 v12, s{sT0}
    s_sub_u32 s94, s98, s96
    """)
        for i in range(10):
            p(f"v_mov_b32 v13, s{80+2*i}\nglobal_store_dword v12, v13, s[14:15] offset:{4*i}")
    p.label("K3_END")
    p("s_endpgm")

    p.label("K3_HOOK0")
    p(f"s_cmp_eq_u32 s{sIT}, 2\ns_cbranch_scc1 K3_HF")
    p(f"""
    s_lshl_b32 s{sT0}, s{sRT}, 2
    s_add_u32 s{sT0}, s{sT0}, s{sW}
    s_lshl_b32 s{sT1}, s{sT0}, 15
    s_lshl_b32 s{sT2}, s{sCT}, 8
    s_add_u32 s{sT2}, s{sT1}, s{sT2}
    v_lshrrev_b32 v12, 4, v1
    v_and_b32 v13, 15, v1
    s_lshl_b32 s{sT2}, s{sCT}, 12
    s_add_u32 s{sT2}, s{sT1}, s{sT2}
    v_lshlrev_b32 v14, 6, v12
    v_lshl_add_u32 v14, v13, 8, v14
    v_add_u32 v14, s{sT2}, v14
    global_load_dwordx4 v[{XR}:{XR+3}], v10, s[4:5]
    global_load_dwordx4 v[{XR+4}:{XR+7}], v10, s[4:5] offset:2048
    global_load_dwordx4 v[{XR+8}:{XR+11}], v11, s[4:5]
    global_load_dwordx4 v[{XR+12}:{XR+15}], v11, s[4:5] offset:2048
    global_load_dwordx4 v[{GR}:{GR+3}], v14, s[14:15]
    global_load_dwordx4 v[{GR+4}:{GR+7}], v14, s[14:15] offset:16
    global_load_dwordx4 v[{GR+8}:{GR+11}], v14, s[14:15] offset:32
    global_load_dwordx4 v[{GR+12}:{GR+15}], v14, s[14:15] offset:48
    s_branch K3_RET0
    """)
    p.label("K3_HF")
    for k in range(0, 16, 4):
        for u in range(4):
            p(f"v_lshlrev_b32 v{12+2*u}, 16, v{GR+k+u}\nv_and_b32 v{13+2*u}, 0xffff0000, v{GR+k+u}")
        for u in range(8): p(f"v_mul_f32 v{20+u}, 0xbfb8aa3b, v{12+u}")
        for u in range(8): p(f"v_exp_f32 v{20+u}, v{20+u}")
        for u in range(8): p(f"v_add_f32 v{20+u}, 1.0, v{20+u}")
        for u in range(8): p(f"v_rcp_f32 v{20+u}, v{20+u}")
        for u in range(8): p(f"v_mul_f32 v{12+u}, v{12+u}, v{20+u}")
        for u in range(4): p(f"v_cvt_pk_bf16_f32 v{GR+k+u}, v{12+2*u}, v{13+2*u}")
    p("s_branch K3_RET0")
    p.label("K3_HOOK1")
    p(f"""
    s_cmp_eq_u32 s{sIT}, 4
    s_cbranch_scc1 K3_HG0
    s_cmp_eq_u32 s{sIT}, 5
    s_cbranch_scc1 K3_HG1
    s_cmp_eq_u32 s{sIT}, 6
    s_cbranch_scc1 K3_HG2
    """)
    for q in range(1, 4):
        p(f"v_add_f32 v{GUR}, v{GUR}, v{GUR+q}\nv_add_f32 v{GUR+8}, v{GUR+8}, v{GUR+8+q}")
    rbf(p, GUR); rbf(p, GUR + 8)
    silu(p, GUR, GUR, GUR + 1)
    rbf(p, GUR)
    p(f"v_mul_f32 v{GUR}, v{GUR}, v{GUR+8}")
    rbf(p, GUR)
    p(f"""
    v_min_u32 v{GUR+1}, 223, v0
    v_lshlrev_b32 v{GUR+1}, 2, v{GUR+1}
    v_add_u32 v{GUR+1}, {L_H}, v{GUR+1}
    ds_write_b32 v{GUR+1}, v{GUR}
    v_max3_u32 v{KY}, v{KY}, v{KY+1}, v{KY+2}
    v_max_u32 v{KY}, v{KY}, v{KY+3}
    """)
    wave_max_u32(p, KY, KY + 1)
    p(f"""
    v_readfirstlane_b32 s{sKEY}, v{KY}
    s_and_b32 s{sIDX}, s{sKEY}, 0x7ff
    s_sub_u32 s{sIDX}, 2047, s{sIDX}
    s_lshl_b32 s{sT0}, s{sRT}, 2
    s_add_u32 s{sT0}, s{sT0}, s{sW}
    s_lshr_b32 s{sT1}, s{sIDX}, 4
    s_cmp_eq_u32 s{sT0}, s{sT1}
    s_cselect_b32 s{sH1}, 0x70, 0
    s_waitcnt lgkmcnt(0)
    s_barrier
    s_branch K3_RET1
    """)
    p.label("K3_HG0")
    p(f"""
    s_lshl_b32 s{sT0}, s{sCT}, 5
    v_mov_b32 v12, s{sT0}
    global_load_dword v13, v12, s[12:13] sc1
    s_branch K3_RET1
    """)
    p.label("K3_HG1")
    p(f"""
    v_readfirstlane_b32 s{sT0}, v13
    s_cmp_ge_u32 s{sT0}, 32
    s_cbranch_scc1 K3_HG1_OK
    """)
    p.label("K3_SPIN")
    p(f"""
    s_sleep 8
    global_load_dword v13, v12, s[12:13] sc1
    s_waitcnt vmcnt(0)
    v_readfirstlane_b32 s{sT0}, v13
    s_cmp_lt_u32 s{sT0}, 32
    s_cbranch_scc1 K3_SPIN
    """)
    p.label("K3_HG1_OK")
    p(f"""
    v_lshrrev_b32 v12, 4, v1
    v_and_b32 v13, 15, v1
    v_lshlrev_b32 v14, 14, v12
    v_lshl_add_u32 v14, v13, 5, v14
    s_lshl_b32 s{sT0}, s{sCT}, 9
    s_add_u32 s{sT0}, s{sT0}, {WS_YP}
    v_add_u32 v14, s{sT0}, v14
    """)
    for u in range(4):
        p(f"global_load_dwordx4 v[{16+8*u}:{19+8*u}], v14, s[14:15] sc1")
        p(f"global_load_dwordx4 v[{20+8*u}:{23+8*u}], v14, s[14:15] offset:16 sc1")
        if u < 3: p("v_add_u32 v14, 4096, v14")
    p(f"""
    s_lshr_b32 s{sT0}, s{sIDX}, 4
    s_lshl_b32 s{sT0}, s{sT0}, 15
    s_lshl_b32 s{sT1}, s{sCT}, 12
    s_add_u32 s{sT0}, s{sT0}, s{sT1}
    s_and_b32 s{sT1}, s{sIDX}, 15
    s_lshl_b32 s{sT1}, s{sT1}, 4
    s_add_u32 s{sT0}, s{sT0}, s{sT1}
    v_lshlrev_b32 v14, 8, v13
    v_add_u32 v14, s{sT0}, v14
    global_load_dwordx4 v[48:51], v14, s[14:15]
    s_branch K3_RET1
    """)
    p.label("K3_HG2")
    for c in range(8):
        p(f"v_add_f32 v{16+c}, v{16+c}, v{24+c}\nv_add_f32 v{32+c}, v{32+c}, v{40+c}")
    for c in range(8): p(f"v_add_f32 v{16+c}, v{16+c}, v{32+c}")
    for sw in ("v_permlane16_swap_b32", "v_permlane32_swap_b32"):
        for c in range(8): p(f"v_mov_b32 v{24+c}, v{16+c}")
        for c in range(8): p(f"{sw} v{16+c}, v{24+c}")
        for c in range(8): p(f"v_add_f32 v{16+c}, v{16+c}, v{24+c}")
    p(f"""
    s_and_b32 s{sT0}, s{sKEY}, 0xffff0000
    s_ashr_i32 s{sT1}, s{sT0}, 31
    s_not_b32 s{sT1}, s{sT1}
    s_or_b32 s{sT1}, s{sT1}, 0x80000000
    s_xor_b32 s{sT0}, s{sT0}, s{sT1}
    s_and_b32 s{sT0}, s{sT0}, 0xffff0000
    v_mov_b32 v12, s{sT0}
    v_mul_f32 v12, 0xbfb8aa3b, v12
    v_exp_f32 v12, v12
    v_add_f32 v12, 1.0, v12
    v_rcp_f32 v12, v12
    """)
    rbf(p, 12)
    for c in range(8): rbf(p, 16 + c)
    for c in range(8): p(f"v_mul_f32 v{16+c}, v{16+c}, v12")
    for c in range(8): rbf(p, 16 + c)
    for j in range(4):
        p(f"v_lshlrev_b32 v{24+2*j}, 16, v{48+j}\nv_and_b32 v{25+2*j}, 0xffff0000, v{48+j}")
    for c in range(8): p(f"v_add_f32 v{16+c}, v{16+c}, v{24+c}")
    for c in range(8): rbf(p, 16 + c)
    for c in range(8): silu(p, 16 + c, 16 + c, 24 + c)
    for j in range(4): p(f"v_cvt_pk_bf16_f32 v{32+j}, v{16+2*j}, v{17+2*j}")
    p(f"""
    v_lshrrev_b32 v12, 4, v1
    v_lshlrev_b32 v12, 2, v12
    s_and_b32 s{sT0}, s{sIDX}, 15
    """)
    for r in range(4):
        p(f"v_add_u32 v13, {r}, v12\nv_cmp_eq_u32 vcc, s{sT0}, v13")
        for j in range(4): p(f"v_cndmask_b32 v{GR+4*r+j}, v{GR+4*r+j}, v{32+j}, vcc")
    p("s_branch K3_RET1")
    p.label("K3_HOOK2")
    p(f"""
    v_lshrrev_b32 v12, 3, v0
    v_lshlrev_b32 v12, 2, v12
    v_add_u32 v12, {L_H}, v12
    """)
    for i in range(7): p(f"ds_read_b32 v{13+i}, v12 offset:{i*128}")
    AC = 20; T = 60
    p("s_waitcnt lgkmcnt(0)")
    for i in range(7):
        for j in range(4):
            w = WD + 4 * i + j
            p(f"v_lshlrev_b32 v{T}, 16, v{w}\nv_and_b32 v{T+1}, 0xffff0000, v{w}")
            if i == 0:
                p(f"v_mul_f32 v{AC+2*j}, v{T}, v13\nv_mul_f32 v{AC+2*j+1}, v{T+1}, v13")
            else:
                p(f"v_fmac_f32 v{AC+2*j}, v{T}, v{13+i}\nv_fmac_f32 v{AC+2*j+1}, v{T+1}, v{13+i}")
    for c in range(8): p(f"v_add_f32_dpp v{AC+c}, v{AC+c}, v{AC+c} row_ror:8 row_mask:0xf bank_mask:0xf")
    for sw in ("v_permlane16_swap_b32", "v_permlane32_swap_b32"):
        for c in range(8): p(f"v_mov_b32 v{28+c}, v{AC+c}")
        for c in range(8): p(f"{sw} v{AC+c}, v{28+c}")
        for c in range(8): p(f"v_add_f32 v{AC+c}, v{AC+c}, v{28+c}")
    p(f"""
    v_and_b32 v12, 7, v1
    v_lshlrev_b32 v12, 5, v12
    s_lshl_b32 s{sT0}, s{sW}, 8
    s_add_u32 s{sT0}, s{sT0}, {L_PW}
    v_add_u32 v12, s{sT0}, v12
    ds_write_b128 v12, v[{AC}:{AC+3}]
    ds_write_b128 v12, v[{AC+4}:{AC+7}] offset:16
    s_waitcnt lgkmcnt(0)
    s_barrier
    s_branch K3_RET2
    """)
    p.label("K3_HOOK3")
    p(f"""
    s_cmp_eq_u32 s{sIT}, 1
    s_cbranch_scc1 K3_HD
    v_lshlrev_b32 v12, 2, v1
    v_add_u32 v13, {L_PW}, v12
    ds_read_b32 v14, v13
    ds_read_b32 v15, v13 offset:256
    ds_read_b32 v16, v13 offset:512
    ds_read_b32 v17, v13 offset:768
    s_lshl_b32 s{sT0}, s{sKG}, 12
    s_lshl_b32 s{sT1}, s{sCG}, 8
    s_add_u32 s{sT0}, s{sT0}, s{sT1}
    s_add_u32 s{sT0}, s{sT0}, {WS_YP}
    v_add_u32 v12, s{sT0}, v12
    s_waitcnt lgkmcnt(0)
    v_add_f32 v14, v14, v15
    v_add_f32 v16, v16, v17
    v_add_f32 v14, v14, v16
    global_store_dword v12, v14, s[14:15] sc1
    s_branch K3_RET3
    """)
    p.label("K3_HD")
    p(f"""
    s_lshr_b32 s{sT0}, s{sCG}, 1
    s_lshl_b32 s{sT0}, s{sT0}, 5
    v_mov_b32 v12, s{sT0}
    v_mov_b32 v13, 1
    s_mov_b64 exec, 1
    global_atomic_add v12, v13, s[12:13] sc1
    s_mov_b64 exec, -1
    s_branch K3_RET3
    """)
    p.fix_hazards(verbose=False)
    return p.text(), descriptor(name, 512, 256, 100), f"; @launch kernel={name} grid=(256,1,1) block=(256,1,1) lds={L_TOTAL}"

def assemble(ks, fname):
    open(fname, "w").write("\n".join(k[2] for k in ks) + '\n.amdgcn_target "amdgcn-amd-amdhsa--gfx950"\n.text\n' + "".join(k[0] for k in ks) + '.section .rodata,"a"\n' + "".join(k[1] for k in ks))

if __name__ == "__main__":
    import sys
    from gen_k1 import gen_k1
    from gen_k2 import gen_k2
    st = len(sys.argv) > 1 and sys.argv[1] == "1"
    dbg = tuple(sys.argv[2].split(',')) if len(sys.argv) > 2 else ()
    assemble([gen_k1(stamp=st), gen_k2(stamp=st, dbg=dbg), gen_k3(stamp=st, dbg=dbg)], sys.argv[3] if len(sys.argv) > 3 else "k123.s")
```

```python
from gen_common import *
import math, struct

KSL = 8704; VSL = 8192
L_K = 65536
L_VB = L_K + 8 * KSL
L_FP = L_VB + 3 * VSL
L_TOTAL = L_FP + 4096
def Kofs(t): return (t % 8) * KSL
def Vslot(t):
    s = t % 11
    return ("B", s * VSL) if s < 3 else ("A", (s - 3) * VSL)
def Vabs(t):
    r, o = Vslot(t); return (L_VB if r == "B" else 0) + o

vDk, vDv, vKb, vVa, vVb, vO, vL0, vL1, vDf, vPF, vT0, vT1, vT2, vT3 = 2, 3, 4, 5, 6, 7, 8, 9, 10, 11, 12, 13, 14, 15
ACC = 16; QP = 80; S = 112; NEGM = 144; P = 160; KF = 176; VF = 192; E = 208
QA = 112; AF = 176
def BRr(buf, k): return (QP + buf * 16 + k * 4) if buf < 2 else (212 + (buf - 2) * 16 + k * 4)
FR = 212
vA0, vA1, vDq, vDq2, vXB0, vXB1 = 244, 245, 246, 247, 248, 249
FT = 244; FD = 248; XS = 252
sW = 3
sHEAD, sRB, sG = 20, 21, 22
sN, sWq, sM, sB = 23, 24, 25, 26
sKsrc, sKw, sVsrc, sVw = 27, 28, 29, 30
sPL, sPH = 31, 32
sFsrc, sIDX = 69+32, 35
SRD_WQ, SRD_XN, SRD_K, SRD_V, SRD_F, SRD_OT = 36, 40, 44, 48, 52, 56
sT0, sT1, sT2, sT3 = 60, 61, 62, 63
sOT = 64
QSCALE = math.log2(math.e) / math.sqrt(128.0)
def fbits(x): return "0x%08x" % struct.unpack("<I", struct.pack("<f", x))[0]
D = 4

class Q:
    def __init__(self, cnt, mx): self.q = []; self.cnt = cnt; self.mx = mx
    def issue(self, tag): self.q.append(tag)
    def wait(self, p, *tags):
        idx = [len(self.q) - 1 - self.q[::-1].index(t) for t in tags if t in self.q]
        if not idx: return
        i = max(idx)
        n = len(self.q) - 1 - i
        assert n <= self.mx, n
        p(f"s_waitcnt {self.cnt}({n})")
        self.q = self.q[i + 1:]


KNAME = "recurrent_scan__sliding_block_cached__moe_arch_mod__prompt_kernel"
sFL, sPC, sKEY = 65, 70, 34
SPIN_MAX = 20000
MODE0 = [False]
MODE3 = [False]
WS_FLG = 0x500000
sNON = 33

LX = 176
def poll32(p, lab, sGrp, stage):
    p(f"""
    v_and_b32 v{vT0}, 31, v1
    v_lshlrev_b32 v{vT0}, 7, v{vT0}
    s_lshl_b32 s{sGrp}, s{sGrp}, 12
    s_add_u32 s{sGrp}, s{sGrp}, {WS_FLG + stage*32768}
    v_add_u32 v{vT0}, s{sGrp}, v{vT0}
    s_mov_b32 s73, {SPIN_MAX}
    """)
    p.label(lab)
    p(f"""
    global_load_dword v{vT1}, v{vT0}, s[18:19] sc1
    s_waitcnt vmcnt(0)
    v_cmp_ne_u32 vcc, s{sNON}, v{vT1}
    s_cbranch_vccz {lab}_OK
    s_sleep 1
    s_sub_u32 s73, s73, 1
    s_cmp_lg_u32 s73, 0
    s_cbranch_scc1 {lab}
    """)
    p.label(lab + "_OK")
def set_flag(p, stage):
    p(f"""
    s_lshl_b32 s{sT0}, s{sFL}, 7
    s_add_u32 s{sT0}, s{sT0}, {WS_FLG + stage*32768}
    v_mov_b32 v{vT0}, s{sT0}
    v_mov_b32 v{vT1}, s{sNON}
    s_mov_b64 exec, 1
    global_store_dword v{vT0}, v{vT1}, s[18:19] sc1
    s_mov_b64 exec, -1
    """)
def ln_phase(p, early):
    X = LX; W = LX + 8; F = 192; S_ = 212; T = 213; Q0 = 214; Q1 = 215; Dd = 216; va = 100; vg0 = 101; vg1 = 102; vr = 103; vw = 104
    p(f"""
    v_lshrrev_b32 v{vw}, 6, v0
    v_and_b32 v{va}, 7, v1
    v_xor_b32 v{va}, v{va}, v{vw}
    v_lshlrev_b32 v{va}, 4, v{va}
    v_lshl_add_u32 v{va}, v1, 7, v{va}
    v_add_u32 v{va}, {L_K}, v{va}
    v_lshrrev_b32 v{vg1}, 3, v0
    v_and_b32 v{vg0}, 7, v{vg1}
    v_and_b32 v{vr}, 7, v0
    v_xor_b32 v{vg0}, v{vg0}, v{vr}
    v_lshlrev_b32 v{vg0}, 4, v{vg0}
    v_lshl_add_u32 v{vg0}, v{vg1}, 8, v{vg0}
    s_lshr_b32 s{sT0}, s{sFL}, 1
    s_lshl_b32 s{sT0}, s{sT0}, 15
    s_and_b32 s{sT1}, s{sFL}, 1
    s_lshl_b32 s{sT1}, s{sT1}, 7
    s_add_u32 s{sT0}, s{sT0}, s{sT1}
    v_add_u32 v{vg0}, s{sT0}, v{vg0}
    v_add_u32 v{vg1}, 0x4000, v{vg0}
    v_lshlrev_b32 v{vr}, 4, v0
    v_add_u32 v{vr}, {L_K}, v{vr}
    s_cmp_lt_u32 s{sW}, 4
    s_cbranch_scc1 M_XW0
    s_waitcnt vmcnt(4)
    s_branch M_XW1
M_XW0:
    s_waitcnt vmcnt(0)
M_XW1:
    """)
    _ST0()
    for i in range(8):
        p(f"v_lshlrev_b32 v{F+2*i}, 16, v{X+i}\nv_and_b32 v{F+2*i+1}, 0xffff0000, v{X+i}")
    p(f"v_add_f32 v{S_}, v{F}, v{F+1}\nv_add_f32 v{T}, v{F+2}, v{F+3}")
    for i in range(4, 16, 2):
        p(f"v_add_f32 v{S_}, v{S_}, v{F+i}\nv_add_f32 v{T}, v{T}, v{F+i+1}")
    p(f"v_add_f32 v{S_}, v{S_}, v{T}")
    wave_sum(p, S_, T)
    p(f"v_mul_f32 v{S_}, 0x3a800000, v{S_}")
    for i in range(16): p(f"v_sub_f32 v{Dd+i}, v{F+i}, v{S_}")
    p(f"v_mul_f32 v{Q0}, v{Dd}, v{Dd}\nv_mul_f32 v{Q1}, v{Dd+1}, v{Dd+1}")
    for i in range(2, 16, 2):
        p(f"v_fmac_f32 v{Q0}, v{Dd+i}, v{Dd+i}\nv_fmac_f32 v{Q1}, v{Dd+i+1}, v{Dd+i+1}")
    p(f"v_add_f32 v{Q0}, v{Q0}, v{Q1}")
    wave_sum(p, Q0, T)
    p(f"""
    v_mul_f32 v{Q0}, 0x3a800000, v{Q0}
    v_cvt_pk_bf16_f32 v{T}, v{S_}, v{Q0}
    v_lshlrev_b32 v{S_}, 16, v{T}
    v_and_b32 v{Q0}, 0xffff0000, v{T}
    v_add_f32 v{Q0}, 0x3727c5ac, v{Q0}
    v_cvt_pk_bf16_f32 v{Q0}, v{Q0}, v{Q0}
    v_lshlrev_b32 v{Q0}, 16, v{Q0}
    v_sqrt_f32 v{Q0}, v{Q0}
    v_cvt_pk_bf16_f32 v{Q0}, v{Q0}, v{Q0}
    v_lshlrev_b32 v{Q0}, 16, v{Q0}
    v_rcp_f32 v{Q0}, v{Q0}
    """)
    for i in range(16): p(f"v_sub_f32 v{Dd+i}, v{F+i}, v{S_}")
    for i in range(8): p(f"v_cvt_pk_bf16_f32 v{X+i}, v{Dd+2*i}, v{Dd+2*i+1}")
    for i in range(8):
        p(f"v_lshlrev_b32 v{Dd+2*i}, 16, v{X+i}\nv_and_b32 v{Dd+2*i+1}, 0xffff0000, v{X+i}")
    for i in range(16): p(f"v_mul_f32 v{Dd+i}, v{Dd+i}, v{Q0}")
    for i in range(8): p(f"v_cvt_pk_bf16_f32 v{X+i}, v{Dd+2*i}, v{Dd+2*i+1}")
    _ST0()
    p(f"""
    ds_write_b128 v{va}, v[{X}:{X+3}]
    ds_write_b128 v{va}, v[{X+4}:{X+7}] offset:8192
    v_mov_b32 v{vw+1}, 0
    s_cmp_ge_u32 s{sW}, 4
    s_cbranch_scc1 M_NONL
    global_load_dword v{vw+2}, v{vw+1}, s[66:67] sc1
M_NONL:
    s_waitcnt lgkmcnt(0)
    s_barrier
    s_cmp_ge_u32 s{sW}, 4
    s_cbranch_scc1 M_NOST
    ds_read_b128 v[{F}:{F+3}], v{vr}
    ds_read_b128 v[{F+4}:{F+7}], v{vr} offset:4096
    ds_read_b128 v[{F+8}:{F+11}], v{vr} offset:8192
    ds_read_b128 v[{F+12}:{F+15}], v{vr} offset:12288
    v_add_u32 v{va}, 0x2000, v{vg0}
    v_add_u32 v{vr}, 0x2000, v{vg1}
    s_waitcnt lgkmcnt(3)
    global_store_dwordx4 v{vg0}, v[{F}:{F+3}], s[18:19] sc1
    s_waitcnt lgkmcnt(2)
    global_store_dwordx4 v{va}, v[{F+4}:{F+7}], s[18:19] sc1
    s_waitcnt lgkmcnt(1)
    global_store_dwordx4 v{vg1}, v[{F+8}:{F+11}], s[18:19] sc1
    s_waitcnt lgkmcnt(0)
    global_store_dwordx4 v{vr}, v[{F+12}:{F+15}], s[18:19] sc1
M_NOST:
    """)
    _ST0()
    early()
    G = 80
    for i in range(8):
        p(f"v_lshlrev_b32 v{Dd+2*i}, 16, v{X+i}\nv_and_b32 v{Dd+2*i+1}, 0xffff0000, v{X+i}")
        p(f"v_lshlrev_b32 v{G+2*i}, 16, v{W+i}\nv_and_b32 v{G+2*i+1}, 0xffff0000, v{W+i}")
    p(f"v_mul_f32 v{S_}, v{Dd}, v{G}\nv_mul_f32 v{Q1}, v{Dd+1}, v{G+1}")
    for i in range(2, 16, 2):
        p(f"v_fmac_f32 v{S_}, v{Dd+i}, v{G+i}\nv_fmac_f32 v{Q1}, v{Dd+i+1}, v{G+i+1}")
    p(f"v_add_f32 v{S_}, v{S_}, v{Q1}")
    wave_sum(p, S_, T)
    p(f"""
    v_cvt_pk_bf16_f32 v{S_}, v{S_}, v{S_}
    v_lshlrev_b32 v{S_}, 16, v{S_}
    v_ashrrev_i32 v{T}, 31, v{S_}
    v_or_b32 v{T}, 0x80000000, v{T}
    v_xor_b32 v{S_}, v{S_}, v{T}
    v_and_b32 v{S_}, 0xffff0000, v{S_}
    s_lshl_b32 s{sT1}, s{sFL}, 3
    s_add_u32 s{sT1}, s{sT1}, s{sW}
    s_sub_u32 s{sT0}, 2047, s{sT1}
    v_or_b32 v{S_}, s{sT0}, v{S_}
    s_lshl_b32 s{sT0}, s{sW}, 2
    s_add_u32 s{sT0}, s{sT0}, {L_K + 16384}
    v_mov_b32 v{T}, s{sT0}
    ds_write_b32 v{T}, v{S_}
    s_mov_b32 s73, {SPIN_MAX}
    s_cmp_ge_u32 s{sW}, 4
    s_cbranch_scc1 M_NOK
    s_waitcnt vmcnt(6)
M_NSPIN:
    v_readfirstlane_b32 s{sNON}, v{vw+2}
    s_cmp_lg_u32 s{sNON}, 0
    s_cbranch_scc1 M_NOK1
    global_load_dword v{vw+2}, v{vw+1}, s[66:67] sc1
    s_waitcnt vmcnt(0)
    s_sub_u32 s73, s73, 1
    s_cmp_lg_u32 s73, 0
    s_cbranch_scc1 M_NSPIN
M_NOK1:
    v_mov_b32 v{T}, {L_K + 16384 + 32}
    ds_write_b32 v{T}, v{vw+2}
M_NOK:
    s_waitcnt lgkmcnt(0)
    """)
    _ST0()
    p(f"""
    s_barrier
    """)
    _ST0()
    p(f"""
    s_cmp_lg_u32 s{sW}, 0
    s_cbranch_scc1 M_LN_NF
    """)
    set_flag(p, 0)
    p(f"""
    v_mov_b32 v{T}, {L_K + 16384}
    ds_read_b128 v[{F}:{F+3}], v{T}
    ds_read_b128 v[{F+4}:{F+7}], v{T} offset:16
    s_lshl_b32 s{sT0}, s{sFL}, 3
    s_add_u32 s{sT0}, s{sT0}, {WS_KEYS}
    v_mov_b32 v{T}, s{sT0}
    s_waitcnt lgkmcnt(0)
    v_max3_u32 v{F}, v{F}, v{F+1}, v{F+2}
    v_max3_u32 v{F+4}, v{F+4}, v{F+5}, v{F+6}
    v_max3_u32 v{F}, v{F}, v{F+3}, v{F+7}
    v_max_u32 v{F}, v{F}, v{F+4}
    v_mov_b32 v{F+1}, s{sNON}
    s_mov_b64 exec, 1
    global_store_dwordx2 v{T}, v[{F}:{F+1}], s[18:19] sc1
    s_mov_b64 exec, -1
    """)
    p.label("M_LN_NF")
    p(f"""
    v_mov_b32 v{T}, {L_K + 16384 + 32}
    ds_read_b32 v{T}, v{T}
    s_waitcnt lgkmcnt(0)
    v_readfirstlane_b32 s{sNON}, v{T}
    """)
def set_flag2(p):
    pass

def rbf(p, v):
    p(f"v_cvt_pk_bf16_f32 v{v}, v{v}, v{v}\nv_lshlrev_b32 v{v}, 16, v{v}")
def silu(p, d, v, t):
    p(f"""
    v_mul_f32 v{t}, 0xbfb8aa3b, v{v}
    v_exp_f32 v{t}, v{t}
    v_add_f32 v{t}, 1.0, v{t}
    v_rcp_f32 v{t}, v{t}
    v_mul_f32 v{d}, v{v}, v{t}
    """)
L_H3 = 131072
def phase3(p, ST, stamp):
    sRT, sCT, sIT, sA, sBo, sMb = 20, 21, 22, 23, 24, 25
    SRD_A, SRD_B = 36, 40
    AC3 = 128; OR = 64; WF = 16
    vAo, vRd = 2, 3; vW = 4
    ST(False)
    p(f"""
    s_and_b32 s{sT0}, s2, 7
    s_lshr_b32 s{sT1}, s2, 3
    s_lshr_b32 s{sRT}, s{sT0}, 1
    s_lshl_b32 s{sRT}, s{sRT}, 3
    s_and_b32 s{sT2}, s{sT1}, 7
    s_add_u32 s{sRT}, s{sRT}, s{sT2}
    s_and_b32 s{sCT}, s{sT0}, 1
    s_lshl_b32 s{sCT}, s{sCT}, 2
    s_lshr_b32 s{sT2}, s{sT1}, 3
    s_add_u32 s{sCT}, s{sCT}, s{sT2}
    s_cmp_ge_u32 s{sW}, 4
    s_cbranch_scc1 M_HELP
    s_lshl_b32 s{sT0}, s{sW}, 22
    s_add_u32 s{sT0}, s{sT0}, {WS_OT}
    s_add_u32 s{SRD_A}, s18, s{sT0}
    s_addc_u32 s{SRD_A+1}, s19, 0
    s_mov_b32 s{SRD_A+2}, 0x400000
    s_mov_b32 s{SRD_A+3}, 0x20000
    s_lshl_b32 s{sT0}, s{sW}, 21
    s_add_u32 s{SRD_B}, s10, s{sT0}
    s_addc_u32 s{SRD_B+1}, s11, 0
    s_mov_b32 s{SRD_B+2}, 0x200000
    s_mov_b32 s{SRD_B+3}, 0x20000
    s_lshl_b32 s{sA}, s{sRT}, 12
    s_lshl_b32 s{sBo}, s{sCT}, 8
    s_lshl_b32 s{sMb}, s{sW}, 15
    s_mov_b32 s{sIT}, 0
    v_lshlrev_b32 v{vAo}, 4, v1
    v_lshrrev_b32 v{vT0}, 4, v1
    v_and_b32 v{vT1}, 3, v1
    v_bfe_u32 v{vT3}, v1, 2, 2
    v_lshlrev_b32 v{vW}, 4, v{vT1}
    v_lshl_add_u32 v{vW}, v{vT0}, 6, v{vW}
    v_lshl_add_u32 v{vW}, v{vT3}, 11, v{vW}
    v_lshlrev_b32 v{vRd}, 11, v{vT0}
    v_lshl_add_u32 v{vRd}, v{vT3}, 6, v{vRd}
    v_lshl_add_u32 v{vRd}, v{vT1}, 4, v{vRd}
    v_add_u32 v{vRd}, s{sMb}, v{vRd}
    """)
    for i in range(1, 8): p(f"v_add_u32 v{vW+i}, {i*8192 - (i&3)*1024}, v{vW}")
    if MODE3[0]:
        p("s_memtime s[80:81]\ns_waitcnt vmcnt(0)\ns_memtime s[82:83]\ns_barrier\ns_memtime s[84:85]")
    else:
        p("s_waitcnt vmcnt(0)\ns_barrier")
    def wdma(slot, i):
        t = ""
        if i % 4 == 0: t = f"s_add_u32 m0, s{sMb}, {slot*8192 + (i>>2)*4096}\ns_nop 0\n"
        t += f"buffer_load_dwordx4 v{vW+i}, s[{SRD_B}:{SRD_B+3}], s{sBo} offen offset:{(i&3)*1024} lds"
        if i == 7: t += f"\ns_add_u32 s{sBo}, s{sBo}, 65536"
        return t
    def oload(slot, i):
        r = OR + slot * 16 + i * 4
        t = f"buffer_load_dwordx4 v[{r}:{r+3}], v{vAo}, s[{SRD_A}:{SRD_A+3}], s{sA} offen offset:{i*1024} sc1"
        if i == 3: t += f"\ns_add_u32 s{sA}, s{sA}, 131072"
        return t
    for sl in range(3):
        for i in range(8): p(wdma(sl, i))
    for i in range(128): p(f"v_mov_b32 v{AC3+i}, 0")
    if MODE3[0]: p("s_memtime s[86:87]")
    p(f"""
    s_lshr_b32 s{sT0}, s{sRT}, 2
    s_lshl_b32 s{sT0}, s{sT0}, 2
    s_add_u32 s{sT0}, s{sT0}, s{sW}
    s_lshl_b32 s{sT0}, s{sT0}, 10
    s_add_u32 s{sT0}, s{sT0}, {WS_FLG + 32768}
    v_and_b32 v{vT0}, 7, v1
    v_lshlrev_b32 v{vT0}, 7, v{vT0}
    v_add_u32 v{vT0}, s{sT0}, v{vT0}
    s_mov_b32 s73, {SPIN_MAX}
M_POLL1:
    global_load_dword v{vT1}, v{vT0}, s[18:19] sc1
    s_waitcnt vmcnt(0)
    v_cmp_ne_u32 vcc, s{sNON}, v{vT1}
    s_cbranch_vccz M_POLL1_OK
    s_sleep 1
    s_sub_u32 s73, s73, 1
    s_cmp_lg_u32 s73, 0
    s_cbranch_scc1 M_POLL1
M_POLL1_OK:
    """)
    ST(False)
    if MODE3[0]: p("s_memtime s[88:89]")
    for sl in range(3):
        for i in range(4): p(oload(sl, i))
    p("s_waitcnt vmcnt(0)")
    if MODE3[0]: p("s_memtime s[90:91]\ns_memtime s[92:93]")
    lq = Q("lgkmcnt", 15)
    if stamp: p("s_waitcnt lgkmcnt(0)")
    def wread(slot, f):
        u, e = f >> 1, f & 1
        r = WF + (f & 3) * 4
        for t in range(2):
            p(f"ds_read_b64_tr_b16 v[{r+2*t}:{r+2*t+1}], v{vRd} offset:{slot*8192 + t*1024 + u*256 + e*8}")
            lq.issue(("W", f & 3, t))
    LAW = 3
    for f in range(LAW): wread(0, f)
    st0 = list(lq.q)
    p(".p2align 6")
    p.label("M_P3")
    for st in range(4):
        n = (st + 3) & 3
        L = [wdma(n, i) for i in range(8)] + [oload(n, i) for i in range(4)]
        li = 0
        for f in range(8):
            fn = f + LAW; ns = st
            if fn >= 8: fn -= 8; ns = (st + 1) & 3
            if f + LAW == 8: p("s_waitcnt vmcnt(24)" if True else "")
            lq.wait(p, ("W", f & 3, 1))
            for i in range(4):
                d = AC3 + (i * 8 + f) * 4; a = WF + (f & 3) * 4; b = OR + st * 16 + i * 4
                p(f"v_mfma_f32_16x16x32_bf16 v[{d}:{d+3}], v[{a}:{a+3}], v[{b}:{b+3}], v[{d}:{d+3}]")
                if i == 0: wread(ns, fn)
                elif li < 12 and f < 4: p(L[li]); li += 1
        assert li == 12
    assert lq.q == st0
    p(f"""
    s_add_u32 s{sIT}, s{sIT}, 1
    s_cmp_lt_u32 s{sIT}, 8
    s_cbranch_scc1 M_P3
    s_waitcnt vmcnt(0) lgkmcnt(0)
    v_add_u32 v{vAo}, s{sMb}, v{vAo}
    """)
    ST(False)
    for q in range(32):
        p(f"ds_write_b128 v{vAo}, v[{AC3+4*q}:{AC3+4*q+3}] offset:{q*1024}")
    p("s_waitcnt lgkmcnt(0)\ns_barrier")
    if stamp: stamp_out(p, 0x3000000)
    p("s_branch K2_END")
    p.label("M_HELP")
    sHW = 26; sKG = 27; sCG = 28
    XU = 128; GG = 160; XR = 16; NR = 32; vOut = 2
    p(f"""
    s_sub_u32 s{sHW}, s{sW}, 4
    s_and_b32 s{sKG}, s{sFL}, 15
    s_lshr_b32 s{sCG}, s{sFL}, 4
    v_mov_b32 v{vT0}, {134016}
    v_mov_b32 v{vT1}, 0
    ds_write_b32 v{vT0}, v{vT1}
    s_waitcnt vmcnt(0) lgkmcnt(0)
    s_barrier
    STAMPX1
    s_cmp_lg_u32 s{sW}, 4
    s_cbranch_scc1 M_H2
    """)
    set_flag(p, 1)
    p.label("M_H2")
    p(f"""
    s_lshl_b32 s{sT0}, s{sRT}, 2
    s_add_u32 s{sT0}, s{sT0}, s{sHW}
    s_lshl_b32 s{sT1}, s{sT0}, 15
    s_lshl_b32 s{sT2}, s{sCT}, 8
    s_add_u32 s{sT2}, s{sT1}, s{sT2}
    v_and_b32 v{vT0}, 15, v1
    v_lshrrev_b32 v{vT1}, 4, v1
    v_lshlrev_b32 v{vOut}, 11, v{vT0}
    v_lshl_add_u32 v{vOut}, v{vT1}, 4, v{vOut}
    v_add_u32 v{vOut}, s{sT2}, v{vOut}
    s_lshl_b32 s{sT2}, s{sCT}, 12
    s_add_u32 s{sT2}, s{sT1}, s{sT2}
    v_lshlrev_b32 v{vT2}, 4, v{vT0}
    v_lshl_add_u32 v{vT2}, v{vT1}, 8, v{vT2}
    v_add_u32 v{vT2}, s{sT2}, v{vT2}
    """)
    for u in range(4): p(f"global_load_dwordx4 v[{XR+4*u}:{XR+4*u+3}], v{vOut}, s[74:75] offset:{u*64}")
    for u in range(4): p(f"global_load_dwordx4 v[{NR+4*u}:{NR+4*u+3}], v{vT2}, s[18:19] offset:{u*1024} sc1")
    WD = 48
    p(f"""
    s_mul_i32 s{sT0}, s{sKG}, 224
    s_mul_i32 s{sT1}, s{sHW}, 56
    s_add_u32 s{sT0}, s{sT0}, s{sT1}
    s_lshl_b32 s{sT1}, s{sT0}, 11
    s_lshl_b32 s{sT2}, s{sCG}, 7
    s_add_u32 s{sT1}, s{sT1}, s{sT2}
    v_lshrrev_b32 v{vT2}, 3, v1
    v_lshlrev_b32 v{vT2}, 11, v{vT2}
    v_and_b32 v{vT3}, 7, v1
    v_lshl_add_u32 v{vT2}, v{vT3}, 4, v{vT2}
    v_add_u32 v{vT2}, s{sT1}, v{vT2}
    v_min_u32 v4, 55, v1
    v_add_lshl_u32 v4, v4, s{sT0}, 2
    v_add_u32 v4, {WS_GU}, v4
    """)
    for i in range(7):
        p(f"global_load_dwordx4 v[{WD+4*i}:{WD+4*i+3}], v{vT2}, s[16:17]")
        if i < 6: p(f"v_add_u32 v{vT2}, 0x4000, v{vT2}")
    p("s_waitcnt vmcnt(7)")
    for j in range(16):
        p(f"v_lshlrev_b32 v{XU+2*j}, 16, v{XR+j}\nv_and_b32 v{XU+2*j+1}, 0xffff0000, v{XR+j}")
        p(f"v_lshlrev_b32 v{GG+2*j}, 16, v{NR+j}\nv_and_b32 v{GG+2*j+1}, 0xffff0000, v{NR+j}")
    TT = 192
    for c in range(32): p(f"v_mul_f32 v{TT+c}, 0xbfb8aa3b, v{GG+c}")
    for c in range(32): p(f"v_exp_f32 v{TT+c}, v{TT+c}")
    for c in range(32): p(f"v_add_f32 v{TT+c}, 1.0, v{TT+c}")
    for c in range(32): p(f"v_rcp_f32 v{TT+c}, v{TT+c}")
    for c in range(32): p(f"v_mul_f32 v{GG+c}, v{GG+c}, v{TT+c}")
    for c in range(0, 32, 2):
        p(f"v_cvt_pk_bf16_f32 v{TT}, v{GG+c}, v{GG+c+1}\nv_lshlrev_b32 v{GG+c}, 16, v{TT}\nv_and_b32 v{GG+c+1}, 0xffff0000, v{TT}")
    p(f"""
    v_lshlrev_b32 v{vT0}, 7, v1
    v_add_u32 v{vT0}, {WS_FLG + 32768}, v{vT0}
    v_add_u32 v{vT1}, 0x2000, v{vT0}
    v_add_u32 v{vT2}, 0x4000, v{vT0}
    v_add_u32 v{vT3}, 0x6000, v{vT0}
    s_mov_b32 s73, {SPIN_MAX}
    """)
    p.label("M_POLL2")
    p(f"""
    global_load_dword v16, v{vT0}, s[18:19] sc1
    global_load_dword v17, v{vT1}, s[18:19] sc1
    global_load_dword v18, v{vT2}, s[18:19] sc1
    global_load_dword v19, v{vT3}, s[18:19] sc1
    s_waitcnt vmcnt(0)
    v_xor_b32 v16, s{sNON}, v16
    v_xor_b32 v17, s{sNON}, v17
    v_xor_b32 v18, s{sNON}, v18
    v_xor_b32 v19, s{sNON}, v19
    v_or3_b32 v16, v16, v17, v18
    v_or_b32 v16, v16, v19
    v_cmp_ne_u32 vcc, 0, v16
    s_cbranch_vccz M_POLL2_OK
    s_sleep 40
    s_sub_u32 s73, s73, 1
    s_cmp_lg_u32 s73, 0
    s_cbranch_scc1 M_POLL2
    """)
    p.label("M_POLL2_OK")
    GR = 16
    for q in range(8):
        p(f"global_load_dword v{GR+q}, v4, s[18:19] sc1")
        if q < 7: p(f"v_add_u32 v4, {14336}, v4")
    p("s_waitcnt vmcnt(0)")
    for q in range(2, 8, 2):
        p(f"v_add_f32 v{GR}, v{GR}, v{GR+q}\nv_add_f32 v{GR+1}, v{GR+1}, v{GR+q+1}")
    rbf(p, GR); rbf(p, GR + 1)
    silu(p, GR, GR, GR + 2)
    rbf(p, GR)
    p(f"v_mul_f32 v{GR}, v{GR}, v{GR+1}")
    rbf(p, GR)
    p(f"""
    s_lshl_b32 s{sT0}, s{sHW}, 8
    s_add_u32 s{sT0}, s{sT0}, {L_H3}
    v_lshlrev_b32 v{vT0}, 2, v1
    v_add_u32 v{vT0}, s{sT0}, v{vT0}
    ds_write_b32 v{vT0}, v{GR}
    v_lshrrev_b32 v{vT1}, 3, v1
    v_lshlrev_b32 v{vT1}, 2, v{vT1}
    v_add_u32 v{vT1}, s{sT0}, v{vT1}
    s_waitcnt lgkmcnt(0)
    """)
    for i in range(7): p(f"ds_read_b32 v{GR+i}, v{vT1} offset:{i*32}")
    AC = 24; T = 32
    p("s_waitcnt lgkmcnt(0)")
    for i in range(7):
        for j in range(4):
            w = WD + 4 * i + j
            p(f"v_lshlrev_b32 v{T}, 16, v{w}\nv_and_b32 v{T+1}, 0xffff0000, v{w}")
            if i == 0: p(f"v_mul_f32 v{AC+2*j}, v{T}, v{GR}\nv_mul_f32 v{AC+2*j+1}, v{T+1}, v{GR}")
            else: p(f"v_fmac_f32 v{AC+2*j}, v{T}, v{GR+i}\nv_fmac_f32 v{AC+2*j+1}, v{T+1}, v{GR+i}")
    for c in range(8): p(f"v_add_f32_dpp v{AC+c}, v{AC+c}, v{AC+c} row_ror:8 row_mask:0xf bank_mask:0xf")
    for sw in ("v_permlane16_swap_b32", "v_permlane32_swap_b32"):
        for c in range(8): p(f"v_mov_b32 v{36+c}, v{AC+c}")
        for c in range(8): p(f"{sw} v{AC+c}, v{36+c}")
        for c in range(8): p(f"v_add_f32 v{AC+c}, v{AC+c}, v{36+c}")
    p(f"""
    v_and_b32 v{vT0}, 7, v1
    v_lshlrev_b32 v{vT0}, 5, v{vT0}
    s_add_u32 s{sT0}, s{sT0}, 1024
    v_add_u32 v{vT0}, s{sT0}, v{vT0}
    ds_write_b128 v{vT0}, v[{AC}:{AC+3}]
    ds_write_b128 v{vT0}, v[{AC+4}:{AC+7}] offset:16
    v_mov_b32 v{vT0}, {134016}
    v_mov_b32 v{vT1}, 1
    s_waitcnt lgkmcnt(0)
    s_mov_b64 exec, 1
    ds_add_rtn_u32 v{vT2}, v{vT0}, v{vT1}
    s_mov_b64 exec, -1
    s_waitcnt lgkmcnt(0)
    v_readfirstlane_b32 s{sT0}, v{vT2}
    s_cmp_lg_u32 s{sT0}, 3
    s_cbranch_scc1 M_H4
    v_lshlrev_b32 v{vT0}, 2, v1
    v_add_u32 v{vT1}, {L_H3 + 1024}, v{vT0}
    ds_read_b32 v16, v{vT1}
    ds_read_b32 v17, v{vT1} offset:256
    ds_read_b32 v18, v{vT1} offset:512
    ds_read_b32 v19, v{vT1} offset:768
    s_lshl_b32 s{sT0}, s{sKG}, 12
    s_lshl_b32 s{sT1}, s{sCG}, 8
    s_add_u32 s{sT0}, s{sT0}, s{sT1}
    s_add_u32 s{sT0}, s{sT0}, {WS_YP}
    v_add_u32 v{vT0}, s{sT0}, v{vT0}
    s_waitcnt lgkmcnt(0)
    v_add_f32 v16, v16, v17
    v_add_f32 v18, v18, v19
    v_add_f32 v16, v16, v18
    global_store_dword v{vT0}, v16, s[18:19] sc1
    s_waitcnt vmcnt(0)
    """)
    set_flag(p, 2)
    p.label("M_H4")
    p(f"""
    s_lshl_b32 s{sT0}, s{sRT}, 2
    s_add_u32 s{sT0}, s{sT0}, s{sHW}
    s_lshr_b32 s{sT1}, s{sIDX}, 4
    s_cmp_lg_u32 s{sT0}, s{sT1}
    s_cbranch_scc1 M_H5
    s_mov_b32 s{sT0}, s{sCT}
    """)
    poll32(p, "M_POLL3", sT0, 2)
    p(f"""
    s_lshl_b32 s{sT0}, s{sCT}, 9
    s_add_u32 s{sT0}, s{sT0}, {WS_YP}
    v_lshlrev_b32 v{vT0}, 3, v1
    v_add_u32 v{vT0}, s{sT0}, v{vT0}
    """)
    for q in range(16):
        p(f"global_load_dwordx2 v[{16+2*q}:{17+2*q}], v{vT0}, s[18:19] sc1")
        if q < 15: p(f"v_add_u32 v{vT0}, 4096, v{vT0}")
    p(f"""
    s_lshr_b32 s{sT0}, s{sIDX}, 4
    s_lshl_b32 s{sT0}, s{sT0}, 15
    s_lshl_b32 s{sT1}, s{sCT}, 12
    s_add_u32 s{sT0}, s{sT0}, s{sT1}
    s_and_b32 s{sT1}, s{sIDX}, 15
    s_lshl_b32 s{sT1}, s{sT1}, 4
    s_add_u32 s{sT0}, s{sT0}, s{sT1}
    v_lshrrev_b32 v{vT0}, 2, v1
    v_lshlrev_b32 v{vT0}, 8, v{vT0}
    v_and_b32 v{vT1}, 3, v1
    v_lshl_add_u32 v{vT0}, v{vT1}, 2, v{vT0}
    v_add_u32 v{vT0}, s{sT0}, v{vT0}
    global_load_dword v48, v{vT0}, s[18:19] sc1
    s_and_b32 s{sT0}, s{sKEY}, 0xffff0000
    s_ashr_i32 s{sT1}, s{sT0}, 31
    s_not_b32 s{sT1}, s{sT1}
    s_or_b32 s{sT1}, s{sT1}, 0x80000000
    s_xor_b32 s{sT0}, s{sT0}, s{sT1}
    s_and_b32 s{sT0}, s{sT0}, 0xffff0000
    v_mov_b32 v50, s{sT0}
    v_mul_f32 v50, 0xbfb8aa3b, v50
    v_exp_f32 v50, v50
    v_add_f32 v50, 1.0, v50
    v_rcp_f32 v50, v50
    """)
    rbf(p, 50)
    p("s_waitcnt vmcnt(0)")
    for q in range(1, 16):
        p(f"v_add_f32 v16, v16, v{16+2*q}\nv_add_f32 v17, v17, v{17+2*q}")
    p("v_lshlrev_b32 v18, 16, v48\nv_and_b32 v19, 0xffff0000, v48")
    for c in range(2):
        rbf(p, 16 + c)
        p(f"v_mul_f32 v{16+c}, v{16+c}, v50")
        rbf(p, 16 + c)
        p(f"v_add_f32 v{16+c}, v{16+c}, v{18+c}")
        rbf(p, 16 + c)
        silu(p, 16 + c, 16 + c, 20 + c)
        rbf(p, 16 + c)
    p(f"""
    v_lshlrev_b32 v{vT0}, 3, v1
    v_add_u32 v{vT0}, {L_H3 + 4096}, v{vT0}
    ds_write_b64 v{vT0}, v[16:17]
    v_lshrrev_b32 v{vT1}, 4, v1
    v_lshlrev_b32 v{vT1}, 5, v{vT1}
    v_add_u32 v{vT1}, {L_H3 + 4096}, v{vT1}
    v_and_b32 v{vT0}, 15, v1
    s_and_b32 s{sT0}, s{sIDX}, 15
    v_cmp_eq_u32 vcc, s{sT0}, v{vT0}
    s_waitcnt lgkmcnt(0)
    """)
    for u in range(4):
        p(f"ds_read_b128 v[{16+8*u}:{19+8*u}], v{vT1} offset:{u*128}")
        p(f"ds_read_b128 v[{20+8*u}:{23+8*u}], v{vT1} offset:{u*128+16}")
    p("s_waitcnt lgkmcnt(0)")
    for c in range(32): p(f"v_cndmask_b32 v{GG+c}, v{GG+c}, v{16+c}, vcc")
    p.label("M_H5")
    p(f"""
    s_lshl_b32 s{sT0}, s{sHW}, 13
    v_lshlrev_b32 v{vT0}, 4, v1
    v_add_u32 v{vT0}, s{sT0}, v{vT0}
    v_add_u32 v{vT1}, 0x10000, v{vT0}
    s_barrier
    """)
    if stamp and not MODE0[0]: p("s_memtime s[90:91]")
    RD = 16
    for half in range(2):
        for mw in range(4):
            for ff in range(4):
                f = half * 4 + ff
                r = RD + (mw * 4 + ff) * 4
                p(f"ds_read_b128 v[{r}:{r+3}], v{vT1 if mw >= 2 else vT0} offset:{(mw & 1)*32768 + f*1024}")
        p("s_waitcnt lgkmcnt(8)")
        for c in range(16): p(f"v_add_f32 v{RD+c}, v{RD+c}, v{RD+16+c}")
        p("s_waitcnt lgkmcnt(0)")
        for c in range(16): p(f"v_add_f32 v{RD+32+c}, v{RD+32+c}, v{RD+48+c}")
        for c in range(16): p(f"v_add_f32 v{RD+c}, v{RD+c}, v{RD+32+c}")
        for c in range(16): p(f"v_fmac_f32 v{XU+half*16+c}, v{RD+c}, v{GG+half*16+c}")
        for uu in range(2):
            u = half * 2 + uu
            o = 96 + u * 4
            for j in range(4): p(f"v_cvt_pk_bf16_f32 v{o+j}, v{XU+u*8+2*j}, v{XU+u*8+2*j+1}")
            p(f"global_store_dwordx4 v{vOut}, v[{o}:{o+3}], s[78:79] offset:{u*64}")
    if stamp:
        p("s_waitcnt vmcnt(0)\ns_memrealtime s[98:99]")
        if not MODE0[0]: p("s_memtime s[92:93]")
        stamp_out(p, 0x3000000)

def stamp_out(p, base):
    p(f"""
    s_waitcnt lgkmcnt(0)
    s_lshl_b32 s{sT0}, s2, 3
    s_add_u32 s{sT0}, s{sT0}, s{sW}
    s_lshl_b32 s{sT0}, s{sT0}, 6
    s_add_u32 s{sT0}, s{sT0}, {base}
    v_mov_b32 v{vT0}, s{sT0}
    """)
    for i in range(10):
        p(f"v_mov_b32 v{vT1}, s{80+2*i}\nglobal_store_dword v{vT0}, v{vT1}, s[18:19] offset:{4*i}")

def gen_mega(ffn=True, slow=True, stamp=False, dbg=()):
    p = Prog()
    stamps = []
    mode0 = 'st0' in dbg
    MODE0[0] = mode0
    MODE3[0] = 'st3' in dbg
    def ST0():
        if stamp and mode0:
            i = len(stamps); stamps.append(i)
            p(f"s_memtime s[{80+2*i}:{81+2*i}]")
    global _ST0
    _ST0 = ST0
    def ST(wait=True):
        if stamp and mode0 and len(stamps) > 0:
            if wait: p("s_waitcnt lgkmcnt(0)")
            return
        if stamp:
            i = len(stamps); stamps.append(i)
            p(f"s_memtime s[{80+2*i}:{81+2*i}]")
            if i == 0: p("s_memrealtime s[96:97]")
            if wait: p("s_waitcnt lgkmcnt(0)")
    name = KNAME
    kernel_header(p, name)
    p(f"""
    s_cmp_ge_u32 s2, 256
    s_cbranch_scc1 K2_END
    s_load_dwordx2 s[74:75], s[0:1], 0
    s_load_dwordx2 s[76:77], s[0:1], 48
    s_load_dwordx4 s[8:11], s[0:1], 24
    s_load_dwordx2 s[18:19], s[0:1], 96
    s_load_dwordx4 s[4:7], s[0:1], 8
    s_load_dwordx4 s[12:15], s[0:1], 56
    s_load_dwordx2 s[16:17], s[0:1], 72
    s_load_dwordx2 s[78:79], s[0:1], 80
    s_load_dwordx2 s[66:67], s[0:1], 88
    s_getpc_b64 s[{sPC}:{sPC+1}]
    v_lshrrev_b32 v{vT2}, 6, v0
    v_and_b32 v1, 63, v0
    v_readfirstlane_b32 s{sW}, v{vT2}
    s_and_b32 s{sT0}, s2, 7
    s_lshr_b32 s{sT1}, s2, 3
    s_lshr_b32 s{sG}, s{sT0}, 1
    s_and_b32 s{sT0}, s{sT0}, 1
    s_lshl_b32 s{sT0}, s{sT0}, 2
    s_lshr_b32 s{sT2}, s{sT1}, 3
    s_add_u32 s{sRB}, s{sT0}, s{sT2}
    s_and_b32 s{sT1}, s{sT1}, 7
    s_lshl_b32 s{sHEAD}, s{sG}, 3
    s_add_u32 s{sHEAD}, s{sHEAD}, s{sT1}
    s_lshl_b32 s{sFL}, s{sRB}, 5
    s_add_u32 s{sFL}, s{sFL}, s{sHEAD}
    """)
    ST(False)
    p(f"""
    v_lshlrev_b32 v{vXB0}, 4, v1
    v_lshl_add_u32 v{vT0}, v{vT2}, 11, v{vXB0}
    s_lshl_b32 s{sT0}, s{sFL}, 14
    v_add_u32 v{vPF}, s{sT0}, v{vT0}
    v_lshrrev_b32 v{vT0}, 4, v1
    v_and_b32 v{vT1}, 3, v1
    v_lshlrev_b32 v{vT1}, 4, v{vT1}
    v_lshl_add_u32 v{vT1}, v{vT0}, 6, v{vT1}
    v_bfe_u32 v{vT3}, v1, 2, 2
    v_lshl_add_u32 v{vDq}, v{vT3}, 13, v{vT1}
    v_and_b32 v{vDq2}, 1, v{vT2}
    v_lshlrev_b32 v{vDq2}, 5, v{vDq2}
    v_xor_b32 v{vDq}, v{vDq}, v{vDq2}
    v_add_u32 v{vDq2}, {32768-1024}, v{vDq}
    v_add_u32 v{vXB1}, 0x8000, v{vXB0}
    s_lshl_b32 s{sWq}, s{sW}, 16
    s_lshl_b32 s{sM}, s{sW}, 11
    s_mov_b32 s{sB}, 0
    s_lshl_b32 s{sT0}, s{sHEAD}, 8
    s_lshl_b32 s{sT1}, s{sRB}, 3
    s_add_u32 s{sT1}, s{sT1}, s{sW}
    s_lshl_b32 s{sT1}, s{sT1}, 16
    s_memrealtime s[{sT2}:{sT3}]
    s_waitcnt lgkmcnt(0)
    s_or_b32 s{sT3}, s2, s{sW}
    s_cmp_lg_u32 s{sT3}, 0
    s_cbranch_scc1 M_NONZ
    s_or_b32 s{sT2}, s{sT2}, 1
    v_mov_b32 v{E}, 0
    v_mov_b32 v{E+1}, s{sT2}
    s_mov_b64 exec, 1
    global_store_dword v{E}, v{E+1}, s[66:67] sc1
    s_mov_b64 exec, -1
M_NONZ:
    global_load_dwordx4 v[{LX}:{LX+3}], v{vPF}, s[74:75]
    global_load_dwordx4 v[{LX+4}:{LX+7}], v{vPF}, s[74:75] offset:1024
    global_load_dwordx4 v[{LX+8}:{LX+11}], v{vXB0}, s[76:77]
    global_load_dwordx4 v[{LX+12}:{LX+15}], v{vXB0}, s[76:77] offset:1024
    s_cmp_lt_u32 s{sW}, 4
    s_cbranch_scc1 M_NOPF
    v_and_b32 v{E+3}, 255, v0
    v_lshlrev_b32 v{E+2}, 7, v{E+3}
    v_min_u32 v{E+1}, CODESIZE, v{E+2}
    global_load_dword v{E}, v{E+1}, s[{sPC}:{sPC+1}]
    s_lshl_b32 s{sT2}, s{sFL}, 15
    v_add_u32 v{E+2}, s{sT2}, v{E+2}
    global_load_dword v{E}, v{E+2}, s[8:9]
    s_lshr_b32 s{sT2}, s{sFL}, 6
    s_lshl_b32 s{sT2}, s{sT2}, 19
    s_and_b32 s{sT3}, s{sFL}, 63
    s_lshl_b32 s{sT3}, s{sT3}, 11
    s_add_u32 s{sT2}, s{sT2}, s{sT3}
    s_add_u32 s{sT2}, s{sT2}, 393216
    v_lshlrev_b32 v{E+3}, 3, v{E+3}
    v_add_u32 v{E+3}, s{sT2}, v{E+3}
    global_load_dword v{E}, v{E+3}, s[4:5]
    global_load_dword v{E}, v{E+3}, s[6:7]
M_NOPF:
    s_add_u32 s{SRD_WQ}, s8, s{sT0}
    s_addc_u32 s{SRD_WQ+1}, s9, 0
    s_sub_u32 s{SRD_WQ+2}, 0x800000, s{sT0}
    s_mov_b32 s{SRD_WQ+3}, 0x20000
    s_add_u32 s{SRD_XN}, s18, s{sT1}
    s_addc_u32 s{SRD_XN+1}, s19, 0
    s_mov_b32 s{SRD_XN+2}, 0x10000
    s_mov_b32 s{SRD_XN+3}, 0x20000
    """)
    def dma_wq(slot, e):
        if e == 0:
            return f"""s_add_u32 m0, s{sM}, {slot*16384}
    s_nop 0
    buffer_load_dwordx4 v{vDq}, s[{SRD_WQ}:{SRD_WQ+3}], s{sWq} offen lds"""
        return f"""s_add_u32 m0, s{sM}, {slot*16384}
    s_nop 0
    buffer_load_dwordx4 v{vDq2}, s[{SRD_WQ}:{SRD_WQ+3}], s{sWq} offen offset:1024 lds
    s_add_u32 s{sWq}, s{sWq}, 524288"""
    def load_b(buf, k):
        ct, u = k >> 1, k & 1
        r = BRr(buf, k)
        t = f"buffer_load_dwordx4 v[{r}:{r+3}], v{vXB1 if ct else vXB0}, s[{SRD_XN}:{SRD_XN+3}], s{sB} offen offset:{u*1024} sc1"
        if k == 3: t += f"\ns_add_u32 s{sB}, s{sB}, 2048"
        return t
    def early():
        for st in range(3):
            p(dma_wq(st, 0)); p(dma_wq(st, 1))
    def late_pf():
        if 'nopf0' in dbg: return
        p(f"""
    s_lshl_b32 s{sT0}, s{sRB}, 19
    s_add_u32 s{sT0}, s{sT0}, s{sWq}
    s_add_u32 m0, s{sM}, {L_K + 32768}
    s_add_u32 s{sT1}, s{sT0}, {8*524288}
    buffer_load_dwordx4 v{vDq}, s[{SRD_WQ}:{SRD_WQ+3}], s{sT0} offen lds
    buffer_load_dwordx4 v{vDq2}, s[{SRD_WQ}:{SRD_WQ+3}], s{sT0} offen offset:1024 lds
    buffer_load_dwordx4 v{vDq}, s[{SRD_WQ}:{SRD_WQ+3}], s{sT1} offen lds
    buffer_load_dwordx4 v{vDq2}, s[{SRD_WQ}:{SRD_WQ+3}], s{sT1} offen offset:1024 lds
    s_and_b32 s{sT0}, s{sHEAD}, 7
    s_lshl_b32 s{sT0}, s{sT0}, 3
    s_add_u32 s{sT0}, s{sT0}, s{sRB}
    s_lshl_b32 s{sT0}, s{sT0}, 11
    v_lshlrev_b32 v{E+3}, 2, v0
    buffer_load_dword v{E}, v{E+3}, s[{SRD_K}:{SRD_K+3}], s{sT0} offen
    buffer_load_dword v{E+1}, v{E+3}, s[{SRD_V}:{SRD_V+3}], s{sT0} offen
    """)
    ln_phase(p, early)
    p(f"""
    v_lshrrev_b32 v{vT0}, 4, v1
    v_and_b32 v{vT1}, 3, v1
    v_lshlrev_b32 v{vT1}, 4, v{vT1}
    v_lshl_add_u32 v{vT1}, v{vT0}, 6, v{vT1}
    """)
    p(f"""
    v_lshl_add_u32 v{vDv}, v{vT3}, 8, v{vT1}
    v_mul_u32_u24 v{vDf}, {8*7168}, v{vT0}
    v_and_b32 v{vT1}, 15, v1
    v_lshl_add_u32 v{vDf}, v{vT1}, 4, v{vDf}
    v_and_b32 v{vT0}, 3, v1
    v_lshrrev_b32 v{vT1}, 2, v1
    v_lshlrev_b32 v{vT1}, 4, v{vT1}
    v_lshl_add_u32 v{vDk}, v{vT0}, 8, v{vT1}
    v_lshrrev_b32 v{vT1}, 4, v1
    v_lshlrev_b32 v{vA0}, 11, v{vT1}
    v_lshl_add_u32 v{vA0}, v{vT3}, 6, v{vA0}
    v_lshl_add_u32 v{vA0}, v{vT0}, 3, v{vA0}
    v_and_b32 v{vT1}, 1, v{vT1}
    v_lshl_add_u32 v{vA0}, v{vT1}, 5, v{vA0}
    v_xor_b32 v{vA1}, 32, v{vA0}
    v_bfe_u32 v{vT0}, v1, 1, 1
    v_and_b32 v{vT2}, 1, v1
    v_lshl_add_u32 v{vT0}, v{vT2}, 1, v{vT0}
    v_lshl_add_u32 v{vT0}, v{vT1}, 2, v{vT0}
    v_lshlrev_b32 v{vT0}, 3, v{vT0}
    v_lshl_add_u32 v{vT0}, v{vT3}, 6, v{vT0}
    v_lshrrev_b32 v{vT1}, 5, v1
    v_lshl_add_u32 v{vVa}, v{vT1}, 10, v{vT0}
    v_add_u32 v{vVb}, {L_VB}, v{vVa}
    v_bfe_u32 v{vT0}, v1, 2, 3
    v_mul_u32_u24 v{vT0}, 1088, v{vT0}
    v_lshl_add_u32 v{vT0}, v{vT1}, 6, v{vT0}
    v_and_b32 v{vKb}, 3, v1
    v_lshl_add_u32 v{vKb}, v{vKb}, 4, v{vT0}
    v_add_u32 v{vKb}, {L_K}, v{vKb}
    v_bfe_u32 v{vT0}, v1, 4, 1
    v_lshlrev_b32 v{vT0}, 10, v{vT0}
    v_lshl_add_u32 v{vT0}, v{vT1}, 8, v{vT0}
    v_and_b32 v{vO}, 15, v1
    v_lshl_add_u32 v{vO}, v{vO}, 4, v{vT0}
    s_lshl_b32 s{sT0}, s{sG}, 19
    s_add_u32 s{sT0}, s{sT0}, 393216
    s_add_u32 s{SRD_K}, s4, s{sT0}
    s_addc_u32 s{SRD_K+1}, s5, 0
    s_mov_b32 s{SRD_K+2}, 0x20000
    s_mov_b32 s{SRD_K+3}, 0x20000
    s_add_u32 s{SRD_V}, s6, s{sT0}
    s_addc_u32 s{SRD_V+1}, s7, 0
    s_mov_b32 s{SRD_V+2}, 0x20000
    s_mov_b32 s{SRD_V+3}, 0x20000
    s_add_u32 s{SRD_OT}, s18, {WS_OT}
    s_addc_u32 s{SRD_OT+1}, s19, 0
    s_mov_b32 s{SRD_OT+2}, 0x1000000
    s_mov_b32 s{SRD_OT+3}, 0x20000
    s_mul_i32 s{sKw}, s{sW}, 1088
    s_lshl_b32 s{sVw}, s{sW}, 10
    s_mov_b32 s{sKsrc}, s{sVw}
    s_mov_b32 s{sVsrc}, s{sVw}
    s_mov_b32 s{sN}, 0
    s_mov_b32 s{sPL}, 0x05040100
    s_mov_b32 s{sPH}, 0x07060302
    s_lshr_b32 s{sT0}, s2, 2
    s_and_b32 s{sT1}, s2, 3
    s_cmp_ge_u32 s{sT0}, 28
    s_cselect_b32 s{SRD_F}, s14, s12
    s_cselect_b32 s{SRD_F+1}, s15, s13
    s_cselect_b32 s{sT2}, 28, 0
    s_sub_u32 s{sT2}, s{sT0}, s{sT2}
    s_lshl_b32 s{sT2}, s{sT2}, 8
    s_mul_i32 s{sT3}, s{sT1}, {256*7168}
    s_add_u32 s{sT2}, s{sT2}, s{sT3}
    s_add_u32 s{SRD_F}, s{SRD_F}, s{sT2}
    s_addc_u32 s{SRD_F+1}, s{SRD_F+1}, 0
    s_cmp_lt_u32 s2, 224
    s_cselect_b32 s{SRD_F+2}, {255*7168+256}, 0
    s_mov_b32 s{SRD_F+3}, 0x20000
    s_mul_i32 s{sFsrc}, s{sW}, {32*7168}
    s_lshl_b32 s{sOT}, s{sHEAD}, 19
    s_lshl_b32 s{sT1}, s{sRB}, 14
    s_add_u32 s{sOT}, s{sOT}, s{sT1}
    s_lshl_b32 s{sT1}, s{sW}, 11
    s_add_u32 s{sOT}, s{sOT}, s{sT1}
    """)
    for i in range(64): p(f"v_mov_b32 v{QA+i}, 0")
    for i in range(64): p(f"v_mov_b32 v{ACC+i}, 0")
    p(f"""
    v_mov_b32 v{vL0}, 0
    v_mov_b32 v{vL1}, 0
    """)
    p(f"""
    s_cmp_lg_u32 s{sW}, 1
    s_cbranch_scc1 M_P0W
    s_mov_b32 s{sT0}, s{sRB}
    """)
    poll32(p, "M_POLL0", sT0, 0)
    p.label("M_P0W")
    p("s_waitcnt vmcnt(0)")
    p("s_barrier")
    ST0()
    for st in range(3):
        for k in range(4): p(load_b(st, k))
    p("s_waitcnt vmcnt(8)")
    ST0()
    ST()
    lq = Q("lgkmcnt", 15); vq = Q("vmcnt", 63)
    def a_read(slot, T, u, t):
        r = AF + (T & 3) * 8 + u * 4 + t * 2
        p(f"ds_read_b64_tr_b16 v[{r}:{r+1}], v{vA1 if T & 1 else vA0} offset:{slot*16384 + u*8192 + t*1024 + (T>>1)*256}")
        lq.issue(("A", T & 3, u, t))
    def job_k(t):
        return (("K", t), f"""s_add_u32 m0, s{sKw}, {L_K + Kofs(t)}
    s_nop 0
    buffer_load_dwordx4 v{vDk}, s[{SRD_K}:{SRD_K+3}], s{sKsrc} offen lds
    s_add_u32 s{sKsrc}, s{sKsrc}, 8192""")
    def job_v(t):
        return (("V", t), f"""s_add_u32 m0, s{sVw}, {Vabs(t)}
    s_nop 0
    buffer_load_dwordx4 v{vDv}, s[{SRD_V}:{SRD_V+3}], s{sVsrc} offen lds
    s_add_u32 s{sVsrc}, s{sVsrc}, 8192""")
    def job_f(i):
        return (("F", i), f"""buffer_load_dwordx4 v[{FR+4*i}:{FR+4*i+3}], v{vDf}, s[{SRD_F}:{SRD_F+3}], s{sFsrc} offen
    s_add_u32 s{sFsrc}, s{sFsrc}, 7168""")
    def run(job):
        if not job: return
        if isinstance(job, str): p(job); return
        if callable(job): job(); return
        tag, code = job
        p(code); vq.issue(tag)
    def k_read(t, j):
        if 'nok' in dbg: return
        r = KF + (j % D) * 4
        p(f"ds_read_b128 v[{r}:{r+3}], v{vKb} offset:{Kofs(t) + j*128}")
        lq.issue(("K", j % D))
    def v_read(t, i):
        if 'nov' in dbg: return
        ks, dt = i >> 2, i & 3
        r = VF + (i % D) * 4
        reg, o = Vslot(t); va = vVb if reg == "B" else vVa
        p(f"ds_read_b64_tr_b16 v[{r}:{r+1}], v{va} offset:{o + ks*4096 + dt*256}")
        lq.issue(("Va", i % D))
        p(f"ds_read_b64_tr_b16 v[{r+2}:{r+3}], v{va} offset:{o + ks*4096 + 2048 + dt*256}")
        lq.issue(("V", i % D))
    LA = 3
    for T in range(LA):
        for u in range(2):
            for t in range(2): a_read(0, T, u, t)
    def stage(slot, vm, last=False):
        for T in range(8):
            a = AF + (T & 3) * 8
            Tn = T + LA; ns = slot
            if Tn >= 8: Tn -= 8; ns = (slot + 1) & 3
            rd = not (last and T + LA >= 8)
            k = 0
            for ct in range(2):
                for u in range(2):
                    d = QA + (T * 2 + ct) * 4; b = BRr(slot, ct * 2 + u)
                    lq.wait(p, ("A", T & 3, u, 1))
                    p(f"v_mfma_f32_16x16x32_bf16 v[{d}:{d+3}], v[{a+4*u}:{a+4*u+3}], v[{b}:{b+3}], v[{d}:{d+3}]")
                    if rd: a_read(ns, Tn, k >> 1, k & 1)
                    k += 1
            if T < len(vm): run(vm[T])
    def std_vm(slot):
        n = (slot + 3) & 3
        return [dma_wq(n, 0), dma_wq(n, 1), load_b(n, 0), load_b(n, 1), load_b(n, 2), load_b(n, 3)]
    st0 = list(lq.q)
    p(".p2align 6")
    p.label("K2_P1")
    for s4 in range(4):
        stage(s4, std_vm(s4))
        if s4 == 3:
            p(f"s_add_u32 s{sN}, s{sN}, 1\ns_cmp_lt_u32 s{sN}, 3")
        p("s_waitcnt vmcnt(10)\ns_barrier")
    assert lq.q == st0
    p("s_cbranch_scc1 K2_P1")
    vq.q = [("B14", k) for k in range(4)][0:0]
    vq.q = [("B13", 0)] * 4 + [("W14", 0), ("W14", 1)] + [("B14", k) for k in range(4)]
    sv = std_vm(0)
    stage(0, [(("W15", 0), sv[0]), (("W15", 1), sv[1])] + [(("B15", k), sv[2 + k]) for k in range(4)])
    vq.wait(p, ("W14", 1)); p("s_barrier")
    stage(1, [job_k(0), job_k(1), job_k(2), job_v(0), job_k(3), job_v(1), job_k(4), job_k(5)])
    vq.wait(p, ("W15", 1), ("B14", 3)); p("s_barrier")
    stage(2, [job_v(2), None, job_k(6), None, job_k(7)])
    vq.wait(p, ("B15", 3), ("K", 1)); p("s_barrier")
    stage(3, [], last=True)
    ST()
    if stamp: lq.q = []
    for j in range(D): k_read(0, j)
    p(f"s_mov_b32 s{sT0}, {fbits(QSCALE)}")
    for T in range(8):
        for ct in range(2):
            a = QA + (T * 2 + ct) * 4
            for r in range(4): p(f"v_mul_f32 v{a+r}, s{sT0}, v{a+r}")
        for ct in range(2):
            a = QA + (T * 2 + ct) * 4
            for k in range(2): p(f"v_cvt_pk_bf16_f32 v{QP + 4*T + 2*ct + k}, v{a+2*k}, v{a+2*k+1}")
        if T > 0:
            for k in range(2): p(f"v_permlane16_swap_b32 v{QP + 4*(T-1) + k}, v{QP + 4*(T-1) + 2 + k}")
    for k in range(2): p(f"v_permlane16_swap_b32 v{QP + 28 + k}, v{QP + 30 + k}")
    def qk(j, sbuf, cinit):
        lq.wait(p, ("K", j % D))
        k = KF + (j % D) * 4; q = QP + 4 * j; d = S + 16 * sbuf
        c = cinit if j == 0 else f"v[{d}:{d+15}]"
        p(f"v_mfma_f32_32x32x16_bf16 v[{d}:{d+15}], v[{k}:{k+3}], v[{q}:{q+3}], {c}")
    def pv(i, pbuf):
        lq.wait(p, ("V", i % D))
        ks, dt = i >> 2, i & 3
        v = VF + (i % D) * 4; b = P + 8 * pbuf + 4 * ks; d = ACC + 16 * dt
        p(f"v_mfma_f32_32x32x16_bf16 v[{d}:{d+15}], v[{v}:{v+3}], v[{b}:{b+3}], v[{d}:{d+15}]")
    for j in range(8):
        qk(j, 0, "0")
        k_read(0 if j + D < 8 else 1, (j + D) % 8)
    vq.wait(p, ("K", 3), ("V", 1)); p("s_barrier")
    ST()
    if stamp: lq.q = []
    s0 = S
    p(f"""
    v_max3_f32 v{vT0}, v{s0}, v{s0+1}, v{s0+2}
    v_max3_f32 v{vT1}, v{s0+3}, v{s0+4}, v{s0+5}
    v_max3_f32 v{vT0}, v{vT0}, v{s0+6}, v{s0+7}
    v_max3_f32 v{vT1}, v{vT1}, v{s0+8}, v{s0+9}
    v_max3_f32 v{vT0}, v{vT0}, v{s0+10}, v{s0+11}
    v_max3_f32 v{vT1}, v{vT1}, v{s0+12}, v{s0+13}
    v_max3_f32 v{vT0}, v{vT0}, v{s0+14}, v{s0+15}
    v_max_f32 v{vT0}, v{vT0}, v{vT1}
    v_mov_b32 v{vT1}, v{vT0}
    v_permlane32_swap_b32 v{vT0}, v{vT1}
    v_max_f32 v{vT0}, v{vT0}, v{vT1}
    """)
    for i in range(16): p(f"v_sub_f32 v{NEGM+i}, 0, v{vT0}")
    for i in range(16): p(f"v_sub_f32 v{s0+i}, v{s0+i}, v{vT0}")
    cold = 'nof' not in dbg
    SRD_P = 68; sPo = 72
    def pf(n):
        if not cold or 'nopf' in dbg: return None
        pre = ""
        if n == 0:
            pre = f"""s_lshl_b32 s{sT0}, s2, 15
    s_add_u32 s{SRD_P}, s10, s{sT0}
    s_addc_u32 s{SRD_P+1}, s11, 0
    s_mov_b32 s{SRD_P+2}, 0x8000
    s_mov_b32 s{SRD_P+3}, 0x20000
    s_mov_b32 s{sPo}, 0
    v_lshlrev_b32 v{vPF}, 4, v0
    """
        elif n == 4:
            pre = f"""s_mul_i32 s{sT0}, s2, 28672
    s_add_u32 s{SRD_P}, s16, s{sT0}
    s_addc_u32 s{SRD_P+1}, s17, 0
    s_mov_b32 s{SRD_P+2}, 28672
    s_mov_b32 s{sPo}, 0
    """
        return (("PF", n), pre + f"""s_add_u32 m0, s{sVw}, {L_K}
    s_nop 0
    buffer_load_dwordx4 v{vPF}, s[{SRD_P}:{SRD_P+3}], s{sPo} offen lds
    s_add_u32 s{sPo}, s{sPo}, 8192""")
    flagld = None
    keycode = f"""v_lshlrev_b32 v{vT2}, 5, v1
    v_add_u32 v{vT2}, {WS_KEYS}, v{vT2}
    global_load_dwordx4 v[{FT}:{FT+3}], v{vT2}, s[18:19] sc1
    global_load_dwordx4 v[{FT+4}:{FT+7}], v{vT2}, s[18:19] offset:16 sc1"""
    keychk = f"""v_xor_b32 v{FT+1}, s{sNON}, v{FT+1}
    v_xor_b32 v{FT+3}, s{sNON}, v{FT+3}
    v_xor_b32 v{FT+5}, s{sNON}, v{FT+5}
    v_xor_b32 v{FT+7}, s{sNON}, v{FT+7}
    v_or3_b32 v{FT+1}, v{FT+1}, v{FT+3}, v{FT+5}
    v_or_b32 v{FT+1}, v{FT+1}, v{FT+7}
    v_cmp_ne_u32 vcc, 0, v{FT+1}"""
    def keyld():
        p(keycode); vq.issue(("KY", 0)); vq.issue(("KY", 1))
    def xsel():
        vq.wait(p, ("KY", 1))
        p(keychk)
        p(f"s_mov_b32 s73, {SPIN_MAX}\ns_cbranch_vccnz M_KSPIN")
        p.label("M_KSPIN_RET")
        p(f"v_max3_u32 v{FT}, v{FT}, v{FT+2}, v{FT+4}\nv_max_u32 v{FT}, v{FT}, v{FT+6}")
        wave_max_u32(p, FT, FT + 1)
        p(f"""
    v_readfirstlane_b32 s{sKEY}, v{FT}
    s_and_b32 s{sIDX}, s{sKEY}, 0x7ff
    s_sub_u32 s{sIDX}, 2047, s{sIDX}
    s_lshr_b32 s{sT0}, s{sIDX}, 4
    s_lshl_b32 s{sT0}, s{sT0}, 15
    s_and_b32 s{sT1}, s2, 3
    s_lshl_b32 s{sT1}, s{sT1}, 13
    s_add_u32 s{sT0}, s{sT0}, s{sT1}
    s_lshl_b32 s{sT1}, s{sW}, 10
    s_add_u32 s{sT0}, s{sT0}, s{sT1}
    s_and_b32 s{sT1}, s{sIDX}, 15
    s_lshl_b32 s{sT1}, s{sT1}, 4
    s_add_u32 s{sT0}, s{sT0}, s{sT1}
    v_lshrrev_b32 v{vT2}, 4, v1
    v_lshlrev_b32 v{vT2}, 8, v{vT2}
    v_add_u32 v{vT2}, s{sT0}, v{vT2}
    global_load_dwordx4 v[{XS}:{XS+3}], v{vT2}, s[18:19] sc1""")
        vq.issue(("X", 0))
    def ffn_step(f):
        def go():
            if f == 0:
                vq.wait(p, ("X", 0), ("F", 7))
                p(f"""
    v_and_b32 v{vT2}, 15, v1
    v_lshlrev_b32 v{vT2}, 5, v{vT2}
    s_lshl_b32 s{sT0}, s{sW}, 9
    s_add_u32 s{sT0}, s{sT0}, {L_FP}
    v_add_u32 v{vT2}, s{sT0}, v{vT2}""")
            if f > 0:
                p(f"ds_write_b32 v{vT2}, v{FD} offset:{(f-1)*4}"); lq.issue(("FW", f - 1))
            if f < 8:
                j = f >> 1; sel = sPH if f & 1 else sPL
                for pp in range(4):
                    p(f"v_perm_b32 v{FT+pp}, v{FR+(2*pp+1)*4+j}, v{FR+(2*pp)*4+j}, s{sel}")
        return go
    def ffn_mfma():
        p(f"v_mfma_f32_16x16x32_bf16 v[{FD}:{FD+3}], v[{XS}:{XS+3}], v[{FT}:{FT+3}], 0")
    def ffn_final():
        p(f"""
    s_cmp_lg_u32 s{sW}, 0
    s_cbranch_scc1 K2_FSKIP
    s_cmp_ge_u32 s2, 224
    s_cbranch_scc1 K2_FSKIP
    v_lshlrev_b32 v{vT2}, 3, v1
    v_add_u32 v{vT3}, {L_FP}, v{vT2}""")
        for w in range(8): p(f"ds_read_b64 v[{FR+2*w}:{FR+2*w+1}], v{vT3} offset:{w*512}")
        p(f"""
    s_and_b32 s{sT0}, s2, 3
    s_mul_i32 s{sT0}, s{sT0}, {7168*4}
    s_lshr_b32 s{sT1}, s2, 2
    s_lshl_b32 s{sT1}, s{sT1}, 9
    s_add_u32 s{sT0}, s{sT0}, s{sT1}
    s_add_u32 s{sT0}, s{sT0}, {WS_GU}
    v_add_u32 v{vT2}, s{sT0}, v{vT2}
    s_waitcnt lgkmcnt(0)""")
        for w in range(1, 8):
            p(f"v_add_f32 v{FR}, v{FR}, v{FR+2*w}\nv_add_f32 v{FR+1}, v{FR+1}, v{FR+2*w+1}")
        p(f"global_store_dwordx2 v{vT2}, v[{FR}:{FR+1}], s[18:19] sc1")
        p.label("K2_FSKIP")
    NEG = f"v[{NEGM}:{NEGM+15}]"
    def iteration(t, extra=(), mid=()):
        doQK = t < 15; doPV = t > 0; prevSM = t > 0
        sb = t & 1
        for j in range(8):
            if doQK: qk(j, sb ^ 1, NEG)
            if (j > 0 or prevSM) and 'novalu' not in dbg:
                e = E + 2 * ((j - 1) & 1)
                pb = sb if j > 0 else sb ^ 1
                pr = P + 8 * pb + ((j - 1) & 7)
                p(f"v_add_f32 v{vL0}, v{vL0}, v{e}\nv_add_f32 v{vL1}, v{vL1}, v{e+1}\nv_cvt_pk_bf16_f32 v{pr}, v{e}, v{e+1}")
            if j < len(mid): run(mid[j])
            if doPV: pv(j, sb ^ 1)
            e = E + 2 * (j & 1)
            if 'novalu' not in dbg: p(f"v_exp_f32 v{e}, v{S+16*sb+2*j}\nv_exp_f32 v{e+1}, v{S+16*sb+2*j+1}")
            jj = j + D
            if jj < 8:
                if doQK: k_read(t + 1, jj)
                if doPV: v_read(t - 1, jj)
            else:
                if t + 2 <= 15: k_read(t + 2, jj - 8)
                v_read(t, jj - 8)
            if j < len(extra): run(extra[j])
    F = lambda i: job_f(i) if (ffn and cold and 'nofl' not in dbg) else None
    sched = {
        0: [job_k(8), flagld, job_v(3), None, job_v(4), None, F(0)],
        1: [job_v(5), None, None, job_v(6), None, None, F(1)],
        2: [job_k(9), None, job_k(10), None, job_v(7), None, F(2)],
        3: [job_v(8), keyld, job_v(9), None, job_v(10), None, F(3)],
        4: [job_k(11), None, job_k(12), None, job_v(11), None, F(4)],
        5: [job_v(12), None, None, job_v(13), None, None, F(5)],
        6: [job_k(13), None, job_k(14), None, job_v(14), None, F(6)],
        7: [job_v(15), None, None, None, None, None, F(7)],
        8: [job_k(15), None, xsel, None, pf(0)],
        9: [pf(1), None, None, None, pf(2)],
        10: [pf(3), None, None, None, pf(4)],
        11: [pf(5), None, None, None, pf(6)],
    }
    if 'nodma' in dbg: sched = {}
    for t in range(16):
        if t > 0 and t % 2 == 0:
            b = t // 2
            need = [("K", x) for x in range(2*b+4)] + [("V", x) for x in range(2*b+2)]
            if b == 6: need = [("K", x) for x in range(16)] + [("V", x) for x in range(16)]
            vq.wait(p, *need)
            if b == 7:
                if not (ffn and cold): pass
                else:
                    lq.wait(p, ("FW", 7)); p("s_barrier")
            elif 'nobar' not in dbg: p("s_barrier")
        extra = sched.get(t, []); mid = []
        if ffn and cold and t == 12:
            extra = [ffn_step(f) for f in range(8)]; mid = [None] + [ffn_mfma] * 7
        if ffn and cold and t == 13:
            extra = [None, ffn_step(8), None, pf(7)]; mid = [ffn_mfma]
        if ffn and cold and t == 14:
            extra = [None, None, ffn_final]
        iteration(t, extra, mid)
    e = E + 2
    p(f"v_add_f32 v{vL0}, v{vL0}, v{e}\nv_add_f32 v{vL1}, v{vL1}, v{e+1}\nv_cvt_pk_bf16_f32 v{P+8+7}, v{e}, v{e+1}")
    p(f"""
    v_add_f32 v{vL0}, v{vL0}, v{vL1}
    v_mov_b32 v{vL1}, v{vL0}
    """)
    for i in range(8):
        pv(i, 1)
        if i + D < 8: v_read(15, i + D)
        if i == 0:
            p(f"v_permlane32_swap_b32 v{vL0}, v{vL1}\nv_add_f32 v{vL0}, v{vL0}, v{vL1}")
        if i == 1:
            p(f"""
    v_mov_b32 v{vT1}, 0x5d800000
    v_cmp_nle_f32 vcc, v{vL0}, v{vT1}
    v_rcp_f32 v{vL1}, v{vL0}
    """)
    ST()
    if slow:
        p(f"s_cbranch_vccnz K2_SLOW")
        p.label("K2_SLOW_RET")
    for dt in range(4):
        for c in range(2):
            a = ACC + 16 * dt + 8 * c
            o = S + (dt * 2 + c) * 4
            for r in range(8): p(f"v_mul_f32 v{a+r}, v{a+r}, v{vL1}")
            for r in range(4): p(f"v_cvt_pk_bf16_f32 v{o+r}, v{a+2*r}, v{a+2*r+1}")
            p(f"buffer_store_dwordx4 v[{o}:{o+3}], v{vO}, s[{SRD_OT}:{SRD_OT+3}], s{sOT} offen offset:{c*512} sc1")
        if dt < 3: p(f"s_add_u32 s{sOT}, s{sOT}, 131072")
    phase3(p, ST, stamp)
    p.label("K2_END")
    p("s_endpgm")
    p.label("M_KSPIN")
    p("s_sleep 2")
    p(keycode)
    p("s_waitcnt vmcnt(0)")
    p(keychk)
    p(f"""
    s_cbranch_vccz M_KSPIN_RET
    s_sub_u32 s73, s73, 1
    s_cmp_lg_u32 s73, 0
    s_cbranch_scc1 M_KSPIN
    s_branch M_KSPIN_RET
    """)
    if slow:
        p.label("K2_SLOW")
        p(f"""
    s_waitcnt vmcnt(0) lgkmcnt(0)
    v_and_b32 v{vT0}, 31, v1
    v_lshlrev_b32 v{vT0}, 8, v{vT0}
    v_lshrrev_b32 v{vT1}, 5, v1
    v_lshl_add_u32 v{vT0}, v{vT1}, 4, v{vT0}
    v_and_b32 v{vT2}, 19, v1
    v_bfe_u32 v{vT3}, v1, 2, 1
    v_lshl_add_u32 v{vT2}, v{vT3}, 3, v{vT2}
    v_bfe_u32 v{vT3}, v1, 3, 1
    v_lshl_add_u32 v{vT2}, v{vT3}, 2, v{vT2}
    v_lshlrev_b32 v{vT2}, 1, v{vT2}
    v_lshl_add_u32 v{vT2}, v{vT1}, 10, v{vT2}
    v_mov_b32 v{vT1}, 0xff800000
    s_mov_b32 s{sT1}, 0
    """)
        KS = KF
        def slow_qk(c0):
            for j in range(8):
                p(f"buffer_load_dwordx4 v[{KS+4*j}:{KS+4*j+3}], v{vT0}, s[{SRD_K}:{SRD_K+3}], s{sT1} offen offset:{j*32}")
            p("s_waitcnt vmcnt(0)")
            for j in range(8):
                c = c0 if j == 0 else f"v[{S}:{S+15}]"
                p(f"v_mfma_f32_32x32x16_bf16 v[{S}:{S+15}], v[{KS+4*j}:{KS+4*j+3}], v[{QP+4*j}:{QP+4*j+3}], {c}")
        p.label("K2_SLOW_L1")
        slow_qk("0")
        for i in range(0, 16, 2):
            p(f"v_max3_f32 v{vT1}, v{vT1}, v{S+i}, v{S+i+1}")
        p(f"""
    s_add_u32 s{sT1}, s{sT1}, 8192
    s_cmp_lt_u32 s{sT1}, 131072
    s_cbranch_scc1 K2_SLOW_L1
    v_mov_b32 v{vT3}, v{vT1}
    v_permlane32_swap_b32 v{vT3}, v{vT1}
    v_max_f32 v{vT1}, v{vT3}, v{vT1}
    """)
        for i in range(16): p(f"v_sub_f32 v{NEGM+i}, 0, v{vT1}")
        for i in range(64): p(f"v_mov_b32 v{ACC+i}, 0")
        p(f"v_mov_b32 v{vL0}, 0\ns_mov_b32 s{sT1}, 0")
        p.label("K2_SLOW_L2")
        slow_qk(NEG)
        for i in range(16): p(f"v_exp_f32 v{S+i}, v{S+i}")
        for i in range(16): p(f"v_add_f32 v{vL0}, v{vL0}, v{S+i}")
        for i in range(8): p(f"v_cvt_pk_bf16_f32 v{P+i}, v{S+2*i}, v{S+2*i+1}")
        for ks in range(2):
            p(f"s_add_u32 s{sT2}, s{sT1}, {ks*4096}")
            TM = S + 16
            for dt in range(4):
                r = KS + dt * 4; d = ACC + 16 * dt
                for jj in range(8):
                    key = (jj & 3) + 8 * (jj >> 2)
                    p(f"buffer_load_ushort v{TM + jj}, v{vT2}, s[{SRD_V}:{SRD_V+3}], s{sT2} offen offset:{key*256 + dt*64}")
                p("s_waitcnt vmcnt(0)")
                for jj in range(4): p(f"v_lshl_or_b32 v{r+jj}, v{TM+2*jj+1}, 16, v{TM+2*jj}")
                p(f"v_mfma_f32_32x32x16_bf16 v[{d}:{d+15}], v[{r}:{r+3}], v[{P+4*ks}:{P+4*ks+3}], v[{d}:{d+15}]")
            p("s_nop 7")
        p(f"""
    s_add_u32 s{sT1}, s{sT1}, 8192
    s_cmp_lt_u32 s{sT1}, 131072
    s_cbranch_scc1 K2_SLOW_L2
    v_mov_b32 v{vL1}, v{vL0}
    v_permlane32_swap_b32 v{vL0}, v{vL1}
    v_add_f32 v{vL0}, v{vL0}, v{vL1}
    v_rcp_f32 v{vL1}, v{vL0}
    s_nop 7
    s_branch K2_SLOW_RET
    """)
    n = p.fix_hazards(verbose='v' in dbg)
    txt = p.text().replace('STAMPX1', 's_memrealtime s[94:95]' if stamp else 's_nop 0')
    return txt, descriptor(name, 256, 256, 102), f"; @launch grid=(256,1,1) block=(512,1,1) lds={L_TOTAL}"

if __name__ == "__main__":
    import sys, subprocess, re
    dbg = tuple(sys.argv[2].split(',')) if len(sys.argv) > 2 else ()
    t, d, l = gen_mega(stamp=len(sys.argv) > 1 and sys.argv[1] == "1", dbg=dbg)
    out = sys.argv[3] if len(sys.argv) > 3 else "mega.s"
    def write(cs):
        open(out, "w").write(l + '\n.amdgcn_target "amdgcn-amd-amdhsa--gfx950"\n.text\n' + t.replace("CODESIZE", str(cs)) + '.section .rodata,"a"\n' + d)
    write(0x1000)
    subprocess.run(["clang", "-x", "assembler", "-target", "amdgcn-amd-amdhsa", "-mcpu=gfx950", "-c", out, "-o", "mega.o"], check=True)
    r = subprocess.run(["llvm-objdump", "-h", "mega.o"], capture_output=True, text=True).stdout
    sz = int(re.search(r"\.text\s+([0-9a-f]+)", r).group(1), 16)
    write((sz - 256) & ~63)
    print("code size", sz)
```

```python
from gen_common import *
import math, struct

KSL = 8704; VSL = 8192
L_X = 65536
L_HI = 131072
L_FP = 159744
L_TOTAL = L_FP + 4096
L_K = L_HI
KADDR = [L_HI, L_HI + KSL, L_HI + 2 * KSL, L_X, L_X + KSL + 2 * VSL, L_X + 2 * KSL + 2 * VSL, L_X + 3 * KSL + 2 * VSL]
VADDR = [L_X + KSL, L_X + KSL + VSL, L_X + 4 * KSL + 2 * VSL] + [i * VSL for i in range(8)]
assert VADDR[2] + VSL <= L_HI and KADDR[2] + KSL <= L_FP and VADDR[1] + VSL <= L_X + 32768
def Kabs(t): return KADDR[t % 7]
def Vabs(t): return VADDR[t % 11]

vDk, vDv, vKb, vVa, vVb, vO, vL0, vL1, vDf, vKh, vT0, vT1, vT2, vT3 = 2, 3, 4, 5, 6, 7, 8, 9, 10, 11, 12, 13, 14, 15
vPF = 211
ACC = 16; QP = 80; S = 112; NEGM = 144; P = 160; KF = 176; VF = 192; E = 208
QA = 112; AF = 176
def BRr(buf, k): return 212 + (buf & 1) * 16 + k * 4
FR = 212
vA0, vA1, vDq, vDq2, vXB0, vXB1 = 244, 245, 246, 247, 248, 249
vXD = 80
FT = 244; FD = 248; XS = 252
sW = 3
sHEAD, sRB, sG = 20, 21, 22
sN, sWq, sM, sB = 23, 24, 25, 26
sKsrc, sKw, sVsrc, sVw = 27, 28, 29, 30
sPL, sPH = 31, 32
sFsrc, sIDX = 69+32, 35
SRD_WQ, SRD_XN, SRD_K, SRD_V, SRD_F, SRD_OT = 36, 40, 44, 48, 52, 56
sT0, sT1, sT2, sT3 = 60, 61, 62, 63
sOT = 64
sXM = 100
QSCALE = math.log2(math.e) / math.sqrt(128.0)
def fbits(x): return "0x%08x" % struct.unpack("<I", struct.pack("<f", x))[0]
D = 4

class Q:
    def __init__(self, cnt, mx): self.q = []; self.cnt = cnt; self.mx = mx
    def issue(self, tag): self.q.append(tag)
    def wait(self, p, *tags):
        idx = [len(self.q) - 1 - self.q[::-1].index(t) for t in tags if t in self.q]
        if not idx: return
        i = max(idx)
        n = len(self.q) - 1 - i
        assert n <= self.mx, n
        p(f"s_waitcnt {self.cnt}({n})")
        self.q = self.q[i + 1:]


KNAME = "recurrent_scan__sliding_block_cached__moe_arch_mod__prompt_kernel"
sFL, sPC, sKEY = 65, 70, 34
SPIN_MAX = 20000
MODE0 = [False]
MODE3 = [False]
WS_FLG = 0x500000
sNON = 33

LX = 16
def poll32(p, lab, sGrp, stage):
    p(f"""
    v_and_b32 v{vT0}, 31, v1
    v_lshlrev_b32 v{vT0}, 7, v{vT0}
    s_lshl_b32 s{sGrp}, s{sGrp}, 12
    s_add_u32 s{sGrp}, s{sGrp}, {WS_FLG + stage*32768}
    v_add_u32 v{vT0}, s{sGrp}, v{vT0}
    s_mov_b32 s73, {SPIN_MAX}
    """)
    p.label(lab)
    p(f"""
    global_load_dword v{vT1}, v{vT0}, s[18:19] sc1
    s_waitcnt vmcnt(0)
    v_cmp_ne_u32 vcc, s{sNON}, v{vT1}
    s_cbranch_vccz {lab}_OK
    s_sleep 1
    s_sub_u32 s73, s73, 1
    s_cmp_lg_u32 s73, 0
    s_cbranch_scc1 {lab}
    """)
    p.label(lab + "_OK")
def set_flag(p, stage):
    p(f"""
    s_lshl_b32 s{sT0}, s{sFL}, 7
    s_add_u32 s{sT0}, s{sT0}, {WS_FLG + stage*32768}
    v_mov_b32 v{vT0}, s{sT0}
    v_mov_b32 v{vT1}, s{sNON}
    s_mov_b64 exec, 1
    global_store_dword v{vT0}, v{vT1}, s[18:19] sc1
    s_mov_b64 exec, -1
    """)
WS_ST = 0x520000
WS_CS = 0x530000
L_SC = L_K
CSR = 92
def get_nonce(p, lab, vz, vn):
    p(f"""
    s_mov_b32 s73, {SPIN_MAX}
{lab}:
    global_load_dword v{vn}, v{vz}, s[66:67] sc1
    s_waitcnt vmcnt(0)
    v_readfirstlane_b32 s{sNON}, v{vn}
    s_cmp_lg_u32 s{sNON}, 0
    s_cbranch_scc1 {lab}_OK
    s_sub_u32 s73, s73, 1
    s_cmp_lg_u32 s73, 0
    s_cbranch_scc1 {lab}
{lab}_OK:
    """)
class Rec:
    def __init__(self): self.items = []
    def __call__(self, text):
        for line in text.split('\n'):
            if line.strip(): self.items.append(line.strip())
    def call(self, f): self.items.append(f)
LN_X = 16; LN_W = 24
vg0, vg1, vr_, vq_, vNON, vCSA, vLXA = 84, 85, 86, 87, 88, 89, 90
def ln_segments(lq, vq, P):
    X = LN_X; W = LN_W; F = 32; S_ = 48; T = 49; Q0 = 50; Q1 = 51; Dd = 52; va = 68; vw = 69; SD = 70; G = 32
    CA = 72; CT = 52
    p = Rec()
    p(f"""
    v_lshrrev_b32 v{vw}, 6, v0
    v_and_b32 v{va}, 7, v1
    v_xor_b32 v{va}, v{va}, v{vw}
    v_lshlrev_b32 v{va}, 4, v{va}
    v_lshl_add_u32 v{va}, v1, 7, v{va}
    v_add_u32 v{va}, {L_SC}, v{va}
    v_lshrrev_b32 v{vg1}, 3, v0
    v_and_b32 v{vg0}, 7, v{vg1}
    v_and_b32 v{vr_}, 7, v0
    v_xor_b32 v{vg0}, v{vg0}, v{vr_}
    v_lshlrev_b32 v{vg0}, 4, v{vg0}
    v_lshl_add_u32 v{vg0}, v{vg1}, 8, v{vg0}
    s_lshr_b32 s{sT0}, s{sFL}, 1
    s_lshl_b32 s{sT0}, s{sT0}, 15
    s_and_b32 s{sT1}, s{sFL}, 1
    s_lshl_b32 s{sT1}, s{sT1}, 7
    s_add_u32 s{sT0}, s{sT0}, s{sT1}
    v_add_u32 v{vg0}, s{sT0}, v{vg0}
    v_add_u32 v{vg1}, 0x4000, v{vg0}
    v_lshlrev_b32 v{vr_}, 4, v0
    v_add_u32 v{vr_}, {L_SC}, v{vr_}
    """)
    p.call(lambda: vq.wait(P, ("LX", 1)))
    for i in range(8):
        p(f"v_lshlrev_b32 v{F+2*i}, 16, v{X+i}\nv_and_b32 v{F+2*i+1}, 0xffff0000, v{X+i}")
    p(f"v_add_f32 v{S_}, v{F}, v{F+1}\nv_add_f32 v{T}, v{F+2}, v{F+3}")
    for i in range(4, 16, 2):
        p(f"v_add_f32 v{S_}, v{S_}, v{F+i}\nv_add_f32 v{T}, v{T}, v{F+i+1}")
    p(f"v_add_f32 v{S_}, v{S_}, v{T}")
    wave_sum(p, S_, T)
    p(f"v_mul_f32 v{S_}, 0x3a800000, v{S_}")
    for i in range(16): p(f"v_sub_f32 v{Dd+i}, v{F+i}, v{S_}")
    p(f"v_mul_f32 v{Q0}, v{Dd}, v{Dd}\nv_mul_f32 v{Q1}, v{Dd+1}, v{Dd+1}")
    for i in range(2, 16, 2):
        p(f"v_fmac_f32 v{Q0}, v{Dd+i}, v{Dd+i}\nv_fmac_f32 v{Q1}, v{Dd+i+1}, v{Dd+i+1}")
    p(f"v_add_f32 v{Q0}, v{Q0}, v{Q1}")
    wave_sum(p, Q0, T)
    p(f"""
    v_mul_f32 v{Q0}, 0x3a800000, v{Q0}
    v_cvt_pk_bf16_f32 v{T}, v{S_}, v{Q0}
    v_lshlrev_b32 v{S_}, 16, v{T}
    v_and_b32 v{Q0}, 0xffff0000, v{T}
    v_add_f32 v{Q0}, 0x3727c5ac, v{Q0}
    v_cvt_pk_bf16_f32 v{Q0}, v{Q0}, v{Q0}
    v_lshlrev_b32 v{Q0}, 16, v{Q0}
    v_sqrt_f32 v{Q0}, v{Q0}
    v_cvt_pk_bf16_f32 v{SD}, v{S_}, v{Q0}
    v_and_b32 v{Q0}, 0xffff0000, v{SD}
    v_rcp_f32 v{Q0}, v{Q0}
    """)
    def dsw(text, tag):
        def f():
            P(text); lq.issue(tag)
        p.call(f)
    p(f"""
    s_lshl_b32 s{sT0}, s{sW}, 2
    s_add_u32 s{sT0}, s{sT0}, {L_SC + 16384}
    v_mov_b32 v{vw}, s{sT0}
    """)
    p.call(lambda: vq.wait(P, ("CS", 3)))
    for i in range(4):
        for j in range(4):
            r = CSR + 4 * i + j
            if i == 0:
                p(f"v_lshlrev_b32 v{CA+2*j}, 16, v{r}\nv_and_b32 v{CA+2*j+1}, 0xffff0000, v{r}")
            else:
                p(f"v_lshlrev_b32 v{CT}, 16, v{r}\nv_and_b32 v{CT+1}, 0xffff0000, v{r}")
                p(f"v_add_f32 v{CA+2*j}, v{CA+2*j}, v{CT}\nv_add_f32 v{CA+2*j+1}, v{CA+2*j+1}, v{CT+1}")
    for sw in ("v_permlane16_swap_b32", "v_permlane32_swap_b32"):
        for c in range(8): p(f"v_mov_b32 v{CT+c}, v{CA+c}")
        for c in range(8): p(f"{sw} v{CA+c}, v{CT+c}")
        for c in range(8): p(f"v_add_f32 v{CA+c}, v{CA+c}, v{CT+c}")
    p(f"""
    v_and_b32 v{T}, 15, v1
    v_lshlrev_b32 v{T}, 5, v{T}
    s_lshl_b32 s{sT0}, s{sW}, 9
    s_add_u32 s{sT0}, s{sT0}, {L_SC + 16512}
    v_add_u32 v{T}, s{sT0}, v{T}
    """)
    dsw(f"ds_write_b128 v{T}, v[{CA}:{CA+3}]", ("LW", 4))
    dsw(f"ds_write_b128 v{T}, v[{CA+4}:{CA+7}] offset:16", ("LW", 5))
    partA = p.items
    p = Rec()
    for i in range(16): p(f"v_sub_f32 v{Dd+i}, v{F+i}, v{S_}")
    for i in range(8): p(f"v_cvt_pk_bf16_f32 v{X+i}, v{Dd+2*i}, v{Dd+2*i+1}")
    for i in range(8):
        p(f"v_lshlrev_b32 v{Dd+2*i}, 16, v{X+i}\nv_and_b32 v{Dd+2*i+1}, 0xffff0000, v{X+i}")
    for i in range(16): p(f"v_mul_f32 v{Dd+i}, v{Dd+i}, v{Q0}")
    for i in range(8): p(f"v_cvt_pk_bf16_f32 v{X+i}, v{Dd+2*i}, v{Dd+2*i+1}")
    dsw(f"ds_write_b128 v{va}, v[{X}:{X+3}]", ("LW", 0))
    dsw(f"ds_write_b128 v{va}, v[{X+4}:{X+7}] offset:8192", ("LW", 1))
    p.call(lambda: vq.wait(P, ("LX", 3)))
    for i in range(8):
        p(f"v_lshlrev_b32 v{Dd+2*i}, 16, v{X+i}\nv_and_b32 v{Dd+2*i+1}, 0xffff0000, v{X+i}")
        p(f"v_lshlrev_b32 v{G+2*i}, 16, v{W+i}\nv_and_b32 v{G+2*i+1}, 0xffff0000, v{W+i}")
    p(f"v_mul_f32 v{S_}, v{Dd}, v{G}\nv_mul_f32 v{Q1}, v{Dd+1}, v{G+1}")
    for i in range(2, 16, 2):
        p(f"v_fmac_f32 v{S_}, v{Dd+i}, v{G+i}\nv_fmac_f32 v{Q1}, v{Dd+i+1}, v{G+i+1}")
    p(f"v_add_f32 v{S_}, v{S_}, v{Q1}")
    wave_sum(p, S_, T)
    p(f"""
    v_cvt_pk_bf16_f32 v{S_}, v{S_}, v{S_}
    v_lshlrev_b32 v{S_}, 16, v{S_}
    v_ashrrev_i32 v{T}, 31, v{S_}
    v_or_b32 v{T}, 0x80000000, v{T}
    v_xor_b32 v{S_}, v{S_}, v{T}
    v_and_b32 v{S_}, 0xffff0000, v{S_}
    s_lshl_b32 s{sT1}, s{sFL}, 3
    s_add_u32 s{sT1}, s{sT1}, s{sW}
    s_sub_u32 s{sT0}, 2047, s{sT1}
    v_or_b32 v{S_}, s{sT0}, v{S_}
    v_mov_b32 v{vL0}, 0
    v_mov_b32 v{vL1}, 0
    """)
    dsw(f"ds_write_b32 v{vw}, v{S_}", ("LW", 2))
    return partA, p.items
def pub_segments(lq, vq, P):
    R = CSR
    p = Rec()
    def ds(text, tag):
        def f():
            P(text); lq.issue(tag)
        p.call(f)
    def vm(text, tag):
        def f():
            P(text); vq.issue(tag)
        p.call(f)
    p(f"""
    v_lshrrev_b32 v{R+4}, 3, v1
    v_lshlrev_b32 v{R+4}, 9, v{R+4}
    v_and_b32 v{R+5}, 7, v1
    v_lshl_add_u32 v{R+4}, v{R+5}, 3, v{R+4}
    s_lshl_b32 s{sT0}, s{sW}, 6
    s_add_u32 s{sT0}, s{sT0}, {L_SC + 16512}
    v_add_u32 v{R+4}, s{sT0}, v{R+4}
    """)
    ds(f"ds_read_b64 v[{R}:{R+1}], v{R+4}", ("PR", 0))
    p(f"""
    s_lshl_b32 s{sT0}, s{sHEAD}, 3
    s_add_u32 s{sT0}, s{sT0}, s{sRB}
    s_lshl_b32 s{sT0}, s{sT0}, 3
    s_add_u32 s{sT0}, s{sT0}, s{sW}
    s_lshl_b32 s{sT0}, s{sT0}, 7
    s_add_u32 s{sT0}, s{sT0}, {WS_CS}
    v_lshlrev_b32 v{R+5}, 4, v{R+5}
    v_add_u32 v{R+5}, s{sT0}, v{R+5}
    s_lshl_b32 s{sT0}, s{sFL}, 3
    s_add_u32 s{sT0}, s{sT0}, s{sW}
    s_lshl_b32 s{sT0}, s{sT0}, 3
    s_add_u32 s{sT0}, s{sT0}, {WS_ST}
    v_mov_b32 v{R+6}, s{sT0}
    v_mov_b32 v71, s{sNON}
    """)
    vm(f"s_mov_b64 exec, 1\nglobal_store_dwordx2 v{R+6}, v[70:71], s[18:19] sc1\ns_mov_b64 exec, -1", ("PS", 0))
    p.call(lambda: lq.wait(P, ("PR", 0)))
    p(f"v_mov_b32 v{R+2}, v{R+1}")
    for c in (R, R + 2): p(f"v_add_f32_dpp v{c}, v{c}, v{c} row_ror:8 row_mask:0xf bank_mask:0xf")
    for sw in ("v_permlane16_swap_b32", "v_permlane32_swap_b32"):
        p(f"v_mov_b32 v{R+1}, v{R}\nv_mov_b32 v{R+3}, v{R+2}")
        p(f"{sw} v{R}, v{R+1}\n{sw} v{R+2}, v{R+3}")
        p(f"v_add_f32 v{R}, v{R}, v{R+1}\nv_add_f32 v{R+2}, v{R+2}, v{R+3}")
    p(f"v_mov_b32 v{R+1}, s{sNON}\nv_mov_b32 v{R+3}, s{sNON}")
    vm(f"s_mov_b64 exec, 0xff\nglobal_store_dwordx4 v{R+5}, v[{R}:{R+3}], s[18:19] sc1\ns_mov_b64 exec, -1", ("PS", 1))
    seg1 = p.items
    p = Rec()
    X = 16
    ds(f"ds_read_b128 v[{X}:{X+3}], v{vr_}", ("PR", 1))
    ds(f"ds_read_b128 v[{X+4}:{X+7}], v{vr_} offset:8192", ("PR", 2))
    p(f"v_mov_b32 v{vq_}, {L_SC + 16384}")
    ds(f"ds_read_b128 v[{X+8}:{X+11}], v{vq_}", ("PR", 3))
    p("s_nop 0\ns_nop 0\ns_nop 0\ns_nop 0")
    p.call(lambda: lq.wait(P, ("PR", 1)))
    vm(f"global_store_dwordx4 v{vg0}, v[{X}:{X+3}], s[18:19] sc1", ("PS", 2))
    ds(f"ds_read_b128 v[{X+12}:{X+15}], v{vq_} offset:16", ("PR", 4))
    p.call(lambda: lq.wait(P, ("PR", 2)))
    vm(f"global_store_dwordx4 v{vg1}, v[{X+4}:{X+7}], s[18:19] sc1", ("PS", 3))
    p("s_nop 0\ns_nop 0\ns_nop 0\ns_nop 0")
    p.call(lambda: lq.wait(P, ("PR", 4)))
    p(f"""
    v_max3_u32 v{X+8}, v{X+8}, v{X+9}, v{X+10}
    v_max3_u32 v{X+12}, v{X+12}, v{X+13}, v{X+14}
    v_max3_u32 v{X+8}, v{X+8}, v{X+11}, v{X+15}
    v_max_u32 v{X+8}, v{X+8}, v{X+12}
    v_readfirstlane_b32 s{sKEY}, v{X+8}
    """)
    return seg1, p.items
def set_flag2(p):
    pass

def rbf(p, v):
    p(f"v_cvt_pk_bf16_f32 v{v}, v{v}, v{v}\nv_lshlrev_b32 v{v}, 16, v{v}")
def silu(p, d, v, t):
    p(f"""
    v_mul_f32 v{t}, 0xbfb8aa3b, v{v}
    v_exp_f32 v{t}, v{t}
    v_add_f32 v{t}, 1.0, v{t}
    v_rcp_f32 v{t}, v{t}
    v_mul_f32 v{d}, v{v}, v{t}
    """)
sRT, sCT, sIT, sA, sBo, sMb, sMb2, sKH, sKQ, sMH = 20, 21, 23, 24, 25, 26, 27, 28, 29, 30
sKG, sCG = 31, 32
SRD_A, SRD_B = 36, 40
RB1 = 16384; RB2 = 114688
WS_EX = 0x2000000; WS_FLG2 = 0x560000
EW = 244
L_H3 = 148480
CNT_A = L_HI + 2*KSL + 6*1088 + 1024
CNT_B = CNT_A + 1088
def p3_early_setup():
    return f"""s_and_b32 s{sT0}, s2, 7
    s_lshr_b32 s{sT1}, s2, 3
    s_lshr_b32 s{sRT}, s{sT0}, 1
    s_lshl_b32 s{sRT}, s{sRT}, 2
    s_and_b32 s{sT2}, s{sT1}, 3
    s_add_u32 s{sRT}, s{sRT}, s{sT2}
    s_and_b32 s{sCT}, s{sT0}, 1
    s_lshl_b32 s{sCT}, s{sCT}, 2
    s_bfe_u32 s{sT2}, s{sT1}, 0x20002
    s_add_u32 s{sCT}, s{sCT}, s{sT2}
    s_lshr_b32 s{sKH}, s{sT1}, 4
    s_and_b32 s{sKQ}, s{sW}, 3
    s_lshr_b32 s{sMH}, s{sW}, 2
    s_lshl_b32 s{sT0}, s{sKH}, 2
    s_add_u32 s{sT0}, s{sT0}, s{sKQ}
    s_lshl_b32 s{sT1}, s{sT0}, 21
    s_add_u32 s{sT1}, s{sT1}, {WS_OT}
    s_add_u32 s{SRD_A}, s18, s{sT1}
    s_addc_u32 s{SRD_A+1}, s19, 0
    s_mov_b32 s{SRD_A+2}, 0x200000
    s_mov_b32 s{SRD_A+3}, 0x20000
    s_lshl_b32 s{sT1}, s{sT0}, 20
    s_add_u32 s{SRD_B}, s10, s{sT1}
    s_addc_u32 s{SRD_B+1}, s11, 0
    s_mov_b32 s{SRD_B+2}, 0x100000
    s_mov_b32 s{SRD_B+3}, 0x20000
    s_lshl_b32 s{sA}, s{sRT}, 1
    s_add_u32 s{sA}, s{sA}, s{sMH}
    s_lshl_b32 s{sA}, s{sA}, 12
    s_lshl_b32 s{sBo}, s{sCT}, 8
    s_lshl_b32 s{sT1}, s{sMH}, 15
    s_add_u32 s{sBo}, s{sBo}, s{sT1}
    s_mul_i32 s{sMb}, s{sKQ}, 24576
    s_add_u32 s{sMb}, s{sMb}, {RB1}
    s_lshl_b32 s{sMb2}, s{sKQ}, 13
    s_add_u32 s{sMb2}, s{sMb2}, {RB2 - 3*8192}
    s_lshl_b32 s{sT1}, s{sMH}, 12
    s_add_u32 s{sT2}, s{sMb}, s{sT1}
    s_add_u32 s{sT3}, s{sMb2}, s{sT1}
    v_lshrrev_b32 v{EW+1}, 4, v1
    v_and_b32 v{EW}, 3, v1
    v_bfe_u32 v{EW+2}, v1, 2, 2
    v_lshlrev_b32 v{EW}, 4, v{EW}
    v_lshl_add_u32 v{EW}, v{EW+1}, 6, v{EW}
    v_lshl_add_u32 v{EW}, v{EW+2}, 11, v{EW}
    v_add_u32 v{EW+1}, 7168, v{EW}
    v_add_u32 v{EW+2}, {2*7168}, v{EW}
    v_add_u32 v{EW+3}, {3*7168}, v{EW}
    s_mov_b32 s{sDW}, s{sT2}
    s_mov_b32 s{sDW2}, s{sT3}"""
sDW, sDW2 = 68, 69
def wdma(slot, i, vW):
    t = ""
    if i == 0: t = f"s_add_u32 m0, s{sDW2 if slot == 3 else sDW}, {slot*8192}\ns_nop 0\n"
    t += f"buffer_load_dwordx4 v{vW+i}, s[{SRD_B}:{SRD_B+3}], s{sBo} offen offset:{i*1024} lds"
    if i == 3: t += f"\ns_add_u32 s{sBo}, s{sBo}, 65536"
    return t
def p3_early_dma(n):
    return wdma(n >> 2, n & 3, EW)
def phase3(p, ST, stamp):
    AC3 = 128; OR = 64; WF = 16; XP = 32; GP = 48
    vAo, vRd, vRd2, vOut, vFa, vFv = 2, 3, 8, 9, 10, 11; vW = 4
    ST(False)
    def oload(slot, i):
        r = OR + slot * 16 + i * 4
        t = f"buffer_load_dwordx4 v[{r}:{r+3}], v{vAo}, s[{SRD_A}:{SRD_A+3}], s{sA} offen offset:{i*1024} sc1"
        if i == 3: t += f"\ns_add_u32 s{sA}, s{sA}, 131072"
        return t
    def arrive(lab, n):
        p(f"""
    v_mov_b32 v{vT0}, {CNT_A}
    v_mov_b32 v{vT1}, 1
    s_waitcnt vmcnt({n})
    s_mov_b64 exec, 1
    ds_add_rtn_u32 v{vT2}, v{vT0}, v{vT1}
    s_mov_b64 exec, -1
    s_waitcnt lgkmcnt(0)
    v_readfirstlane_b32 s{sT0}, v{vT2}
    s_cmp_lg_u32 s{sT0}, 7
    s_cbranch_scc1 {lab}
    """)
        set_flag(p, 1)
        p.label(lab)
    p(f"""
    ST3_0
    v_mov_b32 v{vW}, v{EW}
    v_mov_b32 v{vW+1}, v{EW+1}
    v_mov_b32 v{vW+2}, v{EW+2}
    v_mov_b32 v{vW+3}, v{EW+3}
    s_and_b32 s{sKG}, s{sFL}, 15
    s_lshr_b32 s{sCG}, s{sFL}, 4
    s_cmp_lg_u32 s{sMH}, s{sKH}
    s_cbranch_scc1 M_SEND0
    """)
    NR = 144; GG = 160; TT = 192
    p(f"""
    s_lshl_b32 s{sT0}, s{sRT}, 1
    s_add_u32 s{sT0}, s{sT0}, s{sKH}
    s_lshl_b32 s{sT0}, s{sT0}, 2
    s_add_u32 s{sT0}, s{sT0}, s{sKQ}
    s_lshl_b32 s{sT1}, s{sT0}, 15
    s_lshl_b32 s{sT2}, s{sCT}, 8
    s_add_u32 s{sT2}, s{sT1}, s{sT2}
    v_and_b32 v{vT0}, 15, v1
    v_lshrrev_b32 v{vT1}, 4, v1
    v_lshlrev_b32 v{vOut}, 11, v{vT0}
    v_lshl_add_u32 v{vOut}, v{vT1}, 4, v{vOut}
    v_add_u32 v{vOut}, s{sT2}, v{vOut}
    s_lshl_b32 s{sT2}, s{sCT}, 12
    s_add_u32 s{sT2}, s{sT1}, s{sT2}
    v_lshlrev_b32 v{vT2}, 4, v{vT0}
    v_lshl_add_u32 v{vT2}, v{vT1}, 8, v{vT2}
    v_add_u32 v{vT2}, s{sT2}, v{vT2}
    """)
    for u in range(4): p(f"global_load_dwordx4 v[{NR+4*u}:{NR+4*u+3}], v{vT2}, s[18:19] offset:{u*1024} sc1")
    for u in range(4): p(f"global_load_dwordx4 v[{XP+4*u}:{XP+4*u+3}], v{vOut}, s[74:75] offset:{u*64}")
    arrive("M_ARR0", 8)
    p("STAMPX1\ns_waitcnt vmcnt(0)")
    for j in range(16):
        p(f"v_lshlrev_b32 v{GG+2*j}, 16, v{NR+j}\nv_and_b32 v{GG+2*j+1}, 0xffff0000, v{NR+j}")
    for c in range(32): p(f"v_mul_f32 v{TT+c}, 0xbfb8aa3b, v{GG+c}")
    for c in range(32): p(f"v_exp_f32 v{TT+c}, v{TT+c}")
    for c in range(32): p(f"v_add_f32 v{TT+c}, 1.0, v{TT+c}")
    for c in range(32): p(f"v_rcp_f32 v{TT+c}, v{TT+c}")
    for c in range(32): p(f"v_mul_f32 v{GG+c}, v{GG+c}, v{TT+c}")
    for c in range(16): p(f"v_cvt_pk_bf16_f32 v{GP+c}, v{GG+2*c}, v{GG+2*c+1}")
    p("s_branch M_JOIN0")
    p.label("M_SEND0")
    WD = 144; GR = 176; GA = 192; AC = 200; T = 208; SW = 212
    p(f"""
    s_mul_i32 s{sT0}, s{sKG}, 224
    s_mul_i32 s{sT1}, s{sKQ}, 56
    s_add_u32 s{sT0}, s{sT0}, s{sT1}
    s_lshl_b32 s{sT1}, s{sT0}, 11
    s_lshl_b32 s{sT2}, s{sCG}, 7
    s_add_u32 s{sT1}, s{sT1}, s{sT2}
    v_lshrrev_b32 v{vT2}, 3, v1
    v_lshlrev_b32 v{vT2}, 11, v{vT2}
    v_and_b32 v{vT3}, 7, v1
    v_lshl_add_u32 v{vT2}, v{vT3}, 4, v{vT2}
    v_add_u32 v{vT2}, s{sT1}, v{vT2}
    v_min_u32 v{GA}, 55, v1
    v_add_lshl_u32 v{GA}, v{GA}, s{sT0}, 3
    v_add_u32 v{GA}, {WS_GU}, v{GA}
    v_mov_b32 v{vOut}, 0
    """)
    for q in range(1, 8): p(f"v_add_u32 v{GA+q}, {q*28672}, v{GA}")
    guld = "\n".join(f"global_load_dwordx2 v[{GR+2*q}:{GR+2*q+1}], v{GA+q}, s[18:19] sc1" for q in range(8))
    p(guld)
    for i in range(7):
        p(f"global_load_dwordx4 v[{WD+4*i}:{WD+4*i+3}], v{vT2}, s[16:17]")
        if i < 6: p(f"v_add_u32 v{vT2}, 0x4000, v{vT2}")
    arrive("M_ARR1", 15)
    p(f"STAMPX1\ns_mov_b32 s73, {SPIN_MAX}")
    p.label("M_POLL2")
    p("s_waitcnt vmcnt(0)")
    for q in range(8): p(f"v_xor_b32 v{GR+2*q+1}, s{sNON}, v{GR+2*q+1}")
    p(f"""
    v_or3_b32 v{GR+1}, v{GR+1}, v{GR+3}, v{GR+5}
    v_or3_b32 v{GR+7}, v{GR+7}, v{GR+9}, v{GR+11}
    v_or3_b32 v{GR+1}, v{GR+1}, v{GR+13}, v{GR+15}
    v_or_b32 v{GR+1}, v{GR+1}, v{GR+7}
    v_cmp_ne_u32 vcc, 0, v{GR+1}
    s_cbranch_vccz M_POLL2_OK
    s_sleep 10
    {guld}
    s_sub_u32 s73, s73, 1
    s_cmp_lg_u32 s73, 0
    s_cbranch_scc1 M_POLL2
    s_waitcnt vmcnt(0)
    """)
    p.label("M_POLL2_OK")
    p(f"v_mov_b32 v{GR+1}, v{GR+2}")
    for q in range(1, 4):
        p(f"v_add_f32 v{GR}, v{GR}, v{GR+4*q}\nv_add_f32 v{GR+1}, v{GR+1}, v{GR+4*q+2}")
    rbf(p, GR); rbf(p, GR + 1)
    silu(p, GR, GR, GR + 2)
    rbf(p, GR)
    p(f"v_mul_f32 v{GR}, v{GR}, v{GR+1}")
    rbf(p, GR)
    p(f"""
    s_lshl_b32 s{sT0}, s{sKQ}, 8
    s_add_u32 s{sT0}, s{sT0}, {L_H3}
    v_lshlrev_b32 v{vT0}, 2, v1
    v_add_u32 v{vT0}, s{sT0}, v{vT0}
    ds_write_b32 v{vT0}, v{GR}
    v_lshrrev_b32 v{vT1}, 3, v1
    v_lshlrev_b32 v{vT1}, 2, v{vT1}
    v_add_u32 v{vT1}, s{sT0}, v{vT1}
    s_waitcnt lgkmcnt(0)
    """)
    for i in range(7): p(f"ds_read_b32 v{GR+i}, v{vT1} offset:{i*32}")
    p("s_waitcnt lgkmcnt(0)")
    for i in range(7):
        for j in range(4):
            w = WD + 4 * i + j
            p(f"v_lshlrev_b32 v{T}, 16, v{w}\nv_and_b32 v{T+1}, 0xffff0000, v{w}")
            if i == 0: p(f"v_mul_f32 v{AC+2*j}, v{T}, v{GR}\nv_mul_f32 v{AC+2*j+1}, v{T+1}, v{GR}")
            else: p(f"v_fmac_f32 v{AC+2*j}, v{T}, v{GR+i}\nv_fmac_f32 v{AC+2*j+1}, v{T+1}, v{GR+i}")
    for c in range(8): p(f"v_add_f32_dpp v{AC+c}, v{AC+c}, v{AC+c} row_ror:8 row_mask:0xf bank_mask:0xf")
    for sw in ("v_permlane16_swap_b32", "v_permlane32_swap_b32"):
        for c in range(8): p(f"v_mov_b32 v{SW+c}, v{AC+c}")
        for c in range(8): p(f"{sw} v{AC+c}, v{SW+c}")
        for c in range(8): p(f"v_add_f32 v{AC+c}, v{AC+c}, v{SW+c}")
    p(f"""
    v_and_b32 v{vT0}, 7, v1
    v_lshlrev_b32 v{vT0}, 5, v{vT0}
    s_add_u32 s{sT0}, s{sT0}, 1024
    v_add_u32 v{vT0}, s{sT0}, v{vT0}
    ds_write_b128 v{vT0}, v[{AC}:{AC+3}]
    ds_write_b128 v{vT0}, v[{AC+4}:{AC+7}] offset:16
    v_mov_b32 v{vT0}, {CNT_B}
    v_mov_b32 v{vT1}, 1
    s_waitcnt lgkmcnt(0)
    s_mov_b64 exec, 1
    ds_add_rtn_u32 v{vT2}, v{vT0}, v{vT1}
    s_mov_b64 exec, -1
    s_waitcnt lgkmcnt(0)
    v_readfirstlane_b32 s{sT0}, v{vT2}
    s_cmp_lg_u32 s{sT0}, 3
    s_cbranch_scc1 M_JOIN0
    v_lshlrev_b32 v{vT0}, 2, v1
    v_add_u32 v{vT1}, {L_H3 + 1024}, v{vT0}
    ds_read_b32 v{GR}, v{vT1}
    ds_read_b32 v{GR+1}, v{vT1} offset:256
    ds_read_b32 v{GR+2}, v{vT1} offset:512
    ds_read_b32 v{GR+3}, v{vT1} offset:768
    s_lshl_b32 s{sT0}, s{sKG}, 13
    s_lshl_b32 s{sT1}, s{sCG}, 9
    s_add_u32 s{sT0}, s{sT0}, s{sT1}
    s_add_u32 s{sT0}, s{sT0}, {WS_YP}
    v_lshlrev_b32 v{vT0}, 1, v{vT0}
    v_add_u32 v{vT0}, s{sT0}, v{vT0}
    s_waitcnt lgkmcnt(0)
    v_add_f32 v{GR}, v{GR}, v{GR+1}
    v_add_f32 v{GR+2}, v{GR+2}, v{GR+3}
    v_add_f32 v{GR}, v{GR}, v{GR+2}
    v_mov_b32 v{GR+1}, s{sNON}
    global_store_dwordx2 v{vT0}, v[{GR}:{GR+1}], s[18:19] sc1
    """)
    p.label("M_JOIN0")
    p(f"""
    ST3_1
    s_lshr_b32 s{sT0}, s{sRT}, 1
    s_lshl_b32 s{sT0}, s{sT0}, 1
    s_add_u32 s{sT0}, s{sT0}, s{sKH}
    s_lshl_b32 s{sT0}, s{sT0}, 2
    s_add_u32 s{sT0}, s{sT0}, s{sKQ}
    s_lshl_b32 s{sT0}, s{sT0}, 9
    s_add_u32 s{sT0}, s{sT0}, {WS_FLG + 32768}
    v_and_b32 v{vFa}, 3, v1
    v_lshlrev_b32 v{vFa}, 7, v{vFa}
    v_add_u32 v{vFa}, s{sT0}, v{vFa}
    global_load_dword v{vFv}, v{vFa}, s[18:19] sc1
    v_lshlrev_b32 v{vAo}, 4, v1
    s_mov_b32 s{sIT}, 0
    v_lshrrev_b32 v{vT0}, 4, v1
    v_and_b32 v{vT1}, 3, v1
    v_bfe_u32 v{vT3}, v1, 2, 2
    v_lshlrev_b32 v{vRd}, 11, v{vT0}
    v_lshl_add_u32 v{vRd}, v{vT3}, 6, v{vRd}
    v_lshl_add_u32 v{vRd}, v{vT1}, 4, v{vRd}
    v_add_u32 v{vRd2}, s{sMb2}, v{vRd}
    v_add_u32 v{vRd}, s{sMb}, v{vRd}
    """)
    for i in range(128): p(f"v_mov_b32 v{AC3+i}, 0")
    p(f"""
    s_mov_b32 s73, {SPIN_MAX}
M_POLL1:
    s_waitcnt vmcnt(0)
    v_cmp_ne_u32 vcc, s{sNON}, v{vFv}
    s_cbranch_vccz M_POLL1_OK
    s_sleep 2
    global_load_dword v{vFv}, v{vFa}, s[18:19] sc1
    s_sub_u32 s73, s73, 1
    s_cmp_lg_u32 s73, 0
    s_cbranch_scc1 M_POLL1
M_POLL1_OK:
    ST3_2
    """)
    for sl in range(3):
        for i in range(4): p(oload(sl, i))
    p("ST3_3\ns_barrier\nST3_4\ns_waitcnt vmcnt(8)\nST3_5")
    ST(False)
    lq = Q("lgkmcnt", 15)
    if stamp: p("s_waitcnt lgkmcnt(0)")
    def wread(slot, f):
        u, e = f >> 1, f & 1
        r = WF + (f & 3) * 4
        for t in range(2):
            p(f"ds_read_b64_tr_b16 v[{r+2*t}:{r+2*t+1}], v{vRd2 if slot == 3 else vRd} offset:{slot*8192 + t*1024 + u*256 + e*8}")
            lq.issue(("W", f & 3, t))
    LAW = 3
    for f in range(LAW): wread(0, f)
    st0 = list(lq.q)
    p(".p2align 6")
    p.label("M_P3")
    for st in range(4):
        n = (st + 3) & 3
        L = [wdma(n, i, vW) for i in range(4)] + [oload(n, i) for i in range(4)]
        for f in range(8):
            fn = f + LAW; ns = st
            if fn >= 8: fn -= 8; ns = (st + 1) & 3
            lq.wait(p, ("W", f & 3, 1))
            for i in range(4):
                d = AC3 + (i * 8 + f) * 4; a = WF + (f & 3) * 4; b = OR + st * 16 + i * 4
                p(f"v_mfma_f32_16x16x32_bf16 v[{d}:{d+3}], v[{a}:{a+3}], v[{b}:{b+3}], v[{d}:{d+3}]")
                if i == 0: wread(ns, fn)
                if i == 2: p(L[f])
        if st == 3: p(f"s_add_u32 s{sIT}, s{sIT}, 1\ns_cmp_lt_u32 s{sIT}, 4")
        p("s_waitcnt vmcnt(12)\ns_barrier")
    assert lq.q == st0
    p(f"""
    s_cbranch_scc1 M_P3
    s_waitcnt vmcnt(0) lgkmcnt(0)
    s_lshl_b32 s{sT0}, s{sKQ}, 15
    v_add_u32 v{vRd}, s{sT0}, v{vAo}
    s_lshl_b32 s{sT0}, s{sKQ}, 13
    v_add_u32 v{vT0}, s{sT0}, v{vAo}
    v_add_u32 v{vT1}, 0x10000, v{vT0}
    s_barrier
    """)
    ST(False)
    RD = 64
    def red_write():
        for q in range(32): p(f"ds_write_b128 v{vRd}, v[{AC3+4*q}:{AC3+4*q+3}] offset:{q*1024}")
        p("s_waitcnt lgkmcnt(0)")
    def red_read(dst):
        for half in range(2):
            for mw in range(4):
                for ff in range(4):
                    f = half * 4 + ff
                    r = RD + (mw * 4 + ff) * 4
                    p(f"ds_read_b128 v[{r}:{r+3}], v{vT1 if mw >= 2 else vT0} offset:{(mw & 1)*32768 + f*1024}")
            p("s_waitcnt lgkmcnt(8)")
            for c in range(16): p(f"v_add_f32 v{RD+c}, v{RD+c}, v{RD+16+c}")
            p("s_waitcnt lgkmcnt(0)")
            for c in range(16): p(f"v_add_f32 v{RD+32+c}, v{RD+32+c}, v{RD+48+c}")
            for c in range(16): p(f"v_add_f32 v{dst+half*16+c}, v{RD+c}, v{RD+32+c}")
    p(f"""
    s_cmp_eq_u32 s{sMH}, s{sKH}
    s_cbranch_scc1 M_KEEP1
    """)
    red_write()
    p("s_barrier")
    p(f"""
    s_lshl_b32 s{sT0}, s2, 2
    s_add_u32 s{sT0}, s{sT0}, s{sKQ}
    s_lshl_b32 s{sT1}, s{sT0}, 13
    s_add_u32 s{sT1}, s{sT1}, {WS_EX}
    v_add_u32 v{vFa}, s{sT1}, v{vAo}
    v_add_u32 v{vFv}, 4096, v{vFa}
    s_lshl_b32 s{sT0}, s{sT0}, 7
    s_add_u32 s{sT0}, s{sT0}, {WS_FLG2}
    v_mov_b32 v{vT2}, s{sT0}
    v_mov_b32 v{vT3}, s{sNON}
    """)
    red_read(AC3)
    for f in range(8):
        p(f"global_store_dwordx4 v{vFv if f >= 4 else vFa}, v[{AC3+4*f}:{AC3+4*f+3}], s[18:19] offset:{(f&3)*1024} sc1")
    p(f"""
    s_barrier
    s_waitcnt vmcnt(0)
    s_mov_b64 exec, 1
    global_store_dword v{vT2}, v{vT3}, s[18:19] sc1
    s_mov_b64 exec, -1
    """)
    if stamp:
        p("s_memrealtime s[98:99]")
        stamp_out(p, 0x3000000)
    p("s_branch K2_END")
    p.label("M_KEEP1")
    p(f"""
    s_barrier
    s_xor_b32 s{sT0}, s2, 128
    s_lshl_b32 s{sT0}, s{sT0}, 2
    s_add_u32 s{sT0}, s{sT0}, s{sKQ}
    s_lshl_b32 s{sT1}, s{sT0}, 13
    s_add_u32 s{sT1}, s{sT1}, {WS_EX}
    v_add_u32 v{vFa}, s{sT1}, v{vAo}
    v_add_u32 v{vFv}, 4096, v{vFa}
    s_lshl_b32 s{sT0}, s{sT0}, 7
    s_add_u32 s{sT0}, s{sT0}, {WS_FLG2}
    v_mov_b32 v{vT2}, s{sT0}
    s_barrier
    """)
    red_write()
    p("s_barrier")
    p(f"global_load_dword v{vT3}, v{vT2}, s[18:19] sc1")
    red_read(AC3)
    p(f"""
    s_lshl_b32 s{sT0}, s{sRT}, 1
    s_add_u32 s{sT0}, s{sT0}, s{sKH}
    s_lshl_b32 s{sT0}, s{sT0}, 2
    s_add_u32 s{sT0}, s{sT0}, s{sKQ}
    s_lshr_b32 s{sT1}, s{sIDX}, 4
    s_cmp_lg_u32 s{sT0}, s{sT1}
    s_cbranch_scc1 M_H5
    s_mov_b32 s73, {SPIN_MAX}
M_POLL3:
    s_lshl_b32 s{sT0}, s{sCT}, 10
    s_add_u32 s{sT0}, s{sT0}, {WS_YP}
    v_add_u32 v26, s{sT0}, v{vAo}
    """)
    YR = 64
    for q in range(16):
        p(f"global_load_dwordx4 v[{YR+4*q}:{YR+4*q+3}], v26, s[18:19] sc1")
        if q < 15: p(f"v_add_u32 v26, 8192, v26")
    p(f"s_waitcnt vmcnt(0)\nv_mov_b32 v27, 0")
    for q in range(16):
        p(f"v_xor_b32 v{YR+4*q+1}, s{sNON}, v{YR+4*q+1}\nv_xor_b32 v{YR+4*q+3}, s{sNON}, v{YR+4*q+3}")
        p(f"v_or3_b32 v27, v27, v{YR+4*q+1}, v{YR+4*q+3}")
    p(f"""
    v_cmp_ne_u32 vcc, 0, v27
    s_cbranch_vccz M_POLL3_OK
    s_sleep 10
    s_sub_u32 s73, s73, 1
    s_cmp_lg_u32 s73, 0
    s_cbranch_scc1 M_POLL3
M_POLL3_OK:
    s_lshr_b32 s{sT0}, s{sIDX}, 4
    s_lshl_b32 s{sT0}, s{sT0}, 15
    s_lshl_b32 s{sT1}, s{sCT}, 12
    s_add_u32 s{sT0}, s{sT0}, s{sT1}
    s_and_b32 s{sT1}, s{sIDX}, 15
    s_lshl_b32 s{sT1}, s{sT1}, 4
    s_add_u32 s{sT0}, s{sT0}, s{sT1}
    v_lshrrev_b32 v26, 2, v1
    v_lshlrev_b32 v26, 8, v26
    v_and_b32 v27, 3, v1
    v_lshl_add_u32 v26, v27, 2, v26
    v_add_u32 v26, s{sT0}, v26
    global_load_dword v24, v26, s[18:19] sc1
    s_and_b32 s{sT0}, s{sKEY}, 0xffff0000
    s_ashr_i32 s{sT1}, s{sT0}, 31
    s_not_b32 s{sT1}, s{sT1}
    s_or_b32 s{sT1}, s{sT1}, 0x80000000
    s_xor_b32 s{sT0}, s{sT0}, s{sT1}
    s_and_b32 s{sT0}, s{sT0}, 0xffff0000
    v_mov_b32 v25, s{sT0}
    v_mul_f32 v25, 0xbfb8aa3b, v25
    v_exp_f32 v25, v25
    v_add_f32 v25, 1.0, v25
    v_rcp_f32 v25, v25
    """)
    rbf(p, 25)
    p(f"v_mov_b32 v16, v{YR}\nv_mov_b32 v17, v{YR+2}")
    for q in range(1, 16):
        p(f"v_add_f32 v16, v16, v{YR+4*q}\nv_add_f32 v17, v17, v{YR+4*q+2}")
    p("s_waitcnt vmcnt(0)\nv_lshlrev_b32 v18, 16, v24\nv_and_b32 v19, 0xffff0000, v24")
    for c in range(2):
        rbf(p, 16 + c)
        p(f"v_mul_f32 v{16+c}, v{16+c}, v25")
        rbf(p, 16 + c)
        p(f"v_add_f32 v{16+c}, v{16+c}, v{18+c}")
        rbf(p, 16 + c)
        silu(p, 16 + c, 16 + c, 20 + c)
    p(f"""
    v_cvt_pk_bf16_f32 v16, v16, v17
    v_lshlrev_b32 v26, 2, v1
    v_add_u32 v26, {L_H3 + 4096}, v26
    ds_write_b32 v26, v16
    v_lshrrev_b32 v27, 4, v1
    v_lshlrev_b32 v27, 4, v27
    v_add_u32 v27, {L_H3 + 4096}, v27
    v_and_b32 v26, 15, v1
    s_and_b32 s{sT0}, s{sIDX}, 15
    v_cmp_eq_u32 vcc, s{sT0}, v26
    s_waitcnt lgkmcnt(0)
    """)
    for u in range(4): p(f"ds_read_b128 v[{96+4*u}:{99+4*u}], v27 offset:{u*64}")
    p("s_waitcnt lgkmcnt(0)")
    for c in range(16): p(f"v_cndmask_b32 v{GP+c}, v{GP+c}, v{96+c}, vcc")
    p.label("M_H5")
    XU = 160; GU_ = 192; PR = 64
    for j in range(16):
        p(f"v_lshlrev_b32 v{XU+2*j}, 16, v{XP+j}\nv_and_b32 v{XU+2*j+1}, 0xffff0000, v{XP+j}")
        p(f"v_lshlrev_b32 v{GU_+2*j}, 16, v{GP+j}\nv_and_b32 v{GU_+2*j+1}, 0xffff0000, v{GP+j}")
    p(f"""
    s_mov_b32 s73, {SPIN_MAX}
M_POLL4:
    s_waitcnt vmcnt(0)
    v_cmp_ne_u32 vcc, s{sNON}, v{vT3}
    s_cbranch_vccz M_POLL4_OK
    s_sleep 1
    global_load_dword v{vT3}, v{vT2}, s[18:19] sc1
    s_sub_u32 s73, s73, 1
    s_cmp_lg_u32 s73, 0
    s_cbranch_scc1 M_POLL4
M_POLL4_OK:
    """)
    for f in range(8):
        p(f"global_load_dwordx4 v[{PR+4*f}:{PR+4*f+3}], v{vFv if f >= 4 else vFa}, s[18:19] offset:{(f&3)*1024} sc1")
    for u in range(4):
        p(f"s_waitcnt vmcnt({6 - 2*u + u})")
        for c in range(8): p(f"v_add_f32 v{AC3+8*u+c}, v{AC3+8*u+c}, v{PR+8*u+c}")
        for c in range(8): p(f"v_fmac_f32 v{XU+8*u+c}, v{AC3+8*u+c}, v{GU_+8*u+c}")
        o = 16 + u * 4
        for j in range(4): p(f"v_cvt_pk_bf16_f32 v{o+j}, v{XU+u*8+2*j}, v{XU+u*8+2*j+1}")
        p(f"global_store_dwordx4 v{vOut}, v[{o}:{o+3}], s[78:79] offset:{u*64}")
    if stamp:
        p("s_waitcnt vmcnt(0)\ns_memrealtime s[98:99]")
        stamp_out(p, 0x3000000)

def stamp_out(p, base):
    p(f"""
    s_waitcnt lgkmcnt(0)
    s_lshl_b32 s{sT0}, s2, 3
    s_add_u32 s{sT0}, s{sT0}, s{sW}
    s_lshl_b32 s{sT0}, s{sT0}, 6
    s_add_u32 s{sT0}, s{sT0}, {base}
    v_mov_b32 v{vT0}, s{sT0}
    """)
    for i in range(10):
        p(f"v_mov_b32 v{vT1}, s{80+2*i}\nglobal_store_dword v{vT0}, v{vT1}, s[18:19] offset:{4*i}")

def gen_mega(ffn=True, slow=True, stamp=False, dbg=()):
    p = Prog()
    stamps = []
    mode0 = 'st0' in dbg or 'st1' in dbg
    MODE0[0] = mode0
    MODE3[0] = 'st3' in dbg
    def ST0():
        if stamp and mode0 and 'st1' not in dbg:
            i = len(stamps); stamps.append(i)
            p(f"s_memtime s[{80+2*i}:{81+2*i}]")
    global _ST0
    _ST0 = ST0
    def ST(wait=True):
        if stamp and mode0 and len(stamps) > 0:
            if wait: p("s_waitcnt lgkmcnt(0)")
            return
        if stamp:
            i = len(stamps); stamps.append(i)
            p(f"s_memtime s[{80+2*i}:{81+2*i}]")
            if i == 0: p("s_memrealtime s[96:97]")
            if wait: p("s_waitcnt lgkmcnt(0)")
    name = KNAME
    kernel_header(p, name)
    p(f"""
    s_cmp_ge_u32 s2, 256
    s_cbranch_scc1 K2_END
    s_load_dwordx2 s[74:75], s[0:1], 0
    s_load_dwordx2 s[76:77], s[0:1], 48
    s_load_dwordx4 s[8:11], s[0:1], 24
    s_load_dwordx2 s[18:19], s[0:1], 96
    s_load_dwordx4 s[4:7], s[0:1], 8
    s_load_dwordx4 s[12:15], s[0:1], 56
    s_load_dwordx2 s[16:17], s[0:1], 72
    s_load_dwordx2 s[78:79], s[0:1], 80
    s_load_dwordx2 s[66:67], s[0:1], 88
    s_getpc_b64 s[{sPC}:{sPC+1}]
    v_lshrrev_b32 v{vT2}, 6, v0
    v_and_b32 v1, 63, v0
    v_readfirstlane_b32 s{sW}, v{vT2}
    s_and_b32 s{sT0}, s2, 7
    s_lshr_b32 s{sT1}, s2, 3
    s_lshr_b32 s{sG}, s{sT0}, 1
    s_and_b32 s{sT0}, s{sT0}, 1
    s_lshl_b32 s{sT0}, s{sT0}, 2
    s_lshr_b32 s{sT2}, s{sT1}, 3
    s_add_u32 s{sRB}, s{sT0}, s{sT2}
    s_and_b32 s{sT1}, s{sT1}, 7
    s_lshl_b32 s{sHEAD}, s{sG}, 3
    s_add_u32 s{sHEAD}, s{sHEAD}, s{sT1}
    s_lshl_b32 s{sFL}, s{sRB}, 5
    s_add_u32 s{sFL}, s{sFL}, s{sHEAD}
    """)
    ST(False)
    p(f"""
    v_lshlrev_b32 v{E+1}, 7, v0
    v_min_u32 v{E+1}, CODESIZE, v{E+1}
    global_load_dword v{E}, v{E+1}, s[{sPC}:{sPC+1}]
    v_lshrrev_b32 v{vT0}, 4, v1
    v_and_b32 v{vT1}, 3, v1
    v_lshlrev_b32 v{vT1}, 4, v{vT1}
    v_lshl_add_u32 v{vT1}, v{vT0}, 6, v{vT1}
    v_bfe_u32 v{vT3}, v1, 2, 2
    v_lshl_add_u32 v{vDq}, v{vT3}, 13, v{vT1}
    v_and_b32 v{vDq2}, 1, v{vT2}
    v_lshlrev_b32 v{vDq2}, 5, v{vDq2}
    v_xor_b32 v{vDq}, v{vDq}, v{vDq2}
    v_add_u32 v{vDq2}, {32768-1024}, v{vDq}
    v_lshrrev_b32 v{vXB1}, 3, v1
    v_and_b32 v{vXD}, 7, v1
    v_xor_b32 v{vXD}, v{vXD}, v{vT0}
    v_lshlrev_b32 v{vXD}, 4, v{vXD}
    v_lshl_add_u32 v{vXD}, v{vXB1}, 11, v{vXD}
    v_xor_b32 v{vXD+1}, 64, v{vXD}
    v_add_u32 v{vXD+1}, {16384-1024}, v{vXD+1}
    v_add_u32 v{vXD+2}, {32768-2048}, v{vXD}
    v_add_u32 v{vXD+3}, {32768-2048}, v{vXD+1}
    s_lshl_b32 s{sXM}, s{sW}, 12
    s_add_u32 s{sXM}, s{sXM}, {L_X}
    s_lshl_b32 s{sWq}, s{sW}, 16
    s_lshl_b32 s{sM}, s{sW}, 11
    s_mov_b32 s{sB}, 0
    s_lshl_b32 s{sT0}, s{sHEAD}, 8
    s_lshl_b32 s{sT1}, s{sRB}, 3
    s_add_u32 s{sT1}, s{sT1}, s{sW}
    s_lshl_b32 s{sT1}, s{sT1}, 16
    s_mov_b32 s{SRD_WQ+3}, 0x20000
    s_sub_u32 s{SRD_WQ+2}, 0x800000, s{sT0}
    s_mov_b32 s{SRD_XN+2}, 0x10000
    s_mov_b32 s{SRD_XN+3}, 0x20000
    s_memrealtime s[{sT2}:{sT3}]
    s_waitcnt lgkmcnt(0)
    s_add_u32 s{SRD_WQ}, s8, s{sT0}
    s_addc_u32 s{SRD_WQ+1}, s9, 0
    s_add_u32 s{SRD_XN}, s74, s{sT1}
    s_addc_u32 s{SRD_XN+1}, s75, 0
    """)
    def dma_wq(slot, e):
        if e == 0:
            return f"""s_add_u32 m0, s{sM}, {slot*16384}
    s_nop 0
    buffer_load_dwordx4 v{vDq}, s[{SRD_WQ}:{SRD_WQ+3}], s{sWq} offen lds"""
        return f"""s_add_u32 m0, s{sM}, {slot*16384}
    s_nop 0
    buffer_load_dwordx4 v{vDq2}, s[{SRD_WQ}:{SRD_WQ+3}], s{sWq} offen offset:1024 lds
    s_add_u32 s{sWq}, s{sWq}, 524288"""
    def load_b(buf, k):
        t = ""
        if k == 0: t = f"s_add_u32 m0, s{sXM}, {(buf & 1)*32768}\ns_nop 0\n"
        t += f"buffer_load_dwordx4 v{vXD+k}, s[{SRD_XN}:{SRD_XN+3}], s{sB} offen offset:{k*1024} lds"
        if k == 3: t += f"\ns_add_u32 s{sB}, s{sB}, 128"
        return t
    lq = Q("lgkmcnt", 15); vq = Q("vmcnt", 63)
    vq.issue(("CP", 0))
    def J(tag, code): p(code); vq.issue(tag)
    J(("W", 0, 0), dma_wq(0, 0)); J(("W", 0, 1), dma_wq(0, 1))
    for kk in range(4): J(("X", 0, kk), load_b(0, kk))
    J(("W", 1, 0), dma_wq(1, 0)); J(("W", 1, 1), dma_wq(1, 1))
    ST0()
    p("s_barrier")
    for kk in range(4): J(("X", 1, kk), load_b(1, kk))
    J(("W", 2, 0), dma_wq(2, 0)); J(("W", 2, 1), dma_wq(2, 1))
    p(f"""
    s_or_b32 s{sT3}, s2, s{sW}
    s_cmp_lg_u32 s{sT3}, 0
    s_cbranch_scc1 M_NONZ
    s_or_b32 s{sT2}, s{sT2}, 1
    v_mov_b32 v{E+2}, 0
    v_mov_b32 v{E+3}, s{sT2}
    s_mov_b64 exec, 1
    global_store_dword v{E+2}, v{E+3}, s[66:67] sc1
    s_mov_b64 exec, -1
M_NONZ:
    v_lshlrev_b32 v{E+2}, 4, v1
    v_lshl_add_u32 v{E+3}, v{vT2}, 11, v{E+2}
    s_lshl_b32 s{sT2}, s{sFL}, 14
    v_add_u32 v{E+3}, s{sT2}, v{E+3}
    v_bfe_u32 v{E+1}, v0, 4, 3
    v_lshlrev_b32 v{E+1}, 13, v{E+1}
    v_lshrrev_b32 v{vNON}, 7, v0
    v_lshl_add_u32 v{E+1}, v{vNON}, 19, v{E+1}
    v_and_b32 v{vNON}, 15, v0
    v_lshl_add_u32 v{E+1}, v{vNON}, 4, v{E+1}
    s_lshl_b32 s{sT2}, s{sRB}, 16
    v_add_u32 v{vCSA}, s{sT2}, v{E+1}
    v_mov_b32 v{vLXA}, v{E+3}
    """)
    LXj = lambda n: (("LX", n), f"global_load_dwordx4 v[{LN_X+4*n}:{LN_X+4*n+3}], v{vLXA}, s[74:75] offset:{n*1024}")
    CSj = lambda n: (("CS", n), f"s_mov_b32 s{sT3}, {n*0x200000}\nbuffer_load_dwordx4 v[{CSR+4*n}:{CSR+4*n+3}], v{vCSA}, s[{SRD_WQ}:{SRD_WQ+3}], s{sT3} offen")
    WRj = lambda n: (("LX", 2 + n), f"v_lshlrev_b32 v{E+2}, 4, v1\nglobal_load_dwordx4 v[{LN_W+4*n}:{LN_W+4*n+3}], v{E+2}, s[76:77] offset:{n*1024}")
    J(*LXj(0)); J(*CSj(1))
    ST0()
    p(f"""
    v_bfe_u32 v{vXB1}, v1, 1, 3
    v_xor_b32 v{vXB1}, v{vXB1}, v{vT0}
    v_lshlrev_b32 v{vXB1}, 4, v{vXB1}
    v_and_b32 v{vXB0}, 15, v1
    v_lshl_add_u32 v{vXB0}, v{vXB0}, 7, v{vXB1}
    v_add_u32 v{vXB0}, s{sXM}, v{vXB0}
    v_xor_b32 v{vXB1}, 64, v{vXB0}
    v_lshl_add_u32 v{vDv}, v{vT3}, 8, v{vT1}
    v_mul_u32_u24 v{vDf}, {8*7168}, v{vT0}
    v_and_b32 v{vT1}, 15, v1
    v_lshl_add_u32 v{vDf}, v{vT1}, 4, v{vDf}
    v_and_b32 v{vT0}, 3, v1
    v_lshrrev_b32 v{vT1}, 2, v1
    v_lshlrev_b32 v{vT1}, 4, v{vT1}
    v_lshl_add_u32 v{vDk}, v{vT0}, 8, v{vT1}
    v_lshrrev_b32 v{vT1}, 4, v1
    v_lshlrev_b32 v{vA0}, 11, v{vT1}
    v_lshl_add_u32 v{vA0}, v{vT3}, 6, v{vA0}
    v_lshl_add_u32 v{vA0}, v{vT0}, 3, v{vA0}
    v_and_b32 v{vT1}, 1, v{vT1}
    v_lshl_add_u32 v{vA0}, v{vT1}, 5, v{vA0}
    v_xor_b32 v{vA1}, 32, v{vA0}
    v_bfe_u32 v{vT0}, v1, 1, 1
    v_and_b32 v{vT2}, 1, v1
    v_lshl_add_u32 v{vT0}, v{vT2}, 1, v{vT0}
    v_lshl_add_u32 v{vT0}, v{vT1}, 2, v{vT0}
    v_lshlrev_b32 v{vT0}, 3, v{vT0}
    v_lshl_add_u32 v{vT0}, v{vT3}, 6, v{vT0}
    v_lshrrev_b32 v{vT1}, 5, v1
    v_lshl_add_u32 v{vVa}, v{vT1}, 10, v{vT0}
    v_add_u32 v{vVb}, {L_X}, v{vVa}
    v_bfe_u32 v{vT0}, v1, 2, 3
    v_mul_u32_u24 v{vT0}, 1088, v{vT0}
    v_lshl_add_u32 v{vT0}, v{vT1}, 6, v{vT0}
    v_and_b32 v{vKb}, 3, v1
    v_lshl_add_u32 v{vKb}, v{vKb}, 4, v{vT0}
    v_add_u32 v{vKh}, {L_HI}, v{vKb}
    v_add_u32 v{vKb}, {L_X}, v{vKb}
    v_bfe_u32 v{vT0}, v1, 4, 1
    v_lshlrev_b32 v{vT0}, 10, v{vT0}
    v_lshl_add_u32 v{vT0}, v{vT1}, 8, v{vT0}
    v_and_b32 v{vO}, 15, v1
    v_lshl_add_u32 v{vO}, v{vO}, 4, v{vT0}
    s_lshl_b32 s{sT0}, s{sG}, 19
    s_add_u32 s{sT0}, s{sT0}, 393216
    s_add_u32 s{SRD_K}, s4, s{sT0}
    s_addc_u32 s{SRD_K+1}, s5, 0
    s_mov_b32 s{SRD_K+2}, 0x20000
    s_mov_b32 s{SRD_K+3}, 0x20000
    s_add_u32 s{SRD_V}, s6, s{sT0}
    s_addc_u32 s{SRD_V+1}, s7, 0
    s_mov_b32 s{SRD_V+2}, 0x20000
    s_mov_b32 s{SRD_V+3}, 0x20000
    s_add_u32 s{SRD_OT}, s18, {WS_OT}
    s_addc_u32 s{SRD_OT+1}, s19, 0
    s_mov_b32 s{SRD_OT+2}, 0x1000000
    s_mov_b32 s{SRD_OT+3}, 0x20000
    s_mul_i32 s{sKw}, s{sW}, 1088
    s_lshl_b32 s{sVw}, s{sW}, 10
    s_mov_b32 s{sKsrc}, s{sVw}
    s_mov_b32 s{sVsrc}, s{sVw}
    s_mov_b32 s{sN}, 0
    s_mov_b32 s{sPL}, 0x05040100
    s_mov_b32 s{sPH}, 0x07060302
    s_lshr_b32 s{sT0}, s2, 2
    s_and_b32 s{sT1}, s2, 3
    s_cmp_ge_u32 s{sT0}, 28
    s_cselect_b32 s{SRD_F}, s14, s12
    s_cselect_b32 s{SRD_F+1}, s15, s13
    s_cselect_b32 s{sT2}, 28, 0
    s_sub_u32 s{sT2}, s{sT0}, s{sT2}
    s_lshl_b32 s{sT2}, s{sT2}, 8
    s_mul_i32 s{sT3}, s{sT1}, {256*7168}
    s_add_u32 s{sT2}, s{sT2}, s{sT3}
    s_add_u32 s{SRD_F}, s{SRD_F}, s{sT2}
    s_addc_u32 s{SRD_F+1}, s{SRD_F+1}, 0
    s_cmp_lt_u32 s2, 224
    s_cselect_b32 s{SRD_F+2}, {255*7168+256}, 0
    s_mov_b32 s{SRD_F+3}, 0x20000
    s_mul_i32 s{sFsrc}, s{sW}, {32*7168}
    s_lshl_b32 s{sOT}, s{sHEAD}, 19
    s_lshl_b32 s{sT1}, s{sRB}, 14
    s_add_u32 s{sOT}, s{sOT}, s{sT1}
    s_lshl_b32 s{sT1}, s{sW}, 11
    s_add_u32 s{sOT}, s{sOT}, s{sT1}
    """)
    ST0()
    vq.wait(p, ("W", 1, 1))
    ST0()
    p("s_barrier")
    ST0()
    if 'st1' in dbg: p("s_memtime s[80:81]")
    ST()
    def a_read(slot, T, u, t):
        r = AF + (T & 3) * 8 + u * 4 + t * 2
        p(f"ds_read_b64_tr_b16 v[{r}:{r+1}], v{vA1 if T & 1 else vA0} offset:{slot*16384 + u*8192 + t*1024 + (T>>1)*256}")
        lq.issue(("A", T & 3, u, t))
    def job_k(t):
        return (("K", t), f"""s_add_u32 m0, s{sKw}, {Kabs(t)}
    s_nop 0
    buffer_load_dwordx4 v{vDk}, s[{SRD_K}:{SRD_K+3}], s{sKsrc} offen lds
    s_add_u32 s{sKsrc}, s{sKsrc}, 8192""")
    def job_v(t):
        return (("V", t), f"""s_add_u32 m0, s{sVw}, {Vabs(t)}
    s_nop 0
    buffer_load_dwordx4 v{vDv}, s[{SRD_V}:{SRD_V+3}], s{sVsrc} offen lds
    s_add_u32 s{sVsrc}, s{sVsrc}, 8192""")
    def job_f(i):
        return (("F", i), f"""buffer_load_dwordx4 v[{FR+4*i}:{FR+4*i+3}], v{vDf}, s[{SRD_F}:{SRD_F+3}], s{sFsrc} offen
    s_add_u32 s{sFsrc}, s{sFsrc}, 7168""")
    def run(job):
        if not job: return
        if isinstance(job, str): p(job); return
        if callable(job): job(); return
        tag, code = job
        p(code); vq.issue(tag)
    def k_read(t, j):
        if 'nok' in dbg: return
        r = KF + (j % D) * 4
        ka = Kabs(t); kb, ko = (vKh, ka - L_HI) if ka >= L_HI else (vKb, ka - L_X)
        p(f"ds_read_b128 v[{r}:{r+3}], v{kb} offset:{ko + j*128}")
        lq.issue(("K", j % D))
    def v_read(t, i):
        if 'nov' in dbg: return
        ks, dt = i >> 2, i & 3
        r = VF + (i % D) * 4
        o = Vabs(t); va = vVa
        if o >= L_X: o -= L_X; va = vVb
        p(f"ds_read_b64_tr_b16 v[{r}:{r+1}], v{va} offset:{o + ks*4096 + dt*256}")
        lq.issue(("Va", i % D))
        p(f"ds_read_b64_tr_b16 v[{r+2}:{r+3}], v{va} offset:{o + ks*4096 + 2048 + dt*256}")
        lq.issue(("V", i % D))
    LA = 2
    def b_read(buf, k):
        ct, u = k >> 1, k & 1
        r = BRr(buf, k)
        p(f"ds_read_b128 v[{r}:{r+3}], v{vXB1 if u else vXB0} offset:{(buf & 1)*32768 + ct*2048}")
        lq.issue(("B", buf & 1, k))
    for T in range(LA):
        for u in range(2):
            for t in range(2): a_read(0, T, u, t)
        b_read(0, 2 * T); b_read(0, 2 * T + 1)
    fill = []
    FILLRATE = 2
    LNSTART = 3
    for d_ in dbg:
        if d_.startswith('fr'): FILLRATE = float(d_[2:])
    fillacc = [0.0]
    def stage(slot, vm, last=False, xw="s_waitcnt vmcnt(8)", first=False, vm2=()):
        for T in range(8):
            a = AF + (T & 3) * 8
            Tn = T + LA; ns = slot
            if Tn >= 8: Tn -= 8; ns = (slot + 1) & 3
            rd = not (last and T + LA >= 8)
            k = 0
            for ct in range(2):
                for u in range(2):
                    d = QA + (T * 2 + ct) * 4; b = BRr(slot, ct * 2 + u)
                    lq.wait(p, ("A", T & 3, u, 1), ("B", slot & 1, ct * 2 + u))
                    cc = "0" if (first and u == 0) else f"v[{d}:{d+3}]"
                    p(f"v_mfma_f32_16x16x32_bf16 v[{d}:{d+3}], v[{a+4*u}:{a+4*u+3}], v[{b}:{b+3}], {cc}")
                    if rd: a_read(ns, Tn, k >> 1, k & 1)
                    fillacc[0] += FILLRATE
                    while fillacc[0] >= 1.0:
                        fillacc[0] -= 1.0
                        if fill: run(fill.pop(0))
                    if k == 1 and T < len(vm2): run(vm2[T])
                    k += 1
            if T < len(vm): run(vm[T])
            if not last:
                if T == 6:
                    run(xw); b_read(slot + 1, 0); b_read(slot + 1, 1)
                if T == 7:
                    b_read(slot + 1, 2); b_read(slot + 1, 3)
    def std_vm(slot):
        n = (slot + 3) & 3
        return [load_b(slot, 0), load_b(slot, 1), load_b(slot, 2), load_b(slot, 3), dma_wq(n, 0), dma_wq(n, 1)]
    xwait = lambda tag: (lambda: vq.wait(p, tag))
    def tagged(i):
        sv = std_vm(i & 3)
        return [(("X", i + 2, kk), sv[kk]) for kk in range(4)] + [(("W", i + 3, 0), sv[4]), (("W", i + 3, 1), sv[5])]
    kvpf = (("KP", 0), f"""s_lshr_b32 s{sT2}, s{sFL}, 6
    s_lshl_b32 s{sT2}, s{sT2}, 19
    s_and_b32 s{sT3}, s{sFL}, 63
    s_lshl_b32 s{sT3}, s{sT3}, 11
    s_add_u32 s{sT2}, s{sT2}, s{sT3}
    s_add_u32 s{sT2}, s{sT2}, 393216
    v_lshlrev_b32 v{E+3}, 2, v0
    v_add_u32 v{E+3}, s{sT2}, v{E+3}
    global_load_dword v{E}, v{E+3}, s[4:5]""")
    kvpf2 = (("KP", 1), f"global_load_dword v{E}, v{E+3}, s[6:7]")
    nonld = (("NN", 0), f"v_mov_b32 v{E+2}, 0\nglobal_load_dword v{vNON}, v{E+2}, s[66:67] sc1")
    def nonchk():
        vq.wait(p, ("NN", 0))
        p(f"""
    v_readfirstlane_b32 s{sNON}, v{vNON}
    s_cmp_lg_u32 s{sNON}, 0
    s_cbranch_scc1 M_NSPIN_OK
    v_mov_b32 v{E+2}, 0
    """)
        get_nonce(p, "M_NSPIN", E + 2, vNON)
    partA, partB = ln_segments(lq, vq, p)
    if 'noln' in dbg:
        keep = lambda x: callable(x) or not ("_f32" in x or "0xffff0000" in x or ", 16, v" in x or "swap" in x)
        partA = [x for x in partA if keep(x)]; partB = [x for x in partB if keep(x)]
    seg1, seg2 = pub_segments(lq, vq, p)
    extra1 = {0: [CSj(0)], 1: [LXj(1), CSj(2)], 2: [CSj(3), nonld], 3: [WRj(0), WRj(1)], 4: [nonchk, kvpf], 5: [kvpf2]}
    state = "A"
    for i in range(12):
        ex = list(extra1.get(i, []))
        if i == 0: fill.extend(partA[:21])
        if i == LNSTART: fill.extend(partA[21:])
        stage(i & 3, tagged(i) + ex, xw=xwait(("X", i + 1, 3)), first=(i == 0))
        vq.wait(p, ("W", i + 2, 1))
        if state == "A" and not fill and i > LNSTART:
            lq.wait(p, ("LW", 5)); state = "B"; fill.extend(seg1 + partB); print("LN A done at stage", i)
        elif state == "B" and not fill:
            lq.wait(p, ("LW", 2)); state = "C"; fill.extend(seg2); print("LN B done at stage", i)
        elif state == "C" and not fill:
            state = "done"
        p("s_barrier")
        if 'st1' in dbg and i in (0, 1, 2, 4, 6, 8, 11):
            n_ = (0, 1, 2, 4, 6, 8, 11).index(i) + 1
            p(f"s_memtime s[{80+2*n_}:{81+2*n_}]\ns_waitcnt lgkmcnt(0)")
    assert state == "done" and not fill, (state, len(fill))
    sv = std_vm(0)
    stcode = f"""s_lshl_b32 s{sT0}, s{sRB}, 3
    s_add_u32 s{sT0}, s{sT0}, s{sW}
    s_lshl_b32 s{sT0}, s{sT0}, 8
    s_add_u32 s{sT0}, s{sT0}, {WS_ST}
    v_and_b32 v{vT0}, 15, v1
    v_lshlrev_b32 v{vT0}, 3, v{vT0}
    v_add_u32 v{vT0}, s{sT0}, v{vT0}
    global_load_dwordx2 v[250:251], v{vT0}, s[18:19] sc1
    global_load_dwordx2 v[252:253], v{vT0}, s[18:19] offset:128 sc1
    s_lshl_b32 s{sT0}, s{sHEAD}, 13
    s_lshl_b32 s{sT1}, s{sW}, 7
    s_add_u32 s{sT0}, s{sT0}, s{sT1}
    s_add_u32 s{sT0}, s{sT0}, {WS_CS}
    v_lshrrev_b32 v{vT1}, 3, v1
    v_lshlrev_b32 v{vT1}, 10, v{vT1}
    v_and_b32 v{vT2}, 7, v1
    v_lshl_add_u32 v{vT1}, v{vT2}, 4, v{vT1}
    v_add_u32 v{vT1}, s{sT0}, v{vT1}
    global_load_dwordx4 v[{E}:{E+3}], v{vT1}, s[18:19] sc1"""
    stchk = f"""v_xor_b32 v{vT0}, s{sNON}, v251
    v_xor_b32 v{vT1}, s{sNON}, v253
    v_xor_b32 v{vT2}, s{sNON}, v{E+1}
    v_xor_b32 v{vT3}, s{sNON}, v{E+3}
    v_or3_b32 v{vT0}, v{vT0}, v{vT1}, v{vT2}
    v_or_b32 v{vT0}, v{vT0}, v{vT3}
    v_cmp_ne_u32 vcc, 0, v{vT0}"""
    def stld():
        p(stcode); vq.issue(("ST", 0)); vq.issue(("ST", 1)); vq.issue(("ST", 2))
    def stuse():
        vq.wait(p, ("ST", 2))
        p(stchk)
        p(f"s_mov_b32 s73, {SPIN_MAX}\ns_cbranch_vccnz M_SSPIN")
        p.label("M_SSPIN_RET")
        for c in (E, E + 2): p(f"v_add_f32_dpp v{c}, v{c}, v{c} row_ror:8 row_mask:0xf bank_mask:0xf")
        for sw in ("v_permlane16_swap_b32", "v_permlane32_swap_b32"):
            p(f"v_mov_b32 v{E+1}, v{E}\nv_mov_b32 v{E+3}, v{E+2}")
            p(f"{sw} v{E}, v{E+1}\n{sw} v{E+2}, v{E+3}")
            p(f"v_add_f32 v{E}, v{E}, v{E+1}\nv_add_f32 v{E+2}, v{E+2}, v{E+3}")
        p(f"""
    v_mov_b32 v{E+1}, v{E+2}
    v_and_b32 v{vT0}, 7, v1
    v_lshlrev_b32 v{vT0}, 3, v{vT0}
    s_lshl_b32 s{sT0}, s{sW}, 6
    s_add_u32 s{sT0}, s{sT0}, {L_FP}
    v_add_u32 v{vT0}, s{sT0}, v{vT0}
    ds_write_b64 v{vT0}, v[{E}:{E+1}]
    v_and_b32 v251, 0xffff0000, v250
    v_and_b32 v253, 0xffff0000, v252
    v_rcp_f32 v251, v251
    v_rcp_f32 v253, v253
    v_lshlrev_b32 v250, 16, v250
    v_lshlrev_b32 v252, 16, v252
    v_mul_f32 v251, {fbits(QSCALE)}, v251
    v_mul_f32 v253, {fbits(QSCALE)}, v253
    """)
        lq.issue(("CSW", 0))
    stage(0, tagged(12) + [stld, job_k(0)], xw=xwait(("X", 13, 3)))
    vq.wait(p, ("W", 14, 1)); p("s_barrier")
    stage(1, tagged(13)[:4] + [job_k(1), job_k(2)], xw=xwait(("X", 14, 3)))
    vq.wait(p, ("W", 15, 1)); lq.wait(p, ("B", 0, 3)); p("s_barrier")
    stage(2, [job_k(3), job_v(0), job_v(1), None, stuse], xw=xwait(("X", 15, 3)))
    vq.wait(p, ("K", 1)); lq.wait(p, ("CSW", 0), ("B", 1, 3)); p("s_barrier")
    stage(3, [job_k(4), job_k(5), job_v(2), job_k(6)], last=True)
    ST()
    if stamp: lq.q = []
    CSV = 212
    p(f"""
    v_lshrrev_b32 v{vT0}, 4, v1
    v_lshlrev_b32 v{vT0}, 4, v{vT0}
    v_add_u32 v{vT0}, {L_FP}, v{vT0}
    """)
    for T in range(8):
        p(f"ds_read_b128 v[{CSV+4*T}:{CSV+4*T+3}], v{vT0} offset:{T*64}"); lq.issue(("CS", T))
    for j in range(D): k_read(0, j)
    for T in range(8):
        lq.wait(p, ("CS", T))
        for ct in range(2):
            a = QA + (T * 2 + ct) * 4
            for r in range(4): p(f"v_fma_f32 v{a+r}, -v{250+2*ct}, v{CSV+4*T+r}, v{a+r}")
            for r in range(4): p(f"v_mul_f32 v{a+r}, v{251+2*ct}, v{a+r}")
        for ct in range(2):
            a = QA + (T * 2 + ct) * 4
            for k in range(2): p(f"v_cvt_pk_bf16_f32 v{QP + 4*T + 2*ct + k}, v{a+2*k}, v{a+2*k+1}")
        if T > 0:
            for k in range(2): p(f"v_permlane16_swap_b32 v{QP + 4*(T-1) + k}, v{QP + 4*(T-1) + 2 + k}")
    for k in range(2): p(f"v_permlane16_swap_b32 v{QP + 28 + k}, v{QP + 30 + k}")
    def qk(j, sbuf, cinit):
        lq.wait(p, ("K", j % D))
        k = KF + (j % D) * 4; q = QP + 4 * j; d = S + 16 * sbuf
        c = cinit if j == 0 else f"v[{d}:{d+15}]"
        p(f"v_mfma_f32_32x32x16_bf16 v[{d}:{d+15}], v[{k}:{k+3}], v[{q}:{q+3}], {c}")
    def pv(i, pbuf, first=False):
        lq.wait(p, ("V", i % D))
        ks, dt = i >> 2, i & 3
        v = VF + (i % D) * 4; b = P + 8 * pbuf + 4 * ks; d = ACC + 16 * dt
        cc = "0" if (first and ks == 0) else f"v[{d}:{d+15}]"
        p(f"v_mfma_f32_32x32x16_bf16 v[{d}:{d+15}], v[{v}:{v+3}], v[{b}:{b+3}], {cc}")
    for j in range(8):
        qk(j, 0, "0")
        k_read(0 if j + D < 8 else 1, (j + D) % 8)
    vq.wait(p, ("K", 3), ("V", 1)); p("s_barrier")
    p(f"""
    s_cmp_lg_u32 s{sW}, 4
    s_cbranch_scc1 M_NOKEY
    s_lshl_b32 s{sT0}, s{sFL}, 3
    s_add_u32 s{sT0}, s{sT0}, {WS_KEYS}
    v_mov_b32 v{vT0}, s{sT0}
    v_mov_b32 v{FD}, s{sKEY}
    v_mov_b32 v{FD+1}, s{sNON}
    s_mov_b64 exec, 1
    global_store_dwordx2 v{vT0}, v[{FD}:{FD+1}], s[18:19] sc1
    s_mov_b64 exec, -1
M_NOKEY:
    """)
    ST()
    if stamp: lq.q = []
    s0 = S
    p(f"""
    v_max3_f32 v{vT0}, v{s0}, v{s0+1}, v{s0+2}
    v_max3_f32 v{vT1}, v{s0+3}, v{s0+4}, v{s0+5}
    v_max3_f32 v{vT0}, v{vT0}, v{s0+6}, v{s0+7}
    v_max3_f32 v{vT1}, v{vT1}, v{s0+8}, v{s0+9}
    v_max3_f32 v{vT0}, v{vT0}, v{s0+10}, v{s0+11}
    v_max3_f32 v{vT1}, v{vT1}, v{s0+12}, v{s0+13}
    v_max3_f32 v{vT0}, v{vT0}, v{s0+14}, v{s0+15}
    v_max_f32 v{vT0}, v{vT0}, v{vT1}
    v_mov_b32 v{vT1}, v{vT0}
    v_permlane32_swap_b32 v{vT0}, v{vT1}
    v_max_f32 v{vT0}, v{vT0}, v{vT1}
    """)
    for i in range(16): p(f"v_sub_f32 v{NEGM+i}, 0, v{vT0}")
    for i in range(16): p(f"v_sub_f32 v{s0+i}, v{s0+i}, v{vT0}")
    p(f"v_mov_b32 v{vT2}, {L_HI + 2*KSL + 6*1088 + 1024}\nv_mov_b32 v{vT3}, 0")
    p(f"ds_write_b32 v{vT2}, v{vT3}"); lq.issue(("Z", 0))
    p(f"ds_write_b32 v{vT2}, v{vT3} offset:1088"); lq.issue(("Z", 1))
    cold = 'nof' not in dbg
    SRD_P = 68; sPo = 72
    def pf(n):
        if not cold or 'nopf' in dbg: return None
        pre = ""
        if n == 0:
            pre = f"""s_lshl_b32 s{sT0}, s2, 15
    s_add_u32 s{SRD_P}, s10, s{sT0}
    s_addc_u32 s{SRD_P+1}, s11, 0
    s_mov_b32 s{SRD_P+2}, 0x8000
    s_mov_b32 s{SRD_P+3}, 0x20000
    s_mov_b32 s{sPo}, 0
    """
        elif n == 4:
            pre = f"""s_mul_i32 s{sT0}, s2, 28672
    s_add_u32 s{SRD_P}, s16, s{sT0}
    s_addc_u32 s{SRD_P+1}, s17, 0
    s_mov_b32 s{SRD_P+2}, 28672
    s_mov_b32 s{sPo}, 0
    """
        return (("PF", n), pre + f"""s_add_u32 m0, s{sVw}, {VADDR[5]}
    v_lshlrev_b32 v{vT3}, 4, v0
    buffer_load_dwordx4 v{vT3}, s[{SRD_P}:{SRD_P+3}], s{sPo} offen lds
    s_add_u32 s{sPo}, s{sPo}, 8192""")
    flagld = None
    keycode = f"""v_lshlrev_b32 v{vT2}, 5, v1
    v_add_u32 v{vT2}, {WS_KEYS}, v{vT2}
    global_load_dwordx4 v[{FT}:{FT+3}], v{vT2}, s[18:19] sc1
    global_load_dwordx4 v[{FT+4}:{FT+7}], v{vT2}, s[18:19] offset:16 sc1"""
    keychk = f"""v_xor_b32 v{FT+1}, s{sNON}, v{FT+1}
    v_xor_b32 v{FT+3}, s{sNON}, v{FT+3}
    v_xor_b32 v{FT+5}, s{sNON}, v{FT+5}
    v_xor_b32 v{FT+7}, s{sNON}, v{FT+7}
    v_or3_b32 v{FT+1}, v{FT+1}, v{FT+3}, v{FT+5}
    v_or_b32 v{FT+1}, v{FT+1}, v{FT+7}
    v_cmp_ne_u32 vcc, 0, v{FT+1}"""
    def keyld():
        p(keycode); vq.issue(("KY", 0)); vq.issue(("KY", 1))
    def xsel():
        vq.wait(p, ("KY", 1))
        p(keychk)
        p(f"s_mov_b32 s73, {SPIN_MAX}\ns_cbranch_vccnz M_KSPIN")
        p.label("M_KSPIN_RET")
        p(f"v_max3_u32 v{FT}, v{FT}, v{FT+2}, v{FT+4}\nv_max_u32 v{FT}, v{FT}, v{FT+6}")
        wave_max_u32(p, FT, FT + 1)
        p(f"""
    v_readfirstlane_b32 s{sKEY}, v{FT}
    s_and_b32 s{sIDX}, s{sKEY}, 0x7ff
    s_sub_u32 s{sIDX}, 2047, s{sIDX}
    s_lshr_b32 s{sT0}, s{sIDX}, 4
    s_lshl_b32 s{sT0}, s{sT0}, 15
    s_and_b32 s{sT1}, s2, 3
    s_lshl_b32 s{sT1}, s{sT1}, 13
    s_add_u32 s{sT0}, s{sT0}, s{sT1}
    s_lshl_b32 s{sT1}, s{sW}, 10
    s_add_u32 s{sT0}, s{sT0}, s{sT1}
    s_and_b32 s{sT1}, s{sIDX}, 15
    s_lshl_b32 s{sT1}, s{sT1}, 4
    s_add_u32 s{sT0}, s{sT0}, s{sT1}
    v_lshrrev_b32 v{vT2}, 4, v1
    v_lshlrev_b32 v{vT2}, 8, v{vT2}
    v_add_u32 v{vT2}, s{sT0}, v{vT2}
    global_load_dwordx4 v[{XS}:{XS+3}], v{vT2}, s[18:19] sc1""")
        vq.issue(("X", 0))
    def ffn_step(f):
        def go():
            if f == 0:
                vq.wait(p, ("X", 0), ("F", 7))
                p(f"""
    v_and_b32 v{vT2}, 15, v1
    v_lshlrev_b32 v{vT2}, 5, v{vT2}
    s_lshl_b32 s{sT0}, s{sW}, 9
    s_add_u32 s{sT0}, s{sT0}, {L_FP}
    v_add_u32 v{vT2}, s{sT0}, v{vT2}""")
            if f > 0:
                p(f"ds_write_b32 v{vT2}, v{FD} offset:{(f-1)*4}"); lq.issue(("FW", f - 1))
            if f < 8:
                j = f >> 1; sel = sPH if f & 1 else sPL
                for pp in range(4):
                    p(f"v_perm_b32 v{FT+pp}, v{FR+(2*pp+1)*4+j}, v{FR+(2*pp)*4+j}, s{sel}")
        return go
    def ffn_mfma():
        p(f"v_mfma_f32_16x16x32_bf16 v[{FD}:{FD+3}], v[{XS}:{XS+3}], v[{FT}:{FT+3}], 0")
    def ffn_final():
        p(f"""
    s_cmp_lg_u32 s{sW}, 0
    s_cbranch_scc1 K2_FSKIP
    s_cmp_ge_u32 s2, 224
    s_cbranch_scc1 K2_FSKIP
    v_lshlrev_b32 v{vT2}, 3, v1
    v_add_u32 v{vT3}, {L_FP}, v{vT2}""")
        for w in range(8): p(f"ds_read_b64 v[{FR+2*w}:{FR+2*w+1}], v{vT3} offset:{w*512}")
        p(f"""
    s_and_b32 s{sT0}, s2, 3
    s_mul_i32 s{sT0}, s{sT0}, {7168*8}
    s_lshr_b32 s{sT1}, s2, 2
    s_lshl_b32 s{sT1}, s{sT1}, 10
    s_add_u32 s{sT0}, s{sT0}, s{sT1}
    s_add_u32 s{sT0}, s{sT0}, {WS_GU}
    v_lshlrev_b32 v{vT2}, 1, v{vT2}
    v_add_u32 v{vT2}, s{sT0}, v{vT2}
    s_waitcnt lgkmcnt(0)""")
        for w in range(1, 8):
            p(f"v_add_f32 v{FR}, v{FR}, v{FR+2*w}\nv_add_f32 v{FR+1}, v{FR+1}, v{FR+2*w+1}")
        p(f"v_mov_b32 v{FR+2}, v{FR+1}\nv_mov_b32 v{FR+1}, s{sNON}\nv_mov_b32 v{FR+3}, s{sNON}")
        p(f"global_store_dwordx4 v{vT2}, v[{FR}:{FR+3}], s[18:19] sc1")
        p.label("K2_FSKIP")
    NEG = f"v[{NEGM}:{NEGM+15}]"
    def iteration(t, extra=(), mid=()):
        doQK = t < 15; doPV = t > 0; prevSM = t > 0
        sb = t & 1
        for j in range(8):
            if doQK: qk(j, sb ^ 1, NEG)
            if (j > 0 or prevSM) and 'novalu' not in dbg:
                e = E + 2 * ((j - 1) & 1)
                pb = sb if j > 0 else sb ^ 1
                pr = P + 8 * pb + ((j - 1) & 7)
                p(f"v_add_f32 v{vL0}, v{vL0}, v{e}\nv_add_f32 v{vL1}, v{vL1}, v{e+1}\nv_cvt_pk_bf16_f32 v{pr}, v{e}, v{e+1}")
            if j < len(mid): run(mid[j])
            if doPV: pv(j, sb ^ 1, first=(t == 1))
            e = E + 2 * (j & 1)
            if 'novalu' not in dbg: p(f"v_exp_f32 v{e}, v{S+16*sb+2*j}\nv_exp_f32 v{e+1}, v{S+16*sb+2*j+1}")
            jj = j + D
            if jj < 8:
                if doQK: k_read(t + 1, jj)
                if doPV: v_read(t - 1, jj)
            else:
                if t + 2 <= 15: k_read(t + 2, jj - 8)
                v_read(t, jj - 8)
            if j < len(extra): run(extra[j])
    F = lambda i: job_f(i) if (ffn and cold and 'nofl' not in dbg) else None
    sched = {
        0: [job_k(7), F(0), job_v(3), None, job_v(4), None, F(1)],
        1: [job_v(5), None, None, job_v(6), None, None, F(2)],
        2: [job_k(8), None, job_k(9), F(3), job_v(7), None, F(4)],
        3: [job_v(8), keyld, job_v(9), None, job_v(10), None, F(5)],
        4: [job_k(10), None, job_k(11), None, job_v(11), None, F(6)],
        5: [job_v(12), None, xsel, job_v(13), None, None, F(7)],
        6: [job_k(12), None, job_k(13), None, job_v(14)],
        7: [job_v(15)],
        8: [job_k(14), None, job_k(15), None, None, None, pf(0)],
        9: [pf(1), None, None, None, pf(2)],
        10: [pf(3), None, None, None, pf(4)],
        11: [pf(5), None, None, pf(6), None, None, pf(7)],
    }
    if 'nodma' in dbg: sched = {}
    for t in range(16):
        if t > 0 and t % 2 == 0:
            b = t // 2
            need = [("K", x) for x in range(2*b+4)] + [("V", x) for x in range(2*b+2)]
            if b == 6: need = [("K", x) for x in range(16)] + [("V", x) for x in range(16)]
            vq.wait(p, *need)
            if b == 7: vq.wait(p, ("PF", 7))
            if b == 5: lq.wait(p, ("FW", 7))
            p("s_barrier")
        extra = sched.get(t, []); mid = []
        def both(x, y):
            def f():
                run(x); run(y)
            return f
        ex8 = list(extra) + [None] * 8
        if t == 8:
            extra = [both(ex8[f], ffn_step(f)) for f in range(8)]; mid = [None] + [ffn_mfma] * 7
        if t == 9:
            extra = [ex8[0], ffn_step(8)] + ex8[2:8]; mid = [ffn_mfma]
        if t == 10:
            extra = [ex8[0], ffn_final] + ex8[2:8]
        if t == 14:
            ED = lambda n: (("EW", n), p3_early_dma(n))
            extra = [None, p3_early_setup(), ED(0), ED(1), ED(2), ED(3), ED(4), ED(5)]
        if t == 15:
            extra = [ED(6), ED(7), ED(8), ED(9), ED(10), ED(11)]
        iteration(t, extra, mid)
    e = E + 2
    p(f"v_add_f32 v{vL0}, v{vL0}, v{e}\nv_add_f32 v{vL1}, v{vL1}, v{e+1}\nv_cvt_pk_bf16_f32 v{P+8+7}, v{e}, v{e+1}")
    p(f"""
    v_add_f32 v{vL0}, v{vL0}, v{vL1}
    v_mov_b32 v{vL1}, v{vL0}
    """)
    for i in range(8):
        pv(i, 1)
        if i + D < 8: v_read(15, i + D)
        if i == 0:
            p(f"v_permlane32_swap_b32 v{vL0}, v{vL1}\nv_add_f32 v{vL0}, v{vL0}, v{vL1}")
        if i == 1:
            p(f"""
    v_mov_b32 v{vT1}, 0x5d800000
    v_cmp_nle_f32 vcc, v{vL0}, v{vT1}
    v_rcp_f32 v{vL1}, v{vL0}
    """)
    ST()
    if slow:
        p(f"s_cbranch_vccnz K2_SLOW")
        p.label("K2_SLOW_RET")
    for dt in range(4):
        for c in range(2):
            a = ACC + 16 * dt + 8 * c
            o = S + (dt * 2 + c) * 4
            for r in range(8): p(f"v_mul_f32 v{a+r}, v{a+r}, v{vL1}")
            for r in range(4): p(f"v_cvt_pk_bf16_f32 v{o+r}, v{a+2*r}, v{a+2*r+1}")
            p(f"buffer_store_dwordx4 v[{o}:{o+3}], v{vO}, s[{SRD_OT}:{SRD_OT+3}], s{sOT} offen offset:{c*512} sc1")
        if dt < 3: p(f"s_add_u32 s{sOT}, s{sOT}, 131072")
    phase3(p, ST, stamp)
    p.label("K2_END")
    p("s_endpgm")
    p.label("M_SSPIN")
    p("s_sleep 2")
    p(stcode)
    p("s_waitcnt vmcnt(0)")
    p(stchk)
    p(f"""
    s_cbranch_vccz M_SSPIN_RET
    s_sub_u32 s73, s73, 1
    s_cmp_lg_u32 s73, 0
    s_cbranch_scc1 M_SSPIN
    s_branch M_SSPIN_RET
    """)
    p.label("M_KSPIN")
    p("s_sleep 2")
    p(keycode)
    p("s_waitcnt vmcnt(0)")
    p(keychk)
    p(f"""
    s_cbranch_vccz M_KSPIN_RET
    s_sub_u32 s73, s73, 1
    s_cmp_lg_u32 s73, 0
    s_cbranch_scc1 M_KSPIN
    s_branch M_KSPIN_RET
    """)
    if slow:
        p.label("K2_SLOW")
        p(f"""
    s_waitcnt vmcnt(0) lgkmcnt(0)
    v_and_b32 v{vT0}, 31, v1
    v_lshlrev_b32 v{vT0}, 8, v{vT0}
    v_lshrrev_b32 v{vT1}, 5, v1
    v_lshl_add_u32 v{vT0}, v{vT1}, 4, v{vT0}
    v_and_b32 v{vT2}, 19, v1
    v_bfe_u32 v{vT3}, v1, 2, 1
    v_lshl_add_u32 v{vT2}, v{vT3}, 3, v{vT2}
    v_bfe_u32 v{vT3}, v1, 3, 1
    v_lshl_add_u32 v{vT2}, v{vT3}, 2, v{vT2}
    v_lshlrev_b32 v{vT2}, 1, v{vT2}
    v_lshl_add_u32 v{vT2}, v{vT1}, 10, v{vT2}
    v_mov_b32 v{vT1}, 0xff800000
    s_mov_b32 s{sT1}, 0
    """)
        KS = KF
        def slow_qk(c0):
            for j in range(8):
                p(f"buffer_load_dwordx4 v[{KS+4*j}:{KS+4*j+3}], v{vT0}, s[{SRD_K}:{SRD_K+3}], s{sT1} offen offset:{j*32}")
            p("s_waitcnt vmcnt(0)")
            for j in range(8):
                c = c0 if j == 0 else f"v[{S}:{S+15}]"
                p(f"v_mfma_f32_32x32x16_bf16 v[{S}:{S+15}], v[{KS+4*j}:{KS+4*j+3}], v[{QP+4*j}:{QP+4*j+3}], {c}")
        p.label("K2_SLOW_L1")
        slow_qk("0")
        for i in range(0, 16, 2):
            p(f"v_max3_f32 v{vT1}, v{vT1}, v{S+i}, v{S+i+1}")
        p(f"""
    s_add_u32 s{sT1}, s{sT1}, 8192
    s_cmp_lt_u32 s{sT1}, 131072
    s_cbranch_scc1 K2_SLOW_L1
    v_mov_b32 v{vT3}, v{vT1}
    v_permlane32_swap_b32 v{vT3}, v{vT1}
    v_max_f32 v{vT1}, v{vT3}, v{vT1}
    """)
        for i in range(16): p(f"v_sub_f32 v{NEGM+i}, 0, v{vT1}")
        for i in range(64): p(f"v_mov_b32 v{ACC+i}, 0")
        p(f"v_mov_b32 v{vL0}, 0\ns_mov_b32 s{sT1}, 0")
        p.label("K2_SLOW_L2")
        slow_qk(NEG)
        for i in range(16): p(f"v_exp_f32 v{S+i}, v{S+i}")
        for i in range(16): p(f"v_add_f32 v{vL0}, v{vL0}, v{S+i}")
        for i in range(8): p(f"v_cvt_pk_bf16_f32 v{P+i}, v{S+2*i}, v{S+2*i+1}")
        for ks in range(2):
            p(f"s_add_u32 s{sT2}, s{sT1}, {ks*4096}")
            TM = S + 16
            for dt in range(4):
                r = KS + dt * 4; d = ACC + 16 * dt
                for jj in range(8):
                    key = (jj & 3) + 8 * (jj >> 2)
                    p(f"buffer_load_ushort v{TM + jj}, v{vT2}, s[{SRD_V}:{SRD_V+3}], s{sT2} offen offset:{key*256 + dt*64}")
                p("s_waitcnt vmcnt(0)")
                for jj in range(4): p(f"v_lshl_or_b32 v{r+jj}, v{TM+2*jj+1}, 16, v{TM+2*jj}")
                p(f"v_mfma_f32_32x32x16_bf16 v[{d}:{d+15}], v[{r}:{r+3}], v[{P+4*ks}:{P+4*ks+3}], v[{d}:{d+15}]")
            p("s_nop 7")
        p(f"""
    s_add_u32 s{sT1}, s{sT1}, 8192
    s_cmp_lt_u32 s{sT1}, 131072
    s_cbranch_scc1 K2_SLOW_L2
    v_mov_b32 v{vL1}, v{vL0}
    v_permlane32_swap_b32 v{vL0}, v{vL1}
    v_add_f32 v{vL0}, v{vL0}, v{vL1}
    v_rcp_f32 v{vL1}, v{vL0}
    s_nop 7
    s_branch K2_SLOW_RET
    """)
    n = p.fix_hazards(verbose='v' in dbg)
    import re as _re
    txt0 = _re.sub(r"ST3_(\d)", (lambda m: f"s_memtime s[{80+2*int(m.group(1))}:{81+2*int(m.group(1))}]") if MODE3[0] else "s_nop 0", p.text())
    if not MODE3[0]: txt0 = txt0
    txt = txt0.replace('STAMPX1', 's_memrealtime s[94:95]' if stamp else 's_nop 0')
    return txt, descriptor(name, 256, 256, 102), f"; @launch grid=(256,1,1) block=(512,1,1) lds={L_TOTAL}"

if __name__ == "__main__":
    import sys, subprocess, re
    dbg = tuple(sys.argv[2].split(',')) if len(sys.argv) > 2 else ()
    t, d, l = gen_mega(stamp=len(sys.argv) > 1 and sys.argv[1] == "1", dbg=dbg)
    out = sys.argv[3] if len(sys.argv) > 3 else "mega.s"
    def write(cs):
        open(out, "w").write(l + '\n.amdgcn_target "amdgcn-amd-amdhsa--gfx950"\n.text\n' + t.replace("CODESIZE", str(cs)) + '.section .rodata,"a"\n' + d)
    write(0x1000)
    subprocess.run(["clang", "-x", "assembler", "-target", "amdgcn-amd-amdhsa", "-mcpu=gfx950", "-c", out, "-o", "mega.o"], check=True)
    r = subprocess.run(["llvm-objdump", "-h", "mega.o"], capture_output=True, text=True).stdout
    sz = int(re.search(r"\.text\s+([0-9a-f]+)", r).group(1), 16)
    write((sz - 256) & ~63)
    print("code size", sz)
```

```python
from gen_common import *
import math, struct

KSL = 8704; VSL = 8192
L_X = 65536
L_HI = 131072
L_FP = 159744
L_TOTAL = L_FP + 4096
L_K = L_HI
KADDR = [L_HI, L_HI + KSL, L_HI + 2 * KSL, L_X, L_X + KSL + 2 * VSL, L_X + 2 * KSL + 2 * VSL, L_X + 3 * KSL + 2 * VSL]
VADDR = [L_X + KSL, L_X + KSL + VSL, L_X + 4 * KSL + 2 * VSL] + [i * VSL for i in range(8)]
assert VADDR[2] + VSL <= L_HI and KADDR[2] + KSL <= L_FP and VADDR[1] + VSL <= L_X + 32768
def Kabs(t): return KADDR[t % 7]
def Vabs(t): return VADDR[t % 11]

vDk, vDv, vKb, vVa, vVb, vO, vL0, vL1, vDf, vKh, vT0, vT1, vT2, vT3 = 2, 3, 4, 5, 6, 7, 8, 9, 10, 11, 12, 13, 14, 15
vPF = 211
ACC = 16; QP = 80; S = 112; NEGM = 144; P = 160; KF = 176; VF = 192; E = 208
QA = 112; AF = 176
def BRr(buf, k): return 212 + (buf & 1) * 16 + k * 4
FR = 212
vA0, vA1, vDq, vDq2, vXB0, vXB1 = 244, 245, 246, 247, 248, 249
vXD = 80
FT = 244; FD = 248; XS = 252
sW = 3
sHEAD, sRB, sG = 20, 21, 22
sN, sWq, sM, sB = 23, 24, 25, 26
sKsrc, sKw, sVsrc, sVw = 27, 28, 29, 30
sPL, sPH = 31, 32
sFsrc, sIDX = 69+32, 35
SRD_WQ, SRD_XN, SRD_K, SRD_V, SRD_F, SRD_OT = 36, 40, 44, 48, 52, 56
sT0, sT1, sT2, sT3 = 60, 61, 62, 63
sOT = 64
sXM = 100
QSCALE = math.log2(math.e) / math.sqrt(128.0)
def fbits(x): return "0x%08x" % struct.unpack("<I", struct.pack("<f", x))[0]
D = 4

class Q:
    def __init__(self, cnt, mx): self.q = []; self.cnt = cnt; self.mx = mx
    def issue(self, tag): self.q.append(tag)
    def wait(self, p, *tags):
        idx = [len(self.q) - 1 - self.q[::-1].index(t) for t in tags if t in self.q]
        if not idx: return
        i = max(idx)
        n = len(self.q) - 1 - i
        assert n <= self.mx, n
        p(f"s_waitcnt {self.cnt}({n})")
        self.q = self.q[i + 1:]


KNAME = "recurrent_scan__sliding_block_cached__moe_arch_mod__prompt_kernel"
sFL, sPC, sKEY = 65, 70, 34
SPIN_MAX = 20000
MODE0 = [False]
MODE3 = [False]
WS_FLG = 0x500000
sNON = 33

LX = 16
def poll32(p, lab, sGrp, stage):
    p(f"""
    v_and_b32 v{vT0}, 31, v1
    v_lshlrev_b32 v{vT0}, 7, v{vT0}
    s_lshl_b32 s{sGrp}, s{sGrp}, 12
    s_add_u32 s{sGrp}, s{sGrp}, {WS_FLG + stage*32768}
    v_add_u32 v{vT0}, s{sGrp}, v{vT0}
    s_mov_b32 s73, {SPIN_MAX}
    """)
    p.label(lab)
    p(f"""
    global_load_dword v{vT1}, v{vT0}, s[18:19] sc1
    s_waitcnt vmcnt(0)
    v_cmp_ne_u32 vcc, s{sNON}, v{vT1}
    s_cbranch_vccz {lab}_OK
    s_sleep 1
    s_sub_u32 s73, s73, 1
    s_cmp_lg_u32 s73, 0
    s_cbranch_scc1 {lab}
    """)
    p.label(lab + "_OK")
def set_flag(p, stage):
    p(f"""
    s_lshl_b32 s{sT0}, s{sFL}, 7
    s_add_u32 s{sT0}, s{sT0}, {WS_FLG + stage*32768}
    v_mov_b32 v{vT0}, s{sT0}
    v_mov_b32 v{vT1}, s{sNON}
    s_mov_b64 exec, 1
    global_store_dword v{vT0}, v{vT1}, s[18:19] sc1
    s_mov_b64 exec, -1
    """)
WS_ST = 0x520000
WS_CS = 0x530000
L_SC = L_K
CSR = 92
def get_nonce(p, lab, vz, vn):
    p(f"""
    s_mov_b32 s73, {SPIN_MAX}
{lab}:
    global_load_dword v{vn}, v{vz}, s[66:67] sc1
    s_waitcnt vmcnt(0)
    v_readfirstlane_b32 s{sNON}, v{vn}
    s_cmp_lg_u32 s{sNON}, 0
    s_cbranch_scc1 {lab}_OK
    s_sub_u32 s73, s73, 1
    s_cmp_lg_u32 s73, 0
    s_cbranch_scc1 {lab}
{lab}_OK:
    """)
class Rec:
    def __init__(self): self.items = []
    def __call__(self, text):
        for line in text.split('\n'):
            if line.strip(): self.items.append(line.strip())
    def call(self, f): self.items.append(f)
LN_X = 16; LN_W = 24
vg0, vg1, vr_, vq_, vNON, vCSA, vLXA = 84, 85, 86, 87, 88, 89, 90
def ln_segments(lq, vq, P):
    X = LN_X; W = LN_W; F = 32; S_ = 48; T = 49; Q0 = 50; Q1 = 51; Dd = 52; va = 68; vw = 69; SD = 70; G = 32
    CA = 72; CT = 52
    p = Rec()
    p(f"""
    v_lshrrev_b32 v{vw}, 6, v0
    v_and_b32 v{va}, 7, v1
    v_xor_b32 v{va}, v{va}, v{vw}
    v_lshlrev_b32 v{va}, 4, v{va}
    v_lshl_add_u32 v{va}, v1, 7, v{va}
    v_add_u32 v{va}, {L_SC}, v{va}
    v_lshrrev_b32 v{vg1}, 3, v0
    v_and_b32 v{vg0}, 7, v{vg1}
    v_and_b32 v{vr_}, 7, v0
    v_xor_b32 v{vg0}, v{vg0}, v{vr_}
    v_lshlrev_b32 v{vg0}, 4, v{vg0}
    v_lshl_add_u32 v{vg0}, v{vg1}, 8, v{vg0}
    s_lshr_b32 s{sT0}, s{sFL}, 1
    s_lshl_b32 s{sT0}, s{sT0}, 15
    s_and_b32 s{sT1}, s{sFL}, 1
    s_lshl_b32 s{sT1}, s{sT1}, 7
    s_add_u32 s{sT0}, s{sT0}, s{sT1}
    v_add_u32 v{vg0}, s{sT0}, v{vg0}
    v_add_u32 v{vg1}, 0x4000, v{vg0}
    v_lshlrev_b32 v{vr_}, 4, v0
    v_add_u32 v{vr_}, {L_SC}, v{vr_}
    """)
    p.call(lambda: vq.wait(P, ("LX", 1)))
    for i in range(8):
        p(f"v_lshlrev_b32 v{F+2*i}, 16, v{X+i}\nv_and_b32 v{F+2*i+1}, 0xffff0000, v{X+i}")
    p(f"v_add_f32 v{S_}, v{F}, v{F+1}\nv_add_f32 v{T}, v{F+2}, v{F+3}")
    for i in range(4, 16, 2):
        p(f"v_add_f32 v{S_}, v{S_}, v{F+i}\nv_add_f32 v{T}, v{T}, v{F+i+1}")
    p(f"v_add_f32 v{S_}, v{S_}, v{T}")
    wave_sum(p, S_, T)
    p(f"v_mul_f32 v{S_}, 0x3a800000, v{S_}")
    for i in range(16): p(f"v_sub_f32 v{Dd+i}, v{F+i}, v{S_}")
    p(f"v_mul_f32 v{Q0}, v{Dd}, v{Dd}\nv_mul_f32 v{Q1}, v{Dd+1}, v{Dd+1}")
    for i in range(2, 16, 2):
        p(f"v_fmac_f32 v{Q0}, v{Dd+i}, v{Dd+i}\nv_fmac_f32 v{Q1}, v{Dd+i+1}, v{Dd+i+1}")
    p(f"v_add_f32 v{Q0}, v{Q0}, v{Q1}")
    wave_sum(p, Q0, T)
    p(f"""
    v_mul_f32 v{Q0}, 0x3a800000, v{Q0}
    v_cvt_pk_bf16_f32 v{T}, v{S_}, v{Q0}
    v_lshlrev_b32 v{S_}, 16, v{T}
    v_and_b32 v{Q0}, 0xffff0000, v{T}
    v_add_f32 v{Q0}, 0x3727c5ac, v{Q0}
    v_cvt_pk_bf16_f32 v{Q0}, v{Q0}, v{Q0}
    v_lshlrev_b32 v{Q0}, 16, v{Q0}
    v_sqrt_f32 v{Q0}, v{Q0}
    v_cvt_pk_bf16_f32 v{SD}, v{S_}, v{Q0}
    v_and_b32 v{Q0}, 0xffff0000, v{SD}
    v_rcp_f32 v{Q0}, v{Q0}
    """)
    def dsw(text, tag):
        def f():
            P(text); lq.issue(tag)
        p.call(f)
    p(f"""
    s_lshl_b32 s{sT0}, s{sW}, 2
    s_add_u32 s{sT0}, s{sT0}, {L_SC + 16384}
    v_mov_b32 v{vw}, s{sT0}
    """)
    p.call(lambda: vq.wait(P, ("CS", 3)))
    for i in range(4):
        for j in range(4):
            r = CSR + 4 * i + j
            if i == 0:
                p(f"v_lshlrev_b32 v{CA+2*j}, 16, v{r}\nv_and_b32 v{CA+2*j+1}, 0xffff0000, v{r}")
            else:
                p(f"v_lshlrev_b32 v{CT}, 16, v{r}\nv_and_b32 v{CT+1}, 0xffff0000, v{r}")
                p(f"v_add_f32 v{CA+2*j}, v{CA+2*j}, v{CT}\nv_add_f32 v{CA+2*j+1}, v{CA+2*j+1}, v{CT+1}")
    for sw in ("v_permlane16_swap_b32", "v_permlane32_swap_b32"):
        for c in range(8): p(f"v_mov_b32 v{CT+c}, v{CA+c}")
        for c in range(8): p(f"{sw} v{CA+c}, v{CT+c}")
        for c in range(8): p(f"v_add_f32 v{CA+c}, v{CA+c}, v{CT+c}")
    p(f"""
    v_and_b32 v{T}, 15, v1
    v_lshlrev_b32 v{T}, 5, v{T}
    s_lshl_b32 s{sT0}, s{sW}, 9
    s_add_u32 s{sT0}, s{sT0}, {L_SC + 16512}
    v_add_u32 v{T}, s{sT0}, v{T}
    """)
    dsw(f"ds_write_b128 v{T}, v[{CA}:{CA+3}]", ("LW", 4))
    dsw(f"ds_write_b128 v{T}, v[{CA+4}:{CA+7}] offset:16", ("LW", 5))
    partA = p.items
    p = Rec()
    for i in range(16): p(f"v_sub_f32 v{Dd+i}, v{F+i}, v{S_}")
    for i in range(8): p(f"v_cvt_pk_bf16_f32 v{X+i}, v{Dd+2*i}, v{Dd+2*i+1}")
    for i in range(8):
        p(f"v_lshlrev_b32 v{Dd+2*i}, 16, v{X+i}\nv_and_b32 v{Dd+2*i+1}, 0xffff0000, v{X+i}")
    for i in range(16): p(f"v_mul_f32 v{Dd+i}, v{Dd+i}, v{Q0}")
    for i in range(8): p(f"v_cvt_pk_bf16_f32 v{X+i}, v{Dd+2*i}, v{Dd+2*i+1}")
    dsw(f"ds_write_b128 v{va}, v[{X}:{X+3}]", ("LW", 0))
    dsw(f"ds_write_b128 v{va}, v[{X+4}:{X+7}] offset:8192", ("LW", 1))
    p.call(lambda: vq.wait(P, ("LX", 3)))
    for i in range(8):
        p(f"v_lshlrev_b32 v{Dd+2*i}, 16, v{X+i}\nv_and_b32 v{Dd+2*i+1}, 0xffff0000, v{X+i}")
        p(f"v_lshlrev_b32 v{G+2*i}, 16, v{W+i}\nv_and_b32 v{G+2*i+1}, 0xffff0000, v{W+i}")
    p(f"v_mul_f32 v{S_}, v{Dd}, v{G}\nv_mul_f32 v{Q1}, v{Dd+1}, v{G+1}")
    for i in range(2, 16, 2):
        p(f"v_fmac_f32 v{S_}, v{Dd+i}, v{G+i}\nv_fmac_f32 v{Q1}, v{Dd+i+1}, v{G+i+1}")
    p(f"v_add_f32 v{S_}, v{S_}, v{Q1}")
    wave_sum(p, S_, T)
    p(f"""
    v_cvt_pk_bf16_f32 v{S_}, v{S_}, v{S_}
    v_lshlrev_b32 v{S_}, 16, v{S_}
    v_ashrrev_i32 v{T}, 31, v{S_}
    v_or_b32 v{T}, 0x80000000, v{T}
    v_xor_b32 v{S_}, v{S_}, v{T}
    v_and_b32 v{S_}, 0xffff0000, v{S_}
    s_lshl_b32 s{sT1}, s{sFL}, 3
    s_add_u32 s{sT1}, s{sT1}, s{sW}
    s_sub_u32 s{sT0}, 2047, s{sT1}
    v_or_b32 v{S_}, s{sT0}, v{S_}
    v_mov_b32 v{vL0}, 0
    v_mov_b32 v{vL1}, 0
    """)
    dsw(f"ds_write_b32 v{vw}, v{S_}", ("LW", 2))
    return partA, p.items
def pub_segments(lq, vq, P):
    R = CSR
    p = Rec()
    def ds(text, tag):
        def f():
            P(text); lq.issue(tag)
        p.call(f)
    def vm(text, tag):
        def f():
            P(text); vq.issue(tag)
        p.call(f)
    p(f"""
    v_lshrrev_b32 v{R+4}, 3, v1
    v_lshlrev_b32 v{R+4}, 9, v{R+4}
    v_and_b32 v{R+5}, 7, v1
    v_lshl_add_u32 v{R+4}, v{R+5}, 3, v{R+4}
    s_lshl_b32 s{sT0}, s{sW}, 6
    s_add_u32 s{sT0}, s{sT0}, {L_SC + 16512}
    v_add_u32 v{R+4}, s{sT0}, v{R+4}
    """)
    ds(f"ds_read_b64 v[{R}:{R+1}], v{R+4}", ("PR", 0))
    p(f"""
    s_lshl_b32 s{sT0}, s{sHEAD}, 3
    s_add_u32 s{sT0}, s{sT0}, s{sRB}
    s_lshl_b32 s{sT0}, s{sT0}, 3
    s_add_u32 s{sT0}, s{sT0}, s{sW}
    s_lshl_b32 s{sT0}, s{sT0}, 7
    s_add_u32 s{sT0}, s{sT0}, {WS_CS}
    v_lshlrev_b32 v{R+5}, 4, v{R+5}
    v_add_u32 v{R+5}, s{sT0}, v{R+5}
    s_lshl_b32 s{sT0}, s{sFL}, 3
    s_add_u32 s{sT0}, s{sT0}, s{sW}
    s_lshl_b32 s{sT0}, s{sT0}, 3
    s_add_u32 s{sT0}, s{sT0}, {WS_ST}
    v_mov_b32 v{R+6}, s{sT0}
    v_mov_b32 v71, s{sNON}
    """)
    vm(f"s_mov_b64 exec, 1\nglobal_store_dwordx2 v{R+6}, v[70:71], s[18:19] sc1\ns_mov_b64 exec, -1", ("PS", 0))
    p.call(lambda: lq.wait(P, ("PR", 0)))
    p(f"v_mov_b32 v{R+2}, v{R+1}")
    for c in (R, R + 2): p(f"v_add_f32_dpp v{c}, v{c}, v{c} row_ror:8 row_mask:0xf bank_mask:0xf")
    for sw in ("v_permlane16_swap_b32", "v_permlane32_swap_b32"):
        p(f"v_mov_b32 v{R+1}, v{R}\nv_mov_b32 v{R+3}, v{R+2}")
        p(f"{sw} v{R}, v{R+1}\n{sw} v{R+2}, v{R+3}")
        p(f"v_add_f32 v{R}, v{R}, v{R+1}\nv_add_f32 v{R+2}, v{R+2}, v{R+3}")
    p(f"v_mov_b32 v{R+1}, s{sNON}\nv_mov_b32 v{R+3}, s{sNON}")
    vm(f"s_mov_b64 exec, 0xff\nglobal_store_dwordx4 v{R+5}, v[{R}:{R+3}], s[18:19] sc1\ns_mov_b64 exec, -1", ("PS", 1))
    seg1 = p.items
    p = Rec()
    X = 16
    ds(f"ds_read_b128 v[{X}:{X+3}], v{vr_}", ("PR", 1))
    ds(f"ds_read_b128 v[{X+4}:{X+7}], v{vr_} offset:8192", ("PR", 2))
    p(f"v_mov_b32 v{vq_}, {L_SC + 16384}")
    ds(f"ds_read_b128 v[{X+8}:{X+11}], v{vq_}", ("PR", 3))
    p("s_nop 0\ns_nop 0\ns_nop 0\ns_nop 0")
    p.call(lambda: lq.wait(P, ("PR", 1)))
    vm(f"global_store_dwordx4 v{vg0}, v[{X}:{X+3}], s[18:19] sc1", ("PS", 2))
    ds(f"ds_read_b128 v[{X+12}:{X+15}], v{vq_} offset:16", ("PR", 4))
    p.call(lambda: lq.wait(P, ("PR", 2)))
    vm(f"global_store_dwordx4 v{vg1}, v[{X+4}:{X+7}], s[18:19] sc1", ("PS", 3))
    p("s_nop 0\ns_nop 0\ns_nop 0\ns_nop 0")
    p.call(lambda: lq.wait(P, ("PR", 4)))
    p(f"""
    v_max3_u32 v{X+8}, v{X+8}, v{X+9}, v{X+10}
    v_max3_u32 v{X+12}, v{X+12}, v{X+13}, v{X+14}
    v_max3_u32 v{X+8}, v{X+8}, v{X+11}, v{X+15}
    v_max_u32 v{X+8}, v{X+8}, v{X+12}
    v_readfirstlane_b32 s{sKEY}, v{X+8}
    """)
    return seg1, p.items
def set_flag2(p):
    pass

def rbf(p, v):
    p(f"v_cvt_pk_bf16_f32 v{v}, v{v}, v{v}\nv_lshlrev_b32 v{v}, 16, v{v}")
def silu(p, d, v, t):
    p(f"""
    v_mul_f32 v{t}, 0xbfb8aa3b, v{v}
    v_exp_f32 v{t}, v{t}
    v_add_f32 v{t}, 1.0, v{t}
    v_rcp_f32 v{t}, v{t}
    v_mul_f32 v{d}, v{v}, v{t}
    """)
sRT, sCT, sIT, sA, sBo, sMb, sMb2, sKH, sKQ, sMH = 20, 21, 23, 24, 25, 26, 27, 28, 29, 30
sKG, sCG = 31, 32
SRD_A, SRD_B = 36, 40
RB1 = 16384; RB2 = 114688
WS_EX = 0x2000000; WS_FLG2 = 0x560000
EW = 244
L_H3 = 148480
CNT_A = L_HI + 2*KSL + 6*1088 + 1024
CNT_B = CNT_A + 1088
def p3_early_setup():
    return f"""s_and_b32 s{sT0}, s2, 7
    s_lshr_b32 s{sT1}, s2, 3
    s_lshr_b32 s{sRT}, s{sT0}, 1
    s_lshl_b32 s{sRT}, s{sRT}, 2
    s_and_b32 s{sT2}, s{sT1}, 3
    s_add_u32 s{sRT}, s{sRT}, s{sT2}
    s_and_b32 s{sCT}, s{sT0}, 1
    s_lshl_b32 s{sCT}, s{sCT}, 2
    s_bfe_u32 s{sT2}, s{sT1}, 0x20002
    s_add_u32 s{sCT}, s{sCT}, s{sT2}
    s_lshr_b32 s{sKH}, s{sT1}, 4
    s_and_b32 s{sKQ}, s{sW}, 3
    s_lshr_b32 s{sMH}, s{sW}, 2
    s_lshl_b32 s{sT0}, s{sKH}, 2
    s_add_u32 s{sT0}, s{sT0}, s{sKQ}
    s_lshl_b32 s{sT1}, s{sT0}, 21
    s_add_u32 s{sT1}, s{sT1}, {WS_OT}
    s_add_u32 s{SRD_A}, s18, s{sT1}
    s_addc_u32 s{SRD_A+1}, s19, 0
    s_mov_b32 s{SRD_A+2}, 0x200000
    s_mov_b32 s{SRD_A+3}, 0x20000
    s_lshl_b32 s{sT1}, s{sT0}, 20
    s_add_u32 s{SRD_B}, s10, s{sT1}
    s_addc_u32 s{SRD_B+1}, s11, 0
    s_mov_b32 s{SRD_B+2}, 0x100000
    s_mov_b32 s{SRD_B+3}, 0x20000
    s_lshl_b32 s{sA}, s{sRT}, 1
    s_add_u32 s{sA}, s{sA}, s{sMH}
    s_lshl_b32 s{sA}, s{sA}, 12
    s_lshl_b32 s{sBo}, s{sCT}, 8
    s_lshl_b32 s{sT1}, s{sMH}, 15
    s_add_u32 s{sBo}, s{sBo}, s{sT1}
    s_mul_i32 s{sMb}, s{sKQ}, 24576
    s_add_u32 s{sMb}, s{sMb}, {RB1}
    s_lshl_b32 s{sMb2}, s{sKQ}, 13
    s_add_u32 s{sMb2}, s{sMb2}, {RB2 - 3*8192}
    s_lshl_b32 s{sT1}, s{sMH}, 12
    s_add_u32 s{sT2}, s{sMb}, s{sT1}
    s_add_u32 s{sT3}, s{sMb2}, s{sT1}
    v_lshrrev_b32 v{EW+1}, 4, v1
    v_and_b32 v{EW}, 3, v1
    v_bfe_u32 v{EW+2}, v1, 2, 2
    v_lshlrev_b32 v{EW}, 4, v{EW}
    v_lshl_add_u32 v{EW}, v{EW+1}, 6, v{EW}
    v_lshl_add_u32 v{EW}, v{EW+2}, 11, v{EW}
    v_add_u32 v{EW+1}, 7168, v{EW}
    v_add_u32 v{EW+2}, {2*7168}, v{EW}
    v_add_u32 v{EW+3}, {3*7168}, v{EW}
    s_mov_b32 s{sDW}, s{sT2}
    s_mov_b32 s{sDW2}, s{sT3}"""
sDW, sDW2 = 68, 69
def wdma(slot, i, vW):
    t = ""
    if i == 0: t = f"s_add_u32 m0, s{sDW2 if slot == 3 else sDW}, {slot*8192}\ns_nop 0\n"
    t += f"buffer_load_dwordx4 v{vW+i}, s[{SRD_B}:{SRD_B+3}], s{sBo} offen offset:{i*1024} lds"
    if i == 3: t += f"\ns_add_u32 s{sBo}, s{sBo}, 65536"
    return t
def p3_early_dma(n):
    return wdma(n >> 2, n & 3, EW)
def phase3(p, ST, stamp):
    AC3 = 128; OR = 64; WF = 16; XP = 32; GP = 48
    vAo, vRd, vRd2, vOut, vFa, vFv = 2, 3, 8, 9, 10, 11; vW = 4
    ST(False)
    def oload(slot, i):
        r = OR + slot * 16 + i * 4
        t = f"buffer_load_dwordx4 v[{r}:{r+3}], v{vAo}, s[{SRD_A}:{SRD_A+3}], s{sA} offen offset:{i*1024} sc1"
        if i == 3: t += f"\ns_add_u32 s{sA}, s{sA}, 131072"
        return t
    def arrive(lab, n):
        p(f"""
    v_mov_b32 v{vT0}, {CNT_A}
    v_mov_b32 v{vT1}, 1
    s_waitcnt vmcnt({n})
    s_mov_b64 exec, 1
    ds_add_rtn_u32 v{vT2}, v{vT0}, v{vT1}
    s_mov_b64 exec, -1
    s_waitcnt lgkmcnt(0)
    v_readfirstlane_b32 s{sT0}, v{vT2}
    s_cmp_lg_u32 s{sT0}, 7
    s_cbranch_scc1 {lab}
    """)
        set_flag(p, 1)
        p.label(lab)
    p(f"""
    ST3_0
    v_mov_b32 v{vW}, v{EW}
    v_mov_b32 v{vW+1}, v{EW+1}
    v_mov_b32 v{vW+2}, v{EW+2}
    v_mov_b32 v{vW+3}, v{EW+3}
    s_and_b32 s{sKG}, s{sFL}, 15
    s_lshr_b32 s{sCG}, s{sFL}, 4
    s_cmp_lg_u32 s{sMH}, s{sKH}
    s_cbranch_scc1 M_SEND0
    """)
    NR = 144; GG = 160; TT = 192
    p(f"""
    s_lshl_b32 s{sT0}, s{sRT}, 1
    s_add_u32 s{sT0}, s{sT0}, s{sKH}
    s_lshl_b32 s{sT0}, s{sT0}, 2
    s_add_u32 s{sT0}, s{sT0}, s{sKQ}
    s_lshl_b32 s{sT1}, s{sT0}, 15
    s_lshl_b32 s{sT2}, s{sCT}, 8
    s_add_u32 s{sT2}, s{sT1}, s{sT2}
    v_and_b32 v{vT0}, 15, v1
    v_lshrrev_b32 v{vT1}, 4, v1
    v_lshlrev_b32 v{vOut}, 11, v{vT0}
    v_lshl_add_u32 v{vOut}, v{vT1}, 4, v{vOut}
    v_add_u32 v{vOut}, s{sT2}, v{vOut}
    s_lshl_b32 s{sT2}, s{sCT}, 12
    s_add_u32 s{sT2}, s{sT1}, s{sT2}
    v_lshlrev_b32 v{vT2}, 4, v{vT0}
    v_lshl_add_u32 v{vT2}, v{vT1}, 8, v{vT2}
    v_add_u32 v{vT2}, s{sT2}, v{vT2}
    """)
    for u in range(4): p(f"global_load_dwordx4 v[{NR+4*u}:{NR+4*u+3}], v{vT2}, s[18:19] offset:{u*1024} sc1")
    for u in range(4): p(f"global_load_dwordx4 v[{XP+4*u}:{XP+4*u+3}], v{vOut}, s[74:75] offset:{u*64}")
    arrive("M_ARR0", 8)
    p("STAMPX1\ns_waitcnt vmcnt(0)")
    for j in range(16):
        p(f"v_lshlrev_b32 v{GG+2*j}, 16, v{NR+j}\nv_and_b32 v{GG+2*j+1}, 0xffff0000, v{NR+j}")
    for c in range(32): p(f"v_mul_f32 v{TT+c}, 0xbfb8aa3b, v{GG+c}")
    for c in range(32): p(f"v_exp_f32 v{TT+c}, v{TT+c}")
    for c in range(32): p(f"v_add_f32 v{TT+c}, 1.0, v{TT+c}")
    for c in range(32): p(f"v_rcp_f32 v{TT+c}, v{TT+c}")
    for c in range(32): p(f"v_mul_f32 v{GG+c}, v{GG+c}, v{TT+c}")
    for c in range(16): p(f"v_cvt_pk_bf16_f32 v{GP+c}, v{GG+2*c}, v{GG+2*c+1}")
    p("s_branch M_JOIN0")
    p.label("M_SEND0")
    WD = 144; GR = 176; GA = 192; AC = 200; T = 208; SW = 212
    p(f"""
    s_mul_i32 s{sT0}, s{sKG}, 224
    s_mul_i32 s{sT1}, s{sKQ}, 56
    s_add_u32 s{sT0}, s{sT0}, s{sT1}
    s_lshl_b32 s{sT1}, s{sT0}, 11
    s_lshl_b32 s{sT2}, s{sCG}, 7
    s_add_u32 s{sT1}, s{sT1}, s{sT2}
    v_lshrrev_b32 v{vT2}, 3, v1
    v_lshlrev_b32 v{vT2}, 11, v{vT2}
    v_and_b32 v{vT3}, 7, v1
    v_lshl_add_u32 v{vT2}, v{vT3}, 4, v{vT2}
    v_add_u32 v{vT2}, s{sT1}, v{vT2}
    v_min_u32 v{GA}, 55, v1
    v_add_lshl_u32 v{GA}, v{GA}, s{sT0}, 3
    v_add_u32 v{GA}, {WS_GU}, v{GA}
    v_mov_b32 v{vOut}, 0
    """)
    for q in range(1, 8): p(f"v_add_u32 v{GA+q}, {q*28672}, v{GA}")
    guld = "\n".join(f"global_load_dwordx2 v[{GR+2*q}:{GR+2*q+1}], v{GA+q}, s[18:19] sc1" for q in range(8))
    p(guld)
    for i in range(7):
        p(f"global_load_dwordx4 v[{WD+4*i}:{WD+4*i+3}], v{vT2}, s[16:17]")
        if i < 6: p(f"v_add_u32 v{vT2}, 0x4000, v{vT2}")
    arrive("M_ARR1", 15)
    p(f"STAMPX1\ns_mov_b32 s73, {SPIN_MAX}")
    p.label("M_POLL2")
    p("s_waitcnt vmcnt(0)")
    for q in range(8): p(f"v_xor_b32 v{GR+2*q+1}, s{sNON}, v{GR+2*q+1}")
    p(f"""
    v_or3_b32 v{GR+1}, v{GR+1}, v{GR+3}, v{GR+5}
    v_or3_b32 v{GR+7}, v{GR+7}, v{GR+9}, v{GR+11}
    v_or3_b32 v{GR+1}, v{GR+1}, v{GR+13}, v{GR+15}
    v_or_b32 v{GR+1}, v{GR+1}, v{GR+7}
    v_cmp_ne_u32 vcc, 0, v{GR+1}
    s_cbranch_vccz M_POLL2_OK
    s_sleep 10
    {guld}
    s_sub_u32 s73, s73, 1
    s_cmp_lg_u32 s73, 0
    s_cbranch_scc1 M_POLL2
    s_waitcnt vmcnt(0)
    """)
    p.label("M_POLL2_OK")
    p(f"v_mov_b32 v{GR+1}, v{GR+2}")
    for q in range(1, 4):
        p(f"v_add_f32 v{GR}, v{GR}, v{GR+4*q}\nv_add_f32 v{GR+1}, v{GR+1}, v{GR+4*q+2}")
    rbf(p, GR); rbf(p, GR + 1)
    silu(p, GR, GR, GR + 2)
    rbf(p, GR)
    p(f"v_mul_f32 v{GR}, v{GR}, v{GR+1}")
    rbf(p, GR)
    p(f"""
    s_lshl_b32 s{sT0}, s{sKQ}, 8
    s_add_u32 s{sT0}, s{sT0}, {L_H3}
    v_lshlrev_b32 v{vT0}, 2, v1
    v_add_u32 v{vT0}, s{sT0}, v{vT0}
    ds_write_b32 v{vT0}, v{GR}
    v_lshrrev_b32 v{vT1}, 3, v1
    v_lshlrev_b32 v{vT1}, 2, v{vT1}
    v_add_u32 v{vT1}, s{sT0}, v{vT1}
    s_waitcnt lgkmcnt(0)
    """)
    for i in range(7): p(f"ds_read_b32 v{GR+i}, v{vT1} offset:{i*32}")
    p("s_waitcnt lgkmcnt(0)")
    for i in range(7):
        for j in range(4):
            w = WD + 4 * i + j
            p(f"v_lshlrev_b32 v{T}, 16, v{w}\nv_and_b32 v{T+1}, 0xffff0000, v{w}")
            if i == 0: p(f"v_mul_f32 v{AC+2*j}, v{T}, v{GR}\nv_mul_f32 v{AC+2*j+1}, v{T+1}, v{GR}")
            else: p(f"v_fmac_f32 v{AC+2*j}, v{T}, v{GR+i}\nv_fmac_f32 v{AC+2*j+1}, v{T+1}, v{GR+i}")
    for c in range(8): p(f"v_add_f32_dpp v{AC+c}, v{AC+c}, v{AC+c} row_ror:8 row_mask:0xf bank_mask:0xf")
    for sw in ("v_permlane16_swap_b32", "v_permlane32_swap_b32"):
        for c in range(8): p(f"v_mov_b32 v{SW+c}, v{AC+c}")
        for c in range(8): p(f"{sw} v{AC+c}, v{SW+c}")
        for c in range(8): p(f"v_add_f32 v{AC+c}, v{AC+c}, v{SW+c}")
    p(f"""
    v_and_b32 v{vT0}, 7, v1
    v_lshlrev_b32 v{vT0}, 5, v{vT0}
    s_add_u32 s{sT0}, s{sT0}, 1024
    v_add_u32 v{vT0}, s{sT0}, v{vT0}
    ds_write_b128 v{vT0}, v[{AC}:{AC+3}]
    ds_write_b128 v{vT0}, v[{AC+4}:{AC+7}] offset:16
    v_mov_b32 v{vT0}, {CNT_B}
    v_mov_b32 v{vT1}, 1
    s_waitcnt lgkmcnt(0)
    s_mov_b64 exec, 1
    ds_add_rtn_u32 v{vT2}, v{vT0}, v{vT1}
    s_mov_b64 exec, -1
    s_waitcnt lgkmcnt(0)
    v_readfirstlane_b32 s{sT0}, v{vT2}
    s_cmp_lg_u32 s{sT0}, 3
    s_cbranch_scc1 M_JOIN0
    v_lshlrev_b32 v{vT0}, 2, v1
    v_add_u32 v{vT1}, {L_H3 + 1024}, v{vT0}
    ds_read_b32 v{GR}, v{vT1}
    ds_read_b32 v{GR+1}, v{vT1} offset:256
    ds_read_b32 v{GR+2}, v{vT1} offset:512
    ds_read_b32 v{GR+3}, v{vT1} offset:768
    s_lshl_b32 s{sT0}, s{sKG}, 13
    s_lshl_b32 s{sT1}, s{sCG}, 9
    s_add_u32 s{sT0}, s{sT0}, s{sT1}
    s_add_u32 s{sT0}, s{sT0}, {WS_YP}
    v_lshlrev_b32 v{vT0}, 1, v{vT0}
    v_add_u32 v{vT0}, s{sT0}, v{vT0}
    s_waitcnt lgkmcnt(0)
    v_add_f32 v{GR}, v{GR}, v{GR+1}
    v_add_f32 v{GR+2}, v{GR+2}, v{GR+3}
    v_add_f32 v{GR}, v{GR}, v{GR+2}
    v_mov_b32 v{GR+1}, s{sNON}
    global_store_dwordx2 v{vT0}, v[{GR}:{GR+1}], s[18:19] sc1
    """)
    p.label("M_JOIN0")
    p(f"""
    ST3_1
    s_lshr_b32 s{sT0}, s{sRT}, 1
    s_lshl_b32 s{sT0}, s{sT0}, 1
    s_add_u32 s{sT0}, s{sT0}, s{sKH}
    s_lshl_b32 s{sT0}, s{sT0}, 2
    s_add_u32 s{sT0}, s{sT0}, s{sKQ}
    s_lshl_b32 s{sT0}, s{sT0}, 9
    s_add_u32 s{sT0}, s{sT0}, {WS_FLG + 32768}
    v_and_b32 v{vFa}, 3, v1
    v_lshlrev_b32 v{vFa}, 7, v{vFa}
    v_add_u32 v{vFa}, s{sT0}, v{vFa}
    global_load_dword v{vFv}, v{vFa}, s[18:19] sc1
    v_lshlrev_b32 v{vAo}, 4, v1
    s_mov_b32 s{sIT}, 0
    v_lshrrev_b32 v{vT0}, 4, v1
    v_and_b32 v{vT1}, 3, v1
    v_bfe_u32 v{vT3}, v1, 2, 2
    v_lshlrev_b32 v{vRd}, 11, v{vT0}
    v_lshl_add_u32 v{vRd}, v{vT3}, 6, v{vRd}
    v_lshl_add_u32 v{vRd}, v{vT1}, 4, v{vRd}
    v_add_u32 v{vRd2}, s{sMb2}, v{vRd}
    v_add_u32 v{vRd}, s{sMb}, v{vRd}
    """)
    for i in range(128): p(f"v_mov_b32 v{AC3+i}, 0")
    p(f"""
    s_mov_b32 s73, {SPIN_MAX}
M_POLL1:
    s_waitcnt vmcnt(0)
    v_cmp_ne_u32 vcc, s{sNON}, v{vFv}
    s_cbranch_vccz M_POLL1_OK
    s_sleep 2
    global_load_dword v{vFv}, v{vFa}, s[18:19] sc1
    s_sub_u32 s73, s73, 1
    s_cmp_lg_u32 s73, 0
    s_cbranch_scc1 M_POLL1
M_POLL1_OK:
    ST3_2
    """)
    for sl in range(3):
        for i in range(4): p(oload(sl, i))
    p("ST3_3\ns_barrier\nST3_4\ns_waitcnt vmcnt(8)\nST3_5")
    ST(False)
    lq = Q("lgkmcnt", 15)
    if stamp: p("s_waitcnt lgkmcnt(0)")
    def wread(slot, f):
        u, e = f >> 1, f & 1
        r = WF + (f & 3) * 4
        for t in range(2):
            p(f"ds_read_b64_tr_b16 v[{r+2*t}:{r+2*t+1}], v{vRd2 if slot == 3 else vRd} offset:{slot*8192 + t*1024 + u*256 + e*8}")
            lq.issue(("W", f & 3, t))
    LAW = 3
    for f in range(LAW): wread(0, f)
    st0 = list(lq.q)
    p(".p2align 6")
    p.label("M_P3")
    for st in range(4):
        n = (st + 3) & 3
        L = [wdma(n, i, vW) for i in range(4)] + [oload(n, i) for i in range(4)]
        for f in range(8):
            fn = f + LAW; ns = st
            if fn >= 8: fn -= 8; ns = (st + 1) & 3
            lq.wait(p, ("W", f & 3, 1))
            for i in range(4):
                d = AC3 + (i * 8 + f) * 4; a = WF + (f & 3) * 4; b = OR + st * 16 + i * 4
                p(f"v_mfma_f32_16x16x32_bf16 v[{d}:{d+3}], v[{a}:{a+3}], v[{b}:{b+3}], v[{d}:{d+3}]")
                if i == 0: wread(ns, fn)
                if i == 2: p(L[f])
        if st == 3: p(f"s_add_u32 s{sIT}, s{sIT}, 1\ns_cmp_lt_u32 s{sIT}, 4")
        p("s_waitcnt vmcnt(12)\ns_barrier")
    assert lq.q == st0
    p(f"""
    s_cbranch_scc1 M_P3
    s_waitcnt vmcnt(0) lgkmcnt(0)
    s_lshl_b32 s{sT0}, s{sKQ}, 15
    v_add_u32 v{vRd}, s{sT0}, v{vAo}
    s_lshl_b32 s{sT0}, s{sKQ}, 13
    v_add_u32 v{vT0}, s{sT0}, v{vAo}
    v_add_u32 v{vT1}, 0x10000, v{vT0}
    s_barrier
    """)
    ST(False)
    RD = 64
    def red_write():
        for q in range(32): p(f"ds_write_b128 v{vRd}, v[{AC3+4*q}:{AC3+4*q+3}] offset:{q*1024}")
        p("s_waitcnt lgkmcnt(0)")
    def red_read(dst):
        for half in range(2):
            for mw in range(4):
                for ff in range(4):
                    f = half * 4 + ff
                    r = RD + (mw * 4 + ff) * 4
                    p(f"ds_read_b128 v[{r}:{r+3}], v{vT1 if mw >= 2 else vT0} offset:{(mw & 1)*32768 + f*1024}")
            p("s_waitcnt lgkmcnt(8)")
            for c in range(16): p(f"v_add_f32 v{RD+c}, v{RD+c}, v{RD+16+c}")
            p("s_waitcnt lgkmcnt(0)")
            for c in range(16): p(f"v_add_f32 v{RD+32+c}, v{RD+32+c}, v{RD+48+c}")
            for c in range(16): p(f"v_add_f32 v{dst+half*16+c}, v{RD+c}, v{RD+32+c}")
    p(f"""
    s_cmp_eq_u32 s{sMH}, s{sKH}
    s_cbranch_scc1 M_KEEP1
    """)
    red_write()
    p("s_barrier")
    p(f"""
    s_lshl_b32 s{sT0}, s2, 2
    s_add_u32 s{sT0}, s{sT0}, s{sKQ}
    s_lshl_b32 s{sT1}, s{sT0}, 13
    s_add_u32 s{sT1}, s{sT1}, {WS_EX}
    v_add_u32 v{vFa}, s{sT1}, v{vAo}
    v_add_u32 v{vFv}, 4096, v{vFa}
    s_lshl_b32 s{sT0}, s{sT0}, 7
    s_add_u32 s{sT0}, s{sT0}, {WS_FLG2}
    v_mov_b32 v{vT2}, s{sT0}
    v_mov_b32 v{vT3}, s{sNON}
    """)
    red_read(AC3)
    for f in range(8):
        p(f"global_store_dwordx4 v{vFv if f >= 4 else vFa}, v[{AC3+4*f}:{AC3+4*f+3}], s[18:19] offset:{(f&3)*1024} sc1")
    p(f"""
    s_barrier
    s_waitcnt vmcnt(0)
    s_mov_b64 exec, 1
    global_store_dword v{vT2}, v{vT3}, s[18:19] sc1
    s_mov_b64 exec, -1
    """)
    if stamp:
        p("s_memrealtime s[98:99]")
        stamp_out(p, 0x3000000)
    p("s_branch K2_END")
    p.label("M_KEEP1")
    p(f"""
    s_barrier
    s_xor_b32 s{sT0}, s2, 128
    s_lshl_b32 s{sT0}, s{sT0}, 2
    s_add_u32 s{sT0}, s{sT0}, s{sKQ}
    s_lshl_b32 s{sT1}, s{sT0}, 13
    s_add_u32 s{sT1}, s{sT1}, {WS_EX}
    v_add_u32 v{vFa}, s{sT1}, v{vAo}
    v_add_u32 v{vFv}, 4096, v{vFa}
    s_lshl_b32 s{sT0}, s{sT0}, 7
    s_add_u32 s{sT0}, s{sT0}, {WS_FLG2}
    v_mov_b32 v{vT2}, s{sT0}
    s_barrier
    """)
    red_write()
    p("s_barrier")
    p(f"global_load_dword v{vT3}, v{vT2}, s[18:19] sc1")
    red_read(AC3)
    p(f"""
    s_lshl_b32 s{sT0}, s{sRT}, 1
    s_add_u32 s{sT0}, s{sT0}, s{sKH}
    s_lshl_b32 s{sT0}, s{sT0}, 2
    s_add_u32 s{sT0}, s{sT0}, s{sKQ}
    s_lshr_b32 s{sT1}, s{sIDX}, 4
    s_cmp_lg_u32 s{sT0}, s{sT1}
    s_cbranch_scc1 M_H5
    s_mov_b32 s73, {SPIN_MAX}
M_POLL3:
    s_lshl_b32 s{sT0}, s{sCT}, 10
    s_add_u32 s{sT0}, s{sT0}, {WS_YP}
    v_add_u32 v26, s{sT0}, v{vAo}
    """)
    YR = 64
    for q in range(16):
        p(f"global_load_dwordx4 v[{YR+4*q}:{YR+4*q+3}], v26, s[18:19] sc1")
        if q < 15: p(f"v_add_u32 v26, 8192, v26")
    p(f"s_waitcnt vmcnt(0)\nv_mov_b32 v27, 0")
    for q in range(16):
        p(f"v_xor_b32 v{YR+4*q+1}, s{sNON}, v{YR+4*q+1}\nv_xor_b32 v{YR+4*q+3}, s{sNON}, v{YR+4*q+3}")
        p(f"v_or3_b32 v27, v27, v{YR+4*q+1}, v{YR+4*q+3}")
    p(f"""
    v_cmp_ne_u32 vcc, 0, v27
    s_cbranch_vccz M_POLL3_OK
    s_sleep 10
    s_sub_u32 s73, s73, 1
    s_cmp_lg_u32 s73, 0
    s_cbranch_scc1 M_POLL3
M_POLL3_OK:
    s_lshr_b32 s{sT0}, s{sIDX}, 4
    s_lshl_b32 s{sT0}, s{sT0}, 15
    s_lshl_b32 s{sT1}, s{sCT}, 12
    s_add_u32 s{sT0}, s{sT0}, s{sT1}
    s_and_b32 s{sT1}, s{sIDX}, 15
    s_lshl_b32 s{sT1}, s{sT1}, 4
    s_add_u32 s{sT0}, s{sT0}, s{sT1}
    v_lshrrev_b32 v26, 2, v1
    v_lshlrev_b32 v26, 8, v26
    v_and_b32 v27, 3, v1
    v_lshl_add_u32 v26, v27, 2, v26
    v_add_u32 v26, s{sT0}, v26
    global_load_dword v24, v26, s[18:19] sc1
    s_and_b32 s{sT0}, s{sKEY}, 0xffff0000
    s_ashr_i32 s{sT1}, s{sT0}, 31
    s_not_b32 s{sT1}, s{sT1}
    s_or_b32 s{sT1}, s{sT1}, 0x80000000
    s_xor_b32 s{sT0}, s{sT0}, s{sT1}
    s_and_b32 s{sT0}, s{sT0}, 0xffff0000
    v_mov_b32 v25, s{sT0}
    v_mul_f32 v25, 0xbfb8aa3b, v25
    v_exp_f32 v25, v25
    v_add_f32 v25, 1.0, v25
    v_rcp_f32 v25, v25
    """)
    rbf(p, 25)
    p(f"v_mov_b32 v16, v{YR}\nv_mov_b32 v17, v{YR+2}")
    for q in range(1, 16):
        p(f"v_add_f32 v16, v16, v{YR+4*q}\nv_add_f32 v17, v17, v{YR+4*q+2}")
    p("s_waitcnt vmcnt(0)\nv_lshlrev_b32 v18, 16, v24\nv_and_b32 v19, 0xffff0000, v24")
    for c in range(2):
        rbf(p, 16 + c)
        p(f"v_mul_f32 v{16+c}, v{16+c}, v25")
        rbf(p, 16 + c)
        p(f"v_add_f32 v{16+c}, v{16+c}, v{18+c}")
        rbf(p, 16 + c)
        silu(p, 16 + c, 16 + c, 20 + c)
    p(f"""
    v_cvt_pk_bf16_f32 v16, v16, v17
    v_lshlrev_b32 v26, 2, v1
    v_add_u32 v26, {L_H3 + 4096}, v26
    ds_write_b32 v26, v16
    v_lshrrev_b32 v27, 4, v1
    v_lshlrev_b32 v27, 4, v27
    v_add_u32 v27, {L_H3 + 4096}, v27
    v_and_b32 v26, 15, v1
    s_and_b32 s{sT0}, s{sIDX}, 15
    v_cmp_eq_u32 vcc, s{sT0}, v26
    s_waitcnt lgkmcnt(0)
    """)
    for u in range(4): p(f"ds_read_b128 v[{96+4*u}:{99+4*u}], v27 offset:{u*64}")
    p("s_waitcnt lgkmcnt(0)")
    for c in range(16): p(f"v_cndmask_b32 v{GP+c}, v{GP+c}, v{96+c}, vcc")
    p.label("M_H5")
    XU = 160; GU_ = 192; PR = 64
    for j in range(16):
        p(f"v_lshlrev_b32 v{XU+2*j}, 16, v{XP+j}\nv_and_b32 v{XU+2*j+1}, 0xffff0000, v{XP+j}")
        p(f"v_lshlrev_b32 v{GU_+2*j}, 16, v{GP+j}\nv_and_b32 v{GU_+2*j+1}, 0xffff0000, v{GP+j}")
    p(f"""
    s_mov_b32 s73, {SPIN_MAX}
M_POLL4:
    s_waitcnt vmcnt(0)
    v_cmp_ne_u32 vcc, s{sNON}, v{vT3}
    s_cbranch_vccz M_POLL4_OK
    s_sleep 1
    global_load_dword v{vT3}, v{vT2}, s[18:19] sc1
    s_sub_u32 s73, s73, 1
    s_cmp_lg_u32 s73, 0
    s_cbranch_scc1 M_POLL4
M_POLL4_OK:
    """)
    for f in range(8):
        p(f"global_load_dwordx4 v[{PR+4*f}:{PR+4*f+3}], v{vFv if f >= 4 else vFa}, s[18:19] offset:{(f&3)*1024} sc1")
    for u in range(4):
        p(f"s_waitcnt vmcnt({6 - 2*u + u})")
        for c in range(8): p(f"v_add_f32 v{AC3+8*u+c}, v{AC3+8*u+c}, v{PR+8*u+c}")
        for c in range(8): p(f"v_fmac_f32 v{XU+8*u+c}, v{AC3+8*u+c}, v{GU_+8*u+c}")
        o = 16 + u * 4
        for j in range(4): p(f"v_cvt_pk_bf16_f32 v{o+j}, v{XU+u*8+2*j}, v{XU+u*8+2*j+1}")
        p(f"global_store_dwordx4 v{vOut}, v[{o}:{o+3}], s[78:79] offset:{u*64}")
    if stamp:
        p("s_waitcnt vmcnt(0)\ns_memrealtime s[98:99]")
        stamp_out(p, 0x3000000)

def stamp_out(p, base):
    p(f"""
    s_waitcnt lgkmcnt(0)
    s_lshl_b32 s{sT0}, s2, 3
    s_add_u32 s{sT0}, s{sT0}, s{sW}
    s_lshl_b32 s{sT0}, s{sT0}, 6
    s_add_u32 s{sT0}, s{sT0}, {base}
    v_mov_b32 v{vT0}, s{sT0}
    """)
    for i in range(10):
        p(f"v_mov_b32 v{vT1}, s{80+2*i}\nglobal_store_dword v{vT0}, v{vT1}, s[18:19] offset:{4*i}")

def gen_mega(ffn=True, slow=True, stamp=False, dbg=()):
    p = Prog()
    stamps = []
    mode0 = 'st0' in dbg or 'st1' in dbg
    MODE0[0] = mode0
    MODE3[0] = 'st3' in dbg
    def ST0():
        if stamp and mode0 and 'st1' not in dbg:
            i = len(stamps); stamps.append(i)
            p(f"s_memtime s[{80+2*i}:{81+2*i}]")
    global _ST0
    _ST0 = ST0
    def ST(wait=True):
        if stamp and mode0 and len(stamps) > 0:
            if wait: p("s_waitcnt lgkmcnt(0)")
            return
        if stamp:
            i = len(stamps); stamps.append(i)
            p(f"s_memtime s[{80+2*i}:{81+2*i}]")
            if i == 0: p("s_memrealtime s[96:97]")
            if wait: p("s_waitcnt lgkmcnt(0)")
    name = KNAME
    kernel_header(p, name)
    p(f"""
    s_cmp_ge_u32 s2, 256
    s_cbranch_scc1 K2_END
    s_load_dwordx2 s[74:75], s[0:1], 0
    s_load_dwordx2 s[76:77], s[0:1], 48
    s_load_dwordx4 s[8:11], s[0:1], 24
    s_load_dwordx2 s[18:19], s[0:1], 96
    s_load_dwordx4 s[4:7], s[0:1], 8
    s_load_dwordx4 s[12:15], s[0:1], 56
    s_load_dwordx2 s[16:17], s[0:1], 72
    s_load_dwordx2 s[78:79], s[0:1], 80
    s_load_dwordx2 s[66:67], s[0:1], 88
    s_getpc_b64 s[{sPC}:{sPC+1}]
    v_lshrrev_b32 v{vT2}, 6, v0
    v_and_b32 v1, 63, v0
    v_readfirstlane_b32 s{sW}, v{vT2}
    s_and_b32 s{sT0}, s2, 7
    s_lshr_b32 s{sT1}, s2, 3
    s_lshr_b32 s{sG}, s{sT0}, 1
    s_and_b32 s{sT0}, s{sT0}, 1
    s_lshl_b32 s{sT0}, s{sT0}, 2
    s_lshr_b32 s{sT2}, s{sT1}, 3
    s_add_u32 s{sRB}, s{sT0}, s{sT2}
    s_and_b32 s{sT1}, s{sT1}, 7
    s_lshl_b32 s{sHEAD}, s{sG}, 3
    s_add_u32 s{sHEAD}, s{sHEAD}, s{sT1}
    s_lshl_b32 s{sFL}, s{sRB}, 5
    s_add_u32 s{sFL}, s{sFL}, s{sHEAD}
    """)
    ST(False)
    p(f"""
    v_lshlrev_b32 v{E+1}, 7, v0
    v_min_u32 v{E+1}, CODESIZE, v{E+1}
    global_load_dword v{E}, v{E+1}, s[{sPC}:{sPC+1}]
    v_lshrrev_b32 v{vT0}, 4, v1
    v_and_b32 v{vT1}, 3, v1
    v_lshlrev_b32 v{vT1}, 4, v{vT1}
    v_lshl_add_u32 v{vT1}, v{vT0}, 6, v{vT1}
    v_bfe_u32 v{vT3}, v1, 2, 2
    v_lshl_add_u32 v{vDq}, v{vT3}, 13, v{vT1}
    v_and_b32 v{vDq2}, 1, v{vT2}
    v_lshlrev_b32 v{vDq2}, 5, v{vDq2}
    v_xor_b32 v{vDq}, v{vDq}, v{vDq2}
    v_add_u32 v{vDq2}, {32768-1024}, v{vDq}
    v_lshrrev_b32 v{vXB1}, 3, v1
    v_and_b32 v{vXD}, 7, v1
    v_xor_b32 v{vXD}, v{vXD}, v{vT0}
    v_lshlrev_b32 v{vXD}, 4, v{vXD}
    v_lshl_add_u32 v{vXD}, v{vXB1}, 11, v{vXD}
    v_xor_b32 v{vXD+1}, 64, v{vXD}
    v_add_u32 v{vXD+1}, {16384-1024}, v{vXD+1}
    v_add_u32 v{vXD+2}, {32768-2048}, v{vXD}
    v_add_u32 v{vXD+3}, {32768-2048}, v{vXD+1}
    s_lshl_b32 s{sXM}, s{sW}, 12
    s_add_u32 s{sXM}, s{sXM}, {L_X}
    s_lshl_b32 s{sWq}, s{sW}, 16
    s_lshl_b32 s{sM}, s{sW}, 11
    s_mov_b32 s{sB}, 0
    s_lshl_b32 s{sT0}, s{sHEAD}, 8
    s_lshl_b32 s{sT1}, s{sRB}, 3
    s_add_u32 s{sT1}, s{sT1}, s{sW}
    s_lshl_b32 s{sT1}, s{sT1}, 16
    s_mov_b32 s{SRD_WQ+3}, 0x20000
    s_sub_u32 s{SRD_WQ+2}, 0x800000, s{sT0}
    s_mov_b32 s{SRD_XN+2}, 0x10000
    s_mov_b32 s{SRD_XN+3}, 0x20000
    s_memrealtime s[{sT2}:{sT3}]
    s_waitcnt lgkmcnt(0)
    s_add_u32 s{SRD_WQ}, s8, s{sT0}
    s_addc_u32 s{SRD_WQ+1}, s9, 0
    s_add_u32 s{SRD_XN}, s74, s{sT1}
    s_addc_u32 s{SRD_XN+1}, s75, 0
    """)
    def dma_wq(slot, e):
        if e == 0:
            return f"""s_add_u32 m0, s{sM}, {slot*16384}
    s_nop 0
    buffer_load_dwordx4 v{vDq}, s[{SRD_WQ}:{SRD_WQ+3}], s{sWq} offen lds"""
        return f"""s_add_u32 m0, s{sM}, {slot*16384}
    s_nop 0
    buffer_load_dwordx4 v{vDq2}, s[{SRD_WQ}:{SRD_WQ+3}], s{sWq} offen offset:1024 lds
    s_add_u32 s{sWq}, s{sWq}, 524288"""
    def load_b(buf, k):
        t = ""
        if k == 0: t = f"s_add_u32 m0, s{sXM}, {(buf & 1)*32768}\ns_nop 0\n"
        t += f"buffer_load_dwordx4 v{vXD+k}, s[{SRD_XN}:{SRD_XN+3}], s{sB} offen offset:{k*1024} lds"
        if k == 3: t += f"\ns_add_u32 s{sB}, s{sB}, 128"
        return t
    lq = Q("lgkmcnt", 15); vq = Q("vmcnt", 63)
    vq.issue(("CP", 0))
    def J(tag, code): p(code); vq.issue(tag)
    J(("W", 0, 0), dma_wq(0, 0)); J(("W", 0, 1), dma_wq(0, 1))
    for kk in range(4): J(("X", 0, kk), load_b(0, kk))
    J(("W", 1, 0), dma_wq(1, 0)); J(("W", 1, 1), dma_wq(1, 1))
    ST0()
    p("s_barrier")
    for kk in range(4): J(("X", 1, kk), load_b(1, kk))
    J(("W", 2, 0), dma_wq(2, 0)); J(("W", 2, 1), dma_wq(2, 1))
    p(f"""
    s_or_b32 s{sT3}, s2, s{sW}
    s_cmp_lg_u32 s{sT3}, 0
    s_cbranch_scc1 M_NONZ
    s_or_b32 s{sT2}, s{sT2}, 1
    v_mov_b32 v{E+2}, 0
    v_mov_b32 v{E+3}, s{sT2}
    s_mov_b64 exec, 1
    global_store_dword v{E+2}, v{E+3}, s[66:67] sc1
    s_mov_b64 exec, -1
M_NONZ:
    v_lshlrev_b32 v{E+2}, 4, v1
    v_lshl_add_u32 v{E+3}, v{vT2}, 11, v{E+2}
    s_lshl_b32 s{sT2}, s{sFL}, 14
    v_add_u32 v{E+3}, s{sT2}, v{E+3}
    v_bfe_u32 v{E+1}, v0, 4, 3
    v_lshlrev_b32 v{E+1}, 13, v{E+1}
    v_lshrrev_b32 v{vNON}, 7, v0
    v_lshl_add_u32 v{E+1}, v{vNON}, 19, v{E+1}
    v_and_b32 v{vNON}, 15, v0
    v_lshl_add_u32 v{E+1}, v{vNON}, 4, v{E+1}
    s_lshl_b32 s{sT2}, s{sRB}, 16
    v_add_u32 v{vCSA}, s{sT2}, v{E+1}
    v_mov_b32 v{vLXA}, v{E+3}
    """)
    LXj = lambda n: (("LX", n), f"global_load_dwordx4 v[{LN_X+4*n}:{LN_X+4*n+3}], v{vLXA}, s[74:75] offset:{n*1024}")
    CSj = lambda n: (("CS", n), f"s_mov_b32 s{sT3}, {n*0x200000}\nbuffer_load_dwordx4 v[{CSR+4*n}:{CSR+4*n+3}], v{vCSA}, s[{SRD_WQ}:{SRD_WQ+3}], s{sT3} offen")
    WRj = lambda n: (("LX", 2 + n), f"v_lshlrev_b32 v{E+2}, 4, v1\nglobal_load_dwordx4 v[{LN_W+4*n}:{LN_W+4*n+3}], v{E+2}, s[76:77] offset:{n*1024}")
    J(*LXj(0)); J(*CSj(1))
    ST0()
    p(f"""
    v_bfe_u32 v{vXB1}, v1, 1, 3
    v_xor_b32 v{vXB1}, v{vXB1}, v{vT0}
    v_lshlrev_b32 v{vXB1}, 4, v{vXB1}
    v_and_b32 v{vXB0}, 15, v1
    v_lshl_add_u32 v{vXB0}, v{vXB0}, 7, v{vXB1}
    v_add_u32 v{vXB0}, s{sXM}, v{vXB0}
    v_xor_b32 v{vXB1}, 64, v{vXB0}
    v_lshl_add_u32 v{vDv}, v{vT3}, 8, v{vT1}
    v_mul_u32_u24 v{vDf}, {8*7168}, v{vT0}
    v_and_b32 v{vT1}, 15, v1
    v_lshl_add_u32 v{vDf}, v{vT1}, 4, v{vDf}
    v_and_b32 v{vT0}, 3, v1
    v_lshrrev_b32 v{vT1}, 2, v1
    v_lshlrev_b32 v{vT1}, 4, v{vT1}
    v_lshl_add_u32 v{vDk}, v{vT0}, 8, v{vT1}
    v_lshrrev_b32 v{vT1}, 4, v1
    v_lshlrev_b32 v{vA0}, 11, v{vT1}
    v_lshl_add_u32 v{vA0}, v{vT3}, 6, v{vA0}
    v_lshl_add_u32 v{vA0}, v{vT0}, 3, v{vA0}
    v_and_b32 v{vT1}, 1, v{vT1}
    v_lshl_add_u32 v{vA0}, v{vT1}, 5, v{vA0}
    v_xor_b32 v{vA1}, 32, v{vA0}
    v_bfe_u32 v{vT0}, v1, 1, 1
    v_and_b32 v{vT2}, 1, v1
    v_lshl_add_u32 v{vT0}, v{vT2}, 1, v{vT0}
    v_lshl_add_u32 v{vT0}, v{vT1}, 2, v{vT0}
    v_lshlrev_b32 v{vT0}, 3, v{vT0}
    v_lshl_add_u32 v{vT0}, v{vT3}, 6, v{vT0}
    v_lshrrev_b32 v{vT1}, 5, v1
    v_lshl_add_u32 v{vVa}, v{vT1}, 10, v{vT0}
    v_add_u32 v{vVb}, {L_X}, v{vVa}
    v_bfe_u32 v{vT0}, v1, 2, 3
    v_mul_u32_u24 v{vT0}, 1088, v{vT0}
    v_lshl_add_u32 v{vT0}, v{vT1}, 6, v{vT0}
    v_and_b32 v{vKb}, 3, v1
    v_lshl_add_u32 v{vKb}, v{vKb}, 4, v{vT0}
    v_add_u32 v{vKh}, {L_HI}, v{vKb}
    v_add_u32 v{vKb}, {L_X}, v{vKb}
    v_bfe_u32 v{vT0}, v1, 4, 1
    v_lshlrev_b32 v{vT0}, 10, v{vT0}
    v_lshl_add_u32 v{vT0}, v{vT1}, 8, v{vT0}
    v_and_b32 v{vO}, 15, v1
    v_lshl_add_u32 v{vO}, v{vO}, 4, v{vT0}
    s_lshl_b32 s{sT0}, s{sG}, 19
    s_add_u32 s{sT0}, s{sT0}, 393216
    s_add_u32 s{SRD_K}, s4, s{sT0}
    s_addc_u32 s{SRD_K+1}, s5, 0
    s_mov_b32 s{SRD_K+2}, 0x20000
    s_mov_b32 s{SRD_K+3}, 0x20000
    s_add_u32 s{SRD_V}, s6, s{sT0}
    s_addc_u32 s{SRD_V+1}, s7, 0
    s_mov_b32 s{SRD_V+2}, 0x20000
    s_mov_b32 s{SRD_V+3}, 0x20000
    s_add_u32 s{SRD_OT}, s18, {WS_OT}
    s_addc_u32 s{SRD_OT+1}, s19, 0
    s_mov_b32 s{SRD_OT+2}, 0x1000000
    s_mov_b32 s{SRD_OT+3}, 0x20000
    s_mul_i32 s{sKw}, s{sW}, 1088
    s_lshl_b32 s{sVw}, s{sW}, 10
    s_mov_b32 s{sKsrc}, s{sVw}
    s_mov_b32 s{sVsrc}, s{sVw}
    s_mov_b32 s{sN}, 0
    s_mov_b32 s{sPL}, 0x05040100
    s_mov_b32 s{sPH}, 0x07060302
    s_lshr_b32 s{sT0}, s2, 2
    s_and_b32 s{sT1}, s2, 3
    s_cmp_ge_u32 s{sT0}, 28
    s_cselect_b32 s{SRD_F}, s14, s12
    s_cselect_b32 s{SRD_F+1}, s15, s13
    s_cselect_b32 s{sT2}, 28, 0
    s_sub_u32 s{sT2}, s{sT0}, s{sT2}
    s_lshl_b32 s{sT2}, s{sT2}, 8
    s_mul_i32 s{sT3}, s{sT1}, {256*7168}
    s_add_u32 s{sT2}, s{sT2}, s{sT3}
    s_add_u32 s{SRD_F}, s{SRD_F}, s{sT2}
    s_addc_u32 s{SRD_F+1}, s{SRD_F+1}, 0
    s_cmp_lt_u32 s2, 224
    s_cselect_b32 s{SRD_F+2}, {255*7168+256}, 0
    s_mov_b32 s{SRD_F+3}, 0x20000
    s_mul_i32 s{sFsrc}, s{sW}, {32*7168}
    s_lshl_b32 s{sOT}, s{sHEAD}, 19
    s_lshl_b32 s{sT1}, s{sRB}, 14
    s_add_u32 s{sOT}, s{sOT}, s{sT1}
    s_lshl_b32 s{sT1}, s{sW}, 11
    s_add_u32 s{sOT}, s{sOT}, s{sT1}
    """)
    ST0()
    vq.wait(p, ("W", 1, 1))
    ST0()
    p("s_barrier")
    ST0()
    if 'st1' in dbg: p("s_memtime s[80:81]")
    ST()
    def a_read(slot, T, u, t):
        r = AF + (T & 3) * 8 + u * 4 + t * 2
        p(f"ds_read_b64_tr_b16 v[{r}:{r+1}], v{vA1 if T & 1 else vA0} offset:{slot*16384 + u*8192 + t*1024 + (T>>1)*256}")
        lq.issue(("A", T & 3, u, t))
    def job_k(t):
        return (("K", t), f"""s_add_u32 m0, s{sKw}, {Kabs(t)}
    s_nop 0
    buffer_load_dwordx4 v{vDk}, s[{SRD_K}:{SRD_K+3}], s{sKsrc} offen lds
    s_add_u32 s{sKsrc}, s{sKsrc}, 8192""")
    def job_v(t):
        return (("V", t), f"""s_add_u32 m0, s{sVw}, {Vabs(t)}
    s_nop 0
    buffer_load_dwordx4 v{vDv}, s[{SRD_V}:{SRD_V+3}], s{sVsrc} offen lds
    s_add_u32 s{sVsrc}, s{sVsrc}, 8192""")
    def job_f(i):
        return (("F", i), f"""buffer_load_dwordx4 v[{FR+4*i}:{FR+4*i+3}], v{vDf}, s[{SRD_F}:{SRD_F+3}], s{sFsrc} offen
    s_add_u32 s{sFsrc}, s{sFsrc}, 7168""")
    def run(job):
        if not job: return
        if isinstance(job, str): p(job); return
        if callable(job): job(); return
        tag, code = job
        p(code); vq.issue(tag)
    def k_read(t, j):
        if 'nok' in dbg: return
        r = KF + (j % D) * 4
        ka = Kabs(t); kb, ko = (vKh, ka - L_HI) if ka >= L_HI else (vKb, ka - L_X)
        p(f"ds_read_b128 v[{r}:{r+3}], v{kb} offset:{ko + j*128}")
        lq.issue(("K", j % D))
    def v_read(t, i):
        if 'nov' in dbg: return
        ks, dt = i >> 2, i & 3
        r = VF + (i % D) * 4
        o = Vabs(t); va = vVa
        if o >= L_X: o -= L_X; va = vVb
        p(f"ds_read_b64_tr_b16 v[{r}:{r+1}], v{va} offset:{o + ks*4096 + dt*256}")
        lq.issue(("Va", i % D))
        p(f"ds_read_b64_tr_b16 v[{r+2}:{r+3}], v{va} offset:{o + ks*4096 + 2048 + dt*256}")
        lq.issue(("V", i % D))
    LA = 2
    def b_read(buf, k):
        ct, u = k >> 1, k & 1
        r = BRr(buf, k)
        p(f"ds_read_b128 v[{r}:{r+3}], v{vXB1 if u else vXB0} offset:{(buf & 1)*32768 + ct*2048}")
        lq.issue(("B", buf & 1, k))
    for T in range(LA):
        for u in range(2):
            for t in range(2): a_read(0, T, u, t)
        b_read(0, 2 * T); b_read(0, 2 * T + 1)
    fill = []
    FILLRATE = 2
    LNSTART = 3
    for d_ in dbg:
        if d_.startswith('fr'): FILLRATE = float(d_[2:])
    fillacc = [0.0]
    def stage(slot, vm, last=False, xw="s_waitcnt vmcnt(8)", first=False, vm2=()):
        for T in range(8):
            a = AF + (T & 3) * 8
            Tn = T + LA; ns = slot
            if Tn >= 8: Tn -= 8; ns = (slot + 1) & 3
            rd = not (last and T + LA >= 8)
            k = 0
            for ct in range(2):
                for u in range(2):
                    d = QA + (T * 2 + ct) * 4; b = BRr(slot, ct * 2 + u)
                    lq.wait(p, ("A", T & 3, u, 1), ("B", slot & 1, ct * 2 + u))
                    cc = "0" if (first and u == 0) else f"v[{d}:{d+3}]"
                    p(f"v_mfma_f32_16x16x32_bf16 v[{d}:{d+3}], v[{a+4*u}:{a+4*u+3}], v[{b}:{b+3}], {cc}")
                    if rd: a_read(ns, Tn, k >> 1, k & 1)
                    fillacc[0] += FILLRATE
                    while fillacc[0] >= 1.0:
                        fillacc[0] -= 1.0
                        if fill: run(fill.pop(0))
                    if k == 1 and T < len(vm2): run(vm2[T])
                    k += 1
            if T < len(vm): run(vm[T])
            if not last:
                if T == 6:
                    run(xw); b_read(slot + 1, 0); b_read(slot + 1, 1)
                if T == 7:
                    b_read(slot + 1, 2); b_read(slot + 1, 3)
    def std_vm(slot):
        n = (slot + 3) & 3
        return [load_b(slot, 0), load_b(slot, 1), load_b(slot, 2), load_b(slot, 3), dma_wq(n, 0), dma_wq(n, 1)]
    xwait = lambda tag: (lambda: vq.wait(p, tag))
    def tagged(i):
        sv = std_vm(i & 3)
        return [(("X", i + 2, kk), sv[kk]) for kk in range(4)] + [(("W", i + 3, 0), sv[4]), (("W", i + 3, 1), sv[5])]
    kvpf = (("KP", 0), f"""s_lshr_b32 s{sT2}, s{sFL}, 6
    s_lshl_b32 s{sT2}, s{sT2}, 19
    s_and_b32 s{sT3}, s{sFL}, 63
    s_lshl_b32 s{sT3}, s{sT3}, 11
    s_add_u32 s{sT2}, s{sT2}, s{sT3}
    s_add_u32 s{sT2}, s{sT2}, 393216
    v_lshlrev_b32 v{E+3}, 2, v0
    v_add_u32 v{E+3}, s{sT2}, v{E+3}
    global_load_dword v{E}, v{E+3}, s[4:5]""")
    kvpf2 = (("KP", 1), f"global_load_dword v{E}, v{E+3}, s[6:7]")
    nonld = (("NN", 0), f"v_mov_b32 v{E+2}, 0\nglobal_load_dword v{vNON}, v{E+2}, s[66:67] sc1")
    def nonchk():
        vq.wait(p, ("NN", 0))
        p(f"""
    v_readfirstlane_b32 s{sNON}, v{vNON}
    s_cmp_lg_u32 s{sNON}, 0
    s_cbranch_scc1 M_NSPIN_OK
    v_mov_b32 v{E+2}, 0
    """)
        get_nonce(p, "M_NSPIN", E + 2, vNON)
    partA, partB = ln_segments(lq, vq, p)
    if 'noln' in dbg:
        keep = lambda x: callable(x) or not ("_f32" in x or "0xffff0000" in x or ", 16, v" in x or "swap" in x)
        partA = [x for x in partA if keep(x)]; partB = [x for x in partB if keep(x)]
    seg1, seg2 = pub_segments(lq, vq, p)
    extra1 = {0: [CSj(0)], 1: [LXj(1), CSj(2)], 2: [CSj(3), nonld], 3: [WRj(0), WRj(1)], 4: [nonchk, kvpf], 5: [kvpf2]}
    state = "A"
    for i in range(12):
        ex = list(extra1.get(i, []))
        if i == 0: fill.extend(partA[:21])
        if i == LNSTART: fill.extend(partA[21:])
        stage(i & 3, tagged(i) + ex, xw=xwait(("X", i + 1, 3)), first=(i == 0))
        vq.wait(p, ("W", i + 2, 1))
        if state == "A" and not fill and i > LNSTART:
            lq.wait(p, ("LW", 5)); state = "B"; fill.extend(seg1 + partB); print("LN A done at stage", i)
        elif state == "B" and not fill:
            lq.wait(p, ("LW", 2)); state = "C"; fill.extend(seg2); print("LN B done at stage", i)
        elif state == "C" and not fill:
            state = "done"
        p("s_barrier")
        if 'st1' in dbg and i in (0, 1, 2, 4, 6, 8, 11):
            n_ = (0, 1, 2, 4, 6, 8, 11).index(i) + 1
            p(f"s_memtime s[{80+2*n_}:{81+2*n_}]\ns_waitcnt lgkmcnt(0)")
    assert state == "done" and not fill, (state, len(fill))
    sv = std_vm(0)
    stcode = f"""s_lshl_b32 s{sT0}, s{sRB}, 3
    s_add_u32 s{sT0}, s{sT0}, s{sW}
    s_lshl_b32 s{sT0}, s{sT0}, 8
    s_add_u32 s{sT0}, s{sT0}, {WS_ST}
    v_and_b32 v{vT0}, 15, v1
    v_lshlrev_b32 v{vT0}, 3, v{vT0}
    v_add_u32 v{vT0}, s{sT0}, v{vT0}
    global_load_dwordx2 v[250:251], v{vT0}, s[18:19] sc1
    global_load_dwordx2 v[252:253], v{vT0}, s[18:19] offset:128 sc1
    s_lshl_b32 s{sT0}, s{sHEAD}, 13
    s_lshl_b32 s{sT1}, s{sW}, 7
    s_add_u32 s{sT0}, s{sT0}, s{sT1}
    s_add_u32 s{sT0}, s{sT0}, {WS_CS}
    v_lshrrev_b32 v{vT1}, 3, v1
    v_lshlrev_b32 v{vT1}, 10, v{vT1}
    v_and_b32 v{vT2}, 7, v1
    v_lshl_add_u32 v{vT1}, v{vT2}, 4, v{vT1}
    v_add_u32 v{vT1}, s{sT0}, v{vT1}
    global_load_dwordx4 v[{E}:{E+3}], v{vT1}, s[18:19] sc1"""
    stchk = f"""v_xor_b32 v{vT0}, s{sNON}, v251
    v_xor_b32 v{vT1}, s{sNON}, v253
    v_xor_b32 v{vT2}, s{sNON}, v{E+1}
    v_xor_b32 v{vT3}, s{sNON}, v{E+3}
    v_or3_b32 v{vT0}, v{vT0}, v{vT1}, v{vT2}
    v_or_b32 v{vT0}, v{vT0}, v{vT3}
    v_cmp_ne_u32 vcc, 0, v{vT0}"""
    def stld():
        p(stcode); vq.issue(("ST", 0)); vq.issue(("ST", 1)); vq.issue(("ST", 2))
    def stuse():
        vq.wait(p, ("ST", 2))
        p(stchk)
        p(f"s_mov_b32 s73, {SPIN_MAX}\ns_cbranch_vccnz M_SSPIN")
        p.label("M_SSPIN_RET")
        for c in (E, E + 2): p(f"v_add_f32_dpp v{c}, v{c}, v{c} row_ror:8 row_mask:0xf bank_mask:0xf")
        for sw in ("v_permlane16_swap_b32", "v_permlane32_swap_b32"):
            p(f"v_mov_b32 v{E+1}, v{E}\nv_mov_b32 v{E+3}, v{E+2}")
            p(f"{sw} v{E}, v{E+1}\n{sw} v{E+2}, v{E+3}")
            p(f"v_add_f32 v{E}, v{E}, v{E+1}\nv_add_f32 v{E+2}, v{E+2}, v{E+3}")
        p(f"""
    v_mov_b32 v{E+1}, v{E+2}
    v_and_b32 v{vT0}, 7, v1
    v_lshlrev_b32 v{vT0}, 3, v{vT0}
    s_lshl_b32 s{sT0}, s{sW}, 6
    s_add_u32 s{sT0}, s{sT0}, {L_FP}
    v_add_u32 v{vT0}, s{sT0}, v{vT0}
    ds_write_b64 v{vT0}, v[{E}:{E+1}]
    v_and_b32 v251, 0xffff0000, v250
    v_and_b32 v253, 0xffff0000, v252
    v_rcp_f32 v251, v251
    v_rcp_f32 v253, v253
    v_lshlrev_b32 v250, 16, v250
    v_lshlrev_b32 v252, 16, v252
    v_mul_f32 v251, {fbits(QSCALE)}, v251
    v_mul_f32 v253, {fbits(QSCALE)}, v253
    """)
        lq.issue(("CSW", 0))
    stage(0, tagged(12) + [stld, job_k(0)], xw=xwait(("X", 13, 3)))
    vq.wait(p, ("W", 14, 1)); p("s_barrier")
    stage(1, tagged(13)[:4] + [job_k(1), job_k(2)], xw=xwait(("X", 14, 3)))
    vq.wait(p, ("W", 15, 1)); lq.wait(p, ("B", 0, 3)); p("s_barrier")
    stage(2, [job_k(3), job_v(0), job_v(1), None, stuse], xw=xwait(("X", 15, 3)))
    vq.wait(p, ("K", 1)); lq.wait(p, ("CSW", 0), ("B", 1, 3)); p("s_barrier")
    stage(3, [job_k(4), job_k(5), job_v(2), job_k(6)], last=True)
    ST()
    if stamp: lq.q = []
    CSV = 212
    p(f"""
    v_lshrrev_b32 v{vT0}, 4, v1
    v_lshlrev_b32 v{vT0}, 4, v{vT0}
    v_add_u32 v{vT0}, {L_FP}, v{vT0}
    """)
    for T in range(8):
        p(f"ds_read_b128 v[{CSV+4*T}:{CSV+4*T+3}], v{vT0} offset:{T*64}"); lq.issue(("CS", T))
    for j in range(D): k_read(0, j)
    for T in range(8):
        lq.wait(p, ("CS", T))
        for ct in range(2):
            a = QA + (T * 2 + ct) * 4
            for r in range(4): p(f"v_fma_f32 v{a+r}, -v{250+2*ct}, v{CSV+4*T+r}, v{a+r}")
            for r in range(4): p(f"v_mul_f32 v{a+r}, v{251+2*ct}, v{a+r}")
        for ct in range(2):
            a = QA + (T * 2 + ct) * 4
            for k in range(2): p(f"v_cvt_pk_bf16_f32 v{QP + 4*T + 2*ct + k}, v{a+2*k}, v{a+2*k+1}")
        if T > 0:
            for k in range(2): p(f"v_permlane16_swap_b32 v{QP + 4*(T-1) + k}, v{QP + 4*(T-1) + 2 + k}")
    for k in range(2): p(f"v_permlane16_swap_b32 v{QP + 28 + k}, v{QP + 30 + k}")
    def qk(j, sbuf, cinit):
        lq.wait(p, ("K", j % D))
        k = KF + (j % D) * 4; q = QP + 4 * j; d = S + 16 * sbuf
        c = cinit if j == 0 else f"v[{d}:{d+15}]"
        p(f"v_mfma_f32_32x32x16_bf16 v[{d}:{d+15}], v[{k}:{k+3}], v[{q}:{q+3}], {c}")
    def pv(i, pbuf, first=False):
        lq.wait(p, ("V", i % D))
        ks, dt = i >> 2, i & 3
        v = VF + (i % D) * 4; b = P + 8 * pbuf + 4 * ks; d = ACC + 16 * dt
        cc = "0" if (first and ks == 0) else f"v[{d}:{d+15}]"
        p(f"v_mfma_f32_32x32x16_bf16 v[{d}:{d+15}], v[{v}:{v+3}], v[{b}:{b+3}], {cc}")
    for j in range(8):
        qk(j, 0, "0")
        k_read(0 if j + D < 8 else 1, (j + D) % 8)
    vq.wait(p, ("K", 3), ("V", 1)); p("s_barrier")
    p(f"""
    s_cmp_lg_u32 s{sW}, 4
    s_cbranch_scc1 M_NOKEY
    s_lshl_b32 s{sT0}, s{sFL}, 3
    s_add_u32 s{sT0}, s{sT0}, {WS_KEYS}
    v_mov_b32 v{vT0}, s{sT0}
    v_mov_b32 v{FD}, s{sKEY}
    v_mov_b32 v{FD+1}, s{sNON}
    s_mov_b64 exec, 1
    global_store_dwordx2 v{vT0}, v[{FD}:{FD+1}], s[18:19] sc1
    s_mov_b64 exec, -1
M_NOKEY:
    """)
    ST()
    if stamp: lq.q = []
    s0 = S
    p(f"""
    v_max3_f32 v{vT0}, v{s0}, v{s0+1}, v{s0+2}
    v_max3_f32 v{vT1}, v{s0+3}, v{s0+4}, v{s0+5}
    v_max3_f32 v{vT0}, v{vT0}, v{s0+6}, v{s0+7}
    v_max3_f32 v{vT1}, v{vT1}, v{s0+8}, v{s0+9}
    v_max3_f32 v{vT0}, v{vT0}, v{s0+10}, v{s0+11}
    v_max3_f32 v{vT1}, v{vT1}, v{s0+12}, v{s0+13}
    v_max3_f32 v{vT0}, v{vT0}, v{s0+14}, v{s0+15}
    v_max_f32 v{vT0}, v{vT0}, v{vT1}
    v_mov_b32 v{vT1}, v{vT0}
    v_permlane32_swap_b32 v{vT0}, v{vT1}
    v_max_f32 v{vT0}, v{vT0}, v{vT1}
    """)
    for i in range(16): p(f"v_sub_f32 v{NEGM+i}, 0, v{vT0}")
    for i in range(16): p(f"v_sub_f32 v{s0+i}, v{s0+i}, v{vT0}")
    p(f"v_mov_b32 v{vT2}, {L_HI + 2*KSL + 6*1088 + 1024}\nv_mov_b32 v{vT3}, 0")
    p(f"ds_write_b32 v{vT2}, v{vT3}"); lq.issue(("Z", 0))
    p(f"ds_write_b32 v{vT2}, v{vT3} offset:1088"); lq.issue(("Z", 1))
    cold = 'nof' not in dbg
    SRD_P = 68; sPo = 72
    def pf(n):
        if not cold or 'nopf' in dbg: return None
        pre = ""
        if n == 0:
            pre = f"""s_lshl_b32 s{sT0}, s2, 15
    s_add_u32 s{SRD_P}, s10, s{sT0}
    s_addc_u32 s{SRD_P+1}, s11, 0
    s_mov_b32 s{SRD_P+2}, 0x8000
    s_mov_b32 s{SRD_P+3}, 0x20000
    s_mov_b32 s{sPo}, 0
    """
        elif n == 4:
            pre = f"""s_mul_i32 s{sT0}, s2, 28672
    s_add_u32 s{SRD_P}, s16, s{sT0}
    s_addc_u32 s{SRD_P+1}, s17, 0
    s_mov_b32 s{SRD_P+2}, 28672
    s_mov_b32 s{sPo}, 0
    """
        return (("PF", n), pre + f"""s_add_u32 m0, s{sVw}, {VADDR[5]}
    v_lshlrev_b32 v{vT3}, 4, v0
    buffer_load_dwordx4 v{vT3}, s[{SRD_P}:{SRD_P+3}], s{sPo} offen lds
    s_add_u32 s{sPo}, s{sPo}, 8192""")
    flagld = None
    keycode = f"""v_lshlrev_b32 v{vT2}, 5, v1
    v_add_u32 v{vT2}, {WS_KEYS}, v{vT2}
    global_load_dwordx4 v[{FT}:{FT+3}], v{vT2}, s[18:19] sc1
    global_load_dwordx4 v[{FT+4}:{FT+7}], v{vT2}, s[18:19] offset:16 sc1"""
    keychk = f"""v_xor_b32 v{FT+1}, s{sNON}, v{FT+1}
    v_xor_b32 v{FT+3}, s{sNON}, v{FT+3}
    v_xor_b32 v{FT+5}, s{sNON}, v{FT+5}
    v_xor_b32 v{FT+7}, s{sNON}, v{FT+7}
    v_or3_b32 v{FT+1}, v{FT+1}, v{FT+3}, v{FT+5}
    v_or_b32 v{FT+1}, v{FT+1}, v{FT+7}
    v_cmp_ne_u32 vcc, 0, v{FT+1}"""
    def keyld():
        p(keycode); vq.issue(("KY", 0)); vq.issue(("KY", 1))
    def xsel():
        vq.wait(p, ("KY", 1))
        p(keychk)
        p(f"s_mov_b32 s73, {SPIN_MAX}\ns_cbranch_vccnz M_KSPIN")
        p.label("M_KSPIN_RET")
        p(f"v_max3_u32 v{FT}, v{FT}, v{FT+2}, v{FT+4}\nv_max_u32 v{FT}, v{FT}, v{FT+6}")
        wave_max_u32(p, FT, FT + 1)
        p(f"""
    v_readfirstlane_b32 s{sKEY}, v{FT}
    s_and_b32 s{sIDX}, s{sKEY}, 0x7ff
    s_sub_u32 s{sIDX}, 2047, s{sIDX}
    s_lshr_b32 s{sT0}, s{sIDX}, 4
    s_lshl_b32 s{sT0}, s{sT0}, 15
    s_and_b32 s{sT1}, s2, 3
    s_lshl_b32 s{sT1}, s{sT1}, 13
    s_add_u32 s{sT0}, s{sT0}, s{sT1}
    s_lshl_b32 s{sT1}, s{sW}, 10
    s_add_u32 s{sT0}, s{sT0}, s{sT1}
    s_and_b32 s{sT1}, s{sIDX}, 15
    s_lshl_b32 s{sT1}, s{sT1}, 4
    s_add_u32 s{sT0}, s{sT0}, s{sT1}
    v_lshrrev_b32 v{vT2}, 4, v1
    v_lshlrev_b32 v{vT2}, 8, v{vT2}
    v_add_u32 v{vT2}, s{sT0}, v{vT2}
    global_load_dwordx4 v[{XS}:{XS+3}], v{vT2}, s[18:19] sc1""")
        vq.issue(("X", 0))
    def ffn_step(f):
        def go():
            if f == 0:
                vq.wait(p, ("X", 0), ("F", 7))
                p(f"""
    v_and_b32 v{vT2}, 15, v1
    v_lshlrev_b32 v{vT2}, 5, v{vT2}
    s_lshl_b32 s{sT0}, s{sW}, 9
    s_add_u32 s{sT0}, s{sT0}, {L_FP}
    v_add_u32 v{vT2}, s{sT0}, v{vT2}""")
            if f > 0:
                p(f"ds_write_b32 v{vT2}, v{FD} offset:{(f-1)*4}"); lq.issue(("FW", f - 1))
            if f < 8:
                j = f >> 1; sel = sPH if f & 1 else sPL
                for pp in range(4):
                    p(f"v_perm_b32 v{FT+pp}, v{FR+(2*pp+1)*4+j}, v{FR+(2*pp)*4+j}, s{sel}")
        return go
    def ffn_mfma():
        p(f"v_mfma_f32_16x16x32_bf16 v[{FD}:{FD+3}], v[{XS}:{XS+3}], v[{FT}:{FT+3}], 0")
    def ffn_final():
        p(f"""
    s_cmp_lg_u32 s{sW}, 0
    s_cbranch_scc1 K2_FSKIP
    s_cmp_ge_u32 s2, 224
    s_cbranch_scc1 K2_FSKIP
    v_lshlrev_b32 v{vT2}, 3, v1
    v_add_u32 v{vT3}, {L_FP}, v{vT2}""")
        for w in range(8): p(f"ds_read_b64 v[{FR+2*w}:{FR+2*w+1}], v{vT3} offset:{w*512}")
        p(f"""
    s_and_b32 s{sT0}, s2, 3
    s_mul_i32 s{sT0}, s{sT0}, {7168*8}
    s_lshr_b32 s{sT1}, s2, 2
    s_lshl_b32 s{sT1}, s{sT1}, 10
    s_add_u32 s{sT0}, s{sT0}, s{sT1}
    s_add_u32 s{sT0}, s{sT0}, {WS_GU}
    v_lshlrev_b32 v{vT2}, 1, v{vT2}
    v_add_u32 v{vT2}, s{sT0}, v{vT2}
    s_waitcnt lgkmcnt(0)""")
        for w in range(1, 8):
            p(f"v_add_f32 v{FR}, v{FR}, v{FR+2*w}\nv_add_f32 v{FR+1}, v{FR+1}, v{FR+2*w+1}")
        p(f"v_mov_b32 v{FR+2}, v{FR+1}\nv_mov_b32 v{FR+1}, s{sNON}\nv_mov_b32 v{FR+3}, s{sNON}")
        p(f"global_store_dwordx4 v{vT2}, v[{FR}:{FR+3}], s[18:19] sc1")
        p.label("K2_FSKIP")
    NEG = f"v[{NEGM}:{NEGM+15}]"
    def iteration(t, extra=(), mid=()):
        doQK = t < 15; doPV = t > 0; prevSM = t > 0
        sb = t & 1
        for j in range(8):
            if doQK: qk(j, sb ^ 1, NEG)
            if (j > 0 or prevSM) and 'novalu' not in dbg:
                e = E + 2 * ((j - 1) & 1)
                pb = sb if j > 0 else sb ^ 1
                pr = P + 8 * pb + ((j - 1) & 7)
                p(f"v_add_f32 v{vL0}, v{vL0}, v{e}\nv_add_f32 v{vL1}, v{vL1}, v{e+1}\nv_cvt_pk_bf16_f32 v{pr}, v{e}, v{e+1}")
            if j < len(mid): run(mid[j])
            if doPV: pv(j, sb ^ 1, first=(t == 1))
            e = E + 2 * (j & 1)
            if 'novalu' not in dbg: p(f"v_exp_f32 v{e}, v{S+16*sb+2*j}\nv_exp_f32 v{e+1}, v{S+16*sb+2*j+1}")
            jj = j + D
            if jj < 8:
                if doQK: k_read(t + 1, jj)
                if doPV: v_read(t - 1, jj)
            else:
                if t + 2 <= 15: k_read(t + 2, jj - 8)
                v_read(t, jj - 8)
            if j < len(extra): run(extra[j])
    F = lambda i: job_f(i) if (ffn and cold and 'nofl' not in dbg) else None
    sched = {
        0: [job_k(7), F(0), job_v(3), None, job_v(4), None, F(1)],
        1: [job_v(5), None, None, job_v(6), None, None, F(2)],
        2: [job_k(8), None, job_k(9), F(3), job_v(7), None, F(4)],
        3: [job_v(8), keyld, job_v(9), None, job_v(10), None, F(5)],
        4: [job_k(10), None, job_k(11), None, job_v(11), None, F(6)],
        5: [job_v(12), None, xsel, job_v(13), None, None, F(7)],
        6: [job_k(12), None, job_k(13), None, job_v(14)],
        7: [job_v(15)],
        8: [job_k(14), None, job_k(15), None, None, None, pf(0)],
        9: [pf(1), None, None, None, pf(2)],
        10: [pf(3), None, None, None, pf(4)],
        11: [pf(5), None, None, pf(6), None, None, pf(7)],
        12: [] if 'notlb' in dbg else [
             (("TL", 0), f"v_min_u32 v{FT}, 40, v1\nv_lshlrev_b32 v{FT}, 20, v{FT}\nglobal_load_dword v{FD}, v{FT}, s[18:19]"), None,
             (("TL", 1), f"v_and_b32 v{FT+1}, 3, v1\nv_lshlrev_b32 v{FT+1}, 20, v{FT+1}\nglobal_load_dword v{FD}, v{FT+1}, s[78:79]"), None,
             (("TL", 2), f"v_and_b32 v{FT+2}, 7, v1\nv_lshlrev_b32 v{FT+2}, 20, v{FT+2}\nglobal_load_dword v{FD}, v{FT+2}, s[10:11]"), None,
             (("TL", 3), f"v_min_u32 v{FT+3}, 6, v1\nv_lshlrev_b32 v{FT+3}, 20, v{FT+3}\nglobal_load_dword v{FD}, v{FT+3}, s[16:17]")],
    }
    if 'nodma' in dbg: sched = {}
    for t in range(16):
        if t > 0 and t % 2 == 0:
            b = t // 2
            need = [("K", x) for x in range(2*b+4)] + [("V", x) for x in range(2*b+2)]
            if b == 6: need = [("K", x) for x in range(16)] + [("V", x) for x in range(16)]
            vq.wait(p, *need)
            if b == 7: vq.wait(p, ("PF", 7), ("TL", 3))
            if b == 5: lq.wait(p, ("FW", 7))
            p("s_barrier")
        extra = sched.get(t, []); mid = []
        def both(x, y):
            def f():
                run(x); run(y)
            return f
        ex8 = list(extra) + [None] * 8
        if t == 8:
            extra = [both(ex8[f], ffn_step(f)) for f in range(8)]; mid = [None] + [ffn_mfma] * 7
        if t == 9:
            extra = [ex8[0], ffn_step(8)] + ex8[2:8]; mid = [ffn_mfma]
        if t == 10:
            extra = [ex8[0], ffn_final] + ex8[2:8]
        if t == 14:
            ED = lambda n: (("EW", n), p3_early_dma(n))
            extra = [None, p3_early_setup(), ED(0), ED(1), ED(2), ED(3), ED(4), ED(5)]
        if t == 15:
            extra = [ED(6), ED(7), ED(8), ED(9), ED(10), ED(11)]
        iteration(t, extra, mid)
    e = E + 2
    p(f"v_add_f32 v{vL0}, v{vL0}, v{e}\nv_add_f32 v{vL1}, v{vL1}, v{e+1}\nv_cvt_pk_bf16_f32 v{P+8+7}, v{e}, v{e+1}")
    p(f"""
    v_add_f32 v{vL0}, v{vL0}, v{vL1}
    v_mov_b32 v{vL1}, v{vL0}
    """)
    for i in range(8):
        pv(i, 1)
        if i + D < 8: v_read(15, i + D)
        if i == 0:
            p(f"v_permlane32_swap_b32 v{vL0}, v{vL1}\nv_add_f32 v{vL0}, v{vL0}, v{vL1}")
        if i == 1:
            p(f"""
    v_mov_b32 v{vT1}, 0x5d800000
    v_cmp_nle_f32 vcc, v{vL0}, v{vT1}
    v_rcp_f32 v{vL1}, v{vL0}
    """)
    ST()
    if slow:
        p(f"s_cbranch_vccnz K2_SLOW")
        p.label("K2_SLOW_RET")
    for dt in range(4):
        for c in range(2):
            a = ACC + 16 * dt + 8 * c
            o = S + (dt * 2 + c) * 4
            for r in range(8): p(f"v_mul_f32 v{a+r}, v{a+r}, v{vL1}")
            for r in range(4): p(f"v_cvt_pk_bf16_f32 v{o+r}, v{a+2*r}, v{a+2*r+1}")
            p(f"buffer_store_dwordx4 v[{o}:{o+3}], v{vO}, s[{SRD_OT}:{SRD_OT+3}], s{sOT} offen offset:{c*512} sc1")
        if dt < 3: p(f"s_add_u32 s{sOT}, s{sOT}, 131072")
    phase3(p, ST, stamp)
    p.label("K2_END")
    p("s_endpgm")
    p.label("M_SSPIN")
    p("s_sleep 2")
    p(stcode)
    p("s_waitcnt vmcnt(0)")
    p(stchk)
    p(f"""
    s_cbranch_vccz M_SSPIN_RET
    s_sub_u32 s73, s73, 1
    s_cmp_lg_u32 s73, 0
    s_cbranch_scc1 M_SSPIN
    s_branch M_SSPIN_RET
    """)
    p.label("M_KSPIN")
    p("s_sleep 2")
    p(keycode)
    p("s_waitcnt vmcnt(0)")
    p(keychk)
    p(f"""
    s_cbranch_vccz M_KSPIN_RET
    s_sub_u32 s73, s73, 1
    s_cmp_lg_u32 s73, 0
    s_cbranch_scc1 M_KSPIN
    s_branch M_KSPIN_RET
    """)
    if slow:
        p.label("K2_SLOW")
        p(f"""
    s_waitcnt vmcnt(0) lgkmcnt(0)
    v_and_b32 v{vT0}, 31, v1
    v_lshlrev_b32 v{vT0}, 8, v{vT0}
    v_lshrrev_b32 v{vT1}, 5, v1
    v_lshl_add_u32 v{vT0}, v{vT1}, 4, v{vT0}
    v_and_b32 v{vT2}, 19, v1
    v_bfe_u32 v{vT3}, v1, 2, 1
    v_lshl_add_u32 v{vT2}, v{vT3}, 3, v{vT2}
    v_bfe_u32 v{vT3}, v1, 3, 1
    v_lshl_add_u32 v{vT2}, v{vT3}, 2, v{vT2}
    v_lshlrev_b32 v{vT2}, 1, v{vT2}
    v_lshl_add_u32 v{vT2}, v{vT1}, 10, v{vT2}
    v_mov_b32 v{vT1}, 0xff800000
    s_mov_b32 s{sT1}, 0
    """)
        KS = KF
        def slow_qk(c0):
            for j in range(8):
                p(f"buffer_load_dwordx4 v[{KS+4*j}:{KS+4*j+3}], v{vT0}, s[{SRD_K}:{SRD_K+3}], s{sT1} offen offset:{j*32}")
            p("s_waitcnt vmcnt(0)")
            for j in range(8):
                c = c0 if j == 0 else f"v[{S}:{S+15}]"
                p(f"v_mfma_f32_32x32x16_bf16 v[{S}:{S+15}], v[{KS+4*j}:{KS+4*j+3}], v[{QP+4*j}:{QP+4*j+3}], {c}")
        p.label("K2_SLOW_L1")
        slow_qk("0")
        for i in range(0, 16, 2):
            p(f"v_max3_f32 v{vT1}, v{vT1}, v{S+i}, v{S+i+1}")
        p(f"""
    s_add_u32 s{sT1}, s{sT1}, 8192
    s_cmp_lt_u32 s{sT1}, 131072
    s_cbranch_scc1 K2_SLOW_L1
    v_mov_b32 v{vT3}, v{vT1}
    v_permlane32_swap_b32 v{vT3}, v{vT1}
    v_max_f32 v{vT1}, v{vT3}, v{vT1}
    """)
        for i in range(16): p(f"v_sub_f32 v{NEGM+i}, 0, v{vT1}")
        for i in range(64): p(f"v_mov_b32 v{ACC+i}, 0")
        p(f"v_mov_b32 v{vL0}, 0\ns_mov_b32 s{sT1}, 0")
        p.label("K2_SLOW_L2")
        slow_qk(NEG)
        for i in range(16): p(f"v_exp_f32 v{S+i}, v{S+i}")
        for i in range(16): p(f"v_add_f32 v{vL0}, v{vL0}, v{S+i}")
        for i in range(8): p(f"v_cvt_pk_bf16_f32 v{P+i}, v{S+2*i}, v{S+2*i+1}")
        for ks in range(2):
            p(f"s_add_u32 s{sT2}, s{sT1}, {ks*4096}")
            TM = S + 16
            for dt in range(4):
                r = KS + dt * 4; d = ACC + 16 * dt
                for jj in range(8):
                    key = (jj & 3) + 8 * (jj >> 2)
                    p(f"buffer_load_ushort v{TM + jj}, v{vT2}, s[{SRD_V}:{SRD_V+3}], s{sT2} offen offset:{key*256 + dt*64}")
                p("s_waitcnt vmcnt(0)")
                for jj in range(4): p(f"v_lshl_or_b32 v{r+jj}, v{TM+2*jj+1}, 16, v{TM+2*jj}")
                p(f"v_mfma_f32_32x32x16_bf16 v[{d}:{d+15}], v[{r}:{r+3}], v[{P+4*ks}:{P+4*ks+3}], v[{d}:{d+15}]")
            p("s_nop 7")
        p(f"""
    s_add_u32 s{sT1}, s{sT1}, 8192
    s_cmp_lt_u32 s{sT1}, 131072
    s_cbranch_scc1 K2_SLOW_L2
    v_mov_b32 v{vL1}, v{vL0}
    v_permlane32_swap_b32 v{vL0}, v{vL1}
    v_add_f32 v{vL0}, v{vL0}, v{vL1}
    v_rcp_f32 v{vL1}, v{vL0}
    s_nop 7
    s_branch K2_SLOW_RET
    """)
    n = p.fix_hazards(verbose='v' in dbg)
    import re as _re
    txt0 = _re.sub(r"ST3_(\d)", (lambda m: f"s_memtime s[{80+2*int(m.group(1))}:{81+2*int(m.group(1))}]") if MODE3[0] else "s_nop 0", p.text())
    if not MODE3[0]: txt0 = txt0
    txt = txt0.replace('STAMPX1', 's_memrealtime s[94:95]' if stamp else 's_nop 0')
    return txt, descriptor(name, 256, 256, 102), f"; @launch grid=(256,1,1) block=(512,1,1) lds={L_TOTAL}"

if __name__ == "__main__":
    import sys, subprocess, re
    dbg = tuple(sys.argv[2].split(',')) if len(sys.argv) > 2 else ()
    t, d, l = gen_mega(stamp=len(sys.argv) > 1 and sys.argv[1] == "1", dbg=dbg)
    out = sys.argv[3] if len(sys.argv) > 3 else "mega.s"
    def write(cs):
        open(out, "w").write(l + '\n.amdgcn_target "amdgcn-amd-amdhsa--gfx950"\n.text\n' + t.replace("CODESIZE", str(cs)) + '.section .rodata,"a"\n' + d)
    write(0x1000)
    subprocess.run(["clang", "-x", "assembler", "-target", "amdgcn-amd-amdhsa", "-mcpu=gfx950", "-c", out, "-o", "mega.o"], check=True)
    r = subprocess.run(["llvm-objdump", "-h", "mega.o"], capture_output=True, text=True).stdout
    sz = int(re.search(r"\.text\s+([0-9a-f]+)", r).group(1), 16)
    write((sz - 256) & ~63)
    print("code size", sz)
```

```python
import re

def regs_of(tok):
    tok = tok.strip()
    tok = re.sub(r'^-', '', tok)
    m = re.match(r'^abs\((.*)\)$', tok)
    if m: tok = m.group(1)
    tok = tok.strip('|')
    m = re.match(r'^([vas])(\d+)$', tok)
    if m: return [(m.group(1), int(m.group(2)))]
    m = re.match(r'^([vas])\[(\d+):(\d+)\]$', tok)
    if m: return [(m.group(1), i) for i in range(int(m.group(2)), int(m.group(3)) + 1)]
    if tok in ('vcc', 'vcc_lo', 'vcc_hi'): return [('x', 'vcc')]
    if tok in ('exec', 'exec_lo', 'exec_hi'): return [('x', 'exec')]
    if tok == 'm0': return [('x', 'm0')]
    return []

TRANS = ('v_exp_f32', 'v_log_f32', 'v_rcp_f32', 'v_rsq_f32', 'v_sqrt_f32', 'v_sin_f32', 'v_cos_f32')

class Ins:
    def __init__(self, text):
        self.text = text
        t = text.split(';')[0].strip()
        self.label = None
        self.op = None
        self.w = []; self.r = []
        self.kind = 'other'
        if not t: return
        if t.endswith(':'):
            self.label = t[:-1]; self.kind = 'label'; return
        if t.startswith('.') or re.match(r'^(ST\d_\d|STAMPX1)$', t):
            self.kind = 'dir'; return
        parts = t.split(None, 1)
        op = parts[0]; self.op = op
        rest = parts[1] if len(parts) > 1 else ''
        rest = re.sub(r'quad_perm:\[(\d),(\d),(\d),(\d)\]', r'quad_perm:[\1_\2_\3_\4]', rest)
        ops = [x.strip() for x in rest.split(',')] if rest else []
        mods = ''
        if ops:
            sp = ops[-1].split(None, 1)
            if len(sp) > 1 and not sp[0].startswith('abs('):
                ops[-1] = sp[0]; mods = sp[1]
        self.ops = ops; self.mods = mods
        base = op.replace('_e32', '').replace('_e64', '').replace('_dpp', '')
        self.base = base
        R = lambda i: regs_of(ops[i]) if i < len(ops) else []
        if op.startswith('v_mfma'):
            self.kind = 'mfma'
            self.w = R(0); self.a = R(1); self.b = R(2); self.c = R(3)
            self.r = self.a + self.b + self.c
            self.passes = 8 if '32x32' in op else 4
        elif op.startswith('v_'):
            self.kind = 'valu'
            self.dpp = ('quad_perm' in mods or 'row_' in mods or 'wave_' in mods)
            if base.startswith('v_permlane') and 'swap' in base:
                self.w = R(0) + R(1); self.r = R(0) + R(1); self.kind2 = 'permlane'
            elif base.startswith('v_cmp'):
                self.w = R(0); self.r = sum((R(i) for i in range(1, len(ops))), [])
                if base.startswith('v_cmpx'): self.w += [('x', 'exec')]
            elif base in ('v_add_co_u32', 'v_sub_co_u32', 'v_addc_co_u32', 'v_subb_co_u32', 'v_subrev_co_u32'):
                self.w = R(0) + R(1); self.r = sum((R(i) for i in range(2, len(ops))), [])
            else:
                self.w = R(0); self.r = sum((R(i) for i in range(1, len(ops))), [])
                if base in ('v_fmac_f32', 'v_dot2c_f32_bf16', 'v_pk_fmac_f16') or self.dpp:
                    self.r += R(0)
                if base == 'v_cndmask_b32' and len(ops) == 3: self.r += [('x', 'vcc')]
            self.trans = base in TRANS
        elif op.startswith('ds_'):
            self.kind = 'ds'
            if op.startswith('ds_read') or op.startswith('ds_bpermute') or op.startswith('ds_permute') or op.startswith('ds_swizzle'):
                self.w = R(0); self.r = sum((R(i) for i in range(1, len(ops))), [])
            else:
                self.r = sum((R(i) for i in range(len(ops))), [])
        elif op.startswith('buffer_') or op.startswith('global_'):
            self.kind = 'vmem'
            self.lds = bool(re.search(r'\blds\b', mods)) or '_lds_' in op
            if 'load' in op and not self.lds:
                self.w = R(0); self.r = sum((R(i) for i in range(1, len(ops))), [])
            elif 'atomic' in op and re.search(r'\bsc0\b', mods):
                self.w = R(0); self.r = sum((R(i) for i in range(len(ops))), [])
            else:
                self.r = sum((R(i) for i in range(len(ops))), [])
            if self.lds: self.r += [('x', 'm0')]
            self.store = ('store' in op or 'atomic' in op)
            self.wide = self.store and ('x3' in op or 'x4' in op)
            if self.wide:
                self.data = R(0) if op.startswith('buffer_') else R(1)
        elif op.startswith('s_'):
            self.kind = 'salu'
            if op in ('s_nop',):
                self.kind = 'nop'; self.n = int(ops[0], 0) + 1
            elif op.startswith('s_cbranch') or op == 's_branch':
                self.kind = 'branch'; self.target = ops[0]
            elif op in ('s_waitcnt', 's_barrier', 's_endpgm', 's_setprio', 's_sleep'):
                self.kind = 'misc'
            elif op.startswith('s_cmp'):
                self.r = sum((R(i) for i in range(len(ops))), [])
            elif op.startswith('s_load') or op.startswith('s_buffer_load') or op.startswith('s_memtime') or op.startswith('s_memrealtime'):
                self.kind = 'smem'; self.w = R(0); self.r = sum((R(i) for i in range(1, len(ops))), [])
            else:
                self.w = R(0); self.r = sum((R(i) for i in range(1, len(ops))), [])
                if 'saveexec' in op: self.w += [('x', 'exec')]; self.r += [('x', 'exec')]
    def states(self):
        if self.kind in ('label', 'dir') or self.op is None: return 0
        if self.kind == 'nop': return self.n
        return 1

def need(p, c):
    n = 0
    pw = set(p.w); cr = set(c.r); cw = set(c.w)
    isv = lambda S: {x for x in S if x[0] in 'va'}
    iss = lambda S: {x for x in S if x[0] == 's' or x == ('x', 'vcc')}
    if p.kind == 'valu':
        vw = isv(pw); sw = iss(pw)
        if c.kind == 'mfma' and vw & cr: n = max(n, 2)
        if c.kind == 'valu':
            if getattr(c, 'dpp', False) and vw & cr: n = max(n, 2)
            if getattr(c, 'kind2', '') == 'permlane' and vw & cr: n = max(n, 2)
            if c.base in ('v_readlane_b32', 'v_readfirstlane_b32') and vw & cr: n = max(n, 1)
            if p.trans and not c.trans and vw & cr: n = max(n, 1)
            if p.trans and vw & cr: n = max(n, 1)
            if sw & cr:
                n = max(n, 4 if c.base in ('v_readlane_b32', 'v_writelane_b32') else 2)
                if c.base == 'v_div_fmas_f32': n = max(n, 4)
            if ('x', 'exec') in pw:
                if getattr(c, 'dpp', False): n = max(n, 5)
                if c.base in ('v_readlane_b32', 'v_readfirstlane_b32', 'v_writelane_b32') or getattr(c, 'kind2', '') == 'permlane': n = max(n, 4)
        if c.kind == 'mfma' and ('x', 'exec') in pw: n = max(n, 4)
        if c.kind == 'vmem' and sw & cr: n = max(n, 5)
        if c.kind in ('salu', 'branch') and sw & cr: n = max(n, 1)
        if p.trans and c.kind in ('ds', 'vmem') and vw & cr: n = max(n, 1)
    if p.kind == 'valu' and p.base.startswith('v_dot'):
        if isv(pw) & (cr | cw):
            same = c.kind == 'valu' and c.base == p.base
            if same and len(c.ops) > 3 and set(regs_of(c.ops[3])) & isv(pw) and not (set(regs_of(c.ops[1]) + regs_of(c.ops[2])) & isv(pw)): pass
            else: n = max(n, 3)
    if p.kind == 'salu':
        if ('x', 'm0') in pw and c.kind == 'vmem' and getattr(c, 'lds', False): n = max(n, 1)
    if p.kind == 'mfma':
        D = set(p.w)
        big = {8: 12, 4: 8}[p.passes]; ovl = {8: 10, 4: 6}[p.passes]; war = {8: 7, 4: 3}[p.passes]
        if c.kind == 'mfma':
            if D & (set(c.a) | set(c.b)): n = max(n, big)
            if D & set(c.c):
                if list(c.c) == list(p.w) and c.passes == p.passes: pass
                else: n = max(n, ovl)
            elif D & set(c.w):
                n = max(n, ovl)
        elif c.kind in ('valu', 'ds', 'vmem'):
            if D & (cr | cw): n = max(n, big)
            if c.kind == 'valu' and set(p.c) & cw: n = max(n, war)
            if c.kind in ('ds', 'vmem') and set(p.c) & cw: n = max(n, war)
    if p.kind == 'vmem' and getattr(p, 'wide', False):
        if set(p.data) & cw: n = max(n, 2 if c.kind == 'valu' else 1)
    if p.kind == 'ds' and p.op.startswith('ds_write') and ('b128' in p.op or 'b96' in p.op):
        pass
    return n

class Prog:
    def __init__(self):
        self.ins = []
    def __call__(self, text):
        for line in text.split('\n'):
            if line.strip(): self.ins.append(Ins(line.strip()))
    def label(self, name): self.ins.append(Ins(name + ':'))
    def fix_hazards(self, verbose=False):
        out = []
        WIN = 24
        def check_against(prev_list, c):
            dist = 0; req = 0
            for p in reversed(prev_list):
                if p.kind in ('label', 'dir') or p.op is None: continue
                k = need(p, c)
                if k > dist: req = max(req, k - dist)
                dist += p.states()
                if dist > WIN: break
            return req
        nins = 0
        for c in self.ins:
            if c.op is not None and c.kind not in ('label', 'dir'):
                hist = []
                for p in reversed(out):
                    if p.op in ('s_branch', 's_endpgm'): break
                    hist.append(p)
                    if len(hist) > 64: break
                hist.reverse()
                req = check_against(hist, c)
                if req:
                    if verbose: print("nop", req, "before", c.text)
                    nins += 1
                    while req > 0:
                        k = min(req, 16); out.append(Ins(f"s_nop {k-1}")); req -= k
            out.append(c)
        self.ins = out
        labels = {i.label: n for n, i in enumerate(self.ins) if i.label}
        changed = True
        while changed:
            changed = False
            labels = {i.label: n for n, i in enumerate(self.ins) if i.label}
            for n, b in enumerate(self.ins):
                if b.kind == 'branch' and b.target in labels:
                    hist = []
                    for p in reversed(self.ins[:n + 1]):
                        if p is not b and p.op in ('s_branch', 's_endpgm'): break
                        hist.append(p)
                        if len(hist) > 64: break
                    hist.reverse()
                    t = labels[b.target]
                    seq = list(hist); worst = 0; dist = 0
                    for c in self.ins[t:t + 40]:
                        if c.op is None or c.kind in ('label', 'dir'): continue
                        d = dist;
                        for p in reversed(hist):
                            if p.kind in ('label', 'dir') or p.op is None: continue
                            k = need(p, c)
                            if k > d: worst = max(worst, k - d)
                            d += p.states()
                            if d > WIN: break
                        dist += c.states()
                        if dist > WIN or c.op in ('s_branch', 's_endpgm'): break
                    if worst:
                        if verbose: print("branch-edge nop", worst, "before", b.text)
                        ins = []
                        while worst > 0:
                            k = min(worst, 16); ins.append(Ins(f"s_nop {k-1}")); worst -= k
                        self.ins[n:n] = ins
                        changed = True
                        break
        return nins
    def text(self):
        return "\n".join((i.text if i.kind in ('label', 'dir') else "    " + i.text) for i in self.ins) + "\n"
```

```python
from gen_common import *
import math, struct

KSL = 8704; VSL = 8192
L_X = 65536
L_HI = 131072
L_FP = 159744
L_TOTAL = L_FP + 4096
L_K = L_HI
KADDR = [L_HI, L_HI + KSL, L_HI + 2 * KSL, L_X, L_X + KSL + 2 * VSL, L_X + 2 * KSL + 2 * VSL, L_X + 3 * KSL + 2 * VSL]
VADDR = [L_X + KSL, L_X + KSL + VSL, L_X + 4 * KSL + 2 * VSL] + [i * VSL for i in range(8)]
assert VADDR[2] + VSL <= L_HI and KADDR[2] + KSL <= L_FP and VADDR[1] + VSL <= L_X + 32768
def Kabs(t): return KADDR[t % 7]
def Vabs(t): return VADDR[t % 11]

vDk, vDv, vKb, vVa, vVb, vO, vL0, vL1, vDf, vKh, vT0, vT1, vT2, vT3 = 2, 3, 4, 5, 6, 7, 8, 9, 10, 11, 12, 13, 14, 15
vPF = 211
ACC = 16; QP = 80; S = 112; NEGM = 144; P = 160; KF = 176; VF = 192; E = 208
QA = 112; AF = 176
def BRr(buf, k): return 212 + (buf & 1) * 16 + k * 4
FR = 212
vA0, vA1, vDq, vDq2, vXB0, vXB1 = 244, 245, 246, 247, 248, 249
vXD = 80
FT = 244; FD = 248; XS = 252
sW = 3
sHEAD, sRB, sG = 20, 21, 22
sN, sWq, sM, sB = 23, 24, 25, 26
sKsrc, sKw, sVsrc, sVw = 27, 28, 29, 30
sPL, sPH = 31, 32
sFsrc, sIDX = 69+32, 35
SRD_WQ, SRD_XN, SRD_K, SRD_V, SRD_F, SRD_OT = 36, 40, 44, 48, 52, 56
sT0, sT1, sT2, sT3 = 60, 61, 62, 63
sOT = 64
sXM = 100
QSCALE = math.log2(math.e) / math.sqrt(128.0)
def fbits(x): return "0x%08x" % struct.unpack("<I", struct.pack("<f", x))[0]
D = 4

class Q:
    def __init__(self, cnt, mx): self.q = []; self.cnt = cnt; self.mx = mx
    def issue(self, tag): self.q.append(tag)
    def wait(self, p, *tags):
        idx = [len(self.q) - 1 - self.q[::-1].index(t) for t in tags if t in self.q]
        if not idx: return
        i = max(idx)
        n = len(self.q) - 1 - i
        assert n <= self.mx, n
        p(f"s_waitcnt {self.cnt}({n})")
        self.q = self.q[i + 1:]


KNAME = "recurrent_scan__sliding_block_cached__moe_arch_mod__prompt_kernel"
sFL, sPC, sKEY = 65, 70, 34
SPIN_MAX = 20000
MODE0 = [False]
NOEW = [False]
MODE3 = [False]
WS_FLG = 0x500000
sNON = 33

LX = 16
def poll32(p, lab, sGrp, stage):
    p(f"""
    v_and_b32 v{vT0}, 31, v1
    v_lshlrev_b32 v{vT0}, 7, v{vT0}
    s_lshl_b32 s{sGrp}, s{sGrp}, 12
    s_add_u32 s{sGrp}, s{sGrp}, {WS_FLG + stage*32768}
    v_add_u32 v{vT0}, s{sGrp}, v{vT0}
    s_mov_b32 s73, {SPIN_MAX}
    """)
    p.label(lab)
    p(f"""
    global_load_dword v{vT1}, v{vT0}, s[18:19] sc1
    s_waitcnt vmcnt(0)
    v_cmp_ne_u32 vcc, s{sNON}, v{vT1}
    s_cbranch_vccz {lab}_OK
    s_sleep 1
    s_sub_u32 s73, s73, 1
    s_cmp_lg_u32 s73, 0
    s_cbranch_scc1 {lab}
    """)
    p.label(lab + "_OK")
def set_flag(p, stage):
    p(f"""
    s_lshl_b32 s{sT0}, s{sFL}, 7
    s_add_u32 s{sT0}, s{sT0}, {WS_FLG + stage*32768}
    v_mov_b32 v{vT0}, s{sT0}
    v_mov_b32 v{vT1}, s{sNON}
    s_mov_b64 exec, 1
    global_store_dword v{vT0}, v{vT1}, s[18:19] sc1
    s_mov_b64 exec, -1
    """)
WS_ST = 0x520000
WS_CS = 0x530000
L_SC = L_K
CSR = 92
def get_nonce(p, lab, vz, vn):
    p(f"""
    s_mov_b32 s73, {SPIN_MAX}
{lab}:
    global_load_dword v{vn}, v{vz}, s[66:67] sc1
    s_waitcnt vmcnt(0)
    v_readfirstlane_b32 s{sNON}, v{vn}
    s_cmp_lg_u32 s{sNON}, 0
    s_cbranch_scc1 {lab}_OK
    s_sub_u32 s73, s73, 1
    s_cmp_lg_u32 s73, 0
    s_cbranch_scc1 {lab}
{lab}_OK:
    """)
class Rec:
    def __init__(self): self.items = []
    def __call__(self, text):
        for line in text.split('\n'):
            if line.strip(): self.items.append(line.strip())
    def call(self, f): self.items.append(f)
LN_X = 16; LN_W = 24
vg0, vg1, vr_, vq_, vNON, vCSA, vLXA = 84, 85, 86, 87, 88, 89, 90
def ln_segments(lq, vq, P):
    X = LN_X; W = LN_W; F = 32; S_ = 48; T = 49; Q0 = 50; Q1 = 51; Dd = 52; va = 68; vw = 69; SD = 70; G = 32
    CA = 72; CT = 52
    p = Rec()
    p(f"""
    v_lshrrev_b32 v{vw}, 6, v0
    v_and_b32 v{va}, 7, v1
    v_xor_b32 v{va}, v{va}, v{vw}
    v_lshlrev_b32 v{va}, 4, v{va}
    v_lshl_add_u32 v{va}, v1, 7, v{va}
    v_add_u32 v{va}, {L_SC}, v{va}
    v_lshrrev_b32 v{vg1}, 3, v0
    v_and_b32 v{vg0}, 7, v{vg1}
    v_and_b32 v{vr_}, 7, v0
    v_xor_b32 v{vg0}, v{vg0}, v{vr_}
    v_lshlrev_b32 v{vg0}, 4, v{vg0}
    v_lshl_add_u32 v{vg0}, v{vg1}, 8, v{vg0}
    s_lshr_b32 s{sT0}, s{sFL}, 1
    s_lshl_b32 s{sT0}, s{sT0}, 15
    s_and_b32 s{sT1}, s{sFL}, 1
    s_lshl_b32 s{sT1}, s{sT1}, 7
    s_add_u32 s{sT0}, s{sT0}, s{sT1}
    v_add_u32 v{vg0}, s{sT0}, v{vg0}
    v_add_u32 v{vg1}, 0x4000, v{vg0}
    v_lshlrev_b32 v{vr_}, 4, v0
    v_add_u32 v{vr_}, {L_SC}, v{vr_}
    """)
    p.call(lambda: vq.wait(P, ("LX", 1)))
    ONE = F
    p(f"v_mov_b32 v{ONE}, 0x3f803f80")
    p(f"v_dot2_f32_bf16 v{S_}, v{X}, v{ONE}, 0\nv_dot2_f32_bf16 v{Q0}, v{X}, v{X}, 0")
    p(f"v_dot2_f32_bf16 v{T}, v{X+1}, v{ONE}, 0\nv_dot2_f32_bf16 v{Q1}, v{X+1}, v{X+1}, 0")
    for i in range(2, 8, 2):
        p(f"v_dot2_f32_bf16 v{S_}, v{X+i}, v{ONE}, v{S_}\nv_dot2_f32_bf16 v{Q0}, v{X+i}, v{X+i}, v{Q0}")
        p(f"v_dot2_f32_bf16 v{T}, v{X+i+1}, v{ONE}, v{T}\nv_dot2_f32_bf16 v{Q1}, v{X+i+1}, v{X+i+1}, v{Q1}")
    p(f"s_nop 1\nv_add_f32 v{S_}, v{S_}, v{T}\nv_add_f32 v{Q0}, v{Q0}, v{Q1}")
    ra = Rec(); wave_sum(ra, S_, T); rb_ = Rec(); wave_sum(rb_, Q0, Q1)
    for x_, y_ in zip(ra.items, rb_.items): p(x_); p(y_)
    p(f"""
    v_mul_f32 v{S_}, 0x3a800000, v{S_}
    v_mul_f32 v{Q0}, 0x3a800000, v{Q0}
    v_fma_f32 v{Q0}, -v{S_}, v{S_}, v{Q0}
    v_max_f32 v{Q0}, 0, v{Q0}
    v_cvt_pk_bf16_f32 v{T}, v{S_}, v{Q0}
    v_lshlrev_b32 v{S_}, 16, v{T}
    v_and_b32 v{Q0}, 0xffff0000, v{T}
    v_add_f32 v{Q0}, 0x3727c5ac, v{Q0}
    v_cvt_pk_bf16_f32 v{Q0}, v{Q0}, v{Q0}
    v_lshlrev_b32 v{Q0}, 16, v{Q0}
    v_sqrt_f32 v{Q0}, v{Q0}
    v_cvt_pk_bf16_f32 v{SD}, v{S_}, v{Q0}
    v_and_b32 v{Q0}, 0xffff0000, v{SD}
    v_rcp_f32 v{Q0}, v{Q0}
    """)
    def dsw(text, tag):
        def f():
            P(text); lq.issue(tag)
        p.call(f)
    p(f"""
    s_lshl_b32 s{sT0}, s{sW}, 2
    s_add_u32 s{sT0}, s{sT0}, {L_SC + 16384}
    v_mov_b32 v{vw}, s{sT0}
    """)
    partA1 = p.items
    p = Rec()
    p.call(lambda: vq.wait(P, ("CS", 3)))
    for i in range(4):
        for j in range(4):
            r = CSR + 4 * i + j
            if i == 0:
                p(f"v_lshlrev_b32 v{CA+2*j}, 16, v{r}\nv_and_b32 v{CA+2*j+1}, 0xffff0000, v{r}")
            else:
                p(f"v_lshlrev_b32 v{CT}, 16, v{r}\nv_and_b32 v{CT+1}, 0xffff0000, v{r}")
                p(f"v_add_f32 v{CA+2*j}, v{CA+2*j}, v{CT}\nv_add_f32 v{CA+2*j+1}, v{CA+2*j+1}, v{CT+1}")
    p(f"""
    v_lshlrev_b32 v{T}, 5, v0
    v_add_u32 v{T}, {L_SC}, v{T}
    """)
    dsw(f"ds_write_b128 v{T}, v[{CA}:{CA+3}]", ("LW", 4))
    dsw(f"ds_write_b128 v{T}, v[{CA+4}:{CA+7}] offset:16", ("LW", 5))
    partA = p.items
    p = Rec()
    exact = True
    for i in range(8):
        p(f"v_lshlrev_b32 v{Dd+2*i}, 16, v{X+i}\nv_and_b32 v{Dd+2*i+1}, 0xffff0000, v{X+i}")
    for i in range(16): p(f"v_sub_f32 v{Dd+i}, v{Dd+i}, v{S_}")
    for i in range(8): p(f"v_cvt_pk_bf16_f32 v{X+i}, v{Dd+2*i}, v{Dd+2*i+1}")
    for i in range(8):
        p(f"v_lshlrev_b32 v{Dd+2*i}, 16, v{X+i}\nv_and_b32 v{Dd+2*i+1}, 0xffff0000, v{X+i}")
    for i in range(16): p(f"v_mul_f32 v{Dd+i}, v{Dd+i}, v{Q0}")
    for i in range(8): p(f"v_cvt_pk_bf16_f32 v{X+i}, v{Dd+2*i}, v{Dd+2*i+1}")
    p.call(lambda: vq.wait(P, ("LX", 3)))
    p(f"v_dot2_f32_bf16 v{S_}, v{X}, v{W}, 0\nv_dot2_f32_bf16 v{Q1}, v{X+1}, v{W+1}, 0")
    for i in range(2, 8, 2):
        p(f"v_dot2_f32_bf16 v{S_}, v{X+i}, v{W+i}, v{S_}\nv_dot2_f32_bf16 v{Q1}, v{X+i+1}, v{W+i+1}, v{Q1}")
    p(f"s_nop 2\nv_add_f32 v{S_}, v{S_}, v{Q1}")
    wave_sum(p, S_, T)
    p(f"""
    v_cvt_pk_bf16_f32 v{S_}, v{S_}, v{S_}
    v_lshlrev_b32 v{S_}, 16, v{S_}
    v_ashrrev_i32 v{T}, 31, v{S_}
    v_or_b32 v{T}, 0x80000000, v{T}
    v_xor_b32 v{S_}, v{S_}, v{T}
    v_and_b32 v{S_}, 0xffff0000, v{S_}
    s_lshl_b32 s{sT1}, s{sFL}, 3
    s_add_u32 s{sT1}, s{sT1}, s{sW}
    s_sub_u32 s{sT0}, 2047, s{sT1}
    v_or_b32 v{S_}, s{sT0}, v{S_}
    v_mov_b32 v{vL0}, 0
    v_mov_b32 v{vL1}, 0
    """)
    dsw(f"ds_write_b128 v{va}, v[{X}:{X+3}]", ("LW", 0))
    dsw(f"ds_write_b128 v{va}, v[{X+4}:{X+7}] offset:8192", ("LW", 1))
    dsw(f"ds_write_b32 v{vw}, v{S_}", ("LW", 2))
    return partA1, partA, p.items
def pub_segments(lq, vq, P):
    R = CSR
    p = Rec()
    def ds(text, tag):
        def f():
            P(text); lq.issue(tag)
        p.call(f)
    def vm(text, tag):
        def f():
            P(text); vq.issue(tag)
        p.call(f)
    p(f"""
    v_lshrrev_b32 v{R+4}, 3, v1
    v_lshlrev_b32 v{R+4}, 9, v{R+4}
    v_and_b32 v{R+5}, 7, v1
    v_lshl_add_u32 v{R+4}, v{R+5}, 3, v{R+4}
    s_lshl_b32 s{sT0}, s{sW}, 6
    s_add_u32 s{sT0}, s{sT0}, {L_SC}
    v_add_u32 v{R+4}, s{sT0}, v{R+4}
    """)
    ds(f"ds_read_b64 v[{R}:{R+1}], v{R+4}", ("PR", 9))
    ds(f"ds_read_b64 v[{R+8}:{R+9}], v{R+4} offset:4096", ("PR", 8))
    p("s_nop 0\ns_nop 0\ns_nop 0\ns_nop 0")
    ds(f"ds_read_b64 v[{R+10}:{R+11}], v{R+4} offset:8192", ("PR", 7))
    ds(f"ds_read_b64 v[{R+12}:{R+13}], v{R+4} offset:12288", ("PR", 0))
    p(f"""
    s_lshl_b32 s{sT0}, s{sHEAD}, 3
    s_add_u32 s{sT0}, s{sT0}, s{sRB}
    s_lshl_b32 s{sT0}, s{sT0}, 3
    s_add_u32 s{sT0}, s{sT0}, s{sW}
    s_lshl_b32 s{sT0}, s{sT0}, 7
    s_add_u32 s{sT0}, s{sT0}, {WS_CS}
    v_lshlrev_b32 v{R+5}, 4, v{R+5}
    v_add_u32 v{R+5}, s{sT0}, v{R+5}
    s_lshl_b32 s{sT0}, s{sFL}, 3
    s_add_u32 s{sT0}, s{sT0}, s{sW}
    s_lshl_b32 s{sT0}, s{sT0}, 3
    s_add_u32 s{sT0}, s{sT0}, {WS_ST}
    v_mov_b32 v{R+6}, s{sT0}
    v_mov_b32 v71, s{sNON}
    """)
    vm(f"s_mov_b64 exec, 1\nglobal_store_dwordx2 v{R+6}, v[70:71], s[18:19] sc1\ns_mov_b64 exec, -1", ("PS", 0))
    p.call(lambda: lq.wait(P, ("PR", 0)))
    p(f"""
    v_add_f32 v{R}, v{R}, v{R+8}
    v_add_f32 v{R+1}, v{R+1}, v{R+9}
    v_add_f32 v{R+10}, v{R+10}, v{R+12}
    v_add_f32 v{R+11}, v{R+11}, v{R+13}
    v_add_f32 v{R}, v{R}, v{R+10}
    v_add_f32 v{R+2}, v{R+1}, v{R+11}
    """)
    for c in (R, R + 2): p(f"v_add_f32_dpp v{c}, v{c}, v{c} row_ror:8 row_mask:0xf bank_mask:0xf")
    for sw in ("v_permlane16_swap_b32", "v_permlane32_swap_b32"):
        p(f"v_mov_b32 v{R+1}, v{R}\nv_mov_b32 v{R+3}, v{R+2}")
        p(f"{sw} v{R}, v{R+1}\n{sw} v{R+2}, v{R+3}")
        p(f"v_add_f32 v{R}, v{R}, v{R+1}\nv_add_f32 v{R+2}, v{R+2}, v{R+3}")
    p(f"v_mov_b32 v{R+1}, s{sNON}\nv_mov_b32 v{R+3}, s{sNON}")
    vm(f"s_mov_b64 exec, 0xff\nglobal_store_dwordx4 v{R+5}, v[{R}:{R+3}], s[18:19] sc1\ns_mov_b64 exec, -1", ("PS", 1))
    seg1 = p.items
    p = Rec()
    X = 16
    ds(f"ds_read_b128 v[{X}:{X+3}], v{vr_}", ("PR", 1))
    ds(f"ds_read_b128 v[{X+4}:{X+7}], v{vr_} offset:8192", ("PR", 2))
    p(f"v_mov_b32 v{vq_}, {L_SC + 16384}")
    ds(f"ds_read_b128 v[{X+8}:{X+11}], v{vq_}", ("PR", 3))
    p("s_nop 0\ns_nop 0\ns_nop 0\ns_nop 0")
    p.call(lambda: lq.wait(P, ("PR", 1)))
    vm(f"global_store_dwordx4 v{vg0}, v[{X}:{X+3}], s[18:19] sc1", ("PS", 2))
    ds(f"ds_read_b128 v[{X+12}:{X+15}], v{vq_} offset:16", ("PR", 4))
    p.call(lambda: lq.wait(P, ("PR", 2)))
    vm(f"global_store_dwordx4 v{vg1}, v[{X+4}:{X+7}], s[18:19] sc1", ("PS", 3))
    p("s_nop 0\ns_nop 0\ns_nop 0\ns_nop 0")
    p.call(lambda: lq.wait(P, ("PR", 4)))
    p(f"""
    v_max3_u32 v{X+8}, v{X+8}, v{X+9}, v{X+10}
    v_max3_u32 v{X+12}, v{X+12}, v{X+13}, v{X+14}
    v_max3_u32 v{X+8}, v{X+8}, v{X+11}, v{X+15}
    v_max_u32 v{X+8}, v{X+8}, v{X+12}
    v_readfirstlane_b32 s{sKEY}, v{X+8}
    """)
    return seg1, p.items
def set_flag2(p):
    pass

def rbf(p, v):
    p(f"v_cvt_pk_bf16_f32 v{v}, v{v}, v{v}\nv_lshlrev_b32 v{v}, 16, v{v}")
def silu(p, d, v, t):
    p(f"""
    v_mul_f32 v{t}, 0xbfb8aa3b, v{v}
    v_exp_f32 v{t}, v{t}
    v_add_f32 v{t}, 1.0, v{t}
    v_rcp_f32 v{t}, v{t}
    v_mul_f32 v{d}, v{v}, v{t}
    """)
sRT, sCT, sIT, sA, sBo, sMb, sMb2, sKH, sKQ, sMH = 20, 21, 23, 24, 25, 26, 27, 28, 29, 30
sKG, sCG = 31, 32
SRD_A, SRD_B = 36, 40
RB1 = 16384; RB2 = 114688
WS_EX = 0x2000000; WS_FLG2 = 0x560000
EW = 244
L_H3 = 148480
CNT_A = L_HI + 2*KSL + 6*1088 + 1024
CNT_B = CNT_A + 1088
def p3_early_setup():
    return f"""s_and_b32 s{sT0}, s2, 7
    s_lshr_b32 s{sT1}, s2, 3
    s_lshr_b32 s{sRT}, s{sT0}, 1
    s_lshl_b32 s{sRT}, s{sRT}, 2
    s_and_b32 s{sT2}, s{sT1}, 3
    s_add_u32 s{sRT}, s{sRT}, s{sT2}
    s_and_b32 s{sCT}, s{sT0}, 1
    s_lshl_b32 s{sCT}, s{sCT}, 2
    s_bfe_u32 s{sT2}, s{sT1}, 0x20002
    s_add_u32 s{sCT}, s{sCT}, s{sT2}
    s_lshr_b32 s{sKH}, s{sT1}, 4
    s_and_b32 s{sKQ}, s{sW}, 3
    s_lshr_b32 s{sMH}, s{sW}, 2
    s_xor_b32 s{sMH}, s{sMH}, s{sKH}
    s_xor_b32 s{sMH}, s{sMH}, 1
    s_lshl_b32 s{sT0}, s{sKH}, 2
    s_add_u32 s{sT0}, s{sT0}, s{sKQ}
    s_lshl_b32 s{sT1}, s{sT0}, 21
    s_add_u32 s{sT1}, s{sT1}, {WS_OT}
    s_add_u32 s{SRD_A}, s18, s{sT1}
    s_addc_u32 s{SRD_A+1}, s19, 0
    s_mov_b32 s{SRD_A+2}, 0x200000
    s_mov_b32 s{SRD_A+3}, 0x20000
    s_lshl_b32 s{sT1}, s{sT0}, 20
    s_add_u32 s{SRD_B}, s10, s{sT1}
    s_addc_u32 s{SRD_B+1}, s11, 0
    s_mov_b32 s{SRD_B+2}, 0x100000
    s_mov_b32 s{SRD_B+3}, 0x20000
    s_lshl_b32 s{sA}, s{sRT}, 1
    s_add_u32 s{sA}, s{sA}, s{sMH}
    s_lshl_b32 s{sA}, s{sA}, 12
    s_lshl_b32 s{sBo}, s{sCT}, 8
    s_lshl_b32 s{sT1}, s{sMH}, 15
    s_add_u32 s{sBo}, s{sBo}, s{sT1}
    s_mul_i32 s{sMb}, s{sKQ}, 24576
    s_add_u32 s{sMb}, s{sMb}, {RB1}
    s_lshl_b32 s{sMb2}, s{sKQ}, 13
    s_add_u32 s{sMb2}, s{sMb2}, {RB2 - 3*8192}
    s_lshl_b32 s{sT1}, s{sMH}, 12
    s_add_u32 s{sT2}, s{sMb}, s{sT1}
    s_add_u32 s{sT3}, s{sMb2}, s{sT1}
    v_lshrrev_b32 v{EW+1}, 4, v1
    v_and_b32 v{EW}, 3, v1
    v_bfe_u32 v{EW+2}, v1, 2, 2
    v_lshlrev_b32 v{EW}, 4, v{EW}
    v_lshl_add_u32 v{EW}, v{EW+1}, 6, v{EW}
    v_lshl_add_u32 v{EW}, v{EW+2}, 11, v{EW}
    v_add_u32 v{EW+1}, 7168, v{EW}
    v_add_u32 v{EW+2}, {2*7168}, v{EW}
    v_add_u32 v{EW+3}, {3*7168}, v{EW}
    s_mov_b32 s{sDW}, s{sT2}
    s_mov_b32 s{sDW2}, s{sT3}"""
sDW, sDW2 = 68, 69
def wdma(slot, i, vW):
    t = ""
    if i == 0: t = f"s_add_u32 m0, s{sDW2 if slot == 3 else sDW}, {slot*8192}\ns_nop 0\n"
    t += f"buffer_load_dwordx4 v{vW+i}, s[{SRD_B}:{SRD_B+3}], s{sBo} offen offset:{i*1024} lds"
    if i == 3: t += f"\ns_add_u32 s{sBo}, s{sBo}, 65536"
    return t
def p3_early_dma(n):
    return wdma(n >> 2, n & 3, EW)
PL_A = 212; PL_B = 228; PL_G = 176; PL_OUT = 248
def gu_loads(GA):
    t = f"""s_mul_i32 s{sT0}, s{sKG}, 224
    s_mul_i32 s{sT1}, s{sKQ}, 56
    s_add_u32 s{sT0}, s{sT0}, s{sT1}
    v_min_u32 v{GA}, 55, v1
    v_add_lshl_u32 v{GA}, v{GA}, s{sT0}, 3
    v_add_u32 v{GA}, {WS_GU}, v{GA}
    """
    for q in range(8):
        t += f"global_load_dwordx2 v[{PL_G+2*q}:{PL_G+2*q+1}], v{GA}, s[18:19] sc1\n"
        if q < 7: t += f"v_add_u32 v{GA}, 28672, v{GA}\n"
    return t
def p3_preload(n):
    A = 249; B = 250
    if n == 0:
        return f"""s_and_b32 s{sKG}, s{sFL}, 15
    s_lshr_b32 s{sCG}, s{sFL}, 4
    s_cmp_lg_u32 s{sMH}, s{sKH}
    s_cbranch_scc1 M_PL_S
    s_lshl_b32 s{sT0}, s{sRT}, 1
    s_add_u32 s{sT0}, s{sT0}, s{sKH}
    s_lshl_b32 s{sT0}, s{sT0}, 2
    s_add_u32 s{sT0}, s{sT0}, s{sKQ}
    s_lshl_b32 s{sT1}, s{sT0}, 15
    s_lshl_b32 s{sT2}, s{sCT}, 8
    s_add_u32 s{sT2}, s{sT1}, s{sT2}
    v_and_b32 v{A}, 15, v1
    v_lshrrev_b32 v{B}, 4, v1
    v_lshlrev_b32 v{PL_OUT}, 11, v{A}
    v_lshl_add_u32 v{PL_OUT}, v{B}, 4, v{PL_OUT}
    v_add_u32 v{PL_OUT}, s{sT2}, v{PL_OUT}
    s_lshl_b32 s{sT2}, s{sCT}, 12
    s_add_u32 s{sT2}, s{sT1}, s{sT2}
    v_lshlrev_b32 v{A}, 4, v{A}
    v_lshl_add_u32 v{A}, v{B}, 8, v{A}
    v_add_u32 v{A}, s{sT2}, v{A}
    s_branch M_PL_E
M_PL_S:
    s_mul_i32 s{sT0}, s{sKG}, 224
    s_mul_i32 s{sT1}, s{sKQ}, 56
    s_add_u32 s{sT0}, s{sT0}, s{sT1}
    s_lshl_b32 s{sT1}, s{sT0}, 11
    s_lshl_b32 s{sT2}, s{sCG}, 7
    s_add_u32 s{sT1}, s{sT1}, s{sT2}
    v_lshrrev_b32 v{A}, 3, v1
    v_lshlrev_b32 v{A}, 11, v{A}
    v_and_b32 v{B}, 7, v1
    v_lshl_add_u32 v{A}, v{B}, 4, v{A}
    v_add_u32 v{A}, s{sT1}, v{A}
    v_mov_b32 v{PL_OUT}, 0
M_PL_E:"""
    if n == 9:
        return f"s_cmp_eq_u32 s{sMH}, s{sKH}\ns_cbranch_scc1 M_PL9\n{gu_loads(B)}M_PL9:"
    i = n - 1
    kl = (f"global_load_dwordx4 v[{PL_B+4*i}:{PL_B+4*i+3}], v{A}, s[18:19] offset:{i*1024} sc1" if i < 4 else
          f"global_load_dwordx4 v[{PL_A+4*(i-4)}:{PL_A+4*(i-4)+3}], v{PL_OUT}, s[74:75] offset:{(i-4)*64}")
    sl = (f"global_load_dwordx4 v[{PL_A+4*i}:{PL_A+4*i+3}], v{A}, s[16:17]\nv_add_u32 v{A}, 0x4000, v{A}\n" if i < 7 else "")
    return f"s_cmp_lg_u32 s{sMH}, s{sKH}\ns_cbranch_scc1 M_PLS{n}\n{kl}\ns_branch M_PLE{n}\nM_PLS{n}:\n{sl}M_PLE{n}:"
def phase3(p, ST, stamp):
    AC3 = 128; OR = 64; WF = 16; XP = 32; GP = 48
    vAo, vRd, vRd2, vOut, vFa, vFv = 2, 3, 8, 9, 10, 11; vW = 4
    ST(False)
    def oload(slot, i):
        r = OR + slot * 16 + i * 4
        t = f"buffer_load_dwordx4 v[{r}:{r+3}], v{vAo}, s[{SRD_A}:{SRD_A+3}], s{sA} offen offset:{i*1024} sc1"
        if i == 3: t += f"\ns_add_u32 s{sA}, s{sA}, 131072"
        return t
    def arrive(lab, n):
        p(f"""
    v_mov_b32 v{vT0}, {CNT_A}
    v_mov_b32 v{vT1}, 1
    s_waitcnt vmcnt({n})
    s_mov_b64 exec, 1
    ds_add_rtn_u32 v{vT2}, v{vT0}, v{vT1}
    s_mov_b64 exec, -1
    s_waitcnt lgkmcnt(0)
    v_readfirstlane_b32 s{sT0}, v{vT2}
    s_cmp_lg_u32 s{sT0}, 7
    s_cbranch_scc1 {lab}
    """)
        set_flag(p, 1)
        p.label(lab)
    NR = PL_B; GG = 144; TT = 176
    p(f"""
    ST3_0
    v_mov_b32 v{vW}, v{EW}
    v_mov_b32 v{vW+1}, v{EW+1}
    v_mov_b32 v{vW+2}, v{EW+2}
    v_mov_b32 v{vW+3}, v{EW+3}
    v_mov_b32 v{vOut}, v{PL_OUT}
    s_waitcnt vmcnt(8)
    s_cmp_lg_u32 s{sMH}, s{sKH}
    s_cbranch_scc1 M_SEND0
    """)
    for j in range(16):
        p(f"v_lshlrev_b32 v{GG+2*j}, 16, v{NR+j}\nv_and_b32 v{GG+2*j+1}, 0xffff0000, v{NR+j}\nv_mov_b32 v{XP+j}, v{PL_A+j}")
    for c in range(32): p(f"v_mul_f32 v{TT+c}, 0xbfb8aa3b, v{GG+c}")
    for c in range(32): p(f"v_exp_f32 v{TT+c}, v{TT+c}")
    for c in range(32): p(f"v_add_f32 v{TT+c}, 1.0, v{TT+c}")
    for c in range(32): p(f"v_rcp_f32 v{TT+c}, v{TT+c}")
    for c in range(32): p(f"v_mul_f32 v{GG+c}, v{GG+c}, v{TT+c}")
    for c in range(16): p(f"v_cvt_pk_bf16_f32 v{GP+c}, v{GG+2*c}, v{GG+2*c+1}")
    arrive("M_ARR0", 0)
    p("ST3_6\ns_branch M_JOIN0")
    p.label("M_SEND0")
    WD = PL_A; GR = PL_G; GA = 144; AC = 152; T = 160; SW = 164
    guld = gu_loads(GA)
    p(guld)
    arrive("M_ARR3", 8)
    p(f"s_mov_b32 s73, {SPIN_MAX}\ns_mov_b32 s{sIT}, 1\ns_waitcnt vmcnt(0)")
    p.label("M_POLL2")
    for q in range(8): p(f"v_xor_b32 v{GR+2*q+1}, s{sNON}, v{GR+2*q+1}")
    p(f"""
    v_or3_b32 v{GR+1}, v{GR+1}, v{GR+3}, v{GR+5}
    v_or3_b32 v{GR+7}, v{GR+7}, v{GR+9}, v{GR+11}
    v_or3_b32 v{GR+1}, v{GR+1}, v{GR+13}, v{GR+15}
    v_or_b32 v{GR+1}, v{GR+1}, v{GR+7}
    v_cmp_ne_u32 vcc, 0, v{GR+1}
    s_cbranch_vccz M_POLL2_OK
    s_cmp_lg_u32 s{sIT}, 0
    s_cbranch_scc1 M_ARR2
    s_mov_b32 s{sIT}, 1
    """)
    arrive("M_ARR2", 0)
    p(f"""
    s_sleep 10
    {guld}
    s_waitcnt vmcnt(0)
    s_sub_u32 s73, s73, 1
    s_cmp_lg_u32 s73, 0
    s_cbranch_scc1 M_POLL2
    """)
    p.label("M_POLL2_OK")
    p(f"v_mov_b32 v{GR+1}, v{GR+2}")
    for q in range(1, 4):
        p(f"v_add_f32 v{GR}, v{GR}, v{GR+4*q}\nv_add_f32 v{GR+1}, v{GR+1}, v{GR+4*q+2}")
    rbf(p, GR); rbf(p, GR + 1)
    silu(p, GR, GR, GR + 2)
    rbf(p, GR)
    p(f"v_mul_f32 v{GR}, v{GR}, v{GR+1}")
    rbf(p, GR)
    p(f"""
    s_lshl_b32 s{sT0}, s{sKQ}, 8
    s_add_u32 s{sT0}, s{sT0}, {L_H3}
    v_lshlrev_b32 v{vT0}, 2, v1
    v_add_u32 v{vT0}, s{sT0}, v{vT0}
    ds_write_b32 v{vT0}, v{GR}
    v_lshrrev_b32 v{vT1}, 3, v1
    v_lshlrev_b32 v{vT1}, 2, v{vT1}
    v_add_u32 v{vT1}, s{sT0}, v{vT1}
    s_waitcnt lgkmcnt(0)
    """)
    for i in range(7): p(f"ds_read_b32 v{GR+i}, v{vT1} offset:{i*32}")
    p("s_waitcnt lgkmcnt(0)")
    for i in range(7):
        for j in range(4):
            w = WD + 4 * i + j
            p(f"v_lshlrev_b32 v{T}, 16, v{w}\nv_and_b32 v{T+1}, 0xffff0000, v{w}")
            if i == 0: p(f"v_mul_f32 v{AC+2*j}, v{T}, v{GR}\nv_mul_f32 v{AC+2*j+1}, v{T+1}, v{GR}")
            else: p(f"v_fmac_f32 v{AC+2*j}, v{T}, v{GR+i}\nv_fmac_f32 v{AC+2*j+1}, v{T+1}, v{GR+i}")
    for c in range(8): p(f"v_add_f32_dpp v{AC+c}, v{AC+c}, v{AC+c} row_ror:8 row_mask:0xf bank_mask:0xf")
    for sw in ("v_permlane16_swap_b32", "v_permlane32_swap_b32"):
        for c in range(8): p(f"v_mov_b32 v{SW+c}, v{AC+c}")
        for c in range(8): p(f"{sw} v{AC+c}, v{SW+c}")
        for c in range(8): p(f"v_add_f32 v{AC+c}, v{AC+c}, v{SW+c}")
    p(f"""
    v_and_b32 v{vT0}, 7, v1
    v_lshlrev_b32 v{vT0}, 5, v{vT0}
    s_add_u32 s{sT0}, s{sT0}, 1024
    v_add_u32 v{vT0}, s{sT0}, v{vT0}
    ds_write_b128 v{vT0}, v[{AC}:{AC+3}]
    ds_write_b128 v{vT0}, v[{AC+4}:{AC+7}] offset:16
    v_mov_b32 v{vT0}, {CNT_B}
    v_mov_b32 v{vT1}, 1
    s_waitcnt lgkmcnt(0)
    s_mov_b64 exec, 1
    ds_add_rtn_u32 v{vT2}, v{vT0}, v{vT1}
    s_mov_b64 exec, -1
    s_waitcnt lgkmcnt(0)
    v_readfirstlane_b32 s{sT0}, v{vT2}
    s_cmp_lg_u32 s{sT0}, 3
    s_cbranch_scc1 M_SEND_END
    v_lshlrev_b32 v{vT0}, 2, v1
    v_add_u32 v{vT1}, {L_H3 + 1024}, v{vT0}
    ds_read_b32 v{GR}, v{vT1}
    ds_read_b32 v{GR+1}, v{vT1} offset:256
    ds_read_b32 v{GR+2}, v{vT1} offset:512
    ds_read_b32 v{GR+3}, v{vT1} offset:768
    s_lshl_b32 s{sT0}, s{sKG}, 13
    s_lshl_b32 s{sT1}, s{sCG}, 9
    s_add_u32 s{sT0}, s{sT0}, s{sT1}
    s_add_u32 s{sT0}, s{sT0}, {WS_YP}
    v_lshlrev_b32 v{vT0}, 1, v{vT0}
    v_add_u32 v{vT0}, s{sT0}, v{vT0}
    s_waitcnt lgkmcnt(0)
    v_add_f32 v{GR}, v{GR}, v{GR+1}
    v_add_f32 v{GR+2}, v{GR+2}, v{GR+3}
    v_add_f32 v{GR}, v{GR}, v{GR+2}
    v_mov_b32 v{GR+1}, s{sNON}
    global_store_dwordx2 v{vT0}, v[{GR}:{GR+1}], s[18:19] sc1
    """)
    p.label("M_SEND_END")
    p(f"s_and_b32 s{sT3}, s{sBo}, 0x7fff")
    for sl in range(3):
        for hf in range(2):
            p(f"s_add_u32 m0, s{sMb}, {sl*8192 + hf*4096}\ns_nop 0")
            for i in range(4):
                p(f"buffer_load_dwordx4 v{vW+i}, s[{SRD_B}:{SRD_B+3}], s{sT3} offen offset:{i*1024} lds")
            p(f"s_add_u32 s{sT3}, s{sT3}, 32768")
    p(f"s_cmp_lg_u32 s{sIT}, 0\ns_cbranch_scc1 M_JOIN0")
    arrive("M_ARR1", 0)
    p("ST3_6")
    p.label("M_JOIN0")
    p(f"s_add_u32 s{sBo}, s{sBo}, {3*65536}")
    p(f"""
    ST3_1
    s_lshr_b32 s{sT0}, s{sRT}, 1
    s_lshl_b32 s{sT0}, s{sT0}, 1
    s_add_u32 s{sT0}, s{sT0}, s{sKH}
    s_lshl_b32 s{sT0}, s{sT0}, 2
    s_add_u32 s{sT0}, s{sT0}, s{sKQ}
    s_lshl_b32 s{sT0}, s{sT0}, 9
    s_add_u32 s{sT0}, s{sT0}, {WS_FLG + 32768}
    v_and_b32 v{vFa}, 3, v1
    v_lshlrev_b32 v{vFa}, 7, v{vFa}
    v_add_u32 v{vFa}, s{sT0}, v{vFa}
    global_load_dword v{vFv}, v{vFa}, s[18:19] sc1
    v_lshlrev_b32 v{vAo}, 4, v1
    s_mov_b32 s{sIT}, 0
    v_lshrrev_b32 v{vT0}, 4, v1
    v_and_b32 v{vT1}, 3, v1
    v_bfe_u32 v{vT3}, v1, 2, 2
    v_lshlrev_b32 v{vRd}, 11, v{vT0}
    v_lshl_add_u32 v{vRd}, v{vT3}, 6, v{vRd}
    v_lshl_add_u32 v{vRd}, v{vT1}, 4, v{vRd}
    v_add_u32 v{vRd2}, s{sMb2}, v{vRd}
    v_add_u32 v{vRd}, s{sMb}, v{vRd}
    """)
    for i in range(128): p(f"v_mov_b32 v{AC3+i}, 0")
    p(f"""
    s_mov_b32 s73, {SPIN_MAX}
M_POLL1:
    s_waitcnt vmcnt(0)
    v_cmp_ne_u32 vcc, s{sNON}, v{vFv}
    s_cbranch_vccz M_POLL1_OK
    s_sleep 2
    global_load_dword v{vFv}, v{vFa}, s[18:19] sc1
    s_sub_u32 s73, s73, 1
    s_cmp_lg_u32 s73, 0
    s_cbranch_scc1 M_POLL1
M_POLL1_OK:
    ST3_2
    """)
    for sl in range(3):
        for i in range(4): p(oload(sl, i))
    p("ST3_3\ns_barrier\nST3_4\ns_waitcnt vmcnt(8)\nST3_5")
    ST(False)
    lq = Q("lgkmcnt", 15)
    if stamp: p("s_waitcnt lgkmcnt(0)")
    def wread(slot, f):
        u, e = f >> 1, f & 1
        r = WF + (f & 3) * 4
        for t in range(2):
            p(f"ds_read_b64_tr_b16 v[{r+2*t}:{r+2*t+1}], v{vRd2 if slot == 3 else vRd} offset:{slot*8192 + t*1024 + u*256 + e*8}")
            lq.issue(("W", f & 3, t))
    LAW = 3
    for f in range(LAW): wread(0, f)
    st0 = list(lq.q)
    p(".p2align 6")
    p.label("M_P3")
    for st in range(4):
        n = (st + 3) & 3
        L = [wdma(n, i, vW) for i in range(4)] + [oload(n, i) for i in range(4)]
        for f in range(8):
            fn = f + LAW; ns = st
            if fn >= 8: fn -= 8; ns = (st + 1) & 3
            lq.wait(p, ("W", f & 3, 1))
            for i in range(4):
                d = AC3 + (i * 8 + f) * 4; a = WF + (f & 3) * 4; b = OR + st * 16 + i * 4
                p(f"v_mfma_f32_16x16x32_bf16 v[{d}:{d+3}], v[{a}:{a+3}], v[{b}:{b+3}], v[{d}:{d+3}]")
                if i == 0: wread(ns, fn)
                if i == 2: p(L[f])
        if st == 3: p(f"s_add_u32 s{sIT}, s{sIT}, 1\ns_cmp_lt_u32 s{sIT}, 4")
        p("s_waitcnt vmcnt(12)\ns_barrier")
    assert lq.q == st0
    p(f"""
    s_cbranch_scc1 M_P3
    s_waitcnt vmcnt(0) lgkmcnt(0)
    s_mul_i32 s{sT0}, s{sKQ}, 24576
    v_add_u32 v{vT0}, s{sT0}, v{vAo}
    v_add_u32 v{vRd2}, 0x10000, v{vAo}
    s_barrier
    """)
    ST(False)
    p("ST4_0")
    RD = 64
    OWN = 16
    OWN = 96
    def red_write(tag):
        for w in range(3): p(f"s_cmp_eq_u32 s{sKQ}, {w}\ns_cbranch_scc1 M_RW{tag}{w}")
        for w in (3, 0, 1, 2):
            if w != 3: p.label(f"M_RW{tag}{w}")
            for kk in range(1, 4):
                i = (w + kk) & 3; slot = 3 - kk
                base = (i * 3 + slot) * 8192
                for f in range(8):
                    q = i * 8 + f
                    off = base + f * 1024
                    p(f"ds_write_b128 v{vRd2 if off >= 65536 else vAo}, v[{AC3+4*q}:{AC3+4*q+3}] offset:{off & 0xffff}")
            for c in range(32): p(f"v_mov_b32 v{OWN+c}, v{AC3+w*32+c}")
            if w != 2: p(f"s_branch M_RJ{tag}")
        p.label(f"M_RJ{tag}")
    def red_read(after=None):
        for half in range(2):
            T0 = AC3 + half * 48
            for sl in range(3):
                for ff in range(4):
                    r = T0 + (sl * 4 + ff) * 4
                    p(f"ds_read_b128 v[{r}:{r+3}], v{vT0} offset:{sl*8192 + (half*4+ff)*1024}")
            if half == 0: continue
        for half in range(2):
            T0 = AC3 + half * 48
            for sl in range(3):
                n = 24 - (half * 12 + sl * 4 + 4)
                p(f"s_waitcnt lgkmcnt({min(n, 15)})")
                for c in range(16): p(f"v_add_f32 v{OWN+half*16+c}, v{OWN+half*16+c}, v{T0+sl*16+c}")
            if after: after(half)
    p(f"""
    s_cmp_eq_u32 s{sMH}, s{sKH}
    s_cbranch_scc1 M_KEEP1
    """)
    red_write("S")
    p("s_waitcnt lgkmcnt(0)\nST4_1\ns_barrier\nST4_2")
    p(f"""
    s_lshl_b32 s{sT0}, s2, 2
    s_add_u32 s{sT0}, s{sT0}, s{sKQ}
    s_lshl_b32 s{sT1}, s{sT0}, 13
    s_add_u32 s{sT1}, s{sT1}, {WS_EX}
    v_add_u32 v{vFa}, s{sT1}, v{vAo}
    v_add_u32 v{vFv}, 4096, v{vFa}
    s_lshl_b32 s{sT0}, s{sT0}, 7
    s_add_u32 s{sT0}, s{sT0}, {WS_FLG2}
    v_mov_b32 v{vT2}, s{sT0}
    v_mov_b32 v{vT3}, s{sNON}
    """)
    def sst(half):
        for f in range(4 * half, 4 * half + 4):
            p(f"global_store_dwordx4 v{vFv if f >= 4 else vFa}, v[{OWN+4*f}:{OWN+4*f+3}], s[18:19] offset:{(f&3)*1024} sc1")
    red_read(sst)
    p(f"""
    ST4_3
    s_barrier
    ST4_4
    s_waitcnt vmcnt(0)
    ST4_5
    ST4_6
    ST4_7
    s_mov_b64 exec, 1
    global_store_dword v{vT2}, v{vT3}, s[18:19] sc1
    s_mov_b64 exec, -1
    """)
    if stamp:
        p("s_memrealtime s[98:99]")
        stamp_out(p, 0x3000000)
    p("s_branch K2_END")
    p.label("M_KEEP1")
    p(f"""
    s_barrier
    s_xor_b32 s{sT0}, s2, 128
    s_lshl_b32 s{sT0}, s{sT0}, 2
    s_add_u32 s{sT0}, s{sT0}, s{sKQ}
    s_lshl_b32 s{sT1}, s{sT0}, 13
    s_add_u32 s{sT1}, s{sT1}, {WS_EX}
    v_add_u32 v{vFa}, s{sT1}, v{vAo}
    v_add_u32 v{vFv}, 4096, v{vFa}
    s_lshl_b32 s{sT0}, s{sT0}, 7
    s_add_u32 s{sT0}, s{sT0}, {WS_FLG2}
    v_mov_b32 v{vT2}, s{sT0}
    s_barrier
    """)
    p("ST4_1")
    red_write("K")
    p(f"global_load_dword v{vT3}, v{vT2}, s[18:19] sc1")
    p(f"""
    v_mov_b32 v64, {CNT_B}
    v_mov_b32 v65, 1
    s_waitcnt lgkmcnt(0)
    ST4_2
    s_mov_b64 exec, 1
    ds_add_u32 v64, v65
    s_mov_b64 exec, -1
    s_mov_b32 s73, {SPIN_MAX*16}
M_B4:
    ds_read_b32 v66, v64
    s_waitcnt lgkmcnt(0)
    v_readfirstlane_b32 s{sT0}, v66
    s_cmp_ge_u32 s{sT0}, 8
    s_cbranch_scc1 M_B4_OK
    s_sub_u32 s73, s73, 1
    s_cmp_lg_u32 s73, 0
    s_cbranch_scc1 M_B4
M_B4_OK:
    ST4_3
    """)
    PR = 224
    prl = "\n".join(f"global_load_dwordx4 v[{PR+4*f}:{PR+4*f+3}], v{vFv if f >= 4 else vFa}, s[18:19] offset:{(f&3)*1024} sc1" for f in range(8))
    p(f"""
    s_waitcnt vmcnt(0)
    v_cmp_ne_u32 vcc, s{sNON}, v{vT3}
    s_mov_b32 s{sIT}, 0
    s_cbranch_vccnz M_PRL
    s_mov_b32 s{sIT}, 1
    {prl}
M_PRL:
    """)
    red_read()
    p(f"""
    s_lshl_b32 s{sT0}, s{sRT}, 1
    s_add_u32 s{sT0}, s{sT0}, s{sKH}
    s_lshl_b32 s{sT0}, s{sT0}, 2
    s_add_u32 s{sT0}, s{sT0}, s{sKQ}
    s_lshr_b32 s{sT1}, s{sIDX}, 4
    s_cmp_lg_u32 s{sT0}, s{sT1}
    s_cbranch_scc1 M_H5
    s_mov_b32 s73, {SPIN_MAX}
M_POLL3:
    s_lshl_b32 s{sT0}, s{sCT}, 10
    s_add_u32 s{sT0}, s{sT0}, {WS_YP}
    v_add_u32 v26, s{sT0}, v{vAo}
    """)
    YR = 128
    for q in range(16):
        p(f"global_load_dwordx4 v[{YR+4*q}:{YR+4*q+3}], v26, s[18:19] sc1")
        if q < 15: p(f"v_add_u32 v26, 8192, v26")
    p(f"s_waitcnt vmcnt(0)\nv_mov_b32 v27, 0")
    for q in range(16):
        p(f"v_xor_b32 v{YR+4*q+1}, s{sNON}, v{YR+4*q+1}\nv_xor_b32 v{YR+4*q+3}, s{sNON}, v{YR+4*q+3}")
        p(f"v_or3_b32 v27, v27, v{YR+4*q+1}, v{YR+4*q+3}")
    p(f"""
    v_cmp_ne_u32 vcc, 0, v27
    s_cbranch_vccz M_POLL3_OK
    s_sleep 10
    s_sub_u32 s73, s73, 1
    s_cmp_lg_u32 s73, 0
    s_cbranch_scc1 M_POLL3
M_POLL3_OK:
    s_lshr_b32 s{sT0}, s{sIDX}, 4
    s_lshl_b32 s{sT0}, s{sT0}, 15
    s_lshl_b32 s{sT1}, s{sCT}, 12
    s_add_u32 s{sT0}, s{sT0}, s{sT1}
    s_and_b32 s{sT1}, s{sIDX}, 15
    s_lshl_b32 s{sT1}, s{sT1}, 4
    s_add_u32 s{sT0}, s{sT0}, s{sT1}
    v_lshrrev_b32 v26, 2, v1
    v_lshlrev_b32 v26, 8, v26
    v_and_b32 v27, 3, v1
    v_lshl_add_u32 v26, v27, 2, v26
    v_add_u32 v26, s{sT0}, v26
    global_load_dword v24, v26, s[18:19] sc1
    s_and_b32 s{sT0}, s{sKEY}, 0xffff0000
    s_ashr_i32 s{sT1}, s{sT0}, 31
    s_not_b32 s{sT1}, s{sT1}
    s_or_b32 s{sT1}, s{sT1}, 0x80000000
    s_xor_b32 s{sT0}, s{sT0}, s{sT1}
    s_and_b32 s{sT0}, s{sT0}, 0xffff0000
    v_mov_b32 v25, s{sT0}
    v_mul_f32 v25, 0xbfb8aa3b, v25
    v_exp_f32 v25, v25
    v_add_f32 v25, 1.0, v25
    v_rcp_f32 v25, v25
    """)
    rbf(p, 25)
    p(f"v_mov_b32 v16, v{YR}\nv_mov_b32 v17, v{YR+2}")
    for q in range(1, 16):
        p(f"v_add_f32 v16, v16, v{YR+4*q}\nv_add_f32 v17, v17, v{YR+4*q+2}")
    p("s_waitcnt vmcnt(0)\nv_lshlrev_b32 v18, 16, v24\nv_and_b32 v19, 0xffff0000, v24")
    for c in range(2):
        rbf(p, 16 + c)
        p(f"v_mul_f32 v{16+c}, v{16+c}, v25")
        rbf(p, 16 + c)
        p(f"v_add_f32 v{16+c}, v{16+c}, v{18+c}")
        rbf(p, 16 + c)
        silu(p, 16 + c, 16 + c, 20 + c)
    p(f"""
    v_cvt_pk_bf16_f32 v16, v16, v17
    v_lshlrev_b32 v26, 2, v1
    v_add_u32 v26, {L_H3 + 4096}, v26
    ds_write_b32 v26, v16
    v_lshrrev_b32 v27, 4, v1
    v_lshlrev_b32 v27, 4, v27
    v_add_u32 v27, {L_H3 + 4096}, v27
    v_and_b32 v26, 15, v1
    s_and_b32 s{sT0}, s{sIDX}, 15
    v_cmp_eq_u32 vcc, s{sT0}, v26
    s_waitcnt lgkmcnt(0)
    """)
    for u in range(4): p(f"ds_read_b128 v[{64+4*u}:{67+4*u}], v27 offset:{u*64}")
    p("s_waitcnt lgkmcnt(0)")
    for c in range(16): p(f"v_cndmask_b32 v{GP+c}, v{GP+c}, v{64+c}, vcc")
    p.label("M_H5")
    XU = 128; GU_ = 160
    for j in range(16):
        p(f"v_lshlrev_b32 v{XU+2*j}, 16, v{XP+j}\nv_and_b32 v{XU+2*j+1}, 0xffff0000, v{XP+j}")
        p(f"v_lshlrev_b32 v{GU_+2*j}, 16, v{GP+j}\nv_and_b32 v{GU_+2*j+1}, 0xffff0000, v{GP+j}")
    p(f"""
    ST4_4
    s_cmp_lg_u32 s{sIT}, 0
    s_cbranch_scc1 M_POLL4_DONE
    s_mov_b32 s73, {SPIN_MAX}
M_POLL4:
    global_load_dword v{vT3}, v{vT2}, s[18:19] sc1
    s_waitcnt vmcnt(0)
    v_cmp_ne_u32 vcc, s{sNON}, v{vT3}
    s_cbranch_vccz M_POLL4_OK
    s_sleep 1
    s_sub_u32 s73, s73, 1
    s_cmp_lg_u32 s73, 0
    s_cbranch_scc1 M_POLL4
M_POLL4_OK:
    {prl}
M_POLL4_DONE:
    ST4_5
    """)
    for u in range(4):
        p(f"s_waitcnt vmcnt({6 - 2*u + u})")
        for c in range(8): p(f"v_add_f32 v{OWN+8*u+c}, v{OWN+8*u+c}, v{PR+8*u+c}")
        for c in range(8): p(f"v_fmac_f32 v{XU+8*u+c}, v{OWN+8*u+c}, v{GU_+8*u+c}")
        o = 16 + u * 4
        for j in range(4): p(f"v_cvt_pk_bf16_f32 v{o+j}, v{XU+u*8+2*j}, v{XU+u*8+2*j+1}")
        p(f"global_store_dwordx4 v{vOut}, v[{o}:{o+3}], s[78:79] offset:{u*64}")
    if stamp:
        p("ST4_6\ns_waitcnt vmcnt(0)\nST4_7\ns_memrealtime s[98:99]")
        stamp_out(p, 0x3000000)

def stamp_out(p, base):
    p(f"""
    s_waitcnt lgkmcnt(0)
    s_lshl_b32 s{sT0}, s2, 3
    s_add_u32 s{sT0}, s{sT0}, s{sW}
    s_lshl_b32 s{sT0}, s{sT0}, 6
    s_add_u32 s{sT0}, s{sT0}, {base}
    v_mov_b32 v{vT0}, s{sT0}
    """)
    for i in range(10):
        p(f"v_mov_b32 v{vT1}, s{80+2*i}\nglobal_store_dword v{vT0}, v{vT1}, s[18:19] offset:{4*i}")

def gen_mega(ffn=True, slow=True, stamp=False, dbg=()):
    p = Prog()
    stamps = []
    mode0 = 'st0' in dbg or 'st1' in dbg
    MODE0[0] = mode0
    NOEW[0] = 'noew' in dbg
    MODE3[0] = 'st3' in dbg
    def ST0():
        if stamp and mode0 and 'st1' not in dbg:
            i = len(stamps); stamps.append(i)
            p(f"s_memtime s[{80+2*i}:{81+2*i}]")
    global _ST0
    _ST0 = ST0
    def ST(wait=True):
        if stamp and mode0 and len(stamps) > 0:
            if wait: p("s_waitcnt lgkmcnt(0)")
            return
        if stamp:
            i = len(stamps); stamps.append(i)
            if not (MODE3[0] and i == 6): p(f"s_memtime s[{80+2*i}:{81+2*i}]")
            if i == 0: p("s_memrealtime s[96:97]")
            if wait: p("s_waitcnt lgkmcnt(0)")
    name = KNAME
    kernel_header(p, name)
    p(f"""
    s_cmp_ge_u32 s2, 256
    s_cbranch_scc1 K2_END
    s_load_dwordx2 s[74:75], s[0:1], 0
    s_load_dwordx2 s[76:77], s[0:1], 48
    s_load_dwordx4 s[8:11], s[0:1], 24
    s_load_dwordx2 s[18:19], s[0:1], 96
    s_load_dwordx4 s[4:7], s[0:1], 8
    s_load_dwordx4 s[12:15], s[0:1], 56
    s_load_dwordx2 s[16:17], s[0:1], 72
    s_load_dwordx2 s[78:79], s[0:1], 80
    s_load_dwordx2 s[66:67], s[0:1], 88
    s_getpc_b64 s[{sPC}:{sPC+1}]
    v_lshrrev_b32 v{vT2}, 6, v0
    v_and_b32 v1, 63, v0
    v_readfirstlane_b32 s{sW}, v{vT2}
    s_and_b32 s{sT0}, s2, 7
    s_lshr_b32 s{sT1}, s2, 3
    s_lshr_b32 s{sG}, s{sT0}, 1
    s_and_b32 s{sT0}, s{sT0}, 1
    s_lshl_b32 s{sT0}, s{sT0}, 2
    s_lshr_b32 s{sT2}, s{sT1}, 3
    s_add_u32 s{sRB}, s{sT0}, s{sT2}
    s_and_b32 s{sT1}, s{sT1}, 7
    s_lshl_b32 s{sHEAD}, s{sG}, 3
    s_add_u32 s{sHEAD}, s{sHEAD}, s{sT1}
    s_lshl_b32 s{sFL}, s{sRB}, 5
    s_add_u32 s{sFL}, s{sFL}, s{sHEAD}
    """)
    ST(False)
    p(f"""
    v_lshlrev_b32 v{E+1}, 7, v0
    v_min_u32 v{E+1}, CODESIZE, v{E+1}
    global_load_dword v{E}, v{E+1}, s[{sPC}:{sPC+1}]
    v_lshrrev_b32 v{vT0}, 4, v1
    v_and_b32 v{vT1}, 3, v1
    v_lshlrev_b32 v{vT1}, 4, v{vT1}
    v_lshl_add_u32 v{vT1}, v{vT0}, 6, v{vT1}
    v_bfe_u32 v{vT3}, v1, 2, 2
    v_lshl_add_u32 v{vDq}, v{vT3}, 13, v{vT1}
    v_and_b32 v{vDq2}, 1, v{vT2}
    v_lshlrev_b32 v{vDq2}, 5, v{vDq2}
    v_xor_b32 v{vDq}, v{vDq}, v{vDq2}
    v_add_u32 v{vDq2}, {32768-1024}, v{vDq}
    v_lshrrev_b32 v{vXB1}, 3, v1
    v_and_b32 v{vXD}, 7, v1
    v_xor_b32 v{vXD}, v{vXD}, v{vT0}
    v_lshlrev_b32 v{vXD}, 4, v{vXD}
    v_lshl_add_u32 v{vXD}, v{vXB1}, 11, v{vXD}
    v_xor_b32 v{vXD+1}, 64, v{vXD}
    v_add_u32 v{vXD+1}, {16384-1024}, v{vXD+1}
    v_add_u32 v{vXD+2}, {32768-2048}, v{vXD}
    v_add_u32 v{vXD+3}, {32768-2048}, v{vXD+1}
    s_lshl_b32 s{sXM}, s{sW}, 12
    s_add_u32 s{sXM}, s{sXM}, {L_X}
    s_lshl_b32 s{sWq}, s{sW}, 16
    s_lshl_b32 s{sM}, s{sW}, 11
    s_mov_b32 s{sB}, 0
    s_lshl_b32 s{sT0}, s{sHEAD}, 8
    s_lshl_b32 s{sT1}, s{sRB}, 3
    s_add_u32 s{sT1}, s{sT1}, s{sW}
    s_lshl_b32 s{sT1}, s{sT1}, 16
    s_mov_b32 s{SRD_WQ+3}, 0x20000
    s_sub_u32 s{SRD_WQ+2}, 0x800000, s{sT0}
    s_mov_b32 s{SRD_XN+2}, 0x10000
    s_mov_b32 s{SRD_XN+3}, 0x20000
    v_lshlrev_b32 v{E+2}, 4, v1
    v_lshl_add_u32 v{vLXA}, v{vT2}, 11, v{E+2}
    s_lshl_b32 s{sT2}, s{sFL}, 14
    v_add_u32 v{vLXA}, s{sT2}, v{vLXA}
    s_memrealtime s[{sT2}:{sT3}]
    s_waitcnt lgkmcnt(0)
    s_add_u32 s{SRD_WQ}, s8, s{sT0}
    s_addc_u32 s{SRD_WQ+1}, s9, 0
    s_add_u32 s{SRD_XN}, s74, s{sT1}
    s_addc_u32 s{SRD_XN+1}, s75, 0
    """)
    def dma_wq(slot, e):
        if e == 0:
            return f"""s_add_u32 m0, s{sM}, {slot*16384}
    s_nop 0
    buffer_load_dwordx4 v{vDq}, s[{SRD_WQ}:{SRD_WQ+3}], s{sWq} offen lds"""
        return f"""s_add_u32 m0, s{sM}, {slot*16384}
    s_nop 0
    buffer_load_dwordx4 v{vDq2}, s[{SRD_WQ}:{SRD_WQ+3}], s{sWq} offen offset:1024 lds
    s_add_u32 s{sWq}, s{sWq}, 524288"""
    def load_b(buf, k):
        t = ""
        if k == 0: t = f"s_add_u32 m0, s{sXM}, {(buf & 1)*32768}\ns_nop 0\n"
        t += f"buffer_load_dwordx4 v{vXD+k}, s[{SRD_XN}:{SRD_XN+3}], s{sB} offen offset:{k*1024} lds"
        if k == 3: t += f"\ns_add_u32 s{sB}, s{sB}, 128"
        return t
    lq = Q("lgkmcnt", 15); vq = Q("vmcnt", 63)
    vq.issue(("CP", 0))
    def J(tag, code): p(code); vq.issue(tag)
    LXj = lambda n: (("LX", n), f"global_load_dwordx4 v[{LN_X+4*n}:{LN_X+4*n+3}], v{vLXA}, s[74:75] offset:{n*1024}")
    CSj = lambda n: (("CS", n), f"s_mov_b32 s{sT3}, {n*0x200000}\nbuffer_load_dwordx4 v[{CSR+4*n}:{CSR+4*n+3}], v{vCSA}, s[{SRD_WQ}:{SRD_WQ+3}], s{sT3} offen")
    WRj = lambda n: (("LX", 2 + n), f"global_load_dwordx4 v[{LN_W+4*n}:{LN_W+4*n+3}], v{E+2}, s[76:77] offset:{n*1024}")
    J(*LXj(0)); J(*LXj(1)); J(*WRj(0)); J(*WRj(1))
    J(("W", 0, 0), dma_wq(0, 0)); J(("W", 0, 1), dma_wq(0, 1))
    for kk in range(4): J(("X", 0, kk), load_b(0, kk))
    J(("W", 1, 0), dma_wq(1, 0)); J(("W", 1, 1), dma_wq(1, 1))
    ST0()
    p(f"s_mov_b32 s{sKEY}, s{sT2}\ns_mov_b32 s{sIDX}, s{sT0}")
    partA1, partA2, partB = ln_segments(lq, vq, p)
    for it_ in partA1 + partB:
        if callable(it_): it_()
        else: p(it_)
    p(f"s_mov_b32 s{sT2}, s{sKEY}\ns_mov_b32 s{sT0}, s{sIDX}")
    ST0()
    for kk in range(4): J(("X", 1, kk), load_b(1, kk))
    J(("W", 2, 0), dma_wq(2, 0)); J(("W", 2, 1), dma_wq(2, 1))
    p(f"""
    s_or_b32 s{sT3}, s2, s{sW}
    s_cmp_lg_u32 s{sT3}, 0
    s_cbranch_scc1 M_NONZ
    s_or_b32 s{sT2}, s{sT2}, 1
    v_mov_b32 v{E+2}, 0
    v_mov_b32 v{E+3}, s{sT2}
    s_mov_b64 exec, 1
    global_store_dword v{E+2}, v{E+3}, s[66:67] sc1
    s_mov_b64 exec, -1
M_NONZ:
    v_bfe_u32 v{E+1}, v0, 4, 3
    v_lshlrev_b32 v{E+1}, 13, v{E+1}
    v_lshrrev_b32 v{vNON}, 7, v0
    v_lshl_add_u32 v{E+1}, v{vNON}, 19, v{E+1}
    v_and_b32 v{vNON}, 15, v0
    v_lshl_add_u32 v{E+1}, v{vNON}, 4, v{E+1}
    s_lshl_b32 s{sT2}, s{sRB}, 16
    v_add_u32 v{vCSA}, s{sT2}, v{E+1}
    """)
    J(*CSj(1))
    ST0()
    p(f"""
    v_bfe_u32 v{vXB1}, v1, 1, 3
    v_xor_b32 v{vXB1}, v{vXB1}, v{vT0}
    v_lshlrev_b32 v{vXB1}, 4, v{vXB1}
    v_and_b32 v{vXB0}, 15, v1
    v_lshl_add_u32 v{vXB0}, v{vXB0}, 7, v{vXB1}
    v_add_u32 v{vXB0}, s{sXM}, v{vXB0}
    v_xor_b32 v{vXB1}, 64, v{vXB0}
    v_lshl_add_u32 v{vDv}, v{vT3}, 8, v{vT1}
    v_mul_u32_u24 v{vDf}, {8*7168}, v{vT0}
    v_and_b32 v{vT1}, 15, v1
    v_lshl_add_u32 v{vDf}, v{vT1}, 4, v{vDf}
    v_and_b32 v{vT0}, 3, v1
    v_lshrrev_b32 v{vT1}, 2, v1
    v_lshlrev_b32 v{vT1}, 4, v{vT1}
    v_lshl_add_u32 v{vDk}, v{vT0}, 8, v{vT1}
    v_lshrrev_b32 v{vT1}, 4, v1
    v_lshlrev_b32 v{vA0}, 11, v{vT1}
    v_lshl_add_u32 v{vA0}, v{vT3}, 6, v{vA0}
    v_lshl_add_u32 v{vA0}, v{vT0}, 3, v{vA0}
    v_and_b32 v{vT1}, 1, v{vT1}
    v_lshl_add_u32 v{vA0}, v{vT1}, 5, v{vA0}
    v_xor_b32 v{vA1}, 32, v{vA0}
    v_bfe_u32 v{vT0}, v1, 1, 1
    v_and_b32 v{vT2}, 1, v1
    v_lshl_add_u32 v{vT0}, v{vT2}, 1, v{vT0}
    v_lshl_add_u32 v{vT0}, v{vT1}, 2, v{vT0}
    v_lshlrev_b32 v{vT0}, 3, v{vT0}
    v_lshl_add_u32 v{vT0}, v{vT3}, 6, v{vT0}
    v_lshrrev_b32 v{vT1}, 5, v1
    v_lshl_add_u32 v{vVa}, v{vT1}, 10, v{vT0}
    v_add_u32 v{vVb}, {L_X}, v{vVa}
    v_bfe_u32 v{vT0}, v1, 2, 3
    v_mul_u32_u24 v{vT0}, 1088, v{vT0}
    v_lshl_add_u32 v{vT0}, v{vT1}, 6, v{vT0}
    v_and_b32 v{vKb}, 3, v1
    v_lshl_add_u32 v{vKb}, v{vKb}, 4, v{vT0}
    v_add_u32 v{vKh}, {L_HI}, v{vKb}
    v_add_u32 v{vKb}, {L_X}, v{vKb}
    v_bfe_u32 v{vT0}, v1, 4, 1
    v_lshlrev_b32 v{vT0}, 10, v{vT0}
    v_lshl_add_u32 v{vT0}, v{vT1}, 8, v{vT0}
    v_and_b32 v{vO}, 15, v1
    v_lshl_add_u32 v{vO}, v{vO}, 4, v{vT0}
    s_lshl_b32 s{sT0}, s{sG}, 19
    s_add_u32 s{sT0}, s{sT0}, 393216
    s_add_u32 s{SRD_K}, s4, s{sT0}
    s_addc_u32 s{SRD_K+1}, s5, 0
    s_mov_b32 s{SRD_K+2}, 0x20000
    s_mov_b32 s{SRD_K+3}, 0x20000
    s_add_u32 s{SRD_V}, s6, s{sT0}
    s_addc_u32 s{SRD_V+1}, s7, 0
    s_mov_b32 s{SRD_V+2}, 0x20000
    s_mov_b32 s{SRD_V+3}, 0x20000
    s_add_u32 s{SRD_OT}, s18, {WS_OT}
    s_addc_u32 s{SRD_OT+1}, s19, 0
    s_mov_b32 s{SRD_OT+2}, 0x1000000
    s_mov_b32 s{SRD_OT+3}, 0x20000
    s_mul_i32 s{sKw}, s{sW}, 1088
    s_lshl_b32 s{sVw}, s{sW}, 10
    s_mov_b32 s{sKsrc}, s{sVw}
    s_mov_b32 s{sVsrc}, s{sVw}
    s_mov_b32 s{sN}, 0
    s_mov_b32 s{sPL}, 0x05040100
    s_mov_b32 s{sPH}, 0x07060302
    s_lshr_b32 s{sT0}, s2, 2
    s_and_b32 s{sT1}, s2, 3
    s_cmp_ge_u32 s{sT0}, 28
    s_cselect_b32 s{SRD_F}, s14, s12
    s_cselect_b32 s{SRD_F+1}, s15, s13
    s_cselect_b32 s{sT2}, 28, 0
    s_sub_u32 s{sT2}, s{sT0}, s{sT2}
    s_lshl_b32 s{sT2}, s{sT2}, 8
    s_mul_i32 s{sT3}, s{sT1}, {256*7168}
    s_add_u32 s{sT2}, s{sT2}, s{sT3}
    s_add_u32 s{SRD_F}, s{SRD_F}, s{sT2}
    s_addc_u32 s{SRD_F+1}, s{SRD_F+1}, 0
    s_cmp_lt_u32 s2, 224
    s_cselect_b32 s{SRD_F+2}, {255*7168+256}, 0
    s_mov_b32 s{SRD_F+3}, 0x20000
    s_mul_i32 s{sFsrc}, s{sW}, {32*7168}
    s_lshl_b32 s{sOT}, s{sHEAD}, 19
    s_lshl_b32 s{sT1}, s{sRB}, 14
    s_add_u32 s{sOT}, s{sOT}, s{sT1}
    s_lshl_b32 s{sT1}, s{sW}, 11
    s_add_u32 s{sOT}, s{sOT}, s{sT1}
    """)
    ST0()
    vq.wait(p, ("W", 1, 1)); lq.wait(p, ("LW", 2))
    ST0()
    p("s_barrier")
    ST0()
    if 'st1' in dbg: p("s_memtime s[80:81]")
    ST()
    def a_read(slot, T, u, t):
        r = AF + (T & 3) * 8 + u * 4 + t * 2
        p(f"ds_read_b64_tr_b16 v[{r}:{r+1}], v{vA1 if T & 1 else vA0} offset:{slot*16384 + u*8192 + t*1024 + (T>>1)*256}")
        lq.issue(("A", T & 3, u, t))
    def job_k(t):
        return (("K", t), f"""s_add_u32 m0, s{sKw}, {Kabs(t)}
    s_nop 0
    buffer_load_dwordx4 v{vDk}, s[{SRD_K}:{SRD_K+3}], s{sKsrc} offen lds
    s_add_u32 s{sKsrc}, s{sKsrc}, 8192""")
    def job_v(t):
        return (("V", t), f"""s_add_u32 m0, s{sVw}, {Vabs(t)}
    s_nop 0
    buffer_load_dwordx4 v{vDv}, s[{SRD_V}:{SRD_V+3}], s{sVsrc} offen lds
    s_add_u32 s{sVsrc}, s{sVsrc}, 8192""")
    def job_f(i):
        return (("F", i), f"""buffer_load_dwordx4 v[{FR+4*i}:{FR+4*i+3}], v{vDf}, s[{SRD_F}:{SRD_F+3}], s{sFsrc} offen
    s_add_u32 s{sFsrc}, s{sFsrc}, 7168""")
    def run(job):
        if not job: return
        if isinstance(job, str): p(job); return
        if callable(job): job(); return
        tag, code = job
        p(code); vq.issue(tag)
    def k_read(t, j):
        if 'nok' in dbg: return
        r = KF + (j % D) * 4
        ka = Kabs(t); kb, ko = (vKh, ka - L_HI) if ka >= L_HI else (vKb, ka - L_X)
        p(f"ds_read_b128 v[{r}:{r+3}], v{kb} offset:{ko + j*128}")
        lq.issue(("K", j % D))
    def v_read(t, i):
        if 'nov' in dbg: return
        ks, dt = i >> 2, i & 3
        r = VF + (i % D) * 4
        o = Vabs(t); va = vVa
        if o >= L_X: o -= L_X; va = vVb
        p(f"ds_read_b64_tr_b16 v[{r}:{r+1}], v{va} offset:{o + ks*4096 + dt*256}")
        lq.issue(("Va", i % D))
        p(f"ds_read_b64_tr_b16 v[{r+2}:{r+3}], v{va} offset:{o + ks*4096 + 2048 + dt*256}")
        lq.issue(("V", i % D))
    LA = 2
    def b_read(buf, k):
        ct, u = k >> 1, k & 1
        r = BRr(buf, k)
        p(f"ds_read_b128 v[{r}:{r+3}], v{vXB1 if u else vXB0} offset:{(buf & 1)*32768 + ct*2048}")
        lq.issue(("B", buf & 1, k))
    for T in range(LA):
        for u in range(2):
            for t in range(2): a_read(0, T, u, t)
        b_read(0, 2 * T); b_read(0, 2 * T + 1)
    fill = []
    FILLRATE = 1
    CSSTART = 4
    for d_ in dbg:
        if d_.startswith('fr'): FILLRATE = float(d_[2:])
    fillacc = [0.0]
    barpassed = [0]
    def stage(slot, vm, last=False, xw="s_waitcnt vmcnt(8)", first=False, vm2=()):
        for T in range(8):
            a = AF + (T & 3) * 8
            Tn = T + LA; ns = slot
            if Tn >= 8: Tn -= 8; ns = (slot + 1) & 3
            rd = not (last and T + LA >= 8)
            k = 0
            for ct in range(2):
                for u in range(2):
                    d = QA + (T * 2 + ct) * 4; b = BRr(slot, ct * 2 + u)
                    lq.wait(p, ("A", T & 3, u, 1), ("B", slot & 1, ct * 2 + u))
                    cc = "0" if (first and u == 0) else f"v[{d}:{d+3}]"
                    p(f"v_mfma_f32_16x16x32_bf16 v[{d}:{d+3}], v[{a+4*u}:{a+4*u+3}], v[{b}:{b+3}], {cc}")
                    if rd: a_read(ns, Tn, k >> 1, k & 1)
                    fillacc[0] += FILLRATE
                    while fillacc[0] >= 1.0:
                        fillacc[0] -= 1.0
                        if fill and fill[0] == "BAR":
                            if barpassed[0] >= 1: fill.pop(0)
                        if fill and fill[0] != "BAR": run(fill.pop(0))
                    if k == 1 and T < len(vm2): run(vm2[T])
                    k += 1
            if T < len(vm): run(vm[T])
            if not last:
                if T == 6:
                    run(xw); b_read(slot + 1, 0); b_read(slot + 1, 1)
                if T == 7:
                    b_read(slot + 1, 2); b_read(slot + 1, 3)
    def std_vm(slot):
        n = (slot + 3) & 3
        return [load_b(slot, 0), load_b(slot, 1), load_b(slot, 2), load_b(slot, 3), dma_wq(n, 0), dma_wq(n, 1)]
    xwait = lambda tag: (lambda: vq.wait(p, tag))
    def tagged(i):
        sv = std_vm(i & 3)
        return [(("X", i + 2, kk), sv[kk]) for kk in range(4)] + [(("W", i + 3, 0), sv[4]), (("W", i + 3, 1), sv[5])]
    kvpf = (("KP", 0), f"""s_lshr_b32 s{sT2}, s{sFL}, 6
    s_lshl_b32 s{sT2}, s{sT2}, 19
    s_and_b32 s{sT3}, s{sFL}, 63
    s_lshl_b32 s{sT3}, s{sT3}, 11
    s_add_u32 s{sT2}, s{sT2}, s{sT3}
    s_add_u32 s{sT2}, s{sT2}, 393216
    v_lshlrev_b32 v{E+3}, 2, v0
    v_add_u32 v{E+3}, s{sT2}, v{E+3}
    global_load_dword v{E}, v{E+3}, s[4:5]""")
    kvpf2 = (("KP", 1), f"global_load_dword v{E}, v{E+3}, s[6:7]")
    nonld = (("NN", 0), f"v_mov_b32 v{E+2}, 0\nglobal_load_dword v{vNON}, v{E+2}, s[66:67] sc1")
    def nonchk():
        vq.wait(p, ("NN", 0))
        p(f"""
    v_readfirstlane_b32 s{sNON}, v{vNON}
    s_cmp_lg_u32 s{sNON}, 0
    s_cbranch_scc1 M_NSPIN_OK
    v_mov_b32 v{E+2}, 0
    """)
        get_nonce(p, "M_NSPIN", E + 2, vNON)
    seg1, seg2 = pub_segments(lq, vq, p)
    extra1 = {0: [CSj(0)], 1: [CSj(2), kvpf], 2: [CSj(3), kvpf2], 3: [nonld], 5: [nonchk]}
    state = "X"
    for i in range(12):
        ex = list(extra1.get(i, []))
        if i == 1: fill.extend(seg2)
        if i == CSSTART: assert not fill; fill.extend(partA2); state = "A"
        stage(i & 3, tagged(i) + ex, xw=xwait(("X", i + 1, 3)), first=(i == 0))
        vq.wait(p, ("W", i + 2, 1))
        if state == "A" and not fill:
            lq.wait(p, ("LW", 5)); state = "B"; fill.extend(seg1); print("colsum done at stage", i)
        elif state == "B" and not fill:
            state = "done"; print("pub done at stage", i)
        p("s_barrier")
        if 'st1' in dbg and i in (2, 4, 7, 9, 11):
            n_ = (2, 4, 7, 9, 11).index(i) + 1
            p(f"s_memtime s[{80+2*n_}:{81+2*n_}]\ns_waitcnt lgkmcnt(0)")
    assert state == "done" and not fill, (state, len(fill))
    sv = std_vm(0)
    stcode = f"""s_lshl_b32 s{sT0}, s{sRB}, 3
    s_add_u32 s{sT0}, s{sT0}, s{sW}
    s_lshl_b32 s{sT0}, s{sT0}, 8
    s_add_u32 s{sT0}, s{sT0}, {WS_ST}
    v_and_b32 v{vT0}, 15, v1
    v_lshlrev_b32 v{vT0}, 3, v{vT0}
    v_add_u32 v{vT0}, s{sT0}, v{vT0}
    global_load_dwordx2 v[250:251], v{vT0}, s[18:19] sc1
    global_load_dwordx2 v[252:253], v{vT0}, s[18:19] offset:128 sc1
    s_lshl_b32 s{sT0}, s{sHEAD}, 13
    s_lshl_b32 s{sT1}, s{sW}, 7
    s_add_u32 s{sT0}, s{sT0}, s{sT1}
    s_add_u32 s{sT0}, s{sT0}, {WS_CS}
    v_lshrrev_b32 v{vT1}, 3, v1
    v_lshlrev_b32 v{vT1}, 10, v{vT1}
    v_and_b32 v{vT2}, 7, v1
    v_lshl_add_u32 v{vT1}, v{vT2}, 4, v{vT1}
    v_add_u32 v{vT1}, s{sT0}, v{vT1}
    global_load_dwordx4 v[{E}:{E+3}], v{vT1}, s[18:19] sc1"""
    stchk = f"""v_xor_b32 v{vT0}, s{sNON}, v251
    v_xor_b32 v{vT1}, s{sNON}, v253
    v_xor_b32 v{vT2}, s{sNON}, v{E+1}
    v_xor_b32 v{vT3}, s{sNON}, v{E+3}
    v_or3_b32 v{vT0}, v{vT0}, v{vT1}, v{vT2}
    v_or_b32 v{vT0}, v{vT0}, v{vT3}
    v_cmp_ne_u32 vcc, 0, v{vT0}"""
    def stld():
        p(stcode); vq.issue(("ST", 0)); vq.issue(("ST", 1)); vq.issue(("ST", 2))
    def stuse():
        vq.wait(p, ("ST", 2))
        p(stchk)
        p(f"s_mov_b32 s73, {SPIN_MAX}\ns_cbranch_vccnz M_SSPIN")
        p.label("M_SSPIN_RET")
        for c in (E, E + 2): p(f"v_add_f32_dpp v{c}, v{c}, v{c} row_ror:8 row_mask:0xf bank_mask:0xf")
        for sw in ("v_permlane16_swap_b32", "v_permlane32_swap_b32"):
            p(f"v_mov_b32 v{E+1}, v{E}\nv_mov_b32 v{E+3}, v{E+2}")
            p(f"{sw} v{E}, v{E+1}\n{sw} v{E+2}, v{E+3}")
            p(f"v_add_f32 v{E}, v{E}, v{E+1}\nv_add_f32 v{E+2}, v{E+2}, v{E+3}")
        p(f"""
    v_mov_b32 v{E+1}, v{E+2}
    v_and_b32 v{vT0}, 7, v1
    v_lshlrev_b32 v{vT0}, 3, v{vT0}
    s_lshl_b32 s{sT0}, s{sW}, 6
    s_add_u32 s{sT0}, s{sT0}, {L_FP}
    v_add_u32 v{vT0}, s{sT0}, v{vT0}
    ds_write_b64 v{vT0}, v[{E}:{E+1}]
    v_and_b32 v251, 0xffff0000, v250
    v_and_b32 v253, 0xffff0000, v252
    v_rcp_f32 v251, v251
    v_rcp_f32 v253, v253
    v_lshlrev_b32 v250, 16, v250
    v_lshlrev_b32 v252, 16, v252
    v_mul_f32 v251, {fbits(QSCALE)}, v251
    v_mul_f32 v253, {fbits(QSCALE)}, v253
    """)
        lq.issue(("CSW", 0))
    stage(0, tagged(12) + [stld, job_k(0)], xw=xwait(("X", 13, 3)))
    vq.wait(p, ("W", 14, 1)); p("s_barrier")
    stage(1, tagged(13)[:4] + [job_k(1), job_k(2)], xw=xwait(("X", 14, 3)))
    vq.wait(p, ("W", 15, 1)); lq.wait(p, ("B", 0, 3)); p("s_barrier")
    if 'st1' in dbg: p("s_memtime s[92:93]\ns_waitcnt lgkmcnt(0)")
    stage(2, [job_k(3), job_v(0), job_v(1), None, stuse], xw=xwait(("X", 15, 3)))
    vq.wait(p, ("K", 1)); lq.wait(p, ("CSW", 0), ("B", 1, 3)); p("s_barrier")
    stage(3, [job_k(4), job_k(5), job_v(2), job_k(6)], last=True)
    if 'st1' in dbg: p("s_memtime s[94:95]\ns_waitcnt lgkmcnt(0)")
    ST()
    if stamp: lq.q = []
    CSV = 212
    p(f"""
    v_lshrrev_b32 v{vT0}, 4, v1
    v_lshlrev_b32 v{vT0}, 4, v{vT0}
    v_add_u32 v{vT0}, {L_FP}, v{vT0}
    """)
    for T in range(8):
        p(f"ds_read_b128 v[{CSV+4*T}:{CSV+4*T+3}], v{vT0} offset:{T*64}"); lq.issue(("CS", T))
    for j in range(D): k_read(0, j)
    for T in range(8):
        lq.wait(p, ("CS", T))
        for ct in range(2):
            a = QA + (T * 2 + ct) * 4
            for r in range(4): p(f"v_fma_f32 v{a+r}, -v{250+2*ct}, v{CSV+4*T+r}, v{a+r}")
            for r in range(4): p(f"v_mul_f32 v{a+r}, v{251+2*ct}, v{a+r}")
        for ct in range(2):
            a = QA + (T * 2 + ct) * 4
            for k in range(2): p(f"v_cvt_pk_bf16_f32 v{QP + 4*T + 2*ct + k}, v{a+2*k}, v{a+2*k+1}")
        if T > 0:
            for k in range(2): p(f"v_permlane16_swap_b32 v{QP + 4*(T-1) + k}, v{QP + 4*(T-1) + 2 + k}")
    for k in range(2): p(f"v_permlane16_swap_b32 v{QP + 28 + k}, v{QP + 30 + k}")
    def qk(j, sbuf, cinit):
        lq.wait(p, ("K", j % D))
        k = KF + (j % D) * 4; q = QP + 4 * j; d = S + 16 * sbuf
        c = cinit if j == 0 else f"v[{d}:{d+15}]"
        p(f"v_mfma_f32_32x32x16_bf16 v[{d}:{d+15}], v[{k}:{k+3}], v[{q}:{q+3}], {c}")
    def pv(i, pbuf, first=False):
        lq.wait(p, ("V", i % D))
        ks, dt = i >> 2, i & 3
        v = VF + (i % D) * 4; b = P + 8 * pbuf + 4 * ks; d = ACC + 16 * dt
        cc = "0" if (first and ks == 0) else f"v[{d}:{d+15}]"
        p(f"v_mfma_f32_32x32x16_bf16 v[{d}:{d+15}], v[{v}:{v+3}], v[{b}:{b+3}], {cc}")
    for j in range(8):
        qk(j, 0, "0")
        k_read(0 if j + D < 8 else 1, (j + D) % 8)
    vq.wait(p, ("K", 3), ("V", 1)); p("s_barrier")
    p(f"""
    s_cmp_lg_u32 s{sW}, 4
    s_cbranch_scc1 M_NOKEY
    s_lshl_b32 s{sT0}, s{sFL}, 3
    s_add_u32 s{sT0}, s{sT0}, {WS_KEYS}
    v_mov_b32 v{vT0}, s{sT0}
    v_mov_b32 v{FD}, s{sKEY}
    v_mov_b32 v{FD+1}, s{sNON}
    s_mov_b64 exec, 1
    global_store_dwordx2 v{vT0}, v[{FD}:{FD+1}], s[18:19] sc1
    s_mov_b64 exec, -1
M_NOKEY:
    """)
    ST()
    if stamp: lq.q = []
    s0 = S
    p(f"""
    v_max3_f32 v{vT0}, v{s0}, v{s0+1}, v{s0+2}
    v_max3_f32 v{vT1}, v{s0+3}, v{s0+4}, v{s0+5}
    v_max3_f32 v{vT0}, v{vT0}, v{s0+6}, v{s0+7}
    v_max3_f32 v{vT1}, v{vT1}, v{s0+8}, v{s0+9}
    v_max3_f32 v{vT0}, v{vT0}, v{s0+10}, v{s0+11}
    v_max3_f32 v{vT1}, v{vT1}, v{s0+12}, v{s0+13}
    v_max3_f32 v{vT0}, v{vT0}, v{s0+14}, v{s0+15}
    v_max_f32 v{vT0}, v{vT0}, v{vT1}
    v_mov_b32 v{vT1}, v{vT0}
    v_permlane32_swap_b32 v{vT0}, v{vT1}
    v_max_f32 v{vT0}, v{vT0}, v{vT1}
    """)
    for i in range(16): p(f"v_sub_f32 v{NEGM+i}, 0, v{vT0}")
    for i in range(16): p(f"v_sub_f32 v{s0+i}, v{s0+i}, v{vT0}")
    p(f"v_mov_b32 v{vT2}, {L_HI + 2*KSL + 6*1088 + 1024}\nv_mov_b32 v{vT3}, 0")
    p(f"ds_write_b32 v{vT2}, v{vT3}"); lq.issue(("Z", 0))
    p(f"ds_write_b32 v{vT2}, v{vT3} offset:1088"); lq.issue(("Z", 1))
    cold = 'nof' not in dbg
    SRD_P = 68; sPo = 72
    def pf(n):
        if not cold or 'nopf' in dbg: return None
        pre = ""
        if n == 0:
            pre = f"""s_lshl_b32 s{sT0}, s2, 15
    s_add_u32 s{SRD_P}, s10, s{sT0}
    s_addc_u32 s{SRD_P+1}, s11, 0
    s_mov_b32 s{SRD_P+2}, 0x8000
    s_mov_b32 s{SRD_P+3}, 0x20000
    s_mov_b32 s{sPo}, 0
    """
        elif n == 4:
            pre = f"""s_mul_i32 s{sT0}, s2, 28672
    s_add_u32 s{SRD_P}, s16, s{sT0}
    s_addc_u32 s{SRD_P+1}, s17, 0
    s_mov_b32 s{SRD_P+2}, 28672
    s_mov_b32 s{sPo}, 0
    """
        return (("PF", n), pre + f"""s_add_u32 m0, s{sVw}, {VADDR[5]}
    v_lshlrev_b32 v{vT3}, 4, v0
    buffer_load_dwordx4 v{vT3}, s[{SRD_P}:{SRD_P+3}], s{sPo} offen lds
    s_add_u32 s{sPo}, s{sPo}, 8192""")
    flagld = None
    keycode = f"""v_lshlrev_b32 v{vT2}, 5, v1
    v_add_u32 v{vT2}, {WS_KEYS}, v{vT2}
    global_load_dwordx4 v[{FT}:{FT+3}], v{vT2}, s[18:19] sc1
    global_load_dwordx4 v[{FT+4}:{FT+7}], v{vT2}, s[18:19] offset:16 sc1"""
    keychk = f"""v_xor_b32 v{FT+1}, s{sNON}, v{FT+1}
    v_xor_b32 v{FT+3}, s{sNON}, v{FT+3}
    v_xor_b32 v{FT+5}, s{sNON}, v{FT+5}
    v_xor_b32 v{FT+7}, s{sNON}, v{FT+7}
    v_or3_b32 v{FT+1}, v{FT+1}, v{FT+3}, v{FT+5}
    v_or_b32 v{FT+1}, v{FT+1}, v{FT+7}
    v_cmp_ne_u32 vcc, 0, v{FT+1}"""
    def keyld():
        p(keycode); vq.issue(("KY", 0)); vq.issue(("KY", 1))
    def xsel():
        vq.wait(p, ("KY", 1))
        p(keychk)
        p(f"s_mov_b32 s73, {SPIN_MAX}\ns_cbranch_vccnz M_KSPIN")
        p.label("M_KSPIN_RET")
        p(f"v_max3_u32 v{FT}, v{FT}, v{FT+2}, v{FT+4}\nv_max_u32 v{FT}, v{FT}, v{FT+6}")
        wave_max_u32(p, FT, FT + 1)
        p(f"""
    v_readfirstlane_b32 s{sKEY}, v{FT}
    s_and_b32 s{sIDX}, s{sKEY}, 0x7ff
    s_sub_u32 s{sIDX}, 2047, s{sIDX}
    s_lshr_b32 s{sT0}, s{sIDX}, 4
    s_lshl_b32 s{sT0}, s{sT0}, 15
    s_and_b32 s{sT1}, s2, 3
    s_lshl_b32 s{sT1}, s{sT1}, 13
    s_add_u32 s{sT0}, s{sT0}, s{sT1}
    s_lshl_b32 s{sT1}, s{sW}, 10
    s_add_u32 s{sT0}, s{sT0}, s{sT1}
    s_and_b32 s{sT1}, s{sIDX}, 15
    s_lshl_b32 s{sT1}, s{sT1}, 4
    s_add_u32 s{sT0}, s{sT0}, s{sT1}
    v_lshrrev_b32 v{vT2}, 4, v1
    v_lshlrev_b32 v{vT2}, 8, v{vT2}
    v_add_u32 v{vT2}, s{sT0}, v{vT2}
    global_load_dwordx4 v[{XS}:{XS+3}], v{vT2}, s[18:19] sc1""")
        vq.issue(("X", 0))
    def ffn_step(f):
        def go():
            if f == 0:
                vq.wait(p, ("X", 0), ("F", 7))
                p(f"""
    v_and_b32 v{vT2}, 15, v1
    v_lshlrev_b32 v{vT2}, 5, v{vT2}
    s_lshl_b32 s{sT0}, s{sW}, 9
    s_add_u32 s{sT0}, s{sT0}, {L_FP}
    v_add_u32 v{vT2}, s{sT0}, v{vT2}""")
            if f > 0:
                p(f"ds_write_b32 v{vT2}, v{FD} offset:{(f-1)*4}"); lq.issue(("FW", f - 1))
            if f < 8:
                j = f >> 1; sel = sPH if f & 1 else sPL
                for pp in range(4):
                    p(f"v_perm_b32 v{FT+pp}, v{FR+(2*pp+1)*4+j}, v{FR+(2*pp)*4+j}, s{sel}")
        return go
    def ffn_mfma():
        p(f"v_mfma_f32_16x16x32_bf16 v[{FD}:{FD+3}], v[{XS}:{XS+3}], v[{FT}:{FT+3}], 0")
    def ffn_final():
        p(f"""
    s_cmp_lg_u32 s{sW}, 0
    s_cbranch_scc1 K2_FSKIP
    s_cmp_ge_u32 s2, 224
    s_cbranch_scc1 K2_FSKIP
    v_lshlrev_b32 v{vT2}, 3, v1
    v_add_u32 v{vT3}, {L_FP}, v{vT2}""")
        for w in range(8): p(f"ds_read_b64 v[{FR+2*w}:{FR+2*w+1}], v{vT3} offset:{w*512}")
        p(f"""
    s_and_b32 s{sT0}, s2, 3
    s_mul_i32 s{sT0}, s{sT0}, {7168*8}
    s_lshr_b32 s{sT1}, s2, 2
    s_lshl_b32 s{sT1}, s{sT1}, 10
    s_add_u32 s{sT0}, s{sT0}, s{sT1}
    s_add_u32 s{sT0}, s{sT0}, {WS_GU}
    v_lshlrev_b32 v{vT2}, 1, v{vT2}
    v_add_u32 v{vT2}, s{sT0}, v{vT2}
    s_waitcnt lgkmcnt(0)""")
        for w in range(1, 8):
            p(f"v_add_f32 v{FR}, v{FR}, v{FR+2*w}\nv_add_f32 v{FR+1}, v{FR+1}, v{FR+2*w+1}")
        p(f"v_mov_b32 v{FR+2}, v{FR+1}\nv_mov_b32 v{FR+1}, s{sNON}\nv_mov_b32 v{FR+3}, s{sNON}")
        p(f"global_store_dwordx4 v{vT2}, v[{FR}:{FR+3}], s[18:19] sc1")
        p.label("K2_FSKIP")
    NEG = f"v[{NEGM}:{NEGM+15}]"
    def iteration(t, extra=(), mid=()):
        doQK = t < 15; doPV = t > 0; prevSM = t > 0
        sb = t & 1
        for j in range(8):
            if doQK: qk(j, sb ^ 1, NEG)
            if (j > 0 or prevSM) and 'novalu' not in dbg:
                e = E + 2 * ((j - 1) & 1)
                pb = sb if j > 0 else sb ^ 1
                pr = P + 8 * pb + ((j - 1) & 7)
                p(f"v_add_f32 v{vL0}, v{vL0}, v{e}\nv_add_f32 v{vL1}, v{vL1}, v{e+1}\nv_cvt_pk_bf16_f32 v{pr}, v{e}, v{e+1}")
            if j < len(mid): run(mid[j])
            if doPV: pv(j, sb ^ 1, first=(t == 1))
            e = E + 2 * (j & 1)
            if 'novalu' not in dbg: p(f"v_exp_f32 v{e}, v{S+16*sb+2*j}\nv_exp_f32 v{e+1}, v{S+16*sb+2*j+1}")
            jj = j + D
            if jj < 8:
                if doQK: k_read(t + 1, jj)
                if doPV: v_read(t - 1, jj)
            else:
                if t + 2 <= 15: k_read(t + 2, jj - 8)
                v_read(t, jj - 8)
            if j < len(extra): run(extra[j])
    F = lambda i: job_f(i) if (ffn and cold and 'nofl' not in dbg) else None
    FT0 = 10
    PL = lambda n: (("PL", n), p3_preload(n))
    sched = {
        0: [job_k(7), None, job_v(3), None, job_v(4), None, F(0)],
        1: [job_v(5), None, None, job_v(6), None, None, F(1)],
        2: [job_k(8), None, job_k(9), None, job_v(7), None, F(2)],
        3: [job_v(8), None, job_v(9), None, job_v(10), None, F(3)],
        4: [job_k(10), keyld, job_k(11), None, job_v(11), None, F(4)],
        5: [job_v(12), None, None, job_v(13), None, None, F(5)],
        6: [job_k(12), None, job_k(13), None, job_v(14), None, F(6)],
        7: [job_v(15), None, xsel, None, None, None, F(7)],
        8: [job_k(14), None, job_k(15), None, None, pf(0)],
        9: [None, None, None, None, pf(1)],
        10: [None, None, None, None, pf(2)],
        11: [None, None, None, None, pf(3)],
        12: [None, None, p3_early_setup(), p3_preload(0), PL(1), None, PL(2), None],
        13: [PL(3), None, PL(4), PL(5), None, PL(6), PL(7), p3_preload(8)],
        112: [] if 'notlb' in dbg else [
             (("TL", 0), f"v_min_u32 v{FT}, 40, v1\nv_lshlrev_b32 v{FT}, 20, v{FT}\nglobal_load_dword v{FD}, v{FT}, s[18:19]"), None,
             (("TL", 1), f"v_and_b32 v{FT+1}, 3, v1\nv_lshlrev_b32 v{FT+1}, 20, v{FT+1}\nglobal_load_dword v{FD}, v{FT+1}, s[78:79]"), None,
             (("TL", 2), f"v_and_b32 v{FT+2}, 7, v1\nv_lshlrev_b32 v{FT+2}, 20, v{FT+2}\nglobal_load_dword v{FD}, v{FT+2}, s[10:11]"), None,
             (("TL", 3), f"v_min_u32 v{FT+3}, 6, v1\nv_lshlrev_b32 v{FT+3}, 20, v{FT+3}\nglobal_load_dword v{FD}, v{FT+3}, s[16:17]")],
    }
    if 'nodma' in dbg: sched = {}
    for t in range(16):
        if t > 0 and t % 2 == 0:
            b = t // 2
            need = [("K", x) for x in range(2*b+4)] + [("V", x) for x in range(2*b+2)]
            if b == 6: need = [("K", x) for x in range(16)] + [("V", x) for x in range(16)]
            vq.wait(p, *need)
            if b == 7: vq.wait(p, ("PF", 3))
            if 2 * b == FT0 + 2: lq.wait(p, ("FW", 7))
            p("s_barrier")
        extra = sched.get(t, []); mid = []
        def both(x, y):
            def f():
                run(x); run(y)
            return f
        ex8 = list(extra) + [None] * 8
        if t == FT0:
            extra = [both(ex8[f], ffn_step(f)) for f in range(8)]; mid = [None] + [ffn_mfma] * 7
        if t == FT0 + 1:
            extra = [ex8[0], ffn_step(8)] + ex8[2:8]; mid = [ffn_mfma]
        if t == FT0 + 2:
            extra = [ex8[0], ffn_final] + ex8[2:8]
        if t == 14:
            ED = lambda n: None if 'noew' in dbg else (("EW", n), p3_early_dma(n))
            extra = []
        if t == 15:
            extra = []
        iteration(t, extra, mid)
    e = E + 2
    p(f"v_add_f32 v{vL0}, v{vL0}, v{e}\nv_add_f32 v{vL1}, v{vL1}, v{e+1}\nv_cvt_pk_bf16_f32 v{P+8+7}, v{e}, v{e+1}")
    p(f"""
    v_add_f32 v{vL0}, v{vL0}, v{vL1}
    v_mov_b32 v{vL1}, v{vL0}
    """)
    for i in range(8):
        pv(i, 1)
        if i + D < 8: v_read(15, i + D)
        if i == 0:
            p(f"v_permlane32_swap_b32 v{vL0}, v{vL1}\nv_add_f32 v{vL0}, v{vL0}, v{vL1}")
        if i == 1:
            p(f"""
    v_mov_b32 v{vT1}, 0x5d800000
    v_cmp_nle_f32 vcc, v{vL0}, v{vT1}
    v_rcp_f32 v{vL1}, v{vL0}
    """)
    ST()
    if slow:
        p(f"s_cbranch_vccnz K2_SLOW")
        p.label("K2_SLOW_RET")
    for dt in range(4):
        for c in range(2):
            a = ACC + 16 * dt + 8 * c
            o = S + (dt * 2 + c) * 4
            for r in range(8): p(f"v_mul_f32 v{a+r}, v{a+r}, v{vL1}")
            for r in range(4): p(f"v_cvt_pk_bf16_f32 v{o+r}, v{a+2*r}, v{a+2*r+1}")
            p(f"buffer_store_dwordx4 v[{o}:{o+3}], v{vO}, s[{SRD_OT}:{SRD_OT+3}], s{sOT} offen offset:{c*512} sc1")
        if dt < 3: p(f"s_add_u32 s{sOT}, s{sOT}, 131072")
    phase3(p, ST, stamp)
    p.label("K2_END")
    p("s_endpgm")
    p.label("M_SSPIN")
    p("s_sleep 2")
    p(stcode)
    p("s_waitcnt vmcnt(0)")
    p(stchk)
    p(f"""
    s_cbranch_vccz M_SSPIN_RET
    s_sub_u32 s73, s73, 1
    s_cmp_lg_u32 s73, 0
    s_cbranch_scc1 M_SSPIN
    s_branch M_SSPIN_RET
    """)
    p.label("M_KSPIN")
    p("s_sleep 2")
    p(keycode)
    p("s_waitcnt vmcnt(0)")
    p(keychk)
    p(f"""
    s_cbranch_vccz M_KSPIN_RET
    s_sub_u32 s73, s73, 1
    s_cmp_lg_u32 s73, 0
    s_cbranch_scc1 M_KSPIN
    s_branch M_KSPIN_RET
    """)
    if slow:
        p.label("K2_SLOW")
        p(f"""
    s_waitcnt vmcnt(0) lgkmcnt(0)
    v_and_b32 v{vT0}, 31, v1
    v_lshlrev_b32 v{vT0}, 8, v{vT0}
    v_lshrrev_b32 v{vT1}, 5, v1
    v_lshl_add_u32 v{vT0}, v{vT1}, 4, v{vT0}
    v_and_b32 v{vT2}, 19, v1
    v_bfe_u32 v{vT3}, v1, 2, 1
    v_lshl_add_u32 v{vT2}, v{vT3}, 3, v{vT2}
    v_bfe_u32 v{vT3}, v1, 3, 1
    v_lshl_add_u32 v{vT2}, v{vT3}, 2, v{vT2}
    v_lshlrev_b32 v{vT2}, 1, v{vT2}
    v_lshl_add_u32 v{vT2}, v{vT1}, 10, v{vT2}
    v_mov_b32 v{vT1}, 0xff800000
    s_mov_b32 s{sT1}, 0
    """)
        KS = KF
        def slow_qk(c0):
            for j in range(8):
                p(f"buffer_load_dwordx4 v[{KS+4*j}:{KS+4*j+3}], v{vT0}, s[{SRD_K}:{SRD_K+3}], s{sT1} offen offset:{j*32}")
            p("s_waitcnt vmcnt(0)")
            for j in range(8):
                c = c0 if j == 0 else f"v[{S}:{S+15}]"
                p(f"v_mfma_f32_32x32x16_bf16 v[{S}:{S+15}], v[{KS+4*j}:{KS+4*j+3}], v[{QP+4*j}:{QP+4*j+3}], {c}")
        p.label("K2_SLOW_L1")
        slow_qk("0")
        for i in range(0, 16, 2):
            p(f"v_max3_f32 v{vT1}, v{vT1}, v{S+i}, v{S+i+1}")
        p(f"""
    s_add_u32 s{sT1}, s{sT1}, 8192
    s_cmp_lt_u32 s{sT1}, 131072
    s_cbranch_scc1 K2_SLOW_L1
    v_mov_b32 v{vT3}, v{vT1}
    v_permlane32_swap_b32 v{vT3}, v{vT1}
    v_max_f32 v{vT1}, v{vT3}, v{vT1}
    """)
        for i in range(16): p(f"v_sub_f32 v{NEGM+i}, 0, v{vT1}")
        for i in range(64): p(f"v_mov_b32 v{ACC+i}, 0")
        p(f"v_mov_b32 v{vL0}, 0\ns_mov_b32 s{sT1}, 0")
        p.label("K2_SLOW_L2")
        slow_qk(NEG)
        for i in range(16): p(f"v_exp_f32 v{S+i}, v{S+i}")
        for i in range(16): p(f"v_add_f32 v{vL0}, v{vL0}, v{S+i}")
        for i in range(8): p(f"v_cvt_pk_bf16_f32 v{P+i}, v{S+2*i}, v{S+2*i+1}")
        for ks in range(2):
            p(f"s_add_u32 s{sT2}, s{sT1}, {ks*4096}")
            TM = S + 16
            for dt in range(4):
                r = KS + dt * 4; d = ACC + 16 * dt
                for jj in range(8):
                    key = (jj & 3) + 8 * (jj >> 2)
                    p(f"buffer_load_ushort v{TM + jj}, v{vT2}, s[{SRD_V}:{SRD_V+3}], s{sT2} offen offset:{key*256 + dt*64}")
                p("s_waitcnt vmcnt(0)")
                for jj in range(4): p(f"v_lshl_or_b32 v{r+jj}, v{TM+2*jj+1}, 16, v{TM+2*jj}")
                p(f"v_mfma_f32_32x32x16_bf16 v[{d}:{d+15}], v[{r}:{r+3}], v[{P+4*ks}:{P+4*ks+3}], v[{d}:{d+15}]")
            p("s_nop 7")
        p(f"""
    s_add_u32 s{sT1}, s{sT1}, 8192
    s_cmp_lt_u32 s{sT1}, 131072
    s_cbranch_scc1 K2_SLOW_L2
    v_mov_b32 v{vL1}, v{vL0}
    v_permlane32_swap_b32 v{vL0}, v{vL1}
    v_add_f32 v{vL0}, v{vL0}, v{vL1}
    v_rcp_f32 v{vL1}, v{vL0}
    s_nop 7
    s_branch K2_SLOW_RET
    """)
    n = p.fix_hazards(verbose='v' in dbg)
    import re as _re
    txt0 = _re.sub(r"ST3_(\d)", (lambda m: f"s_memtime s[{80+2*int(m.group(1))}:{81+2*int(m.group(1))}]") if MODE3[0] else "s_nop 0", p.text())
    txt0 = _re.sub(r"    ST4_(\d)\n", (lambda m: f"    s_memtime s[{80+2*int(m.group(1))}:{81+2*int(m.group(1))}]\n") if 'st4' in dbg else "", txt0)
    txt = txt0.replace('STAMPX1', 's_nop 0')
    return txt, descriptor(name, 256, 256, 102), f"; @launch grid=(256,1,1) block=(512,1,1) lds={L_TOTAL}"

if __name__ == "__main__":
    import sys, subprocess, re
    dbg = tuple(sys.argv[2].split(',')) if len(sys.argv) > 2 else ()
    t, d, l = gen_mega(stamp=len(sys.argv) > 1 and sys.argv[1] == "1", dbg=dbg)
    out = sys.argv[3] if len(sys.argv) > 3 else "mega.s"
    def write(cs):
        open(out, "w").write(l + '\n.amdgcn_target "amdgcn-amd-amdhsa--gfx950"\n.text\n' + t.replace("CODESIZE", str(cs)) + '.section .rodata,"a"\n' + d)
    write(0x1000)
    subprocess.run(["clang", "-x", "assembler", "-target", "amdgcn-amd-amdhsa", "-mcpu=gfx950", "-c", out, "-o", "mega.o"], check=True)
    r = subprocess.run(["llvm-objdump", "-h", "mega.o"], capture_output=True, text=True).stdout
    sz = int(re.search(r"\.text\s+([0-9a-f]+)", r).group(1), 16)
    write((sz - 256) & ~63)
    print("code size", sz)
```

```python
from gen_common import *
import math, struct

KSL = 8704; VSL = 8192
L_X = 65536
L_HI = 131072
L_FP = 159744
L_TOTAL = L_FP + 4096
L_K = L_HI
KADDR = [L_HI, L_HI + KSL, L_HI + 2 * KSL, L_X, L_X + KSL + 2 * VSL, L_X + 2 * KSL + 2 * VSL, L_X + 3 * KSL + 2 * VSL]
VADDR = [L_X + KSL, L_X + KSL + VSL, L_X + 4 * KSL + 2 * VSL] + [i * VSL for i in range(8)]
assert VADDR[2] + VSL <= L_HI and KADDR[2] + KSL <= L_FP and VADDR[1] + VSL <= L_X + 32768
def Kabs(t): return KADDR[t % 7]
def Vabs(t): return VADDR[t % 11]

vDk, vDv, vKb, vVa, vVb, vO, vL0, vL1, vDf, vKh, vT0, vT1, vT2, vT3 = 2, 3, 4, 5, 6, 7, 8, 9, 10, 11, 12, 13, 14, 15
vPF = 211
ACC = 16; QP = 80; S = 112; NEGM = 144; P = 160; KF = 176; VF = 192; E = 208
QA = 112; AF = 176
def BRr(buf, k): return 212 + (buf & 1) * 16 + k * 4
FR = 212
vA0, vA1, vDq, vDq2, vXB0, vXB1 = 244, 245, 246, 247, 248, 249
vXD = 80
FT = 244; FD = 248; XS = 252
sW = 3
sHEAD, sRB, sG = 20, 21, 22
sN, sWq, sM, sB = 23, 24, 25, 26
sKsrc, sKw, sVsrc, sVw = 27, 28, 29, 30
sPL, sPH = 31, 32
sFsrc, sIDX = 69+32, 35
SRD_WQ, SRD_XN, SRD_K, SRD_V, SRD_F, SRD_OT = 36, 40, 44, 48, 52, 56
sT0, sT1, sT2, sT3 = 60, 61, 62, 63
sOT = 64
sXM = 100
QSCALE = math.log2(math.e) / math.sqrt(128.0)
def fbits(x): return "0x%08x" % struct.unpack("<I", struct.pack("<f", x))[0]
D = 4

class Q:
    def __init__(self, cnt, mx): self.q = []; self.cnt = cnt; self.mx = mx
    def issue(self, tag): self.q.append(tag)
    def wait(self, p, *tags):
        idx = [len(self.q) - 1 - self.q[::-1].index(t) for t in tags if t in self.q]
        if not idx: return
        i = max(idx)
        n = len(self.q) - 1 - i
        assert n <= self.mx, n
        p(f"s_waitcnt {self.cnt}({n})")
        self.q = self.q[i + 1:]


KNAME = "recurrent_scan__sliding_block_cached__moe_arch_mod__prompt_kernel"
sFL, sPC, sKEY = 65, 70, 34
SPIN_MAX = 20000
MODE0 = [False]
DBGT = [False]
NOEW = [False]
MODE3 = [False]
WS_FLG = 0x500000
sNON = 33

LX = 16
def poll32(p, lab, sGrp, stage):
    p(f"""
    v_and_b32 v{vT0}, 31, v1
    v_lshlrev_b32 v{vT0}, 7, v{vT0}
    s_lshl_b32 s{sGrp}, s{sGrp}, 12
    s_add_u32 s{sGrp}, s{sGrp}, {WS_FLG + stage*32768}
    v_add_u32 v{vT0}, s{sGrp}, v{vT0}
    s_mov_b32 s73, {SPIN_MAX}
    """)
    p.label(lab)
    p(f"""
    global_load_dword v{vT1}, v{vT0}, s[18:19] sc1
    s_waitcnt vmcnt(0)
    v_cmp_ne_u32 vcc, s{sNON}, v{vT1}
    s_cbranch_vccz {lab}_OK
    s_sleep 1
    s_sub_u32 s73, s73, 1
    s_cmp_lg_u32 s73, 0
    s_cbranch_scc1 {lab}
    """)
    p.label(lab + "_OK")
def set_flag(p, stage):
    p(f"""
    s_lshl_b32 s{sT0}, s{sFL}, 7
    s_add_u32 s{sT0}, s{sT0}, {WS_FLG + stage*32768}
    v_mov_b32 v{vT0}, s{sT0}
    v_mov_b32 v{vT1}, s{sNON}
    s_mov_b64 exec, 1
    global_store_dword v{vT0}, v{vT1}, s[18:19] sc1
    s_mov_b64 exec, -1
    """)
WS_ST = 0x520000
WS_CS = 0x530000
L_SC = L_K
CSR = 92
def get_nonce(p, lab, vz, vn):
    p(f"""
    s_mov_b32 s73, {SPIN_MAX}
{lab}:
    global_load_dword v{vn}, v{vz}, s[66:67] sc1
    s_waitcnt vmcnt(0)
    v_readfirstlane_b32 s{sNON}, v{vn}
    s_cmp_lg_u32 s{sNON}, 0
    s_cbranch_scc1 {lab}_OK
    s_sub_u32 s73, s73, 1
    s_cmp_lg_u32 s73, 0
    s_cbranch_scc1 {lab}
{lab}_OK:
    """)
class Rec:
    def __init__(self): self.items = []
    def __call__(self, text):
        for line in text.split('\n'):
            if line.strip(): self.items.append(line.strip())
    def call(self, f): self.items.append(f)
LN_X = 16; LN_W = 24
vg0, vg1, vr_, vq_, vNON, vCSA, vLXA = 84, 85, 86, 87, 88, 89, 90
def ln_segments(lq, vq, P):
    X = LN_X; W = LN_W; F = 32; S_ = 48; T = 49; Q0 = 50; Q1 = 51; Dd = 52; va = 68; vw = 69; SD = 70; G = 32
    CA = 72; CT = 52
    p = Rec()
    p(f"""
    v_lshrrev_b32 v{vw}, 6, v0
    v_and_b32 v{va}, 7, v1
    v_xor_b32 v{va}, v{va}, v{vw}
    v_lshlrev_b32 v{va}, 4, v{va}
    v_lshl_add_u32 v{va}, v1, 7, v{va}
    v_add_u32 v{va}, {L_SC}, v{va}
    v_lshrrev_b32 v{vg1}, 3, v0
    v_and_b32 v{vg0}, 7, v{vg1}
    v_and_b32 v{vr_}, 7, v0
    v_xor_b32 v{vg0}, v{vg0}, v{vr_}
    v_lshlrev_b32 v{vg0}, 4, v{vg0}
    v_lshl_add_u32 v{vg0}, v{vg1}, 8, v{vg0}
    s_lshr_b32 s{sT0}, s{sFL}, 1
    s_lshl_b32 s{sT0}, s{sT0}, 15
    s_and_b32 s{sT1}, s{sFL}, 1
    s_lshl_b32 s{sT1}, s{sT1}, 7
    s_add_u32 s{sT0}, s{sT0}, s{sT1}
    v_add_u32 v{vg0}, s{sT0}, v{vg0}
    v_add_u32 v{vg1}, 0x4000, v{vg0}
    v_lshlrev_b32 v{vr_}, 4, v0
    v_add_u32 v{vr_}, {L_SC}, v{vr_}
    """)
    p.call(lambda: vq.wait(P, ("LX", 1)))
    ONE = F
    p(f"v_mov_b32 v{ONE}, 0x3f803f80")
    p(f"v_dot2_f32_bf16 v{S_}, v{X}, v{ONE}, 0\nv_dot2_f32_bf16 v{Q0}, v{X}, v{X}, 0")
    p(f"v_dot2_f32_bf16 v{T}, v{X+1}, v{ONE}, 0\nv_dot2_f32_bf16 v{Q1}, v{X+1}, v{X+1}, 0")
    for i in range(2, 8, 2):
        p(f"v_dot2_f32_bf16 v{S_}, v{X+i}, v{ONE}, v{S_}\nv_dot2_f32_bf16 v{Q0}, v{X+i}, v{X+i}, v{Q0}")
        p(f"v_dot2_f32_bf16 v{T}, v{X+i+1}, v{ONE}, v{T}\nv_dot2_f32_bf16 v{Q1}, v{X+i+1}, v{X+i+1}, v{Q1}")
    p(f"s_nop 1\nv_add_f32 v{S_}, v{S_}, v{T}\nv_add_f32 v{Q0}, v{Q0}, v{Q1}")
    ra = Rec(); wave_sum(ra, S_, T); rb_ = Rec(); wave_sum(rb_, Q0, Q1)
    for x_, y_ in zip(ra.items, rb_.items): p(x_); p(y_)
    p(f"""
    v_mul_f32 v{S_}, 0x3a800000, v{S_}
    v_mul_f32 v{Q0}, 0x3a800000, v{Q0}
    v_fma_f32 v{Q0}, -v{S_}, v{S_}, v{Q0}
    v_max_f32 v{Q0}, 0, v{Q0}
    v_cvt_pk_bf16_f32 v{T}, v{S_}, v{Q0}
    v_lshlrev_b32 v{S_}, 16, v{T}
    v_and_b32 v{Q0}, 0xffff0000, v{T}
    v_add_f32 v{Q0}, 0x3727c5ac, v{Q0}
    v_cvt_pk_bf16_f32 v{Q0}, v{Q0}, v{Q0}
    v_lshlrev_b32 v{Q0}, 16, v{Q0}
    v_sqrt_f32 v{Q0}, v{Q0}
    v_cvt_pk_bf16_f32 v{SD}, v{S_}, v{Q0}
    v_and_b32 v{Q0}, 0xffff0000, v{SD}
    v_rcp_f32 v{Q0}, v{Q0}
    """)
    def dsw(text, tag):
        def f():
            P(text); lq.issue(tag)
        p.call(f)
    p(f"""
    s_lshl_b32 s{sT0}, s{sW}, 2
    s_add_u32 s{sT0}, s{sT0}, {L_SC + 16384}
    v_mov_b32 v{vw}, s{sT0}
    """)
    partA1 = p.items
    p = Rec()
    p.call(lambda: vq.wait(P, ("CS", 3)))
    for i in range(4):
        for j in range(4):
            r = CSR + 4 * i + j
            if i == 0:
                p(f"v_lshlrev_b32 v{CA+2*j}, 16, v{r}\nv_and_b32 v{CA+2*j+1}, 0xffff0000, v{r}")
            else:
                p(f"v_lshlrev_b32 v{CT}, 16, v{r}\nv_and_b32 v{CT+1}, 0xffff0000, v{r}")
                p(f"v_add_f32 v{CA+2*j}, v{CA+2*j}, v{CT}\nv_add_f32 v{CA+2*j+1}, v{CA+2*j+1}, v{CT+1}")
    p(f"""
    v_lshlrev_b32 v{T}, 5, v0
    v_add_u32 v{T}, {L_SC}, v{T}
    """)
    dsw(f"ds_write_b128 v{T}, v[{CA}:{CA+3}]", ("LW", 4))
    dsw(f"ds_write_b128 v{T}, v[{CA+4}:{CA+7}] offset:16", ("LW", 5))
    partA = p.items
    p = Rec()
    exact = True
    for i in range(8):
        p(f"v_lshlrev_b32 v{Dd+2*i}, 16, v{X+i}\nv_and_b32 v{Dd+2*i+1}, 0xffff0000, v{X+i}")
    for i in range(16): p(f"v_sub_f32 v{Dd+i}, v{Dd+i}, v{S_}")
    for i in range(8): p(f"v_cvt_pk_bf16_f32 v{X+i}, v{Dd+2*i}, v{Dd+2*i+1}")
    for i in range(8):
        p(f"v_lshlrev_b32 v{Dd+2*i}, 16, v{X+i}\nv_and_b32 v{Dd+2*i+1}, 0xffff0000, v{X+i}")
    for i in range(16): p(f"v_mul_f32 v{Dd+i}, v{Dd+i}, v{Q0}")
    for i in range(8): p(f"v_cvt_pk_bf16_f32 v{X+i}, v{Dd+2*i}, v{Dd+2*i+1}")
    p.call(lambda: vq.wait(P, ("LX", 3)))
    p(f"v_dot2_f32_bf16 v{S_}, v{X}, v{W}, 0\nv_dot2_f32_bf16 v{Q1}, v{X+1}, v{W+1}, 0")
    for i in range(2, 8, 2):
        p(f"v_dot2_f32_bf16 v{S_}, v{X+i}, v{W+i}, v{S_}\nv_dot2_f32_bf16 v{Q1}, v{X+i+1}, v{W+i+1}, v{Q1}")
    p(f"s_nop 2\nv_add_f32 v{S_}, v{S_}, v{Q1}")
    wave_sum(p, S_, T)
    p(f"""
    v_cvt_pk_bf16_f32 v{S_}, v{S_}, v{S_}
    v_lshlrev_b32 v{S_}, 16, v{S_}
    v_ashrrev_i32 v{T}, 31, v{S_}
    v_or_b32 v{T}, 0x80000000, v{T}
    v_xor_b32 v{S_}, v{S_}, v{T}
    v_and_b32 v{S_}, 0xffff0000, v{S_}
    s_lshl_b32 s{sT1}, s{sFL}, 3
    s_add_u32 s{sT1}, s{sT1}, s{sW}
    s_sub_u32 s{sT0}, 2047, s{sT1}
    v_or_b32 v{S_}, s{sT0}, v{S_}
    v_mov_b32 v{vL0}, 0
    v_mov_b32 v{vL1}, 0
    """)
    dsw(f"ds_write_b128 v{va}, v[{X}:{X+3}]", ("LW", 0))
    dsw(f"ds_write_b128 v{va}, v[{X+4}:{X+7}] offset:8192", ("LW", 1))
    dsw(f"ds_write_b32 v{vw}, v{S_}", ("LW", 2))
    return partA1, partA, p.items
def pub_segments(lq, vq, P):
    R = CSR
    p = Rec()
    def ds(text, tag):
        def f():
            P(text); lq.issue(tag)
        p.call(f)
    def vm(text, tag):
        def f():
            P(text); vq.issue(tag)
        p.call(f)
    p(f"""
    v_lshrrev_b32 v{R+4}, 3, v1
    v_lshlrev_b32 v{R+4}, 9, v{R+4}
    v_and_b32 v{R+5}, 7, v1
    v_lshl_add_u32 v{R+4}, v{R+5}, 3, v{R+4}
    s_lshl_b32 s{sT0}, s{sW}, 6
    s_add_u32 s{sT0}, s{sT0}, {L_SC}
    v_add_u32 v{R+4}, s{sT0}, v{R+4}
    """)
    ds(f"ds_read_b64 v[{R}:{R+1}], v{R+4}", ("PR", 9))
    ds(f"ds_read_b64 v[{R+8}:{R+9}], v{R+4} offset:4096", ("PR", 8))
    p("s_nop 0\ns_nop 0\ns_nop 0\ns_nop 0")
    ds(f"ds_read_b64 v[{R+10}:{R+11}], v{R+4} offset:8192", ("PR", 7))
    ds(f"ds_read_b64 v[{R+12}:{R+13}], v{R+4} offset:12288", ("PR", 0))
    p(f"""
    s_lshl_b32 s{sT0}, s{sHEAD}, 3
    s_add_u32 s{sT0}, s{sT0}, s{sRB}
    s_lshl_b32 s{sT0}, s{sT0}, 3
    s_add_u32 s{sT0}, s{sT0}, s{sW}
    s_lshl_b32 s{sT0}, s{sT0}, 7
    s_add_u32 s{sT0}, s{sT0}, {WS_CS}
    v_lshlrev_b32 v{R+5}, 4, v{R+5}
    v_add_u32 v{R+5}, s{sT0}, v{R+5}
    s_lshl_b32 s{sT0}, s{sFL}, 3
    s_add_u32 s{sT0}, s{sT0}, s{sW}
    s_lshl_b32 s{sT0}, s{sT0}, 3
    s_add_u32 s{sT0}, s{sT0}, {WS_ST}
    v_mov_b32 v{R+6}, s{sT0}
    v_mov_b32 v71, s{sNON}
    """)
    vm(f"s_mov_b64 exec, 1\nglobal_store_dwordx2 v{R+6}, v[70:71], s[18:19] sc1\ns_mov_b64 exec, -1", ("PS", 0))
    p.call(lambda: lq.wait(P, ("PR", 0)))
    p(f"""
    v_add_f32 v{R}, v{R}, v{R+8}
    v_add_f32 v{R+1}, v{R+1}, v{R+9}
    v_add_f32 v{R+10}, v{R+10}, v{R+12}
    v_add_f32 v{R+11}, v{R+11}, v{R+13}
    v_add_f32 v{R}, v{R}, v{R+10}
    v_add_f32 v{R+2}, v{R+1}, v{R+11}
    """)
    for c in (R, R + 2): p(f"v_add_f32_dpp v{c}, v{c}, v{c} row_ror:8 row_mask:0xf bank_mask:0xf")
    for sw in ("v_permlane16_swap_b32", "v_permlane32_swap_b32"):
        p(f"v_mov_b32 v{R+1}, v{R}\nv_mov_b32 v{R+3}, v{R+2}")
        p(f"{sw} v{R}, v{R+1}\n{sw} v{R+2}, v{R+3}")
        p(f"v_add_f32 v{R}, v{R}, v{R+1}\nv_add_f32 v{R+2}, v{R+2}, v{R+3}")
    p(f"v_mov_b32 v{R+1}, s{sNON}\nv_mov_b32 v{R+3}, s{sNON}")
    vm(f"s_mov_b64 exec, 0xff\nglobal_store_dwordx4 v{R+5}, v[{R}:{R+3}], s[18:19] sc1\ns_mov_b64 exec, -1", ("PS", 1))
    seg1 = p.items
    p = Rec()
    X = 16
    ds(f"ds_read_b128 v[{X}:{X+3}], v{vr_}", ("PR", 1))
    ds(f"ds_read_b128 v[{X+4}:{X+7}], v{vr_} offset:8192", ("PR", 2))
    p(f"v_mov_b32 v{vq_}, {L_SC + 16384}")
    ds(f"ds_read_b128 v[{X+8}:{X+11}], v{vq_}", ("PR", 3))
    p("s_nop 0\ns_nop 0\ns_nop 0\ns_nop 0")
    p.call(lambda: lq.wait(P, ("PR", 1)))
    vm(f"global_store_dwordx4 v{vg0}, v[{X}:{X+3}], s[18:19] sc1", ("PS", 2))
    ds(f"ds_read_b128 v[{X+12}:{X+15}], v{vq_} offset:16", ("PR", 4))
    p.call(lambda: lq.wait(P, ("PR", 2)))
    vm(f"global_store_dwordx4 v{vg1}, v[{X+4}:{X+7}], s[18:19] sc1", ("PS", 3))
    p("s_nop 0\ns_nop 0\ns_nop 0\ns_nop 0")
    p.call(lambda: lq.wait(P, ("PR", 4)))
    p(f"""
    v_max3_u32 v{X+8}, v{X+8}, v{X+9}, v{X+10}
    v_max3_u32 v{X+12}, v{X+12}, v{X+13}, v{X+14}
    v_max3_u32 v{X+8}, v{X+8}, v{X+11}, v{X+15}
    v_max_u32 v{X+8}, v{X+8}, v{X+12}
    v_readfirstlane_b32 s{sKEY}, v{X+8}
    """)
    return seg1, p.items
def set_flag2(p):
    pass

def rbf(p, v):
    p(f"v_cvt_pk_bf16_f32 v{v}, v{v}, v{v}\nv_lshlrev_b32 v{v}, 16, v{v}")
def silu(p, d, v, t):
    p(f"""
    v_mul_f32 v{t}, 0xbfb8aa3b, v{v}
    v_exp_f32 v{t}, v{t}
    v_add_f32 v{t}, 1.0, v{t}
    v_rcp_f32 v{t}, v{t}
    v_mul_f32 v{d}, v{v}, v{t}
    """)
sRT, sCT, sIT, sA, sBo, sMb, sMb2, sKH, sKQ, sMH = 20, 21, 23, 24, 25, 26, 27, 28, 29, 30
sKG, sCG = 31, 32
SRD_A, SRD_B = 36, 40
RB1 = 16384; RB2 = 114688
WS_EX = 0x2000000; WS_FLG2 = 0x560000
EW = 244
L_H3 = 148480
CNT_A = L_HI + 2*KSL + 6*1088 + 1024
CNT_B = CNT_A + 1088
def p3_early_setup():
    return f"""s_and_b32 s{sT0}, s2, 7
    s_lshr_b32 s{sT1}, s2, 3
    s_lshr_b32 s{sRT}, s{sT0}, 1
    s_lshl_b32 s{sRT}, s{sRT}, 2
    s_and_b32 s{sT2}, s{sT1}, 3
    s_add_u32 s{sRT}, s{sRT}, s{sT2}
    s_and_b32 s{sCT}, s{sT0}, 1
    s_lshl_b32 s{sCT}, s{sCT}, 2
    s_bfe_u32 s{sT2}, s{sT1}, 0x20002
    s_add_u32 s{sCT}, s{sCT}, s{sT2}
    s_lshr_b32 s{sKH}, s{sT1}, 4
    s_and_b32 s{sKQ}, s{sW}, 3
    s_lshr_b32 s{sMH}, s{sW}, 2
    s_xor_b32 s{sMH}, s{sMH}, s{sKH}
    s_xor_b32 s{sMH}, s{sMH}, 1
    s_lshl_b32 s{sT0}, s{sKH}, 2
    s_add_u32 s{sT0}, s{sT0}, s{sKQ}
    s_lshl_b32 s{sT1}, s{sT0}, 21
    s_add_u32 s{sT1}, s{sT1}, {WS_OT}
    s_add_u32 s{SRD_A}, s18, s{sT1}
    s_addc_u32 s{SRD_A+1}, s19, 0
    s_mov_b32 s{SRD_A+2}, 0x200000
    s_mov_b32 s{SRD_A+3}, 0x20000
    s_lshl_b32 s{sT1}, s{sT0}, 20
    s_add_u32 s{SRD_B}, s10, s{sT1}
    s_addc_u32 s{SRD_B+1}, s11, 0
    s_mov_b32 s{SRD_B+2}, 0x100000
    s_mov_b32 s{SRD_B+3}, 0x20000
    s_lshl_b32 s{sA}, s{sRT}, 1
    s_add_u32 s{sA}, s{sA}, s{sMH}
    s_lshl_b32 s{sA}, s{sA}, 12
    s_lshl_b32 s{sBo}, s{sCT}, 8
    s_lshl_b32 s{sT1}, s{sMH}, 15
    s_add_u32 s{sBo}, s{sBo}, s{sT1}
    s_mul_i32 s{sMb}, s{sKQ}, 24576
    s_add_u32 s{sMb}, s{sMb}, {RB1}
    s_lshl_b32 s{sMb2}, s{sKQ}, 13
    s_add_u32 s{sMb2}, s{sMb2}, {RB2 - 3*8192}
    s_lshl_b32 s{sT1}, s{sMH}, 12
    s_add_u32 s{sT2}, s{sMb}, s{sT1}
    s_add_u32 s{sT3}, s{sMb2}, s{sT1}
    v_lshrrev_b32 v{EW+1}, 4, v1
    v_and_b32 v{EW}, 3, v1
    v_bfe_u32 v{EW+2}, v1, 2, 2
    v_lshlrev_b32 v{EW}, 4, v{EW}
    v_lshl_add_u32 v{EW}, v{EW+1}, 6, v{EW}
    v_lshl_add_u32 v{EW}, v{EW+2}, 11, v{EW}
    v_add_u32 v{EW+1}, 7168, v{EW}
    v_add_u32 v{EW+2}, {2*7168}, v{EW}
    v_add_u32 v{EW+3}, {3*7168}, v{EW}
    s_mov_b32 s{sDW}, s{sT2}
    s_mov_b32 s{sDW2}, s{sT3}"""
sDW, sDW2 = 68, 69
def wdma(slot, i, vW):
    t = ""
    if i == 0: t = f"s_add_u32 m0, s{sDW2 if slot == 3 else sDW}, {slot*8192}\ns_nop 0\n"
    t += f"buffer_load_dwordx4 v{vW+i}, s[{SRD_B}:{SRD_B+3}], s{sBo} offen offset:{i*1024} lds"
    if i == 3: t += f"\ns_add_u32 s{sBo}, s{sBo}, 65536"
    return t
def p3_early_dma(n):
    return wdma(n >> 2, n & 3, EW)
PL_A = 212; PL_B = 228; PL_G = 176; PL_OUT = 248
def gu_loads(GA):
    t = f"""s_mul_i32 s{sT0}, s{sKG}, 224
    s_mul_i32 s{sT1}, s{sKQ}, 56
    s_add_u32 s{sT0}, s{sT0}, s{sT1}
    v_min_u32 v{GA}, 55, v1
    v_add_lshl_u32 v{GA}, v{GA}, s{sT0}, 3
    v_add_u32 v{GA}, {WS_GU}, v{GA}
    """
    for q in range(8):
        t += f"global_load_dwordx2 v[{PL_G+2*q}:{PL_G+2*q+1}], v{GA}, s[18:19] sc1\n"
        if q < 7: t += f"v_add_u32 v{GA}, 28672, v{GA}\n"
    return t
def p3_preload(n):
    A = 249; B = 250
    if n == 0:
        return f"""s_and_b32 s{sKG}, s{sFL}, 15
    s_lshr_b32 s{sCG}, s{sFL}, 4
    s_cmp_lg_u32 s{sMH}, s{sKH}
    s_cbranch_scc1 M_PL_S
    s_lshl_b32 s{sT0}, s{sRT}, 1
    s_add_u32 s{sT0}, s{sT0}, s{sKH}
    s_lshl_b32 s{sT0}, s{sT0}, 2
    s_add_u32 s{sT0}, s{sT0}, s{sKQ}
    s_lshl_b32 s{sT1}, s{sT0}, 15
    s_lshl_b32 s{sT2}, s{sCT}, 8
    s_add_u32 s{sT2}, s{sT1}, s{sT2}
    v_and_b32 v{A}, 15, v1
    v_lshrrev_b32 v{B}, 4, v1
    v_lshlrev_b32 v{PL_OUT}, 11, v{A}
    v_lshl_add_u32 v{PL_OUT}, v{B}, 4, v{PL_OUT}
    v_add_u32 v{PL_OUT}, s{sT2}, v{PL_OUT}
    s_lshl_b32 s{sT2}, s{sCT}, 12
    s_add_u32 s{sT2}, s{sT1}, s{sT2}
    v_lshlrev_b32 v{A}, 4, v{A}
    v_lshl_add_u32 v{A}, v{B}, 8, v{A}
    v_add_u32 v{A}, s{sT2}, v{A}
    s_branch M_PL_E
M_PL_S:
    s_mul_i32 s{sT0}, s{sKG}, 224
    s_mul_i32 s{sT1}, s{sKQ}, 56
    s_add_u32 s{sT0}, s{sT0}, s{sT1}
    s_lshl_b32 s{sT1}, s{sT0}, 11
    s_lshl_b32 s{sT2}, s{sCG}, 7
    s_add_u32 s{sT1}, s{sT1}, s{sT2}
    v_lshrrev_b32 v{A}, 3, v1
    v_lshlrev_b32 v{A}, 11, v{A}
    v_and_b32 v{B}, 7, v1
    v_lshl_add_u32 v{A}, v{B}, 4, v{A}
    v_add_u32 v{A}, s{sT1}, v{A}
    v_mov_b32 v{PL_OUT}, 0
M_PL_E:"""
    if n == 9:
        return f"s_cmp_eq_u32 s{sMH}, s{sKH}\ns_cbranch_scc1 M_PL9\n{gu_loads(B)}M_PL9:"
    i = n - 1
    kl = (f"global_load_dwordx4 v[{PL_B+4*i}:{PL_B+4*i+3}], v{A}, s[18:19] offset:{i*1024} sc1" if i < 4 else
          f"global_load_dwordx4 v[{PL_A+4*(i-4)}:{PL_A+4*(i-4)+3}], v{PL_OUT}, s[74:75] offset:{(i-4)*64}")
    sl = (f"global_load_dwordx4 v[{PL_A+4*i}:{PL_A+4*i+3}], v{A}, s[16:17]\nv_add_u32 v{A}, 0x4000, v{A}\n" if i < 7 else "")
    return f"s_cmp_lg_u32 s{sMH}, s{sKH}\ns_cbranch_scc1 M_PLS{n}\n{kl}\ns_branch M_PLE{n}\nM_PLS{n}:\n{sl}M_PLE{n}:"
def phase3(p, ST, stamp):
    AC3 = 128; OR = 64; WF = 16; XP = 32; GP = 48
    vAo, vRd, vRd2, vOut, vFa, vFv = 2, 3, 8, 9, 10, 11; vW = 4
    ST(False)
    def oload(slot, i):
        r = OR + slot * 16 + i * 4
        t = f"buffer_load_dwordx4 v[{r}:{r+3}], v{vAo}, s[{SRD_A}:{SRD_A+3}], s{sA} offen offset:{i*1024} sc1"
        if i == 3: t += f"\ns_add_u32 s{sA}, s{sA}, 131072"
        return t
    def arrive(lab, n):
        p(f"""
    v_mov_b32 v{vT0}, {CNT_A}
    v_mov_b32 v{vT1}, 1
    s_waitcnt vmcnt({n})
    s_mov_b64 exec, 1
    ds_add_rtn_u32 v{vT2}, v{vT0}, v{vT1}
    s_mov_b64 exec, -1
    s_waitcnt lgkmcnt(0)
    v_readfirstlane_b32 s{sT0}, v{vT2}
    s_cmp_lg_u32 s{sT0}, 7
    s_cbranch_scc1 {lab}
    """)
        set_flag(p, 1)
        p.label(lab)
    NR = PL_B; GG = 144; TT = 176
    p(f"""
    ST3_0
    v_mov_b32 v{vW}, v{EW}
    v_mov_b32 v{vW+1}, v{EW+1}
    v_mov_b32 v{vW+2}, v{EW+2}
    v_mov_b32 v{vW+3}, v{EW+3}
    v_mov_b32 v{vOut}, v{PL_OUT}
    s_waitcnt vmcnt(8)
    s_cmp_lg_u32 s{sMH}, s{sKH}
    s_cbranch_scc1 M_SEND0
    """)
    for j in range(16):
        p(f"v_lshlrev_b32 v{GG+2*j}, 16, v{NR+j}\nv_and_b32 v{GG+2*j+1}, 0xffff0000, v{NR+j}\nv_mov_b32 v{XP+j}, v{PL_A+j}")
    for c in range(32): p(f"v_mul_f32 v{TT+c}, 0xbfb8aa3b, v{GG+c}")
    for c in range(32): p(f"v_exp_f32 v{TT+c}, v{TT+c}")
    for c in range(32): p(f"v_add_f32 v{TT+c}, 1.0, v{TT+c}")
    for c in range(32): p(f"v_rcp_f32 v{TT+c}, v{TT+c}")
    for c in range(32): p(f"v_mul_f32 v{GG+c}, v{GG+c}, v{TT+c}")
    for c in range(16): p(f"v_cvt_pk_bf16_f32 v{GP+c}, v{GG+2*c}, v{GG+2*c+1}")
    arrive("M_ARR0", 0)
    p("ST3_6\ns_branch M_JOIN0")
    p.label("M_SEND0")
    WD = PL_A; GR = PL_G; GA = 144; AC = 152; T = 160; SW = 164
    guld = gu_loads(GA)
    p(guld)
    arrive("M_ARR3", 8)
    p(f"s_mov_b32 s73, {SPIN_MAX}\ns_mov_b32 s{sIT}, 1\ns_waitcnt vmcnt(0)")
    p.label("M_POLL2")
    for q in range(8): p(f"v_xor_b32 v{GR+2*q+1}, s{sNON}, v{GR+2*q+1}")
    p(f"""
    v_or3_b32 v{GR+1}, v{GR+1}, v{GR+3}, v{GR+5}
    v_or3_b32 v{GR+7}, v{GR+7}, v{GR+9}, v{GR+11}
    v_or3_b32 v{GR+1}, v{GR+1}, v{GR+13}, v{GR+15}
    v_or_b32 v{GR+1}, v{GR+1}, v{GR+7}
    v_cmp_ne_u32 vcc, 0, v{GR+1}
    s_cbranch_vccz M_POLL2_OK
    s_cmp_lg_u32 s{sIT}, 0
    s_cbranch_scc1 M_ARR2
    s_mov_b32 s{sIT}, 1
    """)
    arrive("M_ARR2", 0)
    p(f"""
    s_sleep 10
    {guld}
    s_waitcnt vmcnt(0)
    s_sub_u32 s73, s73, 1
    s_cmp_lg_u32 s73, 0
    s_cbranch_scc1 M_POLL2
    """)
    p.label("M_POLL2_OK")
    p(f"v_mov_b32 v{GR+1}, v{GR+2}")
    for q in range(1, 4):
        p(f"v_add_f32 v{GR}, v{GR}, v{GR+4*q}\nv_add_f32 v{GR+1}, v{GR+1}, v{GR+4*q+2}")
    rbf(p, GR); rbf(p, GR + 1)
    silu(p, GR, GR, GR + 2)
    rbf(p, GR)
    p(f"v_mul_f32 v{GR}, v{GR}, v{GR+1}")
    rbf(p, GR)
    p(f"""
    s_lshl_b32 s{sT0}, s{sKQ}, 8
    s_add_u32 s{sT0}, s{sT0}, {L_H3}
    v_lshlrev_b32 v{vT0}, 2, v1
    v_add_u32 v{vT0}, s{sT0}, v{vT0}
    ds_write_b32 v{vT0}, v{GR}
    v_lshrrev_b32 v{vT1}, 3, v1
    v_lshlrev_b32 v{vT1}, 2, v{vT1}
    v_add_u32 v{vT1}, s{sT0}, v{vT1}
    s_waitcnt lgkmcnt(0)
    """)
    for i in range(7): p(f"ds_read_b32 v{GR+i}, v{vT1} offset:{i*32}")
    p("s_waitcnt lgkmcnt(0)")
    for i in range(7):
        for j in range(4):
            w = WD + 4 * i + j
            p(f"v_lshlrev_b32 v{T}, 16, v{w}\nv_and_b32 v{T+1}, 0xffff0000, v{w}")
            if i == 0: p(f"v_mul_f32 v{AC+2*j}, v{T}, v{GR}\nv_mul_f32 v{AC+2*j+1}, v{T+1}, v{GR}")
            else: p(f"v_fmac_f32 v{AC+2*j}, v{T}, v{GR+i}\nv_fmac_f32 v{AC+2*j+1}, v{T+1}, v{GR+i}")
    for c in range(8): p(f"v_add_f32_dpp v{AC+c}, v{AC+c}, v{AC+c} row_ror:8 row_mask:0xf bank_mask:0xf")
    for sw in ("v_permlane16_swap_b32", "v_permlane32_swap_b32"):
        for c in range(8): p(f"v_mov_b32 v{SW+c}, v{AC+c}")
        for c in range(8): p(f"{sw} v{AC+c}, v{SW+c}")
        for c in range(8): p(f"v_add_f32 v{AC+c}, v{AC+c}, v{SW+c}")
    p(f"""
    v_and_b32 v{vT0}, 7, v1
    v_lshlrev_b32 v{vT0}, 5, v{vT0}
    s_add_u32 s{sT0}, s{sT0}, 1024
    v_add_u32 v{vT0}, s{sT0}, v{vT0}
    ds_write_b128 v{vT0}, v[{AC}:{AC+3}]
    ds_write_b128 v{vT0}, v[{AC+4}:{AC+7}] offset:16
    v_mov_b32 v{vT0}, {CNT_B}
    v_mov_b32 v{vT1}, 1
    s_waitcnt lgkmcnt(0)
    s_mov_b64 exec, 1
    ds_add_rtn_u32 v{vT2}, v{vT0}, v{vT1}
    s_mov_b64 exec, -1
    s_waitcnt lgkmcnt(0)
    v_readfirstlane_b32 s{sT0}, v{vT2}
    s_cmp_lg_u32 s{sT0}, 3
    s_cbranch_scc1 M_SEND_END
    v_lshlrev_b32 v{vT0}, 2, v1
    v_add_u32 v{vT1}, {L_H3 + 1024}, v{vT0}
    ds_read_b32 v{GR}, v{vT1}
    ds_read_b32 v{GR+1}, v{vT1} offset:256
    ds_read_b32 v{GR+2}, v{vT1} offset:512
    ds_read_b32 v{GR+3}, v{vT1} offset:768
    s_lshl_b32 s{sT0}, s{sKG}, 13
    s_lshl_b32 s{sT1}, s{sCG}, 9
    s_add_u32 s{sT0}, s{sT0}, s{sT1}
    s_add_u32 s{sT0}, s{sT0}, {WS_YP}
    v_lshlrev_b32 v{vT0}, 1, v{vT0}
    v_add_u32 v{vT0}, s{sT0}, v{vT0}
    s_waitcnt lgkmcnt(0)
    v_add_f32 v{GR}, v{GR}, v{GR+1}
    v_add_f32 v{GR+2}, v{GR+2}, v{GR+3}
    v_add_f32 v{GR}, v{GR}, v{GR+2}
    v_mov_b32 v{GR+1}, s{sNON}
    global_store_dwordx2 v{vT0}, v[{GR}:{GR+1}], s[18:19] sc1
    """)
    p.label("M_SEND_END")
    p(f"s_and_b32 s{sT3}, s{sBo}, 0x7fff")
    for sl in range(3):
        for hf in range(2):
            p(f"s_add_u32 m0, s{sMb}, {sl*8192 + hf*4096}\ns_nop 0")
            for i in range(4):
                p(f"buffer_load_dwordx4 v{vW+i}, s[{SRD_B}:{SRD_B+3}], s{sT3} offen offset:{i*1024} lds")
            p(f"s_add_u32 s{sT3}, s{sT3}, 32768")
    p(f"s_cmp_lg_u32 s{sIT}, 0\ns_cbranch_scc1 M_JOIN0")
    arrive("M_ARR1", 0)
    p("ST3_6")
    p.label("M_JOIN0")
    p(f"s_add_u32 s{sBo}, s{sBo}, {3*65536}")
    p(f"""
    ST3_1
    s_lshr_b32 s{sT0}, s{sRT}, 1
    s_lshl_b32 s{sT0}, s{sT0}, 1
    s_add_u32 s{sT0}, s{sT0}, s{sKH}
    s_lshl_b32 s{sT0}, s{sT0}, 2
    s_add_u32 s{sT0}, s{sT0}, s{sKQ}
    s_lshl_b32 s{sT0}, s{sT0}, 9
    s_add_u32 s{sT0}, s{sT0}, {WS_FLG + 32768}
    v_and_b32 v{vFa}, 3, v1
    v_lshlrev_b32 v{vFa}, 7, v{vFa}
    v_add_u32 v{vFa}, s{sT0}, v{vFa}
    global_load_dword v{vFv}, v{vFa}, s[18:19] sc1
    v_lshlrev_b32 v{vAo}, 4, v1
    s_mov_b32 s{sIT}, 0
    v_lshrrev_b32 v{vT0}, 4, v1
    v_and_b32 v{vT1}, 3, v1
    v_bfe_u32 v{vT3}, v1, 2, 2
    v_lshlrev_b32 v{vRd}, 11, v{vT0}
    v_lshl_add_u32 v{vRd}, v{vT3}, 6, v{vRd}
    v_lshl_add_u32 v{vRd}, v{vT1}, 4, v{vRd}
    v_add_u32 v{vRd2}, s{sMb2}, v{vRd}
    v_add_u32 v{vRd}, s{sMb}, v{vRd}
    """)
    for i in range(128): p(f"v_mov_b32 v{AC3+i}, 0")
    p(f"""
    s_mov_b32 s73, {SPIN_MAX}
M_POLL1:
    s_waitcnt vmcnt(0)
    v_cmp_ne_u32 vcc, s{sNON}, v{vFv}
    s_cbranch_vccz M_POLL1_OK
    s_sleep 2
    global_load_dword v{vFv}, v{vFa}, s[18:19] sc1
    s_sub_u32 s73, s73, 1
    s_cmp_lg_u32 s73, 0
    s_cbranch_scc1 M_POLL1
M_POLL1_OK:
    ST3_2
    """)
    for sl in range(3):
        for i in range(4): p(oload(sl, i))
    p("ST3_3\ns_barrier\nST3_4\ns_waitcnt vmcnt(8)\nST3_5")
    ST(False)
    lq = Q("lgkmcnt", 15)
    if stamp: p("s_waitcnt lgkmcnt(0)")
    def wread(slot, f):
        u, e = f >> 1, f & 1
        r = WF + (f & 3) * 4
        for t in range(2):
            p(f"ds_read_b64_tr_b16 v[{r+2*t}:{r+2*t+1}], v{vRd2 if slot == 3 else vRd} offset:{slot*8192 + t*1024 + u*256 + e*8}")
            lq.issue(("W", f & 3, t))
    LAW = 3
    for f in range(LAW): wread(0, f)
    st0 = list(lq.q)
    p(".p2align 6")
    p.label("M_P3")
    for st in range(4):
        n = (st + 3) & 3
        L = [wdma(n, i, vW) for i in range(4)] + [oload(n, i) for i in range(4)]
        for f in range(8):
            fn = f + LAW; ns = st
            if fn >= 8: fn -= 8; ns = (st + 1) & 3
            lq.wait(p, ("W", f & 3, 1))
            for i in range(4):
                d = AC3 + (i * 8 + f) * 4; a = WF + (f & 3) * 4; b = OR + st * 16 + i * 4
                p(f"v_mfma_f32_16x16x32_bf16 v[{d}:{d+3}], v[{a}:{a+3}], v[{b}:{b+3}], v[{d}:{d+3}]")
                if i == 0: wread(ns, fn)
                if i == 2: p(L[f])
        if st == 3: p(f"s_add_u32 s{sIT}, s{sIT}, 1\ns_cmp_lt_u32 s{sIT}, 4")
        p("s_waitcnt vmcnt(12)\ns_barrier")
    assert lq.q == st0
    p(f"""
    s_cbranch_scc1 M_P3
    s_waitcnt vmcnt(0) lgkmcnt(0)
    s_mul_i32 s{sT0}, s{sKQ}, 24576
    v_add_u32 v{vT0}, s{sT0}, v{vAo}
    v_add_u32 v{vRd2}, 0x10000, v{vAo}
    s_barrier
    """)
    ST(False)
    p("ST4_0")
    RD = 64
    OWN = 16
    OWN = 96
    def red_write(tag):
        for w in range(3): p(f"s_cmp_eq_u32 s{sKQ}, {w}\ns_cbranch_scc1 M_RW{tag}{w}")
        for w in (3, 0, 1, 2):
            if w != 3: p.label(f"M_RW{tag}{w}")
            for kk in range(1, 4):
                i = (w + kk) & 3; slot = 3 - kk
                base = (i * 3 + slot) * 8192
                for f in range(8):
                    q = i * 8 + f
                    off = base + f * 1024
                    p(f"ds_write_b128 v{vRd2 if off >= 65536 else vAo}, v[{AC3+4*q}:{AC3+4*q+3}] offset:{off & 0xffff}")
            for c in range(32): p(f"v_mov_b32 v{OWN+c}, v{AC3+w*32+c}")
            if w != 2: p(f"s_branch M_RJ{tag}")
        p.label(f"M_RJ{tag}")
    def red_read(after=None):
        for half in range(2):
            T0 = AC3 + half * 48
            for sl in range(3):
                for ff in range(4):
                    r = T0 + (sl * 4 + ff) * 4
                    p(f"ds_read_b128 v[{r}:{r+3}], v{vT0} offset:{sl*8192 + (half*4+ff)*1024}")
            if half == 0: continue
        for half in range(2):
            T0 = AC3 + half * 48
            for sl in range(3):
                n = 24 - (half * 12 + sl * 4 + 4)
                p(f"s_waitcnt lgkmcnt({min(n, 15)})")
                for c in range(16): p(f"v_add_f32 v{OWN+half*16+c}, v{OWN+half*16+c}, v{T0+sl*16+c}")
            if after: after(half)
    p(f"""
    s_cmp_eq_u32 s{sMH}, s{sKH}
    s_cbranch_scc1 M_KEEP1
    """)
    red_write("S")
    p("s_waitcnt lgkmcnt(0)\nST4_1\ns_barrier\nST4_2")
    p(f"""
    s_lshl_b32 s{sT0}, s2, 2
    s_add_u32 s{sT0}, s{sT0}, s{sKQ}
    s_lshl_b32 s{sT1}, s{sT0}, 13
    s_add_u32 s{sT1}, s{sT1}, {WS_EX}
    v_add_u32 v{vFa}, s{sT1}, v{vAo}
    v_add_u32 v{vFv}, 4096, v{vFa}
    s_lshl_b32 s{sT0}, s{sT0}, 7
    s_add_u32 s{sT0}, s{sT0}, {WS_FLG2}
    v_mov_b32 v{vT2}, s{sT0}
    v_mov_b32 v{vT3}, s{sNON}
    """)
    def sst(half):
        for f in range(4 * half, 4 * half + 4):
            p(f"global_store_dwordx4 v{vFv if f >= 4 else vFa}, v[{OWN+4*f}:{OWN+4*f+3}], s[18:19] offset:{(f&3)*1024} sc1")
    red_read(sst)
    p(f"""
    ST4_3
    s_barrier
    ST4_4
    s_waitcnt vmcnt(0)
    ST4_5
    ST4_6
    ST4_7
    s_mov_b64 exec, 1
    global_store_dword v{vT2}, v{vT3}, s[18:19] sc1
    s_mov_b64 exec, -1
    """)
    if stamp:
        p("s_memrealtime s[98:99]")
        stamp_out(p, 0x3000000)
    p("s_branch K2_END")
    p.label("M_KEEP1")
    p(f"""
    s_barrier
    s_xor_b32 s{sT0}, s2, 128
    s_lshl_b32 s{sT0}, s{sT0}, 2
    s_add_u32 s{sT0}, s{sT0}, s{sKQ}
    s_lshl_b32 s{sT1}, s{sT0}, 13
    s_add_u32 s{sT1}, s{sT1}, {WS_EX}
    v_add_u32 v{vFa}, s{sT1}, v{vAo}
    v_add_u32 v{vFv}, 4096, v{vFa}
    s_lshl_b32 s{sT0}, s{sT0}, 7
    s_add_u32 s{sT0}, s{sT0}, {WS_FLG2}
    v_mov_b32 v{vT2}, s{sT0}
    s_barrier
    """)
    p("ST4_1")
    red_write("K")
    p(f"global_load_dword v{vT3}, v{vT2}, s[18:19] sc1")
    p(f"""
    v_mov_b32 v64, {CNT_B}
    v_mov_b32 v65, 1
    s_waitcnt lgkmcnt(0)
    ST4_2
    s_mov_b64 exec, 1
    ds_add_u32 v64, v65
    s_mov_b64 exec, -1
    s_mov_b32 s73, {SPIN_MAX*16}
M_B4:
    ds_read_b32 v66, v64
    s_waitcnt lgkmcnt(0)
    v_readfirstlane_b32 s{sT0}, v66
    s_cmp_ge_u32 s{sT0}, 8
    s_cbranch_scc1 M_B4_OK
    s_sub_u32 s73, s73, 1
    s_cmp_lg_u32 s73, 0
    s_cbranch_scc1 M_B4
M_B4_OK:
    ST4_3
    """)
    PR = 224
    prl = "\n".join(f"global_load_dwordx4 v[{PR+4*f}:{PR+4*f+3}], v{vFv if f >= 4 else vFa}, s[18:19] offset:{(f&3)*1024} sc1" for f in range(8))
    p(f"""
    s_waitcnt vmcnt(0)
    v_cmp_ne_u32 vcc, s{sNON}, v{vT3}
    s_mov_b32 s{sIT}, 0
    s_cbranch_vccnz M_PRL
    s_mov_b32 s{sIT}, 1
    {prl}
M_PRL:
    """)
    red_read()
    p(f"""
    s_lshl_b32 s{sT0}, s{sRT}, 1
    s_add_u32 s{sT0}, s{sT0}, s{sKH}
    s_lshl_b32 s{sT0}, s{sT0}, 2
    s_add_u32 s{sT0}, s{sT0}, s{sKQ}
    s_lshr_b32 s{sT1}, s{sIDX}, 4
    s_cmp_lg_u32 s{sT0}, s{sT1}
    s_cbranch_scc1 M_H5
    s_mov_b32 s73, {SPIN_MAX}
M_POLL3:
    s_lshl_b32 s{sT0}, s{sCT}, 10
    s_add_u32 s{sT0}, s{sT0}, {WS_YP}
    v_add_u32 v26, s{sT0}, v{vAo}
    """)
    YR = 128
    for q in range(16):
        p(f"global_load_dwordx4 v[{YR+4*q}:{YR+4*q+3}], v26, s[18:19] sc1")
        if q < 15: p(f"v_add_u32 v26, 8192, v26")
    p(f"s_waitcnt vmcnt(0)\nv_mov_b32 v27, 0")
    for q in range(16):
        p(f"v_xor_b32 v{YR+4*q+1}, s{sNON}, v{YR+4*q+1}\nv_xor_b32 v{YR+4*q+3}, s{sNON}, v{YR+4*q+3}")
        p(f"v_or3_b32 v27, v27, v{YR+4*q+1}, v{YR+4*q+3}")
    p(f"""
    v_cmp_ne_u32 vcc, 0, v27
    s_cbranch_vccz M_POLL3_OK
    s_sleep 10
    s_sub_u32 s73, s73, 1
    s_cmp_lg_u32 s73, 0
    s_cbranch_scc1 M_POLL3
M_POLL3_OK:
    s_lshr_b32 s{sT0}, s{sIDX}, 4
    s_lshl_b32 s{sT0}, s{sT0}, 15
    s_lshl_b32 s{sT1}, s{sCT}, 12
    s_add_u32 s{sT0}, s{sT0}, s{sT1}
    s_and_b32 s{sT1}, s{sIDX}, 15
    s_lshl_b32 s{sT1}, s{sT1}, 4
    s_add_u32 s{sT0}, s{sT0}, s{sT1}
    v_lshrrev_b32 v26, 2, v1
    v_lshlrev_b32 v26, 8, v26
    v_and_b32 v27, 3, v1
    v_lshl_add_u32 v26, v27, 2, v26
    v_add_u32 v26, s{sT0}, v26
    global_load_dword v24, v26, s[18:19] sc1
    s_and_b32 s{sT0}, s{sKEY}, 0xffff0000
    s_ashr_i32 s{sT1}, s{sT0}, 31
    s_not_b32 s{sT1}, s{sT1}
    s_or_b32 s{sT1}, s{sT1}, 0x80000000
    s_xor_b32 s{sT0}, s{sT0}, s{sT1}
    s_and_b32 s{sT0}, s{sT0}, 0xffff0000
    v_mov_b32 v25, s{sT0}
    v_mul_f32 v25, 0xbfb8aa3b, v25
    v_exp_f32 v25, v25
    v_add_f32 v25, 1.0, v25
    v_rcp_f32 v25, v25
    """)
    rbf(p, 25)
    p(f"v_mov_b32 v16, v{YR}\nv_mov_b32 v17, v{YR+2}")
    for q in range(1, 16):
        p(f"v_add_f32 v16, v16, v{YR+4*q}\nv_add_f32 v17, v17, v{YR+4*q+2}")
    p("s_waitcnt vmcnt(0)\nv_lshlrev_b32 v18, 16, v24\nv_and_b32 v19, 0xffff0000, v24")
    for c in range(2):
        rbf(p, 16 + c)
        p(f"v_mul_f32 v{16+c}, v{16+c}, v25")
        rbf(p, 16 + c)
        p(f"v_add_f32 v{16+c}, v{16+c}, v{18+c}")
        rbf(p, 16 + c)
        silu(p, 16 + c, 16 + c, 20 + c)
    p(f"""
    v_cvt_pk_bf16_f32 v16, v16, v17
    v_lshlrev_b32 v26, 2, v1
    v_add_u32 v26, {L_H3 + 4096}, v26
    ds_write_b32 v26, v16
    v_lshrrev_b32 v27, 4, v1
    v_lshlrev_b32 v27, 4, v27
    v_add_u32 v27, {L_H3 + 4096}, v27
    v_and_b32 v26, 15, v1
    s_and_b32 s{sT0}, s{sIDX}, 15
    v_cmp_eq_u32 vcc, s{sT0}, v26
    s_waitcnt lgkmcnt(0)
    """)
    for u in range(4): p(f"ds_read_b128 v[{64+4*u}:{67+4*u}], v27 offset:{u*64}")
    p("s_waitcnt lgkmcnt(0)")
    for c in range(16): p(f"v_cndmask_b32 v{GP+c}, v{GP+c}, v{64+c}, vcc")
    p.label("M_H5")
    XU = 128; GU_ = 160
    for j in range(16):
        p(f"v_lshlrev_b32 v{XU+2*j}, 16, v{XP+j}\nv_and_b32 v{XU+2*j+1}, 0xffff0000, v{XP+j}")
        p(f"v_lshlrev_b32 v{GU_+2*j}, 16, v{GP+j}\nv_and_b32 v{GU_+2*j+1}, 0xffff0000, v{GP+j}")
    p(f"""
    ST4_4
    s_cmp_lg_u32 s{sIT}, 0
    s_cbranch_scc1 M_POLL4_DONE
    s_mov_b32 s73, {SPIN_MAX}
M_POLL4:
    global_load_dword v{vT3}, v{vT2}, s[18:19] sc1
    s_waitcnt vmcnt(0)
    v_cmp_ne_u32 vcc, s{sNON}, v{vT3}
    s_cbranch_vccz M_POLL4_OK
    s_sleep 1
    s_sub_u32 s73, s73, 1
    s_cmp_lg_u32 s73, 0
    s_cbranch_scc1 M_POLL4
M_POLL4_OK:
    {prl}
M_POLL4_DONE:
    ST4_5
    """)
    for u in range(4):
        p(f"s_waitcnt vmcnt({6 - 2*u + u})")
        for c in range(8): p(f"v_add_f32 v{OWN+8*u+c}, v{OWN+8*u+c}, v{PR+8*u+c}")
        for c in range(8): p(f"v_fmac_f32 v{XU+8*u+c}, v{OWN+8*u+c}, v{GU_+8*u+c}")
        o = 16 + u * 4
        for j in range(4): p(f"v_cvt_pk_bf16_f32 v{o+j}, v{XU+u*8+2*j}, v{XU+u*8+2*j+1}")
        p(f"global_store_dwordx4 v{vOut}, v[{o}:{o+3}], s[78:79] offset:{u*64}")
    if DBGT[0]:
        p(f"""
    s_waitcnt vmcnt(0)
    s_memrealtime s[98:99]
    s_waitcnt lgkmcnt(0)
    v_mov_b32 v16, 4
    v_mov_b32 v17, s98
    s_mov_b64 exec, 1
    global_atomic_umax v16, v17, s[66:67] sc1
    s_mov_b64 exec, -1
    """)
    if stamp:
        p("ST4_6\ns_waitcnt vmcnt(0)\nST4_7\ns_memrealtime s[98:99]")
        stamp_out(p, 0x3000000)

def stamp_out(p, base):
    p(f"""
    s_waitcnt lgkmcnt(0)
    s_lshl_b32 s{sT0}, s2, 3
    s_add_u32 s{sT0}, s{sT0}, s{sW}
    s_lshl_b32 s{sT0}, s{sT0}, 6
    s_add_u32 s{sT0}, s{sT0}, {base}
    v_mov_b32 v{vT0}, s{sT0}
    """)
    for i in range(10):
        p(f"v_mov_b32 v{vT1}, s{80+2*i}\nglobal_store_dword v{vT0}, v{vT1}, s[18:19] offset:{4*i}")

def gen_mega(ffn=True, slow=True, stamp=False, dbg=()):
    p = Prog()
    stamps = []
    mode0 = 'st0' in dbg or 'st1' in dbg
    MODE0[0] = mode0
    DBGT[0] = 'dbgt' in dbg
    NOEW[0] = 'noew' in dbg
    MODE3[0] = 'st3' in dbg
    def ST0():
        if stamp and mode0 and 'st1' not in dbg:
            i = len(stamps); stamps.append(i)
            p(f"s_memtime s[{80+2*i}:{81+2*i}]")
    global _ST0
    _ST0 = ST0
    def ST(wait=True):
        if stamp and mode0 and len(stamps) > 0:
            if wait: p("s_waitcnt lgkmcnt(0)")
            return
        if stamp:
            i = len(stamps); stamps.append(i)
            if not (MODE3[0] and i == 6): p(f"s_memtime s[{80+2*i}:{81+2*i}]")
            if i == 0: p("s_memrealtime s[96:97]")
            if wait: p("s_waitcnt lgkmcnt(0)")
    name = KNAME
    kernel_header(p, name)
    p(f"""
    s_cmp_ge_u32 s2, 256
    s_cbranch_scc1 K2_END
    s_load_dwordx2 s[74:75], s[0:1], 0
    s_load_dwordx2 s[76:77], s[0:1], 48
    s_load_dwordx4 s[8:11], s[0:1], 24
    s_load_dwordx2 s[18:19], s[0:1], 96
    s_load_dwordx4 s[4:7], s[0:1], 8
    s_load_dwordx4 s[12:15], s[0:1], 56
    s_load_dwordx2 s[16:17], s[0:1], 72
    s_load_dwordx2 s[78:79], s[0:1], 80
    s_load_dwordx2 s[66:67], s[0:1], 88
    s_getpc_b64 s[{sPC}:{sPC+1}]
    v_lshrrev_b32 v{vT2}, 6, v0
    v_and_b32 v1, 63, v0
    v_readfirstlane_b32 s{sW}, v{vT2}
    s_and_b32 s{sT0}, s2, 7
    s_lshr_b32 s{sT1}, s2, 3
    s_lshr_b32 s{sG}, s{sT0}, 1
    s_and_b32 s{sT0}, s{sT0}, 1
    s_lshl_b32 s{sT0}, s{sT0}, 2
    s_lshr_b32 s{sT2}, s{sT1}, 3
    s_add_u32 s{sRB}, s{sT0}, s{sT2}
    s_and_b32 s{sT1}, s{sT1}, 7
    s_lshl_b32 s{sHEAD}, s{sG}, 3
    s_add_u32 s{sHEAD}, s{sHEAD}, s{sT1}
    s_lshl_b32 s{sFL}, s{sRB}, 5
    s_add_u32 s{sFL}, s{sFL}, s{sHEAD}
    """)
    ST(False)
    p(f"""
    v_lshlrev_b32 v{E+1}, 7, v0
    v_min_u32 v{E+1}, CODESIZE, v{E+1}
    global_load_dword v{E}, v{E+1}, s[{sPC}:{sPC+1}]
    v_lshrrev_b32 v{vT0}, 4, v1
    v_and_b32 v{vT1}, 3, v1
    v_lshlrev_b32 v{vT1}, 4, v{vT1}
    v_lshl_add_u32 v{vT1}, v{vT0}, 6, v{vT1}
    v_bfe_u32 v{vT3}, v1, 2, 2
    v_lshl_add_u32 v{vDq}, v{vT3}, 13, v{vT1}
    v_and_b32 v{vDq2}, 1, v{vT2}
    v_lshlrev_b32 v{vDq2}, 5, v{vDq2}
    v_xor_b32 v{vDq}, v{vDq}, v{vDq2}
    v_add_u32 v{vDq2}, {32768-1024}, v{vDq}
    v_lshrrev_b32 v{vXB1}, 3, v1
    v_and_b32 v{vXD}, 7, v1
    v_xor_b32 v{vXD}, v{vXD}, v{vT0}
    v_lshlrev_b32 v{vXD}, 4, v{vXD}
    v_lshl_add_u32 v{vXD}, v{vXB1}, 11, v{vXD}
    v_xor_b32 v{vXD+1}, 64, v{vXD}
    v_add_u32 v{vXD+1}, {16384-1024}, v{vXD+1}
    v_add_u32 v{vXD+2}, {32768-2048}, v{vXD}
    v_add_u32 v{vXD+3}, {32768-2048}, v{vXD+1}
    s_lshl_b32 s{sXM}, s{sW}, 12
    s_add_u32 s{sXM}, s{sXM}, {L_X}
    s_lshl_b32 s{sWq}, s{sW}, 16
    s_lshl_b32 s{sM}, s{sW}, 11
    s_mov_b32 s{sB}, 0
    s_lshl_b32 s{sT0}, s{sHEAD}, 8
    s_lshl_b32 s{sT1}, s{sRB}, 3
    s_add_u32 s{sT1}, s{sT1}, s{sW}
    s_lshl_b32 s{sT1}, s{sT1}, 16
    s_mov_b32 s{SRD_WQ+3}, 0x20000
    s_sub_u32 s{SRD_WQ+2}, 0x800000, s{sT0}
    s_mov_b32 s{SRD_XN+2}, 0x10000
    s_mov_b32 s{SRD_XN+3}, 0x20000
    v_lshlrev_b32 v{E+2}, 4, v1
    v_lshl_add_u32 v{vLXA}, v{vT2}, 11, v{E+2}
    s_lshl_b32 s{sT2}, s{sFL}, 14
    v_add_u32 v{vLXA}, s{sT2}, v{vLXA}
    s_memrealtime s[{sT2}:{sT3}]
    s_waitcnt lgkmcnt(0)
    s_add_u32 s{SRD_WQ}, s8, s{sT0}
    s_addc_u32 s{SRD_WQ+1}, s9, 0
    s_add_u32 s{SRD_XN}, s74, s{sT1}
    s_addc_u32 s{SRD_XN+1}, s75, 0
    """)
    def dma_wq(slot, e):
        if e == 0:
            return f"""s_add_u32 m0, s{sM}, {slot*16384}
    s_nop 0
    buffer_load_dwordx4 v{vDq}, s[{SRD_WQ}:{SRD_WQ+3}], s{sWq} offen lds"""
        return f"""s_add_u32 m0, s{sM}, {slot*16384}
    s_nop 0
    buffer_load_dwordx4 v{vDq2}, s[{SRD_WQ}:{SRD_WQ+3}], s{sWq} offen offset:1024 lds
    s_add_u32 s{sWq}, s{sWq}, 524288"""
    def load_b(buf, k):
        t = ""
        if k == 0: t = f"s_add_u32 m0, s{sXM}, {(buf & 1)*32768}\ns_nop 0\n"
        t += f"buffer_load_dwordx4 v{vXD+k}, s[{SRD_XN}:{SRD_XN+3}], s{sB} offen offset:{k*1024} lds"
        if k == 3: t += f"\ns_add_u32 s{sB}, s{sB}, 128"
        return t
    lq = Q("lgkmcnt", 15); vq = Q("vmcnt", 63)
    vq.issue(("CP", 0))
    def J(tag, code): p(code); vq.issue(tag)
    LXj = lambda n: (("LX", n), f"global_load_dwordx4 v[{LN_X+4*n}:{LN_X+4*n+3}], v{vLXA}, s[74:75] offset:{n*1024}")
    CSj = lambda n: (("CS", n), f"s_mov_b32 s{sT3}, {n*0x200000}\nbuffer_load_dwordx4 v[{CSR+4*n}:{CSR+4*n+3}], v{vCSA}, s[{SRD_WQ}:{SRD_WQ+3}], s{sT3} offen")
    WRj = lambda n: (("LX", 2 + n), f"global_load_dwordx4 v[{LN_W+4*n}:{LN_W+4*n+3}], v{E+2}, s[76:77] offset:{n*1024}")
    J(*LXj(0)); J(*LXj(1)); J(*WRj(0)); J(*WRj(1))
    J(("W", 0, 0), dma_wq(0, 0)); J(("W", 0, 1), dma_wq(0, 1))
    for kk in range(4): J(("X", 0, kk), load_b(0, kk))
    J(("W", 1, 0), dma_wq(1, 0)); J(("W", 1, 1), dma_wq(1, 1))
    ST0()
    p(f"s_mov_b32 s{sKEY}, s{sT2}\ns_mov_b32 s{sIDX}, s{sT0}")
    partA1, partA2, partB = ln_segments(lq, vq, p)
    for it_ in partA1 + partB:
        if callable(it_): it_()
        else: p(it_)
    p(f"s_mov_b32 s{sT2}, s{sKEY}\ns_mov_b32 s{sT0}, s{sIDX}")
    ST0()
    for kk in range(4): J(("X", 1, kk), load_b(1, kk))
    J(("W", 2, 0), dma_wq(2, 0)); J(("W", 2, 1), dma_wq(2, 1))
    p(f"""
    s_or_b32 s{sT3}, s2, s{sW}
    s_cmp_lg_u32 s{sT3}, 0
    s_cbranch_scc1 M_NONZ
    s_or_b32 s{sT2}, s{sT2}, 1
    v_mov_b32 v{E+2}, 0
    v_mov_b32 v{E+3}, s{sT2}
    s_mov_b64 exec, 1
    global_store_dword v{E+2}, v{E+3}, s[66:67] sc1
    s_mov_b64 exec, -1
M_NONZ:
    v_bfe_u32 v{E+1}, v0, 4, 3
    v_lshlrev_b32 v{E+1}, 13, v{E+1}
    v_lshrrev_b32 v{vNON}, 7, v0
    v_lshl_add_u32 v{E+1}, v{vNON}, 19, v{E+1}
    v_and_b32 v{vNON}, 15, v0
    v_lshl_add_u32 v{E+1}, v{vNON}, 4, v{E+1}
    s_lshl_b32 s{sT2}, s{sRB}, 16
    v_add_u32 v{vCSA}, s{sT2}, v{E+1}
    """)
    J(*CSj(1))
    ST0()
    p(f"""
    v_bfe_u32 v{vXB1}, v1, 1, 3
    v_xor_b32 v{vXB1}, v{vXB1}, v{vT0}
    v_lshlrev_b32 v{vXB1}, 4, v{vXB1}
    v_and_b32 v{vXB0}, 15, v1
    v_lshl_add_u32 v{vXB0}, v{vXB0}, 7, v{vXB1}
    v_add_u32 v{vXB0}, s{sXM}, v{vXB0}
    v_xor_b32 v{vXB1}, 64, v{vXB0}
    v_lshl_add_u32 v{vDv}, v{vT3}, 8, v{vT1}
    v_mul_u32_u24 v{vDf}, {8*7168}, v{vT0}
    v_and_b32 v{vT1}, 15, v1
    v_lshl_add_u32 v{vDf}, v{vT1}, 4, v{vDf}
    v_and_b32 v{vT0}, 3, v1
    v_lshrrev_b32 v{vT1}, 2, v1
    v_lshlrev_b32 v{vT1}, 4, v{vT1}
    v_lshl_add_u32 v{vDk}, v{vT0}, 8, v{vT1}
    v_lshrrev_b32 v{vT1}, 4, v1
    v_lshlrev_b32 v{vA0}, 11, v{vT1}
    v_lshl_add_u32 v{vA0}, v{vT3}, 6, v{vA0}
    v_lshl_add_u32 v{vA0}, v{vT0}, 3, v{vA0}
    v_and_b32 v{vT1}, 1, v{vT1}
    v_lshl_add_u32 v{vA0}, v{vT1}, 5, v{vA0}
    v_xor_b32 v{vA1}, 32, v{vA0}
    v_bfe_u32 v{vT0}, v1, 1, 1
    v_and_b32 v{vT2}, 1, v1
    v_lshl_add_u32 v{vT0}, v{vT2}, 1, v{vT0}
    v_lshl_add_u32 v{vT0}, v{vT1}, 2, v{vT0}
    v_lshlrev_b32 v{vT0}, 3, v{vT0}
    v_lshl_add_u32 v{vT0}, v{vT3}, 6, v{vT0}
    v_lshrrev_b32 v{vT1}, 5, v1
    v_lshl_add_u32 v{vVa}, v{vT1}, 10, v{vT0}
    v_add_u32 v{vVb}, {L_X}, v{vVa}
    v_bfe_u32 v{vT0}, v1, 2, 3
    v_mul_u32_u24 v{vT0}, 1088, v{vT0}
    v_lshl_add_u32 v{vT0}, v{vT1}, 6, v{vT0}
    v_and_b32 v{vKb}, 3, v1
    v_lshl_add_u32 v{vKb}, v{vKb}, 4, v{vT0}
    v_add_u32 v{vKh}, {L_HI}, v{vKb}
    v_add_u32 v{vKb}, {L_X}, v{vKb}
    v_bfe_u32 v{vT0}, v1, 4, 1
    v_lshlrev_b32 v{vT0}, 10, v{vT0}
    v_lshl_add_u32 v{vT0}, v{vT1}, 8, v{vT0}
    v_and_b32 v{vO}, 15, v1
    v_lshl_add_u32 v{vO}, v{vO}, 4, v{vT0}
    s_lshl_b32 s{sT0}, s{sG}, 19
    s_add_u32 s{sT0}, s{sT0}, 393216
    s_add_u32 s{SRD_K}, s4, s{sT0}
    s_addc_u32 s{SRD_K+1}, s5, 0
    s_mov_b32 s{SRD_K+2}, 0x20000
    s_mov_b32 s{SRD_K+3}, 0x20000
    s_add_u32 s{SRD_V}, s6, s{sT0}
    s_addc_u32 s{SRD_V+1}, s7, 0
    s_mov_b32 s{SRD_V+2}, 0x20000
    s_mov_b32 s{SRD_V+3}, 0x20000
    s_add_u32 s{SRD_OT}, s18, {WS_OT}
    s_addc_u32 s{SRD_OT+1}, s19, 0
    s_mov_b32 s{SRD_OT+2}, 0x1000000
    s_mov_b32 s{SRD_OT+3}, 0x20000
    s_mul_i32 s{sKw}, s{sW}, 1088
    s_lshl_b32 s{sVw}, s{sW}, 10
    s_mov_b32 s{sKsrc}, s{sVw}
    s_mov_b32 s{sVsrc}, s{sVw}
    s_mov_b32 s{sN}, 0
    s_mov_b32 s{sPL}, 0x05040100
    s_mov_b32 s{sPH}, 0x07060302
    s_lshr_b32 s{sT0}, s2, 2
    s_and_b32 s{sT1}, s2, 3
    s_cmp_ge_u32 s{sT0}, 28
    s_cselect_b32 s{SRD_F}, s14, s12
    s_cselect_b32 s{SRD_F+1}, s15, s13
    s_cselect_b32 s{sT2}, 28, 0
    s_sub_u32 s{sT2}, s{sT0}, s{sT2}
    s_lshl_b32 s{sT2}, s{sT2}, 8
    s_mul_i32 s{sT3}, s{sT1}, {256*7168}
    s_add_u32 s{sT2}, s{sT2}, s{sT3}
    s_add_u32 s{SRD_F}, s{SRD_F}, s{sT2}
    s_addc_u32 s{SRD_F+1}, s{SRD_F+1}, 0
    s_cmp_lt_u32 s2, 224
    s_cselect_b32 s{SRD_F+2}, {255*7168+256}, 0
    s_mov_b32 s{SRD_F+3}, 0x20000
    s_mul_i32 s{sFsrc}, s{sW}, {32*7168}
    s_lshl_b32 s{sOT}, s{sHEAD}, 19
    s_lshl_b32 s{sT1}, s{sRB}, 14
    s_add_u32 s{sOT}, s{sOT}, s{sT1}
    s_lshl_b32 s{sT1}, s{sW}, 11
    s_add_u32 s{sOT}, s{sOT}, s{sT1}
    """)
    ST0()
    vq.wait(p, ("W", 1, 1)); lq.wait(p, ("LW", 2))
    ST0()
    p("s_barrier")
    ST0()
    if 'st1' in dbg: p("s_memtime s[80:81]")
    ST()
    def a_read(slot, T, u, t):
        r = AF + (T & 3) * 8 + u * 4 + t * 2
        p(f"ds_read_b64_tr_b16 v[{r}:{r+1}], v{vA1 if T & 1 else vA0} offset:{slot*16384 + u*8192 + t*1024 + (T>>1)*256}")
        lq.issue(("A", T & 3, u, t))
    def job_k(t):
        return (("K", t), f"""s_add_u32 m0, s{sKw}, {Kabs(t)}
    s_nop 0
    buffer_load_dwordx4 v{vDk}, s[{SRD_K}:{SRD_K+3}], s{sKsrc} offen lds
    s_add_u32 s{sKsrc}, s{sKsrc}, 8192""")
    def job_v(t):
        return (("V", t), f"""s_add_u32 m0, s{sVw}, {Vabs(t)}
    s_nop 0
    buffer_load_dwordx4 v{vDv}, s[{SRD_V}:{SRD_V+3}], s{sVsrc} offen lds
    s_add_u32 s{sVsrc}, s{sVsrc}, 8192""")
    def job_f(i):
        return (("F", i), f"""buffer_load_dwordx4 v[{FR+4*i}:{FR+4*i+3}], v{vDf}, s[{SRD_F}:{SRD_F+3}], s{sFsrc} offen
    s_add_u32 s{sFsrc}, s{sFsrc}, 7168""")
    def run(job):
        if not job: return
        if isinstance(job, str): p(job); return
        if callable(job): job(); return
        tag, code = job
        p(code); vq.issue(tag)
    def k_read(t, j):
        if 'nok' in dbg: return
        r = KF + (j % D) * 4
        ka = Kabs(t); kb, ko = (vKh, ka - L_HI) if ka >= L_HI else (vKb, ka - L_X)
        p(f"ds_read_b128 v[{r}:{r+3}], v{kb} offset:{ko + j*128}")
        lq.issue(("K", j % D))
    def v_read(t, i):
        if 'nov' in dbg: return
        ks, dt = i >> 2, i & 3
        r = VF + (i % D) * 4
        o = Vabs(t); va = vVa
        if o >= L_X: o -= L_X; va = vVb
        p(f"ds_read_b64_tr_b16 v[{r}:{r+1}], v{va} offset:{o + ks*4096 + dt*256}")
        lq.issue(("Va", i % D))
        p(f"ds_read_b64_tr_b16 v[{r+2}:{r+3}], v{va} offset:{o + ks*4096 + 2048 + dt*256}")
        lq.issue(("V", i % D))
    LA = 2
    def b_read(buf, k):
        ct, u = k >> 1, k & 1
        r = BRr(buf, k)
        p(f"ds_read_b128 v[{r}:{r+3}], v{vXB1 if u else vXB0} offset:{(buf & 1)*32768 + ct*2048}")
        lq.issue(("B", buf & 1, k))
    for T in range(LA):
        for u in range(2):
            for t in range(2): a_read(0, T, u, t)
        b_read(0, 2 * T); b_read(0, 2 * T + 1)
    fill = []
    FILLRATE = 1
    CSSTART = 4
    for d_ in dbg:
        if d_.startswith('fr'): FILLRATE = float(d_[2:])
    fillacc = [0.0]
    barpassed = [0]
    def stage(slot, vm, last=False, xw="s_waitcnt vmcnt(8)", first=False, vm2=()):
        for T in range(8):
            a = AF + (T & 3) * 8
            Tn = T + LA; ns = slot
            if Tn >= 8: Tn -= 8; ns = (slot + 1) & 3
            rd = not (last and T + LA >= 8)
            k = 0
            for ct in range(2):
                for u in range(2):
                    d = QA + (T * 2 + ct) * 4; b = BRr(slot, ct * 2 + u)
                    lq.wait(p, ("A", T & 3, u, 1), ("B", slot & 1, ct * 2 + u))
                    cc = "0" if (first and u == 0) else f"v[{d}:{d+3}]"
                    p(f"v_mfma_f32_16x16x32_bf16 v[{d}:{d+3}], v[{a+4*u}:{a+4*u+3}], v[{b}:{b+3}], {cc}")
                    if rd: a_read(ns, Tn, k >> 1, k & 1)
                    fillacc[0] += FILLRATE
                    while fillacc[0] >= 1.0:
                        fillacc[0] -= 1.0
                        if fill and fill[0] == "BAR":
                            if barpassed[0] >= 1: fill.pop(0)
                        if fill and fill[0] != "BAR": run(fill.pop(0))
                    if k == 1 and T < len(vm2): run(vm2[T])
                    k += 1
            if T < len(vm): run(vm[T])
            if not last:
                if T == 6:
                    run(xw); b_read(slot + 1, 0); b_read(slot + 1, 1)
                if T == 7:
                    b_read(slot + 1, 2); b_read(slot + 1, 3)
    def std_vm(slot):
        n = (slot + 3) & 3
        return [load_b(slot, 0), load_b(slot, 1), load_b(slot, 2), load_b(slot, 3), dma_wq(n, 0), dma_wq(n, 1)]
    xwait = lambda tag: (lambda: vq.wait(p, tag))
    def tagged(i):
        sv = std_vm(i & 3)
        return [(("X", i + 2, kk), sv[kk]) for kk in range(4)] + [(("W", i + 3, 0), sv[4]), (("W", i + 3, 1), sv[5])]
    kvpf = (("KP", 0), f"""s_lshr_b32 s{sT2}, s{sFL}, 6
    s_lshl_b32 s{sT2}, s{sT2}, 19
    s_and_b32 s{sT3}, s{sFL}, 63
    s_lshl_b32 s{sT3}, s{sT3}, 11
    s_add_u32 s{sT2}, s{sT2}, s{sT3}
    s_add_u32 s{sT2}, s{sT2}, 393216
    v_lshlrev_b32 v{E+3}, 2, v0
    v_add_u32 v{E+3}, s{sT2}, v{E+3}
    global_load_dword v{E}, v{E+3}, s[4:5]""")
    kvpf2 = (("KP", 1), f"global_load_dword v{E}, v{E+3}, s[6:7]")
    nonld = (("NN", 0), f"v_mov_b32 v{E+2}, 0\nglobal_load_dword v{vNON}, v{E+2}, s[66:67] sc1")
    def nonchk():
        vq.wait(p, ("NN", 0))
        p(f"""
    v_readfirstlane_b32 s{sNON}, v{vNON}
    s_cmp_lg_u32 s{sNON}, 0
    s_cbranch_scc1 M_NSPIN_OK
    v_mov_b32 v{E+2}, 0
    """)
        get_nonce(p, "M_NSPIN", E + 2, vNON)
    seg1, seg2 = pub_segments(lq, vq, p)
    extra1 = {0: [CSj(0)], 1: [CSj(2), kvpf], 2: [CSj(3), kvpf2], 3: [nonld], 5: [nonchk]}
    state = "X"
    for i in range(12):
        ex = list(extra1.get(i, []))
        if i == 1: fill.extend(seg2)
        if i == CSSTART: assert not fill; fill.extend(partA2); state = "A"
        stage(i & 3, tagged(i) + ex, xw=xwait(("X", i + 1, 3)), first=(i == 0))
        vq.wait(p, ("W", i + 2, 1))
        if state == "A" and not fill:
            lq.wait(p, ("LW", 5)); state = "B"; fill.extend(seg1); print("colsum done at stage", i)
        elif state == "B" and not fill:
            state = "done"; print("pub done at stage", i)
        p("s_barrier")
        if 'st1' in dbg and i in (2, 4, 7, 9, 11):
            n_ = (2, 4, 7, 9, 11).index(i) + 1
            p(f"s_memtime s[{80+2*n_}:{81+2*n_}]\ns_waitcnt lgkmcnt(0)")
    assert state == "done" and not fill, (state, len(fill))
    sv = std_vm(0)
    stcode = f"""s_lshl_b32 s{sT0}, s{sRB}, 3
    s_add_u32 s{sT0}, s{sT0}, s{sW}
    s_lshl_b32 s{sT0}, s{sT0}, 8
    s_add_u32 s{sT0}, s{sT0}, {WS_ST}
    v_and_b32 v{vT0}, 15, v1
    v_lshlrev_b32 v{vT0}, 3, v{vT0}
    v_add_u32 v{vT0}, s{sT0}, v{vT0}
    global_load_dwordx2 v[250:251], v{vT0}, s[18:19] sc1
    global_load_dwordx2 v[252:253], v{vT0}, s[18:19] offset:128 sc1
    s_lshl_b32 s{sT0}, s{sHEAD}, 13
    s_lshl_b32 s{sT1}, s{sW}, 7
    s_add_u32 s{sT0}, s{sT0}, s{sT1}
    s_add_u32 s{sT0}, s{sT0}, {WS_CS}
    v_lshrrev_b32 v{vT1}, 3, v1
    v_lshlrev_b32 v{vT1}, 10, v{vT1}
    v_and_b32 v{vT2}, 7, v1
    v_lshl_add_u32 v{vT1}, v{vT2}, 4, v{vT1}
    v_add_u32 v{vT1}, s{sT0}, v{vT1}
    global_load_dwordx4 v[{E}:{E+3}], v{vT1}, s[18:19] sc1"""
    stchk = f"""v_xor_b32 v{vT0}, s{sNON}, v251
    v_xor_b32 v{vT1}, s{sNON}, v253
    v_xor_b32 v{vT2}, s{sNON}, v{E+1}
    v_xor_b32 v{vT3}, s{sNON}, v{E+3}
    v_or3_b32 v{vT0}, v{vT0}, v{vT1}, v{vT2}
    v_or_b32 v{vT0}, v{vT0}, v{vT3}
    v_cmp_ne_u32 vcc, 0, v{vT0}"""
    def stld():
        p(stcode); vq.issue(("ST", 0)); vq.issue(("ST", 1)); vq.issue(("ST", 2))
    def stuse():
        vq.wait(p, ("ST", 2))
        p(stchk)
        p(f"s_mov_b32 s73, {SPIN_MAX}\ns_cbranch_vccnz M_SSPIN")
        p.label("M_SSPIN_RET")
        for c in (E, E + 2): p(f"v_add_f32_dpp v{c}, v{c}, v{c} row_ror:8 row_mask:0xf bank_mask:0xf")
        for sw in ("v_permlane16_swap_b32", "v_permlane32_swap_b32"):
            p(f"v_mov_b32 v{E+1}, v{E}\nv_mov_b32 v{E+3}, v{E+2}")
            p(f"{sw} v{E}, v{E+1}\n{sw} v{E+2}, v{E+3}")
            p(f"v_add_f32 v{E}, v{E}, v{E+1}\nv_add_f32 v{E+2}, v{E+2}, v{E+3}")
        p(f"""
    v_mov_b32 v{E+1}, v{E+2}
    v_and_b32 v{vT0}, 7, v1
    v_lshlrev_b32 v{vT0}, 3, v{vT0}
    s_lshl_b32 s{sT0}, s{sW}, 6
    s_add_u32 s{sT0}, s{sT0}, {L_FP}
    v_add_u32 v{vT0}, s{sT0}, v{vT0}
    ds_write_b64 v{vT0}, v[{E}:{E+1}]
    v_and_b32 v251, 0xffff0000, v250
    v_and_b32 v253, 0xffff0000, v252
    v_rcp_f32 v251, v251
    v_rcp_f32 v253, v253
    v_lshlrev_b32 v250, 16, v250
    v_lshlrev_b32 v252, 16, v252
    v_mul_f32 v251, {fbits(QSCALE)}, v251
    v_mul_f32 v253, {fbits(QSCALE)}, v253
    """)
        lq.issue(("CSW", 0))
    stage(0, tagged(12) + [stld, job_k(0)], xw=xwait(("X", 13, 3)))
    vq.wait(p, ("W", 14, 1)); p("s_barrier")
    stage(1, tagged(13)[:4] + [job_k(1), job_k(2)], xw=xwait(("X", 14, 3)))
    vq.wait(p, ("W", 15, 1)); lq.wait(p, ("B", 0, 3)); p("s_barrier")
    if 'st1' in dbg: p("s_memtime s[92:93]\ns_waitcnt lgkmcnt(0)")
    stage(2, [job_k(3), job_v(0), job_v(1), None, stuse], xw=xwait(("X", 15, 3)))
    vq.wait(p, ("K", 1)); lq.wait(p, ("CSW", 0), ("B", 1, 3)); p("s_barrier")
    stage(3, [job_k(4), job_k(5), job_v(2), job_k(6)], last=True)
    if 'st1' in dbg: p("s_memtime s[94:95]\ns_waitcnt lgkmcnt(0)")
    ST()
    if stamp: lq.q = []
    CSV = 212
    p(f"""
    v_lshrrev_b32 v{vT0}, 4, v1
    v_lshlrev_b32 v{vT0}, 4, v{vT0}
    v_add_u32 v{vT0}, {L_FP}, v{vT0}
    """)
    for T in range(8):
        p(f"ds_read_b128 v[{CSV+4*T}:{CSV+4*T+3}], v{vT0} offset:{T*64}"); lq.issue(("CS", T))
    for j in range(D): k_read(0, j)
    for T in range(8):
        lq.wait(p, ("CS", T))
        for ct in range(2):
            a = QA + (T * 2 + ct) * 4
            for r in range(4): p(f"v_fma_f32 v{a+r}, -v{250+2*ct}, v{CSV+4*T+r}, v{a+r}")
            for r in range(4): p(f"v_mul_f32 v{a+r}, v{251+2*ct}, v{a+r}")
        for ct in range(2):
            a = QA + (T * 2 + ct) * 4
            for k in range(2): p(f"v_cvt_pk_bf16_f32 v{QP + 4*T + 2*ct + k}, v{a+2*k}, v{a+2*k+1}")
        if T > 0:
            for k in range(2): p(f"v_permlane16_swap_b32 v{QP + 4*(T-1) + k}, v{QP + 4*(T-1) + 2 + k}")
    for k in range(2): p(f"v_permlane16_swap_b32 v{QP + 28 + k}, v{QP + 30 + k}")
    def qk(j, sbuf, cinit):
        lq.wait(p, ("K", j % D))
        k = KF + (j % D) * 4; q = QP + 4 * j; d = S + 16 * sbuf
        c = cinit if j == 0 else f"v[{d}:{d+15}]"
        p(f"v_mfma_f32_32x32x16_bf16 v[{d}:{d+15}], v[{k}:{k+3}], v[{q}:{q+3}], {c}")
    def pv(i, pbuf, first=False):
        lq.wait(p, ("V", i % D))
        ks, dt = i >> 2, i & 3
        v = VF + (i % D) * 4; b = P + 8 * pbuf + 4 * ks; d = ACC + 16 * dt
        cc = "0" if (first and ks == 0) else f"v[{d}:{d+15}]"
        p(f"v_mfma_f32_32x32x16_bf16 v[{d}:{d+15}], v[{v}:{v+3}], v[{b}:{b+3}], {cc}")
    for j in range(8):
        qk(j, 0, "0")
        k_read(0 if j + D < 8 else 1, (j + D) % 8)
    vq.wait(p, ("K", 3), ("V", 1)); p("s_barrier")
    p(f"""
    s_cmp_lg_u32 s{sW}, 4
    s_cbranch_scc1 M_NOKEY
    s_lshl_b32 s{sT0}, s{sFL}, 3
    s_add_u32 s{sT0}, s{sT0}, {WS_KEYS}
    v_mov_b32 v{vT0}, s{sT0}
    v_mov_b32 v{FD}, s{sKEY}
    v_mov_b32 v{FD+1}, s{sNON}
    s_mov_b64 exec, 1
    global_store_dwordx2 v{vT0}, v[{FD}:{FD+1}], s[18:19] sc1
    s_mov_b64 exec, -1
M_NOKEY:
    """)
    ST()
    if stamp: lq.q = []
    s0 = S
    p(f"""
    v_max3_f32 v{vT0}, v{s0}, v{s0+1}, v{s0+2}
    v_max3_f32 v{vT1}, v{s0+3}, v{s0+4}, v{s0+5}
    v_max3_f32 v{vT0}, v{vT0}, v{s0+6}, v{s0+7}
    v_max3_f32 v{vT1}, v{vT1}, v{s0+8}, v{s0+9}
    v_max3_f32 v{vT0}, v{vT0}, v{s0+10}, v{s0+11}
    v_max3_f32 v{vT1}, v{vT1}, v{s0+12}, v{s0+13}
    v_max3_f32 v{vT0}, v{vT0}, v{s0+14}, v{s0+15}
    v_max_f32 v{vT0}, v{vT0}, v{vT1}
    v_mov_b32 v{vT1}, v{vT0}
    v_permlane32_swap_b32 v{vT0}, v{vT1}
    v_max_f32 v{vT0}, v{vT0}, v{vT1}
    """)
    for i in range(16): p(f"v_sub_f32 v{NEGM+i}, 0, v{vT0}")
    for i in range(16): p(f"v_sub_f32 v{s0+i}, v{s0+i}, v{vT0}")
    p(f"v_mov_b32 v{vT2}, {L_HI + 2*KSL + 6*1088 + 1024}\nv_mov_b32 v{vT3}, 0")
    p(f"ds_write_b32 v{vT2}, v{vT3}"); lq.issue(("Z", 0))
    p(f"ds_write_b32 v{vT2}, v{vT3} offset:1088"); lq.issue(("Z", 1))
    cold = 'nof' not in dbg
    SRD_P = 68; sPo = 72
    def pf(n):
        if not cold or 'nopf' in dbg: return None
        pre = ""
        if n == 0:
            pre = f"""s_lshl_b32 s{sT0}, s2, 15
    s_add_u32 s{SRD_P}, s10, s{sT0}
    s_addc_u32 s{SRD_P+1}, s11, 0
    s_mov_b32 s{SRD_P+2}, 0x8000
    s_mov_b32 s{SRD_P+3}, 0x20000
    s_mov_b32 s{sPo}, 0
    """
        elif n == 4:
            pre = f"""s_mul_i32 s{sT0}, s2, 28672
    s_add_u32 s{SRD_P}, s16, s{sT0}
    s_addc_u32 s{SRD_P+1}, s17, 0
    s_mov_b32 s{SRD_P+2}, 28672
    s_mov_b32 s{sPo}, 0
    """
        return (("PF", n), pre + f"""s_add_u32 m0, s{sVw}, {VADDR[5]}
    v_lshlrev_b32 v{vT3}, 4, v0
    buffer_load_dwordx4 v{vT3}, s[{SRD_P}:{SRD_P+3}], s{sPo} offen lds
    s_add_u32 s{sPo}, s{sPo}, 8192""")
    flagld = None
    keycode = f"""v_lshlrev_b32 v{vT2}, 5, v1
    v_add_u32 v{vT2}, {WS_KEYS}, v{vT2}
    global_load_dwordx4 v[{FT}:{FT+3}], v{vT2}, s[18:19] sc1
    global_load_dwordx4 v[{FT+4}:{FT+7}], v{vT2}, s[18:19] offset:16 sc1"""
    keychk = f"""v_xor_b32 v{FT+1}, s{sNON}, v{FT+1}
    v_xor_b32 v{FT+3}, s{sNON}, v{FT+3}
    v_xor_b32 v{FT+5}, s{sNON}, v{FT+5}
    v_xor_b32 v{FT+7}, s{sNON}, v{FT+7}
    v_or3_b32 v{FT+1}, v{FT+1}, v{FT+3}, v{FT+5}
    v_or_b32 v{FT+1}, v{FT+1}, v{FT+7}
    v_cmp_ne_u32 vcc, 0, v{FT+1}"""
    def keyld():
        p(keycode); vq.issue(("KY", 0)); vq.issue(("KY", 1))
    def xsel():
        vq.wait(p, ("KY", 1))
        p(keychk)
        p(f"s_mov_b32 s73, {SPIN_MAX}\ns_cbranch_vccnz M_KSPIN")
        p.label("M_KSPIN_RET")
        p(f"v_max3_u32 v{FT}, v{FT}, v{FT+2}, v{FT+4}\nv_max_u32 v{FT}, v{FT}, v{FT+6}")
        wave_max_u32(p, FT, FT + 1)
        p(f"""
    v_readfirstlane_b32 s{sKEY}, v{FT}
    s_and_b32 s{sIDX}, s{sKEY}, 0x7ff
    s_sub_u32 s{sIDX}, 2047, s{sIDX}
    s_lshr_b32 s{sT0}, s{sIDX}, 4
    s_lshl_b32 s{sT0}, s{sT0}, 15
    s_and_b32 s{sT1}, s2, 3
    s_lshl_b32 s{sT1}, s{sT1}, 13
    s_add_u32 s{sT0}, s{sT0}, s{sT1}
    s_lshl_b32 s{sT1}, s{sW}, 10
    s_add_u32 s{sT0}, s{sT0}, s{sT1}
    s_and_b32 s{sT1}, s{sIDX}, 15
    s_lshl_b32 s{sT1}, s{sT1}, 4
    s_add_u32 s{sT0}, s{sT0}, s{sT1}
    v_lshrrev_b32 v{vT2}, 4, v1
    v_lshlrev_b32 v{vT2}, 8, v{vT2}
    v_add_u32 v{vT2}, s{sT0}, v{vT2}
    global_load_dwordx4 v[{XS}:{XS+3}], v{vT2}, s[18:19] sc1""")
        vq.issue(("X", 0))
    def ffn_step(f):
        def go():
            if f == 0:
                vq.wait(p, ("X", 0), ("F", 7))
                p(f"""
    v_and_b32 v{vT2}, 15, v1
    v_lshlrev_b32 v{vT2}, 5, v{vT2}
    s_lshl_b32 s{sT0}, s{sW}, 9
    s_add_u32 s{sT0}, s{sT0}, {L_FP}
    v_add_u32 v{vT2}, s{sT0}, v{vT2}""")
            if f > 0:
                p(f"ds_write_b32 v{vT2}, v{FD} offset:{(f-1)*4}"); lq.issue(("FW", f - 1))
            if f < 8:
                j = f >> 1; sel = sPH if f & 1 else sPL
                for pp in range(4):
                    p(f"v_perm_b32 v{FT+pp}, v{FR+(2*pp+1)*4+j}, v{FR+(2*pp)*4+j}, s{sel}")
        return go
    def ffn_mfma():
        p(f"v_mfma_f32_16x16x32_bf16 v[{FD}:{FD+3}], v[{XS}:{XS+3}], v[{FT}:{FT+3}], 0")
    def ffn_final():
        p(f"""
    s_cmp_lg_u32 s{sW}, 0
    s_cbranch_scc1 K2_FSKIP
    s_cmp_ge_u32 s2, 224
    s_cbranch_scc1 K2_FSKIP
    v_lshlrev_b32 v{vT2}, 3, v1
    v_add_u32 v{vT3}, {L_FP}, v{vT2}""")
        for w in range(8): p(f"ds_read_b64 v[{FR+2*w}:{FR+2*w+1}], v{vT3} offset:{w*512}")
        p(f"""
    s_and_b32 s{sT0}, s2, 3
    s_mul_i32 s{sT0}, s{sT0}, {7168*8}
    s_lshr_b32 s{sT1}, s2, 2
    s_lshl_b32 s{sT1}, s{sT1}, 10
    s_add_u32 s{sT0}, s{sT0}, s{sT1}
    s_add_u32 s{sT0}, s{sT0}, {WS_GU}
    v_lshlrev_b32 v{vT2}, 1, v{vT2}
    v_add_u32 v{vT2}, s{sT0}, v{vT2}
    s_waitcnt lgkmcnt(0)""")
        for w in range(1, 8):
            p(f"v_add_f32 v{FR}, v{FR}, v{FR+2*w}\nv_add_f32 v{FR+1}, v{FR+1}, v{FR+2*w+1}")
        p(f"v_mov_b32 v{FR+2}, v{FR+1}\nv_mov_b32 v{FR+1}, s{sNON}\nv_mov_b32 v{FR+3}, s{sNON}")
        p(f"global_store_dwordx4 v{vT2}, v[{FR}:{FR+3}], s[18:19] sc1")
        p.label("K2_FSKIP")
    NEG = f"v[{NEGM}:{NEGM+15}]"
    def iteration(t, extra=(), mid=()):
        doQK = t < 15; doPV = t > 0; prevSM = t > 0
        sb = t & 1
        for j in range(8):
            if doQK: qk(j, sb ^ 1, NEG)
            if (j > 0 or prevSM) and 'novalu' not in dbg:
                e = E + 2 * ((j - 1) & 1)
                pb = sb if j > 0 else sb ^ 1
                pr = P + 8 * pb + ((j - 1) & 7)
                p(f"v_add_f32 v{vL0}, v{vL0}, v{e}\nv_add_f32 v{vL1}, v{vL1}, v{e+1}\nv_cvt_pk_bf16_f32 v{pr}, v{e}, v{e+1}")
            if j < len(mid): run(mid[j])
            if doPV: pv(j, sb ^ 1, first=(t == 1))
            e = E + 2 * (j & 1)
            if 'novalu' not in dbg: p(f"v_exp_f32 v{e}, v{S+16*sb+2*j}\nv_exp_f32 v{e+1}, v{S+16*sb+2*j+1}")
            jj = j + D
            if jj < 8:
                if doQK: k_read(t + 1, jj)
                if doPV: v_read(t - 1, jj)
            else:
                if t + 2 <= 15: k_read(t + 2, jj - 8)
                v_read(t, jj - 8)
            if j < len(extra): run(extra[j])
    F = lambda i: job_f(i) if (ffn and cold and 'nofl' not in dbg) else None
    FT0 = 10
    PL = lambda n: (("PL", n), p3_preload(n))
    sched = {
        0: [job_k(7), None, job_v(3), None, job_v(4), None, F(0)],
        1: [job_v(5), None, None, job_v(6), None, None, F(1)],
        2: [job_k(8), None, job_k(9), None, job_v(7), None, F(2)],
        3: [job_v(8), None, job_v(9), None, job_v(10), None, F(3)],
        4: [job_k(10), keyld, job_k(11), None, job_v(11), None, F(4)],
        5: [job_v(12), None, None, job_v(13), None, None, F(5)],
        6: [job_k(12), None, job_k(13), None, job_v(14), None, F(6)],
        7: [job_v(15), None, xsel, None, None, None, F(7)],
        8: [job_k(14), None, job_k(15), None, None, pf(0)],
        9: [None, None, None, None, pf(1)],
        10: [None, None, None, None, pf(2)],
        11: [None, None, None, None, pf(3)],
        12: [None, None, p3_early_setup(), p3_preload(0), PL(1), None, PL(2), None],
        13: [PL(3), None, PL(4), PL(5), None, PL(6), PL(7), p3_preload(8)],
        112: [] if 'notlb' in dbg else [
             (("TL", 0), f"v_min_u32 v{FT}, 40, v1\nv_lshlrev_b32 v{FT}, 20, v{FT}\nglobal_load_dword v{FD}, v{FT}, s[18:19]"), None,
             (("TL", 1), f"v_and_b32 v{FT+1}, 3, v1\nv_lshlrev_b32 v{FT+1}, 20, v{FT+1}\nglobal_load_dword v{FD}, v{FT+1}, s[78:79]"), None,
             (("TL", 2), f"v_and_b32 v{FT+2}, 7, v1\nv_lshlrev_b32 v{FT+2}, 20, v{FT+2}\nglobal_load_dword v{FD}, v{FT+2}, s[10:11]"), None,
             (("TL", 3), f"v_min_u32 v{FT+3}, 6, v1\nv_lshlrev_b32 v{FT+3}, 20, v{FT+3}\nglobal_load_dword v{FD}, v{FT+3}, s[16:17]")],
    }
    if 'nodma' in dbg: sched = {}
    for t in range(16):
        if t > 0 and t % 2 == 0:
            b = t // 2
            need = [("K", x) for x in range(2*b+4)] + [("V", x) for x in range(2*b+2)]
            if b == 6: need = [("K", x) for x in range(16)] + [("V", x) for x in range(16)]
            vq.wait(p, *need)
            if b == 7: vq.wait(p, ("PF", 3))
            if 2 * b == FT0 + 2: lq.wait(p, ("FW", 7))
            p("s_barrier")
        extra = sched.get(t, []); mid = []
        def both(x, y):
            def f():
                run(x); run(y)
            return f
        ex8 = list(extra) + [None] * 8
        if t == FT0:
            extra = [both(ex8[f], ffn_step(f)) for f in range(8)]; mid = [None] + [ffn_mfma] * 7
        if t == FT0 + 1:
            extra = [ex8[0], ffn_step(8)] + ex8[2:8]; mid = [ffn_mfma]
        if t == FT0 + 2:
            extra = [ex8[0], ffn_final] + ex8[2:8]
        if t == 14:
            ED = lambda n: None if 'noew' in dbg else (("EW", n), p3_early_dma(n))
            extra = []
        if t == 15:
            extra = []
        iteration(t, extra, mid)
    e = E + 2
    p(f"v_add_f32 v{vL0}, v{vL0}, v{e}\nv_add_f32 v{vL1}, v{vL1}, v{e+1}\nv_cvt_pk_bf16_f32 v{P+8+7}, v{e}, v{e+1}")
    p(f"""
    v_add_f32 v{vL0}, v{vL0}, v{vL1}
    v_mov_b32 v{vL1}, v{vL0}
    """)
    for i in range(8):
        pv(i, 1)
        if i + D < 8: v_read(15, i + D)
        if i == 0:
            p(f"v_permlane32_swap_b32 v{vL0}, v{vL1}\nv_add_f32 v{vL0}, v{vL0}, v{vL1}")
        if i == 1:
            p(f"""
    v_mov_b32 v{vT1}, 0x5d800000
    v_cmp_nle_f32 vcc, v{vL0}, v{vT1}
    v_rcp_f32 v{vL1}, v{vL0}
    """)
    ST()
    if slow:
        p(f"s_cbranch_vccnz K2_SLOW")
        p.label("K2_SLOW_RET")
    for dt in range(4):
        for c in range(2):
            a = ACC + 16 * dt + 8 * c
            o = S + (dt * 2 + c) * 4
            for r in range(8): p(f"v_mul_f32 v{a+r}, v{a+r}, v{vL1}")
            for r in range(4): p(f"v_cvt_pk_bf16_f32 v{o+r}, v{a+2*r}, v{a+2*r+1}")
            p(f"buffer_store_dwordx4 v[{o}:{o+3}], v{vO}, s[{SRD_OT}:{SRD_OT+3}], s{sOT} offen offset:{c*512} sc1")
        if dt < 3: p(f"s_add_u32 s{sOT}, s{sOT}, 131072")
    phase3(p, ST, stamp)
    p.label("K2_END")
    p("s_endpgm")
    p.label("M_SSPIN")
    p("s_sleep 2")
    p(stcode)
    p("s_waitcnt vmcnt(0)")
    p(stchk)
    p(f"""
    s_cbranch_vccz M_SSPIN_RET
    s_sub_u32 s73, s73, 1
    s_cmp_lg_u32 s73, 0
    s_cbranch_scc1 M_SSPIN
    s_branch M_SSPIN_RET
    """)
    p.label("M_KSPIN")
    p("s_sleep 2")
    p(keycode)
    p("s_waitcnt vmcnt(0)")
    p(keychk)
    p(f"""
    s_cbranch_vccz M_KSPIN_RET
    s_sub_u32 s73, s73, 1
    s_cmp_lg_u32 s73, 0
    s_cbranch_scc1 M_KSPIN
    s_branch M_KSPIN_RET
    """)
    if slow:
        p.label("K2_SLOW")
        p(f"""
    s_waitcnt vmcnt(0) lgkmcnt(0)
    v_and_b32 v{vT0}, 31, v1
    v_lshlrev_b32 v{vT0}, 8, v{vT0}
    v_lshrrev_b32 v{vT1}, 5, v1
    v_lshl_add_u32 v{vT0}, v{vT1}, 4, v{vT0}
    v_and_b32 v{vT2}, 19, v1
    v_bfe_u32 v{vT3}, v1, 2, 1
    v_lshl_add_u32 v{vT2}, v{vT3}, 3, v{vT2}
    v_bfe_u32 v{vT3}, v1, 3, 1
    v_lshl_add_u32 v{vT2}, v{vT3}, 2, v{vT2}
    v_lshlrev_b32 v{vT2}, 1, v{vT2}
    v_lshl_add_u32 v{vT2}, v{vT1}, 10, v{vT2}
    v_mov_b32 v{vT1}, 0xff800000
    s_mov_b32 s{sT1}, 0
    """)
        KS = KF
        def slow_qk(c0):
            for j in range(8):
                p(f"buffer_load_dwordx4 v[{KS+4*j}:{KS+4*j+3}], v{vT0}, s[{SRD_K}:{SRD_K+3}], s{sT1} offen offset:{j*32}")
            p("s_waitcnt vmcnt(0)")
            for j in range(8):
                c = c0 if j == 0 else f"v[{S}:{S+15}]"
                p(f"v_mfma_f32_32x32x16_bf16 v[{S}:{S+15}], v[{KS+4*j}:{KS+4*j+3}], v[{QP+4*j}:{QP+4*j+3}], {c}")
        p.label("K2_SLOW_L1")
        slow_qk("0")
        for i in range(0, 16, 2):
            p(f"v_max3_f32 v{vT1}, v{vT1}, v{S+i}, v{S+i+1}")
        p(f"""
    s_add_u32 s{sT1}, s{sT1}, 8192
    s_cmp_lt_u32 s{sT1}, 131072
    s_cbranch_scc1 K2_SLOW_L1
    v_mov_b32 v{vT3}, v{vT1}
    v_permlane32_swap_b32 v{vT3}, v{vT1}
    v_max_f32 v{vT1}, v{vT3}, v{vT1}
    """)
        for i in range(16): p(f"v_sub_f32 v{NEGM+i}, 0, v{vT1}")
        for i in range(64): p(f"v_mov_b32 v{ACC+i}, 0")
        p(f"v_mov_b32 v{vL0}, 0\ns_mov_b32 s{sT1}, 0")
        p.label("K2_SLOW_L2")
        slow_qk(NEG)
        for i in range(16): p(f"v_exp_f32 v{S+i}, v{S+i}")
        for i in range(16): p(f"v_add_f32 v{vL0}, v{vL0}, v{S+i}")
        for i in range(8): p(f"v_cvt_pk_bf16_f32 v{P+i}, v{S+2*i}, v{S+2*i+1}")
        for ks in range(2):
            p(f"s_add_u32 s{sT2}, s{sT1}, {ks*4096}")
            TM = S + 16
            for dt in range(4):
                r = KS + dt * 4; d = ACC + 16 * dt
                for jj in range(8):
                    key = (jj & 3) + 8 * (jj >> 2)
                    p(f"buffer_load_ushort v{TM + jj}, v{vT2}, s[{SRD_V}:{SRD_V+3}], s{sT2} offen offset:{key*256 + dt*64}")
                p("s_waitcnt vmcnt(0)")
                for jj in range(4): p(f"v_lshl_or_b32 v{r+jj}, v{TM+2*jj+1}, 16, v{TM+2*jj}")
                p(f"v_mfma_f32_32x32x16_bf16 v[{d}:{d+15}], v[{r}:{r+3}], v[{P+4*ks}:{P+4*ks+3}], v[{d}:{d+15}]")
            p("s_nop 7")
        p(f"""
    s_add_u32 s{sT1}, s{sT1}, 8192
    s_cmp_lt_u32 s{sT1}, 131072
    s_cbranch_scc1 K2_SLOW_L2
    v_mov_b32 v{vL1}, v{vL0}
    v_permlane32_swap_b32 v{vL0}, v{vL1}
    v_add_f32 v{vL0}, v{vL0}, v{vL1}
    v_rcp_f32 v{vL1}, v{vL0}
    s_nop 7
    s_branch K2_SLOW_RET
    """)
    n = p.fix_hazards(verbose='v' in dbg)
    import re as _re
    txt0 = _re.sub(r"ST3_(\d)", (lambda m: f"s_memtime s[{80+2*int(m.group(1))}:{81+2*int(m.group(1))}]") if MODE3[0] else "s_nop 0", p.text())
    txt0 = _re.sub(r"    ST4_(\d)\n", (lambda m: f"    s_memtime s[{80+2*int(m.group(1))}:{81+2*int(m.group(1))}]\n") if 'st4' in dbg else "", txt0)
    txt = txt0.replace('STAMPX1', 's_nop 0')
    return txt, descriptor(name, 256, 256, 102), f"; @launch grid=(256,1,1) block=(512,1,1) lds={L_TOTAL}"

if __name__ == "__main__":
    import sys, subprocess, re
    dbg = tuple(sys.argv[2].split(',')) if len(sys.argv) > 2 else ()
    t, d, l = gen_mega(stamp=len(sys.argv) > 1 and sys.argv[1] == "1", dbg=dbg)
    out = sys.argv[3] if len(sys.argv) > 3 else "mega.s"
    def write(cs):
        open(out, "w").write(l + '\n.amdgcn_target "amdgcn-amd-amdhsa--gfx950"\n.text\n' + t.replace("CODESIZE", str(cs)) + '.section .rodata,"a"\n' + d)
    write(0x1000)
    subprocess.run(["clang", "-x", "assembler", "-target", "amdgcn-amd-amdhsa", "-mcpu=gfx950", "-c", out, "-o", "mega.o"], check=True)
    r = subprocess.run(["llvm-objdump", "-h", "mega.o"], capture_output=True, text=True).stdout
    sz = int(re.search(r"\.text\s+([0-9a-f]+)", r).group(1), 16)
    write((sz - 256) & ~63)
    print("code size", sz)
```

```python
from gen_common import *
import math, struct

KSL = 8704; VSL = 8192
L_X = 65536
L_HI = 131072
L_FP = 159744
L_TOTAL = L_FP + 4096
L_K = L_HI
KADDR = [L_HI, L_HI + KSL, L_HI + 2 * KSL, L_X, L_X + KSL + 2 * VSL, L_X + 2 * KSL + 2 * VSL, L_X + 3 * KSL + 2 * VSL]
VADDR = [L_X + KSL, L_X + KSL + VSL, L_X + 4 * KSL + 2 * VSL] + [i * VSL for i in range(8)]
assert VADDR[2] + VSL <= L_HI and KADDR[2] + KSL <= L_FP and VADDR[1] + VSL <= L_X + 32768
def Kabs(t): return KADDR[t % 7]
def Vabs(t): return VADDR[t % 11]

vDk, vDv, vKb, vVa, vVb, vO, vL0, vL1, vDf, vKh, vT0, vT1, vT2, vT3 = 2, 3, 4, 5, 6, 7, 8, 9, 10, 11, 12, 13, 14, 15
vPF = 211
ACC = 16; QP = 80; S = 112; NEGM = 144; P = 160; KF = 176; VF = 192; E = 208
QA = 112; AF = 176
def BRr(buf, k): return 212 + (buf & 1) * 16 + k * 4
FR = 212
vA0, vA1, vDq, vDq2, vXB0, vXB1 = 244, 245, 246, 247, 248, 249
vXD = 80
FT = 244; FD = 248; XS = 252
sW = 3
sHEAD, sRB, sG = 20, 21, 22
sN, sWq, sM, sB = 23, 24, 25, 26
sKsrc, sKw, sVsrc, sVw = 27, 28, 29, 30
sPL, sPH = 31, 32
sFsrc, sIDX = 69+32, 35
SRD_WQ, SRD_XN, SRD_K, SRD_V, SRD_F, SRD_OT = 36, 40, 44, 48, 52, 56
sT0, sT1, sT2, sT3 = 60, 61, 62, 63
sOT = 64
sXM = 100
QSCALE = math.log2(math.e) / math.sqrt(128.0)
def fbits(x): return "0x%08x" % struct.unpack("<I", struct.pack("<f", x))[0]
D = 4

class Q:
    def __init__(self, cnt, mx): self.q = []; self.cnt = cnt; self.mx = mx
    def issue(self, tag): self.q.append(tag)
    def wait(self, p, *tags):
        idx = [len(self.q) - 1 - self.q[::-1].index(t) for t in tags if t in self.q]
        if not idx: return
        i = max(idx)
        n = len(self.q) - 1 - i
        assert n <= self.mx, n
        p(f"s_waitcnt {self.cnt}({n})")
        self.q = self.q[i + 1:]


KNAME = "recurrent_scan__sliding_block_cached__moe_arch_mod__prompt_kernel"
sFL, sPC, sKEY = 65, 70, 34
SPIN_MAX = 20000
MODE0 = [False]
DBGT = [False]
NOEW = [False]
MODE3 = [False]
WS_FLG = 0x500000
sNON = 33

LX = 16
def poll32(p, lab, sGrp, stage):
    p(f"""
    v_and_b32 v{vT0}, 31, v1
    v_lshlrev_b32 v{vT0}, 7, v{vT0}
    s_lshl_b32 s{sGrp}, s{sGrp}, 12
    s_add_u32 s{sGrp}, s{sGrp}, {WS_FLG + stage*32768}
    v_add_u32 v{vT0}, s{sGrp}, v{vT0}
    s_mov_b32 s73, {SPIN_MAX}
    """)
    p.label(lab)
    p(f"""
    global_load_dword v{vT1}, v{vT0}, s[18:19] sc1
    s_waitcnt vmcnt(0)
    v_cmp_ne_u32 vcc, s{sNON}, v{vT1}
    s_cbranch_vccz {lab}_OK
    s_sleep 1
    s_sub_u32 s73, s73, 1
    s_cmp_lg_u32 s73, 0
    s_cbranch_scc1 {lab}
    """)
    p.label(lab + "_OK")
def set_flag(p, stage):
    p(f"""
    s_lshl_b32 s{sT0}, s{sFL}, 7
    s_add_u32 s{sT0}, s{sT0}, {WS_FLG + stage*32768}
    v_mov_b32 v{vT0}, s{sT0}
    v_mov_b32 v{vT1}, s{sNON}
    s_mov_b64 exec, 1
    global_store_dword v{vT0}, v{vT1}, s[18:19] sc1
    s_mov_b64 exec, -1
    """)
WS_ST = 0x520000
WS_CS = 0x530000
L_SC = L_K
CSR = 92
def get_nonce(p, lab, vz, vn):
    p(f"""
    s_mov_b32 s73, {SPIN_MAX}
{lab}:
    global_load_dword v{vn}, v{vz}, s[66:67] sc1
    s_waitcnt vmcnt(0)
    v_readfirstlane_b32 s{sNON}, v{vn}
    s_cmp_lg_u32 s{sNON}, 0
    s_cbranch_scc1 {lab}_OK
    s_sub_u32 s73, s73, 1
    s_cmp_lg_u32 s73, 0
    s_cbranch_scc1 {lab}
{lab}_OK:
    """)
class Rec:
    def __init__(self): self.items = []
    def __call__(self, text):
        for line in text.split('\n'):
            if line.strip(): self.items.append(line.strip())
    def call(self, f): self.items.append(f)
LN_X = 16; LN_W = 24
vg0, vg1, vr_, vq_, vNON, vCSA, vLXA = 84, 85, 86, 87, 88, 89, 90
def ln_segments(lq, vq, P):
    X = LN_X; W = LN_W; F = 32; S_ = 48; T = 49; Q0 = 50; Q1 = 51; Dd = 52; va = 68; vw = 69; SD = 70; G = 32
    CA = 72; CT = 52
    p = Rec()
    p(f"""
    v_lshrrev_b32 v{vw}, 6, v0
    v_and_b32 v{va}, 7, v1
    v_xor_b32 v{va}, v{va}, v{vw}
    v_lshlrev_b32 v{va}, 4, v{va}
    v_lshl_add_u32 v{va}, v1, 7, v{va}
    v_add_u32 v{va}, {L_SC}, v{va}
    v_lshrrev_b32 v{vg1}, 3, v0
    v_and_b32 v{vg0}, 7, v{vg1}
    v_and_b32 v{vr_}, 7, v0
    v_xor_b32 v{vg0}, v{vg0}, v{vr_}
    v_lshlrev_b32 v{vg0}, 4, v{vg0}
    v_lshl_add_u32 v{vg0}, v{vg1}, 8, v{vg0}
    s_lshr_b32 s{sT0}, s{sFL}, 1
    s_lshl_b32 s{sT0}, s{sT0}, 15
    s_and_b32 s{sT1}, s{sFL}, 1
    s_lshl_b32 s{sT1}, s{sT1}, 7
    s_add_u32 s{sT0}, s{sT0}, s{sT1}
    v_add_u32 v{vg0}, s{sT0}, v{vg0}
    v_add_u32 v{vg1}, 0x4000, v{vg0}
    v_lshlrev_b32 v{vr_}, 4, v0
    v_add_u32 v{vr_}, {L_SC}, v{vr_}
    """)
    p.call(lambda: vq.wait(P, ("LX", 1)))
    ONE = F
    p(f"v_mov_b32 v{ONE}, 0x3f803f80")
    p(f"v_dot2_f32_bf16 v{S_}, v{X}, v{ONE}, 0\nv_dot2_f32_bf16 v{Q0}, v{X}, v{X}, 0")
    p(f"v_dot2_f32_bf16 v{T}, v{X+1}, v{ONE}, 0\nv_dot2_f32_bf16 v{Q1}, v{X+1}, v{X+1}, 0")
    for i in range(2, 8, 2):
        p(f"v_dot2_f32_bf16 v{S_}, v{X+i}, v{ONE}, v{S_}\nv_dot2_f32_bf16 v{Q0}, v{X+i}, v{X+i}, v{Q0}")
        p(f"v_dot2_f32_bf16 v{T}, v{X+i+1}, v{ONE}, v{T}\nv_dot2_f32_bf16 v{Q1}, v{X+i+1}, v{X+i+1}, v{Q1}")
    p(f"s_nop 1\nv_add_f32 v{S_}, v{S_}, v{T}\nv_add_f32 v{Q0}, v{Q0}, v{Q1}")
    ra = Rec(); wave_sum(ra, S_, T); rb_ = Rec(); wave_sum(rb_, Q0, Q1)
    for x_, y_ in zip(ra.items, rb_.items): p(x_); p(y_)
    p(f"""
    v_mul_f32 v{S_}, 0x3a800000, v{S_}
    v_mul_f32 v{Q0}, 0x3a800000, v{Q0}
    v_fma_f32 v{Q0}, -v{S_}, v{S_}, v{Q0}
    v_max_f32 v{Q0}, 0, v{Q0}
    v_cvt_pk_bf16_f32 v{T}, v{S_}, v{Q0}
    v_lshlrev_b32 v{S_}, 16, v{T}
    v_and_b32 v{Q0}, 0xffff0000, v{T}
    v_add_f32 v{Q0}, 0x3727c5ac, v{Q0}
    v_cvt_pk_bf16_f32 v{Q0}, v{Q0}, v{Q0}
    v_lshlrev_b32 v{Q0}, 16, v{Q0}
    v_sqrt_f32 v{Q0}, v{Q0}
    v_cvt_pk_bf16_f32 v{SD}, v{S_}, v{Q0}
    v_and_b32 v{Q0}, 0xffff0000, v{SD}
    v_rcp_f32 v{Q0}, v{Q0}
    """)
    def dsw(text, tag):
        def f():
            P(text); lq.issue(tag)
        p.call(f)
    p(f"""
    s_lshl_b32 s{sT0}, s{sW}, 2
    s_add_u32 s{sT0}, s{sT0}, {L_SC + 16384}
    v_mov_b32 v{vw}, s{sT0}
    """)
    partA1 = p.items
    p = Rec()
    p.call(lambda: vq.wait(P, ("CS", 3)))
    for i in range(4):
        for j in range(4):
            r = CSR + 4 * i + j
            if i == 0:
                p(f"v_lshlrev_b32 v{CA+2*j}, 16, v{r}\nv_and_b32 v{CA+2*j+1}, 0xffff0000, v{r}")
            else:
                p(f"v_lshlrev_b32 v{CT}, 16, v{r}\nv_and_b32 v{CT+1}, 0xffff0000, v{r}")
                p(f"v_add_f32 v{CA+2*j}, v{CA+2*j}, v{CT}\nv_add_f32 v{CA+2*j+1}, v{CA+2*j+1}, v{CT+1}")
    p(f"""
    v_lshlrev_b32 v{T}, 5, v0
    v_add_u32 v{T}, {L_SC}, v{T}
    """)
    dsw(f"ds_write_b128 v{T}, v[{CA}:{CA+3}]", ("LW", 4))
    dsw(f"ds_write_b128 v{T}, v[{CA+4}:{CA+7}] offset:16", ("LW", 5))
    partA = p.items
    p = Rec()
    exact = True
    for i in range(8):
        p(f"v_lshlrev_b32 v{Dd+2*i}, 16, v{X+i}\nv_and_b32 v{Dd+2*i+1}, 0xffff0000, v{X+i}")
    for i in range(16): p(f"v_sub_f32 v{Dd+i}, v{Dd+i}, v{S_}")
    for i in range(8): p(f"v_cvt_pk_bf16_f32 v{X+i}, v{Dd+2*i}, v{Dd+2*i+1}")
    for i in range(8):
        p(f"v_lshlrev_b32 v{Dd+2*i}, 16, v{X+i}\nv_and_b32 v{Dd+2*i+1}, 0xffff0000, v{X+i}")
    for i in range(16): p(f"v_mul_f32 v{Dd+i}, v{Dd+i}, v{Q0}")
    for i in range(8): p(f"v_cvt_pk_bf16_f32 v{X+i}, v{Dd+2*i}, v{Dd+2*i+1}")
    p.call(lambda: vq.wait(P, ("LX", 3)))
    p(f"v_dot2_f32_bf16 v{S_}, v{X}, v{W}, 0\nv_dot2_f32_bf16 v{Q1}, v{X+1}, v{W+1}, 0")
    for i in range(2, 8, 2):
        p(f"v_dot2_f32_bf16 v{S_}, v{X+i}, v{W+i}, v{S_}\nv_dot2_f32_bf16 v{Q1}, v{X+i+1}, v{W+i+1}, v{Q1}")
    p(f"s_nop 2\nv_add_f32 v{S_}, v{S_}, v{Q1}")
    wave_sum(p, S_, T)
    p(f"""
    v_cvt_pk_bf16_f32 v{S_}, v{S_}, v{S_}
    v_lshlrev_b32 v{S_}, 16, v{S_}
    v_ashrrev_i32 v{T}, 31, v{S_}
    v_or_b32 v{T}, 0x80000000, v{T}
    v_xor_b32 v{S_}, v{S_}, v{T}
    v_and_b32 v{S_}, 0xffff0000, v{S_}
    s_lshl_b32 s{sT1}, s{sFL}, 3
    s_add_u32 s{sT1}, s{sT1}, s{sW}
    s_sub_u32 s{sT0}, 2047, s{sT1}
    v_or_b32 v{S_}, s{sT0}, v{S_}
    v_mov_b32 v{vL0}, 0
    v_mov_b32 v{vL1}, 0
    """)
    dsw(f"ds_write_b128 v{va}, v[{X}:{X+3}]", ("LW", 0))
    dsw(f"ds_write_b128 v{va}, v[{X+4}:{X+7}] offset:8192", ("LW", 1))
    dsw(f"ds_write_b32 v{vw}, v{S_}", ("LW", 2))
    return partA1, partA, p.items
def pub_segments(lq, vq, P):
    R = CSR
    p = Rec()
    def ds(text, tag):
        def f():
            P(text); lq.issue(tag)
        p.call(f)
    def vm(text, tag):
        def f():
            P(text); vq.issue(tag)
        p.call(f)
    p(f"""
    v_lshrrev_b32 v{R+4}, 3, v1
    v_lshlrev_b32 v{R+4}, 9, v{R+4}
    v_and_b32 v{R+5}, 7, v1
    v_lshl_add_u32 v{R+4}, v{R+5}, 3, v{R+4}
    s_lshl_b32 s{sT0}, s{sW}, 6
    s_add_u32 s{sT0}, s{sT0}, {L_SC}
    v_add_u32 v{R+4}, s{sT0}, v{R+4}
    """)
    ds(f"ds_read_b64 v[{R}:{R+1}], v{R+4}", ("PR", 9))
    ds(f"ds_read_b64 v[{R+8}:{R+9}], v{R+4} offset:4096", ("PR", 8))
    p("s_nop 0\ns_nop 0\ns_nop 0\ns_nop 0")
    ds(f"ds_read_b64 v[{R+10}:{R+11}], v{R+4} offset:8192", ("PR", 7))
    ds(f"ds_read_b64 v[{R+12}:{R+13}], v{R+4} offset:12288", ("PR", 0))
    p(f"""
    s_lshl_b32 s{sT0}, s{sHEAD}, 3
    s_add_u32 s{sT0}, s{sT0}, s{sRB}
    s_lshl_b32 s{sT0}, s{sT0}, 3
    s_add_u32 s{sT0}, s{sT0}, s{sW}
    s_lshl_b32 s{sT0}, s{sT0}, 7
    s_add_u32 s{sT0}, s{sT0}, {WS_CS}
    v_lshlrev_b32 v{R+5}, 4, v{R+5}
    v_add_u32 v{R+5}, s{sT0}, v{R+5}
    s_lshl_b32 s{sT0}, s{sFL}, 3
    s_add_u32 s{sT0}, s{sT0}, s{sW}
    s_lshl_b32 s{sT0}, s{sT0}, 3
    s_add_u32 s{sT0}, s{sT0}, {WS_ST}
    v_mov_b32 v{R+6}, s{sT0}
    v_mov_b32 v71, s{sNON}
    """)
    vm(f"s_mov_b64 exec, 1\nglobal_store_dwordx2 v{R+6}, v[70:71], s[18:19] sc1\ns_mov_b64 exec, -1", ("PS", 0))
    p.call(lambda: lq.wait(P, ("PR", 0)))
    p(f"""
    v_add_f32 v{R}, v{R}, v{R+8}
    v_add_f32 v{R+1}, v{R+1}, v{R+9}
    v_add_f32 v{R+10}, v{R+10}, v{R+12}
    v_add_f32 v{R+11}, v{R+11}, v{R+13}
    v_add_f32 v{R}, v{R}, v{R+10}
    v_add_f32 v{R+2}, v{R+1}, v{R+11}
    """)
    for c in (R, R + 2): p(f"v_add_f32_dpp v{c}, v{c}, v{c} row_ror:8 row_mask:0xf bank_mask:0xf")
    for sw in ("v_permlane16_swap_b32", "v_permlane32_swap_b32"):
        p(f"v_mov_b32 v{R+1}, v{R}\nv_mov_b32 v{R+3}, v{R+2}")
        p(f"{sw} v{R}, v{R+1}\n{sw} v{R+2}, v{R+3}")
        p(f"v_add_f32 v{R}, v{R}, v{R+1}\nv_add_f32 v{R+2}, v{R+2}, v{R+3}")
    p(f"v_mov_b32 v{R+1}, s{sNON}\nv_mov_b32 v{R+3}, s{sNON}")
    vm(f"s_mov_b64 exec, 0xff\nglobal_store_dwordx4 v{R+5}, v[{R}:{R+3}], s[18:19] sc1\ns_mov_b64 exec, -1", ("PS", 1))
    seg1 = p.items
    p = Rec()
    X = 16
    ds(f"ds_read_b128 v[{X}:{X+3}], v{vr_}", ("PR", 1))
    ds(f"ds_read_b128 v[{X+4}:{X+7}], v{vr_} offset:8192", ("PR", 2))
    p(f"v_mov_b32 v{vq_}, {L_SC + 16384}")
    ds(f"ds_read_b128 v[{X+8}:{X+11}], v{vq_}", ("PR", 3))
    p("s_nop 0\ns_nop 0\ns_nop 0\ns_nop 0")
    p.call(lambda: lq.wait(P, ("PR", 1)))
    vm(f"global_store_dwordx4 v{vg0}, v[{X}:{X+3}], s[18:19] sc1", ("PS", 2))
    ds(f"ds_read_b128 v[{X+12}:{X+15}], v{vq_} offset:16", ("PR", 4))
    p.call(lambda: lq.wait(P, ("PR", 2)))
    vm(f"global_store_dwordx4 v{vg1}, v[{X+4}:{X+7}], s[18:19] sc1", ("PS", 3))
    p("s_nop 0\ns_nop 0\ns_nop 0\ns_nop 0")
    p.call(lambda: lq.wait(P, ("PR", 4)))
    p(f"""
    v_max3_u32 v{X+8}, v{X+8}, v{X+9}, v{X+10}
    v_max3_u32 v{X+12}, v{X+12}, v{X+13}, v{X+14}
    v_max3_u32 v{X+8}, v{X+8}, v{X+11}, v{X+15}
    v_max_u32 v{X+8}, v{X+8}, v{X+12}
    v_readfirstlane_b32 s{sKEY}, v{X+8}
    """)
    return seg1, p.items
def set_flag2(p):
    pass

def rbf(p, v):
    p(f"v_cvt_pk_bf16_f32 v{v}, v{v}, v{v}\nv_lshlrev_b32 v{v}, 16, v{v}")
def silu(p, d, v, t):
    p(f"""
    v_mul_f32 v{t}, 0xbfb8aa3b, v{v}
    v_exp_f32 v{t}, v{t}
    v_add_f32 v{t}, 1.0, v{t}
    v_rcp_f32 v{t}, v{t}
    v_mul_f32 v{d}, v{v}, v{t}
    """)
sRT, sCT, sIT, sA, sBo, sMb, sMb2, sKH, sKQ, sMH = 20, 21, 23, 24, 25, 26, 27, 28, 29, 30
sKG, sCG = 31, 32
SRD_A, SRD_B = 36, 40
RB1 = 16384; RB2 = 114688
WS_EX = 0x2000000; WS_FLG2 = 0x560000
EW = 244
L_H3 = 148480
CNT_A = L_HI + 2*KSL + 6*1088 + 1024
CNT_B = CNT_A + 1088
def p3_early_setup():
    return f"""s_and_b32 s{sT0}, s2, 7
    s_lshr_b32 s{sT1}, s2, 3
    s_lshr_b32 s{sRT}, s{sT0}, 1
    s_lshl_b32 s{sRT}, s{sRT}, 2
    s_and_b32 s{sT2}, s{sT1}, 3
    s_add_u32 s{sRT}, s{sRT}, s{sT2}
    s_and_b32 s{sCT}, s{sT0}, 1
    s_lshl_b32 s{sCT}, s{sCT}, 2
    s_bfe_u32 s{sT2}, s{sT1}, 0x20002
    s_add_u32 s{sCT}, s{sCT}, s{sT2}
    s_lshr_b32 s{sKH}, s{sT1}, 4
    s_and_b32 s{sKQ}, s{sW}, 3
    s_lshr_b32 s{sMH}, s{sW}, 2
    s_xor_b32 s{sMH}, s{sMH}, s{sKH}
    s_xor_b32 s{sMH}, s{sMH}, 1
    s_lshl_b32 s{sT0}, s{sKH}, 2
    s_add_u32 s{sT0}, s{sT0}, s{sKQ}
    s_lshl_b32 s{sT1}, s{sT0}, 21
    s_add_u32 s{sT1}, s{sT1}, {WS_OT}
    s_add_u32 s{SRD_A}, s18, s{sT1}
    s_addc_u32 s{SRD_A+1}, s19, 0
    s_mov_b32 s{SRD_A+2}, 0x200000
    s_mov_b32 s{SRD_A+3}, 0x20000
    s_lshl_b32 s{sT1}, s{sT0}, 20
    s_add_u32 s{SRD_B}, s10, s{sT1}
    s_addc_u32 s{SRD_B+1}, s11, 0
    s_mov_b32 s{SRD_B+2}, 0x100000
    s_mov_b32 s{SRD_B+3}, 0x20000
    s_lshl_b32 s{sA}, s{sRT}, 1
    s_add_u32 s{sA}, s{sA}, s{sMH}
    s_lshl_b32 s{sA}, s{sA}, 12
    s_lshl_b32 s{sBo}, s{sCT}, 8
    s_lshl_b32 s{sT1}, s{sMH}, 15
    s_add_u32 s{sBo}, s{sBo}, s{sT1}
    s_mul_i32 s{sMb}, s{sKQ}, 24576
    s_add_u32 s{sMb}, s{sMb}, {RB1}
    s_lshl_b32 s{sMb2}, s{sKQ}, 13
    s_add_u32 s{sMb2}, s{sMb2}, {RB2 - 3*8192}
    s_lshl_b32 s{sT1}, s{sMH}, 12
    s_add_u32 s{sT2}, s{sMb}, s{sT1}
    s_add_u32 s{sT3}, s{sMb2}, s{sT1}
    v_lshrrev_b32 v{EW+1}, 4, v1
    v_and_b32 v{EW}, 3, v1
    v_bfe_u32 v{EW+2}, v1, 2, 2
    v_lshlrev_b32 v{EW}, 4, v{EW}
    v_lshl_add_u32 v{EW}, v{EW+1}, 6, v{EW}
    v_lshl_add_u32 v{EW}, v{EW+2}, 11, v{EW}
    v_add_u32 v{EW+1}, 7168, v{EW}
    v_add_u32 v{EW+2}, {2*7168}, v{EW}
    v_add_u32 v{EW+3}, {3*7168}, v{EW}
    s_mov_b32 s{sDW}, s{sT2}
    s_mov_b32 s{sDW2}, s{sT3}"""
sDW, sDW2 = 68, 69
def wdma(slot, i, vW):
    t = ""
    if i == 0: t = f"s_add_u32 m0, s{sDW2 if slot == 3 else sDW}, {slot*8192}\ns_nop 0\n"
    t += f"buffer_load_dwordx4 v{vW+i}, s[{SRD_B}:{SRD_B+3}], s{sBo} offen offset:{i*1024} lds"
    if i == 3: t += f"\ns_add_u32 s{sBo}, s{sBo}, 65536"
    return t
def p3_early_dma(n):
    return wdma(n >> 2, n & 3, EW)
PL_A = 212; PL_B = 228; PL_G = 176; PL_OUT = 248
def gu_loads(GA):
    t = f"""s_mul_i32 s{sT0}, s{sKG}, 224
    s_mul_i32 s{sT1}, s{sKQ}, 56
    s_add_u32 s{sT0}, s{sT0}, s{sT1}
    v_min_u32 v{GA}, 55, v1
    v_add_lshl_u32 v{GA}, v{GA}, s{sT0}, 3
    v_add_u32 v{GA}, {WS_GU}, v{GA}
    """
    for q in range(8):
        t += f"global_load_dwordx2 v[{PL_G+2*q}:{PL_G+2*q+1}], v{GA}, s[18:19] sc1\n"
        if q < 7: t += f"v_add_u32 v{GA}, 28672, v{GA}\n"
    return t
def p3_preload(n):
    A = 249; B = 250
    if n == 0:
        return f"""s_and_b32 s{sKG}, s{sFL}, 15
    s_lshr_b32 s{sCG}, s{sFL}, 4
    s_cmp_lg_u32 s{sMH}, s{sKH}
    s_cbranch_scc1 M_PL_S
    s_lshl_b32 s{sT0}, s{sRT}, 1
    s_add_u32 s{sT0}, s{sT0}, s{sKH}
    s_lshl_b32 s{sT0}, s{sT0}, 2
    s_add_u32 s{sT0}, s{sT0}, s{sKQ}
    s_lshl_b32 s{sT1}, s{sT0}, 15
    s_lshl_b32 s{sT2}, s{sCT}, 8
    s_add_u32 s{sT2}, s{sT1}, s{sT2}
    v_and_b32 v{A}, 15, v1
    v_lshrrev_b32 v{B}, 4, v1
    v_lshlrev_b32 v{PL_OUT}, 11, v{A}
    v_lshl_add_u32 v{PL_OUT}, v{B}, 4, v{PL_OUT}
    v_add_u32 v{PL_OUT}, s{sT2}, v{PL_OUT}
    s_lshl_b32 s{sT2}, s{sCT}, 12
    s_add_u32 s{sT2}, s{sT1}, s{sT2}
    v_lshlrev_b32 v{A}, 4, v{A}
    v_lshl_add_u32 v{A}, v{B}, 8, v{A}
    v_add_u32 v{A}, s{sT2}, v{A}
    s_branch M_PL_E
M_PL_S:
    s_mul_i32 s{sT0}, s{sKG}, 224
    s_mul_i32 s{sT1}, s{sKQ}, 56
    s_add_u32 s{sT0}, s{sT0}, s{sT1}
    s_lshl_b32 s{sT1}, s{sT0}, 11
    s_lshl_b32 s{sT2}, s{sCG}, 7
    s_add_u32 s{sT1}, s{sT1}, s{sT2}
    v_lshrrev_b32 v{A}, 3, v1
    v_lshlrev_b32 v{A}, 11, v{A}
    v_and_b32 v{B}, 7, v1
    v_lshl_add_u32 v{A}, v{B}, 4, v{A}
    v_add_u32 v{A}, s{sT1}, v{A}
    v_mov_b32 v{PL_OUT}, 0
M_PL_E:"""
    if n == 9:
        return f"s_cmp_eq_u32 s{sMH}, s{sKH}\ns_cbranch_scc1 M_PL9\n{gu_loads(B)}M_PL9:"
    i = n - 1
    kl = (f"global_load_dwordx4 v[{PL_B+4*i}:{PL_B+4*i+3}], v{A}, s[18:19] offset:{i*1024} sc1" if i < 4 else
          f"global_load_dwordx4 v[{PL_A+4*(i-4)}:{PL_A+4*(i-4)+3}], v{PL_OUT}, s[74:75] offset:{(i-4)*64}")
    sl = (f"global_load_dwordx4 v[{PL_A+4*i}:{PL_A+4*i+3}], v{A}, s[16:17]\nv_add_u32 v{A}, 0x4000, v{A}\n" if i < 7 else "")
    return f"s_cmp_lg_u32 s{sMH}, s{sKH}\ns_cbranch_scc1 M_PLS{n}\n{kl}\ns_branch M_PLE{n}\nM_PLS{n}:\n{sl}M_PLE{n}:"
def phase3(p, ST, stamp):
    AC3 = 128; OR = 64; WF = 16; XP = 32; GP = 48
    vAo, vRd, vRd2, vOut, vFa, vFv = 2, 3, 8, 9, 10, 11; vW = 4
    ST(False)
    def oload(slot, i):
        r = OR + slot * 16 + i * 4
        t = f"buffer_load_dwordx4 v[{r}:{r+3}], v{vAo}, s[{SRD_A}:{SRD_A+3}], s{sA} offen offset:{i*1024} sc1"
        if i == 3: t += f"\ns_add_u32 s{sA}, s{sA}, 131072"
        return t
    def arrive(lab, n):
        p(f"""
    v_mov_b32 v{vT0}, {CNT_A}
    v_mov_b32 v{vT1}, 1
    s_waitcnt vmcnt({n})
    s_mov_b64 exec, 1
    ds_add_rtn_u32 v{vT2}, v{vT0}, v{vT1}
    s_mov_b64 exec, -1
    s_waitcnt lgkmcnt(0)
    v_readfirstlane_b32 s{sT0}, v{vT2}
    s_cmp_lg_u32 s{sT0}, 7
    s_cbranch_scc1 {lab}
    """)
        set_flag(p, 1)
        p.label(lab)
    NR = PL_B; GG = 144; TT = 176
    p(f"""
    ST3_0
    v_mov_b32 v{vW}, v{EW}
    v_mov_b32 v{vW+1}, v{EW+1}
    v_mov_b32 v{vW+2}, v{EW+2}
    v_mov_b32 v{vW+3}, v{EW+3}
    v_mov_b32 v{vOut}, v{PL_OUT}
    s_waitcnt vmcnt(8)
    s_cmp_lg_u32 s{sMH}, s{sKH}
    s_cbranch_scc1 M_SEND0
    """)
    for j in range(16):
        p(f"v_lshlrev_b32 v{GG+2*j}, 16, v{NR+j}\nv_and_b32 v{GG+2*j+1}, 0xffff0000, v{NR+j}\nv_mov_b32 v{XP+j}, v{PL_A+j}")
    for c in range(32): p(f"v_mul_f32 v{TT+c}, 0xbfb8aa3b, v{GG+c}")
    for c in range(32): p(f"v_exp_f32 v{TT+c}, v{TT+c}")
    for c in range(32): p(f"v_add_f32 v{TT+c}, 1.0, v{TT+c}")
    for c in range(32): p(f"v_rcp_f32 v{TT+c}, v{TT+c}")
    for c in range(32): p(f"v_mul_f32 v{GG+c}, v{GG+c}, v{TT+c}")
    for c in range(16): p(f"v_cvt_pk_bf16_f32 v{GP+c}, v{GG+2*c}, v{GG+2*c+1}")
    arrive("M_ARR0", 0)
    p("ST3_6\ns_branch M_JOIN0")
    p.label("M_SEND0")
    WD = PL_A; GR = PL_G; GA = 144; AC = 152; T = 160; SW = 164
    guld = gu_loads(GA)
    p(guld)
    arrive("M_ARR3", 8)
    p(f"s_mov_b32 s73, {SPIN_MAX}\ns_mov_b32 s{sIT}, 1\ns_waitcnt vmcnt(0)")
    p.label("M_POLL2")
    for q in range(8): p(f"v_xor_b32 v{GR+2*q+1}, s{sNON}, v{GR+2*q+1}")
    p(f"""
    v_or3_b32 v{GR+1}, v{GR+1}, v{GR+3}, v{GR+5}
    v_or3_b32 v{GR+7}, v{GR+7}, v{GR+9}, v{GR+11}
    v_or3_b32 v{GR+1}, v{GR+1}, v{GR+13}, v{GR+15}
    v_or_b32 v{GR+1}, v{GR+1}, v{GR+7}
    v_cmp_ne_u32 vcc, 0, v{GR+1}
    s_cbranch_vccz M_POLL2_OK
    s_cmp_lg_u32 s{sIT}, 0
    s_cbranch_scc1 M_ARR2
    s_mov_b32 s{sIT}, 1
    """)
    arrive("M_ARR2", 0)
    p(f"""
    s_sleep 10
    {guld}
    s_waitcnt vmcnt(0)
    s_sub_u32 s73, s73, 1
    s_cmp_lg_u32 s73, 0
    s_cbranch_scc1 M_POLL2
    """)
    p.label("M_POLL2_OK")
    p(f"v_mov_b32 v{GR+1}, v{GR+2}")
    for q in range(1, 4):
        p(f"v_add_f32 v{GR}, v{GR}, v{GR+4*q}\nv_add_f32 v{GR+1}, v{GR+1}, v{GR+4*q+2}")
    rbf(p, GR); rbf(p, GR + 1)
    silu(p, GR, GR, GR + 2)
    rbf(p, GR)
    p(f"v_mul_f32 v{GR}, v{GR}, v{GR+1}")
    rbf(p, GR)
    p(f"""
    s_lshl_b32 s{sT0}, s{sKQ}, 8
    s_add_u32 s{sT0}, s{sT0}, {L_H3}
    v_lshlrev_b32 v{vT0}, 2, v1
    v_add_u32 v{vT0}, s{sT0}, v{vT0}
    ds_write_b32 v{vT0}, v{GR}
    v_lshrrev_b32 v{vT1}, 3, v1
    v_lshlrev_b32 v{vT1}, 2, v{vT1}
    v_add_u32 v{vT1}, s{sT0}, v{vT1}
    s_waitcnt lgkmcnt(0)
    """)
    for i in range(7): p(f"ds_read_b32 v{GR+i}, v{vT1} offset:{i*32}")
    p("s_waitcnt lgkmcnt(0)")
    for i in range(7):
        for j in range(4):
            w = WD + 4 * i + j
            p(f"v_lshlrev_b32 v{T}, 16, v{w}\nv_and_b32 v{T+1}, 0xffff0000, v{w}")
            if i == 0: p(f"v_mul_f32 v{AC+2*j}, v{T}, v{GR}\nv_mul_f32 v{AC+2*j+1}, v{T+1}, v{GR}")
            else: p(f"v_fmac_f32 v{AC+2*j}, v{T}, v{GR+i}\nv_fmac_f32 v{AC+2*j+1}, v{T+1}, v{GR+i}")
    for c in range(8): p(f"v_add_f32_dpp v{AC+c}, v{AC+c}, v{AC+c} row_ror:8 row_mask:0xf bank_mask:0xf")
    for sw in ("v_permlane16_swap_b32", "v_permlane32_swap_b32"):
        for c in range(8): p(f"v_mov_b32 v{SW+c}, v{AC+c}")
        for c in range(8): p(f"{sw} v{AC+c}, v{SW+c}")
        for c in range(8): p(f"v_add_f32 v{AC+c}, v{AC+c}, v{SW+c}")
    p(f"""
    v_and_b32 v{vT0}, 7, v1
    v_lshlrev_b32 v{vT0}, 5, v{vT0}
    s_add_u32 s{sT0}, s{sT0}, 1024
    v_add_u32 v{vT0}, s{sT0}, v{vT0}
    ds_write_b128 v{vT0}, v[{AC}:{AC+3}]
    ds_write_b128 v{vT0}, v[{AC+4}:{AC+7}] offset:16
    v_mov_b32 v{vT0}, {CNT_B}
    v_mov_b32 v{vT1}, 1
    s_waitcnt lgkmcnt(0)
    s_mov_b64 exec, 1
    ds_add_rtn_u32 v{vT2}, v{vT0}, v{vT1}
    s_mov_b64 exec, -1
    s_waitcnt lgkmcnt(0)
    v_readfirstlane_b32 s{sT0}, v{vT2}
    s_cmp_lg_u32 s{sT0}, 3
    s_cbranch_scc1 M_SEND_END
    v_lshlrev_b32 v{vT0}, 2, v1
    v_add_u32 v{vT1}, {L_H3 + 1024}, v{vT0}
    ds_read_b32 v{GR}, v{vT1}
    ds_read_b32 v{GR+1}, v{vT1} offset:256
    ds_read_b32 v{GR+2}, v{vT1} offset:512
    ds_read_b32 v{GR+3}, v{vT1} offset:768
    s_lshl_b32 s{sT0}, s{sKG}, 13
    s_lshl_b32 s{sT1}, s{sCG}, 9
    s_add_u32 s{sT0}, s{sT0}, s{sT1}
    s_add_u32 s{sT0}, s{sT0}, {WS_YP}
    v_lshlrev_b32 v{vT0}, 1, v{vT0}
    v_add_u32 v{vT0}, s{sT0}, v{vT0}
    s_waitcnt lgkmcnt(0)
    v_add_f32 v{GR}, v{GR}, v{GR+1}
    v_add_f32 v{GR+2}, v{GR+2}, v{GR+3}
    v_add_f32 v{GR}, v{GR}, v{GR+2}
    v_mov_b32 v{GR+1}, s{sNON}
    global_store_dwordx2 v{vT0}, v[{GR}:{GR+1}], s[18:19] sc1
    """)
    p.label("M_SEND_END")
    p(f"s_and_b32 s{sT3}, s{sBo}, 0x7fff")
    for sl in range(3):
        for hf in range(2):
            p(f"s_add_u32 m0, s{sMb}, {sl*8192 + hf*4096}\ns_nop 0")
            for i in range(4):
                p(f"buffer_load_dwordx4 v{vW+i}, s[{SRD_B}:{SRD_B+3}], s{sT3} offen offset:{i*1024} lds")
            p(f"s_add_u32 s{sT3}, s{sT3}, 32768")
    p(f"s_cmp_lg_u32 s{sIT}, 0\ns_cbranch_scc1 M_JOIN0")
    arrive("M_ARR1", 0)
    p("ST3_6")
    p.label("M_JOIN0")
    p(f"s_add_u32 s{sBo}, s{sBo}, {3*65536}")
    p(f"""
    ST3_1
    s_lshr_b32 s{sT0}, s{sRT}, 1
    s_lshl_b32 s{sT0}, s{sT0}, 1
    s_add_u32 s{sT0}, s{sT0}, s{sKH}
    s_lshl_b32 s{sT0}, s{sT0}, 2
    s_add_u32 s{sT0}, s{sT0}, s{sKQ}
    s_lshl_b32 s{sT0}, s{sT0}, 9
    s_add_u32 s{sT0}, s{sT0}, {WS_FLG + 32768}
    v_and_b32 v{vFa}, 3, v1
    v_lshlrev_b32 v{vFa}, 7, v{vFa}
    v_add_u32 v{vFa}, s{sT0}, v{vFa}
    global_load_dword v{vFv}, v{vFa}, s[18:19] sc1
    v_lshlrev_b32 v{vAo}, 4, v1
    s_mov_b32 s{sIT}, 0
    v_lshrrev_b32 v{vT0}, 4, v1
    v_and_b32 v{vT1}, 3, v1
    v_bfe_u32 v{vT3}, v1, 2, 2
    v_lshlrev_b32 v{vRd}, 11, v{vT0}
    v_lshl_add_u32 v{vRd}, v{vT3}, 6, v{vRd}
    v_lshl_add_u32 v{vRd}, v{vT1}, 4, v{vRd}
    v_add_u32 v{vRd2}, s{sMb2}, v{vRd}
    v_add_u32 v{vRd}, s{sMb}, v{vRd}
    """)
    for i in range(128): p(f"v_mov_b32 v{AC3+i}, 0")
    p(f"""
    s_mov_b32 s73, {SPIN_MAX}
M_POLL1:
    s_waitcnt vmcnt(0)
    v_cmp_ne_u32 vcc, s{sNON}, v{vFv}
    s_cbranch_vccz M_POLL1_OK
    s_sleep 2
    global_load_dword v{vFv}, v{vFa}, s[18:19] sc1
    s_sub_u32 s73, s73, 1
    s_cmp_lg_u32 s73, 0
    s_cbranch_scc1 M_POLL1
M_POLL1_OK:
    ST3_2
    """)
    for sl in range(3):
        for i in range(4): p(oload(sl, i))
    p("ST3_3\ns_barrier\nST3_4\ns_waitcnt vmcnt(8)\nST3_5")
    ST(False)
    lq = Q("lgkmcnt", 15)
    if stamp: p("s_waitcnt lgkmcnt(0)")
    def wread(slot, f):
        u, e = f >> 1, f & 1
        r = WF + (f & 3) * 4
        for t in range(2):
            p(f"ds_read_b64_tr_b16 v[{r+2*t}:{r+2*t+1}], v{vRd2 if slot == 3 else vRd} offset:{slot*8192 + t*1024 + u*256 + e*8}")
            lq.issue(("W", f & 3, t))
    LAW = 3
    for f in range(LAW): wread(0, f)
    st0 = list(lq.q)
    p(".p2align 6")
    p.label("M_P3")
    for st in range(4):
        n = (st + 3) & 3
        L = [wdma(n, i, vW) for i in range(4)] + [oload(n, i) for i in range(4)]
        for f in range(8):
            fn = f + LAW; ns = st
            if fn >= 8: fn -= 8; ns = (st + 1) & 3
            lq.wait(p, ("W", f & 3, 1))
            for i in range(4):
                d = AC3 + (i * 8 + f) * 4; a = WF + (f & 3) * 4; b = OR + st * 16 + i * 4
                p(f"v_mfma_f32_16x16x32_bf16 v[{d}:{d+3}], v[{a}:{a+3}], v[{b}:{b+3}], v[{d}:{d+3}]")
                if i == 0: wread(ns, fn)
                if i == 2: p(L[f])
        if st == 3: p(f"s_add_u32 s{sIT}, s{sIT}, 1\ns_cmp_lt_u32 s{sIT}, 4")
        p("s_waitcnt vmcnt(12)\ns_barrier")
    assert lq.q == st0
    p(f"""
    s_cbranch_scc1 M_P3
    s_waitcnt vmcnt(0) lgkmcnt(0)
    s_mul_i32 s{sT0}, s{sKQ}, 24576
    v_add_u32 v{vT0}, s{sT0}, v{vAo}
    v_add_u32 v{vRd2}, 0x10000, v{vAo}
    s_barrier
    """)
    ST(False)
    p("ST4_0")
    RD = 64
    OWN = 16
    OWN = 96
    def red_write(tag):
        for w in range(3): p(f"s_cmp_eq_u32 s{sKQ}, {w}\ns_cbranch_scc1 M_RW{tag}{w}")
        for w in (3, 0, 1, 2):
            if w != 3: p.label(f"M_RW{tag}{w}")
            for kk in range(1, 4):
                i = (w + kk) & 3; slot = 3 - kk
                base = (i * 3 + slot) * 8192
                for f in range(8):
                    q = i * 8 + f
                    off = base + f * 1024
                    p(f"ds_write_b128 v{vRd2 if off >= 65536 else vAo}, v[{AC3+4*q}:{AC3+4*q+3}] offset:{off & 0xffff}")
            for c in range(32): p(f"v_mov_b32 v{OWN+c}, v{AC3+w*32+c}")
            if w != 2: p(f"s_branch M_RJ{tag}")
        p.label(f"M_RJ{tag}")
    def red_read(after=None):
        for half in range(2):
            T0 = AC3 + half * 48
            for sl in range(3):
                for ff in range(4):
                    r = T0 + (sl * 4 + ff) * 4
                    p(f"ds_read_b128 v[{r}:{r+3}], v{vT0} offset:{sl*8192 + (half*4+ff)*1024}")
            if half == 0: continue
        for half in range(2):
            T0 = AC3 + half * 48
            for sl in range(3):
                n = 24 - (half * 12 + sl * 4 + 4)
                p(f"s_waitcnt lgkmcnt({min(n, 15)})")
                for c in range(16): p(f"v_add_f32 v{OWN+half*16+c}, v{OWN+half*16+c}, v{T0+sl*16+c}")
            if after: after(half)
    p(f"""
    s_cmp_eq_u32 s{sMH}, s{sKH}
    s_cbranch_scc1 M_KEEP1
    """)
    red_write("S")
    p("s_waitcnt lgkmcnt(0)\nST4_1\ns_barrier\nST4_2")
    p(f"""
    s_lshl_b32 s{sT0}, s2, 2
    s_add_u32 s{sT0}, s{sT0}, s{sKQ}
    s_lshl_b32 s{sT1}, s{sT0}, 13
    s_add_u32 s{sT1}, s{sT1}, {WS_EX}
    v_add_u32 v{vFa}, s{sT1}, v{vAo}
    v_add_u32 v{vFv}, 4096, v{vFa}
    s_lshl_b32 s{sT0}, s{sT0}, 7
    s_add_u32 s{sT0}, s{sT0}, {WS_FLG2}
    v_mov_b32 v{vT2}, s{sT0}
    v_mov_b32 v{vT3}, s{sNON}
    """)
    def sst(half):
        for f in range(4 * half, 4 * half + 4):
            p(f"global_store_dwordx4 v{vFv if f >= 4 else vFa}, v[{OWN+4*f}:{OWN+4*f+3}], s[18:19] offset:{(f&3)*1024} sc1")
    red_read(sst)
    p(f"""
    ST4_3
    s_barrier
    ST4_4
    s_waitcnt vmcnt(0)
    ST4_5
    ST4_6
    ST4_7
    s_mov_b64 exec, 1
    global_store_dword v{vT2}, v{vT3}, s[18:19] sc1
    s_mov_b64 exec, -1
    """)
    if stamp:
        p("s_memrealtime s[98:99]")
        stamp_out(p, 0x3000000)
    p("s_branch K2_END")
    p.label("M_KEEP1")
    p(f"""
    s_barrier
    s_xor_b32 s{sT0}, s2, 128
    s_lshl_b32 s{sT0}, s{sT0}, 2
    s_add_u32 s{sT0}, s{sT0}, s{sKQ}
    s_lshl_b32 s{sT1}, s{sT0}, 13
    s_add_u32 s{sT1}, s{sT1}, {WS_EX}
    v_add_u32 v{vFa}, s{sT1}, v{vAo}
    v_add_u32 v{vFv}, 4096, v{vFa}
    s_lshl_b32 s{sT0}, s{sT0}, 7
    s_add_u32 s{sT0}, s{sT0}, {WS_FLG2}
    v_mov_b32 v{vT2}, s{sT0}
    s_barrier
    """)
    p("ST4_1")
    red_write("K")
    p(f"global_load_dword v{vT3}, v{vT2}, s[18:19] sc1")
    p(f"""
    v_mov_b32 v64, {CNT_B}
    v_mov_b32 v65, 1
    s_waitcnt lgkmcnt(0)
    ST4_2
    s_mov_b64 exec, 1
    ds_add_u32 v64, v65
    s_mov_b64 exec, -1
    s_mov_b32 s73, {SPIN_MAX*16}
M_B4:
    ds_read_b32 v66, v64
    s_waitcnt lgkmcnt(0)
    v_readfirstlane_b32 s{sT0}, v66
    s_cmp_ge_u32 s{sT0}, 8
    s_cbranch_scc1 M_B4_OK
    s_sub_u32 s73, s73, 1
    s_cmp_lg_u32 s73, 0
    s_cbranch_scc1 M_B4
M_B4_OK:
    ST4_3
    """)
    PR = 224
    prl = "\n".join(f"global_load_dwordx4 v[{PR+4*f}:{PR+4*f+3}], v{vFv if f >= 4 else vFa}, s[18:19] offset:{(f&3)*1024} sc1" for f in range(8))
    p(f"""
    s_waitcnt vmcnt(0)
    v_cmp_ne_u32 vcc, s{sNON}, v{vT3}
    s_mov_b32 s{sIT}, 0
    s_cbranch_vccnz M_PRL
    s_mov_b32 s{sIT}, 1
    {prl}
M_PRL:
    """)
    red_read()
    p(f"""
    s_lshl_b32 s{sT0}, s{sRT}, 1
    s_add_u32 s{sT0}, s{sT0}, s{sKH}
    s_lshl_b32 s{sT0}, s{sT0}, 2
    s_add_u32 s{sT0}, s{sT0}, s{sKQ}
    s_lshr_b32 s{sT1}, s{sIDX}, 4
    s_cmp_lg_u32 s{sT0}, s{sT1}
    s_cbranch_scc1 M_H5
    s_mov_b32 s73, {SPIN_MAX}
M_POLL3:
    s_lshl_b32 s{sT0}, s{sCT}, 10
    s_add_u32 s{sT0}, s{sT0}, {WS_YP}
    v_add_u32 v26, s{sT0}, v{vAo}
    """)
    YR = 128
    for q in range(16):
        p(f"global_load_dwordx4 v[{YR+4*q}:{YR+4*q+3}], v26, s[18:19] sc1")
        if q < 15: p(f"v_add_u32 v26, 8192, v26")
    p(f"s_waitcnt vmcnt(0)\nv_mov_b32 v27, 0")
    for q in range(16):
        p(f"v_xor_b32 v{YR+4*q+1}, s{sNON}, v{YR+4*q+1}\nv_xor_b32 v{YR+4*q+3}, s{sNON}, v{YR+4*q+3}")
        p(f"v_or3_b32 v27, v27, v{YR+4*q+1}, v{YR+4*q+3}")
    p(f"""
    v_cmp_ne_u32 vcc, 0, v27
    s_cbranch_vccz M_POLL3_OK
    s_sleep 10
    s_sub_u32 s73, s73, 1
    s_cmp_lg_u32 s73, 0
    s_cbranch_scc1 M_POLL3
M_POLL3_OK:
    s_lshr_b32 s{sT0}, s{sIDX}, 4
    s_lshl_b32 s{sT0}, s{sT0}, 15
    s_lshl_b32 s{sT1}, s{sCT}, 12
    s_add_u32 s{sT0}, s{sT0}, s{sT1}
    s_and_b32 s{sT1}, s{sIDX}, 15
    s_lshl_b32 s{sT1}, s{sT1}, 4
    s_add_u32 s{sT0}, s{sT0}, s{sT1}
    v_lshrrev_b32 v26, 2, v1
    v_lshlrev_b32 v26, 8, v26
    v_and_b32 v27, 3, v1
    v_lshl_add_u32 v26, v27, 2, v26
    v_add_u32 v26, s{sT0}, v26
    global_load_dword v24, v26, s[18:19] sc1
    s_and_b32 s{sT0}, s{sKEY}, 0xffff0000
    s_ashr_i32 s{sT1}, s{sT0}, 31
    s_not_b32 s{sT1}, s{sT1}
    s_or_b32 s{sT1}, s{sT1}, 0x80000000
    s_xor_b32 s{sT0}, s{sT0}, s{sT1}
    s_and_b32 s{sT0}, s{sT0}, 0xffff0000
    v_mov_b32 v25, s{sT0}
    v_mul_f32 v25, 0xbfb8aa3b, v25
    v_exp_f32 v25, v25
    v_add_f32 v25, 1.0, v25
    v_rcp_f32 v25, v25
    """)
    rbf(p, 25)
    p(f"v_mov_b32 v16, v{YR}\nv_mov_b32 v17, v{YR+2}")
    for q in range(1, 16):
        p(f"v_add_f32 v16, v16, v{YR+4*q}\nv_add_f32 v17, v17, v{YR+4*q+2}")
    p("s_waitcnt vmcnt(0)\nv_lshlrev_b32 v18, 16, v24\nv_and_b32 v19, 0xffff0000, v24")
    for c in range(2):
        rbf(p, 16 + c)
        p(f"v_mul_f32 v{16+c}, v{16+c}, v25")
        rbf(p, 16 + c)
        p(f"v_add_f32 v{16+c}, v{16+c}, v{18+c}")
        rbf(p, 16 + c)
        silu(p, 16 + c, 16 + c, 20 + c)
    p(f"""
    v_cvt_pk_bf16_f32 v16, v16, v17
    v_lshlrev_b32 v26, 2, v1
    v_add_u32 v26, {L_H3 + 4096}, v26
    ds_write_b32 v26, v16
    v_lshrrev_b32 v27, 4, v1
    v_lshlrev_b32 v27, 4, v27
    v_add_u32 v27, {L_H3 + 4096}, v27
    v_and_b32 v26, 15, v1
    s_and_b32 s{sT0}, s{sIDX}, 15
    v_cmp_eq_u32 vcc, s{sT0}, v26
    s_waitcnt lgkmcnt(0)
    """)
    for u in range(4): p(f"ds_read_b128 v[{64+4*u}:{67+4*u}], v27 offset:{u*64}")
    p("s_waitcnt lgkmcnt(0)")
    for c in range(16): p(f"v_cndmask_b32 v{GP+c}, v{GP+c}, v{64+c}, vcc")
    p.label("M_H5")
    XU = 128; GU_ = 160
    for j in range(16):
        p(f"v_lshlrev_b32 v{XU+2*j}, 16, v{XP+j}\nv_and_b32 v{XU+2*j+1}, 0xffff0000, v{XP+j}")
        p(f"v_lshlrev_b32 v{GU_+2*j}, 16, v{GP+j}\nv_and_b32 v{GU_+2*j+1}, 0xffff0000, v{GP+j}")
    p(f"""
    ST4_4
    s_cmp_lg_u32 s{sIT}, 0
    s_cbranch_scc1 M_POLL4_DONE
    s_mov_b32 s73, {SPIN_MAX}
M_POLL4:
    global_load_dword v{vT3}, v{vT2}, s[18:19] sc1
    s_waitcnt vmcnt(0)
    v_cmp_ne_u32 vcc, s{sNON}, v{vT3}
    s_cbranch_vccz M_POLL4_OK
    s_sleep 1
    s_sub_u32 s73, s73, 1
    s_cmp_lg_u32 s73, 0
    s_cbranch_scc1 M_POLL4
M_POLL4_OK:
    {prl}
M_POLL4_DONE:
    ST4_5
    """)
    for u in range(4):
        p(f"s_waitcnt vmcnt({6 - 2*u + u})")
        for c in range(8): p(f"v_add_f32 v{OWN+8*u+c}, v{OWN+8*u+c}, v{PR+8*u+c}")
        for c in range(8): p(f"v_fmac_f32 v{XU+8*u+c}, v{OWN+8*u+c}, v{GU_+8*u+c}")
        o = 16 + u * 4
        for j in range(4): p(f"v_cvt_pk_bf16_f32 v{o+j}, v{XU+u*8+2*j}, v{XU+u*8+2*j+1}")
        p(f"global_store_dwordx4 v{vOut}, v[{o}:{o+3}], s[78:79] offset:{u*64}")
    if DBGT[0] and stamp:
        p(f"""
    s_waitcnt vmcnt(0)
    s_memrealtime s[98:99]
    s_memtime s[62:63]
    s_lshl_b32 s60, s2, 3
    s_add_u32 s60, s60, s{sW}
    s_cmp_lg_u32 s60, {37*8+4}
    s_cbranch_scc1 M_DBGE
    s_waitcnt lgkmcnt(0)
    v_mov_b32 v16, 0
    """)
        for i in range(7):
            p(f"s_sub_u32 s60, s{82+2*i}, s{80+2*i}\nv_mov_b32 v17, s60\nglobal_store_dword v16, v17, s[66:67] offset:{8+4*i}")
        p("s_sub_u32 s60, s62, s94\nv_mov_b32 v17, s60\nglobal_store_dword v16, v17, s[66:67] offset:36")
        p("s_sub_u32 s60, s98, s96\nv_mov_b32 v17, s60\nglobal_store_dword v16, v17, s[66:67] offset:40")
        p.label("M_DBGE")
    elif DBGT[0]:
        p(f"""
    s_waitcnt vmcnt(0)
    s_memrealtime s[98:99]
    s_waitcnt lgkmcnt(0)
    v_mov_b32 v16, 4
    v_mov_b32 v17, s98
    s_mov_b64 exec, 1
    global_atomic_umax v16, v17, s[66:67] sc1
    s_mov_b64 exec, -1
    """)
    if stamp:
        p("ST4_6\ns_waitcnt vmcnt(0)\nST4_7\ns_memrealtime s[98:99]")
        stamp_out(p, 0x3000000)

def stamp_out(p, base):
    p(f"""
    s_waitcnt lgkmcnt(0)
    s_lshl_b32 s{sT0}, s2, 3
    s_add_u32 s{sT0}, s{sT0}, s{sW}
    s_lshl_b32 s{sT0}, s{sT0}, 6
    s_add_u32 s{sT0}, s{sT0}, {base}
    v_mov_b32 v{vT0}, s{sT0}
    """)
    for i in range(10):
        p(f"v_mov_b32 v{vT1}, s{80+2*i}\nglobal_store_dword v{vT0}, v{vT1}, s[18:19] offset:{4*i}")

def gen_mega(ffn=True, slow=True, stamp=False, dbg=()):
    p = Prog()
    stamps = []
    mode0 = 'st0' in dbg or 'st1' in dbg
    MODE0[0] = mode0
    DBGT[0] = 'dbgt' in dbg
    NOEW[0] = 'noew' in dbg
    MODE3[0] = 'st3' in dbg
    def ST0():
        if stamp and mode0 and 'st1' not in dbg:
            i = len(stamps); stamps.append(i)
            p(f"s_memtime s[{80+2*i}:{81+2*i}]")
    global _ST0
    _ST0 = ST0
    def ST(wait=True):
        if stamp and mode0 and len(stamps) > 0:
            if wait: p("s_waitcnt lgkmcnt(0)")
            return
        if stamp:
            i = len(stamps); stamps.append(i)
            if not (MODE3[0] and i == 6): p(f"s_memtime s[{80+2*i}:{81+2*i}]")
            if i == 0: p("s_memrealtime s[96:97]")
            if wait: p("s_waitcnt lgkmcnt(0)")
    name = KNAME
    kernel_header(p, name)
    p(f"""
    s_cmp_ge_u32 s2, 256
    s_cbranch_scc1 K2_END
    s_load_dwordx2 s[74:75], s[0:1], 0
    s_load_dwordx2 s[76:77], s[0:1], 48
    s_load_dwordx4 s[8:11], s[0:1], 24
    s_load_dwordx2 s[18:19], s[0:1], 96
    s_load_dwordx4 s[4:7], s[0:1], 8
    s_load_dwordx4 s[12:15], s[0:1], 56
    s_load_dwordx2 s[16:17], s[0:1], 72
    s_load_dwordx2 s[78:79], s[0:1], 80
    s_load_dwordx2 s[66:67], s[0:1], 88
    s_getpc_b64 s[{sPC}:{sPC+1}]
    v_lshrrev_b32 v{vT2}, 6, v0
    v_and_b32 v1, 63, v0
    v_readfirstlane_b32 s{sW}, v{vT2}
    s_and_b32 s{sT0}, s2, 7
    s_lshr_b32 s{sT1}, s2, 3
    s_lshr_b32 s{sG}, s{sT0}, 1
    s_and_b32 s{sT0}, s{sT0}, 1
    s_lshl_b32 s{sT0}, s{sT0}, 2
    s_lshr_b32 s{sT2}, s{sT1}, 3
    s_add_u32 s{sRB}, s{sT0}, s{sT2}
    s_and_b32 s{sT1}, s{sT1}, 7
    s_lshl_b32 s{sHEAD}, s{sG}, 3
    s_add_u32 s{sHEAD}, s{sHEAD}, s{sT1}
    s_lshl_b32 s{sFL}, s{sRB}, 5
    s_add_u32 s{sFL}, s{sFL}, s{sHEAD}
    """)
    ST(False)
    p(f"""
    v_lshlrev_b32 v{E+1}, 7, v0
    v_min_u32 v{E+1}, CODESIZE, v{E+1}
    global_load_dword v{E}, v{E+1}, s[{sPC}:{sPC+1}]
    v_lshrrev_b32 v{vT0}, 4, v1
    v_and_b32 v{vT1}, 3, v1
    v_lshlrev_b32 v{vT1}, 4, v{vT1}
    v_lshl_add_u32 v{vT1}, v{vT0}, 6, v{vT1}
    v_bfe_u32 v{vT3}, v1, 2, 2
    v_lshl_add_u32 v{vDq}, v{vT3}, 13, v{vT1}
    v_and_b32 v{vDq2}, 1, v{vT2}
    v_lshlrev_b32 v{vDq2}, 5, v{vDq2}
    v_xor_b32 v{vDq}, v{vDq}, v{vDq2}
    v_add_u32 v{vDq2}, {32768-1024}, v{vDq}
    v_lshrrev_b32 v{vXB1}, 3, v1
    v_and_b32 v{vXD}, 7, v1
    v_xor_b32 v{vXD}, v{vXD}, v{vT0}
    v_lshlrev_b32 v{vXD}, 4, v{vXD}
    v_lshl_add_u32 v{vXD}, v{vXB1}, 11, v{vXD}
    v_xor_b32 v{vXD+1}, 64, v{vXD}
    v_add_u32 v{vXD+1}, {16384-1024}, v{vXD+1}
    v_add_u32 v{vXD+2}, {32768-2048}, v{vXD}
    v_add_u32 v{vXD+3}, {32768-2048}, v{vXD+1}
    s_lshl_b32 s{sXM}, s{sW}, 12
    s_add_u32 s{sXM}, s{sXM}, {L_X}
    s_lshl_b32 s{sWq}, s{sW}, 16
    s_lshl_b32 s{sM}, s{sW}, 11
    s_mov_b32 s{sB}, 0
    s_lshl_b32 s{sT0}, s{sHEAD}, 8
    s_lshl_b32 s{sT1}, s{sRB}, 3
    s_add_u32 s{sT1}, s{sT1}, s{sW}
    s_lshl_b32 s{sT1}, s{sT1}, 16
    s_mov_b32 s{SRD_WQ+3}, 0x20000
    s_sub_u32 s{SRD_WQ+2}, 0x800000, s{sT0}
    s_mov_b32 s{SRD_XN+2}, 0x10000
    s_mov_b32 s{SRD_XN+3}, 0x20000
    v_lshlrev_b32 v{E+2}, 4, v1
    v_lshl_add_u32 v{vLXA}, v{vT2}, 11, v{E+2}
    s_lshl_b32 s{sT2}, s{sFL}, 14
    v_add_u32 v{vLXA}, s{sT2}, v{vLXA}
    s_memrealtime s[{sT2}:{sT3}]
    s_waitcnt lgkmcnt(0)
    s_add_u32 s{SRD_WQ}, s8, s{sT0}
    s_addc_u32 s{SRD_WQ+1}, s9, 0
    s_add_u32 s{SRD_XN}, s74, s{sT1}
    s_addc_u32 s{SRD_XN+1}, s75, 0
    """)
    def dma_wq(slot, e):
        if e == 0:
            return f"""s_add_u32 m0, s{sM}, {slot*16384}
    s_nop 0
    buffer_load_dwordx4 v{vDq}, s[{SRD_WQ}:{SRD_WQ+3}], s{sWq} offen lds"""
        return f"""s_add_u32 m0, s{sM}, {slot*16384}
    s_nop 0
    buffer_load_dwordx4 v{vDq2}, s[{SRD_WQ}:{SRD_WQ+3}], s{sWq} offen offset:1024 lds
    s_add_u32 s{sWq}, s{sWq}, 524288"""
    def load_b(buf, k):
        t = ""
        if k == 0: t = f"s_add_u32 m0, s{sXM}, {(buf & 1)*32768}\ns_nop 0\n"
        t += f"buffer_load_dwordx4 v{vXD+k}, s[{SRD_XN}:{SRD_XN+3}], s{sB} offen offset:{k*1024} lds"
        if k == 3: t += f"\ns_add_u32 s{sB}, s{sB}, 128"
        return t
    lq = Q("lgkmcnt", 15); vq = Q("vmcnt", 63)
    vq.issue(("CP", 0))
    def J(tag, code): p(code); vq.issue(tag)
    LXj = lambda n: (("LX", n), f"global_load_dwordx4 v[{LN_X+4*n}:{LN_X+4*n+3}], v{vLXA}, s[74:75] offset:{n*1024}")
    CSj = lambda n: (("CS", n), f"s_mov_b32 s{sT3}, {n*0x200000}\nbuffer_load_dwordx4 v[{CSR+4*n}:{CSR+4*n+3}], v{vCSA}, s[{SRD_WQ}:{SRD_WQ+3}], s{sT3} offen")
    WRj = lambda n: (("LX", 2 + n), f"global_load_dwordx4 v[{LN_W+4*n}:{LN_W+4*n+3}], v{E+2}, s[76:77] offset:{n*1024}")
    J(*LXj(0)); J(*LXj(1)); J(*WRj(0)); J(*WRj(1))
    J(("W", 0, 0), dma_wq(0, 0)); J(("W", 0, 1), dma_wq(0, 1))
    for kk in range(4): J(("X", 0, kk), load_b(0, kk))
    J(("W", 1, 0), dma_wq(1, 0)); J(("W", 1, 1), dma_wq(1, 1))
    ST0()
    p(f"s_mov_b32 s{sKEY}, s{sT2}\ns_mov_b32 s{sIDX}, s{sT0}")
    partA1, partA2, partB = ln_segments(lq, vq, p)
    for it_ in partA1 + partB:
        if callable(it_): it_()
        else: p(it_)
    p(f"s_mov_b32 s{sT2}, s{sKEY}\ns_mov_b32 s{sT0}, s{sIDX}")
    ST0()
    for kk in range(4): J(("X", 1, kk), load_b(1, kk))
    J(("W", 2, 0), dma_wq(2, 0)); J(("W", 2, 1), dma_wq(2, 1))
    p(f"""
    s_or_b32 s{sT3}, s2, s{sW}
    s_cmp_lg_u32 s{sT3}, 0
    s_cbranch_scc1 M_NONZ
    s_or_b32 s{sT2}, s{sT2}, 1
    v_mov_b32 v{E+2}, 0
    v_mov_b32 v{E+3}, s{sT2}
    s_mov_b64 exec, 1
    global_store_dword v{E+2}, v{E+3}, s[66:67] sc1
    s_mov_b64 exec, -1
M_NONZ:
    v_bfe_u32 v{E+1}, v0, 4, 3
    v_lshlrev_b32 v{E+1}, 13, v{E+1}
    v_lshrrev_b32 v{vNON}, 7, v0
    v_lshl_add_u32 v{E+1}, v{vNON}, 19, v{E+1}
    v_and_b32 v{vNON}, 15, v0
    v_lshl_add_u32 v{E+1}, v{vNON}, 4, v{E+1}
    s_lshl_b32 s{sT2}, s{sRB}, 16
    v_add_u32 v{vCSA}, s{sT2}, v{E+1}
    """)
    J(*CSj(1))
    ST0()
    p(f"""
    v_bfe_u32 v{vXB1}, v1, 1, 3
    v_xor_b32 v{vXB1}, v{vXB1}, v{vT0}
    v_lshlrev_b32 v{vXB1}, 4, v{vXB1}
    v_and_b32 v{vXB0}, 15, v1
    v_lshl_add_u32 v{vXB0}, v{vXB0}, 7, v{vXB1}
    v_add_u32 v{vXB0}, s{sXM}, v{vXB0}
    v_xor_b32 v{vXB1}, 64, v{vXB0}
    v_lshl_add_u32 v{vDv}, v{vT3}, 8, v{vT1}
    v_mul_u32_u24 v{vDf}, {8*7168}, v{vT0}
    v_and_b32 v{vT1}, 15, v1
    v_lshl_add_u32 v{vDf}, v{vT1}, 4, v{vDf}
    v_and_b32 v{vT0}, 3, v1
    v_lshrrev_b32 v{vT1}, 2, v1
    v_lshlrev_b32 v{vT1}, 4, v{vT1}
    v_lshl_add_u32 v{vDk}, v{vT0}, 8, v{vT1}
    v_lshrrev_b32 v{vT1}, 4, v1
    v_lshlrev_b32 v{vA0}, 11, v{vT1}
    v_lshl_add_u32 v{vA0}, v{vT3}, 6, v{vA0}
    v_lshl_add_u32 v{vA0}, v{vT0}, 3, v{vA0}
    v_and_b32 v{vT1}, 1, v{vT1}
    v_lshl_add_u32 v{vA0}, v{vT1}, 5, v{vA0}
    v_xor_b32 v{vA1}, 32, v{vA0}
    v_bfe_u32 v{vT0}, v1, 1, 1
    v_and_b32 v{vT2}, 1, v1
    v_lshl_add_u32 v{vT0}, v{vT2}, 1, v{vT0}
    v_lshl_add_u32 v{vT0}, v{vT1}, 2, v{vT0}
    v_lshlrev_b32 v{vT0}, 3, v{vT0}
    v_lshl_add_u32 v{vT0}, v{vT3}, 6, v{vT0}
    v_lshrrev_b32 v{vT1}, 5, v1
    v_lshl_add_u32 v{vVa}, v{vT1}, 10, v{vT0}
    v_add_u32 v{vVb}, {L_X}, v{vVa}
    v_bfe_u32 v{vT0}, v1, 2, 3
    v_mul_u32_u24 v{vT0}, 1088, v{vT0}
    v_lshl_add_u32 v{vT0}, v{vT1}, 6, v{vT0}
    v_and_b32 v{vKb}, 3, v1
    v_lshl_add_u32 v{vKb}, v{vKb}, 4, v{vT0}
    v_add_u32 v{vKh}, {L_HI}, v{vKb}
    v_add_u32 v{vKb}, {L_X}, v{vKb}
    v_bfe_u32 v{vT0}, v1, 4, 1
    v_lshlrev_b32 v{vT0}, 10, v{vT0}
    v_lshl_add_u32 v{vT0}, v{vT1}, 8, v{vT0}
    v_and_b32 v{vO}, 15, v1
    v_lshl_add_u32 v{vO}, v{vO}, 4, v{vT0}
    s_lshl_b32 s{sT0}, s{sG}, 19
    s_add_u32 s{sT0}, s{sT0}, 393216
    s_add_u32 s{SRD_K}, s4, s{sT0}
    s_addc_u32 s{SRD_K+1}, s5, 0
    s_mov_b32 s{SRD_K+2}, 0x20000
    s_mov_b32 s{SRD_K+3}, 0x20000
    s_add_u32 s{SRD_V}, s6, s{sT0}
    s_addc_u32 s{SRD_V+1}, s7, 0
    s_mov_b32 s{SRD_V+2}, 0x20000
    s_mov_b32 s{SRD_V+3}, 0x20000
    s_add_u32 s{SRD_OT}, s18, {WS_OT}
    s_addc_u32 s{SRD_OT+1}, s19, 0
    s_mov_b32 s{SRD_OT+2}, 0x1000000
    s_mov_b32 s{SRD_OT+3}, 0x20000
    s_mul_i32 s{sKw}, s{sW}, 1088
    s_lshl_b32 s{sVw}, s{sW}, 10
    s_mov_b32 s{sKsrc}, s{sVw}
    s_mov_b32 s{sVsrc}, s{sVw}
    s_mov_b32 s{sN}, 0
    s_mov_b32 s{sPL}, 0x05040100
    s_mov_b32 s{sPH}, 0x07060302
    s_lshr_b32 s{sT0}, s2, 2
    s_and_b32 s{sT1}, s2, 3
    s_cmp_ge_u32 s{sT0}, 28
    s_cselect_b32 s{SRD_F}, s14, s12
    s_cselect_b32 s{SRD_F+1}, s15, s13
    s_cselect_b32 s{sT2}, 28, 0
    s_sub_u32 s{sT2}, s{sT0}, s{sT2}
    s_lshl_b32 s{sT2}, s{sT2}, 8
    s_mul_i32 s{sT3}, s{sT1}, {256*7168}
    s_add_u32 s{sT2}, s{sT2}, s{sT3}
    s_add_u32 s{SRD_F}, s{SRD_F}, s{sT2}
    s_addc_u32 s{SRD_F+1}, s{SRD_F+1}, 0
    s_cmp_lt_u32 s2, 224
    s_cselect_b32 s{SRD_F+2}, {255*7168+256}, 0
    s_mov_b32 s{SRD_F+3}, 0x20000
    s_mul_i32 s{sFsrc}, s{sW}, {32*7168}
    s_lshl_b32 s{sOT}, s{sHEAD}, 19
    s_lshl_b32 s{sT1}, s{sRB}, 14
    s_add_u32 s{sOT}, s{sOT}, s{sT1}
    s_lshl_b32 s{sT1}, s{sW}, 11
    s_add_u32 s{sOT}, s{sOT}, s{sT1}
    """)
    ST0()
    vq.wait(p, ("W", 1, 1)); lq.wait(p, ("LW", 2))
    ST0()
    p("s_barrier")
    ST0()
    if 'st1' in dbg: p("s_memtime s[80:81]")
    ST()
    def a_read(slot, T, u, t):
        r = AF + (T & 3) * 8 + u * 4 + t * 2
        p(f"ds_read_b64_tr_b16 v[{r}:{r+1}], v{vA1 if T & 1 else vA0} offset:{slot*16384 + u*8192 + t*1024 + (T>>1)*256}")
        lq.issue(("A", T & 3, u, t))
    def job_k(t):
        return (("K", t), f"""s_add_u32 m0, s{sKw}, {Kabs(t)}
    s_nop 0
    buffer_load_dwordx4 v{vDk}, s[{SRD_K}:{SRD_K+3}], s{sKsrc} offen lds
    s_add_u32 s{sKsrc}, s{sKsrc}, 8192""")
    def job_v(t):
        return (("V", t), f"""s_add_u32 m0, s{sVw}, {Vabs(t)}
    s_nop 0
    buffer_load_dwordx4 v{vDv}, s[{SRD_V}:{SRD_V+3}], s{sVsrc} offen lds
    s_add_u32 s{sVsrc}, s{sVsrc}, 8192""")
    def job_f(i):
        return (("F", i), f"""buffer_load_dwordx4 v[{FR+4*i}:{FR+4*i+3}], v{vDf}, s[{SRD_F}:{SRD_F+3}], s{sFsrc} offen
    s_add_u32 s{sFsrc}, s{sFsrc}, 7168""")
    def run(job):
        if not job: return
        if isinstance(job, str): p(job); return
        if callable(job): job(); return
        tag, code = job
        p(code); vq.issue(tag)
    def k_read(t, j):
        if 'nok' in dbg: return
        r = KF + (j % D) * 4
        ka = Kabs(t); kb, ko = (vKh, ka - L_HI) if ka >= L_HI else (vKb, ka - L_X)
        p(f"ds_read_b128 v[{r}:{r+3}], v{kb} offset:{ko + j*128}")
        lq.issue(("K", j % D))
    def v_read(t, i):
        if 'nov' in dbg: return
        ks, dt = i >> 2, i & 3
        r = VF + (i % D) * 4
        o = Vabs(t); va = vVa
        if o >= L_X: o -= L_X; va = vVb
        p(f"ds_read_b64_tr_b16 v[{r}:{r+1}], v{va} offset:{o + ks*4096 + dt*256}")
        lq.issue(("Va", i % D))
        p(f"ds_read_b64_tr_b16 v[{r+2}:{r+3}], v{va} offset:{o + ks*4096 + 2048 + dt*256}")
        lq.issue(("V", i % D))
    LA = 2
    def b_read(buf, k):
        ct, u = k >> 1, k & 1
        r = BRr(buf, k)
        p(f"ds_read_b128 v[{r}:{r+3}], v{vXB1 if u else vXB0} offset:{(buf & 1)*32768 + ct*2048}")
        lq.issue(("B", buf & 1, k))
    for T in range(LA):
        for u in range(2):
            for t in range(2): a_read(0, T, u, t)
        b_read(0, 2 * T); b_read(0, 2 * T + 1)
    fill = []
    FILLRATE = 1
    CSSTART = 4
    for d_ in dbg:
        if d_.startswith('fr'): FILLRATE = float(d_[2:])
    fillacc = [0.0]
    barpassed = [0]
    def stage(slot, vm, last=False, xw="s_waitcnt vmcnt(8)", first=False, vm2=()):
        for T in range(8):
            a = AF + (T & 3) * 8
            Tn = T + LA; ns = slot
            if Tn >= 8: Tn -= 8; ns = (slot + 1) & 3
            rd = not (last and T + LA >= 8)
            k = 0
            for ct in range(2):
                for u in range(2):
                    d = QA + (T * 2 + ct) * 4; b = BRr(slot, ct * 2 + u)
                    lq.wait(p, ("A", T & 3, u, 1), ("B", slot & 1, ct * 2 + u))
                    cc = "0" if (first and u == 0) else f"v[{d}:{d+3}]"
                    p(f"v_mfma_f32_16x16x32_bf16 v[{d}:{d+3}], v[{a+4*u}:{a+4*u+3}], v[{b}:{b+3}], {cc}")
                    if rd: a_read(ns, Tn, k >> 1, k & 1)
                    fillacc[0] += FILLRATE
                    while fillacc[0] >= 1.0:
                        fillacc[0] -= 1.0
                        if fill and fill[0] == "BAR":
                            if barpassed[0] >= 1: fill.pop(0)
                        if fill and fill[0] != "BAR": run(fill.pop(0))
                    if k == 1 and T < len(vm2): run(vm2[T])
                    k += 1
            if T < len(vm): run(vm[T])
            if not last:
                if T == 6:
                    run(xw); b_read(slot + 1, 0); b_read(slot + 1, 1)
                if T == 7:
                    b_read(slot + 1, 2); b_read(slot + 1, 3)
    def std_vm(slot):
        n = (slot + 3) & 3
        return [load_b(slot, 0), load_b(slot, 1), load_b(slot, 2), load_b(slot, 3), dma_wq(n, 0), dma_wq(n, 1)]
    xwait = lambda tag: (lambda: vq.wait(p, tag))
    def tagged(i):
        sv = std_vm(i & 3)
        return [(("X", i + 2, kk), sv[kk]) for kk in range(4)] + [(("W", i + 3, 0), sv[4]), (("W", i + 3, 1), sv[5])]
    kvpf = (("KP", 0), f"""s_lshr_b32 s{sT2}, s{sFL}, 6
    s_lshl_b32 s{sT2}, s{sT2}, 19
    s_and_b32 s{sT3}, s{sFL}, 63
    s_lshl_b32 s{sT3}, s{sT3}, 11
    s_add_u32 s{sT2}, s{sT2}, s{sT3}
    s_add_u32 s{sT2}, s{sT2}, 393216
    v_lshlrev_b32 v{E+3}, 2, v0
    v_add_u32 v{E+3}, s{sT2}, v{E+3}
    global_load_dword v{E}, v{E+3}, s[4:5]""")
    kvpf2 = (("KP", 1), f"global_load_dword v{E}, v{E+3}, s[6:7]")
    nonld = (("NN", 0), f"v_mov_b32 v{E+2}, 0\nglobal_load_dword v{vNON}, v{E+2}, s[66:67] sc1")
    def nonchk():
        vq.wait(p, ("NN", 0))
        p(f"""
    v_readfirstlane_b32 s{sNON}, v{vNON}
    s_cmp_lg_u32 s{sNON}, 0
    s_cbranch_scc1 M_NSPIN_OK
    v_mov_b32 v{E+2}, 0
    """)
        get_nonce(p, "M_NSPIN", E + 2, vNON)
    seg1, seg2 = pub_segments(lq, vq, p)
    extra1 = {0: [CSj(0)], 1: [CSj(2), kvpf], 2: [CSj(3), kvpf2], 3: [nonld], 5: [nonchk]}
    state = "X"
    for i in range(12):
        ex = list(extra1.get(i, []))
        if i == 1: fill.extend(seg2)
        if i == CSSTART: assert not fill; fill.extend(partA2); state = "A"
        stage(i & 3, tagged(i) + ex, xw=xwait(("X", i + 1, 3)), first=(i == 0))
        vq.wait(p, ("W", i + 2, 1))
        if state == "A" and not fill:
            lq.wait(p, ("LW", 5)); state = "B"; fill.extend(seg1); print("colsum done at stage", i)
        elif state == "B" and not fill:
            state = "done"; print("pub done at stage", i)
        p("s_barrier")
        if 'st1' in dbg and i in (2, 4, 7, 9, 11):
            n_ = (2, 4, 7, 9, 11).index(i) + 1
            p(f"s_memtime s[{80+2*n_}:{81+2*n_}]\ns_waitcnt lgkmcnt(0)")
    assert state == "done" and not fill, (state, len(fill))
    sv = std_vm(0)
    stcode = f"""s_lshl_b32 s{sT0}, s{sRB}, 3
    s_add_u32 s{sT0}, s{sT0}, s{sW}
    s_lshl_b32 s{sT0}, s{sT0}, 8
    s_add_u32 s{sT0}, s{sT0}, {WS_ST}
    v_and_b32 v{vT0}, 15, v1
    v_lshlrev_b32 v{vT0}, 3, v{vT0}
    v_add_u32 v{vT0}, s{sT0}, v{vT0}
    global_load_dwordx2 v[250:251], v{vT0}, s[18:19] sc1
    global_load_dwordx2 v[252:253], v{vT0}, s[18:19] offset:128 sc1
    s_lshl_b32 s{sT0}, s{sHEAD}, 13
    s_lshl_b32 s{sT1}, s{sW}, 7
    s_add_u32 s{sT0}, s{sT0}, s{sT1}
    s_add_u32 s{sT0}, s{sT0}, {WS_CS}
    v_lshrrev_b32 v{vT1}, 3, v1
    v_lshlrev_b32 v{vT1}, 10, v{vT1}
    v_and_b32 v{vT2}, 7, v1
    v_lshl_add_u32 v{vT1}, v{vT2}, 4, v{vT1}
    v_add_u32 v{vT1}, s{sT0}, v{vT1}
    global_load_dwordx4 v[{E}:{E+3}], v{vT1}, s[18:19] sc1"""
    stchk = f"""v_xor_b32 v{vT0}, s{sNON}, v251
    v_xor_b32 v{vT1}, s{sNON}, v253
    v_xor_b32 v{vT2}, s{sNON}, v{E+1}
    v_xor_b32 v{vT3}, s{sNON}, v{E+3}
    v_or3_b32 v{vT0}, v{vT0}, v{vT1}, v{vT2}
    v_or_b32 v{vT0}, v{vT0}, v{vT3}
    v_cmp_ne_u32 vcc, 0, v{vT0}"""
    def stld():
        p(stcode); vq.issue(("ST", 0)); vq.issue(("ST", 1)); vq.issue(("ST", 2))
    def stuse():
        vq.wait(p, ("ST", 2))
        p(stchk)
        p(f"s_mov_b32 s73, {SPIN_MAX}\ns_cbranch_vccnz M_SSPIN")
        p.label("M_SSPIN_RET")
        for c in (E, E + 2): p(f"v_add_f32_dpp v{c}, v{c}, v{c} row_ror:8 row_mask:0xf bank_mask:0xf")
        for sw in ("v_permlane16_swap_b32", "v_permlane32_swap_b32"):
            p(f"v_mov_b32 v{E+1}, v{E}\nv_mov_b32 v{E+3}, v{E+2}")
            p(f"{sw} v{E}, v{E+1}\n{sw} v{E+2}, v{E+3}")
            p(f"v_add_f32 v{E}, v{E}, v{E+1}\nv_add_f32 v{E+2}, v{E+2}, v{E+3}")
        p(f"""
    v_mov_b32 v{E+1}, v{E+2}
    v_and_b32 v{vT0}, 7, v1
    v_lshlrev_b32 v{vT0}, 3, v{vT0}
    s_lshl_b32 s{sT0}, s{sW}, 6
    s_add_u32 s{sT0}, s{sT0}, {L_FP}
    v_add_u32 v{vT0}, s{sT0}, v{vT0}
    ds_write_b64 v{vT0}, v[{E}:{E+1}]
    v_and_b32 v251, 0xffff0000, v250
    v_and_b32 v253, 0xffff0000, v252
    v_rcp_f32 v251, v251
    v_rcp_f32 v253, v253
    v_lshlrev_b32 v250, 16, v250
    v_lshlrev_b32 v252, 16, v252
    v_mul_f32 v251, {fbits(QSCALE)}, v251
    v_mul_f32 v253, {fbits(QSCALE)}, v253
    """)
        lq.issue(("CSW", 0))
    stage(0, tagged(12) + [stld, job_k(0)], xw=xwait(("X", 13, 3)))
    vq.wait(p, ("W", 14, 1)); p("s_barrier")
    stage(1, tagged(13)[:4] + [job_k(1), job_k(2)], xw=xwait(("X", 14, 3)))
    vq.wait(p, ("W", 15, 1)); lq.wait(p, ("B", 0, 3)); p("s_barrier")
    if 'st1' in dbg: p("s_memtime s[92:93]\ns_waitcnt lgkmcnt(0)")
    stage(2, [job_k(3), job_v(0), job_v(1), None, stuse], xw=xwait(("X", 15, 3)))
    vq.wait(p, ("K", 1)); lq.wait(p, ("CSW", 0), ("B", 1, 3)); p("s_barrier")
    stage(3, [job_k(4), job_k(5), job_v(2), job_k(6)], last=True)
    if 'st1' in dbg: p("s_memtime s[94:95]\ns_waitcnt lgkmcnt(0)")
    ST()
    if stamp: lq.q = []
    CSV = 212
    p(f"""
    v_lshrrev_b32 v{vT0}, 4, v1
    v_lshlrev_b32 v{vT0}, 4, v{vT0}
    v_add_u32 v{vT0}, {L_FP}, v{vT0}
    """)
    for T in range(8):
        p(f"ds_read_b128 v[{CSV+4*T}:{CSV+4*T+3}], v{vT0} offset:{T*64}"); lq.issue(("CS", T))
    for j in range(D): k_read(0, j)
    for T in range(8):
        lq.wait(p, ("CS", T))
        for ct in range(2):
            a = QA + (T * 2 + ct) * 4
            for r in range(4): p(f"v_fma_f32 v{a+r}, -v{250+2*ct}, v{CSV+4*T+r}, v{a+r}")
            for r in range(4): p(f"v_mul_f32 v{a+r}, v{251+2*ct}, v{a+r}")
        for ct in range(2):
            a = QA + (T * 2 + ct) * 4
            for k in range(2): p(f"v_cvt_pk_bf16_f32 v{QP + 4*T + 2*ct + k}, v{a+2*k}, v{a+2*k+1}")
        if T > 0:
            for k in range(2): p(f"v_permlane16_swap_b32 v{QP + 4*(T-1) + k}, v{QP + 4*(T-1) + 2 + k}")
    for k in range(2): p(f"v_permlane16_swap_b32 v{QP + 28 + k}, v{QP + 30 + k}")
    def qk(j, sbuf, cinit):
        lq.wait(p, ("K", j % D))
        k = KF + (j % D) * 4; q = QP + 4 * j; d = S + 16 * sbuf
        c = cinit if j == 0 else f"v[{d}:{d+15}]"
        p(f"v_mfma_f32_32x32x16_bf16 v[{d}:{d+15}], v[{k}:{k+3}], v[{q}:{q+3}], {c}")
    def pv(i, pbuf, first=False):
        lq.wait(p, ("V", i % D))
        ks, dt = i >> 2, i & 3
        v = VF + (i % D) * 4; b = P + 8 * pbuf + 4 * ks; d = ACC + 16 * dt
        cc = "0" if (first and ks == 0) else f"v[{d}:{d+15}]"
        p(f"v_mfma_f32_32x32x16_bf16 v[{d}:{d+15}], v[{v}:{v+3}], v[{b}:{b+3}], {cc}")
    for j in range(8):
        qk(j, 0, "0")
        k_read(0 if j + D < 8 else 1, (j + D) % 8)
    vq.wait(p, ("K", 3), ("V", 1)); p("s_barrier")
    p(f"""
    s_cmp_lg_u32 s{sW}, 4
    s_cbranch_scc1 M_NOKEY
    s_lshl_b32 s{sT0}, s{sFL}, 3
    s_add_u32 s{sT0}, s{sT0}, {WS_KEYS}
    v_mov_b32 v{vT0}, s{sT0}
    v_mov_b32 v{FD}, s{sKEY}
    v_mov_b32 v{FD+1}, s{sNON}
    s_mov_b64 exec, 1
    global_store_dwordx2 v{vT0}, v[{FD}:{FD+1}], s[18:19] sc1
    s_mov_b64 exec, -1
M_NOKEY:
    """)
    ST()
    if stamp: lq.q = []
    s0 = S
    p(f"""
    v_max3_f32 v{vT0}, v{s0}, v{s0+1}, v{s0+2}
    v_max3_f32 v{vT1}, v{s0+3}, v{s0+4}, v{s0+5}
    v_max3_f32 v{vT0}, v{vT0}, v{s0+6}, v{s0+7}
    v_max3_f32 v{vT1}, v{vT1}, v{s0+8}, v{s0+9}
    v_max3_f32 v{vT0}, v{vT0}, v{s0+10}, v{s0+11}
    v_max3_f32 v{vT1}, v{vT1}, v{s0+12}, v{s0+13}
    v_max3_f32 v{vT0}, v{vT0}, v{s0+14}, v{s0+15}
    v_max_f32 v{vT0}, v{vT0}, v{vT1}
    v_mov_b32 v{vT1}, v{vT0}
    v_permlane32_swap_b32 v{vT0}, v{vT1}
    v_max_f32 v{vT0}, v{vT0}, v{vT1}
    """)
    for i in range(16): p(f"v_sub_f32 v{NEGM+i}, 0, v{vT0}")
    for i in range(16): p(f"v_sub_f32 v{s0+i}, v{s0+i}, v{vT0}")
    p(f"v_mov_b32 v{vT2}, {L_HI + 2*KSL + 6*1088 + 1024}\nv_mov_b32 v{vT3}, 0")
    p(f"ds_write_b32 v{vT2}, v{vT3}"); lq.issue(("Z", 0))
    p(f"ds_write_b32 v{vT2}, v{vT3} offset:1088"); lq.issue(("Z", 1))
    cold = 'nof' not in dbg
    SRD_P = 68; sPo = 72
    def pf(n):
        if not cold or 'nopf' in dbg: return None
        pre = ""
        if n == 0:
            pre = f"""s_lshl_b32 s{sT0}, s2, 15
    s_add_u32 s{SRD_P}, s10, s{sT0}
    s_addc_u32 s{SRD_P+1}, s11, 0
    s_mov_b32 s{SRD_P+2}, 0x8000
    s_mov_b32 s{SRD_P+3}, 0x20000
    s_mov_b32 s{sPo}, 0
    """
        elif n == 4:
            pre = f"""s_mul_i32 s{sT0}, s2, 28672
    s_add_u32 s{SRD_P}, s16, s{sT0}
    s_addc_u32 s{SRD_P+1}, s17, 0
    s_mov_b32 s{SRD_P+2}, 28672
    s_mov_b32 s{sPo}, 0
    """
        return (("PF", n), pre + f"""s_add_u32 m0, s{sVw}, {VADDR[5]}
    v_lshlrev_b32 v{vT3}, 4, v0
    buffer_load_dwordx4 v{vT3}, s[{SRD_P}:{SRD_P+3}], s{sPo} offen lds
    s_add_u32 s{sPo}, s{sPo}, 8192""")
    flagld = None
    keycode = f"""v_lshlrev_b32 v{vT2}, 5, v1
    v_add_u32 v{vT2}, {WS_KEYS}, v{vT2}
    global_load_dwordx4 v[{FT}:{FT+3}], v{vT2}, s[18:19] sc1
    global_load_dwordx4 v[{FT+4}:{FT+7}], v{vT2}, s[18:19] offset:16 sc1"""
    keychk = f"""v_xor_b32 v{FT+1}, s{sNON}, v{FT+1}
    v_xor_b32 v{FT+3}, s{sNON}, v{FT+3}
    v_xor_b32 v{FT+5}, s{sNON}, v{FT+5}
    v_xor_b32 v{FT+7}, s{sNON}, v{FT+7}
    v_or3_b32 v{FT+1}, v{FT+1}, v{FT+3}, v{FT+5}
    v_or_b32 v{FT+1}, v{FT+1}, v{FT+7}
    v_cmp_ne_u32 vcc, 0, v{FT+1}"""
    def keyld():
        p(keycode); vq.issue(("KY", 0)); vq.issue(("KY", 1))
    def xsel():
        vq.wait(p, ("KY", 1))
        p(keychk)
        p(f"s_mov_b32 s73, {SPIN_MAX}\ns_cbranch_vccnz M_KSPIN")
        p.label("M_KSPIN_RET")
        p(f"v_max3_u32 v{FT}, v{FT}, v{FT+2}, v{FT+4}\nv_max_u32 v{FT}, v{FT}, v{FT+6}")
        wave_max_u32(p, FT, FT + 1)
        p(f"""
    v_readfirstlane_b32 s{sKEY}, v{FT}
    s_and_b32 s{sIDX}, s{sKEY}, 0x7ff
    s_sub_u32 s{sIDX}, 2047, s{sIDX}
    s_lshr_b32 s{sT0}, s{sIDX}, 4
    s_lshl_b32 s{sT0}, s{sT0}, 15
    s_and_b32 s{sT1}, s2, 3
    s_lshl_b32 s{sT1}, s{sT1}, 13
    s_add_u32 s{sT0}, s{sT0}, s{sT1}
    s_lshl_b32 s{sT1}, s{sW}, 10
    s_add_u32 s{sT0}, s{sT0}, s{sT1}
    s_and_b32 s{sT1}, s{sIDX}, 15
    s_lshl_b32 s{sT1}, s{sT1}, 4
    s_add_u32 s{sT0}, s{sT0}, s{sT1}
    v_lshrrev_b32 v{vT2}, 4, v1
    v_lshlrev_b32 v{vT2}, 8, v{vT2}
    v_add_u32 v{vT2}, s{sT0}, v{vT2}
    global_load_dwordx4 v[{XS}:{XS+3}], v{vT2}, s[18:19] sc1""")
        vq.issue(("X", 0))
    def ffn_step(f):
        def go():
            if f == 0:
                vq.wait(p, ("X", 0), ("F", 7))
                p(f"""
    v_and_b32 v{vT2}, 15, v1
    v_lshlrev_b32 v{vT2}, 5, v{vT2}
    s_lshl_b32 s{sT0}, s{sW}, 9
    s_add_u32 s{sT0}, s{sT0}, {L_FP}
    v_add_u32 v{vT2}, s{sT0}, v{vT2}""")
            if f > 0:
                p(f"ds_write_b32 v{vT2}, v{FD} offset:{(f-1)*4}"); lq.issue(("FW", f - 1))
            if f < 8:
                j = f >> 1; sel = sPH if f & 1 else sPL
                for pp in range(4):
                    p(f"v_perm_b32 v{FT+pp}, v{FR+(2*pp+1)*4+j}, v{FR+(2*pp)*4+j}, s{sel}")
        return go
    def ffn_mfma():
        p(f"v_mfma_f32_16x16x32_bf16 v[{FD}:{FD+3}], v[{XS}:{XS+3}], v[{FT}:{FT+3}], 0")
    def ffn_final():
        p(f"""
    s_cmp_lg_u32 s{sW}, 0
    s_cbranch_scc1 K2_FSKIP
    s_cmp_ge_u32 s2, 224
    s_cbranch_scc1 K2_FSKIP
    v_lshlrev_b32 v{vT2}, 3, v1
    v_add_u32 v{vT3}, {L_FP}, v{vT2}""")
        for w in range(8): p(f"ds_read_b64 v[{FR+2*w}:{FR+2*w+1}], v{vT3} offset:{w*512}")
        p(f"""
    s_and_b32 s{sT0}, s2, 3
    s_mul_i32 s{sT0}, s{sT0}, {7168*8}
    s_lshr_b32 s{sT1}, s2, 2
    s_lshl_b32 s{sT1}, s{sT1}, 10
    s_add_u32 s{sT0}, s{sT0}, s{sT1}
    s_add_u32 s{sT0}, s{sT0}, {WS_GU}
    v_lshlrev_b32 v{vT2}, 1, v{vT2}
    v_add_u32 v{vT2}, s{sT0}, v{vT2}
    s_waitcnt lgkmcnt(0)""")
        for w in range(1, 8):
            p(f"v_add_f32 v{FR}, v{FR}, v{FR+2*w}\nv_add_f32 v{FR+1}, v{FR+1}, v{FR+2*w+1}")
        p(f"v_mov_b32 v{FR+2}, v{FR+1}\nv_mov_b32 v{FR+1}, s{sNON}\nv_mov_b32 v{FR+3}, s{sNON}")
        p(f"global_store_dwordx4 v{vT2}, v[{FR}:{FR+3}], s[18:19] sc1")
        p.label("K2_FSKIP")
    NEG = f"v[{NEGM}:{NEGM+15}]"
    def iteration(t, extra=(), mid=()):
        doQK = t < 15; doPV = t > 0; prevSM = t > 0
        sb = t & 1
        for j in range(8):
            if doQK: qk(j, sb ^ 1, NEG)
            if (j > 0 or prevSM) and 'novalu' not in dbg:
                e = E + 2 * ((j - 1) & 1)
                pb = sb if j > 0 else sb ^ 1
                pr = P + 8 * pb + ((j - 1) & 7)
                p(f"v_add_f32 v{vL0}, v{vL0}, v{e}\nv_add_f32 v{vL1}, v{vL1}, v{e+1}\nv_cvt_pk_bf16_f32 v{pr}, v{e}, v{e+1}")
            if j < len(mid): run(mid[j])
            if doPV: pv(j, sb ^ 1, first=(t == 1))
            e = E + 2 * (j & 1)
            if 'novalu' not in dbg: p(f"v_exp_f32 v{e}, v{S+16*sb+2*j}\nv_exp_f32 v{e+1}, v{S+16*sb+2*j+1}")
            jj = j + D
            if jj < 8:
                if doQK: k_read(t + 1, jj)
                if doPV: v_read(t - 1, jj)
            else:
                if t + 2 <= 15: k_read(t + 2, jj - 8)
                v_read(t, jj - 8)
            if j < len(extra): run(extra[j])
    F = lambda i: job_f(i) if (ffn and cold and 'nofl' not in dbg) else None
    FT0 = 10
    PL = lambda n: (("PL", n), p3_preload(n))
    sched = {
        0: [job_k(7), None, job_v(3), None, job_v(4), None, F(0)],
        1: [job_v(5), None, None, job_v(6), None, None, F(1)],
        2: [job_k(8), None, job_k(9), None, job_v(7), None, F(2)],
        3: [job_v(8), None, job_v(9), None, job_v(10), None, F(3)],
        4: [job_k(10), keyld, job_k(11), None, job_v(11), None, F(4)],
        5: [job_v(12), None, None, job_v(13), None, None, F(5)],
        6: [job_k(12), None, job_k(13), None, job_v(14), None, F(6)],
        7: [job_v(15), None, xsel, None, None, None, F(7)],
        8: [job_k(14), None, job_k(15), None, None, pf(0)],
        9: [None, None, None, None, pf(1)],
        10: [None, None, None, None, pf(2)],
        11: [None, None, None, None, pf(3)],
        12: [None, None, p3_early_setup(), p3_preload(0), PL(1), None, PL(2), None],
        13: [PL(3), None, PL(4), PL(5), None, PL(6), PL(7), p3_preload(8)],
        112: [] if 'notlb' in dbg else [
             (("TL", 0), f"v_min_u32 v{FT}, 40, v1\nv_lshlrev_b32 v{FT}, 20, v{FT}\nglobal_load_dword v{FD}, v{FT}, s[18:19]"), None,
             (("TL", 1), f"v_and_b32 v{FT+1}, 3, v1\nv_lshlrev_b32 v{FT+1}, 20, v{FT+1}\nglobal_load_dword v{FD}, v{FT+1}, s[78:79]"), None,
             (("TL", 2), f"v_and_b32 v{FT+2}, 7, v1\nv_lshlrev_b32 v{FT+2}, 20, v{FT+2}\nglobal_load_dword v{FD}, v{FT+2}, s[10:11]"), None,
             (("TL", 3), f"v_min_u32 v{FT+3}, 6, v1\nv_lshlrev_b32 v{FT+3}, 20, v{FT+3}\nglobal_load_dword v{FD}, v{FT+3}, s[16:17]")],
    }
    if 'nodma' in dbg: sched = {}
    for t in range(16):
        if t > 0 and t % 2 == 0:
            b = t // 2
            need = [("K", x) for x in range(2*b+4)] + [("V", x) for x in range(2*b+2)]
            if b == 6: need = [("K", x) for x in range(16)] + [("V", x) for x in range(16)]
            vq.wait(p, *need)
            if b == 7: vq.wait(p, ("PF", 3))
            if 2 * b == FT0 + 2: lq.wait(p, ("FW", 7))
            p("s_barrier")
        extra = sched.get(t, []); mid = []
        def both(x, y):
            def f():
                run(x); run(y)
            return f
        ex8 = list(extra) + [None] * 8
        if t == FT0:
            extra = [both(ex8[f], ffn_step(f)) for f in range(8)]; mid = [None] + [ffn_mfma] * 7
        if t == FT0 + 1:
            extra = [ex8[0], ffn_step(8)] + ex8[2:8]; mid = [ffn_mfma]
        if t == FT0 + 2:
            extra = [ex8[0], ffn_final] + ex8[2:8]
        if t == 14:
            ED = lambda n: None if 'noew' in dbg else (("EW", n), p3_early_dma(n))
            extra = []
        if t == 15:
            extra = []
        iteration(t, extra, mid)
    e = E + 2
    p(f"v_add_f32 v{vL0}, v{vL0}, v{e}\nv_add_f32 v{vL1}, v{vL1}, v{e+1}\nv_cvt_pk_bf16_f32 v{P+8+7}, v{e}, v{e+1}")
    p(f"""
    v_add_f32 v{vL0}, v{vL0}, v{vL1}
    v_mov_b32 v{vL1}, v{vL0}
    """)
    for i in range(8):
        pv(i, 1)
        if i + D < 8: v_read(15, i + D)
        if i == 0:
            p(f"v_permlane32_swap_b32 v{vL0}, v{vL1}\nv_add_f32 v{vL0}, v{vL0}, v{vL1}")
        if i == 1:
            p(f"""
    v_mov_b32 v{vT1}, 0x5d800000
    v_cmp_nle_f32 vcc, v{vL0}, v{vT1}
    v_rcp_f32 v{vL1}, v{vL0}
    """)
    ST()
    if slow:
        p(f"s_cbranch_vccnz K2_SLOW")
        p.label("K2_SLOW_RET")
    for dt in range(4):
        for c in range(2):
            a = ACC + 16 * dt + 8 * c
            o = S + (dt * 2 + c) * 4
            for r in range(8): p(f"v_mul_f32 v{a+r}, v{a+r}, v{vL1}")
            for r in range(4): p(f"v_cvt_pk_bf16_f32 v{o+r}, v{a+2*r}, v{a+2*r+1}")
            p(f"buffer_store_dwordx4 v[{o}:{o+3}], v{vO}, s[{SRD_OT}:{SRD_OT+3}], s{sOT} offen offset:{c*512} sc1")
        if dt < 3: p(f"s_add_u32 s{sOT}, s{sOT}, 131072")
    phase3(p, ST, stamp)
    p.label("K2_END")
    p("s_endpgm")
    p.label("M_SSPIN")
    p("s_sleep 2")
    p(stcode)
    p("s_waitcnt vmcnt(0)")
    p(stchk)
    p(f"""
    s_cbranch_vccz M_SSPIN_RET
    s_sub_u32 s73, s73, 1
    s_cmp_lg_u32 s73, 0
    s_cbranch_scc1 M_SSPIN
    s_branch M_SSPIN_RET
    """)
    p.label("M_KSPIN")
    p("s_sleep 2")
    p(keycode)
    p("s_waitcnt vmcnt(0)")
    p(keychk)
    p(f"""
    s_cbranch_vccz M_KSPIN_RET
    s_sub_u32 s73, s73, 1
    s_cmp_lg_u32 s73, 0
    s_cbranch_scc1 M_KSPIN
    s_branch M_KSPIN_RET
    """)
    if slow:
        p.label("K2_SLOW")
        p(f"""
    s_waitcnt vmcnt(0) lgkmcnt(0)
    v_and_b32 v{vT0}, 31, v1
    v_lshlrev_b32 v{vT0}, 8, v{vT0}
    v_lshrrev_b32 v{vT1}, 5, v1
    v_lshl_add_u32 v{vT0}, v{vT1}, 4, v{vT0}
    v_and_b32 v{vT2}, 19, v1
    v_bfe_u32 v{vT3}, v1, 2, 1
    v_lshl_add_u32 v{vT2}, v{vT3}, 3, v{vT2}
    v_bfe_u32 v{vT3}, v1, 3, 1
    v_lshl_add_u32 v{vT2}, v{vT3}, 2, v{vT2}
    v_lshlrev_b32 v{vT2}, 1, v{vT2}
    v_lshl_add_u32 v{vT2}, v{vT1}, 10, v{vT2}
    v_mov_b32 v{vT1}, 0xff800000
    s_mov_b32 s{sT1}, 0
    """)
        KS = KF
        def slow_qk(c0):
            for j in range(8):
                p(f"buffer_load_dwordx4 v[{KS+4*j}:{KS+4*j+3}], v{vT0}, s[{SRD_K}:{SRD_K+3}], s{sT1} offen offset:{j*32}")
            p("s_waitcnt vmcnt(0)")
            for j in range(8):
                c = c0 if j == 0 else f"v[{S}:{S+15}]"
                p(f"v_mfma_f32_32x32x16_bf16 v[{S}:{S+15}], v[{KS+4*j}:{KS+4*j+3}], v[{QP+4*j}:{QP+4*j+3}], {c}")
        p.label("K2_SLOW_L1")
        slow_qk("0")
        for i in range(0, 16, 2):
            p(f"v_max3_f32 v{vT1}, v{vT1}, v{S+i}, v{S+i+1}")
        p(f"""
    s_add_u32 s{sT1}, s{sT1}, 8192
    s_cmp_lt_u32 s{sT1}, 131072
    s_cbranch_scc1 K2_SLOW_L1
    v_mov_b32 v{vT3}, v{vT1}
    v_permlane32_swap_b32 v{vT3}, v{vT1}
    v_max_f32 v{vT1}, v{vT3}, v{vT1}
    """)
        for i in range(16): p(f"v_sub_f32 v{NEGM+i}, 0, v{vT1}")
        for i in range(64): p(f"v_mov_b32 v{ACC+i}, 0")
        p(f"v_mov_b32 v{vL0}, 0\ns_mov_b32 s{sT1}, 0")
        p.label("K2_SLOW_L2")
        slow_qk(NEG)
        for i in range(16): p(f"v_exp_f32 v{S+i}, v{S+i}")
        for i in range(16): p(f"v_add_f32 v{vL0}, v{vL0}, v{S+i}")
        for i in range(8): p(f"v_cvt_pk_bf16_f32 v{P+i}, v{S+2*i}, v{S+2*i+1}")
        for ks in range(2):
            p(f"s_add_u32 s{sT2}, s{sT1}, {ks*4096}")
            TM = S + 16
            for dt in range(4):
                r = KS + dt * 4; d = ACC + 16 * dt
                for jj in range(8):
                    key = (jj & 3) + 8 * (jj >> 2)
                    p(f"buffer_load_ushort v{TM + jj}, v{vT2}, s[{SRD_V}:{SRD_V+3}], s{sT2} offen offset:{key*256 + dt*64}")
                p("s_waitcnt vmcnt(0)")
                for jj in range(4): p(f"v_lshl_or_b32 v{r+jj}, v{TM+2*jj+1}, 16, v{TM+2*jj}")
                p(f"v_mfma_f32_32x32x16_bf16 v[{d}:{d+15}], v[{r}:{r+3}], v[{P+4*ks}:{P+4*ks+3}], v[{d}:{d+15}]")
            p("s_nop 7")
        p(f"""
    s_add_u32 s{sT1}, s{sT1}, 8192
    s_cmp_lt_u32 s{sT1}, 131072
    s_cbranch_scc1 K2_SLOW_L2
    v_mov_b32 v{vL1}, v{vL0}
    v_permlane32_swap_b32 v{vL0}, v{vL1}
    v_add_f32 v{vL0}, v{vL0}, v{vL1}
    v_rcp_f32 v{vL1}, v{vL0}
    s_nop 7
    s_branch K2_SLOW_RET
    """)
    n = p.fix_hazards(verbose='v' in dbg)
    import re as _re
    txt0 = _re.sub(r"ST3_(\d)", (lambda m: f"s_memtime s[{80+2*int(m.group(1))}:{81+2*int(m.group(1))}]") if MODE3[0] else "s_nop 0", p.text())
    txt0 = _re.sub(r"    ST4_(\d)\n", (lambda m: f"    s_memtime s[{80+2*int(m.group(1))}:{81+2*int(m.group(1))}]\n") if 'st4' in dbg else "", txt0)
    txt = txt0.replace('STAMPX1', 's_nop 0')
    return txt, descriptor(name, 256, 256, 102), f"; @launch grid=(256,1,1) block=(512,1,1) lds={L_TOTAL}"

if __name__ == "__main__":
    import sys, subprocess, re
    dbg = tuple(sys.argv[2].split(',')) if len(sys.argv) > 2 else ()
    t, d, l = gen_mega(stamp=len(sys.argv) > 1 and sys.argv[1] == "1", dbg=dbg)
    out = sys.argv[3] if len(sys.argv) > 3 else "mega.s"
    def write(cs):
        open(out, "w").write(l + '\n.amdgcn_target "amdgcn-amd-amdhsa--gfx950"\n.text\n' + t.replace("CODESIZE", str(cs)) + '.section .rodata,"a"\n' + d)
    write(0x1000)
    subprocess.run(["clang", "-x", "assembler", "-target", "amdgcn-amd-amdhsa", "-mcpu=gfx950", "-c", out, "-o", "mega.o"], check=True)
    r = subprocess.run(["llvm-objdump", "-h", "mega.o"], capture_output=True, text=True).stdout
    sz = int(re.search(r"\.text\s+([0-9a-f]+)", r).group(1), 16)
    write((sz - 256) & ~63)
    print("code size", sz)
```

```python
from gen_common import *
import math, struct

KSL = 8704; VSL = 8192
L_X = 65536
L_HI = 131072
L_FP = 159744
L_TOTAL = L_FP + 4096
L_K = L_HI
KADDR = [L_HI, L_HI + KSL, L_HI + 2 * KSL, L_X, L_X + KSL + 2 * VSL, L_X + 2 * KSL + 2 * VSL, L_X + 3 * KSL + 2 * VSL]
VADDR = [L_X + KSL, L_X + KSL + VSL, L_X + 4 * KSL + 2 * VSL] + [i * VSL for i in range(8)]
assert VADDR[2] + VSL <= L_HI and KADDR[2] + KSL <= L_FP and VADDR[1] + VSL <= L_X + 32768
def Kabs(t): return KADDR[t % 7]
def Vabs(t): return VADDR[t % 11]

vDk, vDv, vKb, vVa, vVb, vO, vL0, vL1, vDf, vKh, vT0, vT1, vT2, vT3 = 2, 3, 4, 5, 6, 7, 8, 9, 10, 11, 12, 13, 14, 15
vPF = 211
ACC = 16; QP = 80; S = 112; NEGM = 144; P = 160; KF = 176; VF = 192; E = 208
QA = 112; AF = 176
def BRr(buf, k): return 212 + (buf & 1) * 16 + k * 4
FR = 212
vA0, vA1, vDq, vDq2, vXB0, vXB1 = 244, 245, 246, 247, 248, 249
vXD = 80
FT = 244; FD = 248; XS = 252
sW = 3
sHEAD, sRB, sG = 20, 21, 22
sN, sWq, sM, sB = 23, 24, 25, 26
sKsrc, sKw, sVsrc, sVw = 27, 28, 29, 30
sPL, sPH = 31, 32
sFsrc, sIDX = 69+32, 35
SRD_WQ, SRD_XN, SRD_K, SRD_V, SRD_F, SRD_OT = 36, 40, 44, 48, 52, 56
sT0, sT1, sT2, sT3 = 60, 61, 62, 63
sOT = 64
sXM = 100
QSCALE = math.log2(math.e) / math.sqrt(128.0)
def fbits(x): return "0x%08x" % struct.unpack("<I", struct.pack("<f", x))[0]
D = 4

class Q:
    def __init__(self, cnt, mx): self.q = []; self.cnt = cnt; self.mx = mx
    def issue(self, tag): self.q.append(tag)
    def wait(self, p, *tags):
        idx = [len(self.q) - 1 - self.q[::-1].index(t) for t in tags if t in self.q]
        if not idx: return
        i = max(idx)
        n = len(self.q) - 1 - i
        assert n <= self.mx, n
        p(f"s_waitcnt {self.cnt}({n})")
        self.q = self.q[i + 1:]


KNAME = "recurrent_scan__sliding_block_cached__moe_arch_mod__prompt_kernel"
sFL, sPC, sKEY = 65, 70, 34
SPIN_MAX = 20000
MODE0 = [False]
DBGT = [False]
NOEW = [False]
MODE3 = [False]
WS_FLG = 0x500000
sNON = 33

LX = 16
def poll32(p, lab, sGrp, stage):
    p(f"""
    v_and_b32 v{vT0}, 31, v1
    v_lshlrev_b32 v{vT0}, 7, v{vT0}
    s_lshl_b32 s{sGrp}, s{sGrp}, 12
    s_add_u32 s{sGrp}, s{sGrp}, {WS_FLG + stage*32768}
    v_add_u32 v{vT0}, s{sGrp}, v{vT0}
    s_mov_b32 s73, {SPIN_MAX}
    """)
    p.label(lab)
    p(f"""
    global_load_dword v{vT1}, v{vT0}, s[18:19] sc1
    s_waitcnt vmcnt(0)
    v_cmp_ne_u32 vcc, s{sNON}, v{vT1}
    s_cbranch_vccz {lab}_OK
    s_sleep 1
    s_sub_u32 s73, s73, 1
    s_cmp_lg_u32 s73, 0
    s_cbranch_scc1 {lab}
    """)
    p.label(lab + "_OK")
def set_flag(p, stage):
    p(f"""
    s_lshl_b32 s{sT0}, s{sFL}, 7
    s_add_u32 s{sT0}, s{sT0}, {WS_FLG + stage*32768}
    v_mov_b32 v{vT0}, s{sT0}
    v_mov_b32 v{vT1}, s{sNON}
    s_mov_b64 exec, 1
    global_store_dword v{vT0}, v{vT1}, s[18:19] sc1
    s_mov_b64 exec, -1
    """)
WS_ST = 0x520000
WS_CS = 0x530000
L_SC = L_K
CSR = 92
def get_nonce(p, lab, vz, vn):
    p(f"""
    s_mov_b32 s73, {SPIN_MAX}
{lab}:
    global_load_dword v{vn}, v{vz}, s[66:67] sc1
    s_waitcnt vmcnt(0)
    v_readfirstlane_b32 s{sNON}, v{vn}
    s_cmp_lg_u32 s{sNON}, 0
    s_cbranch_scc1 {lab}_OK
    s_sub_u32 s73, s73, 1
    s_cmp_lg_u32 s73, 0
    s_cbranch_scc1 {lab}
{lab}_OK:
    """)
class Rec:
    def __init__(self): self.items = []
    def __call__(self, text):
        for line in text.split('\n'):
            if line.strip(): self.items.append(line.strip())
    def call(self, f): self.items.append(f)
LN_X = 16; LN_W = 24
vg0, vg1, vr_, vq_, vNON, vCSA, vLXA = 84, 85, 86, 87, 88, 89, 90
def ln_segments(lq, vq, P):
    X = LN_X; W = LN_W; F = 32; S_ = 48; T = 49; Q0 = 50; Q1 = 51; Dd = 52; va = 68; vw = 69; SD = 70; G = 32
    CA = 72; CT = 52
    p = Rec()
    p(f"""
    v_lshrrev_b32 v{vw}, 6, v0
    v_and_b32 v{va}, 7, v1
    v_xor_b32 v{va}, v{va}, v{vw}
    v_lshlrev_b32 v{va}, 4, v{va}
    v_lshl_add_u32 v{va}, v1, 7, v{va}
    v_add_u32 v{va}, {L_SC}, v{va}
    v_lshrrev_b32 v{vg1}, 3, v0
    v_and_b32 v{vg0}, 7, v{vg1}
    v_and_b32 v{vr_}, 7, v0
    v_xor_b32 v{vg0}, v{vg0}, v{vr_}
    v_lshlrev_b32 v{vg0}, 4, v{vg0}
    v_lshl_add_u32 v{vg0}, v{vg1}, 8, v{vg0}
    s_lshr_b32 s{sT0}, s{sFL}, 1
    s_lshl_b32 s{sT0}, s{sT0}, 15
    s_and_b32 s{sT1}, s{sFL}, 1
    s_lshl_b32 s{sT1}, s{sT1}, 7
    s_add_u32 s{sT0}, s{sT0}, s{sT1}
    v_add_u32 v{vg0}, s{sT0}, v{vg0}
    v_add_u32 v{vg1}, 0x4000, v{vg0}
    v_lshlrev_b32 v{vr_}, 4, v0
    v_add_u32 v{vr_}, {L_SC}, v{vr_}
    """)
    p.call(lambda: vq.wait(P, ("LX", 1)))
    ONE = F
    p(f"v_mov_b32 v{ONE}, 0x3f803f80")
    p(f"v_dot2_f32_bf16 v{S_}, v{X}, v{ONE}, 0\nv_dot2_f32_bf16 v{Q0}, v{X}, v{X}, 0")
    p(f"v_dot2_f32_bf16 v{T}, v{X+1}, v{ONE}, 0\nv_dot2_f32_bf16 v{Q1}, v{X+1}, v{X+1}, 0")
    for i in range(2, 8, 2):
        p(f"v_dot2_f32_bf16 v{S_}, v{X+i}, v{ONE}, v{S_}\nv_dot2_f32_bf16 v{Q0}, v{X+i}, v{X+i}, v{Q0}")
        p(f"v_dot2_f32_bf16 v{T}, v{X+i+1}, v{ONE}, v{T}\nv_dot2_f32_bf16 v{Q1}, v{X+i+1}, v{X+i+1}, v{Q1}")
    p(f"s_nop 1\nv_add_f32 v{S_}, v{S_}, v{T}\nv_add_f32 v{Q0}, v{Q0}, v{Q1}")
    ra = Rec(); wave_sum(ra, S_, T); rb_ = Rec(); wave_sum(rb_, Q0, Q1)
    for x_, y_ in zip(ra.items, rb_.items): p(x_); p(y_)
    p(f"""
    v_mul_f32 v{S_}, 0x3a800000, v{S_}
    v_mul_f32 v{Q0}, 0x3a800000, v{Q0}
    v_fma_f32 v{Q0}, -v{S_}, v{S_}, v{Q0}
    v_max_f32 v{Q0}, 0, v{Q0}
    v_cvt_pk_bf16_f32 v{T}, v{S_}, v{Q0}
    v_lshlrev_b32 v{S_}, 16, v{T}
    v_and_b32 v{Q0}, 0xffff0000, v{T}
    v_add_f32 v{Q0}, 0x3727c5ac, v{Q0}
    v_cvt_pk_bf16_f32 v{Q0}, v{Q0}, v{Q0}
    v_lshlrev_b32 v{Q0}, 16, v{Q0}
    v_sqrt_f32 v{Q0}, v{Q0}
    v_cvt_pk_bf16_f32 v{SD}, v{S_}, v{Q0}
    v_and_b32 v{Q0}, 0xffff0000, v{SD}
    v_rcp_f32 v{Q0}, v{Q0}
    """)
    def dsw(text, tag):
        def f():
            P(text); lq.issue(tag)
        p.call(f)
    p(f"""
    s_lshl_b32 s{sT0}, s{sW}, 2
    s_add_u32 s{sT0}, s{sT0}, {L_SC + 16384}
    v_mov_b32 v{vw}, s{sT0}
    """)
    partA1 = p.items
    p = Rec()
    p.call(lambda: vq.wait(P, ("CS", 3)))
    for i in range(4):
        for j in range(4):
            r = CSR + 4 * i + j
            if i == 0:
                p(f"v_lshlrev_b32 v{CA+2*j}, 16, v{r}\nv_and_b32 v{CA+2*j+1}, 0xffff0000, v{r}")
            else:
                p(f"v_lshlrev_b32 v{CT}, 16, v{r}\nv_and_b32 v{CT+1}, 0xffff0000, v{r}")
                p(f"v_add_f32 v{CA+2*j}, v{CA+2*j}, v{CT}\nv_add_f32 v{CA+2*j+1}, v{CA+2*j+1}, v{CT+1}")
    p(f"""
    v_lshlrev_b32 v{T}, 5, v0
    v_add_u32 v{T}, {L_SC}, v{T}
    """)
    dsw(f"ds_write_b128 v{T}, v[{CA}:{CA+3}]", ("LW", 4))
    dsw(f"ds_write_b128 v{T}, v[{CA+4}:{CA+7}] offset:16", ("LW", 5))
    partA = p.items
    p = Rec()
    exact = True
    for i in range(8):
        p(f"v_lshlrev_b32 v{Dd+2*i}, 16, v{X+i}\nv_and_b32 v{Dd+2*i+1}, 0xffff0000, v{X+i}")
    for i in range(16): p(f"v_sub_f32 v{Dd+i}, v{Dd+i}, v{S_}")
    for i in range(8): p(f"v_cvt_pk_bf16_f32 v{X+i}, v{Dd+2*i}, v{Dd+2*i+1}")
    for i in range(8):
        p(f"v_lshlrev_b32 v{Dd+2*i}, 16, v{X+i}\nv_and_b32 v{Dd+2*i+1}, 0xffff0000, v{X+i}")
    for i in range(16): p(f"v_mul_f32 v{Dd+i}, v{Dd+i}, v{Q0}")
    for i in range(8): p(f"v_cvt_pk_bf16_f32 v{X+i}, v{Dd+2*i}, v{Dd+2*i+1}")
    p.call(lambda: vq.wait(P, ("LX", 3)))
    p(f"v_dot2_f32_bf16 v{S_}, v{X}, v{W}, 0\nv_dot2_f32_bf16 v{Q1}, v{X+1}, v{W+1}, 0")
    for i in range(2, 8, 2):
        p(f"v_dot2_f32_bf16 v{S_}, v{X+i}, v{W+i}, v{S_}\nv_dot2_f32_bf16 v{Q1}, v{X+i+1}, v{W+i+1}, v{Q1}")
    p(f"s_nop 2\nv_add_f32 v{S_}, v{S_}, v{Q1}")
    wave_sum(p, S_, T)
    p(f"""
    v_cvt_pk_bf16_f32 v{S_}, v{S_}, v{S_}
    v_lshlrev_b32 v{S_}, 16, v{S_}
    v_ashrrev_i32 v{T}, 31, v{S_}
    v_or_b32 v{T}, 0x80000000, v{T}
    v_xor_b32 v{S_}, v{S_}, v{T}
    v_and_b32 v{S_}, 0xffff0000, v{S_}
    s_lshl_b32 s{sT1}, s{sFL}, 3
    s_add_u32 s{sT1}, s{sT1}, s{sW}
    s_sub_u32 s{sT0}, 2047, s{sT1}
    v_or_b32 v{S_}, s{sT0}, v{S_}
    v_mov_b32 v{vL0}, 0
    v_mov_b32 v{vL1}, 0
    """)
    dsw(f"ds_write_b128 v{va}, v[{X}:{X+3}]", ("LW", 0))
    dsw(f"ds_write_b128 v{va}, v[{X+4}:{X+7}] offset:8192", ("LW", 1))
    dsw(f"ds_write_b32 v{vw}, v{S_}", ("LW", 2))
    return partA1, partA, p.items
def pub_segments(lq, vq, P):
    R = CSR
    p = Rec()
    def ds(text, tag):
        def f():
            P(text); lq.issue(tag)
        p.call(f)
    def vm(text, tag):
        def f():
            P(text); vq.issue(tag)
        p.call(f)
    p(f"""
    v_lshrrev_b32 v{R+4}, 3, v1
    v_lshlrev_b32 v{R+4}, 9, v{R+4}
    v_and_b32 v{R+5}, 7, v1
    v_lshl_add_u32 v{R+4}, v{R+5}, 3, v{R+4}
    s_lshl_b32 s{sT0}, s{sW}, 6
    s_add_u32 s{sT0}, s{sT0}, {L_SC}
    v_add_u32 v{R+4}, s{sT0}, v{R+4}
    """)
    ds(f"ds_read_b64 v[{R}:{R+1}], v{R+4}", ("PR", 9))
    ds(f"ds_read_b64 v[{R+8}:{R+9}], v{R+4} offset:4096", ("PR", 8))
    p("s_nop 0\ns_nop 0\ns_nop 0\ns_nop 0")
    ds(f"ds_read_b64 v[{R+10}:{R+11}], v{R+4} offset:8192", ("PR", 7))
    ds(f"ds_read_b64 v[{R+12}:{R+13}], v{R+4} offset:12288", ("PR", 0))
    p(f"""
    s_lshl_b32 s{sT0}, s{sHEAD}, 3
    s_add_u32 s{sT0}, s{sT0}, s{sRB}
    s_lshl_b32 s{sT0}, s{sT0}, 3
    s_add_u32 s{sT0}, s{sT0}, s{sW}
    s_lshl_b32 s{sT0}, s{sT0}, 7
    s_add_u32 s{sT0}, s{sT0}, {WS_CS}
    v_lshlrev_b32 v{R+5}, 4, v{R+5}
    v_add_u32 v{R+5}, s{sT0}, v{R+5}
    s_lshl_b32 s{sT0}, s{sFL}, 3
    s_add_u32 s{sT0}, s{sT0}, s{sW}
    s_lshl_b32 s{sT0}, s{sT0}, 3
    s_add_u32 s{sT0}, s{sT0}, {WS_ST}
    v_mov_b32 v{R+6}, s{sT0}
    v_mov_b32 v71, s{sNON}
    """)
    vm(f"s_mov_b64 exec, 1\nglobal_store_dwordx2 v{R+6}, v[70:71], s[18:19] sc1\ns_mov_b64 exec, -1", ("PS", 0))
    p.call(lambda: lq.wait(P, ("PR", 0)))
    p(f"""
    v_add_f32 v{R}, v{R}, v{R+8}
    v_add_f32 v{R+1}, v{R+1}, v{R+9}
    v_add_f32 v{R+10}, v{R+10}, v{R+12}
    v_add_f32 v{R+11}, v{R+11}, v{R+13}
    v_add_f32 v{R}, v{R}, v{R+10}
    v_add_f32 v{R+2}, v{R+1}, v{R+11}
    """)
    for c in (R, R + 2): p(f"v_add_f32_dpp v{c}, v{c}, v{c} row_ror:8 row_mask:0xf bank_mask:0xf")
    for sw in ("v_permlane16_swap_b32", "v_permlane32_swap_b32"):
        p(f"v_mov_b32 v{R+1}, v{R}\nv_mov_b32 v{R+3}, v{R+2}")
        p(f"{sw} v{R}, v{R+1}\n{sw} v{R+2}, v{R+3}")
        p(f"v_add_f32 v{R}, v{R}, v{R+1}\nv_add_f32 v{R+2}, v{R+2}, v{R+3}")
    p(f"v_mov_b32 v{R+1}, s{sNON}\nv_mov_b32 v{R+3}, s{sNON}")
    vm(f"s_mov_b64 exec, 0xff\nglobal_store_dwordx4 v{R+5}, v[{R}:{R+3}], s[18:19] sc1\ns_mov_b64 exec, -1", ("PS", 1))
    seg1 = p.items
    p = Rec()
    X = 16
    ds(f"ds_read_b128 v[{X}:{X+3}], v{vr_}", ("PR", 1))
    ds(f"ds_read_b128 v[{X+4}:{X+7}], v{vr_} offset:8192", ("PR", 2))
    p(f"v_mov_b32 v{vq_}, {L_SC + 16384}")
    ds(f"ds_read_b128 v[{X+8}:{X+11}], v{vq_}", ("PR", 3))
    p("s_nop 0\ns_nop 0\ns_nop 0\ns_nop 0")
    p.call(lambda: lq.wait(P, ("PR", 1)))
    vm(f"global_store_dwordx4 v{vg0}, v[{X}:{X+3}], s[18:19] sc1", ("PS", 2))
    ds(f"ds_read_b128 v[{X+12}:{X+15}], v{vq_} offset:16", ("PR", 4))
    p.call(lambda: lq.wait(P, ("PR", 2)))
    vm(f"global_store_dwordx4 v{vg1}, v[{X+4}:{X+7}], s[18:19] sc1", ("PS", 3))
    p("s_nop 0\ns_nop 0\ns_nop 0\ns_nop 0")
    p.call(lambda: lq.wait(P, ("PR", 4)))
    p(f"""
    v_max3_u32 v{X+8}, v{X+8}, v{X+9}, v{X+10}
    v_max3_u32 v{X+12}, v{X+12}, v{X+13}, v{X+14}
    v_max3_u32 v{X+8}, v{X+8}, v{X+11}, v{X+15}
    v_max_u32 v{X+8}, v{X+8}, v{X+12}
    v_readfirstlane_b32 s{sKEY}, v{X+8}
    """)
    return seg1, p.items
def set_flag2(p):
    pass

def rbf(p, v):
    p(f"v_cvt_pk_bf16_f32 v{v}, v{v}, v{v}\nv_lshlrev_b32 v{v}, 16, v{v}")
def silu(p, d, v, t):
    p(f"""
    v_mul_f32 v{t}, 0xbfb8aa3b, v{v}
    v_exp_f32 v{t}, v{t}
    v_add_f32 v{t}, 1.0, v{t}
    v_rcp_f32 v{t}, v{t}
    v_mul_f32 v{d}, v{v}, v{t}
    """)
sRT, sCT, sIT, sA, sBo, sMb, sMb2, sKH, sKQ, sMH = 20, 21, 23, 24, 25, 26, 27, 28, 29, 30
sKG, sCG = 31, 32
SRD_A, SRD_B = 36, 40
RB1 = 16384; RB2 = 114688
WS_EX = 0x2000000; WS_FLG2 = 0x560000
EW = 244
L_H3 = 148480
CNT_A = L_HI + 2*KSL + 6*1088 + 1024
CNT_B = CNT_A + 1088
def p3_early_setup():
    return f"""s_and_b32 s{sT0}, s2, 7
    s_lshr_b32 s{sT1}, s2, 3
    s_lshr_b32 s{sRT}, s{sT0}, 1
    s_lshl_b32 s{sRT}, s{sRT}, 2
    s_and_b32 s{sT2}, s{sT1}, 3
    s_add_u32 s{sRT}, s{sRT}, s{sT2}
    s_and_b32 s{sCT}, s{sT0}, 1
    s_lshl_b32 s{sCT}, s{sCT}, 2
    s_bfe_u32 s{sT2}, s{sT1}, 0x20002
    s_add_u32 s{sCT}, s{sCT}, s{sT2}
    s_lshr_b32 s{sKH}, s{sT1}, 4
    s_and_b32 s{sKQ}, s{sW}, 3
    s_lshr_b32 s{sMH}, s{sW}, 2
    s_xor_b32 s{sMH}, s{sMH}, s{sKH}
    s_xor_b32 s{sMH}, s{sMH}, 1
    s_lshl_b32 s{sT0}, s{sKH}, 2
    s_add_u32 s{sT0}, s{sT0}, s{sKQ}
    s_lshl_b32 s{sT1}, s{sT0}, 21
    s_add_u32 s{sT1}, s{sT1}, {WS_OT}
    s_add_u32 s{SRD_A}, s18, s{sT1}
    s_addc_u32 s{SRD_A+1}, s19, 0
    s_mov_b32 s{SRD_A+2}, 0x200000
    s_mov_b32 s{SRD_A+3}, 0x20000
    s_lshl_b32 s{sT1}, s{sT0}, 20
    s_add_u32 s{SRD_B}, s10, s{sT1}
    s_addc_u32 s{SRD_B+1}, s11, 0
    s_mov_b32 s{SRD_B+2}, 0x100000
    s_mov_b32 s{SRD_B+3}, 0x20000
    s_lshl_b32 s{sA}, s{sRT}, 1
    s_add_u32 s{sA}, s{sA}, s{sMH}
    s_lshl_b32 s{sA}, s{sA}, 12
    s_lshl_b32 s{sBo}, s{sCT}, 8
    s_lshl_b32 s{sT1}, s{sMH}, 15
    s_add_u32 s{sBo}, s{sBo}, s{sT1}
    s_mul_i32 s{sMb}, s{sKQ}, 24576
    s_add_u32 s{sMb}, s{sMb}, {RB1}
    s_lshl_b32 s{sMb2}, s{sKQ}, 13
    s_add_u32 s{sMb2}, s{sMb2}, {RB2 - 3*8192}
    s_lshl_b32 s{sT1}, s{sMH}, 12
    s_add_u32 s{sT2}, s{sMb}, s{sT1}
    s_add_u32 s{sT3}, s{sMb2}, s{sT1}
    v_lshrrev_b32 v{EW+1}, 4, v1
    v_and_b32 v{EW}, 3, v1
    v_bfe_u32 v{EW+2}, v1, 2, 2
    v_lshlrev_b32 v{EW}, 4, v{EW}
    v_lshl_add_u32 v{EW}, v{EW+1}, 6, v{EW}
    v_lshl_add_u32 v{EW}, v{EW+2}, 11, v{EW}
    v_add_u32 v{EW+1}, 7168, v{EW}
    v_add_u32 v{EW+2}, {2*7168}, v{EW}
    v_add_u32 v{EW+3}, {3*7168}, v{EW}
    s_mov_b32 s{sDW}, s{sT2}
    s_mov_b32 s{sDW2}, s{sT3}"""
sDW, sDW2 = 68, 69
def wdma(slot, i, vW):
    t = ""
    if i == 0: t = f"s_add_u32 m0, s{sDW2 if slot == 3 else sDW}, {slot*8192}\ns_nop 0\n"
    t += f"buffer_load_dwordx4 v{vW+i}, s[{SRD_B}:{SRD_B+3}], s{sBo} offen offset:{i*1024} lds"
    if i == 3: t += f"\ns_add_u32 s{sBo}, s{sBo}, 65536"
    return t
def p3_early_dma(n):
    return wdma(n >> 2, n & 3, EW)
PL_A = 212; PL_B = 228; PL_G = 176; PL_OUT = 248
def gu_loads(GA):
    t = f"""s_mul_i32 s{sT0}, s{sKG}, 224
    s_mul_i32 s{sT1}, s{sKQ}, 56
    s_add_u32 s{sT0}, s{sT0}, s{sT1}
    v_min_u32 v{GA}, 55, v1
    v_add_lshl_u32 v{GA}, v{GA}, s{sT0}, 3
    v_add_u32 v{GA}, {WS_GU}, v{GA}
    """
    for q in range(8):
        t += f"global_load_dwordx2 v[{PL_G+2*q}:{PL_G+2*q+1}], v{GA}, s[18:19] sc1\n"
        if q < 7: t += f"v_add_u32 v{GA}, 28672, v{GA}\n"
    return t
def p3_preload(n):
    A = 249; B = 250
    if n == 0:
        return f"""s_and_b32 s{sKG}, s{sFL}, 15
    s_lshr_b32 s{sCG}, s{sFL}, 4
    s_cmp_lg_u32 s{sMH}, s{sKH}
    s_cbranch_scc1 M_PL_S
    s_lshl_b32 s{sT0}, s{sRT}, 1
    s_add_u32 s{sT0}, s{sT0}, s{sKH}
    s_lshl_b32 s{sT0}, s{sT0}, 2
    s_add_u32 s{sT0}, s{sT0}, s{sKQ}
    s_lshl_b32 s{sT1}, s{sT0}, 15
    s_lshl_b32 s{sT2}, s{sCT}, 8
    s_add_u32 s{sT2}, s{sT1}, s{sT2}
    v_and_b32 v{A}, 15, v1
    v_lshrrev_b32 v{B}, 4, v1
    v_lshlrev_b32 v{PL_OUT}, 11, v{A}
    v_lshl_add_u32 v{PL_OUT}, v{B}, 4, v{PL_OUT}
    v_add_u32 v{PL_OUT}, s{sT2}, v{PL_OUT}
    s_lshl_b32 s{sT2}, s{sCT}, 12
    s_add_u32 s{sT2}, s{sT1}, s{sT2}
    v_lshlrev_b32 v{A}, 4, v{A}
    v_lshl_add_u32 v{A}, v{B}, 8, v{A}
    v_add_u32 v{A}, s{sT2}, v{A}
    s_branch M_PL_E
M_PL_S:
    s_mul_i32 s{sT0}, s{sKG}, 224
    s_mul_i32 s{sT1}, s{sKQ}, 56
    s_add_u32 s{sT0}, s{sT0}, s{sT1}
    s_lshl_b32 s{sT1}, s{sT0}, 11
    s_lshl_b32 s{sT2}, s{sCG}, 7
    s_add_u32 s{sT1}, s{sT1}, s{sT2}
    v_lshrrev_b32 v{A}, 3, v1
    v_lshlrev_b32 v{A}, 11, v{A}
    v_and_b32 v{B}, 7, v1
    v_lshl_add_u32 v{A}, v{B}, 4, v{A}
    v_add_u32 v{A}, s{sT1}, v{A}
    v_mov_b32 v{PL_OUT}, 0
M_PL_E:"""
    if n == 9:
        return f"s_cmp_eq_u32 s{sMH}, s{sKH}\ns_cbranch_scc1 M_PL9\n{gu_loads(B)}M_PL9:"
    i = n - 1
    kl = (f"global_load_dwordx4 v[{PL_B+4*i}:{PL_B+4*i+3}], v{A}, s[18:19] offset:{i*1024} sc1" if i < 4 else
          f"global_load_dwordx4 v[{PL_A+4*(i-4)}:{PL_A+4*(i-4)+3}], v{PL_OUT}, s[74:75] offset:{(i-4)*64}")
    sl = (f"global_load_dwordx4 v[{PL_A+4*i}:{PL_A+4*i+3}], v{A}, s[16:17]\nv_add_u32 v{A}, 0x4000, v{A}\n" if i < 7 else "")
    return f"s_cmp_lg_u32 s{sMH}, s{sKH}\ns_cbranch_scc1 M_PLS{n}\n{kl}\ns_branch M_PLE{n}\nM_PLS{n}:\n{sl}M_PLE{n}:"
def phase3(p, ST, stamp):
    AC3 = 128; OR = 64; WF = 16; XP = 32; GP = 48
    vAo, vRd, vRd2, vOut, vFa, vFv = 2, 3, 8, 9, 10, 11; vW = 4
    ST(False)
    def oload(slot, i):
        r = OR + slot * 16 + i * 4
        t = f"buffer_load_dwordx4 v[{r}:{r+3}], v{vAo}, s[{SRD_A}:{SRD_A+3}], s{sA} offen offset:{i*1024} sc1"
        if i == 3: t += f"\ns_add_u32 s{sA}, s{sA}, 131072"
        return t
    def arrive(lab, n):
        p(f"""
    v_mov_b32 v{vT0}, {CNT_A}
    v_mov_b32 v{vT1}, 1
    s_waitcnt vmcnt({n})
    s_mov_b64 exec, 1
    ds_add_rtn_u32 v{vT2}, v{vT0}, v{vT1}
    s_mov_b64 exec, -1
    s_waitcnt lgkmcnt(0)
    v_readfirstlane_b32 s{sT0}, v{vT2}
    s_cmp_lg_u32 s{sT0}, 7
    s_cbranch_scc1 {lab}
    """)
        set_flag(p, 1)
        p.label(lab)
    NR = PL_B; GG = 144; TT = 176
    p(f"""
    ST3_0
    v_mov_b32 v{vW}, v{EW}
    v_mov_b32 v{vW+1}, v{EW+1}
    v_mov_b32 v{vW+2}, v{EW+2}
    v_mov_b32 v{vW+3}, v{EW+3}
    v_mov_b32 v{vOut}, v{PL_OUT}
    s_waitcnt vmcnt(8)
    s_cmp_lg_u32 s{sMH}, s{sKH}
    s_cbranch_scc1 M_SEND0
    """)
    for j in range(16):
        p(f"v_lshlrev_b32 v{GG+2*j}, 16, v{NR+j}\nv_and_b32 v{GG+2*j+1}, 0xffff0000, v{NR+j}\nv_mov_b32 v{XP+j}, v{PL_A+j}")
    for c in range(32): p(f"v_mul_f32 v{TT+c}, 0xbfb8aa3b, v{GG+c}")
    for c in range(32): p(f"v_exp_f32 v{TT+c}, v{TT+c}")
    for c in range(32): p(f"v_add_f32 v{TT+c}, 1.0, v{TT+c}")
    for c in range(32): p(f"v_rcp_f32 v{TT+c}, v{TT+c}")
    for c in range(32): p(f"v_mul_f32 v{GG+c}, v{GG+c}, v{TT+c}")
    for c in range(16): p(f"v_cvt_pk_bf16_f32 v{GP+c}, v{GG+2*c}, v{GG+2*c+1}")
    arrive("M_ARR0", 0)
    p("ST3_6\ns_branch M_JOIN0")
    p.label("M_SEND0")
    WD = PL_A; GR = PL_G; GA = 144; AC = 152; T = 160; SW = 164
    guld = gu_loads(GA)
    p(guld)
    arrive("M_ARR3", 8)
    p(f"s_mov_b32 s73, {SPIN_MAX}\ns_mov_b32 s{sIT}, 1\ns_waitcnt vmcnt(0)")
    p.label("M_POLL2")
    for q in range(8): p(f"v_xor_b32 v{GR+2*q+1}, s{sNON}, v{GR+2*q+1}")
    p(f"""
    v_or3_b32 v{GR+1}, v{GR+1}, v{GR+3}, v{GR+5}
    v_or3_b32 v{GR+7}, v{GR+7}, v{GR+9}, v{GR+11}
    v_or3_b32 v{GR+1}, v{GR+1}, v{GR+13}, v{GR+15}
    v_or_b32 v{GR+1}, v{GR+1}, v{GR+7}
    v_cmp_ne_u32 vcc, 0, v{GR+1}
    s_cbranch_vccz M_POLL2_OK
    s_cmp_lg_u32 s{sIT}, 0
    s_cbranch_scc1 M_ARR2
    s_mov_b32 s{sIT}, 1
    """)
    arrive("M_ARR2", 0)
    p(f"""
    s_sleep 10
    {guld}
    s_waitcnt vmcnt(0)
    s_sub_u32 s73, s73, 1
    s_cmp_lg_u32 s73, 0
    s_cbranch_scc1 M_POLL2
    """)
    p.label("M_POLL2_OK")
    p(f"v_mov_b32 v{GR+1}, v{GR+2}")
    for q in range(1, 4):
        p(f"v_add_f32 v{GR}, v{GR}, v{GR+4*q}\nv_add_f32 v{GR+1}, v{GR+1}, v{GR+4*q+2}")
    rbf(p, GR); rbf(p, GR + 1)
    silu(p, GR, GR, GR + 2)
    rbf(p, GR)
    p(f"v_mul_f32 v{GR}, v{GR}, v{GR+1}")
    rbf(p, GR)
    p(f"""
    s_lshl_b32 s{sT0}, s{sKQ}, 8
    s_add_u32 s{sT0}, s{sT0}, {L_H3}
    v_lshlrev_b32 v{vT0}, 2, v1
    v_add_u32 v{vT0}, s{sT0}, v{vT0}
    ds_write_b32 v{vT0}, v{GR}
    v_lshrrev_b32 v{vT1}, 3, v1
    v_lshlrev_b32 v{vT1}, 2, v{vT1}
    v_add_u32 v{vT1}, s{sT0}, v{vT1}
    s_waitcnt lgkmcnt(0)
    """)
    for i in range(7): p(f"ds_read_b32 v{GR+i}, v{vT1} offset:{i*32}")
    p("s_waitcnt lgkmcnt(0)")
    for i in range(7):
        for j in range(4):
            w = WD + 4 * i + j
            p(f"v_lshlrev_b32 v{T}, 16, v{w}\nv_and_b32 v{T+1}, 0xffff0000, v{w}")
            if i == 0: p(f"v_mul_f32 v{AC+2*j}, v{T}, v{GR}\nv_mul_f32 v{AC+2*j+1}, v{T+1}, v{GR}")
            else: p(f"v_fmac_f32 v{AC+2*j}, v{T}, v{GR+i}\nv_fmac_f32 v{AC+2*j+1}, v{T+1}, v{GR+i}")
    for c in range(8): p(f"v_add_f32_dpp v{AC+c}, v{AC+c}, v{AC+c} row_ror:8 row_mask:0xf bank_mask:0xf")
    for sw in ("v_permlane16_swap_b32", "v_permlane32_swap_b32"):
        for c in range(8): p(f"v_mov_b32 v{SW+c}, v{AC+c}")
        for c in range(8): p(f"{sw} v{AC+c}, v{SW+c}")
        for c in range(8): p(f"v_add_f32 v{AC+c}, v{AC+c}, v{SW+c}")
    p(f"""
    v_and_b32 v{vT0}, 7, v1
    v_lshlrev_b32 v{vT0}, 5, v{vT0}
    s_add_u32 s{sT0}, s{sT0}, 1024
    v_add_u32 v{vT0}, s{sT0}, v{vT0}
    ds_write_b128 v{vT0}, v[{AC}:{AC+3}]
    ds_write_b128 v{vT0}, v[{AC+4}:{AC+7}] offset:16
    v_mov_b32 v{vT0}, {CNT_B}
    v_mov_b32 v{vT1}, 1
    s_waitcnt lgkmcnt(0)
    s_mov_b64 exec, 1
    ds_add_rtn_u32 v{vT2}, v{vT0}, v{vT1}
    s_mov_b64 exec, -1
    s_waitcnt lgkmcnt(0)
    v_readfirstlane_b32 s{sT0}, v{vT2}
    s_cmp_lg_u32 s{sT0}, 3
    s_cbranch_scc1 M_SEND_END
    v_lshlrev_b32 v{vT0}, 2, v1
    v_add_u32 v{vT1}, {L_H3 + 1024}, v{vT0}
    ds_read_b32 v{GR}, v{vT1}
    ds_read_b32 v{GR+1}, v{vT1} offset:256
    ds_read_b32 v{GR+2}, v{vT1} offset:512
    ds_read_b32 v{GR+3}, v{vT1} offset:768
    s_lshl_b32 s{sT0}, s{sKG}, 13
    s_lshl_b32 s{sT1}, s{sCG}, 9
    s_add_u32 s{sT0}, s{sT0}, s{sT1}
    s_add_u32 s{sT0}, s{sT0}, {WS_YP}
    v_lshlrev_b32 v{vT0}, 1, v{vT0}
    v_add_u32 v{vT0}, s{sT0}, v{vT0}
    s_waitcnt lgkmcnt(0)
    v_add_f32 v{GR}, v{GR}, v{GR+1}
    v_add_f32 v{GR+2}, v{GR+2}, v{GR+3}
    v_add_f32 v{GR}, v{GR}, v{GR+2}
    v_mov_b32 v{GR+1}, s{sNON}
    global_store_dwordx2 v{vT0}, v[{GR}:{GR+1}], s[18:19] sc1
    """)
    p.label("M_SEND_END")
    p(f"s_and_b32 s{sT3}, s{sBo}, 0x7fff")
    for sl in range(3):
        for hf in range(2):
            p(f"s_add_u32 m0, s{sMb}, {sl*8192 + hf*4096}\ns_nop 0")
            for i in range(4):
                p(f"buffer_load_dwordx4 v{vW+i}, s[{SRD_B}:{SRD_B+3}], s{sT3} offen offset:{i*1024} lds")
            p(f"s_add_u32 s{sT3}, s{sT3}, 32768")
    p(f"s_cmp_lg_u32 s{sIT}, 0\ns_cbranch_scc1 M_JOIN0")
    arrive("M_ARR1", 0)
    p("ST3_6")
    p.label("M_JOIN0")
    p(f"s_add_u32 s{sBo}, s{sBo}, {3*65536}")
    p(f"""
    ST3_1
    s_lshr_b32 s{sT0}, s{sRT}, 1
    s_lshl_b32 s{sT0}, s{sT0}, 1
    s_add_u32 s{sT0}, s{sT0}, s{sKH}
    s_lshl_b32 s{sT0}, s{sT0}, 2
    s_add_u32 s{sT0}, s{sT0}, s{sKQ}
    s_lshl_b32 s{sT0}, s{sT0}, 9
    s_add_u32 s{sT0}, s{sT0}, {WS_FLG + 32768}
    v_and_b32 v{vFa}, 3, v1
    v_lshlrev_b32 v{vFa}, 7, v{vFa}
    v_add_u32 v{vFa}, s{sT0}, v{vFa}
    global_load_dword v{vFv}, v{vFa}, s[18:19] sc1
    v_lshlrev_b32 v{vAo}, 4, v1
    s_mov_b32 s{sIT}, 0
    v_lshrrev_b32 v{vT0}, 4, v1
    v_and_b32 v{vT1}, 3, v1
    v_bfe_u32 v{vT3}, v1, 2, 2
    v_lshlrev_b32 v{vRd}, 11, v{vT0}
    v_lshl_add_u32 v{vRd}, v{vT3}, 6, v{vRd}
    v_lshl_add_u32 v{vRd}, v{vT1}, 4, v{vRd}
    v_add_u32 v{vRd2}, s{sMb2}, v{vRd}
    v_add_u32 v{vRd}, s{sMb}, v{vRd}
    """)
    for i in range(128): p(f"v_mov_b32 v{AC3+i}, 0")
    p(f"""
    s_mov_b32 s73, {SPIN_MAX}
M_POLL1:
    s_waitcnt vmcnt(0)
    v_cmp_ne_u32 vcc, s{sNON}, v{vFv}
    s_cbranch_vccz M_POLL1_OK
    s_sleep 2
    global_load_dword v{vFv}, v{vFa}, s[18:19] sc1
    s_sub_u32 s73, s73, 1
    s_cmp_lg_u32 s73, 0
    s_cbranch_scc1 M_POLL1
M_POLL1_OK:
    ST3_2
    """)
    for sl in range(3):
        for i in range(4): p(oload(sl, i))
    p("ST3_3\ns_barrier\nST3_4\ns_waitcnt vmcnt(8)\nST3_5")
    ST(False)
    lq = Q("lgkmcnt", 15)
    if stamp: p("s_waitcnt lgkmcnt(0)")
    def wread(slot, f):
        u, e = f >> 1, f & 1
        r = WF + (f & 3) * 4
        for t in range(2):
            p(f"ds_read_b64_tr_b16 v[{r+2*t}:{r+2*t+1}], v{vRd2 if slot == 3 else vRd} offset:{slot*8192 + t*1024 + u*256 + e*8}")
            lq.issue(("W", f & 3, t))
    LAW = 3
    for f in range(LAW): wread(0, f)
    st0 = list(lq.q)
    p(".p2align 6")
    p.label("M_P3")
    for st in range(4):
        n = (st + 3) & 3
        L = [wdma(n, i, vW) for i in range(4)] + [oload(n, i) for i in range(4)]
        for f in range(8):
            fn = f + LAW; ns = st
            if fn >= 8: fn -= 8; ns = (st + 1) & 3
            lq.wait(p, ("W", f & 3, 1))
            for i in range(4):
                d = AC3 + (i * 8 + f) * 4; a = WF + (f & 3) * 4; b = OR + st * 16 + i * 4
                p(f"v_mfma_f32_16x16x32_bf16 v[{d}:{d+3}], v[{a}:{a+3}], v[{b}:{b+3}], v[{d}:{d+3}]")
                if i == 0: wread(ns, fn)
                if i == 2: p(L[f])
        if st == 3: p(f"s_add_u32 s{sIT}, s{sIT}, 1\ns_cmp_lt_u32 s{sIT}, 4")
        p("s_waitcnt vmcnt(12)\ns_barrier")
    assert lq.q == st0
    p(f"""
    s_cbranch_scc1 M_P3
    s_waitcnt vmcnt(0) lgkmcnt(0)
    s_mul_i32 s{sT0}, s{sKQ}, 24576
    v_add_u32 v{vT0}, s{sT0}, v{vAo}
    v_add_u32 v{vRd2}, 0x10000, v{vAo}
    s_barrier
    """)
    ST(False)
    p("ST4_0")
    RD = 64
    OWN = 16
    OWN = 96
    def red_write(tag):
        for w in range(3): p(f"s_cmp_eq_u32 s{sKQ}, {w}\ns_cbranch_scc1 M_RW{tag}{w}")
        for w in (3, 0, 1, 2):
            if w != 3: p.label(f"M_RW{tag}{w}")
            for kk in range(1, 4):
                i = (w + kk) & 3; slot = 3 - kk
                base = (i * 3 + slot) * 8192
                for f in range(8):
                    q = i * 8 + f
                    off = base + f * 1024
                    p(f"ds_write_b128 v{vRd2 if off >= 65536 else vAo}, v[{AC3+4*q}:{AC3+4*q+3}] offset:{off & 0xffff}")
            for c in range(32): p(f"v_mov_b32 v{OWN+c}, v{AC3+w*32+c}")
            if w != 2: p(f"s_branch M_RJ{tag}")
        p.label(f"M_RJ{tag}")
    def red_read(after=None):
        for half in range(2):
            T0 = AC3 + half * 48
            for sl in range(3):
                for ff in range(4):
                    r = T0 + (sl * 4 + ff) * 4
                    p(f"ds_read_b128 v[{r}:{r+3}], v{vT0} offset:{sl*8192 + (half*4+ff)*1024}")
            if half == 0: continue
        for half in range(2):
            T0 = AC3 + half * 48
            for sl in range(3):
                n = 24 - (half * 12 + sl * 4 + 4)
                p(f"s_waitcnt lgkmcnt({min(n, 15)})")
                for c in range(16): p(f"v_add_f32 v{OWN+half*16+c}, v{OWN+half*16+c}, v{T0+sl*16+c}")
            if after: after(half)
    p(f"""
    s_cmp_eq_u32 s{sMH}, s{sKH}
    s_cbranch_scc1 M_KEEP1
    """)
    red_write("S")
    p("s_waitcnt lgkmcnt(0)\nST4_1\ns_barrier\nST4_2")
    p(f"""
    s_lshl_b32 s{sT0}, s2, 2
    s_add_u32 s{sT0}, s{sT0}, s{sKQ}
    s_lshl_b32 s{sT1}, s{sT0}, 13
    s_add_u32 s{sT1}, s{sT1}, {WS_EX}
    v_add_u32 v{vFa}, s{sT1}, v{vAo}
    v_add_u32 v{vFv}, 4096, v{vFa}
    s_lshl_b32 s{sT0}, s{sT0}, 7
    s_add_u32 s{sT0}, s{sT0}, {WS_FLG2}
    v_mov_b32 v{vT2}, s{sT0}
    v_mov_b32 v{vT3}, s{sNON}
    """)
    def sst(half):
        for f in range(4 * half, 4 * half + 4):
            p(f"global_store_dwordx4 v{vFv if f >= 4 else vFa}, v[{OWN+4*f}:{OWN+4*f+3}], s[18:19] offset:{(f&3)*1024} sc1")
    red_read(sst)
    p(f"""
    ST4_3
    s_barrier
    ST4_4
    s_waitcnt vmcnt(0)
    ST4_5
    ST4_6
    ST4_7
    s_mov_b64 exec, 1
    global_store_dword v{vT2}, v{vT3}, s[18:19] sc1
    s_mov_b64 exec, -1
    """)
    if stamp:
        p("s_memrealtime s[98:99]")
        stamp_out(p, 0x3000000)
    p("s_branch K2_END")
    p.label("M_KEEP1")
    p(f"""
    s_barrier
    s_xor_b32 s{sT0}, s2, 128
    s_lshl_b32 s{sT0}, s{sT0}, 2
    s_add_u32 s{sT0}, s{sT0}, s{sKQ}
    s_lshl_b32 s{sT1}, s{sT0}, 13
    s_add_u32 s{sT1}, s{sT1}, {WS_EX}
    v_add_u32 v{vFa}, s{sT1}, v{vAo}
    v_add_u32 v{vFv}, 4096, v{vFa}
    s_lshl_b32 s{sT0}, s{sT0}, 7
    s_add_u32 s{sT0}, s{sT0}, {WS_FLG2}
    v_mov_b32 v{vT2}, s{sT0}
    s_barrier
    """)
    p("ST4_1")
    red_write("K")
    p(f"global_load_dword v{vT3}, v{vT2}, s[18:19] sc1")
    p(f"""
    v_mov_b32 v64, {CNT_B}
    v_mov_b32 v65, 1
    s_waitcnt lgkmcnt(0)
    ST4_2
    s_mov_b64 exec, 1
    ds_add_u32 v64, v65
    s_mov_b64 exec, -1
    s_mov_b32 s73, {SPIN_MAX*16}
M_B4:
    ds_read_b32 v66, v64
    s_waitcnt lgkmcnt(0)
    v_readfirstlane_b32 s{sT0}, v66
    s_cmp_ge_u32 s{sT0}, 8
    s_cbranch_scc1 M_B4_OK
    s_sub_u32 s73, s73, 1
    s_cmp_lg_u32 s73, 0
    s_cbranch_scc1 M_B4
M_B4_OK:
    ST4_3
    """)
    PR = 224
    prl = "\n".join(f"global_load_dwordx4 v[{PR+4*f}:{PR+4*f+3}], v{vFv if f >= 4 else vFa}, s[18:19] offset:{(f&3)*1024} sc1" for f in range(8))
    p(f"""
    s_waitcnt vmcnt(0)
    v_cmp_ne_u32 vcc, s{sNON}, v{vT3}
    s_mov_b32 s{sIT}, 0
    s_cbranch_vccnz M_PRL
    s_mov_b32 s{sIT}, 1
    {prl}
M_PRL:
    """)
    red_read()
    p(f"""
    s_lshl_b32 s{sT0}, s{sRT}, 1
    s_add_u32 s{sT0}, s{sT0}, s{sKH}
    s_lshl_b32 s{sT0}, s{sT0}, 2
    s_add_u32 s{sT0}, s{sT0}, s{sKQ}
    s_lshr_b32 s{sT1}, s{sIDX}, 4
    s_cmp_lg_u32 s{sT0}, s{sT1}
    s_cbranch_scc1 M_H5
    s_mov_b32 s73, {SPIN_MAX}
M_POLL3:
    s_lshl_b32 s{sT0}, s{sCT}, 10
    s_add_u32 s{sT0}, s{sT0}, {WS_YP}
    v_add_u32 v26, s{sT0}, v{vAo}
    """)
    YR = 128
    for q in range(16):
        p(f"global_load_dwordx4 v[{YR+4*q}:{YR+4*q+3}], v26, s[18:19] sc1")
        if q < 15: p(f"v_add_u32 v26, 8192, v26")
    p(f"s_waitcnt vmcnt(0)\nv_mov_b32 v27, 0")
    for q in range(16):
        p(f"v_xor_b32 v{YR+4*q+1}, s{sNON}, v{YR+4*q+1}\nv_xor_b32 v{YR+4*q+3}, s{sNON}, v{YR+4*q+3}")
        p(f"v_or3_b32 v27, v27, v{YR+4*q+1}, v{YR+4*q+3}")
    p(f"""
    v_cmp_ne_u32 vcc, 0, v27
    s_cbranch_vccz M_POLL3_OK
    s_sleep 10
    s_sub_u32 s73, s73, 1
    s_cmp_lg_u32 s73, 0
    s_cbranch_scc1 M_POLL3
M_POLL3_OK:
    s_lshr_b32 s{sT0}, s{sIDX}, 4
    s_lshl_b32 s{sT0}, s{sT0}, 15
    s_lshl_b32 s{sT1}, s{sCT}, 12
    s_add_u32 s{sT0}, s{sT0}, s{sT1}
    s_and_b32 s{sT1}, s{sIDX}, 15
    s_lshl_b32 s{sT1}, s{sT1}, 4
    s_add_u32 s{sT0}, s{sT0}, s{sT1}
    v_lshrrev_b32 v26, 2, v1
    v_lshlrev_b32 v26, 8, v26
    v_and_b32 v27, 3, v1
    v_lshl_add_u32 v26, v27, 2, v26
    v_add_u32 v26, s{sT0}, v26
    global_load_dword v24, v26, s[18:19] sc1
    s_and_b32 s{sT0}, s{sKEY}, 0xffff0000
    s_ashr_i32 s{sT1}, s{sT0}, 31
    s_not_b32 s{sT1}, s{sT1}
    s_or_b32 s{sT1}, s{sT1}, 0x80000000
    s_xor_b32 s{sT0}, s{sT0}, s{sT1}
    s_and_b32 s{sT0}, s{sT0}, 0xffff0000
    v_mov_b32 v25, s{sT0}
    v_mul_f32 v25, 0xbfb8aa3b, v25
    v_exp_f32 v25, v25
    v_add_f32 v25, 1.0, v25
    v_rcp_f32 v25, v25
    """)
    rbf(p, 25)
    p(f"v_mov_b32 v16, v{YR}\nv_mov_b32 v17, v{YR+2}")
    for q in range(1, 16):
        p(f"v_add_f32 v16, v16, v{YR+4*q}\nv_add_f32 v17, v17, v{YR+4*q+2}")
    p("s_waitcnt vmcnt(0)\nv_lshlrev_b32 v18, 16, v24\nv_and_b32 v19, 0xffff0000, v24")
    for c in range(2):
        rbf(p, 16 + c)
        p(f"v_mul_f32 v{16+c}, v{16+c}, v25")
        rbf(p, 16 + c)
        p(f"v_add_f32 v{16+c}, v{16+c}, v{18+c}")
        rbf(p, 16 + c)
        silu(p, 16 + c, 16 + c, 20 + c)
    p(f"""
    v_cvt_pk_bf16_f32 v16, v16, v17
    v_lshlrev_b32 v26, 2, v1
    v_add_u32 v26, {L_H3 + 4096}, v26
    ds_write_b32 v26, v16
    v_lshrrev_b32 v27, 4, v1
    v_lshlrev_b32 v27, 4, v27
    v_add_u32 v27, {L_H3 + 4096}, v27
    v_and_b32 v26, 15, v1
    s_and_b32 s{sT0}, s{sIDX}, 15
    v_cmp_eq_u32 vcc, s{sT0}, v26
    s_waitcnt lgkmcnt(0)
    """)
    for u in range(4): p(f"ds_read_b128 v[{64+4*u}:{67+4*u}], v27 offset:{u*64}")
    p("s_waitcnt lgkmcnt(0)")
    for c in range(16): p(f"v_cndmask_b32 v{GP+c}, v{GP+c}, v{64+c}, vcc")
    p.label("M_H5")
    XU = 128; GU_ = 160
    for j in range(16):
        p(f"v_lshlrev_b32 v{XU+2*j}, 16, v{XP+j}\nv_and_b32 v{XU+2*j+1}, 0xffff0000, v{XP+j}")
        p(f"v_lshlrev_b32 v{GU_+2*j}, 16, v{GP+j}\nv_and_b32 v{GU_+2*j+1}, 0xffff0000, v{GP+j}")
    p(f"""
    ST4_4
    s_cmp_lg_u32 s{sIT}, 0
    s_cbranch_scc1 M_POLL4_DONE
    s_mov_b32 s73, {SPIN_MAX}
M_POLL4:
    global_load_dword v{vT3}, v{vT2}, s[18:19] sc1
    s_waitcnt vmcnt(0)
    v_cmp_ne_u32 vcc, s{sNON}, v{vT3}
    s_cbranch_vccz M_POLL4_OK
    s_sleep 1
    s_sub_u32 s73, s73, 1
    s_cmp_lg_u32 s73, 0
    s_cbranch_scc1 M_POLL4
M_POLL4_OK:
    {prl}
M_POLL4_DONE:
    ST4_5
    """)
    for u in range(4):
        p(f"s_waitcnt vmcnt({6 - 2*u + u})")
        for c in range(8): p(f"v_add_f32 v{OWN+8*u+c}, v{OWN+8*u+c}, v{PR+8*u+c}")
        for c in range(8): p(f"v_fmac_f32 v{XU+8*u+c}, v{OWN+8*u+c}, v{GU_+8*u+c}")
        o = 16 + u * 4
        for j in range(4): p(f"v_cvt_pk_bf16_f32 v{o+j}, v{XU+u*8+2*j}, v{XU+u*8+2*j+1}")
        p(f"global_store_dwordx4 v{vOut}, v[{o}:{o+3}], s[78:79] offset:{u*64}")
    if DBGT[0] and stamp:
        p(f"""
    s_waitcnt vmcnt(0)
    s_memrealtime s[98:99]
    s_memtime s[62:63]
    s_lshl_b32 s60, s2, 3
    s_add_u32 s60, s60, s{sW}
    s_cmp_lg_u32 s60, {37*8+4}
    s_cbranch_scc1 M_DBGE
    s_waitcnt lgkmcnt(0)
    v_mov_b32 v16, 0
    """)
        for i in range(7):
            p(f"s_sub_u32 s60, s{82+2*i}, s{80+2*i}\nv_mov_b32 v17, s60\nglobal_store_dword v16, v17, s[66:67] offset:{8+4*i}")
        p("s_sub_u32 s60, s62, s94\nv_mov_b32 v17, s60\nglobal_store_dword v16, v17, s[66:67] offset:36")
        p("s_sub_u32 s60, s98, s96\nv_mov_b32 v17, s60\nglobal_store_dword v16, v17, s[66:67] offset:40")
        p.label("M_DBGE")
    elif DBGT[0]:
        p(f"""
    s_waitcnt vmcnt(0)
    s_memrealtime s[98:99]
    s_waitcnt lgkmcnt(0)
    v_mov_b32 v16, 4
    v_mov_b32 v17, s98
    s_mov_b64 exec, 1
    global_atomic_umax v16, v17, s[66:67] sc1
    s_mov_b64 exec, -1
    """)
    if stamp:
        p("ST4_6\ns_waitcnt vmcnt(0)\nST4_7\ns_memrealtime s[98:99]")
        stamp_out(p, 0x3000000)

def stamp_out(p, base):
    p(f"""
    s_waitcnt lgkmcnt(0)
    s_lshl_b32 s{sT0}, s2, 3
    s_add_u32 s{sT0}, s{sT0}, s{sW}
    s_lshl_b32 s{sT0}, s{sT0}, 6
    s_add_u32 s{sT0}, s{sT0}, {base}
    v_mov_b32 v{vT0}, s{sT0}
    """)
    for i in range(10):
        p(f"v_mov_b32 v{vT1}, s{80+2*i}\nglobal_store_dword v{vT0}, v{vT1}, s[18:19] offset:{4*i}")

def gen_mega(ffn=True, slow=True, stamp=False, dbg=()):
    p = Prog()
    stamps = []
    mode0 = 'st0' in dbg or 'st1' in dbg
    MODE0[0] = mode0
    DBGT[0] = 'dbgt' in dbg
    NOEW[0] = 'noew' in dbg
    MODE3[0] = 'st3' in dbg
    def ST0():
        if stamp and mode0 and 'st1' not in dbg:
            i = len(stamps); stamps.append(i)
            p(f"s_memtime s[{80+2*i}:{81+2*i}]")
    global _ST0
    _ST0 = ST0
    def ST(wait=True):
        if stamp and mode0 and len(stamps) > 0:
            if wait: p("s_waitcnt lgkmcnt(0)")
            return
        if stamp:
            i = len(stamps); stamps.append(i)
            if not (MODE3[0] and i == 6): p(f"s_memtime s[{80+2*i}:{81+2*i}]")
            if i == 0: p("s_memrealtime s[96:97]")
            if wait: p("s_waitcnt lgkmcnt(0)")
    name = KNAME
    kernel_header(p, name)
    p(f"""
    s_cmp_ge_u32 s2, 256
    s_cbranch_scc1 K2_END
    s_load_dwordx2 s[74:75], s[0:1], 0
    s_load_dwordx2 s[76:77], s[0:1], 48
    s_load_dwordx4 s[8:11], s[0:1], 24
    s_load_dwordx2 s[18:19], s[0:1], 96
    s_load_dwordx4 s[4:7], s[0:1], 8
    s_load_dwordx4 s[12:15], s[0:1], 56
    s_load_dwordx2 s[16:17], s[0:1], 72
    s_load_dwordx2 s[78:79], s[0:1], 80
    s_load_dwordx2 s[66:67], s[0:1], 88
    s_getpc_b64 s[{sPC}:{sPC+1}]
    v_lshrrev_b32 v{vT2}, 6, v0
    v_and_b32 v1, 63, v0
    v_readfirstlane_b32 s{sW}, v{vT2}
    s_and_b32 s{sT0}, s2, 7
    s_lshr_b32 s{sT1}, s2, 3
    s_lshr_b32 s{sG}, s{sT0}, 1
    s_and_b32 s{sT0}, s{sT0}, 1
    s_lshl_b32 s{sT0}, s{sT0}, 2
    s_lshr_b32 s{sT2}, s{sT1}, 3
    s_add_u32 s{sRB}, s{sT0}, s{sT2}
    s_and_b32 s{sT1}, s{sT1}, 7
    s_lshl_b32 s{sHEAD}, s{sG}, 3
    s_add_u32 s{sHEAD}, s{sHEAD}, s{sT1}
    s_lshl_b32 s{sFL}, s{sRB}, 5
    s_add_u32 s{sFL}, s{sFL}, s{sHEAD}
    """)
    ST(False)
    p(f"""
    v_lshlrev_b32 v{E+1}, 7, v0
    v_min_u32 v{E+1}, CODESIZE, v{E+1}
    global_load_dword v{E}, v{E+1}, s[{sPC}:{sPC+1}]
    v_lshrrev_b32 v{vT0}, 4, v1
    v_and_b32 v{vT1}, 3, v1
    v_lshlrev_b32 v{vT1}, 4, v{vT1}
    v_lshl_add_u32 v{vT1}, v{vT0}, 6, v{vT1}
    v_bfe_u32 v{vT3}, v1, 2, 2
    v_lshl_add_u32 v{vDq}, v{vT3}, 13, v{vT1}
    v_and_b32 v{vDq2}, 1, v{vT2}
    v_lshlrev_b32 v{vDq2}, 5, v{vDq2}
    v_xor_b32 v{vDq}, v{vDq}, v{vDq2}
    v_add_u32 v{vDq2}, {32768-1024}, v{vDq}
    v_lshrrev_b32 v{vXB1}, 3, v1
    v_and_b32 v{vXD}, 7, v1
    v_xor_b32 v{vXD}, v{vXD}, v{vT0}
    v_lshlrev_b32 v{vXD}, 4, v{vXD}
    v_lshl_add_u32 v{vXD}, v{vXB1}, 11, v{vXD}
    v_xor_b32 v{vXD+1}, 64, v{vXD}
    v_add_u32 v{vXD+1}, {16384-1024}, v{vXD+1}
    v_add_u32 v{vXD+2}, {32768-2048}, v{vXD}
    v_add_u32 v{vXD+3}, {32768-2048}, v{vXD+1}
    s_lshl_b32 s{sXM}, s{sW}, 12
    s_add_u32 s{sXM}, s{sXM}, {L_X}
    s_lshl_b32 s{sWq}, s{sW}, 16
    s_lshl_b32 s{sM}, s{sW}, 11
    s_mov_b32 s{sB}, 0
    s_lshl_b32 s{sT0}, s{sHEAD}, 8
    s_lshl_b32 s{sT1}, s{sRB}, 3
    s_add_u32 s{sT1}, s{sT1}, s{sW}
    s_lshl_b32 s{sT1}, s{sT1}, 16
    s_mov_b32 s{SRD_WQ+3}, 0x20000
    s_sub_u32 s{SRD_WQ+2}, 0x800000, s{sT0}
    s_mov_b32 s{SRD_XN+2}, 0x10000
    s_mov_b32 s{SRD_XN+3}, 0x20000
    v_lshlrev_b32 v{E+2}, 4, v1
    v_lshl_add_u32 v{vLXA}, v{vT2}, 11, v{E+2}
    s_lshl_b32 s{sT2}, s{sFL}, 14
    v_add_u32 v{vLXA}, s{sT2}, v{vLXA}
    s_memrealtime s[{sT2}:{sT3}]
    s_waitcnt lgkmcnt(0)
    s_add_u32 s{SRD_WQ}, s8, s{sT0}
    s_addc_u32 s{SRD_WQ+1}, s9, 0
    s_add_u32 s{SRD_XN}, s74, s{sT1}
    s_addc_u32 s{SRD_XN+1}, s75, 0
    """)
    def dma_wq(slot, e):
        if e == 0:
            return f"""s_add_u32 m0, s{sM}, {slot*16384}
    s_nop 0
    buffer_load_dwordx4 v{vDq}, s[{SRD_WQ}:{SRD_WQ+3}], s{sWq} offen lds"""
        return f"""s_add_u32 m0, s{sM}, {slot*16384}
    s_nop 0
    buffer_load_dwordx4 v{vDq2}, s[{SRD_WQ}:{SRD_WQ+3}], s{sWq} offen offset:1024 lds
    s_add_u32 s{sWq}, s{sWq}, 524288"""
    def load_b(buf, k):
        t = ""
        if k == 0: t = f"s_add_u32 m0, s{sXM}, {(buf & 1)*32768}\ns_nop 0\n"
        t += f"buffer_load_dwordx4 v{vXD+k}, s[{SRD_XN}:{SRD_XN+3}], s{sB} offen offset:{k*1024} lds"
        if k == 3: t += f"\ns_add_u32 s{sB}, s{sB}, 128"
        return t
    lq = Q("lgkmcnt", 15); vq = Q("vmcnt", 63)
    vq.issue(("CP", 0))
    def J(tag, code): p(code); vq.issue(tag)
    LXj = lambda n: (("LX", n), f"global_load_dwordx4 v[{LN_X+4*n}:{LN_X+4*n+3}], v{vLXA}, s[74:75] offset:{n*1024}")
    CSj = lambda n: (("CS", n), f"s_mov_b32 s{sT3}, {n*0x200000}\nbuffer_load_dwordx4 v[{CSR+4*n}:{CSR+4*n+3}], v{vCSA}, s[{SRD_WQ}:{SRD_WQ+3}], s{sT3} offen")
    WRj = lambda n: (("LX", 2 + n), f"global_load_dwordx4 v[{LN_W+4*n}:{LN_W+4*n+3}], v{E+2}, s[76:77] offset:{n*1024}")
    J(*LXj(0)); J(*LXj(1)); J(*WRj(0)); J(*WRj(1))
    J(("W", 0, 0), dma_wq(0, 0)); J(("W", 0, 1), dma_wq(0, 1))
    for kk in range(4): J(("X", 0, kk), load_b(0, kk))
    J(("W", 1, 0), dma_wq(1, 0)); J(("W", 1, 1), dma_wq(1, 1))
    ST0()
    p(f"s_mov_b32 s{sKEY}, s{sT2}\ns_mov_b32 s{sIDX}, s{sT0}")
    partA1, partA2, partB = ln_segments(lq, vq, p)
    for it_ in partA1 + partB:
        if callable(it_): it_()
        else: p(it_)
    p(f"s_mov_b32 s{sT2}, s{sKEY}\ns_mov_b32 s{sT0}, s{sIDX}")
    ST0()
    for kk in range(4): J(("X", 1, kk), load_b(1, kk))
    J(("W", 2, 0), dma_wq(2, 0)); J(("W", 2, 1), dma_wq(2, 1))
    p(f"""
    s_or_b32 s{sT3}, s2, s{sW}
    s_cmp_lg_u32 s{sT3}, 0
    s_cbranch_scc1 M_NONZ
    s_or_b32 s{sT2}, s{sT2}, 1
    v_mov_b32 v{E+2}, 0
    v_mov_b32 v{E+3}, s{sT2}
    s_mov_b64 exec, 1
    global_store_dword v{E+2}, v{E+3}, s[66:67] sc1
    s_mov_b64 exec, -1
M_NONZ:
    v_bfe_u32 v{E+1}, v0, 4, 3
    v_lshlrev_b32 v{E+1}, 13, v{E+1}
    v_lshrrev_b32 v{vNON}, 7, v0
    v_lshl_add_u32 v{E+1}, v{vNON}, 19, v{E+1}
    v_and_b32 v{vNON}, 15, v0
    v_lshl_add_u32 v{E+1}, v{vNON}, 4, v{E+1}
    s_lshl_b32 s{sT2}, s{sRB}, 16
    v_add_u32 v{vCSA}, s{sT2}, v{E+1}
    """)
    J(*CSj(1))
    ST0()
    p(f"""
    v_bfe_u32 v{vXB1}, v1, 1, 3
    v_xor_b32 v{vXB1}, v{vXB1}, v{vT0}
    v_lshlrev_b32 v{vXB1}, 4, v{vXB1}
    v_and_b32 v{vXB0}, 15, v1
    v_lshl_add_u32 v{vXB0}, v{vXB0}, 7, v{vXB1}
    v_add_u32 v{vXB0}, s{sXM}, v{vXB0}
    v_xor_b32 v{vXB1}, 64, v{vXB0}
    v_lshl_add_u32 v{vDv}, v{vT3}, 8, v{vT1}
    v_mul_u32_u24 v{vDf}, {8*7168}, v{vT0}
    v_and_b32 v{vT1}, 15, v1
    v_lshl_add_u32 v{vDf}, v{vT1}, 4, v{vDf}
    v_and_b32 v{vT0}, 3, v1
    v_lshrrev_b32 v{vT1}, 2, v1
    v_lshlrev_b32 v{vT1}, 4, v{vT1}
    v_lshl_add_u32 v{vDk}, v{vT0}, 8, v{vT1}
    v_lshrrev_b32 v{vT1}, 4, v1
    v_lshlrev_b32 v{vA0}, 11, v{vT1}
    v_lshl_add_u32 v{vA0}, v{vT3}, 6, v{vA0}
    v_lshl_add_u32 v{vA0}, v{vT0}, 3, v{vA0}
    v_and_b32 v{vT1}, 1, v{vT1}
    v_lshl_add_u32 v{vA0}, v{vT1}, 5, v{vA0}
    v_xor_b32 v{vA1}, 32, v{vA0}
    v_bfe_u32 v{vT0}, v1, 1, 1
    v_and_b32 v{vT2}, 1, v1
    v_lshl_add_u32 v{vT0}, v{vT2}, 1, v{vT0}
    v_lshl_add_u32 v{vT0}, v{vT1}, 2, v{vT0}
    v_lshlrev_b32 v{vT0}, 3, v{vT0}
    v_lshl_add_u32 v{vT0}, v{vT3}, 6, v{vT0}
    v_lshrrev_b32 v{vT1}, 5, v1
    v_lshl_add_u32 v{vVa}, v{vT1}, 10, v{vT0}
    v_add_u32 v{vVb}, {L_X}, v{vVa}
    v_bfe_u32 v{vT0}, v1, 2, 3
    v_mul_u32_u24 v{vT0}, 1088, v{vT0}
    v_lshl_add_u32 v{vT0}, v{vT1}, 6, v{vT0}
    v_and_b32 v{vKb}, 3, v1
    v_lshl_add_u32 v{vKb}, v{vKb}, 4, v{vT0}
    v_add_u32 v{vKh}, {L_HI}, v{vKb}
    v_add_u32 v{vKb}, {L_X}, v{vKb}
    v_bfe_u32 v{vT0}, v1, 4, 1
    v_lshlrev_b32 v{vT0}, 10, v{vT0}
    v_lshl_add_u32 v{vT0}, v{vT1}, 8, v{vT0}
    v_and_b32 v{vO}, 15, v1
    v_lshl_add_u32 v{vO}, v{vO}, 4, v{vT0}
    s_lshl_b32 s{sT0}, s{sG}, 19
    s_add_u32 s{sT0}, s{sT0}, 393216
    s_add_u32 s{SRD_K}, s4, s{sT0}
    s_addc_u32 s{SRD_K+1}, s5, 0
    s_mov_b32 s{SRD_K+2}, 0x20000
    s_mov_b32 s{SRD_K+3}, 0x20000
    s_add_u32 s{SRD_V}, s6, s{sT0}
    s_addc_u32 s{SRD_V+1}, s7, 0
    s_mov_b32 s{SRD_V+2}, 0x20000
    s_mov_b32 s{SRD_V+3}, 0x20000
    s_add_u32 s{SRD_OT}, s18, {WS_OT}
    s_addc_u32 s{SRD_OT+1}, s19, 0
    s_mov_b32 s{SRD_OT+2}, 0x1000000
    s_mov_b32 s{SRD_OT+3}, 0x20000
    s_mul_i32 s{sKw}, s{sW}, 1088
    s_lshl_b32 s{sVw}, s{sW}, 10
    s_mov_b32 s{sKsrc}, s{sVw}
    s_mov_b32 s{sVsrc}, s{sVw}
    s_mov_b32 s{sN}, 0
    s_mov_b32 s{sPL}, 0x05040100
    s_mov_b32 s{sPH}, 0x07060302
    s_lshr_b32 s{sT0}, s2, 2
    s_and_b32 s{sT1}, s2, 3
    s_cmp_ge_u32 s{sT0}, 28
    s_cselect_b32 s{SRD_F}, s14, s12
    s_cselect_b32 s{SRD_F+1}, s15, s13
    s_cselect_b32 s{sT2}, 28, 0
    s_sub_u32 s{sT2}, s{sT0}, s{sT2}
    s_lshl_b32 s{sT2}, s{sT2}, 8
    s_mul_i32 s{sT3}, s{sT1}, {256*7168}
    s_add_u32 s{sT2}, s{sT2}, s{sT3}
    s_add_u32 s{SRD_F}, s{SRD_F}, s{sT2}
    s_addc_u32 s{SRD_F+1}, s{SRD_F+1}, 0
    s_cmp_lt_u32 s2, 224
    s_cselect_b32 s{SRD_F+2}, {255*7168+256}, 0
    s_mov_b32 s{SRD_F+3}, 0x20000
    s_mul_i32 s{sFsrc}, s{sW}, {32*7168}
    s_lshl_b32 s{sOT}, s{sHEAD}, 19
    s_lshl_b32 s{sT1}, s{sRB}, 14
    s_add_u32 s{sOT}, s{sOT}, s{sT1}
    s_lshl_b32 s{sT1}, s{sW}, 11
    s_add_u32 s{sOT}, s{sOT}, s{sT1}
    """)
    ST0()
    vq.wait(p, ("W", 1, 1)); lq.wait(p, ("LW", 2))
    ST0()
    p("s_barrier")
    ST0()
    if 'st1' in dbg: p("s_memtime s[80:81]")
    ST()
    def a_read(slot, T, u, t):
        r = AF + (T & 3) * 8 + u * 4 + t * 2
        p(f"ds_read_b64_tr_b16 v[{r}:{r+1}], v{vA1 if T & 1 else vA0} offset:{slot*16384 + u*8192 + t*1024 + (T>>1)*256}")
        lq.issue(("A", T & 3, u, t))
    def job_k(t):
        return (("K", t), f"""s_add_u32 m0, s{sKw}, {Kabs(t)}
    s_nop 0
    buffer_load_dwordx4 v{vDk}, s[{SRD_K}:{SRD_K+3}], s{sKsrc} offen lds
    s_add_u32 s{sKsrc}, s{sKsrc}, 8192""")
    def job_v(t):
        return (("V", t), f"""s_add_u32 m0, s{sVw}, {Vabs(t)}
    s_nop 0
    buffer_load_dwordx4 v{vDv}, s[{SRD_V}:{SRD_V+3}], s{sVsrc} offen lds
    s_add_u32 s{sVsrc}, s{sVsrc}, 8192""")
    def job_f(i):
        return (("F", i), f"""buffer_load_dwordx4 v[{FR+4*i}:{FR+4*i+3}], v{vDf}, s[{SRD_F}:{SRD_F+3}], s{sFsrc} offen
    s_add_u32 s{sFsrc}, s{sFsrc}, 7168""")
    def run(job):
        if not job: return
        if isinstance(job, str): p(job); return
        if callable(job): job(); return
        tag, code = job
        p(code); vq.issue(tag)
    def k_read(t, j):
        if 'nok' in dbg: return
        r = KF + (j % D) * 4
        ka = Kabs(t); kb, ko = (vKh, ka - L_HI) if ka >= L_HI else (vKb, ka - L_X)
        p(f"ds_read_b128 v[{r}:{r+3}], v{kb} offset:{ko + j*128}")
        lq.issue(("K", j % D))
    def v_read(t, i):
        if 'nov' in dbg: return
        ks, dt = i >> 2, i & 3
        r = VF + (i % D) * 4
        o = Vabs(t); va = vVa
        if o >= L_X: o -= L_X; va = vVb
        p(f"ds_read_b64_tr_b16 v[{r}:{r+1}], v{va} offset:{o + ks*4096 + dt*256}")
        lq.issue(("Va", i % D))
        p(f"ds_read_b64_tr_b16 v[{r+2}:{r+3}], v{va} offset:{o + ks*4096 + 2048 + dt*256}")
        lq.issue(("V", i % D))
    LA = 2
    def b_read(buf, k):
        ct, u = k >> 1, k & 1
        r = BRr(buf, k)
        p(f"ds_read_b128 v[{r}:{r+3}], v{vXB1 if u else vXB0} offset:{(buf & 1)*32768 + ct*2048}")
        lq.issue(("B", buf & 1, k))
    for T in range(LA):
        for u in range(2):
            for t in range(2): a_read(0, T, u, t)
        b_read(0, 2 * T); b_read(0, 2 * T + 1)
    fill = []
    FILLRATE = 1
    CSSTART = 4
    for d_ in dbg:
        if d_.startswith('fr'): FILLRATE = float(d_[2:])
    fillacc = [0.0]
    barpassed = [0]
    def stage(slot, vm, last=False, xw="s_waitcnt vmcnt(8)", first=False, vm2=()):
        for T in range(8):
            a = AF + (T & 3) * 8
            Tn = T + LA; ns = slot
            if Tn >= 8: Tn -= 8; ns = (slot + 1) & 3
            rd = not (last and T + LA >= 8)
            k = 0
            for ct in range(2):
                for u in range(2):
                    d = QA + (T * 2 + ct) * 4; b = BRr(slot, ct * 2 + u)
                    lq.wait(p, ("A", T & 3, u, 1), ("B", slot & 1, ct * 2 + u))
                    cc = "0" if (first and u == 0) else f"v[{d}:{d+3}]"
                    p(f"v_mfma_f32_16x16x32_bf16 v[{d}:{d+3}], v[{a+4*u}:{a+4*u+3}], v[{b}:{b+3}], {cc}")
                    if rd: a_read(ns, Tn, k >> 1, k & 1)
                    fillacc[0] += FILLRATE
                    while fillacc[0] >= 1.0:
                        fillacc[0] -= 1.0
                        if fill and fill[0] == "BAR":
                            if barpassed[0] >= 1: fill.pop(0)
                        if fill and fill[0] != "BAR": run(fill.pop(0))
                    if k == 1 and T < len(vm2): run(vm2[T])
                    k += 1
            if T < len(vm): run(vm[T])
            if not last:
                if T == 6:
                    run(xw); b_read(slot + 1, 0); b_read(slot + 1, 1)
                if T == 7:
                    b_read(slot + 1, 2); b_read(slot + 1, 3)
    def std_vm(slot):
        n = (slot + 3) & 3
        return [load_b(slot, 0), load_b(slot, 1), load_b(slot, 2), load_b(slot, 3), dma_wq(n, 0), dma_wq(n, 1)]
    xwait = lambda tag: (lambda: vq.wait(p, tag))
    def tagged(i):
        sv = std_vm(i & 3)
        return [(("X", i + 2, kk), sv[kk]) for kk in range(4)] + [(("W", i + 3, 0), sv[4]), (("W", i + 3, 1), sv[5])]
    kvpf = (("KP", 0), f"""s_lshr_b32 s{sT2}, s{sFL}, 6
    s_lshl_b32 s{sT2}, s{sT2}, 19
    s_and_b32 s{sT3}, s{sFL}, 63
    s_lshl_b32 s{sT3}, s{sT3}, 11
    s_add_u32 s{sT2}, s{sT2}, s{sT3}
    s_add_u32 s{sT2}, s{sT2}, 393216
    v_lshlrev_b32 v{E+3}, 2, v0
    v_add_u32 v{E+3}, s{sT2}, v{E+3}
    global_load_dword v{E}, v{E+3}, s[4:5]""")
    kvpf2 = (("KP", 1), f"global_load_dword v{E}, v{E+3}, s[6:7]")
    nonld = (("NN", 0), f"v_mov_b32 v{E+2}, 0\nglobal_load_dword v{vNON}, v{E+2}, s[66:67] sc1")
    def nonchk():
        vq.wait(p, ("NN", 0))
        p(f"""
    v_readfirstlane_b32 s{sNON}, v{vNON}
    s_cmp_lg_u32 s{sNON}, 0
    s_cbranch_scc1 M_NSPIN_OK
    v_mov_b32 v{E+2}, 0
    """)
        get_nonce(p, "M_NSPIN", E + 2, vNON)
    seg1, seg2 = pub_segments(lq, vq, p)
    extra1 = {0: [CSj(0)], 1: [CSj(2), kvpf], 2: [CSj(3), kvpf2], 3: [nonld], 5: [nonchk]}
    state = "X"
    for i in range(12):
        ex = list(extra1.get(i, []))
        if i == 1: fill.extend(seg2)
        if i == CSSTART: assert not fill; fill.extend(partA2); state = "A"
        stage(i & 3, tagged(i) + ex, xw=xwait(("X", i + 1, 3)), first=(i == 0))
        vq.wait(p, ("W", i + 2, 1))
        if state == "A" and not fill:
            lq.wait(p, ("LW", 5)); state = "B"; fill.extend(seg1); print("colsum done at stage", i)
        elif state == "B" and not fill:
            state = "done"; print("pub done at stage", i)
        p("s_barrier")
        if 'st1' in dbg and i in (2, 4, 7, 9, 11):
            n_ = (2, 4, 7, 9, 11).index(i) + 1
            p(f"s_memtime s[{80+2*n_}:{81+2*n_}]\ns_waitcnt lgkmcnt(0)")
    assert state == "done" and not fill, (state, len(fill))
    sv = std_vm(0)
    stcode = f"""s_lshl_b32 s{sT0}, s{sRB}, 3
    s_add_u32 s{sT0}, s{sT0}, s{sW}
    s_lshl_b32 s{sT0}, s{sT0}, 8
    s_add_u32 s{sT0}, s{sT0}, {WS_ST}
    v_and_b32 v{vT0}, 15, v1
    v_lshlrev_b32 v{vT0}, 3, v{vT0}
    v_add_u32 v{vT0}, s{sT0}, v{vT0}
    global_load_dwordx2 v[250:251], v{vT0}, s[18:19] sc1
    global_load_dwordx2 v[252:253], v{vT0}, s[18:19] offset:128 sc1
    s_lshl_b32 s{sT0}, s{sHEAD}, 13
    s_lshl_b32 s{sT1}, s{sW}, 7
    s_add_u32 s{sT0}, s{sT0}, s{sT1}
    s_add_u32 s{sT0}, s{sT0}, {WS_CS}
    v_lshrrev_b32 v{vT1}, 3, v1
    v_lshlrev_b32 v{vT1}, 10, v{vT1}
    v_and_b32 v{vT2}, 7, v1
    v_lshl_add_u32 v{vT1}, v{vT2}, 4, v{vT1}
    v_add_u32 v{vT1}, s{sT0}, v{vT1}
    global_load_dwordx4 v[{E}:{E+3}], v{vT1}, s[18:19] sc1"""
    stchk = f"""v_xor_b32 v{vT0}, s{sNON}, v251
    v_xor_b32 v{vT1}, s{sNON}, v253
    v_xor_b32 v{vT2}, s{sNON}, v{E+1}
    v_xor_b32 v{vT3}, s{sNON}, v{E+3}
    v_or3_b32 v{vT0}, v{vT0}, v{vT1}, v{vT2}
    v_or_b32 v{vT0}, v{vT0}, v{vT3}
    v_cmp_ne_u32 vcc, 0, v{vT0}"""
    def stld():
        p(stcode); vq.issue(("ST", 0)); vq.issue(("ST", 1)); vq.issue(("ST", 2))
    def stuse():
        vq.wait(p, ("ST", 2))
        p(stchk)
        p(f"s_mov_b32 s73, {SPIN_MAX}\ns_cbranch_vccnz M_SSPIN")
        p.label("M_SSPIN_RET")
        for c in (E, E + 2): p(f"v_add_f32_dpp v{c}, v{c}, v{c} row_ror:8 row_mask:0xf bank_mask:0xf")
        for sw in ("v_permlane16_swap_b32", "v_permlane32_swap_b32"):
            p(f"v_mov_b32 v{E+1}, v{E}\nv_mov_b32 v{E+3}, v{E+2}")
            p(f"{sw} v{E}, v{E+1}\n{sw} v{E+2}, v{E+3}")
            p(f"v_add_f32 v{E}, v{E}, v{E+1}\nv_add_f32 v{E+2}, v{E+2}, v{E+3}")
        p(f"""
    v_mov_b32 v{E+1}, v{E+2}
    v_and_b32 v{vT0}, 7, v1
    v_lshlrev_b32 v{vT0}, 3, v{vT0}
    s_lshl_b32 s{sT0}, s{sW}, 6
    s_add_u32 s{sT0}, s{sT0}, {L_FP}
    v_add_u32 v{vT0}, s{sT0}, v{vT0}
    ds_write_b64 v{vT0}, v[{E}:{E+1}]
    v_and_b32 v251, 0xffff0000, v250
    v_and_b32 v253, 0xffff0000, v252
    v_rcp_f32 v251, v251
    v_rcp_f32 v253, v253
    v_lshlrev_b32 v250, 16, v250
    v_lshlrev_b32 v252, 16, v252
    v_mul_f32 v251, {fbits(QSCALE)}, v251
    v_mul_f32 v253, {fbits(QSCALE)}, v253
    """)
        lq.issue(("CSW", 0))
    stage(0, tagged(12) + [stld, job_k(0)], xw=xwait(("X", 13, 3)))
    vq.wait(p, ("W", 14, 1)); p("s_barrier")
    stage(1, tagged(13)[:4] + [job_k(1), job_k(2)], xw=xwait(("X", 14, 3)))
    vq.wait(p, ("W", 15, 1)); lq.wait(p, ("B", 0, 3)); p("s_barrier")
    if 'st1' in dbg: p("s_memtime s[92:93]\ns_waitcnt lgkmcnt(0)")
    stage(2, [job_k(3), job_v(0), job_v(1), None, stuse], xw=xwait(("X", 15, 3)))
    vq.wait(p, ("K", 1)); lq.wait(p, ("CSW", 0), ("B", 1, 3)); p("s_barrier")
    stage(3, [job_k(4), job_k(5), job_v(2), job_k(6)], last=True)
    if 'st1' in dbg: p("s_memtime s[94:95]\ns_waitcnt lgkmcnt(0)")
    ST()
    if stamp: lq.q = []
    CSV = 212
    p(f"""
    v_lshrrev_b32 v{vT0}, 4, v1
    v_lshlrev_b32 v{vT0}, 4, v{vT0}
    v_add_u32 v{vT0}, {L_FP}, v{vT0}
    """)
    for T in range(8):
        p(f"ds_read_b128 v[{CSV+4*T}:{CSV+4*T+3}], v{vT0} offset:{T*64}"); lq.issue(("CS", T))
    for j in range(D): k_read(0, j)
    for T in range(8):
        lq.wait(p, ("CS", T))
        for ct in range(2):
            a = QA + (T * 2 + ct) * 4
            for r in range(4): p(f"v_fma_f32 v{a+r}, -v{250+2*ct}, v{CSV+4*T+r}, v{a+r}")
            for r in range(4): p(f"v_mul_f32 v{a+r}, v{251+2*ct}, v{a+r}")
        for ct in range(2):
            a = QA + (T * 2 + ct) * 4
            for k in range(2): p(f"v_cvt_pk_bf16_f32 v{QP + 4*T + 2*ct + k}, v{a+2*k}, v{a+2*k+1}")
        if T > 0:
            for k in range(2): p(f"v_permlane16_swap_b32 v{QP + 4*(T-1) + k}, v{QP + 4*(T-1) + 2 + k}")
    for k in range(2): p(f"v_permlane16_swap_b32 v{QP + 28 + k}, v{QP + 30 + k}")
    def qk(j, sbuf, cinit):
        lq.wait(p, ("K", j % D))
        k = KF + (j % D) * 4; q = QP + 4 * j; d = S + 16 * sbuf
        c = cinit if j == 0 else f"v[{d}:{d+15}]"
        p(f"v_mfma_f32_32x32x16_bf16 v[{d}:{d+15}], v[{k}:{k+3}], v[{q}:{q+3}], {c}")
    def pv(i, pbuf, first=False):
        lq.wait(p, ("V", i % D))
        ks, dt = i >> 2, i & 3
        v = VF + (i % D) * 4; b = P + 8 * pbuf + 4 * ks; d = ACC + 16 * dt
        cc = "0" if (first and ks == 0) else f"v[{d}:{d+15}]"
        p(f"v_mfma_f32_32x32x16_bf16 v[{d}:{d+15}], v[{v}:{v+3}], v[{b}:{b+3}], {cc}")
    for j in range(8):
        qk(j, 0, "0")
        k_read(0 if j + D < 8 else 1, (j + D) % 8)
    vq.wait(p, ("K", 3), ("V", 1)); p("s_barrier")
    p(f"""
    s_cmp_lg_u32 s{sW}, 4
    s_cbranch_scc1 M_NOKEY
    s_lshl_b32 s{sT0}, s{sFL}, 3
    s_add_u32 s{sT0}, s{sT0}, {WS_KEYS}
    v_mov_b32 v{vT0}, s{sT0}
    v_mov_b32 v{FD}, s{sKEY}
    v_mov_b32 v{FD+1}, s{sNON}
    s_mov_b64 exec, 1
    global_store_dwordx2 v{vT0}, v[{FD}:{FD+1}], s[18:19] sc1
    s_mov_b64 exec, -1
M_NOKEY:
    """)
    ST()
    if stamp: lq.q = []
    s0 = S
    p(f"""
    v_max3_f32 v{vT0}, v{s0}, v{s0+1}, v{s0+2}
    v_max3_f32 v{vT1}, v{s0+3}, v{s0+4}, v{s0+5}
    v_max3_f32 v{vT0}, v{vT0}, v{s0+6}, v{s0+7}
    v_max3_f32 v{vT1}, v{vT1}, v{s0+8}, v{s0+9}
    v_max3_f32 v{vT0}, v{vT0}, v{s0+10}, v{s0+11}
    v_max3_f32 v{vT1}, v{vT1}, v{s0+12}, v{s0+13}
    v_max3_f32 v{vT0}, v{vT0}, v{s0+14}, v{s0+15}
    v_max_f32 v{vT0}, v{vT0}, v{vT1}
    v_mov_b32 v{vT1}, v{vT0}
    v_permlane32_swap_b32 v{vT0}, v{vT1}
    v_max_f32 v{vT0}, v{vT0}, v{vT1}
    """)
    for i in range(16): p(f"v_sub_f32 v{NEGM+i}, 0, v{vT0}")
    for i in range(16): p(f"v_sub_f32 v{s0+i}, v{s0+i}, v{vT0}")
    p(f"v_mov_b32 v{vT2}, {L_HI + 2*KSL + 6*1088 + 1024}\nv_mov_b32 v{vT3}, 0")
    p(f"ds_write_b32 v{vT2}, v{vT3}"); lq.issue(("Z", 0))
    p(f"ds_write_b32 v{vT2}, v{vT3} offset:1088"); lq.issue(("Z", 1))
    cold = 'nof' not in dbg
    SRD_P = 68; sPo = 72
    def pf(n):
        if not cold or 'nopf' in dbg: return None
        pre = ""
        if n == 0:
            pre = f"""s_lshl_b32 s{sT0}, s2, 15
    s_add_u32 s{SRD_P}, s10, s{sT0}
    s_addc_u32 s{SRD_P+1}, s11, 0
    s_mov_b32 s{SRD_P+2}, 0x8000
    s_mov_b32 s{SRD_P+3}, 0x20000
    s_mov_b32 s{sPo}, 0
    """
        elif n == 4:
            pre = f"""s_mul_i32 s{sT0}, s2, 28672
    s_add_u32 s{SRD_P}, s16, s{sT0}
    s_addc_u32 s{SRD_P+1}, s17, 0
    s_mov_b32 s{SRD_P+2}, 28672
    s_mov_b32 s{sPo}, 0
    """
        return (("PF", n), pre + f"""s_add_u32 m0, s{sVw}, {VADDR[5]}
    v_lshlrev_b32 v{vT3}, 4, v0
    buffer_load_dwordx4 v{vT3}, s[{SRD_P}:{SRD_P+3}], s{sPo} offen lds
    s_add_u32 s{sPo}, s{sPo}, 8192""")
    flagld = None
    keycode = f"""v_lshlrev_b32 v{vT2}, 5, v1
    v_add_u32 v{vT2}, {WS_KEYS}, v{vT2}
    global_load_dwordx4 v[{FT}:{FT+3}], v{vT2}, s[18:19] sc1
    global_load_dwordx4 v[{FT+4}:{FT+7}], v{vT2}, s[18:19] offset:16 sc1"""
    keychk = f"""v_xor_b32 v{FT+1}, s{sNON}, v{FT+1}
    v_xor_b32 v{FT+3}, s{sNON}, v{FT+3}
    v_xor_b32 v{FT+5}, s{sNON}, v{FT+5}
    v_xor_b32 v{FT+7}, s{sNON}, v{FT+7}
    v_or3_b32 v{FT+1}, v{FT+1}, v{FT+3}, v{FT+5}
    v_or_b32 v{FT+1}, v{FT+1}, v{FT+7}
    v_cmp_ne_u32 vcc, 0, v{FT+1}"""
    def keyld():
        p(keycode); vq.issue(("KY", 0)); vq.issue(("KY", 1))
    def xsel():
        vq.wait(p, ("KY", 1))
        p(keychk)
        p(f"s_mov_b32 s73, {SPIN_MAX}\ns_cbranch_vccnz M_KSPIN")
        p.label("M_KSPIN_RET")
        p(f"v_max3_u32 v{FT}, v{FT}, v{FT+2}, v{FT+4}\nv_max_u32 v{FT}, v{FT}, v{FT+6}")
        wave_max_u32(p, FT, FT + 1)
        p(f"""
    v_readfirstlane_b32 s{sKEY}, v{FT}
    s_and_b32 s{sIDX}, s{sKEY}, 0x7ff
    s_sub_u32 s{sIDX}, 2047, s{sIDX}
    s_lshr_b32 s{sT0}, s{sIDX}, 4
    s_lshl_b32 s{sT0}, s{sT0}, 15
    s_and_b32 s{sT1}, s2, 3
    s_lshl_b32 s{sT1}, s{sT1}, 13
    s_add_u32 s{sT0}, s{sT0}, s{sT1}
    s_lshl_b32 s{sT1}, s{sW}, 10
    s_add_u32 s{sT0}, s{sT0}, s{sT1}
    s_and_b32 s{sT1}, s{sIDX}, 15
    s_lshl_b32 s{sT1}, s{sT1}, 4
    s_add_u32 s{sT0}, s{sT0}, s{sT1}
    v_lshrrev_b32 v{vT2}, 4, v1
    v_lshlrev_b32 v{vT2}, 8, v{vT2}
    v_add_u32 v{vT2}, s{sT0}, v{vT2}
    global_load_dwordx4 v[{XS}:{XS+3}], v{vT2}, s[18:19] sc1""")
        vq.issue(("X", 0))
    def ffn_step(f):
        def go():
            if f == 0:
                vq.wait(p, ("X", 0), ("F", 7))
                p(f"""
    v_and_b32 v{vT2}, 15, v1
    v_lshlrev_b32 v{vT2}, 5, v{vT2}
    s_lshl_b32 s{sT0}, s{sW}, 9
    s_add_u32 s{sT0}, s{sT0}, {L_FP}
    v_add_u32 v{vT2}, s{sT0}, v{vT2}""")
            if f > 0:
                p(f"ds_write_b32 v{vT2}, v{FD} offset:{(f-1)*4}"); lq.issue(("FW", f - 1))
            if f < 8:
                j = f >> 1; sel = sPH if f & 1 else sPL
                for pp in range(4):
                    p(f"v_perm_b32 v{FT+pp}, v{FR+(2*pp+1)*4+j}, v{FR+(2*pp)*4+j}, s{sel}")
        return go
    def ffn_mfma():
        p(f"v_mfma_f32_16x16x32_bf16 v[{FD}:{FD+3}], v[{XS}:{XS+3}], v[{FT}:{FT+3}], 0")
    def ffn_final():
        p(f"""
    s_cmp_lg_u32 s{sW}, 0
    s_cbranch_scc1 K2_FSKIP
    s_cmp_ge_u32 s2, 224
    s_cbranch_scc1 K2_FSKIP
    v_lshlrev_b32 v{vT2}, 3, v1
    v_add_u32 v{vT3}, {L_FP}, v{vT2}""")
        for w in range(8): p(f"ds_read_b64 v[{FR+2*w}:{FR+2*w+1}], v{vT3} offset:{w*512}")
        p(f"""
    s_and_b32 s{sT0}, s2, 3
    s_mul_i32 s{sT0}, s{sT0}, {7168*8}
    s_lshr_b32 s{sT1}, s2, 2
    s_lshl_b32 s{sT1}, s{sT1}, 10
    s_add_u32 s{sT0}, s{sT0}, s{sT1}
    s_add_u32 s{sT0}, s{sT0}, {WS_GU}
    v_lshlrev_b32 v{vT2}, 1, v{vT2}
    v_add_u32 v{vT2}, s{sT0}, v{vT2}
    s_waitcnt lgkmcnt(0)""")
        for w in range(1, 8):
            p(f"v_add_f32 v{FR}, v{FR}, v{FR+2*w}\nv_add_f32 v{FR+1}, v{FR+1}, v{FR+2*w+1}")
        p(f"v_mov_b32 v{FR+2}, v{FR+1}\nv_mov_b32 v{FR+1}, s{sNON}\nv_mov_b32 v{FR+3}, s{sNON}")
        p(f"global_store_dwordx4 v{vT2}, v[{FR}:{FR+3}], s[18:19] sc1")
        p.label("K2_FSKIP")
    NEG = f"v[{NEGM}:{NEGM+15}]"
    sONE = 0
    p(f"s_mov_b32 s{sONE}, 0x3f803f80")
    if 'prio' in dbg: p(f"s_cmp_lt_u32 s{sW}, 4\ns_cbranch_scc1 M_NPR\ns_setprio 1\nM_NPR:")
    def iteration(t, extra=(), mid=()):
        doQK = t < 15; doPV = t > 0; prevSM = t > 0
        sb = t & 1
        for j in range(8):
            if doQK: qk(j, sb ^ 1, NEG)
            if (j > 0 or prevSM) and 'novalu' not in dbg:
                e = E + 2 * ((j - 1) & 1)
                pb = sb if j > 0 else sb ^ 1
                pr = P + 8 * pb + ((j - 1) & 7)
                if 'pk' in dbg:
                    p(f"v_pk_add_f32 v[{vL0}:{vL1}], v[{vL0}:{vL1}], v[{e}:{e+1}]\nv_cvt_pk_bf16_f32 v{pr}, v{e}, v{e+1}")
                elif 'dot' in dbg:
                    p(f"v_cvt_pk_bf16_f32 v{pr}, v{e}, v{e+1}\nv_dot2_f32_bf16 v{vL0}, v{pr}, s{sONE}, v{vL0}")
                else:
                    p(f"v_add_f32 v{vL0}, v{vL0}, v{e}\nv_add_f32 v{vL1}, v{vL1}, v{e+1}\nv_cvt_pk_bf16_f32 v{pr}, v{e}, v{e+1}")
            if j < len(mid): run(mid[j])
            if doPV: pv(j, sb ^ 1, first=(t == 1))
            e = E + 2 * (j & 1)
            if 'novalu' not in dbg: p(f"v_exp_f32 v{e}, v{S+16*sb+2*j}\nv_exp_f32 v{e+1}, v{S+16*sb+2*j+1}")
            jj = j + D
            if jj < 8:
                if doQK: k_read(t + 1, jj)
                if doPV: v_read(t - 1, jj)
            else:
                if t + 2 <= 15: k_read(t + 2, jj - 8)
                v_read(t, jj - 8)
            if j < len(extra): run(extra[j])
    F = lambda i: job_f(i) if (ffn and cold and 'nofl' not in dbg) else None
    FT0 = 10
    PL = lambda n: (("PL", n), p3_preload(n))
    sched = {
        0: [job_k(7), None, job_v(3), None, job_v(4), None, F(0)],
        1: [job_v(5), None, None, job_v(6), None, None, F(1)],
        2: [job_k(8), None, job_k(9), None, job_v(7), None, F(2)],
        3: [job_v(8), None, job_v(9), None, job_v(10), None, F(3)],
        4: [job_k(10), keyld, job_k(11), None, job_v(11), None, F(4)],
        5: [job_v(12), None, None, job_v(13), None, None, F(5)],
        6: [job_k(12), None, job_k(13), None, job_v(14), None, F(6)],
        7: [job_v(15), None, xsel, None, None, None, F(7)],
        8: [job_k(14), None, job_k(15), None, None, pf(0)],
        9: [None, None, None, None, pf(1)],
        10: [None, None, None, None, pf(2)],
        11: [None, None, None, None, pf(3)],
        12: [None, None, p3_early_setup(), p3_preload(0), PL(1), None, PL(2), None],
        13: [PL(3), None, PL(4), PL(5), None, PL(6), PL(7), p3_preload(8)],
        112: [] if 'notlb' in dbg else [
             (("TL", 0), f"v_min_u32 v{FT}, 40, v1\nv_lshlrev_b32 v{FT}, 20, v{FT}\nglobal_load_dword v{FD}, v{FT}, s[18:19]"), None,
             (("TL", 1), f"v_and_b32 v{FT+1}, 3, v1\nv_lshlrev_b32 v{FT+1}, 20, v{FT+1}\nglobal_load_dword v{FD}, v{FT+1}, s[78:79]"), None,
             (("TL", 2), f"v_and_b32 v{FT+2}, 7, v1\nv_lshlrev_b32 v{FT+2}, 20, v{FT+2}\nglobal_load_dword v{FD}, v{FT+2}, s[10:11]"), None,
             (("TL", 3), f"v_min_u32 v{FT+3}, 6, v1\nv_lshlrev_b32 v{FT+3}, 20, v{FT+3}\nglobal_load_dword v{FD}, v{FT+3}, s[16:17]")],
    }
    if 'nodma' in dbg: sched = {}
    for t in range(16):
        if t > 0 and t % 2 == 0:
            b = t // 2
            need = [("K", x) for x in range(2*b+4)] + [("V", x) for x in range(2*b+2)]
            if b == 6: need = [("K", x) for x in range(16)] + [("V", x) for x in range(16)]
            vq.wait(p, *need)
            if b == 7: vq.wait(p, ("PF", 3))
            if 2 * b == FT0 + 2: lq.wait(p, ("FW", 7))
            p("s_barrier")
        extra = sched.get(t, []); mid = []
        def both(x, y):
            def f():
                run(x); run(y)
            return f
        ex8 = list(extra) + [None] * 8
        if t == FT0:
            extra = [both(ex8[f], ffn_step(f)) for f in range(8)]; mid = [None] + [ffn_mfma] * 7
        if t == FT0 + 1:
            extra = [ex8[0], ffn_step(8)] + ex8[2:8]; mid = [ffn_mfma]
        if t == FT0 + 2:
            extra = [ex8[0], ffn_final] + ex8[2:8]
        if t == 14:
            ED = lambda n: None if 'noew' in dbg else (("EW", n), p3_early_dma(n))
            extra = []
        if t == 15:
            extra = []
        iteration(t, extra, mid)
    e = E + 2
    p(f"v_add_f32 v{vL0}, v{vL0}, v{e}\nv_add_f32 v{vL1}, v{vL1}, v{e+1}\nv_cvt_pk_bf16_f32 v{P+8+7}, v{e}, v{e+1}")
    p(f"""
    v_add_f32 v{vL0}, v{vL0}, v{vL1}
    v_mov_b32 v{vL1}, v{vL0}
    """)
    for i in range(8):
        pv(i, 1)
        if i + D < 8: v_read(15, i + D)
        if i == 0:
            p(f"v_permlane32_swap_b32 v{vL0}, v{vL1}\nv_add_f32 v{vL0}, v{vL0}, v{vL1}")
        if i == 1:
            p(f"""
    v_mov_b32 v{vT1}, 0x5d800000
    v_cmp_nle_f32 vcc, v{vL0}, v{vT1}
    v_rcp_f32 v{vL1}, v{vL0}
    """)
    ST()
    if slow:
        p(f"s_cbranch_vccnz K2_SLOW")
        p.label("K2_SLOW_RET")
    for dt in range(4):
        for c in range(2):
            a = ACC + 16 * dt + 8 * c
            o = S + (dt * 2 + c) * 4
            for r in range(8): p(f"v_mul_f32 v{a+r}, v{a+r}, v{vL1}")
            for r in range(4): p(f"v_cvt_pk_bf16_f32 v{o+r}, v{a+2*r}, v{a+2*r+1}")
            p(f"buffer_store_dwordx4 v[{o}:{o+3}], v{vO}, s[{SRD_OT}:{SRD_OT+3}], s{sOT} offen offset:{c*512} sc1")
        if dt < 3: p(f"s_add_u32 s{sOT}, s{sOT}, 131072")
    phase3(p, ST, stamp)
    p.label("K2_END")
    p("s_endpgm")
    p.label("M_SSPIN")
    p("s_sleep 2")
    p(stcode)
    p("s_waitcnt vmcnt(0)")
    p(stchk)
    p(f"""
    s_cbranch_vccz M_SSPIN_RET
    s_sub_u32 s73, s73, 1
    s_cmp_lg_u32 s73, 0
    s_cbranch_scc1 M_SSPIN
    s_branch M_SSPIN_RET
    """)
    p.label("M_KSPIN")
    p("s_sleep 2")
    p(keycode)
    p("s_waitcnt vmcnt(0)")
    p(keychk)
    p(f"""
    s_cbranch_vccz M_KSPIN_RET
    s_sub_u32 s73, s73, 1
    s_cmp_lg_u32 s73, 0
    s_cbranch_scc1 M_KSPIN
    s_branch M_KSPIN_RET
    """)
    if slow:
        p.label("K2_SLOW")
        p(f"""
    s_waitcnt vmcnt(0) lgkmcnt(0)
    v_and_b32 v{vT0}, 31, v1
    v_lshlrev_b32 v{vT0}, 8, v{vT0}
    v_lshrrev_b32 v{vT1}, 5, v1
    v_lshl_add_u32 v{vT0}, v{vT1}, 4, v{vT0}
    v_and_b32 v{vT2}, 19, v1
    v_bfe_u32 v{vT3}, v1, 2, 1
    v_lshl_add_u32 v{vT2}, v{vT3}, 3, v{vT2}
    v_bfe_u32 v{vT3}, v1, 3, 1
    v_lshl_add_u32 v{vT2}, v{vT3}, 2, v{vT2}
    v_lshlrev_b32 v{vT2}, 1, v{vT2}
    v_lshl_add_u32 v{vT2}, v{vT1}, 10, v{vT2}
    v_mov_b32 v{vT1}, 0xff800000
    s_mov_b32 s{sT1}, 0
    """)
        KS = KF
        def slow_qk(c0):
            for j in range(8):
                p(f"buffer_load_dwordx4 v[{KS+4*j}:{KS+4*j+3}], v{vT0}, s[{SRD_K}:{SRD_K+3}], s{sT1} offen offset:{j*32}")
            p("s_waitcnt vmcnt(0)")
            for j in range(8):
                c = c0 if j == 0 else f"v[{S}:{S+15}]"
                p(f"v_mfma_f32_32x32x16_bf16 v[{S}:{S+15}], v[{KS+4*j}:{KS+4*j+3}], v[{QP+4*j}:{QP+4*j+3}], {c}")
        p.label("K2_SLOW_L1")
        slow_qk("0")
        for i in range(0, 16, 2):
            p(f"v_max3_f32 v{vT1}, v{vT1}, v{S+i}, v{S+i+1}")
        p(f"""
    s_add_u32 s{sT1}, s{sT1}, 8192
    s_cmp_lt_u32 s{sT1}, 131072
    s_cbranch_scc1 K2_SLOW_L1
    v_mov_b32 v{vT3}, v{vT1}
    v_permlane32_swap_b32 v{vT3}, v{vT1}
    v_max_f32 v{vT1}, v{vT3}, v{vT1}
    """)
        for i in range(16): p(f"v_sub_f32 v{NEGM+i}, 0, v{vT1}")
        for i in range(64): p(f"v_mov_b32 v{ACC+i}, 0")
        p(f"v_mov_b32 v{vL0}, 0\ns_mov_b32 s{sT1}, 0")
        p.label("K2_SLOW_L2")
        slow_qk(NEG)
        for i in range(16): p(f"v_exp_f32 v{S+i}, v{S+i}")
        for i in range(16): p(f"v_add_f32 v{vL0}, v{vL0}, v{S+i}")
        for i in range(8): p(f"v_cvt_pk_bf16_f32 v{P+i}, v{S+2*i}, v{S+2*i+1}")
        for ks in range(2):
            p(f"s_add_u32 s{sT2}, s{sT1}, {ks*4096}")
            TM = S + 16
            for dt in range(4):
                r = KS + dt * 4; d = ACC + 16 * dt
                for jj in range(8):
                    key = (jj & 3) + 8 * (jj >> 2)
                    p(f"buffer_load_ushort v{TM + jj}, v{vT2}, s[{SRD_V}:{SRD_V+3}], s{sT2} offen offset:{key*256 + dt*64}")
                p("s_waitcnt vmcnt(0)")
                for jj in range(4): p(f"v_lshl_or_b32 v{r+jj}, v{TM+2*jj+1}, 16, v{TM+2*jj}")
                p(f"v_mfma_f32_32x32x16_bf16 v[{d}:{d+15}], v[{r}:{r+3}], v[{P+4*ks}:{P+4*ks+3}], v[{d}:{d+15}]")
            p("s_nop 7")
        p(f"""
    s_add_u32 s{sT1}, s{sT1}, 8192
    s_cmp_lt_u32 s{sT1}, 131072
    s_cbranch_scc1 K2_SLOW_L2
    v_mov_b32 v{vL1}, v{vL0}
    v_permlane32_swap_b32 v{vL0}, v{vL1}
    v_add_f32 v{vL0}, v{vL0}, v{vL1}
    v_rcp_f32 v{vL1}, v{vL0}
    s_nop 7
    s_branch K2_SLOW_RET
    """)
    n = p.fix_hazards(verbose='v' in dbg)
    import re as _re
    txt0 = _re.sub(r"ST3_(\d)", (lambda m: f"s_memtime s[{80+2*int(m.group(1))}:{81+2*int(m.group(1))}]") if MODE3[0] else "s_nop 0", p.text())
    txt0 = _re.sub(r"    ST4_(\d)\n", (lambda m: f"    s_memtime s[{80+2*int(m.group(1))}:{81+2*int(m.group(1))}]\n") if 'st4' in dbg else "", txt0)
    txt = txt0.replace('STAMPX1', 's_nop 0')
    return txt, descriptor(name, 256, 256, 102), f"; @launch grid=(256,1,1) block=(512,1,1) lds={L_TOTAL}"

if __name__ == "__main__":
    import sys, subprocess, re
    dbg = tuple(sys.argv[2].split(',')) if len(sys.argv) > 2 else ()
    t, d, l = gen_mega(stamp=len(sys.argv) > 1 and sys.argv[1] == "1", dbg=dbg)
    out = sys.argv[3] if len(sys.argv) > 3 else "mega.s"
    def write(cs):
        open(out, "w").write(l + '\n.amdgcn_target "amdgcn-amd-amdhsa--gfx950"\n.text\n' + t.replace("CODESIZE", str(cs)) + '.section .rodata,"a"\n' + d)
    write(0x1000)
    subprocess.run(["clang", "-x", "assembler", "-target", "amdgcn-amd-amdhsa", "-mcpu=gfx950", "-c", out, "-o", "mega.o"], check=True)
    r = subprocess.run(["llvm-objdump", "-h", "mega.o"], capture_output=True, text=True).stdout
    sz = int(re.search(r"\.text\s+([0-9a-f]+)", r).group(1), 16)
    write((sz - 256) & ~63)
    print("code size", sz)
```

```python
from gen_common import *
import math, struct

KSL = 8704; VSL = 8192
L_X = 65536
L_HI = 131072
L_FP = 159744
L_TOTAL = L_FP + 4096
L_K = L_HI
KADDR = [L_HI, L_HI + KSL, L_HI + 2 * KSL, L_X, L_X + KSL + 2 * VSL, L_X + 2 * KSL + 2 * VSL, L_X + 3 * KSL + 2 * VSL]
VADDR = [L_X + KSL, L_X + KSL + VSL, L_X + 4 * KSL + 2 * VSL] + [i * VSL for i in range(8)]
assert VADDR[2] + VSL <= L_HI and KADDR[2] + KSL <= L_FP and VADDR[1] + VSL <= L_X + 32768
def Kabs(t): return KADDR[t % 7]
def Vabs(t): return VADDR[t % 11]

vDk, vDv, vKb, vVa, vVb, vO, vL0, vL1, vDf, vKh, vT0, vT1, vT2, vT3 = 2, 3, 4, 5, 6, 7, 8, 9, 10, 11, 12, 13, 14, 15
vPF = 211
ACC = 16; QP = 80; S = 112; NEGM = 144; P = 160; KF = 176; VF = 192; E = 208
QA = 112; AF = 176
def BRr(buf, k): return 212 + (buf & 1) * 16 + k * 4
FR = 212
vA0, vA1, vDq, vDq2, vXB0, vXB1 = 244, 245, 246, 247, 248, 249
vXD = 80
FT = 244; FD = 248; XS = 252
sW = 3
sHEAD, sRB, sG = 20, 21, 22
sN, sWq, sM, sB = 23, 24, 25, 26
sKsrc, sKw, sVsrc, sVw = 27, 28, 29, 30
sPL, sPH = 31, 32
sFsrc, sIDX = 69+32, 35
SRD_WQ, SRD_XN, SRD_K, SRD_V, SRD_F, SRD_OT = 36, 40, 44, 48, 52, 56
sT0, sT1, sT2, sT3 = 60, 61, 62, 63
sOT = 64
sXM = 100
QSCALE = math.log2(math.e) / math.sqrt(128.0)
def fbits(x): return "0x%08x" % struct.unpack("<I", struct.pack("<f", x))[0]
D = 4

class Q:
    def __init__(self, cnt, mx): self.q = []; self.cnt = cnt; self.mx = mx
    def issue(self, tag): self.q.append(tag)
    def wait(self, p, *tags):
        idx = [len(self.q) - 1 - self.q[::-1].index(t) for t in tags if t in self.q]
        if not idx: return
        i = max(idx)
        n = len(self.q) - 1 - i
        assert n <= self.mx, n
        p(f"s_waitcnt {self.cnt}({n})")
        self.q = self.q[i + 1:]


KNAME = "recurrent_scan__sliding_block_cached__moe_arch_mod__prompt_kernel"
sFL, sPC, sKEY = 65, 70, 34
SPIN_MAX = 20000
MODE0 = [False]
DBGT = [False]
NOEW = [False]
MODE3 = [False]
WS_FLG = 0x500000
sNON = 33

LX = 16
def poll32(p, lab, sGrp, stage):
    p(f"""
    v_and_b32 v{vT0}, 31, v1
    v_lshlrev_b32 v{vT0}, 7, v{vT0}
    s_lshl_b32 s{sGrp}, s{sGrp}, 12
    s_add_u32 s{sGrp}, s{sGrp}, {WS_FLG + stage*32768}
    v_add_u32 v{vT0}, s{sGrp}, v{vT0}
    s_mov_b32 s73, {SPIN_MAX}
    """)
    p.label(lab)
    p(f"""
    global_load_dword v{vT1}, v{vT0}, s[18:19] sc1
    s_waitcnt vmcnt(0)
    v_cmp_ne_u32 vcc, s{sNON}, v{vT1}
    s_cbranch_vccz {lab}_OK
    s_sleep 1
    s_sub_u32 s73, s73, 1
    s_cmp_lg_u32 s73, 0
    s_cbranch_scc1 {lab}
    """)
    p.label(lab + "_OK")
def set_flag(p, stage):
    p(f"""
    s_lshl_b32 s{sT0}, s{sFL}, 7
    s_add_u32 s{sT0}, s{sT0}, {WS_FLG + stage*32768}
    v_mov_b32 v{vT0}, s{sT0}
    v_mov_b32 v{vT1}, s{sNON}
    s_mov_b64 exec, 1
    global_store_dword v{vT0}, v{vT1}, s[18:19] sc1
    s_mov_b64 exec, -1
    """)
WS_ST = 0x520000
WS_CS = 0x530000
L_SC = L_K
CSR = 92
def get_nonce(p, lab, vz, vn):
    p(f"""
    s_mov_b32 s73, {SPIN_MAX}
{lab}:
    global_load_dword v{vn}, v{vz}, s[66:67] sc1
    s_waitcnt vmcnt(0)
    v_readfirstlane_b32 s{sNON}, v{vn}
    s_cmp_lg_u32 s{sNON}, 0
    s_cbranch_scc1 {lab}_OK
    s_sub_u32 s73, s73, 1
    s_cmp_lg_u32 s73, 0
    s_cbranch_scc1 {lab}
{lab}_OK:
    """)
class Rec:
    def __init__(self): self.items = []
    def __call__(self, text):
        for line in text.split('\n'):
            if line.strip(): self.items.append(line.strip())
    def call(self, f): self.items.append(f)
LN_X = 16; LN_W = 24
vg0, vg1, vr_, vq_, vNON, vCSA, vLXA = 84, 85, 86, 87, 88, 89, 90
def ln_segments(lq, vq, P):
    X = LN_X; W = LN_W; F = 32; S_ = 48; T = 49; Q0 = 50; Q1 = 51; Dd = 52; va = 68; vw = 69; SD = 70; G = 32
    CA = 72; CT = 52
    p = Rec()
    p(f"""
    v_lshrrev_b32 v{vw}, 6, v0
    v_and_b32 v{va}, 7, v1
    v_xor_b32 v{va}, v{va}, v{vw}
    v_lshlrev_b32 v{va}, 4, v{va}
    v_lshl_add_u32 v{va}, v1, 7, v{va}
    v_add_u32 v{va}, {L_SC}, v{va}
    v_lshrrev_b32 v{vg1}, 3, v0
    v_and_b32 v{vg0}, 7, v{vg1}
    v_and_b32 v{vr_}, 7, v0
    v_xor_b32 v{vg0}, v{vg0}, v{vr_}
    v_lshlrev_b32 v{vg0}, 4, v{vg0}
    v_lshl_add_u32 v{vg0}, v{vg1}, 8, v{vg0}
    s_lshr_b32 s{sT0}, s{sFL}, 1
    s_lshl_b32 s{sT0}, s{sT0}, 15
    s_and_b32 s{sT1}, s{sFL}, 1
    s_lshl_b32 s{sT1}, s{sT1}, 7
    s_add_u32 s{sT0}, s{sT0}, s{sT1}
    v_add_u32 v{vg0}, s{sT0}, v{vg0}
    v_add_u32 v{vg1}, 0x4000, v{vg0}
    v_lshlrev_b32 v{vr_}, 4, v0
    v_add_u32 v{vr_}, {L_SC}, v{vr_}
    """)
    p.call(lambda: vq.wait(P, ("LX", 1)))
    ONE = F
    p(f"v_mov_b32 v{ONE}, 0x3f803f80")
    p(f"v_dot2_f32_bf16 v{S_}, v{X}, v{ONE}, 0\nv_dot2_f32_bf16 v{Q0}, v{X}, v{X}, 0")
    p(f"v_dot2_f32_bf16 v{T}, v{X+1}, v{ONE}, 0\nv_dot2_f32_bf16 v{Q1}, v{X+1}, v{X+1}, 0")
    for i in range(2, 8, 2):
        p(f"v_dot2_f32_bf16 v{S_}, v{X+i}, v{ONE}, v{S_}\nv_dot2_f32_bf16 v{Q0}, v{X+i}, v{X+i}, v{Q0}")
        p(f"v_dot2_f32_bf16 v{T}, v{X+i+1}, v{ONE}, v{T}\nv_dot2_f32_bf16 v{Q1}, v{X+i+1}, v{X+i+1}, v{Q1}")
    p(f"s_nop 1\nv_add_f32 v{S_}, v{S_}, v{T}\nv_add_f32 v{Q0}, v{Q0}, v{Q1}")
    ra = Rec(); wave_sum(ra, S_, T); rb_ = Rec(); wave_sum(rb_, Q0, Q1)
    for x_, y_ in zip(ra.items, rb_.items): p(x_); p(y_)
    p(f"""
    v_mul_f32 v{S_}, 0x3a800000, v{S_}
    v_mul_f32 v{Q0}, 0x3a800000, v{Q0}
    v_fma_f32 v{Q0}, -v{S_}, v{S_}, v{Q0}
    v_max_f32 v{Q0}, 0, v{Q0}
    v_cvt_pk_bf16_f32 v{T}, v{S_}, v{Q0}
    v_lshlrev_b32 v{S_}, 16, v{T}
    v_and_b32 v{Q0}, 0xffff0000, v{T}
    v_add_f32 v{Q0}, 0x3727c5ac, v{Q0}
    v_cvt_pk_bf16_f32 v{Q0}, v{Q0}, v{Q0}
    v_lshlrev_b32 v{Q0}, 16, v{Q0}
    v_sqrt_f32 v{Q0}, v{Q0}
    v_cvt_pk_bf16_f32 v{SD}, v{S_}, v{Q0}
    v_and_b32 v{Q0}, 0xffff0000, v{SD}
    v_rcp_f32 v{Q0}, v{Q0}
    """)
    def dsw(text, tag):
        def f():
            P(text); lq.issue(tag)
        p.call(f)
    p(f"""
    s_lshl_b32 s{sT0}, s{sW}, 2
    s_add_u32 s{sT0}, s{sT0}, {L_SC + 16384}
    v_mov_b32 v{vw}, s{sT0}
    """)
    partA1 = p.items
    p = Rec()
    p.call(lambda: vq.wait(P, ("CS", 3)))
    for i in range(4):
        for j in range(4):
            r = CSR + 4 * i + j
            if i == 0:
                p(f"v_lshlrev_b32 v{CA+2*j}, 16, v{r}\nv_and_b32 v{CA+2*j+1}, 0xffff0000, v{r}")
            else:
                p(f"v_lshlrev_b32 v{CT}, 16, v{r}\nv_and_b32 v{CT+1}, 0xffff0000, v{r}")
                p(f"v_add_f32 v{CA+2*j}, v{CA+2*j}, v{CT}\nv_add_f32 v{CA+2*j+1}, v{CA+2*j+1}, v{CT+1}")
    p(f"""
    v_lshlrev_b32 v{T}, 5, v0
    v_add_u32 v{T}, {L_SC}, v{T}
    """)
    dsw(f"ds_write_b128 v{T}, v[{CA}:{CA+3}]", ("LW", 4))
    dsw(f"ds_write_b128 v{T}, v[{CA+4}:{CA+7}] offset:16", ("LW", 5))
    partA = p.items
    p = Rec()
    exact = True
    for i in range(8):
        p(f"v_lshlrev_b32 v{Dd+2*i}, 16, v{X+i}\nv_and_b32 v{Dd+2*i+1}, 0xffff0000, v{X+i}")
    for i in range(16): p(f"v_sub_f32 v{Dd+i}, v{Dd+i}, v{S_}")
    for i in range(8): p(f"v_cvt_pk_bf16_f32 v{X+i}, v{Dd+2*i}, v{Dd+2*i+1}")
    for i in range(8):
        p(f"v_lshlrev_b32 v{Dd+2*i}, 16, v{X+i}\nv_and_b32 v{Dd+2*i+1}, 0xffff0000, v{X+i}")
    for i in range(16): p(f"v_mul_f32 v{Dd+i}, v{Dd+i}, v{Q0}")
    for i in range(8): p(f"v_cvt_pk_bf16_f32 v{X+i}, v{Dd+2*i}, v{Dd+2*i+1}")
    p.call(lambda: vq.wait(P, ("LX", 3)))
    p(f"v_dot2_f32_bf16 v{S_}, v{X}, v{W}, 0\nv_dot2_f32_bf16 v{Q1}, v{X+1}, v{W+1}, 0")
    for i in range(2, 8, 2):
        p(f"v_dot2_f32_bf16 v{S_}, v{X+i}, v{W+i}, v{S_}\nv_dot2_f32_bf16 v{Q1}, v{X+i+1}, v{W+i+1}, v{Q1}")
    p(f"s_nop 2\nv_add_f32 v{S_}, v{S_}, v{Q1}")
    wave_sum(p, S_, T)
    p(f"""
    v_cvt_pk_bf16_f32 v{S_}, v{S_}, v{S_}
    v_lshlrev_b32 v{S_}, 16, v{S_}
    v_ashrrev_i32 v{T}, 31, v{S_}
    v_or_b32 v{T}, 0x80000000, v{T}
    v_xor_b32 v{S_}, v{S_}, v{T}
    v_and_b32 v{S_}, 0xffff0000, v{S_}
    s_lshl_b32 s{sT1}, s{sFL}, 3
    s_add_u32 s{sT1}, s{sT1}, s{sW}
    s_sub_u32 s{sT0}, 2047, s{sT1}
    v_or_b32 v{S_}, s{sT0}, v{S_}
    v_mov_b32 v{vL0}, 0
    v_mov_b32 v{vL1}, 0
    """)
    dsw(f"ds_write_b128 v{va}, v[{X}:{X+3}]", ("LW", 0))
    dsw(f"ds_write_b128 v{va}, v[{X+4}:{X+7}] offset:8192", ("LW", 1))
    dsw(f"ds_write_b32 v{vw}, v{S_}", ("LW", 2))
    return partA1, partA, p.items
def pub_segments(lq, vq, P):
    R = CSR
    p = Rec()
    def ds(text, tag):
        def f():
            P(text); lq.issue(tag)
        p.call(f)
    def vm(text, tag):
        def f():
            P(text); vq.issue(tag)
        p.call(f)
    p(f"""
    v_lshrrev_b32 v{R+4}, 3, v1
    v_lshlrev_b32 v{R+4}, 9, v{R+4}
    v_and_b32 v{R+5}, 7, v1
    v_lshl_add_u32 v{R+4}, v{R+5}, 3, v{R+4}
    s_lshl_b32 s{sT0}, s{sW}, 6
    s_add_u32 s{sT0}, s{sT0}, {L_SC}
    v_add_u32 v{R+4}, s{sT0}, v{R+4}
    """)
    ds(f"ds_read_b64 v[{R}:{R+1}], v{R+4}", ("PR", 9))
    ds(f"ds_read_b64 v[{R+8}:{R+9}], v{R+4} offset:4096", ("PR", 8))
    p("s_nop 0\ns_nop 0\ns_nop 0\ns_nop 0")
    ds(f"ds_read_b64 v[{R+10}:{R+11}], v{R+4} offset:8192", ("PR", 7))
    ds(f"ds_read_b64 v[{R+12}:{R+13}], v{R+4} offset:12288", ("PR", 0))
    p(f"""
    s_lshl_b32 s{sT0}, s{sHEAD}, 3
    s_add_u32 s{sT0}, s{sT0}, s{sRB}
    s_lshl_b32 s{sT0}, s{sT0}, 3
    s_add_u32 s{sT0}, s{sT0}, s{sW}
    s_lshl_b32 s{sT0}, s{sT0}, 7
    s_add_u32 s{sT0}, s{sT0}, {WS_CS}
    v_lshlrev_b32 v{R+5}, 4, v{R+5}
    v_add_u32 v{R+5}, s{sT0}, v{R+5}
    s_lshl_b32 s{sT0}, s{sFL}, 3
    s_add_u32 s{sT0}, s{sT0}, s{sW}
    s_lshl_b32 s{sT0}, s{sT0}, 3
    s_add_u32 s{sT0}, s{sT0}, {WS_ST}
    v_mov_b32 v{R+6}, s{sT0}
    v_mov_b32 v71, s{sNON}
    """)
    vm(f"s_mov_b64 exec, 1\nglobal_store_dwordx2 v{R+6}, v[70:71], s[18:19] sc1\ns_mov_b64 exec, -1", ("PS", 0))
    p.call(lambda: lq.wait(P, ("PR", 0)))
    p(f"""
    v_add_f32 v{R}, v{R}, v{R+8}
    v_add_f32 v{R+1}, v{R+1}, v{R+9}
    v_add_f32 v{R+10}, v{R+10}, v{R+12}
    v_add_f32 v{R+11}, v{R+11}, v{R+13}
    v_add_f32 v{R}, v{R}, v{R+10}
    v_add_f32 v{R+2}, v{R+1}, v{R+11}
    """)
    for c in (R, R + 2): p(f"v_add_f32_dpp v{c}, v{c}, v{c} row_ror:8 row_mask:0xf bank_mask:0xf")
    for sw in ("v_permlane16_swap_b32", "v_permlane32_swap_b32"):
        p(f"v_mov_b32 v{R+1}, v{R}\nv_mov_b32 v{R+3}, v{R+2}")
        p(f"{sw} v{R}, v{R+1}\n{sw} v{R+2}, v{R+3}")
        p(f"v_add_f32 v{R}, v{R}, v{R+1}\nv_add_f32 v{R+2}, v{R+2}, v{R+3}")
    p(f"v_mov_b32 v{R+1}, s{sNON}\nv_mov_b32 v{R+3}, s{sNON}")
    vm(f"s_mov_b64 exec, 0xff\nglobal_store_dwordx4 v{R+5}, v[{R}:{R+3}], s[18:19] sc1\ns_mov_b64 exec, -1", ("PS", 1))
    seg1 = p.items
    p = Rec()
    X = 16
    ds(f"ds_read_b128 v[{X}:{X+3}], v{vr_}", ("PR", 1))
    ds(f"ds_read_b128 v[{X+4}:{X+7}], v{vr_} offset:8192", ("PR", 2))
    p(f"v_mov_b32 v{vq_}, {L_SC + 16384}")
    ds(f"ds_read_b128 v[{X+8}:{X+11}], v{vq_}", ("PR", 3))
    p("s_nop 0\ns_nop 0\ns_nop 0\ns_nop 0")
    p.call(lambda: lq.wait(P, ("PR", 1)))
    vm(f"global_store_dwordx4 v{vg0}, v[{X}:{X+3}], s[18:19] sc1", ("PS", 2))
    ds(f"ds_read_b128 v[{X+12}:{X+15}], v{vq_} offset:16", ("PR", 4))
    p.call(lambda: lq.wait(P, ("PR", 2)))
    vm(f"global_store_dwordx4 v{vg1}, v[{X+4}:{X+7}], s[18:19] sc1", ("PS", 3))
    p("s_nop 0\ns_nop 0\ns_nop 0\ns_nop 0")
    p.call(lambda: lq.wait(P, ("PR", 4)))
    p(f"""
    v_max3_u32 v{X+8}, v{X+8}, v{X+9}, v{X+10}
    v_max3_u32 v{X+12}, v{X+12}, v{X+13}, v{X+14}
    v_max3_u32 v{X+8}, v{X+8}, v{X+11}, v{X+15}
    v_max_u32 v{X+8}, v{X+8}, v{X+12}
    v_readfirstlane_b32 s{sKEY}, v{X+8}
    """)
    return seg1, p.items
def set_flag2(p):
    pass

def rbf(p, v):
    p(f"v_cvt_pk_bf16_f32 v{v}, v{v}, v{v}\nv_lshlrev_b32 v{v}, 16, v{v}")
def silu(p, d, v, t):
    p(f"""
    v_mul_f32 v{t}, 0xbfb8aa3b, v{v}
    v_exp_f32 v{t}, v{t}
    v_add_f32 v{t}, 1.0, v{t}
    v_rcp_f32 v{t}, v{t}
    v_mul_f32 v{d}, v{v}, v{t}
    """)
sRT, sCT, sIT, sA, sBo, sMb, sMb2, sKH, sKQ, sMH = 20, 21, 23, 24, 25, 26, 27, 28, 29, 30
sKG, sCG = 31, 32
SRD_A, SRD_B = 36, 40
RB1 = 16384; RB2 = 114688
WS_EX = 0x2000000; WS_FLG2 = 0x560000
EW = 244
L_H3 = 148480
CNT_A = L_HI + 2*KSL + 6*1088 + 1024
CNT_B = CNT_A + 1088
def p3_early_setup():
    return f"""s_and_b32 s{sT0}, s2, 7
    s_lshr_b32 s{sT1}, s2, 3
    s_lshr_b32 s{sRT}, s{sT0}, 1
    s_lshl_b32 s{sRT}, s{sRT}, 2
    s_and_b32 s{sT2}, s{sT1}, 3
    s_add_u32 s{sRT}, s{sRT}, s{sT2}
    s_and_b32 s{sCT}, s{sT0}, 1
    s_lshl_b32 s{sCT}, s{sCT}, 2
    s_bfe_u32 s{sT2}, s{sT1}, 0x20002
    s_add_u32 s{sCT}, s{sCT}, s{sT2}
    s_lshr_b32 s{sKH}, s{sT1}, 4
    s_and_b32 s{sKQ}, s{sW}, 3
    s_lshr_b32 s{sMH}, s{sW}, 2
    s_xor_b32 s{sMH}, s{sMH}, s{sKH}
    s_xor_b32 s{sMH}, s{sMH}, 1
    s_lshl_b32 s{sT0}, s{sKH}, 2
    s_add_u32 s{sT0}, s{sT0}, s{sKQ}
    s_lshl_b32 s{sT1}, s{sT0}, 21
    s_add_u32 s{sT1}, s{sT1}, {WS_OT}
    s_add_u32 s{SRD_A}, s18, s{sT1}
    s_addc_u32 s{SRD_A+1}, s19, 0
    s_mov_b32 s{SRD_A+2}, 0x200000
    s_mov_b32 s{SRD_A+3}, 0x20000
    s_lshl_b32 s{sT1}, s{sT0}, 20
    s_add_u32 s{SRD_B}, s10, s{sT1}
    s_addc_u32 s{SRD_B+1}, s11, 0
    s_mov_b32 s{SRD_B+2}, 0x100000
    s_mov_b32 s{SRD_B+3}, 0x20000
    s_lshl_b32 s{sA}, s{sRT}, 1
    s_add_u32 s{sA}, s{sA}, s{sMH}
    s_lshl_b32 s{sA}, s{sA}, 12
    s_lshl_b32 s{sBo}, s{sCT}, 8
    s_lshl_b32 s{sT1}, s{sMH}, 15
    s_add_u32 s{sBo}, s{sBo}, s{sT1}
    s_mul_i32 s{sMb}, s{sKQ}, 24576
    s_add_u32 s{sMb}, s{sMb}, {RB1}
    s_lshl_b32 s{sMb2}, s{sKQ}, 13
    s_add_u32 s{sMb2}, s{sMb2}, {RB2 - 3*8192}
    s_lshl_b32 s{sT1}, s{sMH}, 12
    s_add_u32 s{sT2}, s{sMb}, s{sT1}
    s_add_u32 s{sT3}, s{sMb2}, s{sT1}
    v_lshrrev_b32 v{EW+1}, 4, v1
    v_and_b32 v{EW}, 3, v1
    v_bfe_u32 v{EW+2}, v1, 2, 2
    v_lshlrev_b32 v{EW}, 4, v{EW}
    v_lshl_add_u32 v{EW}, v{EW+1}, 6, v{EW}
    v_lshl_add_u32 v{EW}, v{EW+2}, 11, v{EW}
    v_add_u32 v{EW+1}, 7168, v{EW}
    v_add_u32 v{EW+2}, {2*7168}, v{EW}
    v_add_u32 v{EW+3}, {3*7168}, v{EW}
    s_mov_b32 s{sDW}, s{sT2}
    s_mov_b32 s{sDW2}, s{sT3}"""
sDW, sDW2 = 68, 69
def wdma(slot, i, vW):
    t = ""
    if i == 0: t = f"s_add_u32 m0, s{sDW2 if slot == 3 else sDW}, {slot*8192}\ns_nop 0\n"
    t += f"buffer_load_dwordx4 v{vW+i}, s[{SRD_B}:{SRD_B+3}], s{sBo} offen offset:{i*1024} lds"
    if i == 3: t += f"\ns_add_u32 s{sBo}, s{sBo}, 65536"
    return t
def p3_early_dma(n):
    return wdma(n >> 2, n & 3, EW)
PL_A = 212; PL_B = 228; PL_G = 176; PL_OUT = 248
def gu_loads(GA):
    t = f"""s_mul_i32 s{sT0}, s{sKG}, 224
    s_mul_i32 s{sT1}, s{sKQ}, 56
    s_add_u32 s{sT0}, s{sT0}, s{sT1}
    v_min_u32 v{GA}, 55, v1
    v_add_lshl_u32 v{GA}, v{GA}, s{sT0}, 3
    v_add_u32 v{GA}, {WS_GU}, v{GA}
    """
    for q in range(8):
        t += f"global_load_dwordx2 v[{PL_G+2*q}:{PL_G+2*q+1}], v{GA}, s[18:19] sc1\n"
        if q < 7: t += f"v_add_u32 v{GA}, 28672, v{GA}\n"
    return t
def p3_preload(n):
    A = 249; B = 250
    if n == 0:
        return f"""s_and_b32 s{sKG}, s{sFL}, 15
    s_lshr_b32 s{sCG}, s{sFL}, 4
    s_cmp_lg_u32 s{sMH}, s{sKH}
    s_cbranch_scc1 M_PL_S
    s_lshl_b32 s{sT0}, s{sRT}, 1
    s_add_u32 s{sT0}, s{sT0}, s{sKH}
    s_lshl_b32 s{sT0}, s{sT0}, 2
    s_add_u32 s{sT0}, s{sT0}, s{sKQ}
    s_lshl_b32 s{sT1}, s{sT0}, 15
    s_lshl_b32 s{sT2}, s{sCT}, 8
    s_add_u32 s{sT2}, s{sT1}, s{sT2}
    v_and_b32 v{A}, 15, v1
    v_lshrrev_b32 v{B}, 4, v1
    v_lshlrev_b32 v{PL_OUT}, 11, v{A}
    v_lshl_add_u32 v{PL_OUT}, v{B}, 4, v{PL_OUT}
    v_add_u32 v{PL_OUT}, s{sT2}, v{PL_OUT}
    s_lshl_b32 s{sT2}, s{sCT}, 12
    s_add_u32 s{sT2}, s{sT1}, s{sT2}
    v_lshlrev_b32 v{A}, 4, v{A}
    v_lshl_add_u32 v{A}, v{B}, 8, v{A}
    v_add_u32 v{A}, s{sT2}, v{A}
    s_branch M_PL_E
M_PL_S:
    s_mul_i32 s{sT0}, s{sKG}, 224
    s_mul_i32 s{sT1}, s{sKQ}, 56
    s_add_u32 s{sT0}, s{sT0}, s{sT1}
    s_lshl_b32 s{sT1}, s{sT0}, 11
    s_lshl_b32 s{sT2}, s{sCG}, 7
    s_add_u32 s{sT1}, s{sT1}, s{sT2}
    v_lshrrev_b32 v{A}, 3, v1
    v_lshlrev_b32 v{A}, 11, v{A}
    v_and_b32 v{B}, 7, v1
    v_lshl_add_u32 v{A}, v{B}, 4, v{A}
    v_add_u32 v{A}, s{sT1}, v{A}
    v_mov_b32 v{PL_OUT}, 0
M_PL_E:"""
    if n == 9:
        return f"s_cmp_eq_u32 s{sMH}, s{sKH}\ns_cbranch_scc1 M_PL9\n{gu_loads(B)}M_PL9:"
    i = n - 1
    kl = (f"global_load_dwordx4 v[{PL_B+4*i}:{PL_B+4*i+3}], v{A}, s[18:19] offset:{i*1024} sc1" if i < 4 else
          f"global_load_dwordx4 v[{PL_A+4*(i-4)}:{PL_A+4*(i-4)+3}], v{PL_OUT}, s[74:75] offset:{(i-4)*64}")
    sl = (f"global_load_dwordx4 v[{PL_A+4*i}:{PL_A+4*i+3}], v{A}, s[16:17]\nv_add_u32 v{A}, 0x4000, v{A}\n" if i < 7 else "")
    return f"s_cmp_lg_u32 s{sMH}, s{sKH}\ns_cbranch_scc1 M_PLS{n}\n{kl}\ns_branch M_PLE{n}\nM_PLS{n}:\n{sl}M_PLE{n}:"
def phase3(p, ST, stamp):
    AC3 = 128; OR = 64; WF = 16; XP = 32; GP = 48
    vAo, vRd, vRd2, vOut, vFa, vFv = 2, 3, 8, 9, 10, 11; vW = 4
    ST(False)
    def oload(slot, i):
        r = OR + slot * 16 + i * 4
        t = f"buffer_load_dwordx4 v[{r}:{r+3}], v{vAo}, s[{SRD_A}:{SRD_A+3}], s{sA} offen offset:{i*1024} sc1"
        if i == 3: t += f"\ns_add_u32 s{sA}, s{sA}, 131072"
        return t
    def arrive(lab, n):
        p(f"""
    v_mov_b32 v{vT0}, {CNT_A}
    v_mov_b32 v{vT1}, 1
    s_waitcnt vmcnt({n})
    s_mov_b64 exec, 1
    ds_add_rtn_u32 v{vT2}, v{vT0}, v{vT1}
    s_mov_b64 exec, -1
    s_waitcnt lgkmcnt(0)
    v_readfirstlane_b32 s{sT0}, v{vT2}
    s_cmp_lg_u32 s{sT0}, 7
    s_cbranch_scc1 {lab}
    """)
        set_flag(p, 1)
        p.label(lab)
    NR = PL_B; GG = 144; TT = 176
    p(f"""
    ST3_0
    s_setprio 0
    v_mov_b32 v{vW}, v{EW}
    v_mov_b32 v{vW+1}, v{EW+1}
    v_mov_b32 v{vW+2}, v{EW+2}
    v_mov_b32 v{vW+3}, v{EW+3}
    v_mov_b32 v{vOut}, v{PL_OUT}
    s_waitcnt vmcnt(8)
    s_cmp_lg_u32 s{sMH}, s{sKH}
    s_cbranch_scc1 M_SEND0
    """)
    for j in range(16):
        p(f"v_lshlrev_b32 v{GG+2*j}, 16, v{NR+j}\nv_and_b32 v{GG+2*j+1}, 0xffff0000, v{NR+j}\nv_mov_b32 v{XP+j}, v{PL_A+j}")
    for c in range(32): p(f"v_mul_f32 v{TT+c}, 0xbfb8aa3b, v{GG+c}")
    for c in range(32): p(f"v_exp_f32 v{TT+c}, v{TT+c}")
    for c in range(32): p(f"v_add_f32 v{TT+c}, 1.0, v{TT+c}")
    for c in range(32): p(f"v_rcp_f32 v{TT+c}, v{TT+c}")
    for c in range(32): p(f"v_mul_f32 v{GG+c}, v{GG+c}, v{TT+c}")
    for c in range(16): p(f"v_cvt_pk_bf16_f32 v{GP+c}, v{GG+2*c}, v{GG+2*c+1}")
    arrive("M_ARR0", 0)
    p(f"s_and_b32 s{sT3}, s{sBo}, 0x7fff")
    for sl in range(3):
        for hf in range(2):
            p(f"s_add_u32 m0, s{sMb}, {sl*8192 + hf*4096}\ns_nop 0")
            for i in range(4):
                p(f"buffer_load_dwordx4 v{vW+i}, s[{SRD_B}:{SRD_B+3}], s{sT3} offen offset:{i*1024} lds")
            p(f"s_add_u32 s{sT3}, s{sT3}, 32768")
    p("ST3_6\ns_branch M_JOIN0")
    p.label("M_SEND0")
    WD = PL_A; GR = PL_G; GA = 144; AC = 152; T = 160; SW = 164
    guld = gu_loads(GA)
    p(guld)
    arrive("M_ARR3", 8)
    p(f"s_mov_b32 s73, {SPIN_MAX}\ns_mov_b32 s{sIT}, 1\ns_waitcnt vmcnt(0)")
    p.label("M_POLL2")
    for q in range(8): p(f"v_xor_b32 v{GR+2*q+1}, s{sNON}, v{GR+2*q+1}")
    p(f"""
    v_or3_b32 v{GR+1}, v{GR+1}, v{GR+3}, v{GR+5}
    v_or3_b32 v{GR+7}, v{GR+7}, v{GR+9}, v{GR+11}
    v_or3_b32 v{GR+1}, v{GR+1}, v{GR+13}, v{GR+15}
    v_or_b32 v{GR+1}, v{GR+1}, v{GR+7}
    v_cmp_ne_u32 vcc, 0, v{GR+1}
    s_cbranch_vccz M_POLL2_OK
    s_cmp_lg_u32 s{sIT}, 0
    s_cbranch_scc1 M_ARR2
    s_mov_b32 s{sIT}, 1
    """)
    arrive("M_ARR2", 0)
    p(f"""
    s_sleep 10
    {guld}
    s_waitcnt vmcnt(0)
    s_sub_u32 s73, s73, 1
    s_cmp_lg_u32 s73, 0
    s_cbranch_scc1 M_POLL2
    """)
    p.label("M_POLL2_OK")
    p(f"v_mov_b32 v{GR+1}, v{GR+2}")
    for q in range(1, 4):
        p(f"v_add_f32 v{GR}, v{GR}, v{GR+4*q}\nv_add_f32 v{GR+1}, v{GR+1}, v{GR+4*q+2}")
    rbf(p, GR); rbf(p, GR + 1)
    silu(p, GR, GR, GR + 2)
    rbf(p, GR)
    p(f"v_mul_f32 v{GR}, v{GR}, v{GR+1}")
    rbf(p, GR)
    p(f"""
    s_lshl_b32 s{sT0}, s{sKQ}, 8
    s_add_u32 s{sT0}, s{sT0}, {L_H3}
    v_lshlrev_b32 v{vT0}, 2, v1
    v_add_u32 v{vT0}, s{sT0}, v{vT0}
    ds_write_b32 v{vT0}, v{GR}
    v_lshrrev_b32 v{vT1}, 3, v1
    v_lshlrev_b32 v{vT1}, 2, v{vT1}
    v_add_u32 v{vT1}, s{sT0}, v{vT1}
    s_waitcnt lgkmcnt(0)
    """)
    for i in range(7): p(f"ds_read_b32 v{GR+i}, v{vT1} offset:{i*32}")
    p("s_waitcnt lgkmcnt(0)")
    for i in range(7):
        for j in range(4):
            w = WD + 4 * i + j
            p(f"v_lshlrev_b32 v{T}, 16, v{w}\nv_and_b32 v{T+1}, 0xffff0000, v{w}")
            if i == 0: p(f"v_mul_f32 v{AC+2*j}, v{T}, v{GR}\nv_mul_f32 v{AC+2*j+1}, v{T+1}, v{GR}")
            else: p(f"v_fmac_f32 v{AC+2*j}, v{T}, v{GR+i}\nv_fmac_f32 v{AC+2*j+1}, v{T+1}, v{GR+i}")
    for c in range(8): p(f"v_add_f32_dpp v{AC+c}, v{AC+c}, v{AC+c} row_ror:8 row_mask:0xf bank_mask:0xf")
    for sw in ("v_permlane16_swap_b32", "v_permlane32_swap_b32"):
        for c in range(8): p(f"v_mov_b32 v{SW+c}, v{AC+c}")
        for c in range(8): p(f"{sw} v{AC+c}, v{SW+c}")
        for c in range(8): p(f"v_add_f32 v{AC+c}, v{AC+c}, v{SW+c}")
    p(f"""
    v_and_b32 v{vT0}, 7, v1
    v_lshlrev_b32 v{vT0}, 5, v{vT0}
    s_add_u32 s{sT0}, s{sT0}, 1024
    v_add_u32 v{vT0}, s{sT0}, v{vT0}
    ds_write_b128 v{vT0}, v[{AC}:{AC+3}]
    ds_write_b128 v{vT0}, v[{AC+4}:{AC+7}] offset:16
    v_mov_b32 v{vT0}, {CNT_B}
    v_mov_b32 v{vT1}, 1
    s_waitcnt lgkmcnt(0)
    s_mov_b64 exec, 1
    ds_add_rtn_u32 v{vT2}, v{vT0}, v{vT1}
    s_mov_b64 exec, -1
    s_waitcnt lgkmcnt(0)
    v_readfirstlane_b32 s{sT0}, v{vT2}
    s_cmp_lg_u32 s{sT0}, 3
    s_cbranch_scc1 M_SEND_END
    v_lshlrev_b32 v{vT0}, 2, v1
    v_add_u32 v{vT1}, {L_H3 + 1024}, v{vT0}
    ds_read_b32 v{GR}, v{vT1}
    ds_read_b32 v{GR+1}, v{vT1} offset:256
    ds_read_b32 v{GR+2}, v{vT1} offset:512
    ds_read_b32 v{GR+3}, v{vT1} offset:768
    s_lshl_b32 s{sT0}, s{sKG}, 13
    s_lshl_b32 s{sT1}, s{sCG}, 9
    s_add_u32 s{sT0}, s{sT0}, s{sT1}
    s_add_u32 s{sT0}, s{sT0}, {WS_YP}
    v_lshlrev_b32 v{vT0}, 1, v{vT0}
    v_add_u32 v{vT0}, s{sT0}, v{vT0}
    s_waitcnt lgkmcnt(0)
    v_add_f32 v{GR}, v{GR}, v{GR+1}
    v_add_f32 v{GR+2}, v{GR+2}, v{GR+3}
    v_add_f32 v{GR}, v{GR}, v{GR+2}
    v_mov_b32 v{GR+1}, s{sNON}
    global_store_dwordx2 v{vT0}, v[{GR}:{GR+1}], s[18:19] sc1
    """)
    p.label("M_SEND_END")
    p(f"s_cmp_lg_u32 s{sIT}, 0\ns_cbranch_scc1 M_JOIN0")
    arrive("M_ARR1", 0)
    p("ST3_6")
    p.label("M_JOIN0")
    p(f"s_add_u32 s{sBo}, s{sBo}, {3*65536}")
    p(f"""
    ST3_1
    s_lshr_b32 s{sT0}, s{sRT}, 1
    s_lshl_b32 s{sT0}, s{sT0}, 1
    s_add_u32 s{sT0}, s{sT0}, s{sKH}
    s_lshl_b32 s{sT0}, s{sT0}, 2
    s_add_u32 s{sT0}, s{sT0}, s{sKQ}
    s_lshl_b32 s{sT0}, s{sT0}, 9
    s_add_u32 s{sT0}, s{sT0}, {WS_FLG + 32768}
    v_and_b32 v{vFa}, 3, v1
    v_lshlrev_b32 v{vFa}, 7, v{vFa}
    v_add_u32 v{vFa}, s{sT0}, v{vFa}
    global_load_dword v{vFv}, v{vFa}, s[18:19] sc1
    v_lshlrev_b32 v{vAo}, 4, v1
    s_mov_b32 s{sIT}, 0
    v_lshrrev_b32 v{vT0}, 4, v1
    v_and_b32 v{vT1}, 3, v1
    v_bfe_u32 v{vT3}, v1, 2, 2
    v_lshlrev_b32 v{vRd}, 11, v{vT0}
    v_lshl_add_u32 v{vRd}, v{vT3}, 6, v{vRd}
    v_lshl_add_u32 v{vRd}, v{vT1}, 4, v{vRd}
    v_add_u32 v{vRd2}, s{sMb2}, v{vRd}
    v_add_u32 v{vRd}, s{sMb}, v{vRd}
    """)
    for i in range(128): p(f"v_mov_b32 v{AC3+i}, 0")
    p(f"""
    s_mov_b32 s73, {SPIN_MAX}
M_POLL1:
    s_waitcnt vmcnt(0)
    v_cmp_ne_u32 vcc, s{sNON}, v{vFv}
    s_cbranch_vccz M_POLL1_OK
    s_sleep 2
    global_load_dword v{vFv}, v{vFa}, s[18:19] sc1
    s_sub_u32 s73, s73, 1
    s_cmp_lg_u32 s73, 0
    s_cbranch_scc1 M_POLL1
M_POLL1_OK:
    ST3_2
    """)
    for sl in range(3):
        for i in range(4): p(oload(sl, i))
    p("ST3_3\ns_barrier\nST3_4\ns_waitcnt vmcnt(8)\nST3_5")
    ST(False)
    lq = Q("lgkmcnt", 15)
    if stamp: p("s_waitcnt lgkmcnt(0)")
    def wread(slot, f):
        u, e = f >> 1, f & 1
        r = WF + (f & 3) * 4
        for t in range(2):
            p(f"ds_read_b64_tr_b16 v[{r+2*t}:{r+2*t+1}], v{vRd2 if slot == 3 else vRd} offset:{slot*8192 + t*1024 + u*256 + e*8}")
            lq.issue(("W", f & 3, t))
    LAW = 3
    for f in range(LAW): wread(0, f)
    st0 = list(lq.q)
    p(".p2align 6")
    p.label("M_P3")
    for st in range(4):
        n = (st + 3) & 3
        L = [wdma(n, i, vW) for i in range(4)] + [oload(n, i) for i in range(4)]
        for f in range(8):
            fn = f + LAW; ns = st
            if fn >= 8: fn -= 8; ns = (st + 1) & 3
            lq.wait(p, ("W", f & 3, 1))
            for i in range(4):
                d = AC3 + (i * 8 + f) * 4; a = WF + (f & 3) * 4; b = OR + st * 16 + i * 4
                p(f"v_mfma_f32_16x16x32_bf16 v[{d}:{d+3}], v[{a}:{a+3}], v[{b}:{b+3}], v[{d}:{d+3}]")
                if i == 0: wread(ns, fn)
                if i == 2: p(L[f])
        if st == 3: p(f"s_add_u32 s{sIT}, s{sIT}, 1\ns_cmp_lt_u32 s{sIT}, 4")
        p("s_waitcnt vmcnt(12)\ns_barrier")
    assert lq.q == st0
    p(f"""
    s_cbranch_scc1 M_P3
    s_waitcnt vmcnt(0) lgkmcnt(0)
    s_mul_i32 s{sT0}, s{sKQ}, 24576
    v_add_u32 v{vT0}, s{sT0}, v{vAo}
    v_add_u32 v{vRd2}, 0x10000, v{vAo}
    s_barrier
    """)
    ST(False)
    p("ST4_0")
    RD = 64
    OWN = 16
    OWN = 96
    def red_write(tag):
        for w in range(3): p(f"s_cmp_eq_u32 s{sKQ}, {w}\ns_cbranch_scc1 M_RW{tag}{w}")
        for w in (3, 0, 1, 2):
            if w != 3: p.label(f"M_RW{tag}{w}")
            for kk in range(1, 4):
                i = (w + kk) & 3; slot = 3 - kk
                base = (i * 3 + slot) * 8192
                for f in range(8):
                    q = i * 8 + f
                    off = base + f * 1024
                    p(f"ds_write_b128 v{vRd2 if off >= 65536 else vAo}, v[{AC3+4*q}:{AC3+4*q+3}] offset:{off & 0xffff}")
            for c in range(32): p(f"v_mov_b32 v{OWN+c}, v{AC3+w*32+c}")
            if w != 2: p(f"s_branch M_RJ{tag}")
        p.label(f"M_RJ{tag}")
    def red_read(after=None):
        for half in range(2):
            T0 = AC3 + half * 48
            for sl in range(3):
                for ff in range(4):
                    r = T0 + (sl * 4 + ff) * 4
                    p(f"ds_read_b128 v[{r}:{r+3}], v{vT0} offset:{sl*8192 + (half*4+ff)*1024}")
            if half == 0: continue
        for half in range(2):
            T0 = AC3 + half * 48
            for sl in range(3):
                n = 24 - (half * 12 + sl * 4 + 4)
                p(f"s_waitcnt lgkmcnt({min(n, 15)})")
                for c in range(16): p(f"v_add_f32 v{OWN+half*16+c}, v{OWN+half*16+c}, v{T0+sl*16+c}")
            if after: after(half)
    p(f"""
    s_cmp_eq_u32 s{sMH}, s{sKH}
    s_cbranch_scc1 M_KEEP1
    """)
    red_write("S")
    p("s_waitcnt lgkmcnt(0)\nST4_1\ns_barrier\nST4_2")
    p(f"""
    s_lshl_b32 s{sT0}, s2, 2
    s_add_u32 s{sT0}, s{sT0}, s{sKQ}
    s_lshl_b32 s{sT1}, s{sT0}, 13
    s_add_u32 s{sT1}, s{sT1}, {WS_EX}
    v_add_u32 v{vFa}, s{sT1}, v{vAo}
    v_add_u32 v{vFv}, 4096, v{vFa}
    s_lshl_b32 s{sT0}, s{sT0}, 7
    s_add_u32 s{sT0}, s{sT0}, {WS_FLG2}
    v_mov_b32 v{vT2}, s{sT0}
    v_mov_b32 v{vT3}, s{sNON}
    """)
    def sst(half):
        for f in range(4 * half, 4 * half + 4):
            p(f"global_store_dwordx4 v{vFv if f >= 4 else vFa}, v[{OWN+4*f}:{OWN+4*f+3}], s[18:19] offset:{(f&3)*1024} sc1")
    red_read(sst)
    p(f"""
    ST4_3
    s_barrier
    ST4_4
    s_waitcnt vmcnt(0)
    ST4_5
    ST4_6
    ST4_7
    s_mov_b64 exec, 1
    global_store_dword v{vT2}, v{vT3}, s[18:19] sc1
    s_mov_b64 exec, -1
    """)
    if stamp:
        p("s_memrealtime s[98:99]")
        stamp_out(p, 0x3000000)
    p("s_branch K2_END")
    p.label("M_KEEP1")
    p(f"""
    s_barrier
    s_xor_b32 s{sT0}, s2, 128
    s_lshl_b32 s{sT0}, s{sT0}, 2
    s_add_u32 s{sT0}, s{sT0}, s{sKQ}
    s_lshl_b32 s{sT1}, s{sT0}, 13
    s_add_u32 s{sT1}, s{sT1}, {WS_EX}
    v_add_u32 v{vFa}, s{sT1}, v{vAo}
    v_add_u32 v{vFv}, 4096, v{vFa}
    s_lshl_b32 s{sT0}, s{sT0}, 7
    s_add_u32 s{sT0}, s{sT0}, {WS_FLG2}
    v_mov_b32 v{vT2}, s{sT0}
    s_barrier
    """)
    p("ST4_1")
    red_write("K")
    p(f"global_load_dword v{vT3}, v{vT2}, s[18:19] sc1")
    p(f"""
    v_mov_b32 v64, {CNT_B}
    v_mov_b32 v65, 1
    s_waitcnt lgkmcnt(0)
    ST4_2
    s_mov_b64 exec, 1
    ds_add_u32 v64, v65
    s_mov_b64 exec, -1
    s_mov_b32 s73, {SPIN_MAX*16}
M_B4:
    ds_read_b32 v66, v64
    s_waitcnt lgkmcnt(0)
    v_readfirstlane_b32 s{sT0}, v66
    s_cmp_ge_u32 s{sT0}, 8
    s_cbranch_scc1 M_B4_OK
    s_sub_u32 s73, s73, 1
    s_cmp_lg_u32 s73, 0
    s_cbranch_scc1 M_B4
M_B4_OK:
    ST4_3
    """)
    PR = 224
    prl = "\n".join(f"global_load_dwordx4 v[{PR+4*f}:{PR+4*f+3}], v{vFv if f >= 4 else vFa}, s[18:19] offset:{(f&3)*1024} sc1" for f in range(8))
    p(f"""
    s_waitcnt vmcnt(0)
    v_cmp_ne_u32 vcc, s{sNON}, v{vT3}
    s_mov_b32 s{sIT}, 0
    s_cbranch_vccnz M_PRL
    s_mov_b32 s{sIT}, 1
    {prl}
M_PRL:
    """)
    red_read()
    p(f"""
    s_lshl_b32 s{sT0}, s{sRT}, 1
    s_add_u32 s{sT0}, s{sT0}, s{sKH}
    s_lshl_b32 s{sT0}, s{sT0}, 2
    s_add_u32 s{sT0}, s{sT0}, s{sKQ}
    s_lshr_b32 s{sT1}, s{sIDX}, 4
    s_cmp_lg_u32 s{sT0}, s{sT1}
    s_cbranch_scc1 M_H5
    s_mov_b32 s73, {SPIN_MAX}
M_POLL3:
    s_lshl_b32 s{sT0}, s{sCT}, 10
    s_add_u32 s{sT0}, s{sT0}, {WS_YP}
    v_add_u32 v26, s{sT0}, v{vAo}
    """)
    YR = 128
    for q in range(16):
        p(f"global_load_dwordx4 v[{YR+4*q}:{YR+4*q+3}], v26, s[18:19] sc1")
        if q < 15: p(f"v_add_u32 v26, 8192, v26")
    p(f"s_waitcnt vmcnt(0)\nv_mov_b32 v27, 0")
    for q in range(16):
        p(f"v_xor_b32 v{YR+4*q+1}, s{sNON}, v{YR+4*q+1}\nv_xor_b32 v{YR+4*q+3}, s{sNON}, v{YR+4*q+3}")
        p(f"v_or3_b32 v27, v27, v{YR+4*q+1}, v{YR+4*q+3}")
    p(f"""
    v_cmp_ne_u32 vcc, 0, v27
    s_cbranch_vccz M_POLL3_OK
    s_sleep 10
    s_sub_u32 s73, s73, 1
    s_cmp_lg_u32 s73, 0
    s_cbranch_scc1 M_POLL3
M_POLL3_OK:
    s_lshr_b32 s{sT0}, s{sIDX}, 4
    s_lshl_b32 s{sT0}, s{sT0}, 15
    s_lshl_b32 s{sT1}, s{sCT}, 12
    s_add_u32 s{sT0}, s{sT0}, s{sT1}
    s_and_b32 s{sT1}, s{sIDX}, 15
    s_lshl_b32 s{sT1}, s{sT1}, 4
    s_add_u32 s{sT0}, s{sT0}, s{sT1}
    v_lshrrev_b32 v26, 2, v1
    v_lshlrev_b32 v26, 8, v26
    v_and_b32 v27, 3, v1
    v_lshl_add_u32 v26, v27, 2, v26
    v_add_u32 v26, s{sT0}, v26
    global_load_dword v24, v26, s[18:19] sc1
    s_and_b32 s{sT0}, s{sKEY}, 0xffff0000
    s_ashr_i32 s{sT1}, s{sT0}, 31
    s_not_b32 s{sT1}, s{sT1}
    s_or_b32 s{sT1}, s{sT1}, 0x80000000
    s_xor_b32 s{sT0}, s{sT0}, s{sT1}
    s_and_b32 s{sT0}, s{sT0}, 0xffff0000
    v_mov_b32 v25, s{sT0}
    v_mul_f32 v25, 0xbfb8aa3b, v25
    v_exp_f32 v25, v25
    v_add_f32 v25, 1.0, v25
    v_rcp_f32 v25, v25
    """)
    rbf(p, 25)
    p(f"v_mov_b32 v16, v{YR}\nv_mov_b32 v17, v{YR+2}")
    for q in range(1, 16):
        p(f"v_add_f32 v16, v16, v{YR+4*q}\nv_add_f32 v17, v17, v{YR+4*q+2}")
    p("s_waitcnt vmcnt(0)\nv_lshlrev_b32 v18, 16, v24\nv_and_b32 v19, 0xffff0000, v24")
    for c in range(2):
        rbf(p, 16 + c)
        p(f"v_mul_f32 v{16+c}, v{16+c}, v25")
        rbf(p, 16 + c)
        p(f"v_add_f32 v{16+c}, v{16+c}, v{18+c}")
        rbf(p, 16 + c)
        silu(p, 16 + c, 16 + c, 20 + c)
    p(f"""
    v_cvt_pk_bf16_f32 v16, v16, v17
    v_lshlrev_b32 v26, 2, v1
    v_add_u32 v26, {L_H3 + 4096}, v26
    ds_write_b32 v26, v16
    v_lshrrev_b32 v27, 4, v1
    v_lshlrev_b32 v27, 4, v27
    v_add_u32 v27, {L_H3 + 4096}, v27
    v_and_b32 v26, 15, v1
    s_and_b32 s{sT0}, s{sIDX}, 15
    v_cmp_eq_u32 vcc, s{sT0}, v26
    s_waitcnt lgkmcnt(0)
    """)
    for u in range(4): p(f"ds_read_b128 v[{64+4*u}:{67+4*u}], v27 offset:{u*64}")
    p("s_waitcnt lgkmcnt(0)")
    for c in range(16): p(f"v_cndmask_b32 v{GP+c}, v{GP+c}, v{64+c}, vcc")
    p.label("M_H5")
    XU = 128; GU_ = 160
    for j in range(16):
        p(f"v_lshlrev_b32 v{XU+2*j}, 16, v{XP+j}\nv_and_b32 v{XU+2*j+1}, 0xffff0000, v{XP+j}")
        p(f"v_lshlrev_b32 v{GU_+2*j}, 16, v{GP+j}\nv_and_b32 v{GU_+2*j+1}, 0xffff0000, v{GP+j}")
    p(f"""
    ST4_4
    s_cmp_lg_u32 s{sIT}, 0
    s_cbranch_scc1 M_POLL4_DONE
    s_mov_b32 s73, {SPIN_MAX}
M_POLL4:
    global_load_dword v{vT3}, v{vT2}, s[18:19] sc1
    s_waitcnt vmcnt(0)
    v_cmp_ne_u32 vcc, s{sNON}, v{vT3}
    s_cbranch_vccz M_POLL4_OK
    s_sleep 1
    s_sub_u32 s73, s73, 1
    s_cmp_lg_u32 s73, 0
    s_cbranch_scc1 M_POLL4
M_POLL4_OK:
    {prl}
M_POLL4_DONE:
    ST4_5
    """)
    for u in range(4):
        p(f"s_waitcnt vmcnt({6 - 2*u + u})")
        for c in range(8): p(f"v_add_f32 v{OWN+8*u+c}, v{OWN+8*u+c}, v{PR+8*u+c}")
        for c in range(8): p(f"v_fmac_f32 v{XU+8*u+c}, v{OWN+8*u+c}, v{GU_+8*u+c}")
        o = 16 + u * 4
        for j in range(4): p(f"v_cvt_pk_bf16_f32 v{o+j}, v{XU+u*8+2*j}, v{XU+u*8+2*j+1}")
        p(f"global_store_dwordx4 v{vOut}, v[{o}:{o+3}], s[78:79] offset:{u*64} sc1")
    if DBGT[0] and stamp:
        p(f"""
    s_waitcnt vmcnt(0)
    s_memrealtime s[98:99]
    s_memtime s[62:63]
    s_lshl_b32 s60, s2, 3
    s_add_u32 s60, s60, s{sW}
    s_cmp_lg_u32 s60, {37*8+4}
    s_cbranch_scc1 M_DBGE
    s_waitcnt lgkmcnt(0)
    v_mov_b32 v16, 0
    """)
        for i in range(7):
            p(f"s_sub_u32 s60, s{82+2*i}, s{80+2*i}\nv_mov_b32 v17, s60\nglobal_store_dword v16, v17, s[66:67] offset:{8+4*i}")
        p("s_sub_u32 s60, s62, s94\nv_mov_b32 v17, s60\nglobal_store_dword v16, v17, s[66:67] offset:36")
        p("s_sub_u32 s60, s98, s96\nv_mov_b32 v17, s60\nglobal_store_dword v16, v17, s[66:67] offset:40")
        p.label("M_DBGE")
    elif DBGT[0]:
        p(f"""
    s_waitcnt vmcnt(0)
    s_memrealtime s[98:99]
    s_waitcnt lgkmcnt(0)
    v_mov_b32 v16, 4
    v_mov_b32 v17, s98
    s_mov_b64 exec, 1
    global_atomic_umax v16, v17, s[66:67] sc1
    s_mov_b64 exec, -1
    """)
    if stamp:
        p("ST4_6\ns_waitcnt vmcnt(0)\nST4_7\ns_memrealtime s[98:99]")
        stamp_out(p, 0x3000000)

def stamp_out(p, base):
    p(f"""
    s_waitcnt lgkmcnt(0)
    s_lshl_b32 s{sT0}, s2, 3
    s_add_u32 s{sT0}, s{sT0}, s{sW}
    s_lshl_b32 s{sT0}, s{sT0}, 6
    s_add_u32 s{sT0}, s{sT0}, {base}
    v_mov_b32 v{vT0}, s{sT0}
    """)
    for i in range(10):
        p(f"v_mov_b32 v{vT1}, s{80+2*i}\nglobal_store_dword v{vT0}, v{vT1}, s[18:19] offset:{4*i}")

def gen_mega(ffn=True, slow=True, stamp=False, dbg=()):
    p = Prog()
    stamps = []
    mode0 = 'st0' in dbg or 'st1' in dbg
    MODE0[0] = mode0
    DBGT[0] = 'dbgt' in dbg
    NOEW[0] = 'noew' in dbg
    MODE3[0] = 'st3' in dbg
    def ST0():
        if stamp and mode0 and 'st1' not in dbg:
            i = len(stamps); stamps.append(i)
            p(f"s_memtime s[{80+2*i}:{81+2*i}]")
    global _ST0
    _ST0 = ST0
    def ST(wait=True):
        if stamp and mode0 and len(stamps) > 0:
            if wait: p("s_waitcnt lgkmcnt(0)")
            return
        if stamp:
            i = len(stamps); stamps.append(i)
            if not (MODE3[0] and i == 6): p(f"s_memtime s[{80+2*i}:{81+2*i}]")
            if i == 0: p("s_memrealtime s[96:97]")
            if wait: p("s_waitcnt lgkmcnt(0)")
    name = KNAME
    kernel_header(p, name)
    p(f"""
    s_cmp_ge_u32 s2, 256
    s_cbranch_scc1 K2_END
    s_load_dwordx2 s[74:75], s[0:1], 0
    s_load_dwordx2 s[76:77], s[0:1], 48
    s_load_dwordx4 s[8:11], s[0:1], 24
    s_load_dwordx2 s[18:19], s[0:1], 96
    s_load_dwordx4 s[4:7], s[0:1], 8
    s_load_dwordx4 s[12:15], s[0:1], 56
    s_load_dwordx2 s[16:17], s[0:1], 72
    s_load_dwordx2 s[78:79], s[0:1], 80
    s_load_dwordx2 s[66:67], s[0:1], 88
    s_getpc_b64 s[{sPC}:{sPC+1}]
    s_setprio 3
    v_lshrrev_b32 v{vT2}, 6, v0
    v_and_b32 v1, 63, v0
    v_readfirstlane_b32 s{sW}, v{vT2}
    s_and_b32 s{sT0}, s2, 7
    s_lshr_b32 s{sT1}, s2, 3
    s_lshr_b32 s{sG}, s{sT0}, 1
    s_and_b32 s{sT0}, s{sT0}, 1
    s_lshl_b32 s{sT0}, s{sT0}, 2
    s_lshr_b32 s{sT2}, s{sT1}, 3
    s_add_u32 s{sRB}, s{sT0}, s{sT2}
    s_and_b32 s{sT1}, s{sT1}, 7
    s_lshl_b32 s{sHEAD}, s{sG}, 3
    s_add_u32 s{sHEAD}, s{sHEAD}, s{sT1}
    s_lshl_b32 s{sFL}, s{sRB}, 5
    s_add_u32 s{sFL}, s{sFL}, s{sHEAD}
    """)
    ST(False)
    p(f"""
    s_bfe_u32 s{sT0}, s2, 0x30003
    s_lshl_b32 s{sT0}, s{sT0}, 3
    s_add_u32 s{sT0}, s{sT0}, s{sW}
    s_lshl_b32 s{sT0}, s{sT0}, 10
    v_and_b32 v{E+1}, 7, v1
    v_lshlrev_b32 v{E+1}, 7, v{E+1}
    v_add_u32 v{E+1}, s{sT0}, v{E+1}
    v_min_u32 v{E+1}, CODESIZE, v{E+1}
    global_load_dword v{E}, v{E+1}, s[{sPC}:{sPC+1}]
    v_lshrrev_b32 v{vT0}, 4, v1
    v_and_b32 v{vT1}, 3, v1
    v_lshlrev_b32 v{vT1}, 4, v{vT1}
    v_lshl_add_u32 v{vT1}, v{vT0}, 6, v{vT1}
    v_bfe_u32 v{vT3}, v1, 2, 2
    v_lshl_add_u32 v{vDq}, v{vT3}, 13, v{vT1}
    v_and_b32 v{vDq2}, 1, v{vT2}
    v_lshlrev_b32 v{vDq2}, 5, v{vDq2}
    v_xor_b32 v{vDq}, v{vDq}, v{vDq2}
    v_add_u32 v{vDq2}, {32768-1024}, v{vDq}
    v_lshrrev_b32 v{vXB1}, 3, v1
    v_and_b32 v{vXD}, 7, v1
    v_xor_b32 v{vXD}, v{vXD}, v{vT0}
    v_lshlrev_b32 v{vXD}, 4, v{vXD}
    v_lshl_add_u32 v{vXD}, v{vXB1}, 11, v{vXD}
    v_xor_b32 v{vXD+1}, 64, v{vXD}
    v_add_u32 v{vXD+1}, {16384-1024}, v{vXD+1}
    v_add_u32 v{vXD+2}, {32768-2048}, v{vXD}
    v_add_u32 v{vXD+3}, {32768-2048}, v{vXD+1}
    s_lshl_b32 s{sXM}, s{sW}, 12
    s_add_u32 s{sXM}, s{sXM}, {L_X}
    s_lshl_b32 s{sWq}, s{sW}, 16
    s_lshl_b32 s{sM}, s{sW}, 11
    s_mov_b32 s{sB}, 0
    s_lshl_b32 s{sT0}, s{sHEAD}, 8
    s_lshl_b32 s{sT1}, s{sRB}, 3
    s_add_u32 s{sT1}, s{sT1}, s{sW}
    s_lshl_b32 s{sT1}, s{sT1}, 16
    s_mov_b32 s{SRD_WQ+3}, 0x20000
    s_sub_u32 s{SRD_WQ+2}, 0x800000, s{sT0}
    s_mov_b32 s{SRD_XN+2}, 0x10000
    s_mov_b32 s{SRD_XN+3}, 0x20000
    v_lshlrev_b32 v{E+2}, 4, v1
    v_lshl_add_u32 v{vLXA}, v{vT2}, 11, v{E+2}
    s_lshl_b32 s{sT2}, s{sFL}, 14
    v_add_u32 v{vLXA}, s{sT2}, v{vLXA}
    s_memrealtime s[{sT2}:{sT3}]
    s_waitcnt lgkmcnt(0)
    s_add_u32 s{SRD_WQ}, s8, s{sT0}
    s_addc_u32 s{SRD_WQ+1}, s9, 0
    s_add_u32 s{SRD_XN}, s74, s{sT1}
    s_addc_u32 s{SRD_XN+1}, s75, 0
    """)
    def dma_wq(slot, e):
        if e == 0:
            return f"""s_add_u32 m0, s{sM}, {slot*16384}
    s_nop 0
    buffer_load_dwordx4 v{vDq}, s[{SRD_WQ}:{SRD_WQ+3}], s{sWq} offen lds"""
        return f"""s_add_u32 m0, s{sM}, {slot*16384}
    s_nop 0
    buffer_load_dwordx4 v{vDq2}, s[{SRD_WQ}:{SRD_WQ+3}], s{sWq} offen offset:1024 lds
    s_add_u32 s{sWq}, s{sWq}, 524288"""
    def load_b(buf, k):
        t = ""
        if k == 0: t = f"s_add_u32 m0, s{sXM}, {(buf & 1)*32768}\ns_nop 0\n"
        t += f"buffer_load_dwordx4 v{vXD+k}, s[{SRD_XN}:{SRD_XN+3}], s{sB} offen offset:{k*1024} lds"
        if k == 3: t += f"\ns_add_u32 s{sB}, s{sB}, 128"
        return t
    lq = Q("lgkmcnt", 15); vq = Q("vmcnt", 63)
    vq.issue(("CP", 0))
    def J(tag, code): p(code); vq.issue(tag)
    LXj = lambda n: (("LX", n), f"global_load_dwordx4 v[{LN_X+4*n}:{LN_X+4*n+3}], v{vLXA}, s[74:75] offset:{n*1024}")
    CSj = lambda n: (("CS", n), f"s_mov_b32 s{sT3}, {n*0x200000}\nbuffer_load_dwordx4 v[{CSR+4*n}:{CSR+4*n+3}], v{vCSA}, s[{SRD_WQ}:{SRD_WQ+3}], s{sT3} offen")
    WRj = lambda n: (("LX", 2 + n), f"global_load_dwordx4 v[{LN_W+4*n}:{LN_W+4*n+3}], v{E+2}, s[76:77] offset:{n*1024}")
    J(*LXj(0)); J(*LXj(1)); J(*WRj(0)); J(*WRj(1))
    J(("W", 0, 0), dma_wq(0, 0)); J(("W", 0, 1), dma_wq(0, 1))
    for kk in range(4): J(("X", 0, kk), load_b(0, kk))
    J(("W", 1, 0), dma_wq(1, 0)); J(("W", 1, 1), dma_wq(1, 1))
    ST0()
    p("s_setprio 0")
    p(f"s_mov_b32 s{sKEY}, s{sT2}\ns_mov_b32 s{sIDX}, s{sT0}")
    partA1, partA2, partB = ln_segments(lq, vq, p)
    for it_ in partA1 + partB:
        if callable(it_): it_()
        else: p(it_)
    p(f"s_mov_b32 s{sT2}, s{sKEY}\ns_mov_b32 s{sT0}, s{sIDX}")
    ST0()
    for kk in range(4): J(("X", 1, kk), load_b(1, kk))
    J(("W", 2, 0), dma_wq(2, 0)); J(("W", 2, 1), dma_wq(2, 1))
    p(f"""
    s_or_b32 s{sT3}, s2, s{sW}
    s_cmp_lg_u32 s{sT3}, 0
    s_cbranch_scc1 M_NONZ
    s_or_b32 s{sT2}, s{sT2}, 1
    v_mov_b32 v{E+2}, 0
    v_mov_b32 v{E+3}, s{sT2}
    s_mov_b64 exec, 1
    global_store_dword v{E+2}, v{E+3}, s[66:67] sc1
    s_mov_b64 exec, -1
M_NONZ:
    v_bfe_u32 v{E+1}, v0, 4, 3
    v_lshlrev_b32 v{E+1}, 13, v{E+1}
    v_lshrrev_b32 v{vNON}, 7, v0
    v_lshl_add_u32 v{E+1}, v{vNON}, 19, v{E+1}
    v_and_b32 v{vNON}, 15, v0
    v_lshl_add_u32 v{E+1}, v{vNON}, 4, v{E+1}
    s_lshl_b32 s{sT2}, s{sRB}, 16
    v_add_u32 v{vCSA}, s{sT2}, v{E+1}
    """)
    J(*CSj(1))
    ST0()
    p(f"""
    v_bfe_u32 v{vXB1}, v1, 1, 3
    v_xor_b32 v{vXB1}, v{vXB1}, v{vT0}
    v_lshlrev_b32 v{vXB1}, 4, v{vXB1}
    v_and_b32 v{vXB0}, 15, v1
    v_lshl_add_u32 v{vXB0}, v{vXB0}, 7, v{vXB1}
    v_add_u32 v{vXB0}, s{sXM}, v{vXB0}
    v_xor_b32 v{vXB1}, 64, v{vXB0}
    v_lshl_add_u32 v{vDv}, v{vT3}, 8, v{vT1}
    v_mul_u32_u24 v{vDf}, {8*7168}, v{vT0}
    v_and_b32 v{vT1}, 15, v1
    v_lshl_add_u32 v{vDf}, v{vT1}, 4, v{vDf}
    v_and_b32 v{vT0}, 3, v1
    v_lshrrev_b32 v{vT1}, 2, v1
    v_lshlrev_b32 v{vT1}, 4, v{vT1}
    v_lshl_add_u32 v{vDk}, v{vT0}, 8, v{vT1}
    v_lshrrev_b32 v{vT1}, 4, v1
    v_lshlrev_b32 v{vA0}, 11, v{vT1}
    v_lshl_add_u32 v{vA0}, v{vT3}, 6, v{vA0}
    v_lshl_add_u32 v{vA0}, v{vT0}, 3, v{vA0}
    v_and_b32 v{vT1}, 1, v{vT1}
    v_lshl_add_u32 v{vA0}, v{vT1}, 5, v{vA0}
    v_xor_b32 v{vA1}, 32, v{vA0}
    v_bfe_u32 v{vT0}, v1, 1, 1
    v_and_b32 v{vT2}, 1, v1
    v_lshl_add_u32 v{vT0}, v{vT2}, 1, v{vT0}
    v_lshl_add_u32 v{vT0}, v{vT1}, 2, v{vT0}
    v_lshlrev_b32 v{vT0}, 3, v{vT0}
    v_lshl_add_u32 v{vT0}, v{vT3}, 6, v{vT0}
    v_lshrrev_b32 v{vT1}, 5, v1
    v_lshl_add_u32 v{vVa}, v{vT1}, 10, v{vT0}
    v_add_u32 v{vVb}, {L_X}, v{vVa}
    v_bfe_u32 v{vT0}, v1, 2, 3
    v_mul_u32_u24 v{vT0}, 1088, v{vT0}
    v_lshl_add_u32 v{vT0}, v{vT1}, 6, v{vT0}
    v_and_b32 v{vKb}, 3, v1
    v_lshl_add_u32 v{vKb}, v{vKb}, 4, v{vT0}
    v_add_u32 v{vKh}, {L_HI}, v{vKb}
    v_add_u32 v{vKb}, {L_X}, v{vKb}
    v_bfe_u32 v{vT0}, v1, 4, 1
    v_lshlrev_b32 v{vT0}, 10, v{vT0}
    v_lshl_add_u32 v{vT0}, v{vT1}, 8, v{vT0}
    v_and_b32 v{vO}, 15, v1
    v_lshl_add_u32 v{vO}, v{vO}, 4, v{vT0}
    s_lshl_b32 s{sT0}, s{sG}, 19
    s_add_u32 s{sT0}, s{sT0}, 393216
    s_add_u32 s{SRD_K}, s4, s{sT0}
    s_addc_u32 s{SRD_K+1}, s5, 0
    s_mov_b32 s{SRD_K+2}, 0x20000
    s_mov_b32 s{SRD_K+3}, 0x20000
    s_add_u32 s{SRD_V}, s6, s{sT0}
    s_addc_u32 s{SRD_V+1}, s7, 0
    s_mov_b32 s{SRD_V+2}, 0x20000
    s_mov_b32 s{SRD_V+3}, 0x20000
    s_add_u32 s{SRD_OT}, s18, {WS_OT}
    s_addc_u32 s{SRD_OT+1}, s19, 0
    s_mov_b32 s{SRD_OT+2}, 0x1000000
    s_mov_b32 s{SRD_OT+3}, 0x20000
    s_mul_i32 s{sKw}, s{sW}, 1088
    s_lshl_b32 s{sVw}, s{sW}, 10
    s_mov_b32 s{sKsrc}, s{sVw}
    s_mov_b32 s{sVsrc}, s{sVw}
    s_mov_b32 s{sN}, 0
    s_mov_b32 s{sPL}, 0x05040100
    s_mov_b32 s{sPH}, 0x07060302
    s_lshr_b32 s{sT0}, s2, 2
    s_and_b32 s{sT1}, s2, 3
    s_cmp_ge_u32 s{sT0}, 28
    s_cselect_b32 s{SRD_F}, s14, s12
    s_cselect_b32 s{SRD_F+1}, s15, s13
    s_cselect_b32 s{sT2}, 28, 0
    s_sub_u32 s{sT2}, s{sT0}, s{sT2}
    s_lshl_b32 s{sT2}, s{sT2}, 8
    s_mul_i32 s{sT3}, s{sT1}, {256*7168}
    s_add_u32 s{sT2}, s{sT2}, s{sT3}
    s_add_u32 s{SRD_F}, s{SRD_F}, s{sT2}
    s_addc_u32 s{SRD_F+1}, s{SRD_F+1}, 0
    s_cmp_lt_u32 s2, 224
    s_cselect_b32 s{SRD_F+2}, {255*7168+256}, 0
    s_mov_b32 s{SRD_F+3}, 0x20000
    s_mul_i32 s{sFsrc}, s{sW}, {32*7168}
    s_lshl_b32 s{sOT}, s{sHEAD}, 19
    s_lshl_b32 s{sT1}, s{sRB}, 14
    s_add_u32 s{sOT}, s{sOT}, s{sT1}
    s_lshl_b32 s{sT1}, s{sW}, 11
    s_add_u32 s{sOT}, s{sOT}, s{sT1}
    """)
    ST0()
    vq.wait(p, ("W", 1, 1)); lq.wait(p, ("LW", 2))
    ST0()
    p("s_barrier")
    ST0()
    if 'st1' in dbg: p("s_memtime s[80:81]")
    ST()
    def a_read(slot, T, u, t):
        r = AF + (T & 3) * 8 + u * 4 + t * 2
        p(f"ds_read_b64_tr_b16 v[{r}:{r+1}], v{vA1 if T & 1 else vA0} offset:{slot*16384 + u*8192 + t*1024 + (T>>1)*256}")
        lq.issue(("A", T & 3, u, t))
    def job_k(t):
        return (("K", t), f"""s_add_u32 m0, s{sKw}, {Kabs(t)}
    s_nop 0
    buffer_load_dwordx4 v{vDk}, s[{SRD_K}:{SRD_K+3}], s{sKsrc} offen lds
    s_add_u32 s{sKsrc}, s{sKsrc}, 8192""")
    def job_v(t):
        return (("V", t), f"""s_add_u32 m0, s{sVw}, {Vabs(t)}
    s_nop 0
    buffer_load_dwordx4 v{vDv}, s[{SRD_V}:{SRD_V+3}], s{sVsrc} offen lds
    s_add_u32 s{sVsrc}, s{sVsrc}, 8192""")
    def job_f(i):
        return (("F", i), f"""buffer_load_dwordx4 v[{FR+4*i}:{FR+4*i+3}], v{vDf}, s[{SRD_F}:{SRD_F+3}], s{sFsrc} offen
    s_add_u32 s{sFsrc}, s{sFsrc}, 7168""")
    def run(job):
        if not job: return
        if isinstance(job, str): p(job); return
        if callable(job): job(); return
        tag, code = job
        p(code); vq.issue(tag)
    def k_read(t, j):
        if 'nok' in dbg: return
        r = KF + (j % D) * 4
        ka = Kabs(t); kb, ko = (vKh, ka - L_HI) if ka >= L_HI else (vKb, ka - L_X)
        p(f"ds_read_b128 v[{r}:{r+3}], v{kb} offset:{ko + j*128}")
        lq.issue(("K", j % D))
    def v_read(t, i):
        if 'nov' in dbg: return
        ks, dt = i >> 2, i & 3
        r = VF + (i % D) * 4
        o = Vabs(t); va = vVa
        if o >= L_X: o -= L_X; va = vVb
        p(f"ds_read_b64_tr_b16 v[{r}:{r+1}], v{va} offset:{o + ks*4096 + dt*256}")
        lq.issue(("Va", i % D))
        p(f"ds_read_b64_tr_b16 v[{r+2}:{r+3}], v{va} offset:{o + ks*4096 + 2048 + dt*256}")
        lq.issue(("V", i % D))
    LA = 3 if 'la3' in dbg else 2
    def b_read(buf, k):
        ct, u = k >> 1, k & 1
        r = BRr(buf, k)
        p(f"ds_read_b128 v[{r}:{r+3}], v{vXB1 if u else vXB0} offset:{(buf & 1)*32768 + ct*2048}")
        lq.issue(("B", buf & 1, k))
    for T in range(LA):
        for u in range(2):
            for t in range(2): a_read(0, T, u, t)
        if T < 2: b_read(0, 2 * T); b_read(0, 2 * T + 1)
    fill = []
    FILLRATE = 1
    CSSTART = 4
    for d_ in dbg:
        if d_.startswith('fr'): FILLRATE = float(d_[2:])
    fillacc = [0.0]
    barpassed = [0]
    def stage(slot, vm, last=False, xw="s_waitcnt vmcnt(8)", first=False, vm2=()):
        for T in range(8):
            a = AF + (T & 3) * 8
            Tn = T + LA; ns = slot
            if Tn >= 8: Tn -= 8; ns = (slot + 1) & 3
            rd = not (last and T + LA >= 8)
            k = 0
            for ct in range(2):
                for u in range(2):
                    d = QA + (T * 2 + ct) * 4; b = BRr(slot, ct * 2 + u)
                    if 'w1' in dbg: lq.wait(p, ("A", T & 3, 1, 1), ("B", slot & 1, 3))
                    lq.wait(p, ("A", T & 3, u, 1), ("B", slot & 1, ct * 2 + u))
                    cc = "0" if (first and u == 0) else f"v[{d}:{d+3}]"
                    p(f"v_mfma_f32_16x16x32_bf16 v[{d}:{d+3}], v[{a+4*u}:{a+4*u+3}], v[{b}:{b+3}], {cc}")
                    if rd: a_read(ns, Tn, k >> 1, k & 1)
                    fillacc[0] += FILLRATE
                    while fillacc[0] >= 1.0:
                        fillacc[0] -= 1.0
                        if fill and fill[0] == "BAR":
                            if barpassed[0] >= 1: fill.pop(0)
                        if fill and fill[0] != "BAR": run(fill.pop(0))
                    if k == 1 and T < len(vm2): run(vm2[T])
                    k += 1
            if T < len(vm): run(vm[T])
            if not last:
                if T == 6:
                    run(xw); b_read(slot + 1, 0); b_read(slot + 1, 1)
                if T == 7:
                    b_read(slot + 1, 2); b_read(slot + 1, 3)
    def std_vm(slot):
        n = (slot + 3) & 3
        return [load_b(slot, 0), load_b(slot, 1), load_b(slot, 2), load_b(slot, 3), dma_wq(n, 0), dma_wq(n, 1)]
    xwait = lambda tag: (lambda: vq.wait(p, tag))
    def tagged(i):
        sv = std_vm(i & 3)
        return [(("X", i + 2, kk), sv[kk]) for kk in range(4)] + [(("W", i + 3, 0), sv[4]), (("W", i + 3, 1), sv[5])]
    kvpf = (("KP", 0), f"""s_lshr_b32 s{sT2}, s{sFL}, 6
    s_lshl_b32 s{sT2}, s{sT2}, 19
    s_and_b32 s{sT3}, s{sFL}, 63
    s_lshl_b32 s{sT3}, s{sT3}, 11
    s_add_u32 s{sT2}, s{sT2}, s{sT3}
    s_add_u32 s{sT2}, s{sT2}, 393216
    v_lshlrev_b32 v{E+3}, 2, v0
    v_add_u32 v{E+3}, s{sT2}, v{E+3}
    global_load_dword v{E}, v{E+3}, s[4:5]""")
    kvpf2 = (("KP", 1), f"global_load_dword v{E}, v{E+3}, s[6:7]")
    nonld = (("NN", 0), f"v_mov_b32 v{E+2}, 0\nglobal_load_dword v{vNON}, v{E+2}, s[66:67] sc1")
    def nonchk():
        vq.wait(p, ("NN", 0))
        p(f"""
    v_readfirstlane_b32 s{sNON}, v{vNON}
    s_cmp_lg_u32 s{sNON}, 0
    s_cbranch_scc1 M_NSPIN_OK
    v_mov_b32 v{E+2}, 0
    """)
        get_nonce(p, "M_NSPIN", E + 2, vNON)
    seg1, seg2 = pub_segments(lq, vq, p)
    extra1 = {0: [CSj(0)], 1: [CSj(2), kvpf], 2: [CSj(3), kvpf2], 3: [nonld], 5: [nonchk]}
    state = "X"
    for i in range(12):
        ex = list(extra1.get(i, []))
        if i == 1: fill.extend(seg2)
        if i == CSSTART: assert not fill; fill.extend(partA2); state = "A"
        stage(i & 3, tagged(i) + ex, xw=xwait(("X", i + 1, 3)), first=(i == 0))
        vq.wait(p, ("W", i + 2, 1))
        if state == "A" and not fill:
            lq.wait(p, ("LW", 5)); state = "B"; fill.extend(seg1); print("colsum done at stage", i)
        elif state == "B" and not fill:
            state = "done"; print("pub done at stage", i)
        p("s_barrier")
        if 'st1' in dbg and i in (2, 4, 7, 9, 11):
            n_ = (2, 4, 7, 9, 11).index(i) + 1
            p(f"s_memtime s[{80+2*n_}:{81+2*n_}]\ns_waitcnt lgkmcnt(0)")
    assert state == "done" and not fill, (state, len(fill))
    sv = std_vm(0)
    stcode = f"""s_lshl_b32 s{sT0}, s{sRB}, 3
    s_add_u32 s{sT0}, s{sT0}, s{sW}
    s_lshl_b32 s{sT0}, s{sT0}, 8
    s_add_u32 s{sT0}, s{sT0}, {WS_ST}
    v_and_b32 v{vT0}, 15, v1
    v_lshlrev_b32 v{vT0}, 3, v{vT0}
    v_add_u32 v{vT0}, s{sT0}, v{vT0}
    global_load_dwordx2 v[250:251], v{vT0}, s[18:19] sc1
    global_load_dwordx2 v[252:253], v{vT0}, s[18:19] offset:128 sc1
    s_lshl_b32 s{sT0}, s{sHEAD}, 13
    s_lshl_b32 s{sT1}, s{sW}, 7
    s_add_u32 s{sT0}, s{sT0}, s{sT1}
    s_add_u32 s{sT0}, s{sT0}, {WS_CS}
    v_lshrrev_b32 v{vT1}, 3, v1
    v_lshlrev_b32 v{vT1}, 10, v{vT1}
    v_and_b32 v{vT2}, 7, v1
    v_lshl_add_u32 v{vT1}, v{vT2}, 4, v{vT1}
    v_add_u32 v{vT1}, s{sT0}, v{vT1}
    global_load_dwordx4 v[{E}:{E+3}], v{vT1}, s[18:19] sc1"""
    stchk = f"""v_xor_b32 v{vT0}, s{sNON}, v251
    v_xor_b32 v{vT1}, s{sNON}, v253
    v_xor_b32 v{vT2}, s{sNON}, v{E+1}
    v_xor_b32 v{vT3}, s{sNON}, v{E+3}
    v_or3_b32 v{vT0}, v{vT0}, v{vT1}, v{vT2}
    v_or_b32 v{vT0}, v{vT0}, v{vT3}
    v_cmp_ne_u32 vcc, 0, v{vT0}"""
    def stld():
        p(stcode); vq.issue(("ST", 0)); vq.issue(("ST", 1)); vq.issue(("ST", 2))
    def stuse():
        vq.wait(p, ("ST", 2))
        p(stchk)
        p(f"s_mov_b32 s73, {SPIN_MAX}\ns_cbranch_vccnz M_SSPIN")
        p.label("M_SSPIN_RET")
        for c in (E, E + 2): p(f"v_add_f32_dpp v{c}, v{c}, v{c} row_ror:8 row_mask:0xf bank_mask:0xf")
        for sw in ("v_permlane16_swap_b32", "v_permlane32_swap_b32"):
            p(f"v_mov_b32 v{E+1}, v{E}\nv_mov_b32 v{E+3}, v{E+2}")
            p(f"{sw} v{E}, v{E+1}\n{sw} v{E+2}, v{E+3}")
            p(f"v_add_f32 v{E}, v{E}, v{E+1}\nv_add_f32 v{E+2}, v{E+2}, v{E+3}")
        p(f"""
    v_mov_b32 v{E+1}, v{E+2}
    v_and_b32 v{vT0}, 7, v1
    v_lshlrev_b32 v{vT0}, 3, v{vT0}
    s_lshl_b32 s{sT0}, s{sW}, 6
    s_add_u32 s{sT0}, s{sT0}, {L_FP}
    v_add_u32 v{vT0}, s{sT0}, v{vT0}
    ds_write_b64 v{vT0}, v[{E}:{E+1}]
    v_and_b32 v251, 0xffff0000, v250
    v_and_b32 v253, 0xffff0000, v252
    v_rcp_f32 v251, v251
    v_rcp_f32 v253, v253
    v_lshlrev_b32 v250, 16, v250
    v_lshlrev_b32 v252, 16, v252
    v_mul_f32 v251, {fbits(QSCALE)}, v251
    v_mul_f32 v253, {fbits(QSCALE)}, v253
    """)
        lq.issue(("CSW", 0))
    stage(0, tagged(12) + [stld, job_k(0)], xw=xwait(("X", 13, 3)))
    vq.wait(p, ("W", 14, 1)); p("s_barrier")
    stage(1, tagged(13)[:4] + [job_k(1), job_k(2)], xw=xwait(("X", 14, 3)))
    vq.wait(p, ("W", 15, 1)); lq.wait(p, ("B", 0, 3)); p("s_barrier")
    if 'st1' in dbg: p("s_memtime s[92:93]\ns_waitcnt lgkmcnt(0)")
    stage(2, [job_k(3), job_v(0), job_v(1), None, stuse], xw=xwait(("X", 15, 3)))
    vq.wait(p, ("K", 1)); lq.wait(p, ("CSW", 0), ("B", 1, 3)); p("s_barrier")
    stage(3, [job_k(4), job_k(5), job_v(2), job_k(6)], last=True)
    if 'st1' in dbg: p("s_memtime s[94:95]\ns_waitcnt lgkmcnt(0)")
    ST()
    if stamp: lq.q = []
    CSV = 212
    p(f"""
    v_lshrrev_b32 v{vT0}, 4, v1
    v_lshlrev_b32 v{vT0}, 4, v{vT0}
    v_add_u32 v{vT0}, {L_FP}, v{vT0}
    """)
    for T in range(8):
        p(f"ds_read_b128 v[{CSV+4*T}:{CSV+4*T+3}], v{vT0} offset:{T*64}"); lq.issue(("CS", T))
    for j in range(D): k_read(0, j)
    for T in range(8):
        lq.wait(p, ("CS", T))
        for ct in range(2):
            a = QA + (T * 2 + ct) * 4
            for r in range(4): p(f"v_fma_f32 v{a+r}, -v{250+2*ct}, v{CSV+4*T+r}, v{a+r}")
            for r in range(4): p(f"v_mul_f32 v{a+r}, v{251+2*ct}, v{a+r}")
        for ct in range(2):
            a = QA + (T * 2 + ct) * 4
            for k in range(2): p(f"v_cvt_pk_bf16_f32 v{QP + 4*T + 2*ct + k}, v{a+2*k}, v{a+2*k+1}")
        if T > 0:
            for k in range(2): p(f"v_permlane16_swap_b32 v{QP + 4*(T-1) + k}, v{QP + 4*(T-1) + 2 + k}")
    for k in range(2): p(f"v_permlane16_swap_b32 v{QP + 28 + k}, v{QP + 30 + k}")
    def qk(j, sbuf, cinit):
        lq.wait(p, ("K", j % D))
        k = KF + (j % D) * 4; q = QP + 4 * j; d = S + 16 * sbuf
        c = cinit if j == 0 else f"v[{d}:{d+15}]"
        p(f"v_mfma_f32_32x32x16_bf16 v[{d}:{d+15}], v[{k}:{k+3}], v[{q}:{q+3}], {c}")
    def pv(i, pbuf, first=False):
        lq.wait(p, ("V", i % D))
        ks, dt = i >> 2, i & 3
        v = VF + (i % D) * 4; b = P + 8 * pbuf + 4 * ks; d = ACC + 16 * dt
        cc = "0" if (first and ks == 0) else f"v[{d}:{d+15}]"
        p(f"v_mfma_f32_32x32x16_bf16 v[{d}:{d+15}], v[{v}:{v+3}], v[{b}:{b+3}], {cc}")
    for j in range(8):
        qk(j, 0, "0")
        k_read(0 if j + D < 8 else 1, (j + D) % 8)
    vq.wait(p, ("K", 3), ("V", 1)); p("s_barrier")
    p(f"""
    s_cmp_lg_u32 s{sW}, 4
    s_cbranch_scc1 M_NOKEY
    s_lshl_b32 s{sT0}, s{sFL}, 3
    s_add_u32 s{sT0}, s{sT0}, {WS_KEYS}
    v_mov_b32 v{vT0}, s{sT0}
    v_mov_b32 v{FD}, s{sKEY}
    v_mov_b32 v{FD+1}, s{sNON}
    s_mov_b64 exec, 1
    global_store_dwordx2 v{vT0}, v[{FD}:{FD+1}], s[18:19] sc1
    s_mov_b64 exec, -1
M_NOKEY:
    """)
    ST()
    if stamp: lq.q = []
    s0 = S
    p(f"""
    v_max3_f32 v{vT0}, v{s0}, v{s0+1}, v{s0+2}
    v_max3_f32 v{vT1}, v{s0+3}, v{s0+4}, v{s0+5}
    v_max3_f32 v{vT0}, v{vT0}, v{s0+6}, v{s0+7}
    v_max3_f32 v{vT1}, v{vT1}, v{s0+8}, v{s0+9}
    v_max3_f32 v{vT0}, v{vT0}, v{s0+10}, v{s0+11}
    v_max3_f32 v{vT1}, v{vT1}, v{s0+12}, v{s0+13}
    v_max3_f32 v{vT0}, v{vT0}, v{s0+14}, v{s0+15}
    v_max_f32 v{vT0}, v{vT0}, v{vT1}
    v_mov_b32 v{vT1}, v{vT0}
    v_permlane32_swap_b32 v{vT0}, v{vT1}
    v_max_f32 v{vT0}, v{vT0}, v{vT1}
    """)
    for i in range(16): p(f"v_sub_f32 v{NEGM+i}, 0, v{vT0}")
    for i in range(16): p(f"v_sub_f32 v{s0+i}, v{s0+i}, v{vT0}")
    p(f"v_mov_b32 v{vT2}, {L_HI + 2*KSL + 6*1088 + 1024}\nv_mov_b32 v{vT3}, 0")
    p(f"ds_write_b32 v{vT2}, v{vT3}"); lq.issue(("Z", 0))
    p(f"ds_write_b32 v{vT2}, v{vT3} offset:1088"); lq.issue(("Z", 1))
    cold = 'nof' not in dbg
    SRD_P = 68; sPo = 72
    def pf(n):
        if not cold or 'nopf' in dbg: return None
        pre = ""
        if n == 0:
            pre = f"""s_lshl_b32 s{sT0}, s2, 15
    s_add_u32 s{SRD_P}, s10, s{sT0}
    s_addc_u32 s{SRD_P+1}, s11, 0
    s_mov_b32 s{SRD_P+2}, 0x8000
    s_mov_b32 s{SRD_P+3}, 0x20000
    s_mov_b32 s{sPo}, 0
    """
        elif n == 4:
            pre = f"""s_mul_i32 s{sT0}, s2, 28672
    s_add_u32 s{SRD_P}, s16, s{sT0}
    s_addc_u32 s{SRD_P+1}, s17, 0
    s_mov_b32 s{SRD_P+2}, 28672
    s_mov_b32 s{sPo}, 0
    """
        return (("PF", n), pre + f"""s_add_u32 m0, s{sVw}, {VADDR[5]}
    v_lshlrev_b32 v{vT3}, 4, v0
    buffer_load_dwordx4 v{vT3}, s[{SRD_P}:{SRD_P+3}], s{sPo} offen lds
    s_add_u32 s{sPo}, s{sPo}, 8192""")
    flagld = None
    keycode = f"""v_lshlrev_b32 v{vT2}, 5, v1
    v_add_u32 v{vT2}, {WS_KEYS}, v{vT2}
    global_load_dwordx4 v[{FT}:{FT+3}], v{vT2}, s[18:19] sc1
    global_load_dwordx4 v[{FT+4}:{FT+7}], v{vT2}, s[18:19] offset:16 sc1"""
    keychk = f"""v_xor_b32 v{FT+1}, s{sNON}, v{FT+1}
    v_xor_b32 v{FT+3}, s{sNON}, v{FT+3}
    v_xor_b32 v{FT+5}, s{sNON}, v{FT+5}
    v_xor_b32 v{FT+7}, s{sNON}, v{FT+7}
    v_or3_b32 v{FT+1}, v{FT+1}, v{FT+3}, v{FT+5}
    v_or_b32 v{FT+1}, v{FT+1}, v{FT+7}
    v_cmp_ne_u32 vcc, 0, v{FT+1}"""
    def keyld():
        p(keycode); vq.issue(("KY", 0)); vq.issue(("KY", 1))
    def xsel():
        vq.wait(p, ("KY", 1))
        p(keychk)
        p(f"s_mov_b32 s73, {SPIN_MAX}\ns_cbranch_vccnz M_KSPIN")
        p.label("M_KSPIN_RET")
        p(f"v_max3_u32 v{FT}, v{FT}, v{FT+2}, v{FT+4}\nv_max_u32 v{FT}, v{FT}, v{FT+6}")
        wave_max_u32(p, FT, FT + 1)
        p(f"""
    v_readfirstlane_b32 s{sKEY}, v{FT}
    s_and_b32 s{sIDX}, s{sKEY}, 0x7ff
    s_sub_u32 s{sIDX}, 2047, s{sIDX}
    s_lshr_b32 s{sT0}, s{sIDX}, 4
    s_lshl_b32 s{sT0}, s{sT0}, 15
    s_and_b32 s{sT1}, s2, 3
    s_lshl_b32 s{sT1}, s{sT1}, 13
    s_add_u32 s{sT0}, s{sT0}, s{sT1}
    s_lshl_b32 s{sT1}, s{sW}, 10
    s_add_u32 s{sT0}, s{sT0}, s{sT1}
    s_and_b32 s{sT1}, s{sIDX}, 15
    s_lshl_b32 s{sT1}, s{sT1}, 4
    s_add_u32 s{sT0}, s{sT0}, s{sT1}
    v_lshrrev_b32 v{vT2}, 4, v1
    v_lshlrev_b32 v{vT2}, 8, v{vT2}
    v_add_u32 v{vT2}, s{sT0}, v{vT2}
    global_load_dwordx4 v[{XS}:{XS+3}], v{vT2}, s[18:19] sc1""")
        vq.issue(("X", 0))
    def ffn_step(f):
        def go():
            if f == 0:
                vq.wait(p, ("X", 0), ("F", 7))
                p(f"""
    v_and_b32 v{vT2}, 15, v1
    v_lshlrev_b32 v{vT2}, 5, v{vT2}
    s_lshl_b32 s{sT0}, s{sW}, 9
    s_add_u32 s{sT0}, s{sT0}, {L_FP}
    v_add_u32 v{vT2}, s{sT0}, v{vT2}""")
            if f > 0:
                p(f"ds_write_b32 v{vT2}, v{FD} offset:{(f-1)*4}"); lq.issue(("FW", f - 1))
            if f < 8:
                j = f >> 1; sel = sPH if f & 1 else sPL
                for pp in range(4):
                    p(f"v_perm_b32 v{FT+pp}, v{FR+(2*pp+1)*4+j}, v{FR+(2*pp)*4+j}, s{sel}")
        return go
    def ffn_mfma():
        p(f"v_mfma_f32_16x16x32_bf16 v[{FD}:{FD+3}], v[{XS}:{XS+3}], v[{FT}:{FT+3}], 0")
    def ffn_final():
        p(f"""
    s_cmp_lg_u32 s{sW}, 0
    s_cbranch_scc1 K2_FSKIP
    s_cmp_ge_u32 s2, 224
    s_cbranch_scc1 K2_FSKIP
    v_lshlrev_b32 v{vT2}, 3, v1
    v_add_u32 v{vT3}, {L_FP}, v{vT2}""")
        for w in range(8): p(f"ds_read_b64 v[{FR+2*w}:{FR+2*w+1}], v{vT3} offset:{w*512}")
        p(f"""
    s_and_b32 s{sT0}, s2, 3
    s_mul_i32 s{sT0}, s{sT0}, {7168*8}
    s_lshr_b32 s{sT1}, s2, 2
    s_lshl_b32 s{sT1}, s{sT1}, 10
    s_add_u32 s{sT0}, s{sT0}, s{sT1}
    s_add_u32 s{sT0}, s{sT0}, {WS_GU}
    v_lshlrev_b32 v{vT2}, 1, v{vT2}
    v_add_u32 v{vT2}, s{sT0}, v{vT2}
    s_waitcnt lgkmcnt(0)""")
        for w in range(1, 8):
            p(f"v_add_f32 v{FR}, v{FR}, v{FR+2*w}\nv_add_f32 v{FR+1}, v{FR+1}, v{FR+2*w+1}")
        p(f"v_mov_b32 v{FR+2}, v{FR+1}\nv_mov_b32 v{FR+1}, s{sNON}\nv_mov_b32 v{FR+3}, s{sNON}")
        p(f"global_store_dwordx4 v{vT2}, v[{FR}:{FR+3}], s[18:19] sc1")
        p.label("K2_FSKIP")
    NEG = f"v[{NEGM}:{NEGM+15}]"
    sONE = 0
    p(f"s_mov_b32 s{sONE}, 0x3f803f80")
    if 'prio' in dbg: p(f"s_cmp_lt_u32 s{sW}, 4\ns_cbranch_scc1 M_NPR\ns_setprio 1\nM_NPR:")
    def iteration(t, extra=(), mid=()):
        doQK = t < 15; doPV = t > 0; prevSM = t > 0
        sb = t & 1
        for j in range(8):
            if doQK: qk(j, sb ^ 1, NEG)
            if (j > 0 or prevSM) and 'novalu' not in dbg:
                e = E + 2 * ((j - 1) & 1)
                pb = sb if j > 0 else sb ^ 1
                pr = P + 8 * pb + ((j - 1) & 7)
                if 'pk' in dbg:
                    p(f"v_pk_add_f32 v[{vL0}:{vL1}], v[{vL0}:{vL1}], v[{e}:{e+1}]\nv_cvt_pk_bf16_f32 v{pr}, v{e}, v{e+1}")
                elif 'dot' in dbg:
                    p(f"v_cvt_pk_bf16_f32 v{pr}, v{e}, v{e+1}\nv_dot2_f32_bf16 v{vL0}, v{pr}, s{sONE}, v{vL0}")
                else:
                    p(f"v_add_f32 v{vL0}, v{vL0}, v{e}\nv_add_f32 v{vL1}, v{vL1}, v{e+1}\nv_cvt_pk_bf16_f32 v{pr}, v{e}, v{e+1}")
            if j < len(mid): run(mid[j])
            if doPV: pv(j, sb ^ 1, first=(t == 1))
            e = E + 2 * (j & 1)
            if 'novalu' not in dbg: p(f"v_exp_f32 v{e}, v{S+16*sb+2*j}\nv_exp_f32 v{e+1}, v{S+16*sb+2*j+1}")
            jj = j + D
            if jj < 8:
                if doQK: k_read(t + 1, jj)
                if doPV: v_read(t - 1, jj)
            else:
                if t + 2 <= 15: k_read(t + 2, jj - 8)
                v_read(t, jj - 8)
            if j < len(extra): run(extra[j])
    F = lambda i: job_f(i) if (ffn and cold and 'nofl' not in dbg) else None
    FT0 = 10
    PL = lambda n: (("PL", n), p3_preload(n))
    sched = {
        0: [job_k(7), None, job_v(3), None, job_v(4), None, F(0)],
        1: [job_v(5), None, None, job_v(6), None, None, F(1)],
        2: [job_k(8), None, job_k(9), None, job_v(7), None, F(2)],
        3: [job_v(8), None, job_v(9), None, job_v(10), None, F(3)],
        4: [job_k(10), keyld, job_k(11), None, job_v(11), None, F(4)],
        5: [job_v(12), None, None, job_v(13), None, None, F(5)],
        6: [job_k(12), None, job_k(13), None, job_v(14), None, F(6)],
        7: [job_v(15), None, xsel, None, None, None, F(7)],
        8: [job_k(14), None, job_k(15), None, None, pf(0)],
        9: [None, None, None, None, pf(1)],
        10: [None, None, None, None, pf(2)],
        11: [None, None, None, None, pf(3)],
        12: [None, None, p3_early_setup(), p3_preload(0), PL(1), None, PL(2), None],
        13: [PL(3), None, PL(4), PL(5), None, PL(6), PL(7), p3_preload(8)],
        112: [] if 'notlb' in dbg else [
             (("TL", 0), f"v_min_u32 v{FT}, 40, v1\nv_lshlrev_b32 v{FT}, 20, v{FT}\nglobal_load_dword v{FD}, v{FT}, s[18:19]"), None,
             (("TL", 1), f"v_and_b32 v{FT+1}, 3, v1\nv_lshlrev_b32 v{FT+1}, 20, v{FT+1}\nglobal_load_dword v{FD}, v{FT+1}, s[78:79]"), None,
             (("TL", 2), f"v_and_b32 v{FT+2}, 7, v1\nv_lshlrev_b32 v{FT+2}, 20, v{FT+2}\nglobal_load_dword v{FD}, v{FT+2}, s[10:11]"), None,
             (("TL", 3), f"v_min_u32 v{FT+3}, 6, v1\nv_lshlrev_b32 v{FT+3}, 20, v{FT+3}\nglobal_load_dword v{FD}, v{FT+3}, s[16:17]")],
    }
    if 'nodma' in dbg: sched = {}
    for t in range(16):
        if t > 0 and t % 2 == 0:
            b = t // 2
            need = [("K", x) for x in range(2*b+4)] + [("V", x) for x in range(2*b+2)]
            if b == 6: need = [("K", x) for x in range(16)] + [("V", x) for x in range(16)]
            vq.wait(p, *need)
            if b == 7: vq.wait(p, ("PF", 3))
            if 2 * b == FT0 + 2: lq.wait(p, ("FW", 7))
            p("s_barrier")
            if b == 7: p("s_setprio 2")
        extra = sched.get(t, []); mid = []
        def both(x, y):
            def f():
                run(x); run(y)
            return f
        ex8 = list(extra) + [None] * 8
        if t == FT0:
            extra = [both(ex8[f], ffn_step(f)) for f in range(8)]; mid = [None] + [ffn_mfma] * 7
        if t == FT0 + 1:
            extra = [ex8[0], ffn_step(8)] + ex8[2:8]; mid = [ffn_mfma]
        if t == FT0 + 2:
            extra = [ex8[0], ffn_final] + ex8[2:8]
        if t == 14:
            ED = lambda n: None if 'noew' in dbg else (("EW", n), p3_early_dma(n))
            extra = []
        if t == 15:
            extra = []
        iteration(t, extra, mid)
    e = E + 2
    p(f"v_add_f32 v{vL0}, v{vL0}, v{e}\nv_add_f32 v{vL1}, v{vL1}, v{e+1}\nv_cvt_pk_bf16_f32 v{P+8+7}, v{e}, v{e+1}")
    p(f"""
    v_add_f32 v{vL0}, v{vL0}, v{vL1}
    v_mov_b32 v{vL1}, v{vL0}
    """)
    for i in range(8):
        pv(i, 1)
        if i + D < 8: v_read(15, i + D)
        if i == 0:
            p(f"v_permlane32_swap_b32 v{vL0}, v{vL1}\nv_add_f32 v{vL0}, v{vL0}, v{vL1}")
        if i == 1:
            p(f"""
    v_mov_b32 v{vT1}, 0x5d800000
    v_cmp_nle_f32 vcc, v{vL0}, v{vT1}
    v_rcp_f32 v{vL1}, v{vL0}
    """)
    ST()
    if slow:
        p(f"s_cbranch_vccnz K2_SLOW")
        p.label("K2_SLOW_RET")
    for dt in range(4):
        for c in range(2):
            a = ACC + 16 * dt + 8 * c
            o = S + (dt * 2 + c) * 4
            for r in range(8): p(f"v_mul_f32 v{a+r}, v{a+r}, v{vL1}")
            for r in range(4): p(f"v_cvt_pk_bf16_f32 v{o+r}, v{a+2*r}, v{a+2*r+1}")
            p(f"buffer_store_dwordx4 v[{o}:{o+3}], v{vO}, s[{SRD_OT}:{SRD_OT+3}], s{sOT} offen offset:{c*512} sc1")
        if dt < 3: p(f"s_add_u32 s{sOT}, s{sOT}, 131072")
    phase3(p, ST, stamp)
    p.label("K2_END")
    p("s_endpgm")
    p.label("M_SSPIN")
    p("s_sleep 2")
    p(stcode)
    p("s_waitcnt vmcnt(0)")
    p(stchk)
    p(f"""
    s_cbranch_vccz M_SSPIN_RET
    s_sub_u32 s73, s73, 1
    s_cmp_lg_u32 s73, 0
    s_cbranch_scc1 M_SSPIN
    s_branch M_SSPIN_RET
    """)
    p.label("M_KSPIN")
    p("s_sleep 2")
    p(keycode)
    p("s_waitcnt vmcnt(0)")
    p(keychk)
    p(f"""
    s_cbranch_vccz M_KSPIN_RET
    s_sub_u32 s73, s73, 1
    s_cmp_lg_u32 s73, 0
    s_cbranch_scc1 M_KSPIN
    s_branch M_KSPIN_RET
    """)
    if slow:
        p.label("K2_SLOW")
        p(f"""
    s_waitcnt vmcnt(0) lgkmcnt(0)
    v_and_b32 v{vT0}, 31, v1
    v_lshlrev_b32 v{vT0}, 8, v{vT0}
    v_lshrrev_b32 v{vT1}, 5, v1
    v_lshl_add_u32 v{vT0}, v{vT1}, 4, v{vT0}
    v_and_b32 v{vT2}, 19, v1
    v_bfe_u32 v{vT3}, v1, 2, 1
    v_lshl_add_u32 v{vT2}, v{vT3}, 3, v{vT2}
    v_bfe_u32 v{vT3}, v1, 3, 1
    v_lshl_add_u32 v{vT2}, v{vT3}, 2, v{vT2}
    v_lshlrev_b32 v{vT2}, 1, v{vT2}
    v_lshl_add_u32 v{vT2}, v{vT1}, 10, v{vT2}
    v_mov_b32 v{vT1}, 0xff800000
    s_mov_b32 s{sT1}, 0
    """)
        KS = KF
        def slow_qk(c0):
            for j in range(8):
                p(f"buffer_load_dwordx4 v[{KS+4*j}:{KS+4*j+3}], v{vT0}, s[{SRD_K}:{SRD_K+3}], s{sT1} offen offset:{j*32}")
            p("s_waitcnt vmcnt(0)")
            for j in range(8):
                c = c0 if j == 0 else f"v[{S}:{S+15}]"
                p(f"v_mfma_f32_32x32x16_bf16 v[{S}:{S+15}], v[{KS+4*j}:{KS+4*j+3}], v[{QP+4*j}:{QP+4*j+3}], {c}")
        p.label("K2_SLOW_L1")
        slow_qk("0")
        for i in range(0, 16, 2):
            p(f"v_max3_f32 v{vT1}, v{vT1}, v{S+i}, v{S+i+1}")
        p(f"""
    s_add_u32 s{sT1}, s{sT1}, 8192
    s_cmp_lt_u32 s{sT1}, 131072
    s_cbranch_scc1 K2_SLOW_L1
    v_mov_b32 v{vT3}, v{vT1}
    v_permlane32_swap_b32 v{vT3}, v{vT1}
    v_max_f32 v{vT1}, v{vT3}, v{vT1}
    """)
        for i in range(16): p(f"v_sub_f32 v{NEGM+i}, 0, v{vT1}")
        for i in range(64): p(f"v_mov_b32 v{ACC+i}, 0")
        p(f"v_mov_b32 v{vL0}, 0\ns_mov_b32 s{sT1}, 0")
        p.label("K2_SLOW_L2")
        slow_qk(NEG)
        for i in range(16): p(f"v_exp_f32 v{S+i}, v{S+i}")
        for i in range(16): p(f"v_add_f32 v{vL0}, v{vL0}, v{S+i}")
        for i in range(8): p(f"v_cvt_pk_bf16_f32 v{P+i}, v{S+2*i}, v{S+2*i+1}")
        for ks in range(2):
            p(f"s_add_u32 s{sT2}, s{sT1}, {ks*4096}")
            TM = S + 16
            for dt in range(4):
                r = KS + dt * 4; d = ACC + 16 * dt
                for jj in range(8):
                    key = (jj & 3) + 8 * (jj >> 2)
                    p(f"buffer_load_ushort v{TM + jj}, v{vT2}, s[{SRD_V}:{SRD_V+3}], s{sT2} offen offset:{key*256 + dt*64}")
                p("s_waitcnt vmcnt(0)")
                for jj in range(4): p(f"v_lshl_or_b32 v{r+jj}, v{TM+2*jj+1}, 16, v{TM+2*jj}")
                p(f"v_mfma_f32_32x32x16_bf16 v[{d}:{d+15}], v[{r}:{r+3}], v[{P+4*ks}:{P+4*ks+3}], v[{d}:{d+15}]")
            p("s_nop 7")
        p(f"""
    s_add_u32 s{sT1}, s{sT1}, 8192
    s_cmp_lt_u32 s{sT1}, 131072
    s_cbranch_scc1 K2_SLOW_L2
    v_mov_b32 v{vL1}, v{vL0}
    v_permlane32_swap_b32 v{vL0}, v{vL1}
    v_add_f32 v{vL0}, v{vL0}, v{vL1}
    v_rcp_f32 v{vL1}, v{vL0}
    s_nop 7
    s_branch K2_SLOW_RET
    """)
    n = p.fix_hazards(verbose='v' in dbg)
    import re as _re
    txt0 = _re.sub(r"ST3_(\d)", (lambda m: f"s_memtime s[{80+2*int(m.group(1))}:{81+2*int(m.group(1))}]") if MODE3[0] else "s_nop 0", p.text())
    txt0 = _re.sub(r"    ST4_(\d)\n", (lambda m: f"    s_memtime s[{80+2*int(m.group(1))}:{81+2*int(m.group(1))}]\n") if 'st4' in dbg else "", txt0)
    txt = txt0.replace('STAMPX1', 's_nop 0')
    return txt, descriptor(name, 256, 256, 102), f"; @launch grid=(256,1,1) block=(512,1,1) lds={L_TOTAL}"

if __name__ == "__main__":
    import sys, subprocess, re
    dbg = tuple(sys.argv[2].split(',')) if len(sys.argv) > 2 else ()
    t, d, l = gen_mega(stamp=len(sys.argv) > 1 and sys.argv[1] == "1", dbg=dbg)
    out = sys.argv[3] if len(sys.argv) > 3 else "mega.s"
    def write(cs):
        open(out, "w").write(l + '\n.amdgcn_target "amdgcn-amd-amdhsa--gfx950"\n.text\n' + t.replace("CODESIZE", str(cs)) + '.section .rodata,"a"\n' + d)
    write(0x1000)
    subprocess.run(["clang", "-x", "assembler", "-target", "amdgcn-amd-amdhsa", "-mcpu=gfx950", "-c", out, "-o", "mega.o"], check=True)
    r = subprocess.run(["llvm-objdump", "-h", "mega.o"], capture_output=True, text=True).stdout
    sz = int(re.search(r"\.text\s+([0-9a-f]+)", r).group(1), 16)
    write((sz - 256) & ~63)
    print("code size", sz)
```

```python
from gen_common import *
import math, struct

KSL = 8704; VSL = 8192
L_X = 65536
L_HI = 131072
L_FP = 159744
L_TOTAL = L_FP + 4096
L_K = L_HI
KADDR = [L_HI, L_HI + KSL, L_HI + 2 * KSL, L_X, L_X + KSL + 2 * VSL, L_X + 2 * KSL + 2 * VSL, L_X + 3 * KSL + 2 * VSL]
VADDR = [L_X + KSL, L_X + KSL + VSL, L_X + 4 * KSL + 2 * VSL] + [i * VSL for i in range(8)]
assert VADDR[2] + VSL <= L_HI and KADDR[2] + KSL <= L_FP and VADDR[1] + VSL <= L_X + 32768
def Kabs(t): return KADDR[t % 7]
def Vabs(t): return VADDR[t % 11]

vDk, vDv, vKb, vVa, vVb, vO, vL0, vL1, vDf, vKh, vT0, vT1, vT2, vT3 = 2, 3, 4, 5, 6, 7, 8, 9, 10, 11, 12, 13, 14, 15
vPF = 211
ACC = 16; QP = 80; S = 112; NEGM = 144; P = 160; KF = 176; VF = 192; E = 208
QA = 112; AF = 176
def BRr(buf, k): return 212 + (buf & 1) * 16 + k * 4
FR = 212
vA0, vA1, vDq, vDq2, vXB0, vXB1 = 244, 245, 246, 247, 248, 249
vXD = 80
FT = 244; FD = 248; XS = 252
sW = 3
sHEAD, sRB, sG = 20, 21, 22
sN, sWq, sM, sB = 23, 24, 25, 26
sKsrc, sKw, sVsrc, sVw = 27, 28, 29, 30
sPL, sPH = 31, 32
sFsrc, sIDX = 69+32, 35
SRD_WQ, SRD_XN, SRD_K, SRD_V, SRD_F, SRD_OT = 36, 40, 44, 48, 52, 56
sT0, sT1, sT2, sT3 = 60, 61, 62, 63
sOT = 64
sXM = 100
QSCALE = math.log2(math.e) / math.sqrt(128.0)
def fbits(x): return "0x%08x" % struct.unpack("<I", struct.pack("<f", x))[0]
D = 4

class Q:
    def __init__(self, cnt, mx): self.q = []; self.cnt = cnt; self.mx = mx
    def issue(self, tag): self.q.append(tag)
    def wait(self, p, *tags):
        idx = [len(self.q) - 1 - self.q[::-1].index(t) for t in tags if t in self.q]
        if not idx: return
        i = max(idx)
        n = len(self.q) - 1 - i
        assert n <= self.mx, n
        p(f"s_waitcnt {self.cnt}({n})")
        self.q = self.q[i + 1:]


KNAME = "recurrent_scan__sliding_block_cached__moe_arch_mod__prompt_kernel"
sFL, sPC, sKEY = 65, 70, 34
SPIN_MAX = 20000
MODE0 = [False]
DBGT = [False]
NOEW = [False]
MODE3 = [False]
WS_FLG = 0x500000
sNON = 33

LX = 16
def poll32(p, lab, sGrp, stage):
    p(f"""
    v_and_b32 v{vT0}, 31, v1
    v_lshlrev_b32 v{vT0}, 7, v{vT0}
    s_lshl_b32 s{sGrp}, s{sGrp}, 12
    s_add_u32 s{sGrp}, s{sGrp}, {WS_FLG + stage*32768}
    v_add_u32 v{vT0}, s{sGrp}, v{vT0}
    s_mov_b32 s73, {SPIN_MAX}
    """)
    p.label(lab)
    p(f"""
    global_load_dword v{vT1}, v{vT0}, s[18:19] sc1
    s_waitcnt vmcnt(0)
    v_cmp_ne_u32 vcc, s{sNON}, v{vT1}
    s_cbranch_vccz {lab}_OK
    s_sleep 1
    s_sub_u32 s73, s73, 1
    s_cmp_lg_u32 s73, 0
    s_cbranch_scc1 {lab}
    """)
    p.label(lab + "_OK")
def set_flag(p, stage):
    p(f"""
    s_lshl_b32 s{sT0}, s{sFL}, 7
    s_add_u32 s{sT0}, s{sT0}, {WS_FLG + stage*32768}
    v_mov_b32 v{vT0}, s{sT0}
    v_mov_b32 v{vT1}, s{sNON}
    s_mov_b64 exec, 1
    global_store_dword v{vT0}, v{vT1}, s[18:19] sc1
    s_mov_b64 exec, -1
    """)
WS_ST = 0x520000
WS_CS = 0x530000
L_SC = L_K
CSR = 92
def get_nonce(p, lab, vz, vn):
    p(f"""
    s_mov_b32 s73, {SPIN_MAX}
{lab}:
    global_load_dword v{vn}, v{vz}, s[66:67] sc1
    s_waitcnt vmcnt(0)
    v_readfirstlane_b32 s{sNON}, v{vn}
    s_cmp_lg_u32 s{sNON}, 0
    s_cbranch_scc1 {lab}_OK
    s_sub_u32 s73, s73, 1
    s_cmp_lg_u32 s73, 0
    s_cbranch_scc1 {lab}
{lab}_OK:
    """)
class Rec:
    def __init__(self): self.items = []
    def __call__(self, text):
        for line in text.split('\n'):
            if line.strip(): self.items.append(line.strip())
    def call(self, f): self.items.append(f)
LN_X = 16; LN_W = 24
vg0, vg1, vr_, vq_, vNON, vCSA, vLXA = 84, 85, 86, 87, 88, 89, 90
def ln_segments(lq, vq, P):
    X = LN_X; W = LN_W; F = 32; S_ = 48; T = 49; Q0 = 50; Q1 = 51; Dd = 52; va = 68; vw = 69; SD = 70; G = 32
    CA = 72; CT = 52
    p = Rec()
    p(f"""
    v_lshrrev_b32 v{vw}, 6, v0
    v_and_b32 v{va}, 7, v1
    v_xor_b32 v{va}, v{va}, v{vw}
    v_lshlrev_b32 v{va}, 4, v{va}
    v_lshl_add_u32 v{va}, v1, 7, v{va}
    v_add_u32 v{va}, {L_SC}, v{va}
    v_lshrrev_b32 v{vg1}, 3, v0
    v_and_b32 v{vg0}, 7, v{vg1}
    v_and_b32 v{vr_}, 7, v0
    v_xor_b32 v{vg0}, v{vg0}, v{vr_}
    v_lshlrev_b32 v{vg0}, 4, v{vg0}
    v_lshl_add_u32 v{vg0}, v{vg1}, 8, v{vg0}
    s_lshr_b32 s{sT0}, s{sFL}, 1
    s_lshl_b32 s{sT0}, s{sT0}, 15
    s_and_b32 s{sT1}, s{sFL}, 1
    s_lshl_b32 s{sT1}, s{sT1}, 7
    s_add_u32 s{sT0}, s{sT0}, s{sT1}
    v_add_u32 v{vg0}, s{sT0}, v{vg0}
    v_add_u32 v{vg1}, 0x4000, v{vg0}
    v_lshlrev_b32 v{vr_}, 4, v0
    v_add_u32 v{vr_}, {L_SC}, v{vr_}
    """)
    p.call(lambda: vq.wait(P, ("LX", 1)))
    ONE = F
    p(f"v_mov_b32 v{ONE}, 0x3f803f80")
    p(f"v_dot2_f32_bf16 v{S_}, v{X}, v{ONE}, 0\nv_dot2_f32_bf16 v{Q0}, v{X}, v{X}, 0")
    p(f"v_dot2_f32_bf16 v{T}, v{X+1}, v{ONE}, 0\nv_dot2_f32_bf16 v{Q1}, v{X+1}, v{X+1}, 0")
    for i in range(2, 8, 2):
        p(f"v_dot2_f32_bf16 v{S_}, v{X+i}, v{ONE}, v{S_}\nv_dot2_f32_bf16 v{Q0}, v{X+i}, v{X+i}, v{Q0}")
        p(f"v_dot2_f32_bf16 v{T}, v{X+i+1}, v{ONE}, v{T}\nv_dot2_f32_bf16 v{Q1}, v{X+i+1}, v{X+i+1}, v{Q1}")
    p(f"s_nop 1\nv_add_f32 v{S_}, v{S_}, v{T}\nv_add_f32 v{Q0}, v{Q0}, v{Q1}")
    ra = Rec(); wave_sum(ra, S_, T); rb_ = Rec(); wave_sum(rb_, Q0, Q1)
    for x_, y_ in zip(ra.items, rb_.items): p(x_); p(y_)
    p(f"""
    v_mul_f32 v{S_}, 0x3a800000, v{S_}
    v_mul_f32 v{Q0}, 0x3a800000, v{Q0}
    v_fma_f32 v{Q0}, -v{S_}, v{S_}, v{Q0}
    v_max_f32 v{Q0}, 0, v{Q0}
    v_cvt_pk_bf16_f32 v{T}, v{S_}, v{Q0}
    v_lshlrev_b32 v{S_}, 16, v{T}
    v_and_b32 v{Q0}, 0xffff0000, v{T}
    v_add_f32 v{Q0}, 0x3727c5ac, v{Q0}
    v_cvt_pk_bf16_f32 v{Q0}, v{Q0}, v{Q0}
    v_lshlrev_b32 v{Q0}, 16, v{Q0}
    v_sqrt_f32 v{Q0}, v{Q0}
    v_cvt_pk_bf16_f32 v{SD}, v{S_}, v{Q0}
    v_and_b32 v{Q0}, 0xffff0000, v{SD}
    v_rcp_f32 v{Q0}, v{Q0}
    """)
    def dsw(text, tag):
        def f():
            P(text); lq.issue(tag)
        p.call(f)
    p(f"""
    s_lshl_b32 s{sT0}, s{sW}, 2
    s_add_u32 s{sT0}, s{sT0}, {L_SC + 16384}
    v_mov_b32 v{vw}, s{sT0}
    """)
    partA1 = p.items
    p = Rec()
    p.call(lambda: vq.wait(P, ("CS", 3)))
    for i in range(4):
        for j in range(4):
            r = CSR + 4 * i + j
            if i == 0:
                p(f"v_lshlrev_b32 v{CA+2*j}, 16, v{r}\nv_and_b32 v{CA+2*j+1}, 0xffff0000, v{r}")
            else:
                p(f"v_lshlrev_b32 v{CT}, 16, v{r}\nv_and_b32 v{CT+1}, 0xffff0000, v{r}")
                p(f"v_add_f32 v{CA+2*j}, v{CA+2*j}, v{CT}\nv_add_f32 v{CA+2*j+1}, v{CA+2*j+1}, v{CT+1}")
    p(f"""
    v_lshlrev_b32 v{T}, 5, v0
    v_add_u32 v{T}, {L_SC}, v{T}
    """)
    dsw(f"ds_write_b128 v{T}, v[{CA}:{CA+3}]", ("LW", 4))
    dsw(f"ds_write_b128 v{T}, v[{CA+4}:{CA+7}] offset:16", ("LW", 5))
    partA = p.items
    p = Rec()
    exact = True
    for i in range(8):
        p(f"v_lshlrev_b32 v{Dd+2*i}, 16, v{X+i}\nv_and_b32 v{Dd+2*i+1}, 0xffff0000, v{X+i}")
    for i in range(16): p(f"v_sub_f32 v{Dd+i}, v{Dd+i}, v{S_}")
    for i in range(8): p(f"v_cvt_pk_bf16_f32 v{X+i}, v{Dd+2*i}, v{Dd+2*i+1}")
    for i in range(8):
        p(f"v_lshlrev_b32 v{Dd+2*i}, 16, v{X+i}\nv_and_b32 v{Dd+2*i+1}, 0xffff0000, v{X+i}")
    for i in range(16): p(f"v_mul_f32 v{Dd+i}, v{Dd+i}, v{Q0}")
    for i in range(8): p(f"v_cvt_pk_bf16_f32 v{X+i}, v{Dd+2*i}, v{Dd+2*i+1}")
    p.call(lambda: vq.wait(P, ("LX", 3)))
    p(f"v_dot2_f32_bf16 v{S_}, v{X}, v{W}, 0\nv_dot2_f32_bf16 v{Q1}, v{X+1}, v{W+1}, 0")
    for i in range(2, 8, 2):
        p(f"v_dot2_f32_bf16 v{S_}, v{X+i}, v{W+i}, v{S_}\nv_dot2_f32_bf16 v{Q1}, v{X+i+1}, v{W+i+1}, v{Q1}")
    p(f"s_nop 2\nv_add_f32 v{S_}, v{S_}, v{Q1}")
    wave_sum(p, S_, T)
    p(f"""
    v_cvt_pk_bf16_f32 v{S_}, v{S_}, v{S_}
    v_lshlrev_b32 v{S_}, 16, v{S_}
    v_ashrrev_i32 v{T}, 31, v{S_}
    v_or_b32 v{T}, 0x80000000, v{T}
    v_xor_b32 v{S_}, v{S_}, v{T}
    v_and_b32 v{S_}, 0xffff0000, v{S_}
    s_lshl_b32 s{sT1}, s{sFL}, 3
    s_add_u32 s{sT1}, s{sT1}, s{sW}
    s_sub_u32 s{sT0}, 2047, s{sT1}
    v_or_b32 v{S_}, s{sT0}, v{S_}
    v_mov_b32 v{vL0}, 0
    v_mov_b32 v{vL1}, 0
    """)
    dsw(f"ds_write_b128 v{va}, v[{X}:{X+3}]", ("LW", 0))
    dsw(f"ds_write_b128 v{va}, v[{X+4}:{X+7}] offset:8192", ("LW", 1))
    dsw(f"ds_write_b32 v{vw}, v{S_}", ("LW", 2))
    return partA1, partA, p.items
def pub_segments(lq, vq, P):
    R = CSR
    p = Rec()
    def ds(text, tag):
        def f():
            P(text); lq.issue(tag)
        p.call(f)
    def vm(text, tag):
        def f():
            P(text); vq.issue(tag)
        p.call(f)
    p(f"""
    v_lshrrev_b32 v{R+4}, 3, v1
    v_lshlrev_b32 v{R+4}, 9, v{R+4}
    v_and_b32 v{R+5}, 7, v1
    v_lshl_add_u32 v{R+4}, v{R+5}, 3, v{R+4}
    s_lshl_b32 s{sT0}, s{sW}, 6
    s_add_u32 s{sT0}, s{sT0}, {L_SC}
    v_add_u32 v{R+4}, s{sT0}, v{R+4}
    """)
    ds(f"ds_read_b64 v[{R}:{R+1}], v{R+4}", ("PR", 9))
    ds(f"ds_read_b64 v[{R+8}:{R+9}], v{R+4} offset:4096", ("PR", 8))
    p("s_nop 0\ns_nop 0\ns_nop 0\ns_nop 0")
    ds(f"ds_read_b64 v[{R+10}:{R+11}], v{R+4} offset:8192", ("PR", 7))
    ds(f"ds_read_b64 v[{R+12}:{R+13}], v{R+4} offset:12288", ("PR", 0))
    p(f"""
    s_lshl_b32 s{sT0}, s{sHEAD}, 3
    s_add_u32 s{sT0}, s{sT0}, s{sRB}
    s_lshl_b32 s{sT0}, s{sT0}, 3
    s_add_u32 s{sT0}, s{sT0}, s{sW}
    s_lshl_b32 s{sT0}, s{sT0}, 7
    s_add_u32 s{sT0}, s{sT0}, {WS_CS}
    v_lshlrev_b32 v{R+5}, 4, v{R+5}
    v_add_u32 v{R+5}, s{sT0}, v{R+5}
    s_lshl_b32 s{sT0}, s{sFL}, 3
    s_add_u32 s{sT0}, s{sT0}, s{sW}
    s_lshl_b32 s{sT0}, s{sT0}, 3
    s_add_u32 s{sT0}, s{sT0}, {WS_ST}
    v_mov_b32 v{R+6}, s{sT0}
    v_mov_b32 v71, s{sNON}
    """)
    vm(f"s_mov_b64 exec, 1\nglobal_store_dwordx2 v{R+6}, v[70:71], s[18:19] sc1\ns_mov_b64 exec, -1", ("PS", 0))
    p.call(lambda: lq.wait(P, ("PR", 0)))
    p(f"""
    v_add_f32 v{R}, v{R}, v{R+8}
    v_add_f32 v{R+1}, v{R+1}, v{R+9}
    v_add_f32 v{R+10}, v{R+10}, v{R+12}
    v_add_f32 v{R+11}, v{R+11}, v{R+13}
    v_add_f32 v{R}, v{R}, v{R+10}
    v_add_f32 v{R+2}, v{R+1}, v{R+11}
    """)
    for c in (R, R + 2): p(f"v_add_f32_dpp v{c}, v{c}, v{c} row_ror:8 row_mask:0xf bank_mask:0xf")
    for sw in ("v_permlane16_swap_b32", "v_permlane32_swap_b32"):
        p(f"v_mov_b32 v{R+1}, v{R}\nv_mov_b32 v{R+3}, v{R+2}")
        p(f"{sw} v{R}, v{R+1}\n{sw} v{R+2}, v{R+3}")
        p(f"v_add_f32 v{R}, v{R}, v{R+1}\nv_add_f32 v{R+2}, v{R+2}, v{R+3}")
    p(f"v_mov_b32 v{R+1}, s{sNON}\nv_mov_b32 v{R+3}, s{sNON}")
    vm(f"s_mov_b64 exec, 0xff\nglobal_store_dwordx4 v{R+5}, v[{R}:{R+3}], s[18:19] sc1\ns_mov_b64 exec, -1", ("PS", 1))
    seg1 = p.items
    p = Rec()
    X = 16
    ds(f"ds_read_b128 v[{X}:{X+3}], v{vr_}", ("PR", 1))
    ds(f"ds_read_b128 v[{X+4}:{X+7}], v{vr_} offset:8192", ("PR", 2))
    p(f"v_mov_b32 v{vq_}, {L_SC + 16384}")
    ds(f"ds_read_b128 v[{X+8}:{X+11}], v{vq_}", ("PR", 3))
    p("s_nop 0\ns_nop 0\ns_nop 0\ns_nop 0")
    p.call(lambda: lq.wait(P, ("PR", 1)))
    vm(f"global_store_dwordx4 v{vg0}, v[{X}:{X+3}], s[18:19] sc1", ("PS", 2))
    ds(f"ds_read_b128 v[{X+12}:{X+15}], v{vq_} offset:16", ("PR", 4))
    p.call(lambda: lq.wait(P, ("PR", 2)))
    vm(f"global_store_dwordx4 v{vg1}, v[{X+4}:{X+7}], s[18:19] sc1", ("PS", 3))
    p("s_nop 0\ns_nop 0\ns_nop 0\ns_nop 0")
    p.call(lambda: lq.wait(P, ("PR", 4)))
    p(f"""
    v_max3_u32 v{X+8}, v{X+8}, v{X+9}, v{X+10}
    v_max3_u32 v{X+12}, v{X+12}, v{X+13}, v{X+14}
    v_max3_u32 v{X+8}, v{X+8}, v{X+11}, v{X+15}
    v_max_u32 v{X+8}, v{X+8}, v{X+12}
    v_readfirstlane_b32 s{sKEY}, v{X+8}
    """)
    return seg1, p.items
def set_flag2(p):
    pass

def rbf(p, v):
    p(f"v_cvt_pk_bf16_f32 v{v}, v{v}, v{v}\nv_lshlrev_b32 v{v}, 16, v{v}")
def silu(p, d, v, t):
    p(f"""
    v_mul_f32 v{t}, 0xbfb8aa3b, v{v}
    v_exp_f32 v{t}, v{t}
    v_add_f32 v{t}, 1.0, v{t}
    v_rcp_f32 v{t}, v{t}
    v_mul_f32 v{d}, v{v}, v{t}
    """)
sRT, sCT, sIT, sA, sBo, sMb, sMb2, sKH, sKQ, sMH = 20, 21, 23, 24, 25, 26, 27, 28, 29, 30
sKG, sCG = 31, 32
SRD_A, SRD_B = 36, 40
RB1 = 16384; RB2 = 114688
WS_EX = 0x2000000; WS_FLG2 = 0x560000
EW = 244
L_H3 = 148480
CNT_A = L_HI + 2*KSL + 6*1088 + 1024
CNT_B = CNT_A + 1088
def p3_early_setup():
    return f"""s_and_b32 s{sT0}, s2, 7
    s_lshr_b32 s{sT1}, s2, 3
    s_lshr_b32 s{sRT}, s{sT0}, 1
    s_lshl_b32 s{sRT}, s{sRT}, 2
    s_and_b32 s{sT2}, s{sT1}, 3
    s_add_u32 s{sRT}, s{sRT}, s{sT2}
    s_and_b32 s{sCT}, s{sT0}, 1
    s_lshl_b32 s{sCT}, s{sCT}, 2
    s_bfe_u32 s{sT2}, s{sT1}, 0x20002
    s_add_u32 s{sCT}, s{sCT}, s{sT2}
    s_lshr_b32 s{sKH}, s{sT1}, 4
    s_and_b32 s{sKQ}, s{sW}, 3
    s_lshr_b32 s{sMH}, s{sW}, 2
    s_xor_b32 s{sMH}, s{sMH}, s{sKH}
    s_xor_b32 s{sMH}, s{sMH}, 1
    s_lshl_b32 s{sT0}, s{sKH}, 2
    s_add_u32 s{sT0}, s{sT0}, s{sKQ}
    s_lshl_b32 s{sT1}, s{sT0}, 21
    s_add_u32 s{sT1}, s{sT1}, {WS_OT}
    s_add_u32 s{SRD_A}, s18, s{sT1}
    s_addc_u32 s{SRD_A+1}, s19, 0
    s_mov_b32 s{SRD_A+2}, 0x200000
    s_mov_b32 s{SRD_A+3}, 0x20000
    s_lshl_b32 s{sT1}, s{sT0}, 20
    s_add_u32 s{SRD_B}, s10, s{sT1}
    s_addc_u32 s{SRD_B+1}, s11, 0
    s_mov_b32 s{SRD_B+2}, 0x100000
    s_mov_b32 s{SRD_B+3}, 0x20000
    s_lshl_b32 s{sA}, s{sRT}, 1
    s_add_u32 s{sA}, s{sA}, s{sMH}
    s_lshl_b32 s{sA}, s{sA}, 12
    s_lshl_b32 s{sBo}, s{sCT}, 8
    s_lshl_b32 s{sT1}, s{sMH}, 15
    s_add_u32 s{sBo}, s{sBo}, s{sT1}
    s_mul_i32 s{sMb}, s{sKQ}, 24576
    s_add_u32 s{sMb}, s{sMb}, {RB1}
    s_lshl_b32 s{sMb2}, s{sKQ}, 13
    s_add_u32 s{sMb2}, s{sMb2}, {RB2 - 3*8192}
    s_lshl_b32 s{sT1}, s{sMH}, 12
    s_add_u32 s{sT2}, s{sMb}, s{sT1}
    s_add_u32 s{sT3}, s{sMb2}, s{sT1}
    v_lshrrev_b32 v{EW+1}, 4, v1
    v_and_b32 v{EW}, 3, v1
    v_bfe_u32 v{EW+2}, v1, 2, 2
    v_lshlrev_b32 v{EW}, 4, v{EW}
    v_lshl_add_u32 v{EW}, v{EW+1}, 6, v{EW}
    v_lshl_add_u32 v{EW}, v{EW+2}, 11, v{EW}
    v_add_u32 v{EW+1}, 7168, v{EW}
    v_add_u32 v{EW+2}, {2*7168}, v{EW}
    v_add_u32 v{EW+3}, {3*7168}, v{EW}
    s_mov_b32 s{sDW}, s{sT2}
    s_mov_b32 s{sDW2}, s{sT3}"""
sDW, sDW2 = 68, 69
def wdma(slot, i, vW):
    t = ""
    if i == 0: t = f"s_add_u32 m0, s{sDW2 if slot == 3 else sDW}, {slot*8192}\ns_nop 0\n"
    t += f"buffer_load_dwordx4 v{vW+i}, s[{SRD_B}:{SRD_B+3}], s{sBo} offen offset:{i*1024} lds"
    if i == 3: t += f"\ns_add_u32 s{sBo}, s{sBo}, 65536"
    return t
def p3_early_dma(n):
    return wdma(n >> 2, n & 3, EW)
PL_A = 212; PL_B = 228; PL_G = 176; PL_OUT = 248
def gu_loads(GA):
    t = f"""s_mul_i32 s{sT0}, s{sKG}, 224
    s_mul_i32 s{sT1}, s{sKQ}, 56
    s_add_u32 s{sT0}, s{sT0}, s{sT1}
    v_min_u32 v{GA}, 55, v1
    v_add_lshl_u32 v{GA}, v{GA}, s{sT0}, 3
    v_add_u32 v{GA}, {WS_GU}, v{GA}
    """
    for q in range(8):
        t += f"global_load_dwordx2 v[{PL_G+2*q}:{PL_G+2*q+1}], v{GA}, s[18:19] sc1\n"
        if q < 7: t += f"v_add_u32 v{GA}, 28672, v{GA}\n"
    return t
def p3_preload(n):
    A = 249; B = 250
    if n == 0:
        return f"""s_and_b32 s{sKG}, s{sFL}, 15
    s_lshr_b32 s{sCG}, s{sFL}, 4
    s_cmp_lg_u32 s{sMH}, s{sKH}
    s_cbranch_scc1 M_PL_S
    s_lshl_b32 s{sT0}, s{sRT}, 1
    s_add_u32 s{sT0}, s{sT0}, s{sKH}
    s_lshl_b32 s{sT0}, s{sT0}, 2
    s_add_u32 s{sT0}, s{sT0}, s{sKQ}
    s_lshl_b32 s{sT1}, s{sT0}, 15
    s_lshl_b32 s{sT2}, s{sCT}, 8
    s_add_u32 s{sT2}, s{sT1}, s{sT2}
    v_and_b32 v{A}, 15, v1
    v_lshrrev_b32 v{B}, 4, v1
    v_lshlrev_b32 v{PL_OUT}, 11, v{A}
    v_lshl_add_u32 v{PL_OUT}, v{B}, 4, v{PL_OUT}
    v_add_u32 v{PL_OUT}, s{sT2}, v{PL_OUT}
    s_lshl_b32 s{sT2}, s{sCT}, 12
    s_add_u32 s{sT2}, s{sT1}, s{sT2}
    v_lshlrev_b32 v{A}, 4, v{A}
    v_lshl_add_u32 v{A}, v{B}, 8, v{A}
    v_add_u32 v{A}, s{sT2}, v{A}
    s_branch M_PL_E
M_PL_S:
    s_mul_i32 s{sT0}, s{sKG}, 224
    s_mul_i32 s{sT1}, s{sKQ}, 56
    s_add_u32 s{sT0}, s{sT0}, s{sT1}
    s_lshl_b32 s{sT1}, s{sT0}, 11
    s_lshl_b32 s{sT2}, s{sCG}, 7
    s_add_u32 s{sT1}, s{sT1}, s{sT2}
    v_lshrrev_b32 v{A}, 3, v1
    v_lshlrev_b32 v{A}, 11, v{A}
    v_and_b32 v{B}, 7, v1
    v_lshl_add_u32 v{A}, v{B}, 4, v{A}
    v_add_u32 v{A}, s{sT1}, v{A}
    v_mov_b32 v{PL_OUT}, 0
M_PL_E:"""
    if n == 9:
        return f"s_cmp_eq_u32 s{sMH}, s{sKH}\ns_cbranch_scc1 M_PL9\n{gu_loads(B)}M_PL9:"
    i = n - 1
    kl = (f"global_load_dwordx4 v[{PL_B+4*i}:{PL_B+4*i+3}], v{A}, s[18:19] offset:{i*1024} sc1" if i < 4 else
          f"global_load_dwordx4 v[{PL_A+4*(i-4)}:{PL_A+4*(i-4)+3}], v{PL_OUT}, s[74:75] offset:{(i-4)*64}")
    sl = (f"global_load_dwordx4 v[{PL_A+4*i}:{PL_A+4*i+3}], v{A}, s[16:17]\nv_add_u32 v{A}, 0x4000, v{A}\n" if i < 7 else "")
    return f"s_cmp_lg_u32 s{sMH}, s{sKH}\ns_cbranch_scc1 M_PLS{n}\n{kl}\ns_branch M_PLE{n}\nM_PLS{n}:\n{sl}M_PLE{n}:"
def phase3(p, ST, stamp):
    AC3 = 128; OR = 64; WF = 16; XP = 32; GP = 48
    vAo, vRd, vRd2, vOut, vFa, vFv = 2, 3, 8, 9, 10, 11; vW = 4
    ST(False)
    def oload(slot, i):
        r = OR + slot * 16 + i * 4
        t = f"buffer_load_dwordx4 v[{r}:{r+3}], v{vAo}, s[{SRD_A}:{SRD_A+3}], s{sA} offen offset:{i*1024} sc1"
        if i == 3: t += f"\ns_add_u32 s{sA}, s{sA}, 131072"
        return t
    def arrive(lab, n):
        p(f"""
    v_mov_b32 v{vT0}, {CNT_A}
    v_mov_b32 v{vT1}, 1
    s_waitcnt vmcnt({n})
    s_mov_b64 exec, 1
    ds_add_rtn_u32 v{vT2}, v{vT0}, v{vT1}
    s_mov_b64 exec, -1
    s_waitcnt lgkmcnt(0)
    v_readfirstlane_b32 s{sT0}, v{vT2}
    s_cmp_lg_u32 s{sT0}, 7
    s_cbranch_scc1 {lab}
    """)
        set_flag(p, 1)
        p.label(lab)
    NR = PL_B; GG = 144; TT = 176
    p(f"""
    ST3_0
    s_setprio 0
    v_mov_b32 v{vW}, v{EW}
    v_mov_b32 v{vW+1}, v{EW+1}
    v_mov_b32 v{vW+2}, v{EW+2}
    v_mov_b32 v{vW+3}, v{EW+3}
    v_mov_b32 v{vOut}, v{PL_OUT}
    s_waitcnt vmcnt(8)
    s_cmp_lg_u32 s{sMH}, s{sKH}
    s_cbranch_scc1 M_SEND0
    """)
    for j in range(16):
        p(f"v_lshlrev_b32 v{GG+2*j}, 16, v{NR+j}\nv_and_b32 v{GG+2*j+1}, 0xffff0000, v{NR+j}\nv_mov_b32 v{XP+j}, v{PL_A+j}")
    for c in range(32): p(f"v_mul_f32 v{TT+c}, 0xbfb8aa3b, v{GG+c}")
    for c in range(32): p(f"v_exp_f32 v{TT+c}, v{TT+c}")
    for c in range(32): p(f"v_add_f32 v{TT+c}, 1.0, v{TT+c}")
    for c in range(32): p(f"v_rcp_f32 v{TT+c}, v{TT+c}")
    for c in range(32): p(f"v_mul_f32 v{GG+c}, v{GG+c}, v{TT+c}")
    for c in range(16): p(f"v_cvt_pk_bf16_f32 v{GP+c}, v{GG+2*c}, v{GG+2*c+1}")
    arrive("M_ARR0", 0)
    p(f"s_and_b32 s{sT3}, s{sBo}, 0x7fff")
    for sl in range(3):
        for hf in range(2):
            p(f"s_add_u32 m0, s{sMb}, {sl*8192 + hf*4096}\ns_nop 0")
            for i in range(4):
                p(f"buffer_load_dwordx4 v{vW+i}, s[{SRD_B}:{SRD_B+3}], s{sT3} offen offset:{i*1024} lds")
            p(f"s_add_u32 s{sT3}, s{sT3}, 32768")
    p("ST3_6\ns_branch M_JOIN0")
    p.label("M_SEND0")
    WD = PL_A; GR = PL_G; GA = 144; AC = 152; T = 160; SW = 164
    guld = gu_loads(GA)
    p(guld)
    arrive("M_ARR3", 8)
    p(f"s_mov_b32 s73, {SPIN_MAX}\ns_mov_b32 s{sIT}, 1\ns_waitcnt vmcnt(0)")
    p.label("M_POLL2")
    for q in range(8): p(f"v_xor_b32 v{GR+2*q+1}, s{sNON}, v{GR+2*q+1}")
    p(f"""
    v_or3_b32 v{GR+1}, v{GR+1}, v{GR+3}, v{GR+5}
    v_or3_b32 v{GR+7}, v{GR+7}, v{GR+9}, v{GR+11}
    v_or3_b32 v{GR+1}, v{GR+1}, v{GR+13}, v{GR+15}
    v_or_b32 v{GR+1}, v{GR+1}, v{GR+7}
    v_cmp_ne_u32 vcc, 0, v{GR+1}
    s_cbranch_vccz M_POLL2_OK
    s_cmp_lg_u32 s{sIT}, 0
    s_cbranch_scc1 M_ARR2
    s_mov_b32 s{sIT}, 1
    """)
    arrive("M_ARR2", 0)
    p(f"""
    s_sleep 10
    {guld}
    s_waitcnt vmcnt(0)
    s_sub_u32 s73, s73, 1
    s_cmp_lg_u32 s73, 0
    s_cbranch_scc1 M_POLL2
    """)
    p.label("M_POLL2_OK")
    p(f"v_mov_b32 v{GR+1}, v{GR+2}")
    for q in range(1, 4):
        p(f"v_add_f32 v{GR}, v{GR}, v{GR+4*q}\nv_add_f32 v{GR+1}, v{GR+1}, v{GR+4*q+2}")
    rbf(p, GR); rbf(p, GR + 1)
    silu(p, GR, GR, GR + 2)
    rbf(p, GR)
    p(f"v_mul_f32 v{GR}, v{GR}, v{GR+1}")
    rbf(p, GR)
    p(f"""
    s_lshl_b32 s{sT0}, s{sKQ}, 8
    s_add_u32 s{sT0}, s{sT0}, {L_H3}
    v_lshlrev_b32 v{vT0}, 2, v1
    v_add_u32 v{vT0}, s{sT0}, v{vT0}
    ds_write_b32 v{vT0}, v{GR}
    v_lshrrev_b32 v{vT1}, 3, v1
    v_lshlrev_b32 v{vT1}, 2, v{vT1}
    v_add_u32 v{vT1}, s{sT0}, v{vT1}
    s_waitcnt lgkmcnt(0)
    """)
    for i in range(7): p(f"ds_read_b32 v{GR+i}, v{vT1} offset:{i*32}")
    p("s_waitcnt lgkmcnt(0)")
    for i in range(7):
        for j in range(4):
            w = WD + 4 * i + j
            p(f"v_lshlrev_b32 v{T}, 16, v{w}\nv_and_b32 v{T+1}, 0xffff0000, v{w}")
            if i == 0: p(f"v_mul_f32 v{AC+2*j}, v{T}, v{GR}\nv_mul_f32 v{AC+2*j+1}, v{T+1}, v{GR}")
            else: p(f"v_fmac_f32 v{AC+2*j}, v{T}, v{GR+i}\nv_fmac_f32 v{AC+2*j+1}, v{T+1}, v{GR+i}")
    for c in range(8): p(f"v_add_f32_dpp v{AC+c}, v{AC+c}, v{AC+c} row_ror:8 row_mask:0xf bank_mask:0xf")
    for sw in ("v_permlane16_swap_b32", "v_permlane32_swap_b32"):
        for c in range(8): p(f"v_mov_b32 v{SW+c}, v{AC+c}")
        for c in range(8): p(f"{sw} v{AC+c}, v{SW+c}")
        for c in range(8): p(f"v_add_f32 v{AC+c}, v{AC+c}, v{SW+c}")
    p(f"""
    v_and_b32 v{vT0}, 7, v1
    v_lshlrev_b32 v{vT0}, 5, v{vT0}
    s_add_u32 s{sT0}, s{sT0}, 1024
    v_add_u32 v{vT0}, s{sT0}, v{vT0}
    ds_write_b128 v{vT0}, v[{AC}:{AC+3}]
    ds_write_b128 v{vT0}, v[{AC+4}:{AC+7}] offset:16
    v_mov_b32 v{vT0}, {CNT_B}
    v_mov_b32 v{vT1}, 1
    s_waitcnt lgkmcnt(0)
    s_mov_b64 exec, 1
    ds_add_rtn_u32 v{vT2}, v{vT0}, v{vT1}
    s_mov_b64 exec, -1
    s_waitcnt lgkmcnt(0)
    v_readfirstlane_b32 s{sT0}, v{vT2}
    s_cmp_lg_u32 s{sT0}, 3
    s_cbranch_scc1 M_SEND_END
    v_lshlrev_b32 v{vT0}, 2, v1
    v_add_u32 v{vT1}, {L_H3 + 1024}, v{vT0}
    ds_read_b32 v{GR}, v{vT1}
    ds_read_b32 v{GR+1}, v{vT1} offset:256
    ds_read_b32 v{GR+2}, v{vT1} offset:512
    ds_read_b32 v{GR+3}, v{vT1} offset:768
    s_lshl_b32 s{sT0}, s{sKG}, 13
    s_lshl_b32 s{sT1}, s{sCG}, 9
    s_add_u32 s{sT0}, s{sT0}, s{sT1}
    s_add_u32 s{sT0}, s{sT0}, {WS_YP}
    v_lshlrev_b32 v{vT0}, 1, v{vT0}
    v_add_u32 v{vT0}, s{sT0}, v{vT0}
    s_waitcnt lgkmcnt(0)
    v_add_f32 v{GR}, v{GR}, v{GR+1}
    v_add_f32 v{GR+2}, v{GR+2}, v{GR+3}
    v_add_f32 v{GR}, v{GR}, v{GR+2}
    v_mov_b32 v{GR+1}, s{sNON}
    global_store_dwordx2 v{vT0}, v[{GR}:{GR+1}], s[18:19] sc1
    """)
    p.label("M_SEND_END")
    p(f"s_cmp_lg_u32 s{sIT}, 0\ns_cbranch_scc1 M_JOIN0")
    arrive("M_ARR1", 0)
    p("ST3_6")
    p.label("M_JOIN0")
    p(f"s_add_u32 s{sBo}, s{sBo}, {3*65536}")
    p(f"""
    ST3_1
    s_lshr_b32 s{sT0}, s{sRT}, 1
    s_lshl_b32 s{sT0}, s{sT0}, 1
    s_add_u32 s{sT0}, s{sT0}, s{sKH}
    s_lshl_b32 s{sT0}, s{sT0}, 2
    s_add_u32 s{sT0}, s{sT0}, s{sKQ}
    s_lshl_b32 s{sT0}, s{sT0}, 9
    s_add_u32 s{sT0}, s{sT0}, {WS_FLG + 32768}
    v_and_b32 v{vFa}, 3, v1
    v_lshlrev_b32 v{vFa}, 7, v{vFa}
    v_add_u32 v{vFa}, s{sT0}, v{vFa}
    global_load_dword v{vFv}, v{vFa}, s[18:19] sc1
    v_lshlrev_b32 v{vAo}, 4, v1
    s_mov_b32 s{sIT}, 0
    v_lshrrev_b32 v{vT0}, 4, v1
    v_and_b32 v{vT1}, 3, v1
    v_bfe_u32 v{vT3}, v1, 2, 2
    v_lshlrev_b32 v{vRd}, 11, v{vT0}
    v_lshl_add_u32 v{vRd}, v{vT3}, 6, v{vRd}
    v_lshl_add_u32 v{vRd}, v{vT1}, 4, v{vRd}
    v_add_u32 v{vRd2}, s{sMb2}, v{vRd}
    v_add_u32 v{vRd}, s{sMb}, v{vRd}
    """)
    for i in range(128): p(f"v_mov_b32 v{AC3+i}, 0")
    p(f"""
    s_mov_b32 s73, {SPIN_MAX}
M_POLL1:
    s_waitcnt vmcnt(0)
    v_cmp_ne_u32 vcc, s{sNON}, v{vFv}
    s_cbranch_vccz M_POLL1_OK
    s_sleep 2
    global_load_dword v{vFv}, v{vFa}, s[18:19] sc1
    s_sub_u32 s73, s73, 1
    s_cmp_lg_u32 s73, 0
    s_cbranch_scc1 M_POLL1
M_POLL1_OK:
    ST3_2
    """)
    for sl in range(3):
        for i in range(4): p(oload(sl, i))
    p("ST3_3\ns_barrier\nST3_4\ns_waitcnt vmcnt(8)\nST3_5")
    ST(False)
    lq = Q("lgkmcnt", 15)
    if stamp: p("s_waitcnt lgkmcnt(0)")
    def wread(slot, f):
        u, e = f >> 1, f & 1
        r = WF + (f & 3) * 4
        for t in range(2):
            p(f"ds_read_b64_tr_b16 v[{r+2*t}:{r+2*t+1}], v{vRd2 if slot == 3 else vRd} offset:{slot*8192 + t*1024 + u*256 + e*8}")
            lq.issue(("W", f & 3, t))
    LAW = 3
    for f in range(LAW): wread(0, f)
    st0 = list(lq.q)
    p(".p2align 6")
    p.label("M_P3")
    for st in range(4):
        n = (st + 3) & 3
        L = [wdma(n, i, vW) for i in range(4)] + [oload(n, i) for i in range(4)]
        for f in range(8):
            fn = f + LAW; ns = st
            if fn >= 8: fn -= 8; ns = (st + 1) & 3
            lq.wait(p, ("W", f & 3, 1))
            for i in range(4):
                d = AC3 + (i * 8 + f) * 4; a = WF + (f & 3) * 4; b = OR + st * 16 + i * 4
                p(f"v_mfma_f32_16x16x32_bf16 v[{d}:{d+3}], v[{a}:{a+3}], v[{b}:{b+3}], v[{d}:{d+3}]")
                if i == 0: wread(ns, fn)
                if i == 2: p(L[f])
        if st == 3: p(f"s_add_u32 s{sIT}, s{sIT}, 1\ns_cmp_lt_u32 s{sIT}, 4")
        p("s_waitcnt vmcnt(12)\ns_barrier")
    assert lq.q == st0
    p(f"""
    s_cbranch_scc1 M_P3
    s_waitcnt vmcnt(0) lgkmcnt(0)
    s_mul_i32 s{sT0}, s{sKQ}, 24576
    v_add_u32 v{vT0}, s{sT0}, v{vAo}
    v_add_u32 v{vRd2}, 0x10000, v{vAo}
    s_barrier
    """)
    ST(False)
    p("ST4_0")
    RD = 64
    OWN = 16
    OWN = 96
    def red_write(tag):
        for w in range(3): p(f"s_cmp_eq_u32 s{sKQ}, {w}\ns_cbranch_scc1 M_RW{tag}{w}")
        for w in (3, 0, 1, 2):
            if w != 3: p.label(f"M_RW{tag}{w}")
            for kk in range(1, 4):
                i = (w + kk) & 3; slot = 3 - kk
                base = (i * 3 + slot) * 8192
                for f in range(8):
                    q = i * 8 + f
                    off = base + f * 1024
                    p(f"ds_write_b128 v{vRd2 if off >= 65536 else vAo}, v[{AC3+4*q}:{AC3+4*q+3}] offset:{off & 0xffff}")
            for c in range(32): p(f"v_mov_b32 v{OWN+c}, v{AC3+w*32+c}")
            if w != 2: p(f"s_branch M_RJ{tag}")
        p.label(f"M_RJ{tag}")
    def red_read(after=None):
        for half in range(2):
            T0 = AC3 + half * 48
            for sl in range(3):
                for ff in range(4):
                    r = T0 + (sl * 4 + ff) * 4
                    p(f"ds_read_b128 v[{r}:{r+3}], v{vT0} offset:{sl*8192 + (half*4+ff)*1024}")
            if half == 0: continue
        for half in range(2):
            T0 = AC3 + half * 48
            for sl in range(3):
                n = 24 - (half * 12 + sl * 4 + 4)
                p(f"s_waitcnt lgkmcnt({min(n, 15)})")
                for c in range(16): p(f"v_add_f32 v{OWN+half*16+c}, v{OWN+half*16+c}, v{T0+sl*16+c}")
            if after: after(half)
    p(f"""
    s_cmp_eq_u32 s{sMH}, s{sKH}
    s_cbranch_scc1 M_KEEP1
    """)
    red_write("S")
    p("s_waitcnt lgkmcnt(0)\nST4_1\ns_barrier\nST4_2")
    p(f"""
    s_lshl_b32 s{sT0}, s2, 2
    s_add_u32 s{sT0}, s{sT0}, s{sKQ}
    s_lshl_b32 s{sT1}, s{sT0}, 13
    s_add_u32 s{sT1}, s{sT1}, {WS_EX}
    v_add_u32 v{vFa}, s{sT1}, v{vAo}
    v_add_u32 v{vFv}, 4096, v{vFa}
    s_lshl_b32 s{sT0}, s{sT0}, 7
    s_add_u32 s{sT0}, s{sT0}, {WS_FLG2}
    v_mov_b32 v{vT2}, s{sT0}
    v_mov_b32 v{vT3}, s{sNON}
    """)
    def sst(half):
        for f in range(4 * half, 4 * half + 4):
            p(f"global_store_dwordx4 v{vFv if f >= 4 else vFa}, v[{OWN+4*f}:{OWN+4*f+3}], s[18:19] offset:{(f&3)*1024} sc1")
    red_read(sst)
    p(f"""
    ST4_3
    s_barrier
    ST4_4
    s_waitcnt vmcnt(0)
    ST4_5
    ST4_6
    ST4_7
    s_mov_b64 exec, 1
    global_store_dword v{vT2}, v{vT3}, s[18:19] sc1
    s_mov_b64 exec, -1
    """)
    if stamp:
        p("s_memrealtime s[98:99]")
        stamp_out(p, 0x3000000)
    p("s_branch K2_END")
    p.label("M_KEEP1")
    p(f"""
    s_barrier
    s_xor_b32 s{sT0}, s2, 128
    s_lshl_b32 s{sT0}, s{sT0}, 2
    s_add_u32 s{sT0}, s{sT0}, s{sKQ}
    s_lshl_b32 s{sT1}, s{sT0}, 13
    s_add_u32 s{sT1}, s{sT1}, {WS_EX}
    v_add_u32 v{vFa}, s{sT1}, v{vAo}
    v_add_u32 v{vFv}, 4096, v{vFa}
    s_lshl_b32 s{sT0}, s{sT0}, 7
    s_add_u32 s{sT0}, s{sT0}, {WS_FLG2}
    v_mov_b32 v{vT2}, s{sT0}
    s_barrier
    """)
    p("ST4_1")
    red_write("K")
    p(f"global_load_dword v{vT3}, v{vT2}, s[18:19] sc1")
    p(f"""
    v_mov_b32 v64, {CNT_B}
    v_mov_b32 v65, 1
    s_waitcnt lgkmcnt(0)
    ST4_2
    s_mov_b64 exec, 1
    ds_add_u32 v64, v65
    s_mov_b64 exec, -1
    s_mov_b32 s73, {SPIN_MAX*16}
M_B4:
    ds_read_b32 v66, v64
    s_waitcnt lgkmcnt(0)
    v_readfirstlane_b32 s{sT0}, v66
    s_cmp_ge_u32 s{sT0}, 8
    s_cbranch_scc1 M_B4_OK
    s_sub_u32 s73, s73, 1
    s_cmp_lg_u32 s73, 0
    s_cbranch_scc1 M_B4
M_B4_OK:
    ST4_3
    """)
    PR = 224
    prl = "\n".join(f"global_load_dwordx4 v[{PR+4*f}:{PR+4*f+3}], v{vFv if f >= 4 else vFa}, s[18:19] offset:{(f&3)*1024} sc1" for f in range(8))
    p(f"""
    s_waitcnt vmcnt(0)
    v_cmp_ne_u32 vcc, s{sNON}, v{vT3}
    s_mov_b32 s{sIT}, 0
    s_cbranch_vccnz M_PRL
    s_mov_b32 s{sIT}, 1
    {prl}
M_PRL:
    """)
    red_read()
    p(f"""
    s_lshl_b32 s{sT0}, s{sRT}, 1
    s_add_u32 s{sT0}, s{sT0}, s{sKH}
    s_lshl_b32 s{sT0}, s{sT0}, 2
    s_add_u32 s{sT0}, s{sT0}, s{sKQ}
    s_lshr_b32 s{sT1}, s{sIDX}, 4
    s_cmp_lg_u32 s{sT0}, s{sT1}
    s_cbranch_scc1 M_H5
    s_mov_b32 s73, {SPIN_MAX}
M_POLL3:
    s_lshl_b32 s{sT0}, s{sCT}, 10
    s_add_u32 s{sT0}, s{sT0}, {WS_YP}
    v_add_u32 v26, s{sT0}, v{vAo}
    """)
    YR = 128
    for q in range(16):
        p(f"global_load_dwordx4 v[{YR+4*q}:{YR+4*q+3}], v26, s[18:19] sc1")
        if q < 15: p(f"v_add_u32 v26, 8192, v26")
    p(f"s_waitcnt vmcnt(0)\nv_mov_b32 v27, 0")
    for q in range(16):
        p(f"v_xor_b32 v{YR+4*q+1}, s{sNON}, v{YR+4*q+1}\nv_xor_b32 v{YR+4*q+3}, s{sNON}, v{YR+4*q+3}")
        p(f"v_or3_b32 v27, v27, v{YR+4*q+1}, v{YR+4*q+3}")
    p(f"""
    v_cmp_ne_u32 vcc, 0, v27
    s_cbranch_vccz M_POLL3_OK
    s_sleep 10
    s_sub_u32 s73, s73, 1
    s_cmp_lg_u32 s73, 0
    s_cbranch_scc1 M_POLL3
M_POLL3_OK:
    s_lshr_b32 s{sT0}, s{sIDX}, 4
    s_lshl_b32 s{sT0}, s{sT0}, 15
    s_lshl_b32 s{sT1}, s{sCT}, 12
    s_add_u32 s{sT0}, s{sT0}, s{sT1}
    s_and_b32 s{sT1}, s{sIDX}, 15
    s_lshl_b32 s{sT1}, s{sT1}, 4
    s_add_u32 s{sT0}, s{sT0}, s{sT1}
    v_lshrrev_b32 v26, 2, v1
    v_lshlrev_b32 v26, 8, v26
    v_and_b32 v27, 3, v1
    v_lshl_add_u32 v26, v27, 2, v26
    v_add_u32 v26, s{sT0}, v26
    global_load_dword v24, v26, s[18:19] sc1
    s_and_b32 s{sT0}, s{sKEY}, 0xffff0000
    s_ashr_i32 s{sT1}, s{sT0}, 31
    s_not_b32 s{sT1}, s{sT1}
    s_or_b32 s{sT1}, s{sT1}, 0x80000000
    s_xor_b32 s{sT0}, s{sT0}, s{sT1}
    s_and_b32 s{sT0}, s{sT0}, 0xffff0000
    v_mov_b32 v25, s{sT0}
    v_mul_f32 v25, 0xbfb8aa3b, v25
    v_exp_f32 v25, v25
    v_add_f32 v25, 1.0, v25
    v_rcp_f32 v25, v25
    """)
    rbf(p, 25)
    p(f"v_mov_b32 v16, v{YR}\nv_mov_b32 v17, v{YR+2}")
    for q in range(1, 16):
        p(f"v_add_f32 v16, v16, v{YR+4*q}\nv_add_f32 v17, v17, v{YR+4*q+2}")
    p("s_waitcnt vmcnt(0)\nv_lshlrev_b32 v18, 16, v24\nv_and_b32 v19, 0xffff0000, v24")
    for c in range(2):
        rbf(p, 16 + c)
        p(f"v_mul_f32 v{16+c}, v{16+c}, v25")
        rbf(p, 16 + c)
        p(f"v_add_f32 v{16+c}, v{16+c}, v{18+c}")
        rbf(p, 16 + c)
        silu(p, 16 + c, 16 + c, 20 + c)
    p(f"""
    v_cvt_pk_bf16_f32 v16, v16, v17
    v_lshlrev_b32 v26, 2, v1
    v_add_u32 v26, {L_H3 + 4096}, v26
    ds_write_b32 v26, v16
    v_lshrrev_b32 v27, 4, v1
    v_lshlrev_b32 v27, 4, v27
    v_add_u32 v27, {L_H3 + 4096}, v27
    v_and_b32 v26, 15, v1
    s_and_b32 s{sT0}, s{sIDX}, 15
    v_cmp_eq_u32 vcc, s{sT0}, v26
    s_waitcnt lgkmcnt(0)
    """)
    for u in range(4): p(f"ds_read_b128 v[{64+4*u}:{67+4*u}], v27 offset:{u*64}")
    p("s_waitcnt lgkmcnt(0)")
    for c in range(16): p(f"v_cndmask_b32 v{GP+c}, v{GP+c}, v{64+c}, vcc")
    p.label("M_H5")
    XU = 128; GU_ = 160
    for j in range(16):
        p(f"v_lshlrev_b32 v{XU+2*j}, 16, v{XP+j}\nv_and_b32 v{XU+2*j+1}, 0xffff0000, v{XP+j}")
        p(f"v_lshlrev_b32 v{GU_+2*j}, 16, v{GP+j}\nv_and_b32 v{GU_+2*j+1}, 0xffff0000, v{GP+j}")
    p(f"""
    ST4_4
    s_cmp_lg_u32 s{sIT}, 0
    s_cbranch_scc1 M_POLL4_DONE
    s_mov_b32 s73, {SPIN_MAX}
M_POLL4:
    global_load_dword v{vT3}, v{vT2}, s[18:19] sc1
    s_waitcnt vmcnt(0)
    v_cmp_ne_u32 vcc, s{sNON}, v{vT3}
    s_cbranch_vccz M_POLL4_OK
    s_sleep 1
    s_sub_u32 s73, s73, 1
    s_cmp_lg_u32 s73, 0
    s_cbranch_scc1 M_POLL4
M_POLL4_OK:
    {prl}
M_POLL4_DONE:
    ST4_5
    """)
    for u in range(4):
        p(f"s_waitcnt vmcnt({6 - 2*u + u})")
        for c in range(8): p(f"v_add_f32 v{OWN+8*u+c}, v{OWN+8*u+c}, v{PR+8*u+c}")
        for c in range(8): p(f"v_fmac_f32 v{XU+8*u+c}, v{OWN+8*u+c}, v{GU_+8*u+c}")
        o = 16 + u * 4
        for j in range(4): p(f"v_cvt_pk_bf16_f32 v{o+j}, v{XU+u*8+2*j}, v{XU+u*8+2*j+1}")
        p(f"global_store_dwordx4 v{vOut}, v[{o}:{o+3}], s[78:79] offset:{u*64} sc1")
    if DBGT[0] and stamp:
        p(f"""
    s_waitcnt vmcnt(0)
    s_memrealtime s[98:99]
    s_memtime s[62:63]
    s_lshl_b32 s60, s2, 3
    s_add_u32 s60, s60, s{sW}
    s_cmp_lg_u32 s60, {37*8+4}
    s_cbranch_scc1 M_DBGE
    s_waitcnt lgkmcnt(0)
    v_mov_b32 v16, 0
    """)
        for i in range(7):
            p(f"s_sub_u32 s60, s{82+2*i}, s{80+2*i}\nv_mov_b32 v17, s60\nglobal_store_dword v16, v17, s[66:67] offset:{8+4*i}")
        p("s_sub_u32 s60, s62, s94\nv_mov_b32 v17, s60\nglobal_store_dword v16, v17, s[66:67] offset:36")
        p("s_sub_u32 s60, s98, s96\nv_mov_b32 v17, s60\nglobal_store_dword v16, v17, s[66:67] offset:40")
        p.label("M_DBGE")
    elif DBGT[0]:
        p(f"""
    s_waitcnt vmcnt(0)
    s_memrealtime s[98:99]
    s_waitcnt lgkmcnt(0)
    v_mov_b32 v16, 4
    v_mov_b32 v17, s98
    s_mov_b64 exec, 1
    global_atomic_umax v16, v17, s[66:67] sc1
    s_mov_b64 exec, -1
    """)
    if stamp:
        p("ST4_6\ns_waitcnt vmcnt(0)\nST4_7\ns_memrealtime s[98:99]")
        stamp_out(p, 0x3000000)

def stamp_out(p, base):
    p(f"""
    s_waitcnt lgkmcnt(0)
    s_lshl_b32 s{sT0}, s2, 3
    s_add_u32 s{sT0}, s{sT0}, s{sW}
    s_lshl_b32 s{sT0}, s{sT0}, 6
    s_add_u32 s{sT0}, s{sT0}, {base}
    v_mov_b32 v{vT0}, s{sT0}
    """)
    for i in range(10):
        p(f"v_mov_b32 v{vT1}, s{80+2*i}\nglobal_store_dword v{vT0}, v{vT1}, s[18:19] offset:{4*i}")

def gen_mega(ffn=True, slow=True, stamp=False, dbg=()):
    p = Prog()
    stamps = []
    mode0 = 'st0' in dbg or 'st1' in dbg
    MODE0[0] = mode0
    DBGT[0] = 'dbgt' in dbg
    NOEW[0] = 'noew' in dbg
    MODE3[0] = 'st3' in dbg
    def ST0():
        if stamp and mode0 and 'st1' not in dbg:
            i = len(stamps); stamps.append(i)
            p(f"s_memtime s[{80+2*i}:{81+2*i}]")
    global _ST0
    _ST0 = ST0
    def ST(wait=True):
        if stamp and mode0 and len(stamps) > 0:
            if wait: p("s_waitcnt lgkmcnt(0)")
            return
        if stamp:
            i = len(stamps); stamps.append(i)
            if not (MODE3[0] and i == 6): p(f"s_memtime s[{80+2*i}:{81+2*i}]")
            if i == 0: p("s_memrealtime s[96:97]")
            if wait: p("s_waitcnt lgkmcnt(0)")
    name = KNAME
    kernel_header(p, name)
    p(f"""
    s_getpc_b64 s[{sPC}:{sPC+1}]
    s_cmp_ge_u32 s2, 256
    s_cbranch_scc1 K2_END
    s_load_dwordx2 s[74:75], s[0:1], 0
    s_load_dwordx2 s[76:77], s[0:1], 48
    s_load_dwordx4 s[8:11], s[0:1], 24
    s_load_dwordx2 s[18:19], s[0:1], 96
    s_load_dwordx4 s[4:7], s[0:1], 8
    s_load_dwordx4 s[12:15], s[0:1], 56
    s_load_dwordx2 s[16:17], s[0:1], 72
    s_load_dwordx2 s[78:79], s[0:1], 80
    s_load_dwordx2 s[66:67], s[0:1], 88
    s_setprio 3
    v_lshrrev_b32 v{vT2}, 6, v0
    v_and_b32 v1, 63, v0
    v_readfirstlane_b32 s{sW}, v{vT2}
    s_and_b32 s{sT0}, s2, 7
    s_lshr_b32 s{sT1}, s2, 3
    s_lshr_b32 s{sG}, s{sT0}, 1
    s_and_b32 s{sT0}, s{sT0}, 1
    s_lshl_b32 s{sT0}, s{sT0}, 2
    s_lshr_b32 s{sT2}, s{sT1}, 3
    s_add_u32 s{sRB}, s{sT0}, s{sT2}
    s_and_b32 s{sT1}, s{sT1}, 7
    s_lshl_b32 s{sHEAD}, s{sG}, 3
    s_add_u32 s{sHEAD}, s{sHEAD}, s{sT1}
    s_lshl_b32 s{sFL}, s{sRB}, 5
    s_add_u32 s{sFL}, s{sFL}, s{sHEAD}
    """)
    ST(False)
    p(f"""
    s_bfe_u32 s{sT0}, s2, 0x30003
    s_lshl_b32 s{sT0}, s{sT0}, 3
    s_add_u32 s{sT0}, s{sT0}, s{sW}
    s_lshl_b32 s{sT0}, s{sT0}, 10
    v_and_b32 v{E+1}, 7, v1
    v_lshlrev_b32 v{E+1}, 7, v{E+1}
    v_add_u32 v{E+1}, s{sT0}, v{E+1}
    v_min_u32 v{E+1}, CODESIZE, v{E+1}
    global_load_dword v{E}, v{E+1}, s[{sPC}:{sPC+1}]
    v_lshrrev_b32 v{vT0}, 4, v1
    v_and_b32 v{vT1}, 3, v1
    v_lshlrev_b32 v{vT1}, 4, v{vT1}
    v_lshl_add_u32 v{vT1}, v{vT0}, 6, v{vT1}
    v_bfe_u32 v{vT3}, v1, 2, 2
    v_lshl_add_u32 v{vDq}, v{vT3}, 13, v{vT1}
    v_and_b32 v{vDq2}, 1, v{vT2}
    v_lshlrev_b32 v{vDq2}, 5, v{vDq2}
    v_xor_b32 v{vDq}, v{vDq}, v{vDq2}
    v_add_u32 v{vDq2}, {32768-1024}, v{vDq}
    v_lshrrev_b32 v{vXB1}, 3, v1
    v_and_b32 v{vXD}, 7, v1
    v_xor_b32 v{vXD}, v{vXD}, v{vT0}
    v_lshlrev_b32 v{vXD}, 4, v{vXD}
    v_lshl_add_u32 v{vXD}, v{vXB1}, 11, v{vXD}
    v_xor_b32 v{vXD+1}, 64, v{vXD}
    v_add_u32 v{vXD+1}, {16384-1024}, v{vXD+1}
    v_add_u32 v{vXD+2}, {32768-2048}, v{vXD}
    v_add_u32 v{vXD+3}, {32768-2048}, v{vXD+1}
    s_lshl_b32 s{sXM}, s{sW}, 12
    s_add_u32 s{sXM}, s{sXM}, {L_X}
    s_lshl_b32 s{sWq}, s{sW}, 16
    s_lshl_b32 s{sM}, s{sW}, 11
    s_mov_b32 s{sB}, 0
    s_lshl_b32 s{sT0}, s{sHEAD}, 8
    s_lshl_b32 s{sT1}, s{sRB}, 3
    s_add_u32 s{sT1}, s{sT1}, s{sW}
    s_lshl_b32 s{sT1}, s{sT1}, 16
    s_mov_b32 s{SRD_WQ+3}, 0x20000
    s_sub_u32 s{SRD_WQ+2}, 0x800000, s{sT0}
    s_mov_b32 s{SRD_XN+2}, 0x10000
    s_mov_b32 s{SRD_XN+3}, 0x20000
    v_lshlrev_b32 v{E+2}, 4, v1
    v_lshl_add_u32 v{vLXA}, v{vT2}, 11, v{E+2}
    s_lshl_b32 s{sT2}, s{sFL}, 14
    v_add_u32 v{vLXA}, s{sT2}, v{vLXA}
    s_memrealtime s[{sT2}:{sT3}]
    s_waitcnt lgkmcnt(0)
    s_add_u32 s{SRD_WQ}, s8, s{sT0}
    s_addc_u32 s{SRD_WQ+1}, s9, 0
    s_add_u32 s{SRD_XN}, s74, s{sT1}
    s_addc_u32 s{SRD_XN+1}, s75, 0
    """)
    def dma_wq(slot, e):
        if e == 0:
            return f"""s_add_u32 m0, s{sM}, {slot*16384}
    s_nop 0
    buffer_load_dwordx4 v{vDq}, s[{SRD_WQ}:{SRD_WQ+3}], s{sWq} offen lds"""
        return f"""s_add_u32 m0, s{sM}, {slot*16384}
    s_nop 0
    buffer_load_dwordx4 v{vDq2}, s[{SRD_WQ}:{SRD_WQ+3}], s{sWq} offen offset:1024 lds
    s_add_u32 s{sWq}, s{sWq}, 524288"""
    def load_b(buf, k):
        t = ""
        if k == 0: t = f"s_add_u32 m0, s{sXM}, {(buf & 1)*32768}\ns_nop 0\n"
        t += f"buffer_load_dwordx4 v{vXD+k}, s[{SRD_XN}:{SRD_XN+3}], s{sB} offen offset:{k*1024} lds"
        if k == 3: t += f"\ns_add_u32 s{sB}, s{sB}, 128"
        return t
    lq = Q("lgkmcnt", 15); vq = Q("vmcnt", 63)
    vq.issue(("CP", 0))
    def J(tag, code): p(code); vq.issue(tag)
    LXj = lambda n: (("LX", n), f"global_load_dwordx4 v[{LN_X+4*n}:{LN_X+4*n+3}], v{vLXA}, s[74:75] offset:{n*1024}")
    CSj = lambda n: (("CS", n), f"s_mov_b32 s{sT3}, {n*0x200000}\nbuffer_load_dwordx4 v[{CSR+4*n}:{CSR+4*n+3}], v{vCSA}, s[{SRD_WQ}:{SRD_WQ+3}], s{sT3} offen")
    WRj = lambda n: (("LX", 2 + n), f"global_load_dwordx4 v[{LN_W+4*n}:{LN_W+4*n+3}], v{E+2}, s[76:77] offset:{n*1024}")
    J(*LXj(0)); J(*LXj(1)); J(*WRj(0)); J(*WRj(1))
    J(("W", 0, 0), dma_wq(0, 0)); J(("W", 0, 1), dma_wq(0, 1))
    for kk in range(4): J(("X", 0, kk), load_b(0, kk))
    J(("W", 1, 0), dma_wq(1, 0)); J(("W", 1, 1), dma_wq(1, 1))
    ST0()
    p("s_setprio 0")
    p(f"s_mov_b32 s{sKEY}, s{sT2}\ns_mov_b32 s{sIDX}, s{sT0}")
    partA1, partA2, partB = ln_segments(lq, vq, p)
    for it_ in partA1 + partB:
        if callable(it_): it_()
        else: p(it_)
    p(f"s_mov_b32 s{sT2}, s{sKEY}\ns_mov_b32 s{sT0}, s{sIDX}")
    ST0()
    for kk in range(4): J(("X", 1, kk), load_b(1, kk))
    J(("W", 2, 0), dma_wq(2, 0)); J(("W", 2, 1), dma_wq(2, 1))
    p(f"""
    s_or_b32 s{sT3}, s2, s{sW}
    s_cmp_lg_u32 s{sT3}, 0
    s_cbranch_scc1 M_NONZ
    s_or_b32 s{sT2}, s{sT2}, 1
    v_mov_b32 v{E+2}, 0
    v_mov_b32 v{E+3}, s{sT2}
    s_mov_b64 exec, 1
    global_store_dword v{E+2}, v{E+3}, s[66:67] sc1
    s_mov_b64 exec, -1
M_NONZ:
    v_bfe_u32 v{E+1}, v0, 4, 3
    v_lshlrev_b32 v{E+1}, 13, v{E+1}
    v_lshrrev_b32 v{vNON}, 7, v0
    v_lshl_add_u32 v{E+1}, v{vNON}, 19, v{E+1}
    v_and_b32 v{vNON}, 15, v0
    v_lshl_add_u32 v{E+1}, v{vNON}, 4, v{E+1}
    s_lshl_b32 s{sT2}, s{sRB}, 16
    v_add_u32 v{vCSA}, s{sT2}, v{E+1}
    """)
    J(*CSj(0 if 'cs0' in dbg else 1))
    if 'cs01' in dbg: J(*CSj(0))
    ST0()
    p(f"""
    v_bfe_u32 v{vXB1}, v1, 1, 3
    v_xor_b32 v{vXB1}, v{vXB1}, v{vT0}
    v_lshlrev_b32 v{vXB1}, 4, v{vXB1}
    v_and_b32 v{vXB0}, 15, v1
    v_lshl_add_u32 v{vXB0}, v{vXB0}, 7, v{vXB1}
    v_add_u32 v{vXB0}, s{sXM}, v{vXB0}
    v_xor_b32 v{vXB1}, 64, v{vXB0}
    v_lshl_add_u32 v{vDv}, v{vT3}, 8, v{vT1}
    v_mul_u32_u24 v{vDf}, {8*7168}, v{vT0}
    v_and_b32 v{vT1}, 15, v1
    v_lshl_add_u32 v{vDf}, v{vT1}, 4, v{vDf}
    v_and_b32 v{vT0}, 3, v1
    v_lshrrev_b32 v{vT1}, 2, v1
    v_lshlrev_b32 v{vT1}, 4, v{vT1}
    v_lshl_add_u32 v{vDk}, v{vT0}, 8, v{vT1}
    v_lshrrev_b32 v{vT1}, 4, v1
    v_lshlrev_b32 v{vA0}, 11, v{vT1}
    v_lshl_add_u32 v{vA0}, v{vT3}, 6, v{vA0}
    v_lshl_add_u32 v{vA0}, v{vT0}, 3, v{vA0}
    v_and_b32 v{vT1}, 1, v{vT1}
    v_lshl_add_u32 v{vA0}, v{vT1}, 5, v{vA0}
    v_xor_b32 v{vA1}, 32, v{vA0}
    v_bfe_u32 v{vT0}, v1, 1, 1
    v_and_b32 v{vT2}, 1, v1
    v_lshl_add_u32 v{vT0}, v{vT2}, 1, v{vT0}
    v_lshl_add_u32 v{vT0}, v{vT1}, 2, v{vT0}
    v_lshlrev_b32 v{vT0}, 3, v{vT0}
    v_lshl_add_u32 v{vT0}, v{vT3}, 6, v{vT0}
    v_lshrrev_b32 v{vT1}, 5, v1
    v_lshl_add_u32 v{vVa}, v{vT1}, 10, v{vT0}
    v_add_u32 v{vVb}, {L_X}, v{vVa}
    v_bfe_u32 v{vT0}, v1, 2, 3
    v_mul_u32_u24 v{vT0}, 1088, v{vT0}
    v_lshl_add_u32 v{vT0}, v{vT1}, 6, v{vT0}
    v_and_b32 v{vKb}, 3, v1
    v_lshl_add_u32 v{vKb}, v{vKb}, 4, v{vT0}
    v_add_u32 v{vKh}, {L_HI}, v{vKb}
    v_add_u32 v{vKb}, {L_X}, v{vKb}
    v_bfe_u32 v{vT0}, v1, 4, 1
    v_lshlrev_b32 v{vT0}, 10, v{vT0}
    v_lshl_add_u32 v{vT0}, v{vT1}, 8, v{vT0}
    v_and_b32 v{vO}, 15, v1
    v_lshl_add_u32 v{vO}, v{vO}, 4, v{vT0}
    s_lshl_b32 s{sT0}, s{sG}, 19
    s_add_u32 s{sT0}, s{sT0}, 393216
    s_add_u32 s{SRD_K}, s4, s{sT0}
    s_addc_u32 s{SRD_K+1}, s5, 0
    s_mov_b32 s{SRD_K+2}, 0x20000
    s_mov_b32 s{SRD_K+3}, 0x20000
    s_add_u32 s{SRD_V}, s6, s{sT0}
    s_addc_u32 s{SRD_V+1}, s7, 0
    s_mov_b32 s{SRD_V+2}, 0x20000
    s_mov_b32 s{SRD_V+3}, 0x20000
    s_add_u32 s{SRD_OT}, s18, {WS_OT}
    s_addc_u32 s{SRD_OT+1}, s19, 0
    s_mov_b32 s{SRD_OT+2}, 0x1000000
    s_mov_b32 s{SRD_OT+3}, 0x20000
    s_mul_i32 s{sKw}, s{sW}, 1088
    s_lshl_b32 s{sVw}, s{sW}, 10
    s_mov_b32 s{sKsrc}, s{sVw}
    s_mov_b32 s{sVsrc}, s{sVw}
    s_mov_b32 s{sN}, 0
    s_mov_b32 s{sPL}, 0x05040100
    s_mov_b32 s{sPH}, 0x07060302
    s_lshr_b32 s{sT0}, s2, 2
    s_and_b32 s{sT1}, s2, 3
    s_cmp_ge_u32 s{sT0}, 28
    s_cselect_b32 s{SRD_F}, s14, s12
    s_cselect_b32 s{SRD_F+1}, s15, s13
    s_cselect_b32 s{sT2}, 28, 0
    s_sub_u32 s{sT2}, s{sT0}, s{sT2}
    s_lshl_b32 s{sT2}, s{sT2}, 8
    s_mul_i32 s{sT3}, s{sT1}, {256*7168}
    s_add_u32 s{sT2}, s{sT2}, s{sT3}
    s_add_u32 s{SRD_F}, s{SRD_F}, s{sT2}
    s_addc_u32 s{SRD_F+1}, s{SRD_F+1}, 0
    s_cmp_lt_u32 s2, 224
    s_cselect_b32 s{SRD_F+2}, {255*7168+256}, 0
    s_mov_b32 s{SRD_F+3}, 0x20000
    s_mul_i32 s{sFsrc}, s{sW}, {32*7168}
    s_lshl_b32 s{sOT}, s{sHEAD}, 19
    s_lshl_b32 s{sT1}, s{sRB}, 14
    s_add_u32 s{sOT}, s{sOT}, s{sT1}
    s_lshl_b32 s{sT1}, s{sW}, 11
    s_add_u32 s{sOT}, s{sOT}, s{sT1}
    """)
    ST0()
    vq.wait(p, ("W", 1, 1)); lq.wait(p, ("LW", 2))
    ST0()
    p("s_barrier")
    ST0()
    if 'st1' in dbg: p("s_memtime s[80:81]")
    ST()
    def a_read(slot, T, u, t):
        r = AF + (T & 3) * 8 + u * 4 + t * 2
        p(f"ds_read_b64_tr_b16 v[{r}:{r+1}], v{vA1 if T & 1 else vA0} offset:{slot*16384 + u*8192 + t*1024 + (T>>1)*256}")
        lq.issue(("A", T & 3, u, t))
    def job_k(t):
        return (("K", t), f"""s_add_u32 m0, s{sKw}, {Kabs(t)}
    s_nop 0
    buffer_load_dwordx4 v{vDk}, s[{SRD_K}:{SRD_K+3}], s{sKsrc} offen lds
    s_add_u32 s{sKsrc}, s{sKsrc}, 8192""")
    def job_v(t):
        return (("V", t), f"""s_add_u32 m0, s{sVw}, {Vabs(t)}
    s_nop 0
    buffer_load_dwordx4 v{vDv}, s[{SRD_V}:{SRD_V+3}], s{sVsrc} offen lds
    s_add_u32 s{sVsrc}, s{sVsrc}, 8192""")
    def job_f(i):
        return (("F", i), f"""buffer_load_dwordx4 v[{FR+4*i}:{FR+4*i+3}], v{vDf}, s[{SRD_F}:{SRD_F+3}], s{sFsrc} offen
    s_add_u32 s{sFsrc}, s{sFsrc}, 7168""")
    def run(job):
        if not job: return
        if isinstance(job, str): p(job); return
        if callable(job): job(); return
        tag, code = job
        p(code); vq.issue(tag)
    def k_read(t, j):
        if 'nok' in dbg: return
        r = KF + (j % D) * 4
        ka = Kabs(t); kb, ko = (vKh, ka - L_HI) if ka >= L_HI else (vKb, ka - L_X)
        p(f"ds_read_b128 v[{r}:{r+3}], v{kb} offset:{ko + j*128}")
        lq.issue(("K", j % D))
    def v_read(t, i):
        if 'nov' in dbg: return
        ks, dt = i >> 2, i & 3
        r = VF + (i % D) * 4
        o = Vabs(t); va = vVa
        if o >= L_X: o -= L_X; va = vVb
        p(f"ds_read_b64_tr_b16 v[{r}:{r+1}], v{va} offset:{o + ks*4096 + dt*256}")
        lq.issue(("Va", i % D))
        p(f"ds_read_b64_tr_b16 v[{r+2}:{r+3}], v{va} offset:{o + ks*4096 + 2048 + dt*256}")
        lq.issue(("V", i % D))
    LA = 3 if 'la3' in dbg else 2
    def b_read(buf, k):
        ct, u = k >> 1, k & 1
        r = BRr(buf, k)
        p(f"ds_read_b128 v[{r}:{r+3}], v{vXB1 if u else vXB0} offset:{(buf & 1)*32768 + ct*2048}")
        lq.issue(("B", buf & 1, k))
    for T in range(LA):
        for u in range(2):
            for t in range(2): a_read(0, T, u, t)
        if T < 2: b_read(0, 2 * T); b_read(0, 2 * T + 1)
    fill = []
    FILLRATE = 1
    CSSTART = 4
    for d_ in dbg:
        if d_.startswith('fr'): FILLRATE = float(d_[2:])
    fillacc = [0.0]
    barpassed = [0]
    def stage(slot, vm, last=False, xw="s_waitcnt vmcnt(8)", first=False, vm2=()):
        for T in range(8):
            a = AF + (T & 3) * 8
            Tn = T + LA; ns = slot
            if Tn >= 8: Tn -= 8; ns = (slot + 1) & 3
            rd = not (last and T + LA >= 8)
            k = 0
            for ct in range(2):
                for u in range(2):
                    d = QA + (T * 2 + ct) * 4; b = BRr(slot, ct * 2 + u)
                    if 'w1' in dbg: lq.wait(p, ("A", T & 3, 1, 1), ("B", slot & 1, 3))
                    lq.wait(p, ("A", T & 3, u, 1), ("B", slot & 1, ct * 2 + u))
                    cc = "0" if (first and u == 0) else f"v[{d}:{d+3}]"
                    p(f"v_mfma_f32_16x16x32_bf16 v[{d}:{d+3}], v[{a+4*u}:{a+4*u+3}], v[{b}:{b+3}], {cc}")
                    if rd: a_read(ns, Tn, k >> 1, k & 1)
                    fillacc[0] += FILLRATE
                    while fillacc[0] >= 1.0:
                        fillacc[0] -= 1.0
                        if fill and fill[0] == "BAR":
                            if barpassed[0] >= 1: fill.pop(0)
                        if fill and fill[0] != "BAR": run(fill.pop(0))
                    if k == 1 and T < len(vm2): run(vm2[T])
                    k += 1
            if T < len(vm): run(vm[T])
            if not last:
                if T == 6:
                    run(xw); b_read(slot + 1, 0); b_read(slot + 1, 1)
                if T == 7:
                    b_read(slot + 1, 2); b_read(slot + 1, 3)
    def std_vm(slot):
        n = (slot + 3) & 3
        return [load_b(slot, 0), load_b(slot, 1), load_b(slot, 2), load_b(slot, 3), dma_wq(n, 0), dma_wq(n, 1)]
    xwait = lambda tag: (lambda: vq.wait(p, tag))
    def tagged(i):
        sv = std_vm(i & 3)
        return [(("X", i + 2, kk), sv[kk]) for kk in range(4)] + [(("W", i + 3, 0), sv[4]), (("W", i + 3, 1), sv[5])]
    kvpf = (("KP", 0), f"""s_lshr_b32 s{sT2}, s{sFL}, 6
    s_lshl_b32 s{sT2}, s{sT2}, 19
    s_and_b32 s{sT3}, s{sFL}, 63
    s_lshl_b32 s{sT3}, s{sT3}, 11
    s_add_u32 s{sT2}, s{sT2}, s{sT3}
    s_add_u32 s{sT2}, s{sT2}, 393216
    v_lshlrev_b32 v{E+3}, 2, v0
    v_add_u32 v{E+3}, s{sT2}, v{E+3}
    global_load_dword v{E}, v{E+3}, s[4:5]""")
    kvpf2 = (("KP", 1), f"global_load_dword v{E}, v{E+3}, s[6:7]")
    nonld = f"""s_cmp_lg_u32 s{sW}, 0
    s_cbranch_scc1 M_NL1
    v_mov_b32 v{E+2}, 0
    global_load_dword v{vNON}, v{E+2}, s[66:67] sc1
M_NL1:"""
    def nonchk():
        p(f"""
    s_cmp_lg_u32 s{sW}, 0
    s_cbranch_scc1 M_NL2
    v_readfirstlane_b32 s{sNON}, v{vNON}
    s_cmp_lg_u32 s{sNON}, 0
    s_cbranch_scc1 M_NSPIN_OK
    v_mov_b32 v{E+2}, 0
    """)
        get_nonce(p, "M_NSPIN", E + 2, vNON)
        p(f"""
    v_mov_b32 v{E+2}, {L_SC + 16416}
    ds_write_b32 v{E+2}, v{vNON}
    s_waitcnt lgkmcnt(0)
M_NL2:
    """)
    def nonrd():
        p(f"v_mov_b32 v{E+2}, {L_SC + 16416}\nds_read_b32 v{vNON}, v{E+2}"); lq.issue(("NR", 0))
    def nonrd2():
        lq.wait(p, ("NR", 0)); p(f"v_readfirstlane_b32 s{sNON}, v{vNON}")
    seg1, seg2 = pub_segments(lq, vq, p)
    extra1 = {0: [None if 'cs01' in dbg else CSj(1 if 'cs0' in dbg else 0)], 1: [CSj(2), nonld], 2: [CSj(3), kvpf], 3: [kvpf2], 4: [None, nonchk], 5: [nonrd, nonrd2]}
    state = "X"
    for i in range(12):
        ex = list(extra1.get(i, []))
        if i == 1: fill.extend(seg2)
        if i == CSSTART: assert not fill; fill.extend(partA2); state = "A"
        stage(i & 3, tagged(i) + ex, xw=xwait(("X", i + 1, 3)), first=(i == 0))
        vq.wait(p, ("W", i + 2, 1))
        if state == "A" and not fill:
            lq.wait(p, ("LW", 5)); state = "B"; fill.extend(seg1); print("colsum done at stage", i)
        elif state == "B" and not fill:
            state = "done"; print("pub done at stage", i)
        p("s_barrier")
        if 'st1' in dbg and i in (2, 4, 7, 9, 11):
            n_ = (2, 4, 7, 9, 11).index(i) + 1
            p(f"s_memtime s[{80+2*n_}:{81+2*n_}]\ns_waitcnt lgkmcnt(0)")
    assert state == "done" and not fill, (state, len(fill))
    sv = std_vm(0)
    stcode = f"""s_lshl_b32 s{sT0}, s{sRB}, 3
    s_add_u32 s{sT0}, s{sT0}, s{sW}
    s_lshl_b32 s{sT0}, s{sT0}, 8
    s_add_u32 s{sT0}, s{sT0}, {WS_ST}
    v_and_b32 v{vT0}, 15, v1
    v_lshlrev_b32 v{vT0}, 3, v{vT0}
    v_add_u32 v{vT0}, s{sT0}, v{vT0}
    global_load_dwordx2 v[250:251], v{vT0}, s[18:19] sc1
    global_load_dwordx2 v[252:253], v{vT0}, s[18:19] offset:128 sc1
    s_lshl_b32 s{sT0}, s{sHEAD}, 13
    s_lshl_b32 s{sT1}, s{sW}, 7
    s_add_u32 s{sT0}, s{sT0}, s{sT1}
    s_add_u32 s{sT0}, s{sT0}, {WS_CS}
    v_lshrrev_b32 v{vT1}, 3, v1
    v_lshlrev_b32 v{vT1}, 10, v{vT1}
    v_and_b32 v{vT2}, 7, v1
    v_lshl_add_u32 v{vT1}, v{vT2}, 4, v{vT1}
    v_add_u32 v{vT1}, s{sT0}, v{vT1}
    global_load_dwordx4 v[{E}:{E+3}], v{vT1}, s[18:19] sc1"""
    stchk = f"""v_xor_b32 v{vT0}, s{sNON}, v251
    v_xor_b32 v{vT1}, s{sNON}, v253
    v_xor_b32 v{vT2}, s{sNON}, v{E+1}
    v_xor_b32 v{vT3}, s{sNON}, v{E+3}
    v_or3_b32 v{vT0}, v{vT0}, v{vT1}, v{vT2}
    v_or_b32 v{vT0}, v{vT0}, v{vT3}
    v_cmp_ne_u32 vcc, 0, v{vT0}"""
    def stld():
        p(stcode); vq.issue(("ST", 0)); vq.issue(("ST", 1)); vq.issue(("ST", 2))
    def stuse():
        vq.wait(p, ("ST", 2))
        p(stchk)
        p(f"s_mov_b32 s73, {SPIN_MAX}\ns_cbranch_vccnz M_SSPIN")
        p.label("M_SSPIN_RET")
        for c in (E, E + 2): p(f"v_add_f32_dpp v{c}, v{c}, v{c} row_ror:8 row_mask:0xf bank_mask:0xf")
        for sw in ("v_permlane16_swap_b32", "v_permlane32_swap_b32"):
            p(f"v_mov_b32 v{E+1}, v{E}\nv_mov_b32 v{E+3}, v{E+2}")
            p(f"{sw} v{E}, v{E+1}\n{sw} v{E+2}, v{E+3}")
            p(f"v_add_f32 v{E}, v{E}, v{E+1}\nv_add_f32 v{E+2}, v{E+2}, v{E+3}")
        p(f"""
    v_mov_b32 v{E+1}, v{E+2}
    v_and_b32 v{vT0}, 7, v1
    v_lshlrev_b32 v{vT0}, 3, v{vT0}
    s_lshl_b32 s{sT0}, s{sW}, 6
    s_add_u32 s{sT0}, s{sT0}, {L_FP}
    v_add_u32 v{vT0}, s{sT0}, v{vT0}
    ds_write_b64 v{vT0}, v[{E}:{E+1}]
    v_and_b32 v251, 0xffff0000, v250
    v_and_b32 v253, 0xffff0000, v252
    v_rcp_f32 v251, v251
    v_rcp_f32 v253, v253
    v_lshlrev_b32 v250, 16, v250
    v_lshlrev_b32 v252, 16, v252
    v_mul_f32 v251, {fbits(QSCALE)}, v251
    v_mul_f32 v253, {fbits(QSCALE)}, v253
    """)
        lq.issue(("CSW", 0))
    stage(0, tagged(12) + [stld, job_k(0)], xw=xwait(("X", 13, 3)))
    vq.wait(p, ("W", 14, 1)); p("s_barrier")
    stage(1, tagged(13)[:4] + [job_k(1), job_k(2)], xw=xwait(("X", 14, 3)))
    vq.wait(p, ("W", 15, 1)); lq.wait(p, ("B", 0, 3)); p("s_barrier")
    if 'st1' in dbg: p("s_memtime s[92:93]\ns_waitcnt lgkmcnt(0)")
    stage(2, [job_k(3), job_v(0), job_v(1), None, stuse], xw=xwait(("X", 15, 3)))
    vq.wait(p, ("K", 1)); lq.wait(p, ("CSW", 0), ("B", 1, 3)); p("s_barrier")
    stage(3, [job_k(4), job_k(5), job_v(2), job_k(6)], last=True)
    if 'st1' in dbg: p("s_memtime s[94:95]\ns_waitcnt lgkmcnt(0)")
    ST()
    if stamp: lq.q = []
    CSV = 212
    p(f"""
    v_lshrrev_b32 v{vT0}, 4, v1
    v_lshlrev_b32 v{vT0}, 4, v{vT0}
    v_add_u32 v{vT0}, {L_FP}, v{vT0}
    """)
    for T in range(8):
        p(f"ds_read_b128 v[{CSV+4*T}:{CSV+4*T+3}], v{vT0} offset:{T*64}"); lq.issue(("CS", T))
    for j in range(D): k_read(0, j)
    for T in range(8):
        lq.wait(p, ("CS", T))
        for ct in range(2):
            a = QA + (T * 2 + ct) * 4
            for r in range(4): p(f"v_fma_f32 v{a+r}, -v{250+2*ct}, v{CSV+4*T+r}, v{a+r}")
            for r in range(4): p(f"v_mul_f32 v{a+r}, v{251+2*ct}, v{a+r}")
        for ct in range(2):
            a = QA + (T * 2 + ct) * 4
            for k in range(2): p(f"v_cvt_pk_bf16_f32 v{QP + 4*T + 2*ct + k}, v{a+2*k}, v{a+2*k+1}")
        if T > 0:
            for k in range(2): p(f"v_permlane16_swap_b32 v{QP + 4*(T-1) + k}, v{QP + 4*(T-1) + 2 + k}")
    for k in range(2): p(f"v_permlane16_swap_b32 v{QP + 28 + k}, v{QP + 30 + k}")
    def qk(j, sbuf, cinit):
        lq.wait(p, ("K", j % D))
        k = KF + (j % D) * 4; q = QP + 4 * j; d = S + 16 * sbuf
        c = cinit if j == 0 else f"v[{d}:{d+15}]"
        p(f"v_mfma_f32_32x32x16_bf16 v[{d}:{d+15}], v[{k}:{k+3}], v[{q}:{q+3}], {c}")
    def pv(i, pbuf, first=False):
        lq.wait(p, ("V", i % D))
        ks, dt = i >> 2, i & 3
        v = VF + (i % D) * 4; b = P + 8 * pbuf + 4 * ks; d = ACC + 16 * dt
        cc = "0" if (first and ks == 0) else f"v[{d}:{d+15}]"
        p(f"v_mfma_f32_32x32x16_bf16 v[{d}:{d+15}], v[{v}:{v+3}], v[{b}:{b+3}], {cc}")
    for j in range(8):
        qk(j, 0, "0")
        k_read(0 if j + D < 8 else 1, (j + D) % 8)
    vq.wait(p, ("K", 3), ("V", 1)); p("s_barrier")
    p(f"""
    s_cmp_lg_u32 s{sW}, 4
    s_cbranch_scc1 M_NOKEY
    s_lshl_b32 s{sT0}, s{sFL}, 3
    s_add_u32 s{sT0}, s{sT0}, {WS_KEYS}
    v_mov_b32 v{vT0}, s{sT0}
    v_mov_b32 v{FD}, s{sKEY}
    v_mov_b32 v{FD+1}, s{sNON}
    s_mov_b64 exec, 1
    global_store_dwordx2 v{vT0}, v[{FD}:{FD+1}], s[18:19] sc1
    s_mov_b64 exec, -1
M_NOKEY:
    """)
    ST()
    if stamp: lq.q = []
    s0 = S
    p(f"""
    v_max3_f32 v{vT0}, v{s0}, v{s0+1}, v{s0+2}
    v_max3_f32 v{vT1}, v{s0+3}, v{s0+4}, v{s0+5}
    v_max3_f32 v{vT0}, v{vT0}, v{s0+6}, v{s0+7}
    v_max3_f32 v{vT1}, v{vT1}, v{s0+8}, v{s0+9}
    v_max3_f32 v{vT0}, v{vT0}, v{s0+10}, v{s0+11}
    v_max3_f32 v{vT1}, v{vT1}, v{s0+12}, v{s0+13}
    v_max3_f32 v{vT0}, v{vT0}, v{s0+14}, v{s0+15}
    v_max_f32 v{vT0}, v{vT0}, v{vT1}
    v_mov_b32 v{vT1}, v{vT0}
    v_permlane32_swap_b32 v{vT0}, v{vT1}
    v_max_f32 v{vT0}, v{vT0}, v{vT1}
    """)
    for i in range(16): p(f"v_sub_f32 v{NEGM+i}, 0, v{vT0}")
    for i in range(16): p(f"v_sub_f32 v{s0+i}, v{s0+i}, v{vT0}")
    p(f"v_mov_b32 v{vT2}, {L_HI + 2*KSL + 6*1088 + 1024}\nv_mov_b32 v{vT3}, 0")
    p(f"ds_write_b32 v{vT2}, v{vT3}"); lq.issue(("Z", 0))
    p(f"ds_write_b32 v{vT2}, v{vT3} offset:1088"); lq.issue(("Z", 1))
    cold = 'nof' not in dbg
    SRD_P = 68; sPo = 72
    def pf(n):
        if not cold or 'nopf' in dbg: return None
        pre = ""
        if n == 0:
            pre = f"""s_lshl_b32 s{sT0}, s2, 15
    s_add_u32 s{SRD_P}, s10, s{sT0}
    s_addc_u32 s{SRD_P+1}, s11, 0
    s_mov_b32 s{SRD_P+2}, 0x8000
    s_mov_b32 s{SRD_P+3}, 0x20000
    s_mov_b32 s{sPo}, 0
    """
        elif n == 4:
            pre = f"""s_mul_i32 s{sT0}, s2, 28672
    s_add_u32 s{SRD_P}, s16, s{sT0}
    s_addc_u32 s{SRD_P+1}, s17, 0
    s_mov_b32 s{SRD_P+2}, 28672
    s_mov_b32 s{sPo}, 0
    """
        return (("PF", n), pre + f"""s_add_u32 m0, s{sVw}, {VADDR[5]}
    v_lshlrev_b32 v{vT3}, 4, v0
    buffer_load_dwordx4 v{vT3}, s[{SRD_P}:{SRD_P+3}], s{sPo} offen lds
    s_add_u32 s{sPo}, s{sPo}, 8192""")
    flagld = None
    keycode = f"""v_lshlrev_b32 v{vT2}, 5, v1
    v_add_u32 v{vT2}, {WS_KEYS}, v{vT2}
    global_load_dwordx4 v[{FT}:{FT+3}], v{vT2}, s[18:19] sc1
    global_load_dwordx4 v[{FT+4}:{FT+7}], v{vT2}, s[18:19] offset:16 sc1"""
    keychk = f"""v_xor_b32 v{FT+1}, s{sNON}, v{FT+1}
    v_xor_b32 v{FT+3}, s{sNON}, v{FT+3}
    v_xor_b32 v{FT+5}, s{sNON}, v{FT+5}
    v_xor_b32 v{FT+7}, s{sNON}, v{FT+7}
    v_or3_b32 v{FT+1}, v{FT+1}, v{FT+3}, v{FT+5}
    v_or_b32 v{FT+1}, v{FT+1}, v{FT+7}
    v_cmp_ne_u32 vcc, 0, v{FT+1}"""
    KEYL = L_HI + 2*KSL + 5*1088 + 1024
    def keyld():
        p(f"s_cmp_lg_u32 s{sW}, 0\ns_cbranch_scc1 M_KL1\n{keycode}\nM_KL1:")
        vq.issue(("KYmark", 0))
        vq.q.pop()
        keymark.append(len(vq.q)); keypos[0] = list(vq.q)
    keymark = []; keypos = [None]
    def keyred():
        n = len([t for t in vq.q if t not in keypos[0]])
        p(f"s_cmp_lg_u32 s{sW}, 0\ns_cbranch_scc1 M_KL2\ns_waitcnt vmcnt({n})")
        p(keychk)
        p(f"s_mov_b32 s73, {SPIN_MAX}\ns_cbranch_vccnz M_KSPIN")
        p.label("M_KSPIN_RET")
        p(f"v_max3_u32 v{FT}, v{FT}, v{FT+2}, v{FT+4}\nv_max_u32 v{FT}, v{FT}, v{FT+6}")
        wave_max_u32(p, FT, FT + 1)
        p(f"v_mov_b32 v{FT+1}, {KEYL}\nds_write_b32 v{FT+1}, v{FT}\ns_waitcnt lgkmcnt(0)\nM_KL2:")
    def keyrd():
        p(f"v_mov_b32 v{FT+1}, {KEYL}\nds_read_b32 v{FT}, v{FT+1}"); lq.issue(("KR", 0))
    def xsel():
        lq.wait(p, ("KR", 0))
        p(f"""
    v_readfirstlane_b32 s{sKEY}, v{FT}
    s_and_b32 s{sIDX}, s{sKEY}, 0x7ff
    s_sub_u32 s{sIDX}, 2047, s{sIDX}
    s_lshr_b32 s{sT0}, s{sIDX}, 4
    s_lshl_b32 s{sT0}, s{sT0}, 15
    s_and_b32 s{sT1}, s2, 3
    s_lshl_b32 s{sT1}, s{sT1}, 13
    s_add_u32 s{sT0}, s{sT0}, s{sT1}
    s_lshl_b32 s{sT1}, s{sW}, 10
    s_add_u32 s{sT0}, s{sT0}, s{sT1}
    s_and_b32 s{sT1}, s{sIDX}, 15
    s_lshl_b32 s{sT1}, s{sT1}, 4
    s_add_u32 s{sT0}, s{sT0}, s{sT1}
    v_lshrrev_b32 v{vT2}, 4, v1
    v_lshlrev_b32 v{vT2}, 8, v{vT2}
    v_add_u32 v{vT2}, s{sT0}, v{vT2}
    global_load_dwordx4 v[{XS}:{XS+3}], v{vT2}, s[18:19] sc1""")
        vq.issue(("X", 0))
    def ffn_step(f):
        def go():
            if f == 0:
                vq.wait(p, ("X", 0), ("F", 7))
                p(f"""
    v_and_b32 v{vT2}, 15, v1
    v_lshlrev_b32 v{vT2}, 5, v{vT2}
    s_lshl_b32 s{sT0}, s{sW}, 9
    s_add_u32 s{sT0}, s{sT0}, {L_FP}
    v_add_u32 v{vT2}, s{sT0}, v{vT2}""")
            if f > 0:
                p(f"ds_write_b32 v{vT2}, v{FD} offset:{(f-1)*4}"); lq.issue(("FW", f - 1))
            if f < 8:
                j = f >> 1; sel = sPH if f & 1 else sPL
                for pp in range(4):
                    p(f"v_perm_b32 v{FT+pp}, v{FR+(2*pp+1)*4+j}, v{FR+(2*pp)*4+j}, s{sel}")
        return go
    def ffn_mfma():
        p(f"v_mfma_f32_16x16x32_bf16 v[{FD}:{FD+3}], v[{XS}:{XS+3}], v[{FT}:{FT+3}], 0")
    def ffn_final():
        p(f"""
    s_cmp_lg_u32 s{sW}, 0
    s_cbranch_scc1 K2_FSKIP
    s_cmp_ge_u32 s2, 224
    s_cbranch_scc1 K2_FSKIP
    v_lshlrev_b32 v{vT2}, 3, v1
    v_add_u32 v{vT3}, {L_FP}, v{vT2}""")
        for w in range(8): p(f"ds_read_b64 v[{FR+2*w}:{FR+2*w+1}], v{vT3} offset:{w*512}")
        p(f"""
    s_and_b32 s{sT0}, s2, 3
    s_mul_i32 s{sT0}, s{sT0}, {7168*8}
    s_lshr_b32 s{sT1}, s2, 2
    s_lshl_b32 s{sT1}, s{sT1}, 10
    s_add_u32 s{sT0}, s{sT0}, s{sT1}
    s_add_u32 s{sT0}, s{sT0}, {WS_GU}
    v_lshlrev_b32 v{vT2}, 1, v{vT2}
    v_add_u32 v{vT2}, s{sT0}, v{vT2}
    s_waitcnt lgkmcnt(0)""")
        for w in range(1, 8):
            p(f"v_add_f32 v{FR}, v{FR}, v{FR+2*w}\nv_add_f32 v{FR+1}, v{FR+1}, v{FR+2*w+1}")
        p(f"v_mov_b32 v{FR+2}, v{FR+1}\nv_mov_b32 v{FR+1}, s{sNON}\nv_mov_b32 v{FR+3}, s{sNON}")
        p(f"global_store_dwordx4 v{vT2}, v[{FR}:{FR+3}], s[18:19] sc1")
        p.label("K2_FSKIP")
    NEG = f"v[{NEGM}:{NEGM+15}]"
    sONE = 0
    p(f"s_mov_b32 s{sONE}, 0x3f803f80")
    if 'prio' in dbg: p(f"s_cmp_lt_u32 s{sW}, 4\ns_cbranch_scc1 M_NPR\ns_setprio 1\nM_NPR:")
    def iteration(t, extra=(), mid=()):
        doQK = t < 15; doPV = t > 0; prevSM = t > 0
        sb = t & 1
        for j in range(8):
            if doQK: qk(j, sb ^ 1, NEG)
            if (j > 0 or prevSM) and 'novalu' not in dbg:
                e = E + 2 * ((j - 1) & 1)
                pb = sb if j > 0 else sb ^ 1
                pr = P + 8 * pb + ((j - 1) & 7)
                if 'pk' in dbg:
                    p(f"v_pk_add_f32 v[{vL0}:{vL1}], v[{vL0}:{vL1}], v[{e}:{e+1}]\nv_cvt_pk_bf16_f32 v{pr}, v{e}, v{e+1}")
                elif 'dot' in dbg:
                    p(f"v_cvt_pk_bf16_f32 v{pr}, v{e}, v{e+1}\nv_dot2_f32_bf16 v{vL0}, v{pr}, s{sONE}, v{vL0}")
                else:
                    p(f"v_add_f32 v{vL0}, v{vL0}, v{e}\nv_add_f32 v{vL1}, v{vL1}, v{e+1}\nv_cvt_pk_bf16_f32 v{pr}, v{e}, v{e+1}")
            if j < len(mid): run(mid[j])
            if doPV: pv(j, sb ^ 1, first=(t == 1))
            e = E + 2 * (j & 1)
            if 'novalu' not in dbg: p(f"v_exp_f32 v{e}, v{S+16*sb+2*j}\nv_exp_f32 v{e+1}, v{S+16*sb+2*j+1}")
            jj = j + D
            if jj < 8:
                if doQK: k_read(t + 1, jj)
                if doPV: v_read(t - 1, jj)
            else:
                if t + 2 <= 15: k_read(t + 2, jj - 8)
                v_read(t, jj - 8)
            if j < len(extra): run(extra[j])
    F = lambda i: job_f(i) if (ffn and cold and 'nofl' not in dbg) else None
    FT0 = 10
    PL = lambda n: (("PL", n), p3_preload(n))
    sched = {
        0: [job_k(7), None, job_v(3), None, job_v(4), None, F(0)],
        1: [job_v(5), None, None, job_v(6), None, None, F(1)],
        2: [job_k(8), None, job_k(9), None, job_v(7), None, F(2)],
        3: [job_v(8), keyld, job_v(9), None, job_v(10), None, F(3)],
        4: [job_k(10), None, job_k(11), None, job_v(11), None, F(4)],
        5: [job_v(12), None, None, job_v(13), None, keyred, F(5)],
        6: [job_k(12), keyrd, job_k(13), xsel, job_v(14), None, F(6)],
        7: [job_v(15), None, None, None, None, None, F(7)],
        8: [job_k(14), None, job_k(15), None, None, pf(0)],
        9: [None, None, None, None, pf(1)],
        10: [None, None, None, None, pf(2)],
        11: [None, None, None, None, pf(3)],
        12: [None, None, p3_early_setup(), p3_preload(0), PL(1), None, PL(2), None],
        13: [PL(3), None, PL(4), PL(5), None, PL(6), PL(7), p3_preload(8)],
        112: [] if 'notlb' in dbg else [
             (("TL", 0), f"v_min_u32 v{FT}, 40, v1\nv_lshlrev_b32 v{FT}, 20, v{FT}\nglobal_load_dword v{FD}, v{FT}, s[18:19]"), None,
             (("TL", 1), f"v_and_b32 v{FT+1}, 3, v1\nv_lshlrev_b32 v{FT+1}, 20, v{FT+1}\nglobal_load_dword v{FD}, v{FT+1}, s[78:79]"), None,
             (("TL", 2), f"v_and_b32 v{FT+2}, 7, v1\nv_lshlrev_b32 v{FT+2}, 20, v{FT+2}\nglobal_load_dword v{FD}, v{FT+2}, s[10:11]"), None,
             (("TL", 3), f"v_min_u32 v{FT+3}, 6, v1\nv_lshlrev_b32 v{FT+3}, 20, v{FT+3}\nglobal_load_dword v{FD}, v{FT+3}, s[16:17]")],
    }
    if 'nodma' in dbg: sched = {}
    for t in range(16):
        if t > 0 and t % 2 == 0:
            b = t // 2
            need = [("K", x) for x in range(2*b+4)] + [("V", x) for x in range(2*b+2)]
            if b == 6: need = [("K", x) for x in range(16)] + [("V", x) for x in range(16)]
            vq.wait(p, *need)
            if b == 7: vq.wait(p, ("PF", 3))
            if 2 * b == FT0 + 2: lq.wait(p, ("FW", 7))
            p("s_barrier")
            if b == 7: p("s_setprio 2")
        extra = sched.get(t, []); mid = []
        def both(x, y):
            def f():
                run(x); run(y)
            return f
        ex8 = list(extra) + [None] * 8
        if t == FT0:
            extra = [both(ex8[f], ffn_step(f)) for f in range(8)]; mid = [None] + [ffn_mfma] * 7
        if t == FT0 + 1:
            extra = [ex8[0], ffn_step(8)] + ex8[2:8]; mid = [ffn_mfma]
        if t == FT0 + 2:
            extra = [ex8[0], ffn_final] + ex8[2:8]
        if t == 14:
            ED = lambda n: None if 'noew' in dbg else (("EW", n), p3_early_dma(n))
            extra = []
        if t == 15:
            extra = []
        iteration(t, extra, mid)
    e = E + 2
    p(f"v_add_f32 v{vL0}, v{vL0}, v{e}\nv_add_f32 v{vL1}, v{vL1}, v{e+1}\nv_cvt_pk_bf16_f32 v{P+8+7}, v{e}, v{e+1}")
    p(f"""
    v_add_f32 v{vL0}, v{vL0}, v{vL1}
    v_mov_b32 v{vL1}, v{vL0}
    """)
    for i in range(8):
        pv(i, 1)
        if i + D < 8: v_read(15, i + D)
        if i == 0:
            p(f"v_permlane32_swap_b32 v{vL0}, v{vL1}\nv_add_f32 v{vL0}, v{vL0}, v{vL1}")
        if i == 1:
            p(f"""
    v_mov_b32 v{vT1}, 0x5d800000
    v_cmp_nle_f32 vcc, v{vL0}, v{vT1}
    v_rcp_f32 v{vL1}, v{vL0}
    """)
    ST()
    if slow:
        p(f"s_cbranch_vccnz K2_SLOW")
        p.label("K2_SLOW_RET")
    for dt in range(4):
        for c in range(2):
            a = ACC + 16 * dt + 8 * c
            o = S + (dt * 2 + c) * 4
            for r in range(8): p(f"v_mul_f32 v{a+r}, v{a+r}, v{vL1}")
            for r in range(4): p(f"v_cvt_pk_bf16_f32 v{o+r}, v{a+2*r}, v{a+2*r+1}")
            p(f"buffer_store_dwordx4 v[{o}:{o+3}], v{vO}, s[{SRD_OT}:{SRD_OT+3}], s{sOT} offen offset:{c*512} sc1")
        if dt < 3: p(f"s_add_u32 s{sOT}, s{sOT}, 131072")
    phase3(p, ST, stamp)
    p.label("K2_END")
    p("s_endpgm")
    p.label("M_SSPIN")
    p("s_sleep 2")
    p(stcode)
    p("s_waitcnt vmcnt(0)")
    p(stchk)
    p(f"""
    s_cbranch_vccz M_SSPIN_RET
    s_sub_u32 s73, s73, 1
    s_cmp_lg_u32 s73, 0
    s_cbranch_scc1 M_SSPIN
    s_branch M_SSPIN_RET
    """)
    p.label("M_KSPIN")
    p("s_sleep 2")
    p(keycode)
    p("s_waitcnt vmcnt(0)")
    p(keychk)
    p(f"""
    s_cbranch_vccz M_KSPIN_RET
    s_sub_u32 s73, s73, 1
    s_cmp_lg_u32 s73, 0
    s_cbranch_scc1 M_KSPIN
    s_branch M_KSPIN_RET
    """)
    if slow:
        p.label("K2_SLOW")
        p(f"""
    s_waitcnt vmcnt(0) lgkmcnt(0)
    v_and_b32 v{vT0}, 31, v1
    v_lshlrev_b32 v{vT0}, 8, v{vT0}
    v_lshrrev_b32 v{vT1}, 5, v1
    v_lshl_add_u32 v{vT0}, v{vT1}, 4, v{vT0}
    v_and_b32 v{vT2}, 19, v1
    v_bfe_u32 v{vT3}, v1, 2, 1
    v_lshl_add_u32 v{vT2}, v{vT3}, 3, v{vT2}
    v_bfe_u32 v{vT3}, v1, 3, 1
    v_lshl_add_u32 v{vT2}, v{vT3}, 2, v{vT2}
    v_lshlrev_b32 v{vT2}, 1, v{vT2}
    v_lshl_add_u32 v{vT2}, v{vT1}, 10, v{vT2}
    v_mov_b32 v{vT1}, 0xff800000
    s_mov_b32 s{sT1}, 0
    """)
        KS = KF
        def slow_qk(c0):
            for j in range(8):
                p(f"buffer_load_dwordx4 v[{KS+4*j}:{KS+4*j+3}], v{vT0}, s[{SRD_K}:{SRD_K+3}], s{sT1} offen offset:{j*32}")
            p("s_waitcnt vmcnt(0)")
            for j in range(8):
                c = c0 if j == 0 else f"v[{S}:{S+15}]"
                p(f"v_mfma_f32_32x32x16_bf16 v[{S}:{S+15}], v[{KS+4*j}:{KS+4*j+3}], v[{QP+4*j}:{QP+4*j+3}], {c}")
        p.label("K2_SLOW_L1")
        slow_qk("0")
        for i in range(0, 16, 2):
            p(f"v_max3_f32 v{vT1}, v{vT1}, v{S+i}, v{S+i+1}")
        p(f"""
    s_add_u32 s{sT1}, s{sT1}, 8192
    s_cmp_lt_u32 s{sT1}, 131072
    s_cbranch_scc1 K2_SLOW_L1
    v_mov_b32 v{vT3}, v{vT1}
    v_permlane32_swap_b32 v{vT3}, v{vT1}
    v_max_f32 v{vT1}, v{vT3}, v{vT1}
    """)
        for i in range(16): p(f"v_sub_f32 v{NEGM+i}, 0, v{vT1}")
        for i in range(64): p(f"v_mov_b32 v{ACC+i}, 0")
        p(f"v_mov_b32 v{vL0}, 0\ns_mov_b32 s{sT1}, 0")
        p.label("K2_SLOW_L2")
        slow_qk(NEG)
        for i in range(16): p(f"v_exp_f32 v{S+i}, v{S+i}")
        for i in range(16): p(f"v_add_f32 v{vL0}, v{vL0}, v{S+i}")
        for i in range(8): p(f"v_cvt_pk_bf16_f32 v{P+i}, v{S+2*i}, v{S+2*i+1}")
        for ks in range(2):
            p(f"s_add_u32 s{sT2}, s{sT1}, {ks*4096}")
            TM = S + 16
            for dt in range(4):
                r = KS + dt * 4; d = ACC + 16 * dt
                for jj in range(8):
                    key = (jj & 3) + 8 * (jj >> 2)
                    p(f"buffer_load_ushort v{TM + jj}, v{vT2}, s[{SRD_V}:{SRD_V+3}], s{sT2} offen offset:{key*256 + dt*64}")
                p("s_waitcnt vmcnt(0)")
                for jj in range(4): p(f"v_lshl_or_b32 v{r+jj}, v{TM+2*jj+1}, 16, v{TM+2*jj}")
                p(f"v_mfma_f32_32x32x16_bf16 v[{d}:{d+15}], v[{r}:{r+3}], v[{P+4*ks}:{P+4*ks+3}], v[{d}:{d+15}]")
            p("s_nop 7")
        p(f"""
    s_add_u32 s{sT1}, s{sT1}, 8192
    s_cmp_lt_u32 s{sT1}, 131072
    s_cbranch_scc1 K2_SLOW_L2
    v_mov_b32 v{vL1}, v{vL0}
    v_permlane32_swap_b32 v{vL0}, v{vL1}
    v_add_f32 v{vL0}, v{vL0}, v{vL1}
    v_rcp_f32 v{vL1}, v{vL0}
    s_nop 7
    s_branch K2_SLOW_RET
    """)
    n = p.fix_hazards(verbose='v' in dbg)
    import re as _re
    st = lambda m: f"    s_memtime s[{80+2*int(m.group(1))}:{81+2*int(m.group(1))}]\n"
    txt = p.text()
    txt = _re.sub(r"(?m)^ST3_(\d)\n", st if MODE3[0] else "", txt)
    txt = _re.sub(r"(?m)^ST4_(\d)\n", st if 'st4' in dbg else "", txt)
    txt = _re.sub(r"(?m)^STAMPX1\n", "", txt)
    return txt, descriptor(name, 256, 256, 102), f"; @launch grid=(256,1,1) block=(512,1,1) lds={L_TOTAL}"

if __name__ == "__main__":
    import sys, subprocess, re
    dbg = tuple(sys.argv[2].split(',')) if len(sys.argv) > 2 else ()
    t, d, l = gen_mega(stamp=len(sys.argv) > 1 and sys.argv[1] == "1", dbg=dbg)
    out = sys.argv[3] if len(sys.argv) > 3 else "mega.s"
    def write(cs):
        open(out, "w").write(l + '\n.amdgcn_target "amdgcn-amd-amdhsa--gfx950"\n.text\n' + t.replace("CODESIZE", str(cs)) + '.section .rodata,"a"\n' + d)
    write(0x1000)
    subprocess.run(["clang", "-x", "assembler", "-target", "amdgcn-amd-amdhsa", "-mcpu=gfx950", "-c", out, "-o", "mega.o"], check=True)
    r = subprocess.run(["llvm-objdump", "-h", "mega.o"], capture_output=True, text=True).stdout
    sz = int(re.search(r"\.text\s+([0-9a-f]+)", r).group(1), 16)
    write((sz - 256) & ~63)
    print("code size", sz)
```

```python
from gen_common import *
import math, struct

KSL = 8704; VSL = 8192
L_X = 65536
L_HI = 131072
L_FP = 159744
L_TOTAL = L_FP + 4096
L_K = L_HI
KADDR = [L_HI, L_HI + KSL, L_HI + 2 * KSL, L_X, L_X + KSL + 2 * VSL, L_X + 2 * KSL + 2 * VSL, L_X + 3 * KSL + 2 * VSL]
VADDR = [L_X + KSL, L_X + KSL + VSL, L_X + 4 * KSL + 2 * VSL] + [i * VSL for i in range(8)]
assert VADDR[2] + VSL <= L_HI and KADDR[2] + KSL <= L_FP and VADDR[1] + VSL <= L_X + 32768
def Kabs(t): return KADDR[t % 7]
def Vabs(t): return VADDR[t % 11]

vDk, vDv, vKb, vVa, vVb, vO, vL0, vL1, vDf, vKh, vT0, vT1, vT2, vT3 = 2, 3, 4, 5, 6, 7, 8, 9, 10, 11, 12, 13, 14, 15
vPF = 211
ACC = 16; QP = 80; S = 112; NEGM = 144; P = 160; KF = 176; VF = 192; E = 208
QA = 112; AF = 176
def BRr(buf, k): return 212 + (buf & 1) * 16 + k * 4
FR = 212
vA0, vA1, vDq, vDq2, vXB0, vXB1 = 244, 245, 246, 247, 248, 249
vXD = 80
FT = 244; FD = 248; XS = 252
sW = 3
sHEAD, sRB, sG = 20, 21, 22
sN, sWq, sM, sB = 23, 24, 25, 26
sKsrc, sKw, sVsrc, sVw = 27, 28, 29, 30
sPL, sPH = 31, 32
sFsrc, sIDX = 69+32, 35
SRD_WQ, SRD_XN, SRD_K, SRD_V, SRD_F, SRD_OT = 36, 40, 44, 48, 52, 56
sT0, sT1, sT2, sT3 = 60, 61, 62, 63
sOT = 64
sXM = 100
QSCALE = math.log2(math.e) / math.sqrt(128.0)
def fbits(x): return "0x%08x" % struct.unpack("<I", struct.pack("<f", x))[0]
D = 4

class Q:
    def __init__(self, cnt, mx): self.q = []; self.cnt = cnt; self.mx = mx
    def issue(self, tag): self.q.append(tag)
    def wait(self, p, *tags):
        idx = [len(self.q) - 1 - self.q[::-1].index(t) for t in tags if t in self.q]
        if not idx: return
        i = max(idx)
        n = len(self.q) - 1 - i
        assert n <= self.mx, n
        p(f"s_waitcnt {self.cnt}({n})")
        self.q = self.q[i + 1:]


KNAME = "recurrent_scan__sliding_block_cached__moe_arch_mod__prompt_kernel"
sFL, sPC, sKEY = 65, 70, 34
SPIN_MAX = 20000
MODE0 = [False]
DBGT = [False]
NOEW = [False]
MODE3 = [False]
WS_FLG = 0x500000
sNON = 33

LX = 16
def poll32(p, lab, sGrp, stage):
    p(f"""
    v_and_b32 v{vT0}, 31, v1
    v_lshlrev_b32 v{vT0}, 7, v{vT0}
    s_lshl_b32 s{sGrp}, s{sGrp}, 12
    s_add_u32 s{sGrp}, s{sGrp}, {WS_FLG + stage*32768}
    v_add_u32 v{vT0}, s{sGrp}, v{vT0}
    s_mov_b32 s73, {SPIN_MAX}
    """)
    p.label(lab)
    p(f"""
    global_load_dword v{vT1}, v{vT0}, s[18:19] sc1
    s_waitcnt vmcnt(0)
    v_cmp_ne_u32 vcc, s{sNON}, v{vT1}
    s_cbranch_vccz {lab}_OK
    s_sleep 1
    s_sub_u32 s73, s73, 1
    s_cmp_lg_u32 s73, 0
    s_cbranch_scc1 {lab}
    """)
    p.label(lab + "_OK")
def set_flag(p, stage):
    p(f"""
    s_lshl_b32 s{sT0}, s{sFL}, 7
    s_add_u32 s{sT0}, s{sT0}, {WS_FLG + stage*32768}
    v_mov_b32 v{vT0}, s{sT0}
    v_mov_b32 v{vT1}, s{sNON}
    s_mov_b64 exec, 1
    global_store_dword v{vT0}, v{vT1}, s[18:19] sc1
    s_mov_b64 exec, -1
    """)
WS_ST = 0x520000
WS_CS = 0x530000
L_SC = L_K
CSR = 92
def get_nonce(p, lab, vz, vn):
    p(f"""
    s_mov_b32 s73, {SPIN_MAX}
{lab}:
    global_load_dword v{vn}, v{vz}, s[66:67] sc1
    s_waitcnt vmcnt(0)
    v_readfirstlane_b32 s{sNON}, v{vn}
    s_cmp_lg_u32 s{sNON}, 0
    s_cbranch_scc1 {lab}_OK
    s_sub_u32 s73, s73, 1
    s_cmp_lg_u32 s73, 0
    s_cbranch_scc1 {lab}
{lab}_OK:
    """)
class Rec:
    def __init__(self): self.items = []
    def __call__(self, text):
        for line in text.split('\n'):
            if line.strip(): self.items.append(line.strip())
    def call(self, f): self.items.append(f)
LN_X = 16; LN_W = 24
vg0, vg1, vr_, vq_, vNON, vCSA, vLXA = 84, 85, 86, 87, 88, 89, 90
def ln_segments(lq, vq, P):
    X = LN_X; W = LN_W; F = 32; S_ = 48; T = 49; Q0 = 50; Q1 = 51; Dd = 52; va = 68; vw = 69; SD = 70; G = 32
    CA = 72; CT = 52
    p = Rec()
    p(f"""
    v_lshrrev_b32 v{vw}, 6, v0
    v_and_b32 v{va}, 7, v1
    v_xor_b32 v{va}, v{va}, v{vw}
    v_lshlrev_b32 v{va}, 4, v{va}
    v_lshl_add_u32 v{va}, v1, 7, v{va}
    v_add_u32 v{va}, {L_SC}, v{va}
    v_lshrrev_b32 v{vg1}, 3, v0
    v_and_b32 v{vg0}, 7, v{vg1}
    v_and_b32 v{vr_}, 7, v0
    v_xor_b32 v{vg0}, v{vg0}, v{vr_}
    v_lshlrev_b32 v{vg0}, 4, v{vg0}
    v_lshl_add_u32 v{vg0}, v{vg1}, 8, v{vg0}
    s_lshr_b32 s{sT0}, s{sFL}, 1
    s_lshl_b32 s{sT0}, s{sT0}, 15
    s_and_b32 s{sT1}, s{sFL}, 1
    s_lshl_b32 s{sT1}, s{sT1}, 7
    s_add_u32 s{sT0}, s{sT0}, s{sT1}
    v_add_u32 v{vg0}, s{sT0}, v{vg0}
    v_add_u32 v{vg1}, 0x4000, v{vg0}
    v_lshlrev_b32 v{vr_}, 4, v0
    v_add_u32 v{vr_}, {L_SC}, v{vr_}
    """)
    p.call(lambda: vq.wait(P, ("LX", 1)))
    ONE = F
    p(f"v_mov_b32 v{ONE}, 0x3f803f80")
    p(f"v_dot2_f32_bf16 v{S_}, v{X}, v{ONE}, 0\nv_dot2_f32_bf16 v{Q0}, v{X}, v{X}, 0")
    p(f"v_dot2_f32_bf16 v{T}, v{X+1}, v{ONE}, 0\nv_dot2_f32_bf16 v{Q1}, v{X+1}, v{X+1}, 0")
    for i in range(2, 8, 2):
        p(f"v_dot2_f32_bf16 v{S_}, v{X+i}, v{ONE}, v{S_}\nv_dot2_f32_bf16 v{Q0}, v{X+i}, v{X+i}, v{Q0}")
        p(f"v_dot2_f32_bf16 v{T}, v{X+i+1}, v{ONE}, v{T}\nv_dot2_f32_bf16 v{Q1}, v{X+i+1}, v{X+i+1}, v{Q1}")
    p(f"s_nop 1\nv_add_f32 v{S_}, v{S_}, v{T}\nv_add_f32 v{Q0}, v{Q0}, v{Q1}")
    ra = Rec(); wave_sum(ra, S_, T); rb_ = Rec(); wave_sum(rb_, Q0, Q1)
    for x_, y_ in zip(ra.items, rb_.items): p(x_); p(y_)
    p(f"""
    v_mul_f32 v{S_}, 0x3a800000, v{S_}
    v_mul_f32 v{Q0}, 0x3a800000, v{Q0}
    v_fma_f32 v{Q0}, -v{S_}, v{S_}, v{Q0}
    v_max_f32 v{Q0}, 0, v{Q0}
    v_cvt_pk_bf16_f32 v{T}, v{S_}, v{Q0}
    v_lshlrev_b32 v{S_}, 16, v{T}
    v_and_b32 v{Q0}, 0xffff0000, v{T}
    v_add_f32 v{Q0}, 0x3727c5ac, v{Q0}
    v_cvt_pk_bf16_f32 v{Q0}, v{Q0}, v{Q0}
    v_lshlrev_b32 v{Q0}, 16, v{Q0}
    v_sqrt_f32 v{Q0}, v{Q0}
    v_cvt_pk_bf16_f32 v{SD}, v{S_}, v{Q0}
    v_and_b32 v{Q0}, 0xffff0000, v{SD}
    v_rcp_f32 v{Q0}, v{Q0}
    """)
    def dsw(text, tag):
        def f():
            P(text); lq.issue(tag)
        p.call(f)
    p(f"""
    s_lshl_b32 s{sT0}, s{sW}, 2
    s_add_u32 s{sT0}, s{sT0}, {L_SC + 16384}
    v_mov_b32 v{vw}, s{sT0}
    """)
    partA1 = p.items
    p = Rec()
    p.call(lambda: vq.wait(P, ("CS", 3)))
    for i in range(4):
        for j in range(4):
            r = CSR + 4 * i + j
            if i == 0:
                p(f"v_lshlrev_b32 v{CA+2*j}, 16, v{r}\nv_and_b32 v{CA+2*j+1}, 0xffff0000, v{r}")
            else:
                p(f"v_lshlrev_b32 v{CT}, 16, v{r}\nv_and_b32 v{CT+1}, 0xffff0000, v{r}")
                p(f"v_add_f32 v{CA+2*j}, v{CA+2*j}, v{CT}\nv_add_f32 v{CA+2*j+1}, v{CA+2*j+1}, v{CT+1}")
    p(f"""
    v_lshlrev_b32 v{T}, 5, v0
    v_add_u32 v{T}, {L_SC}, v{T}
    """)
    dsw(f"ds_write_b128 v{T}, v[{CA}:{CA+3}]", ("LW", 4))
    dsw(f"ds_write_b128 v{T}, v[{CA+4}:{CA+7}] offset:16", ("LW", 5))
    partA = p.items
    p = Rec()
    exact = True
    for i in range(8):
        p(f"v_lshlrev_b32 v{Dd+2*i}, 16, v{X+i}\nv_and_b32 v{Dd+2*i+1}, 0xffff0000, v{X+i}")
    for i in range(16): p(f"v_sub_f32 v{Dd+i}, v{Dd+i}, v{S_}")
    for i in range(8): p(f"v_cvt_pk_bf16_f32 v{X+i}, v{Dd+2*i}, v{Dd+2*i+1}")
    for i in range(8):
        p(f"v_lshlrev_b32 v{Dd+2*i}, 16, v{X+i}\nv_and_b32 v{Dd+2*i+1}, 0xffff0000, v{X+i}")
    for i in range(16): p(f"v_mul_f32 v{Dd+i}, v{Dd+i}, v{Q0}")
    for i in range(8): p(f"v_cvt_pk_bf16_f32 v{X+i}, v{Dd+2*i}, v{Dd+2*i+1}")
    p.call(lambda: vq.wait(P, ("LX", 3)))
    p(f"v_dot2_f32_bf16 v{S_}, v{X}, v{W}, 0\nv_dot2_f32_bf16 v{Q1}, v{X+1}, v{W+1}, 0")
    for i in range(2, 8, 2):
        p(f"v_dot2_f32_bf16 v{S_}, v{X+i}, v{W+i}, v{S_}\nv_dot2_f32_bf16 v{Q1}, v{X+i+1}, v{W+i+1}, v{Q1}")
    p(f"s_nop 2\nv_add_f32 v{S_}, v{S_}, v{Q1}")
    wave_sum(p, S_, T)
    p(f"""
    v_cvt_pk_bf16_f32 v{S_}, v{S_}, v{S_}
    v_lshlrev_b32 v{S_}, 16, v{S_}
    v_ashrrev_i32 v{T}, 31, v{S_}
    v_or_b32 v{T}, 0x80000000, v{T}
    v_xor_b32 v{S_}, v{S_}, v{T}
    v_and_b32 v{S_}, 0xffff0000, v{S_}
    s_lshl_b32 s{sT1}, s{sFL}, 3
    s_add_u32 s{sT1}, s{sT1}, s{sW}
    s_sub_u32 s{sT0}, 2047, s{sT1}
    v_or_b32 v{S_}, s{sT0}, v{S_}
    v_mov_b32 v{vL0}, 0
    v_mov_b32 v{vL1}, 0
    """)
    dsw(f"ds_write_b128 v{va}, v[{X}:{X+3}]", ("LW", 0))
    dsw(f"ds_write_b128 v{va}, v[{X+4}:{X+7}] offset:8192", ("LW", 1))
    dsw(f"ds_write_b32 v{vw}, v{S_}", ("LW", 2))
    return partA1, partA, p.items
def pub_segments(lq, vq, P):
    R = CSR
    p = Rec()
    def ds(text, tag):
        def f():
            P(text); lq.issue(tag)
        p.call(f)
    def vm(text, tag):
        def f():
            P(text); vq.issue(tag)
        p.call(f)
    p(f"""
    v_lshrrev_b32 v{R+4}, 3, v1
    v_lshlrev_b32 v{R+4}, 9, v{R+4}
    v_and_b32 v{R+5}, 7, v1
    v_lshl_add_u32 v{R+4}, v{R+5}, 3, v{R+4}
    s_lshl_b32 s{sT0}, s{sW}, 6
    s_add_u32 s{sT0}, s{sT0}, {L_SC}
    v_add_u32 v{R+4}, s{sT0}, v{R+4}
    """)
    ds(f"ds_read_b64 v[{R}:{R+1}], v{R+4}", ("PR", 9))
    ds(f"ds_read_b64 v[{R+8}:{R+9}], v{R+4} offset:4096", ("PR", 8))
    p("s_nop 0\ns_nop 0\ns_nop 0\ns_nop 0")
    ds(f"ds_read_b64 v[{R+10}:{R+11}], v{R+4} offset:8192", ("PR", 7))
    ds(f"ds_read_b64 v[{R+12}:{R+13}], v{R+4} offset:12288", ("PR", 0))
    p(f"""
    s_lshl_b32 s{sT0}, s{sHEAD}, 3
    s_add_u32 s{sT0}, s{sT0}, s{sRB}
    s_lshl_b32 s{sT0}, s{sT0}, 3
    s_add_u32 s{sT0}, s{sT0}, s{sW}
    s_lshl_b32 s{sT0}, s{sT0}, 7
    s_add_u32 s{sT0}, s{sT0}, {WS_CS}
    v_lshlrev_b32 v{R+5}, 4, v{R+5}
    v_add_u32 v{R+5}, s{sT0}, v{R+5}
    s_lshl_b32 s{sT0}, s{sFL}, 3
    s_add_u32 s{sT0}, s{sT0}, s{sW}
    s_lshl_b32 s{sT0}, s{sT0}, 3
    s_add_u32 s{sT0}, s{sT0}, {WS_ST}
    v_mov_b32 v{R+6}, s{sT0}
    v_mov_b32 v71, s{sNON}
    """)
    vm(f"s_mov_b64 exec, 1\nglobal_store_dwordx2 v{R+6}, v[70:71], s[18:19] sc1\ns_mov_b64 exec, -1", ("PS", 0))
    p.call(lambda: lq.wait(P, ("PR", 0)))
    p(f"""
    v_add_f32 v{R}, v{R}, v{R+8}
    v_add_f32 v{R+1}, v{R+1}, v{R+9}
    v_add_f32 v{R+10}, v{R+10}, v{R+12}
    v_add_f32 v{R+11}, v{R+11}, v{R+13}
    v_add_f32 v{R}, v{R}, v{R+10}
    v_add_f32 v{R+2}, v{R+1}, v{R+11}
    """)
    for c in (R, R + 2): p(f"v_add_f32_dpp v{c}, v{c}, v{c} row_ror:8 row_mask:0xf bank_mask:0xf")
    for sw in ("v_permlane16_swap_b32", "v_permlane32_swap_b32"):
        p(f"v_mov_b32 v{R+1}, v{R}\nv_mov_b32 v{R+3}, v{R+2}")
        p(f"{sw} v{R}, v{R+1}\n{sw} v{R+2}, v{R+3}")
        p(f"v_add_f32 v{R}, v{R}, v{R+1}\nv_add_f32 v{R+2}, v{R+2}, v{R+3}")
    p(f"v_mov_b32 v{R+1}, s{sNON}\nv_mov_b32 v{R+3}, s{sNON}")
    vm(f"s_mov_b64 exec, 0xff\nglobal_store_dwordx4 v{R+5}, v[{R}:{R+3}], s[18:19] sc1\ns_mov_b64 exec, -1", ("PS", 1))
    seg1 = p.items
    p = Rec()
    X = 16
    ds(f"ds_read_b128 v[{X}:{X+3}], v{vr_}", ("PR", 1))
    ds(f"ds_read_b128 v[{X+4}:{X+7}], v{vr_} offset:8192", ("PR", 2))
    p(f"v_mov_b32 v{vq_}, {L_SC + 16384}")
    ds(f"ds_read_b128 v[{X+8}:{X+11}], v{vq_}", ("PR", 3))
    p("s_nop 0\ns_nop 0\ns_nop 0\ns_nop 0")
    p.call(lambda: lq.wait(P, ("PR", 1)))
    vm(f"global_store_dwordx4 v{vg0}, v[{X}:{X+3}], s[18:19] sc1", ("PS", 2))
    ds(f"ds_read_b128 v[{X+12}:{X+15}], v{vq_} offset:16", ("PR", 4))
    p.call(lambda: lq.wait(P, ("PR", 2)))
    vm(f"global_store_dwordx4 v{vg1}, v[{X+4}:{X+7}], s[18:19] sc1", ("PS", 3))
    p("s_nop 0\ns_nop 0\ns_nop 0\ns_nop 0")
    p.call(lambda: lq.wait(P, ("PR", 4)))
    p(f"""
    v_max3_u32 v{X+8}, v{X+8}, v{X+9}, v{X+10}
    v_max3_u32 v{X+12}, v{X+12}, v{X+13}, v{X+14}
    v_max3_u32 v{X+8}, v{X+8}, v{X+11}, v{X+15}
    v_max_u32 v{X+8}, v{X+8}, v{X+12}
    v_readfirstlane_b32 s{sKEY}, v{X+8}
    """)
    return seg1, p.items
def set_flag2(p):
    pass

def rbf(p, v):
    p(f"v_cvt_pk_bf16_f32 v{v}, v{v}, v{v}\nv_lshlrev_b32 v{v}, 16, v{v}")
def silu(p, d, v, t):
    p(f"""
    v_mul_f32 v{t}, 0xbfb8aa3b, v{v}
    v_exp_f32 v{t}, v{t}
    v_add_f32 v{t}, 1.0, v{t}
    v_rcp_f32 v{t}, v{t}
    v_mul_f32 v{d}, v{v}, v{t}
    """)
sRT, sCT, sIT, sA, sBo, sMb, sMb2, sKH, sKQ, sMH = 20, 21, 23, 24, 25, 26, 27, 28, 29, 30
sKG, sCG = 31, 32
SRD_A, SRD_B = 36, 40
RB1 = 16384; RB2 = 114688
WS_EX = 0x2000000; WS_FLG2 = 0x560000
EW = 244
L_H3 = 148480
CNT_A = L_HI + 2*KSL + 6*1088 + 1024
CNT_B = CNT_A + 1088
def p3_early_setup():
    return f"""s_and_b32 s{sT0}, s2, 7
    s_lshr_b32 s{sT1}, s2, 3
    s_lshr_b32 s{sRT}, s{sT0}, 1
    s_lshl_b32 s{sRT}, s{sRT}, 2
    s_and_b32 s{sT2}, s{sT1}, 3
    s_add_u32 s{sRT}, s{sRT}, s{sT2}
    s_lshr_b32 s{sCT}, s{sT1}, 2
    s_and_b32 s{sKH}, s{sT0}, 1
    s_and_b32 s{sKQ}, s{sW}, 3
    s_lshr_b32 s{sMH}, s{sW}, 2
    s_xor_b32 s{sMH}, s{sMH}, s{sKH}
    s_xor_b32 s{sMH}, s{sMH}, 1
    s_lshl_b32 s{sT0}, s{sKH}, 2
    s_add_u32 s{sT0}, s{sT0}, s{sKQ}
    s_lshl_b32 s{sT1}, s{sT0}, 21
    s_add_u32 s{sT1}, s{sT1}, {WS_OT}
    s_add_u32 s{SRD_A}, s18, s{sT1}
    s_addc_u32 s{SRD_A+1}, s19, 0
    s_mov_b32 s{SRD_A+2}, 0x200000
    s_mov_b32 s{SRD_A+3}, 0x20000
    s_lshl_b32 s{sT1}, s{sT0}, 20
    s_add_u32 s{SRD_B}, s10, s{sT1}
    s_addc_u32 s{SRD_B+1}, s11, 0
    s_mov_b32 s{SRD_B+2}, 0x100000
    s_mov_b32 s{SRD_B+3}, 0x20000
    s_lshl_b32 s{sA}, s{sRT}, 1
    s_add_u32 s{sA}, s{sA}, s{sMH}
    s_lshl_b32 s{sA}, s{sA}, 12
    s_lshl_b32 s{sBo}, s{sCT}, 8
    s_lshl_b32 s{sT1}, s{sMH}, 15
    s_add_u32 s{sBo}, s{sBo}, s{sT1}
    s_mul_i32 s{sMb}, s{sKQ}, 24576
    s_add_u32 s{sMb}, s{sMb}, {RB1}
    s_lshl_b32 s{sMb2}, s{sKQ}, 13
    s_add_u32 s{sMb2}, s{sMb2}, {RB2 - 3*8192}
    s_lshl_b32 s{sT1}, s{sMH}, 12
    s_add_u32 s{sT2}, s{sMb}, s{sT1}
    s_add_u32 s{sT3}, s{sMb2}, s{sT1}
    v_lshrrev_b32 v{EW+1}, 4, v1
    v_and_b32 v{EW}, 3, v1
    v_bfe_u32 v{EW+2}, v1, 2, 2
    v_lshlrev_b32 v{EW}, 4, v{EW}
    v_lshl_add_u32 v{EW}, v{EW+1}, 6, v{EW}
    v_lshl_add_u32 v{EW}, v{EW+2}, 11, v{EW}
    v_add_u32 v{EW+1}, 7168, v{EW}
    v_add_u32 v{EW+2}, {2*7168}, v{EW}
    v_add_u32 v{EW+3}, {3*7168}, v{EW}
    s_mov_b32 s{sDW}, s{sT2}
    s_mov_b32 s{sDW2}, s{sT3}"""
sDW, sDW2 = 68, 69
def wdma(slot, i, vW):
    t = ""
    if i == 0: t = f"s_add_u32 m0, s{sDW2 if slot == 3 else sDW}, {slot*8192}\ns_nop 0\n"
    t += f"buffer_load_dwordx4 v{vW+i}, s[{SRD_B}:{SRD_B+3}], s{sBo} offen offset:{i*1024} lds"
    if i == 3: t += f"\ns_add_u32 s{sBo}, s{sBo}, 65536"
    return t
def p3_early_dma(n):
    return wdma(n >> 2, n & 3, EW)
PL_A = 212; PL_B = 228; PL_G = 176; PL_OUT = 248
def gu_loads(GA):
    t = f"""s_mul_i32 s{sT0}, s{sKG}, 224
    s_mul_i32 s{sT1}, s{sKQ}, 56
    s_add_u32 s{sT0}, s{sT0}, s{sT1}
    v_min_u32 v{GA}, 55, v1
    v_add_lshl_u32 v{GA}, v{GA}, s{sT0}, 3
    v_add_u32 v{GA}, {WS_GU}, v{GA}
    """
    for q in range(8):
        t += f"global_load_dwordx2 v[{PL_G+2*q}:{PL_G+2*q+1}], v{GA}, s[18:19] sc1\n"
        if q < 7: t += f"v_add_u32 v{GA}, 28672, v{GA}\n"
    return t
def p3_preload(n):
    A = 249; B = 250
    if n == 0:
        return f"""s_and_b32 s{sKG}, s{sFL}, 15
    s_lshr_b32 s{sCG}, s{sFL}, 4
    s_cmp_lg_u32 s{sMH}, s{sKH}
    s_cbranch_scc1 M_PL_S
    s_lshl_b32 s{sT0}, s{sRT}, 1
    s_add_u32 s{sT0}, s{sT0}, s{sKH}
    s_lshl_b32 s{sT0}, s{sT0}, 2
    s_add_u32 s{sT0}, s{sT0}, s{sKQ}
    s_lshl_b32 s{sT1}, s{sT0}, 15
    s_lshl_b32 s{sT2}, s{sCT}, 8
    s_add_u32 s{sT2}, s{sT1}, s{sT2}
    v_and_b32 v{A}, 15, v1
    v_lshrrev_b32 v{B}, 4, v1
    v_lshlrev_b32 v{PL_OUT}, 11, v{A}
    v_lshl_add_u32 v{PL_OUT}, v{B}, 4, v{PL_OUT}
    v_add_u32 v{PL_OUT}, s{sT2}, v{PL_OUT}
    s_lshl_b32 s{sT2}, s{sCT}, 12
    s_add_u32 s{sT2}, s{sT1}, s{sT2}
    v_lshlrev_b32 v{A}, 4, v{A}
    v_lshl_add_u32 v{A}, v{B}, 8, v{A}
    v_add_u32 v{A}, s{sT2}, v{A}
    s_branch M_PL_E
M_PL_S:
    s_mul_i32 s{sT0}, s{sKG}, 224
    s_mul_i32 s{sT1}, s{sKQ}, 56
    s_add_u32 s{sT0}, s{sT0}, s{sT1}
    s_lshl_b32 s{sT1}, s{sT0}, 11
    s_lshl_b32 s{sT2}, s{sCG}, 7
    s_add_u32 s{sT1}, s{sT1}, s{sT2}
    v_lshrrev_b32 v{A}, 3, v1
    v_lshlrev_b32 v{A}, 11, v{A}
    v_and_b32 v{B}, 7, v1
    v_lshl_add_u32 v{A}, v{B}, 4, v{A}
    v_add_u32 v{A}, s{sT1}, v{A}
    v_mov_b32 v{PL_OUT}, 0
M_PL_E:"""
    if n == 9:
        return f"s_cmp_eq_u32 s{sMH}, s{sKH}\ns_cbranch_scc1 M_PL9\n{gu_loads(B)}M_PL9:"
    i = n - 1
    kl = (f"global_load_dwordx4 v[{PL_B+4*i}:{PL_B+4*i+3}], v{A}, s[18:19] offset:{i*1024} sc1" if i < 4 else
          f"global_load_dwordx4 v[{PL_A+4*(i-4)}:{PL_A+4*(i-4)+3}], v{PL_OUT}, s[74:75] offset:{(i-4)*64}")
    sl = (f"global_load_dwordx4 v[{PL_A+4*i}:{PL_A+4*i+3}], v{A}, s[16:17]\nv_add_u32 v{A}, 0x4000, v{A}\n" if i < 7 else "")
    return f"s_cmp_lg_u32 s{sMH}, s{sKH}\ns_cbranch_scc1 M_PLS{n}\n{kl}\ns_branch M_PLE{n}\nM_PLS{n}:\n{sl}M_PLE{n}:"
def phase3(p, ST, stamp):
    AC3 = 128; OR = 64; WF = 16; XP = 32; GP = 48
    vAo, vRd, vRd2, vOut, vFa, vFv = 2, 3, 8, 9, 10, 11; vW = 4
    ST(False)
    def oload(slot, i):
        r = OR + slot * 16 + i * 4
        t = f"buffer_load_dwordx4 v[{r}:{r+3}], v{vAo}, s[{SRD_A}:{SRD_A+3}], s{sA} offen offset:{i*1024} sc1"
        if i == 3: t += f"\ns_add_u32 s{sA}, s{sA}, 131072"
        return t
    def arrive(lab, n):
        p(f"""
    v_mov_b32 v{vT0}, {CNT_A}
    v_mov_b32 v{vT1}, 1
    s_waitcnt vmcnt({n})
    s_mov_b64 exec, 1
    ds_add_rtn_u32 v{vT2}, v{vT0}, v{vT1}
    s_mov_b64 exec, -1
    s_waitcnt lgkmcnt(0)
    v_readfirstlane_b32 s{sT0}, v{vT2}
    s_cmp_lg_u32 s{sT0}, 7
    s_cbranch_scc1 {lab}
    """)
        set_flag(p, 1)
        p.label(lab)
    NR = PL_B; GG = 144; TT = 176
    p(f"""
    ST3_0
    s_setprio 0
    v_mov_b32 v{vW}, v{EW}
    v_mov_b32 v{vW+1}, v{EW+1}
    v_mov_b32 v{vW+2}, v{EW+2}
    v_mov_b32 v{vW+3}, v{EW+3}
    v_mov_b32 v{vOut}, v{PL_OUT}
    s_waitcnt vmcnt(8)
    s_cmp_lg_u32 s{sMH}, s{sKH}
    s_cbranch_scc1 M_SEND0
    """)
    for j in range(16):
        p(f"v_lshlrev_b32 v{GG+2*j}, 16, v{NR+j}\nv_and_b32 v{GG+2*j+1}, 0xffff0000, v{NR+j}\nv_mov_b32 v{XP+j}, v{PL_A+j}")
    for c in range(32): p(f"v_mul_f32 v{TT+c}, 0xbfb8aa3b, v{GG+c}")
    for c in range(32): p(f"v_exp_f32 v{TT+c}, v{TT+c}")
    for c in range(32): p(f"v_add_f32 v{TT+c}, 1.0, v{TT+c}")
    for c in range(32): p(f"v_rcp_f32 v{TT+c}, v{TT+c}")
    for c in range(32): p(f"v_mul_f32 v{GG+c}, v{GG+c}, v{TT+c}")
    for c in range(16): p(f"v_cvt_pk_bf16_f32 v{GP+c}, v{GG+2*c}, v{GG+2*c+1}")
    arrive("M_ARR0", 0)
    p(f"s_and_b32 s{sT3}, s{sBo}, 0x7fff")
    for sl in range(3):
        for hf in range(2):
            p(f"s_add_u32 m0, s{sMb}, {sl*8192 + hf*4096}\ns_nop 0")
            for i in range(4):
                p(f"buffer_load_dwordx4 v{vW+i}, s[{SRD_B}:{SRD_B+3}], s{sT3} offen offset:{i*1024} lds")
            p(f"s_add_u32 s{sT3}, s{sT3}, 32768")
    p("ST3_6\ns_branch M_JOIN0")
    p.label("M_SEND0")
    WD = PL_A; GR = PL_G; GA = 144; AC = 152; T = 160; SW = 164
    guld = gu_loads(GA)
    p(guld)
    arrive("M_ARR3", 8)
    p(f"s_mov_b32 s73, {SPIN_MAX}\ns_mov_b32 s{sIT}, 1\ns_waitcnt vmcnt(0)")
    p.label("M_POLL2")
    for q in range(8): p(f"v_xor_b32 v{GR+2*q+1}, s{sNON}, v{GR+2*q+1}")
    p(f"""
    v_or3_b32 v{GR+1}, v{GR+1}, v{GR+3}, v{GR+5}
    v_or3_b32 v{GR+7}, v{GR+7}, v{GR+9}, v{GR+11}
    v_or3_b32 v{GR+1}, v{GR+1}, v{GR+13}, v{GR+15}
    v_or_b32 v{GR+1}, v{GR+1}, v{GR+7}
    v_cmp_ne_u32 vcc, 0, v{GR+1}
    s_cbranch_vccz M_POLL2_OK
    s_cmp_lg_u32 s{sIT}, 0
    s_cbranch_scc1 M_ARR2
    s_mov_b32 s{sIT}, 1
    """)
    arrive("M_ARR2", 0)
    p(f"""
    s_sleep 10
    {guld}
    s_waitcnt vmcnt(0)
    s_sub_u32 s73, s73, 1
    s_cmp_lg_u32 s73, 0
    s_cbranch_scc1 M_POLL2
    """)
    p.label("M_POLL2_OK")
    p(f"v_mov_b32 v{GR+1}, v{GR+2}")
    for q in range(1, 4):
        p(f"v_add_f32 v{GR}, v{GR}, v{GR+4*q}\nv_add_f32 v{GR+1}, v{GR+1}, v{GR+4*q+2}")
    rbf(p, GR); rbf(p, GR + 1)
    silu(p, GR, GR, GR + 2)
    rbf(p, GR)
    p(f"v_mul_f32 v{GR}, v{GR}, v{GR+1}")
    rbf(p, GR)
    p(f"""
    s_lshl_b32 s{sT0}, s{sKQ}, 8
    s_add_u32 s{sT0}, s{sT0}, {L_H3}
    v_lshlrev_b32 v{vT0}, 2, v1
    v_add_u32 v{vT0}, s{sT0}, v{vT0}
    ds_write_b32 v{vT0}, v{GR}
    v_lshrrev_b32 v{vT1}, 3, v1
    v_lshlrev_b32 v{vT1}, 2, v{vT1}
    v_add_u32 v{vT1}, s{sT0}, v{vT1}
    s_waitcnt lgkmcnt(0)
    """)
    for i in range(7): p(f"ds_read_b32 v{GR+i}, v{vT1} offset:{i*32}")
    p("s_waitcnt lgkmcnt(0)")
    for i in range(7):
        for j in range(4):
            w = WD + 4 * i + j
            p(f"v_lshlrev_b32 v{T}, 16, v{w}\nv_and_b32 v{T+1}, 0xffff0000, v{w}")
            if i == 0: p(f"v_mul_f32 v{AC+2*j}, v{T}, v{GR}\nv_mul_f32 v{AC+2*j+1}, v{T+1}, v{GR}")
            else: p(f"v_fmac_f32 v{AC+2*j}, v{T}, v{GR+i}\nv_fmac_f32 v{AC+2*j+1}, v{T+1}, v{GR+i}")
    for c in range(8): p(f"v_add_f32_dpp v{AC+c}, v{AC+c}, v{AC+c} row_ror:8 row_mask:0xf bank_mask:0xf")
    for sw in ("v_permlane16_swap_b32", "v_permlane32_swap_b32"):
        for c in range(8): p(f"v_mov_b32 v{SW+c}, v{AC+c}")
        for c in range(8): p(f"{sw} v{AC+c}, v{SW+c}")
        for c in range(8): p(f"v_add_f32 v{AC+c}, v{AC+c}, v{SW+c}")
    p(f"""
    v_and_b32 v{vT0}, 7, v1
    v_lshlrev_b32 v{vT0}, 5, v{vT0}
    s_add_u32 s{sT0}, s{sT0}, 1024
    v_add_u32 v{vT0}, s{sT0}, v{vT0}
    ds_write_b128 v{vT0}, v[{AC}:{AC+3}]
    ds_write_b128 v{vT0}, v[{AC+4}:{AC+7}] offset:16
    v_mov_b32 v{vT0}, {CNT_B}
    v_mov_b32 v{vT1}, 1
    s_waitcnt lgkmcnt(0)
    s_mov_b64 exec, 1
    ds_add_rtn_u32 v{vT2}, v{vT0}, v{vT1}
    s_mov_b64 exec, -1
    s_waitcnt lgkmcnt(0)
    v_readfirstlane_b32 s{sT0}, v{vT2}
    s_cmp_lg_u32 s{sT0}, 3
    s_cbranch_scc1 M_SEND_END
    v_lshlrev_b32 v{vT0}, 2, v1
    v_add_u32 v{vT1}, {L_H3 + 1024}, v{vT0}
    ds_read_b32 v{GR}, v{vT1}
    ds_read_b32 v{GR+1}, v{vT1} offset:256
    ds_read_b32 v{GR+2}, v{vT1} offset:512
    ds_read_b32 v{GR+3}, v{vT1} offset:768
    s_lshl_b32 s{sT0}, s{sKG}, 13
    s_lshl_b32 s{sT1}, s{sCG}, 9
    s_add_u32 s{sT0}, s{sT0}, s{sT1}
    s_add_u32 s{sT0}, s{sT0}, {WS_YP}
    v_lshlrev_b32 v{vT0}, 1, v{vT0}
    v_add_u32 v{vT0}, s{sT0}, v{vT0}
    s_waitcnt lgkmcnt(0)
    v_add_f32 v{GR}, v{GR}, v{GR+1}
    v_add_f32 v{GR+2}, v{GR+2}, v{GR+3}
    v_add_f32 v{GR}, v{GR}, v{GR+2}
    v_mov_b32 v{GR+1}, s{sNON}
    global_store_dwordx2 v{vT0}, v[{GR}:{GR+1}], s[18:19] sc1
    """)
    p.label("M_SEND_END")
    p(f"s_cmp_lg_u32 s{sIT}, 0\ns_cbranch_scc1 M_JOIN0")
    arrive("M_ARR1", 0)
    p("ST3_6")
    p.label("M_JOIN0")
    p(f"s_add_u32 s{sBo}, s{sBo}, {3*65536}")
    p(f"""
    ST3_1
    s_lshr_b32 s{sT0}, s{sRT}, 1
    s_lshl_b32 s{sT0}, s{sT0}, 1
    s_add_u32 s{sT0}, s{sT0}, s{sKH}
    s_lshl_b32 s{sT0}, s{sT0}, 2
    s_add_u32 s{sT0}, s{sT0}, s{sKQ}
    s_lshl_b32 s{sT0}, s{sT0}, 9
    s_add_u32 s{sT0}, s{sT0}, {WS_FLG + 32768}
    v_and_b32 v{vFa}, 3, v1
    v_lshlrev_b32 v{vFa}, 7, v{vFa}
    v_add_u32 v{vFa}, s{sT0}, v{vFa}
    global_load_dword v{vFv}, v{vFa}, s[18:19] sc1
    v_lshlrev_b32 v{vAo}, 4, v1
    s_mov_b32 s{sIT}, 0
    v_lshrrev_b32 v{vT0}, 4, v1
    v_and_b32 v{vT1}, 3, v1
    v_bfe_u32 v{vT3}, v1, 2, 2
    v_lshlrev_b32 v{vRd}, 11, v{vT0}
    v_lshl_add_u32 v{vRd}, v{vT3}, 6, v{vRd}
    v_lshl_add_u32 v{vRd}, v{vT1}, 4, v{vRd}
    v_add_u32 v{vRd2}, s{sMb2}, v{vRd}
    v_add_u32 v{vRd}, s{sMb}, v{vRd}
    """)
    for i in range(128): p(f"v_mov_b32 v{AC3+i}, 0")
    p(f"""
    s_mov_b32 s73, {SPIN_MAX}
M_POLL1:
    s_waitcnt vmcnt(0)
    v_cmp_ne_u32 vcc, s{sNON}, v{vFv}
    s_cbranch_vccz M_POLL1_OK
    s_sleep 2
    global_load_dword v{vFv}, v{vFa}, s[18:19] sc1
    s_sub_u32 s73, s73, 1
    s_cmp_lg_u32 s73, 0
    s_cbranch_scc1 M_POLL1
M_POLL1_OK:
    ST3_2
    """)
    for sl in range(3):
        for i in range(4): p(oload(sl, i))
    p("ST3_3\ns_barrier\nST3_4\ns_waitcnt vmcnt(8)\nST3_5")
    ST(False)
    lq = Q("lgkmcnt", 15)
    if stamp: p("s_waitcnt lgkmcnt(0)")
    def wread(slot, f):
        u, e = f >> 1, f & 1
        r = WF + (f & 3) * 4
        for t in range(2):
            p(f"ds_read_b64_tr_b16 v[{r+2*t}:{r+2*t+1}], v{vRd2 if slot == 3 else vRd} offset:{slot*8192 + t*1024 + u*256 + e*8}")
            lq.issue(("W", f & 3, t))
    LAW = 3
    for f in range(LAW): wread(0, f)
    st0 = list(lq.q)
    p(".p2align 6")
    p.label("M_P3")
    for st in range(4):
        n = (st + 3) & 3
        L = [wdma(n, i, vW) for i in range(4)] + [oload(n, i) for i in range(4)]
        for f in range(8):
            fn = f + LAW; ns = st
            if fn >= 8: fn -= 8; ns = (st + 1) & 3
            lq.wait(p, ("W", f & 3, 1))
            for i in range(4):
                d = AC3 + (i * 8 + f) * 4; a = WF + (f & 3) * 4; b = OR + st * 16 + i * 4
                p(f"v_mfma_f32_16x16x32_bf16 v[{d}:{d+3}], v[{a}:{a+3}], v[{b}:{b+3}], v[{d}:{d+3}]")
                if i == 0: wread(ns, fn)
                if i == 2: p(L[f])
        if st == 3: p(f"s_add_u32 s{sIT}, s{sIT}, 1\ns_cmp_lt_u32 s{sIT}, 4")
        p("s_waitcnt vmcnt(12)\ns_barrier")
    assert lq.q == st0
    p(f"""
    s_cbranch_scc1 M_P3
    s_waitcnt vmcnt(0) lgkmcnt(0)
    s_mul_i32 s{sT0}, s{sKQ}, 24576
    v_add_u32 v{vT0}, s{sT0}, v{vAo}
    v_add_u32 v{vRd2}, 0x10000, v{vAo}
    s_barrier
    """)
    ST(False)
    p("ST4_0")
    RD = 64
    OWN = 16
    OWN = 96
    def red_write(tag):
        for w in range(3): p(f"s_cmp_eq_u32 s{sKQ}, {w}\ns_cbranch_scc1 M_RW{tag}{w}")
        for w in (3, 0, 1, 2):
            if w != 3: p.label(f"M_RW{tag}{w}")
            for kk in range(1, 4):
                i = (w + kk) & 3; slot = 3 - kk
                base = (i * 3 + slot) * 8192
                for f in range(8):
                    q = i * 8 + f
                    off = base + f * 1024
                    p(f"ds_write_b128 v{vRd2 if off >= 65536 else vAo}, v[{AC3+4*q}:{AC3+4*q+3}] offset:{off & 0xffff}")
            for c in range(32): p(f"v_mov_b32 v{OWN+c}, v{AC3+w*32+c}")
            if w != 2: p(f"s_branch M_RJ{tag}")
        p.label(f"M_RJ{tag}")
    def red_read(after=None):
        for half in range(2):
            T0 = AC3 + half * 48
            for sl in range(3):
                for ff in range(4):
                    r = T0 + (sl * 4 + ff) * 4
                    p(f"ds_read_b128 v[{r}:{r+3}], v{vT0} offset:{sl*8192 + (half*4+ff)*1024}")
            if half == 0: continue
        for half in range(2):
            T0 = AC3 + half * 48
            for sl in range(3):
                n = 24 - (half * 12 + sl * 4 + 4)
                p(f"s_waitcnt lgkmcnt({min(n, 15)})")
                for c in range(16): p(f"v_add_f32 v{OWN+half*16+c}, v{OWN+half*16+c}, v{T0+sl*16+c}")
            if after: after(half)
    p(f"""
    s_cmp_eq_u32 s{sMH}, s{sKH}
    s_cbranch_scc1 M_KEEP1
    """)
    red_write("S")
    p("s_waitcnt lgkmcnt(0)\nST4_1\ns_barrier\nST4_2")
    p(f"""
    s_lshl_b32 s{sT0}, s2, 2
    s_add_u32 s{sT0}, s{sT0}, s{sKQ}
    s_lshl_b32 s{sT1}, s{sT0}, 13
    s_add_u32 s{sT1}, s{sT1}, {WS_EX}
    v_add_u32 v{vFa}, s{sT1}, v{vAo}
    v_add_u32 v{vFv}, 4096, v{vFa}
    s_lshl_b32 s{sT0}, s{sT0}, 7
    s_add_u32 s{sT0}, s{sT0}, {WS_FLG2}
    v_mov_b32 v{vT2}, s{sT0}
    v_mov_b32 v{vT3}, s{sNON}
    """)
    def sst(half):
        for f in range(4 * half, 4 * half + 4):
            p(f"global_store_dwordx4 v{vFv if f >= 4 else vFa}, v[{OWN+4*f}:{OWN+4*f+3}], s[18:19] offset:{(f&3)*1024} sc1")
    red_read(sst)
    p(f"""
    ST4_3
    s_barrier
    ST4_4
    s_waitcnt vmcnt(0)
    ST4_5
    ST4_6
    ST4_7
    s_mov_b64 exec, 1
    global_store_dword v{vT2}, v{vT3}, s[18:19] sc1
    s_mov_b64 exec, -1
    """)
    if stamp:
        p("s_memrealtime s[98:99]")
        stamp_out(p, 0x3000000)
    p("s_branch K2_END")
    p.label("M_KEEP1")
    p(f"""
    s_barrier
    s_xor_b32 s{sT0}, s2, 1
    s_lshl_b32 s{sT0}, s{sT0}, 2
    s_add_u32 s{sT0}, s{sT0}, s{sKQ}
    s_lshl_b32 s{sT1}, s{sT0}, 13
    s_add_u32 s{sT1}, s{sT1}, {WS_EX}
    v_add_u32 v{vFa}, s{sT1}, v{vAo}
    v_add_u32 v{vFv}, 4096, v{vFa}
    s_lshl_b32 s{sT0}, s{sT0}, 7
    s_add_u32 s{sT0}, s{sT0}, {WS_FLG2}
    v_mov_b32 v{vT2}, s{sT0}
    s_barrier
    """)
    p("ST4_1")
    red_write("K")
    p(f"global_load_dword v{vT3}, v{vT2}, s[18:19] sc1")
    p(f"""
    v_mov_b32 v64, {CNT_B}
    v_mov_b32 v65, 1
    s_waitcnt lgkmcnt(0)
    ST4_2
    s_mov_b64 exec, 1
    ds_add_u32 v64, v65
    s_mov_b64 exec, -1
    s_mov_b32 s73, {SPIN_MAX*16}
M_B4:
    ds_read_b32 v66, v64
    s_waitcnt lgkmcnt(0)
    v_readfirstlane_b32 s{sT0}, v66
    s_cmp_ge_u32 s{sT0}, 8
    s_cbranch_scc1 M_B4_OK
    s_sub_u32 s73, s73, 1
    s_cmp_lg_u32 s73, 0
    s_cbranch_scc1 M_B4
M_B4_OK:
    ST4_3
    """)
    PR = 224
    prl = "\n".join(f"global_load_dwordx4 v[{PR+4*f}:{PR+4*f+3}], v{vFv if f >= 4 else vFa}, s[18:19] offset:{(f&3)*1024} sc1" for f in range(8))
    p(f"""
    s_waitcnt vmcnt(0)
    v_cmp_ne_u32 vcc, s{sNON}, v{vT3}
    s_mov_b32 s{sIT}, 0
    s_cbranch_vccnz M_PRL
    s_mov_b32 s{sIT}, 1
    {prl}
M_PRL:
    """)
    red_read()
    p(f"""
    s_lshl_b32 s{sT0}, s{sRT}, 1
    s_add_u32 s{sT0}, s{sT0}, s{sKH}
    s_lshl_b32 s{sT0}, s{sT0}, 2
    s_add_u32 s{sT0}, s{sT0}, s{sKQ}
    s_lshr_b32 s{sT1}, s{sIDX}, 4
    s_cmp_lg_u32 s{sT0}, s{sT1}
    s_cbranch_scc1 M_H5
    s_mov_b32 s73, {SPIN_MAX}
M_POLL3:
    s_lshl_b32 s{sT0}, s{sCT}, 10
    s_add_u32 s{sT0}, s{sT0}, {WS_YP}
    v_add_u32 v26, s{sT0}, v{vAo}
    """)
    YR = 128
    for q in range(16):
        p(f"global_load_dwordx4 v[{YR+4*q}:{YR+4*q+3}], v26, s[18:19] sc1")
        if q < 15: p(f"v_add_u32 v26, 8192, v26")
    p(f"s_waitcnt vmcnt(0)\nv_mov_b32 v27, 0")
    for q in range(16):
        p(f"v_xor_b32 v{YR+4*q+1}, s{sNON}, v{YR+4*q+1}\nv_xor_b32 v{YR+4*q+3}, s{sNON}, v{YR+4*q+3}")
        p(f"v_or3_b32 v27, v27, v{YR+4*q+1}, v{YR+4*q+3}")
    p(f"""
    v_cmp_ne_u32 vcc, 0, v27
    s_cbranch_vccz M_POLL3_OK
    s_sleep 10
    s_sub_u32 s73, s73, 1
    s_cmp_lg_u32 s73, 0
    s_cbranch_scc1 M_POLL3
M_POLL3_OK:
    s_lshr_b32 s{sT0}, s{sIDX}, 4
    s_lshl_b32 s{sT0}, s{sT0}, 15
    s_lshl_b32 s{sT1}, s{sCT}, 12
    s_add_u32 s{sT0}, s{sT0}, s{sT1}
    s_and_b32 s{sT1}, s{sIDX}, 15
    s_lshl_b32 s{sT1}, s{sT1}, 4
    s_add_u32 s{sT0}, s{sT0}, s{sT1}
    v_lshrrev_b32 v26, 2, v1
    v_lshlrev_b32 v26, 8, v26
    v_and_b32 v27, 3, v1
    v_lshl_add_u32 v26, v27, 2, v26
    v_add_u32 v26, s{sT0}, v26
    global_load_dword v24, v26, s[18:19] sc1
    s_and_b32 s{sT0}, s{sKEY}, 0xffff0000
    s_ashr_i32 s{sT1}, s{sT0}, 31
    s_not_b32 s{sT1}, s{sT1}
    s_or_b32 s{sT1}, s{sT1}, 0x80000000
    s_xor_b32 s{sT0}, s{sT0}, s{sT1}
    s_and_b32 s{sT0}, s{sT0}, 0xffff0000
    v_mov_b32 v25, s{sT0}
    v_mul_f32 v25, 0xbfb8aa3b, v25
    v_exp_f32 v25, v25
    v_add_f32 v25, 1.0, v25
    v_rcp_f32 v25, v25
    """)
    rbf(p, 25)
    p(f"v_mov_b32 v16, v{YR}\nv_mov_b32 v17, v{YR+2}")
    for q in range(1, 16):
        p(f"v_add_f32 v16, v16, v{YR+4*q}\nv_add_f32 v17, v17, v{YR+4*q+2}")
    p("s_waitcnt vmcnt(0)\nv_lshlrev_b32 v18, 16, v24\nv_and_b32 v19, 0xffff0000, v24")
    for c in range(2):
        rbf(p, 16 + c)
        p(f"v_mul_f32 v{16+c}, v{16+c}, v25")
        rbf(p, 16 + c)
        p(f"v_add_f32 v{16+c}, v{16+c}, v{18+c}")
        rbf(p, 16 + c)
        silu(p, 16 + c, 16 + c, 20 + c)
    p(f"""
    v_cvt_pk_bf16_f32 v16, v16, v17
    v_lshlrev_b32 v26, 2, v1
    v_add_u32 v26, {L_H3 + 4096}, v26
    ds_write_b32 v26, v16
    v_lshrrev_b32 v27, 4, v1
    v_lshlrev_b32 v27, 4, v27
    v_add_u32 v27, {L_H3 + 4096}, v27
    v_and_b32 v26, 15, v1
    s_and_b32 s{sT0}, s{sIDX}, 15
    v_cmp_eq_u32 vcc, s{sT0}, v26
    s_waitcnt lgkmcnt(0)
    """)
    for u in range(4): p(f"ds_read_b128 v[{64+4*u}:{67+4*u}], v27 offset:{u*64}")
    p("s_waitcnt lgkmcnt(0)")
    for c in range(16): p(f"v_cndmask_b32 v{GP+c}, v{GP+c}, v{64+c}, vcc")
    p.label("M_H5")
    XU = 128; GU_ = 160
    for j in range(16):
        p(f"v_lshlrev_b32 v{XU+2*j}, 16, v{XP+j}\nv_and_b32 v{XU+2*j+1}, 0xffff0000, v{XP+j}")
        p(f"v_lshlrev_b32 v{GU_+2*j}, 16, v{GP+j}\nv_and_b32 v{GU_+2*j+1}, 0xffff0000, v{GP+j}")
    p(f"""
    ST4_4
    s_cmp_lg_u32 s{sIT}, 0
    s_cbranch_scc1 M_POLL4_DONE
    s_mov_b32 s73, {SPIN_MAX}
M_POLL4:
    global_load_dword v{vT3}, v{vT2}, s[18:19] sc1
    s_waitcnt vmcnt(0)
    v_cmp_ne_u32 vcc, s{sNON}, v{vT3}
    s_cbranch_vccz M_POLL4_OK
    s_sleep 1
    s_sub_u32 s73, s73, 1
    s_cmp_lg_u32 s73, 0
    s_cbranch_scc1 M_POLL4
M_POLL4_OK:
    {prl}
M_POLL4_DONE:
    ST4_5
    """)
    for u in range(4):
        p(f"s_waitcnt vmcnt({6 - 2*u + u})")
        for c in range(8): p(f"v_add_f32 v{OWN+8*u+c}, v{OWN+8*u+c}, v{PR+8*u+c}")
        for c in range(8): p(f"v_fmac_f32 v{XU+8*u+c}, v{OWN+8*u+c}, v{GU_+8*u+c}")
        o = 16 + u * 4
        for j in range(4): p(f"v_cvt_pk_bf16_f32 v{o+j}, v{XU+u*8+2*j}, v{XU+u*8+2*j+1}")
        p(f"global_store_dwordx4 v{vOut}, v[{o}:{o+3}], s[78:79] offset:{u*64} sc1")
    if DBGT[0] and stamp:
        p(f"""
    s_waitcnt vmcnt(0)
    s_memrealtime s[98:99]
    s_memtime s[62:63]
    s_lshl_b32 s60, s2, 3
    s_add_u32 s60, s60, s{sW}
    s_cmp_lg_u32 s60, {37*8+4}
    s_cbranch_scc1 M_DBGE
    s_waitcnt lgkmcnt(0)
    v_mov_b32 v16, 0
    """)
        for i in range(7):
            p(f"s_sub_u32 s60, s{82+2*i}, s{80+2*i}\nv_mov_b32 v17, s60\nglobal_store_dword v16, v17, s[66:67] offset:{8+4*i}")
        p("s_sub_u32 s60, s62, s94\nv_mov_b32 v17, s60\nglobal_store_dword v16, v17, s[66:67] offset:36")
        p("s_sub_u32 s60, s98, s96\nv_mov_b32 v17, s60\nglobal_store_dword v16, v17, s[66:67] offset:40")
        p.label("M_DBGE")
    elif DBGT[0]:
        p(f"""
    s_waitcnt vmcnt(0)
    s_memrealtime s[98:99]
    s_waitcnt lgkmcnt(0)
    v_mov_b32 v16, 4
    v_mov_b32 v17, s98
    s_mov_b64 exec, 1
    global_atomic_umax v16, v17, s[66:67] sc1
    s_mov_b64 exec, -1
    """)
    if stamp:
        p("ST4_6\ns_waitcnt vmcnt(0)\nST4_7\ns_memrealtime s[98:99]")
        stamp_out(p, 0x3000000)

def stamp_out(p, base):
    p(f"""
    s_waitcnt lgkmcnt(0)
    s_lshl_b32 s{sT0}, s2, 3
    s_add_u32 s{sT0}, s{sT0}, s{sW}
    s_lshl_b32 s{sT0}, s{sT0}, 6
    s_add_u32 s{sT0}, s{sT0}, {base}
    v_mov_b32 v{vT0}, s{sT0}
    """)
    for i in range(10):
        p(f"v_mov_b32 v{vT1}, s{80+2*i}\nglobal_store_dword v{vT0}, v{vT1}, s[18:19] offset:{4*i}")

def gen_mega(ffn=True, slow=True, stamp=False, dbg=()):
    p = Prog()
    stamps = []
    mode0 = 'st0' in dbg or 'st1' in dbg
    MODE0[0] = mode0
    DBGT[0] = 'dbgt' in dbg
    NOEW[0] = 'noew' in dbg
    MODE3[0] = 'st3' in dbg
    def ST0():
        if stamp and mode0 and 'st1' not in dbg:
            i = len(stamps); stamps.append(i)
            p(f"s_memtime s[{80+2*i}:{81+2*i}]")
    global _ST0
    _ST0 = ST0
    def ST(wait=True):
        if stamp and mode0 and len(stamps) > 0:
            if wait: p("s_waitcnt lgkmcnt(0)")
            return
        if stamp:
            i = len(stamps); stamps.append(i)
            if not (MODE3[0] and i == 6): p(f"s_memtime s[{80+2*i}:{81+2*i}]")
            if i == 0: p("s_memrealtime s[96:97]")
            if wait: p("s_waitcnt lgkmcnt(0)")
    name = KNAME
    kernel_header(p, name)
    p(f"""
    s_getpc_b64 s[{sPC}:{sPC+1}]
    s_cmp_ge_u32 s2, 256
    s_cbranch_scc1 K2_END
    s_load_dwordx2 s[74:75], s[0:1], 0
    s_load_dwordx2 s[76:77], s[0:1], 48
    s_load_dwordx4 s[8:11], s[0:1], 24
    s_load_dwordx2 s[18:19], s[0:1], 96
    s_load_dwordx4 s[4:7], s[0:1], 8
    s_load_dwordx4 s[12:15], s[0:1], 56
    s_load_dwordx2 s[16:17], s[0:1], 72
    s_load_dwordx2 s[78:79], s[0:1], 80
    s_load_dwordx2 s[66:67], s[0:1], 88
    s_setprio 3
    v_lshrrev_b32 v{vT2}, 6, v0
    v_and_b32 v1, 63, v0
    v_readfirstlane_b32 s{sW}, v{vT2}
    s_and_b32 s{sT0}, s2, 7
    s_lshr_b32 s{sT1}, s2, 3
    s_lshr_b32 s{sG}, s{sT0}, 1
    s_and_b32 s{sT0}, s{sT0}, 1
    s_lshl_b32 s{sT0}, s{sT0}, 2
    s_lshr_b32 s{sT2}, s{sT1}, 3
    s_add_u32 s{sRB}, s{sT0}, s{sT2}
    s_and_b32 s{sT1}, s{sT1}, 7
    s_lshl_b32 s{sHEAD}, s{sG}, 3
    s_add_u32 s{sHEAD}, s{sHEAD}, s{sT1}
    s_lshl_b32 s{sFL}, s{sRB}, 5
    s_add_u32 s{sFL}, s{sFL}, s{sHEAD}
    """)
    ST(False)
    p(f"""
    s_bfe_u32 s{sT0}, s2, 0x30003
    s_lshl_b32 s{sT0}, s{sT0}, 3
    s_add_u32 s{sT0}, s{sT0}, s{sW}
    s_lshl_b32 s{sT0}, s{sT0}, 10
    v_and_b32 v{E+1}, 7, v1
    v_lshlrev_b32 v{E+1}, 7, v{E+1}
    v_add_u32 v{E+1}, s{sT0}, v{E+1}
    v_min_u32 v{E+1}, CODESIZE, v{E+1}
    global_load_dword v{E}, v{E+1}, s[{sPC}:{sPC+1}]
    v_lshrrev_b32 v{vT0}, 4, v1
    v_and_b32 v{vT1}, 3, v1
    v_lshlrev_b32 v{vT1}, 4, v{vT1}
    v_lshl_add_u32 v{vT1}, v{vT0}, 6, v{vT1}
    v_bfe_u32 v{vT3}, v1, 2, 2
    v_lshl_add_u32 v{vDq}, v{vT3}, 13, v{vT1}
    v_and_b32 v{vDq2}, 1, v{vT2}
    v_lshlrev_b32 v{vDq2}, 5, v{vDq2}
    v_xor_b32 v{vDq}, v{vDq}, v{vDq2}
    v_add_u32 v{vDq2}, {32768-1024}, v{vDq}
    v_lshrrev_b32 v{vXB1}, 3, v1
    v_and_b32 v{vXD}, 7, v1
    v_xor_b32 v{vXD}, v{vXD}, v{vT0}
    v_lshlrev_b32 v{vXD}, 4, v{vXD}
    v_lshl_add_u32 v{vXD}, v{vXB1}, 11, v{vXD}
    v_xor_b32 v{vXD+1}, 64, v{vXD}
    v_add_u32 v{vXD+1}, {16384-1024}, v{vXD+1}
    v_add_u32 v{vXD+2}, {32768-2048}, v{vXD}
    v_add_u32 v{vXD+3}, {32768-2048}, v{vXD+1}
    s_lshl_b32 s{sXM}, s{sW}, 12
    s_add_u32 s{sXM}, s{sXM}, {L_X}
    s_lshl_b32 s{sWq}, s{sW}, 16
    s_lshl_b32 s{sM}, s{sW}, 11
    s_mov_b32 s{sB}, 0
    s_lshl_b32 s{sT0}, s{sHEAD}, 8
    s_lshl_b32 s{sT1}, s{sRB}, 3
    s_add_u32 s{sT1}, s{sT1}, s{sW}
    s_lshl_b32 s{sT1}, s{sT1}, 16
    s_mov_b32 s{SRD_WQ+3}, 0x20000
    s_sub_u32 s{SRD_WQ+2}, 0x800000, s{sT0}
    s_mov_b32 s{SRD_XN+2}, 0x10000
    s_mov_b32 s{SRD_XN+3}, 0x20000
    v_lshlrev_b32 v{E+2}, 4, v1
    v_lshl_add_u32 v{vLXA}, v{vT2}, 11, v{E+2}
    s_lshl_b32 s{sT2}, s{sFL}, 14
    v_add_u32 v{vLXA}, s{sT2}, v{vLXA}
    s_memrealtime s[{sT2}:{sT3}]
    s_waitcnt lgkmcnt(0)
    s_add_u32 s{SRD_WQ}, s8, s{sT0}
    s_addc_u32 s{SRD_WQ+1}, s9, 0
    s_add_u32 s{SRD_XN}, s74, s{sT1}
    s_addc_u32 s{SRD_XN+1}, s75, 0
    """)
    def dma_wq(slot, e):
        if e == 0:
            return f"""s_add_u32 m0, s{sM}, {slot*16384}
    s_nop 0
    buffer_load_dwordx4 v{vDq}, s[{SRD_WQ}:{SRD_WQ+3}], s{sWq} offen lds"""
        return f"""s_add_u32 m0, s{sM}, {slot*16384}
    s_nop 0
    buffer_load_dwordx4 v{vDq2}, s[{SRD_WQ}:{SRD_WQ+3}], s{sWq} offen offset:1024 lds
    s_add_u32 s{sWq}, s{sWq}, 524288"""
    def load_b(buf, k):
        t = ""
        if k == 0: t = f"s_add_u32 m0, s{sXM}, {(buf & 1)*32768}\ns_nop 0\n"
        t += f"buffer_load_dwordx4 v{vXD+k}, s[{SRD_XN}:{SRD_XN+3}], s{sB} offen offset:{k*1024} lds"
        if k == 3: t += f"\ns_add_u32 s{sB}, s{sB}, 128"
        return t
    lq = Q("lgkmcnt", 15); vq = Q("vmcnt", 63)
    vq.issue(("CP", 0))
    def J(tag, code): p(code); vq.issue(tag)
    LXj = lambda n: (("LX", n), f"global_load_dwordx4 v[{LN_X+4*n}:{LN_X+4*n+3}], v{vLXA}, s[74:75] offset:{n*1024}")
    CSj = lambda n: (("CS", n), f"s_mov_b32 s{sT3}, {n*0x200000}\nbuffer_load_dwordx4 v[{CSR+4*n}:{CSR+4*n+3}], v{vCSA}, s[{SRD_WQ}:{SRD_WQ+3}], s{sT3} offen")
    WRj = lambda n: (("LX", 2 + n), f"global_load_dwordx4 v[{LN_W+4*n}:{LN_W+4*n+3}], v{E+2}, s[76:77] offset:{n*1024}")
    J(*LXj(0)); J(*LXj(1)); J(*WRj(0)); J(*WRj(1))
    J(("W", 0, 0), dma_wq(0, 0)); J(("W", 0, 1), dma_wq(0, 1))
    for kk in range(4): J(("X", 0, kk), load_b(0, kk))
    J(("W", 1, 0), dma_wq(1, 0)); J(("W", 1, 1), dma_wq(1, 1))
    ST0()
    p("s_setprio 0")
    p(f"s_mov_b32 s{sKEY}, s{sT2}\ns_mov_b32 s{sIDX}, s{sT0}")
    partA1, partA2, partB = ln_segments(lq, vq, p)
    for it_ in partA1 + partB:
        if callable(it_): it_()
        else: p(it_)
    p(f"s_mov_b32 s{sT2}, s{sKEY}\ns_mov_b32 s{sT0}, s{sIDX}")
    ST0()
    for kk in range(4): J(("X", 1, kk), load_b(1, kk))
    J(("W", 2, 0), dma_wq(2, 0)); J(("W", 2, 1), dma_wq(2, 1))
    p(f"""
    s_or_b32 s{sT3}, s2, s{sW}
    s_cmp_lg_u32 s{sT3}, 0
    s_cbranch_scc1 M_NONZ
    s_or_b32 s{sT2}, s{sT2}, 1
    v_mov_b32 v{E+2}, 0
    v_mov_b32 v{E+3}, s{sT2}
    s_mov_b64 exec, 1
    global_store_dword v{E+2}, v{E+3}, s[66:67] sc1
    s_mov_b64 exec, -1
M_NONZ:
    v_bfe_u32 v{E+1}, v0, 4, 3
    v_lshlrev_b32 v{E+1}, 13, v{E+1}
    v_lshrrev_b32 v{vNON}, 7, v0
    v_lshl_add_u32 v{E+1}, v{vNON}, 19, v{E+1}
    v_and_b32 v{vNON}, 15, v0
    v_lshl_add_u32 v{E+1}, v{vNON}, 4, v{E+1}
    s_lshl_b32 s{sT2}, s{sRB}, 16
    v_add_u32 v{vCSA}, s{sT2}, v{E+1}
    """)
    J(*CSj(0 if 'cs0' in dbg else 1))
    if 'cs01' in dbg: J(*CSj(0))
    ST0()
    p(f"""
    v_bfe_u32 v{vXB1}, v1, 1, 3
    v_xor_b32 v{vXB1}, v{vXB1}, v{vT0}
    v_lshlrev_b32 v{vXB1}, 4, v{vXB1}
    v_and_b32 v{vXB0}, 15, v1
    v_lshl_add_u32 v{vXB0}, v{vXB0}, 7, v{vXB1}
    v_add_u32 v{vXB0}, s{sXM}, v{vXB0}
    v_xor_b32 v{vXB1}, 64, v{vXB0}
    v_lshl_add_u32 v{vDv}, v{vT3}, 8, v{vT1}
    v_mul_u32_u24 v{vDf}, {8*7168}, v{vT0}
    v_and_b32 v{vT1}, 15, v1
    v_lshl_add_u32 v{vDf}, v{vT1}, 4, v{vDf}
    v_and_b32 v{vT0}, 3, v1
    v_lshrrev_b32 v{vT1}, 2, v1
    v_lshlrev_b32 v{vT1}, 4, v{vT1}
    v_lshl_add_u32 v{vDk}, v{vT0}, 8, v{vT1}
    v_lshrrev_b32 v{vT1}, 4, v1
    v_lshlrev_b32 v{vA0}, 11, v{vT1}
    v_lshl_add_u32 v{vA0}, v{vT3}, 6, v{vA0}
    v_lshl_add_u32 v{vA0}, v{vT0}, 3, v{vA0}
    v_and_b32 v{vT1}, 1, v{vT1}
    v_lshl_add_u32 v{vA0}, v{vT1}, 5, v{vA0}
    v_xor_b32 v{vA1}, 32, v{vA0}
    v_bfe_u32 v{vT0}, v1, 1, 1
    v_and_b32 v{vT2}, 1, v1
    v_lshl_add_u32 v{vT0}, v{vT2}, 1, v{vT0}
    v_lshl_add_u32 v{vT0}, v{vT1}, 2, v{vT0}
    v_lshlrev_b32 v{vT0}, 3, v{vT0}
    v_lshl_add_u32 v{vT0}, v{vT3}, 6, v{vT0}
    v_lshrrev_b32 v{vT1}, 5, v1
    v_lshl_add_u32 v{vVa}, v{vT1}, 10, v{vT0}
    v_add_u32 v{vVb}, {L_X}, v{vVa}
    v_bfe_u32 v{vT0}, v1, 2, 3
    v_mul_u32_u24 v{vT0}, 1088, v{vT0}
    v_lshl_add_u32 v{vT0}, v{vT1}, 6, v{vT0}
    v_and_b32 v{vKb}, 3, v1
    v_lshl_add_u32 v{vKb}, v{vKb}, 4, v{vT0}
    v_add_u32 v{vKh}, {L_HI}, v{vKb}
    v_add_u32 v{vKb}, {L_X}, v{vKb}
    v_bfe_u32 v{vT0}, v1, 4, 1
    v_lshlrev_b32 v{vT0}, 10, v{vT0}
    v_lshl_add_u32 v{vT0}, v{vT1}, 8, v{vT0}
    v_and_b32 v{vO}, 15, v1
    v_lshl_add_u32 v{vO}, v{vO}, 4, v{vT0}
    s_lshl_b32 s{sT0}, s{sG}, 19
    s_add_u32 s{sT0}, s{sT0}, 393216
    s_add_u32 s{SRD_K}, s4, s{sT0}
    s_addc_u32 s{SRD_K+1}, s5, 0
    s_mov_b32 s{SRD_K+2}, 0x20000
    s_mov_b32 s{SRD_K+3}, 0x20000
    s_add_u32 s{SRD_V}, s6, s{sT0}
    s_addc_u32 s{SRD_V+1}, s7, 0
    s_mov_b32 s{SRD_V+2}, 0x20000
    s_mov_b32 s{SRD_V+3}, 0x20000
    s_add_u32 s{SRD_OT}, s18, {WS_OT}
    s_addc_u32 s{SRD_OT+1}, s19, 0
    s_mov_b32 s{SRD_OT+2}, 0x1000000
    s_mov_b32 s{SRD_OT+3}, 0x20000
    s_mul_i32 s{sKw}, s{sW}, 1088
    s_lshl_b32 s{sVw}, s{sW}, 10
    s_mov_b32 s{sKsrc}, s{sVw}
    s_mov_b32 s{sVsrc}, s{sVw}
    s_mov_b32 s{sN}, 0
    s_mov_b32 s{sPL}, 0x05040100
    s_mov_b32 s{sPH}, 0x07060302
    s_lshr_b32 s{sT0}, s2, 2
    s_and_b32 s{sT1}, s2, 3
    s_cmp_ge_u32 s{sT0}, 28
    s_cselect_b32 s{SRD_F}, s14, s12
    s_cselect_b32 s{SRD_F+1}, s15, s13
    s_cselect_b32 s{sT2}, 28, 0
    s_sub_u32 s{sT2}, s{sT0}, s{sT2}
    s_lshl_b32 s{sT2}, s{sT2}, 8
    s_mul_i32 s{sT3}, s{sT1}, {256*7168}
    s_add_u32 s{sT2}, s{sT2}, s{sT3}
    s_add_u32 s{SRD_F}, s{SRD_F}, s{sT2}
    s_addc_u32 s{SRD_F+1}, s{SRD_F+1}, 0
    s_cmp_lt_u32 s2, 224
    s_cselect_b32 s{SRD_F+2}, {255*7168+256}, 0
    s_mov_b32 s{SRD_F+3}, 0x20000
    s_mul_i32 s{sFsrc}, s{sW}, {32*7168}
    s_lshl_b32 s{sOT}, s{sHEAD}, 19
    s_lshl_b32 s{sT1}, s{sRB}, 14
    s_add_u32 s{sOT}, s{sOT}, s{sT1}
    s_lshl_b32 s{sT1}, s{sW}, 11
    s_add_u32 s{sOT}, s{sOT}, s{sT1}
    """)
    ST0()
    vq.wait(p, ("W", 1, 1)); lq.wait(p, ("LW", 2))
    ST0()
    p("s_barrier")
    ST0()
    if 'st1' in dbg: p("s_memtime s[80:81]")
    ST()
    def a_read(slot, T, u, t):
        r = AF + (T & 3) * 8 + u * 4 + t * 2
        p(f"ds_read_b64_tr_b16 v[{r}:{r+1}], v{vA1 if T & 1 else vA0} offset:{slot*16384 + u*8192 + t*1024 + (T>>1)*256}")
        lq.issue(("A", T & 3, u, t))
    def job_k(t):
        return (("K", t), f"""s_add_u32 m0, s{sKw}, {Kabs(t)}
    s_nop 0
    buffer_load_dwordx4 v{vDk}, s[{SRD_K}:{SRD_K+3}], s{sKsrc} offen lds
    s_add_u32 s{sKsrc}, s{sKsrc}, 8192""")
    def job_v(t):
        return (("V", t), f"""s_add_u32 m0, s{sVw}, {Vabs(t)}
    s_nop 0
    buffer_load_dwordx4 v{vDv}, s[{SRD_V}:{SRD_V+3}], s{sVsrc} offen lds
    s_add_u32 s{sVsrc}, s{sVsrc}, 8192""")
    def job_f(i):
        return (("F", i), f"""buffer_load_dwordx4 v[{FR+4*i}:{FR+4*i+3}], v{vDf}, s[{SRD_F}:{SRD_F+3}], s{sFsrc} offen
    s_add_u32 s{sFsrc}, s{sFsrc}, 7168""")
    def run(job):
        if not job: return
        if isinstance(job, str): p(job); return
        if callable(job): job(); return
        tag, code = job
        p(code); vq.issue(tag)
    def k_read(t, j):
        if 'nok' in dbg: return
        r = KF + (j % D) * 4
        ka = Kabs(t); kb, ko = (vKh, ka - L_HI) if ka >= L_HI else (vKb, ka - L_X)
        p(f"ds_read_b128 v[{r}:{r+3}], v{kb} offset:{ko + j*128}")
        lq.issue(("K", j % D))
    def v_read(t, i):
        if 'nov' in dbg: return
        ks, dt = i >> 2, i & 3
        r = VF + (i % D) * 4
        o = Vabs(t); va = vVa
        if o >= L_X: o -= L_X; va = vVb
        p(f"ds_read_b64_tr_b16 v[{r}:{r+1}], v{va} offset:{o + ks*4096 + dt*256}")
        lq.issue(("Va", i % D))
        p(f"ds_read_b64_tr_b16 v[{r+2}:{r+3}], v{va} offset:{o + ks*4096 + 2048 + dt*256}")
        lq.issue(("V", i % D))
    LA = 3 if 'la3' in dbg else 2
    def b_read(buf, k):
        ct, u = k >> 1, k & 1
        r = BRr(buf, k)
        p(f"ds_read_b128 v[{r}:{r+3}], v{vXB1 if u else vXB0} offset:{(buf & 1)*32768 + ct*2048}")
        lq.issue(("B", buf & 1, k))
    for T in range(LA):
        for u in range(2):
            for t in range(2): a_read(0, T, u, t)
        if T < 2: b_read(0, 2 * T); b_read(0, 2 * T + 1)
    fill = []
    FILLRATE = 1
    CSSTART = 4
    for d_ in dbg:
        if d_.startswith('fr'): FILLRATE = float(d_[2:])
    fillacc = [0.0]
    barpassed = [0]
    def stage(slot, vm, last=False, xw="s_waitcnt vmcnt(8)", first=False, vm2=()):
        for T in range(8):
            a = AF + (T & 3) * 8
            Tn = T + LA; ns = slot
            if Tn >= 8: Tn -= 8; ns = (slot + 1) & 3
            rd = not (last and T + LA >= 8)
            k = 0
            for ct in range(2):
                for u in range(2):
                    d = QA + (T * 2 + ct) * 4; b = BRr(slot, ct * 2 + u)
                    if 'w1' in dbg: lq.wait(p, ("A", T & 3, 1, 1), ("B", slot & 1, 3))
                    lq.wait(p, ("A", T & 3, u, 1), ("B", slot & 1, ct * 2 + u))
                    cc = "0" if (first and u == 0) else f"v[{d}:{d+3}]"
                    p(f"v_mfma_f32_16x16x32_bf16 v[{d}:{d+3}], v[{a+4*u}:{a+4*u+3}], v[{b}:{b+3}], {cc}")
                    if rd: a_read(ns, Tn, k >> 1, k & 1)
                    fillacc[0] += FILLRATE
                    while fillacc[0] >= 1.0:
                        fillacc[0] -= 1.0
                        if fill and fill[0] == "BAR":
                            if barpassed[0] >= 1: fill.pop(0)
                        if fill and fill[0] != "BAR": run(fill.pop(0))
                    if k == 1 and T < len(vm2): run(vm2[T])
                    k += 1
            if T < len(vm): run(vm[T])
            if not last:
                if T == 6:
                    run(xw); b_read(slot + 1, 0); b_read(slot + 1, 1)
                if T == 7:
                    b_read(slot + 1, 2); b_read(slot + 1, 3)
    def std_vm(slot):
        n = (slot + 3) & 3
        return [load_b(slot, 0), load_b(slot, 1), load_b(slot, 2), load_b(slot, 3), dma_wq(n, 0), dma_wq(n, 1)]
    xwait = lambda tag: (lambda: vq.wait(p, tag))
    def tagged(i):
        sv = std_vm(i & 3)
        return [(("X", i + 2, kk), sv[kk]) for kk in range(4)] + [(("W", i + 3, 0), sv[4]), (("W", i + 3, 1), sv[5])]
    kvpf = (("KP", 0), f"""s_lshr_b32 s{sT2}, s{sFL}, 6
    s_lshl_b32 s{sT2}, s{sT2}, 19
    s_and_b32 s{sT3}, s{sFL}, 63
    s_lshl_b32 s{sT3}, s{sT3}, 11
    s_add_u32 s{sT2}, s{sT2}, s{sT3}
    s_add_u32 s{sT2}, s{sT2}, 393216
    v_lshlrev_b32 v{E+3}, 2, v0
    v_add_u32 v{E+3}, s{sT2}, v{E+3}
    global_load_dword v{E}, v{E+3}, s[4:5]""")
    kvpf2 = (("KP", 1), f"global_load_dword v{E}, v{E+3}, s[6:7]")
    nonld = f"""s_cmp_lg_u32 s{sW}, 0
    s_cbranch_scc1 M_NL1
    v_mov_b32 v{E+2}, 0
    global_load_dword v{vNON}, v{E+2}, s[66:67] sc1
M_NL1:"""
    def nonchk():
        p(f"""
    s_cmp_lg_u32 s{sW}, 0
    s_cbranch_scc1 M_NL2
    v_readfirstlane_b32 s{sNON}, v{vNON}
    s_cmp_lg_u32 s{sNON}, 0
    s_cbranch_scc1 M_NSPIN_OK
    v_mov_b32 v{E+2}, 0
    """)
        get_nonce(p, "M_NSPIN", E + 2, vNON)
        p(f"""
    v_mov_b32 v{E+2}, {L_SC + 16416}
    ds_write_b32 v{E+2}, v{vNON}
    s_waitcnt lgkmcnt(0)
M_NL2:
    """)
    def nonrd():
        p(f"v_mov_b32 v{E+2}, {L_SC + 16416}\nds_read_b32 v{vNON}, v{E+2}"); lq.issue(("NR", 0))
    def nonrd2():
        lq.wait(p, ("NR", 0)); p(f"v_readfirstlane_b32 s{sNON}, v{vNON}")
    seg1, seg2 = pub_segments(lq, vq, p)
    extra1 = {0: [None if 'cs01' in dbg else CSj(1 if 'cs0' in dbg else 0)], 1: [CSj(2), nonld], 2: [CSj(3), kvpf], 3: [kvpf2], 4: [None, nonchk], 5: [nonrd, nonrd2]}
    state = "X"
    for i in range(12):
        ex = list(extra1.get(i, []))
        if i == 1: fill.extend(seg2)
        if i == CSSTART: assert not fill; fill.extend(partA2); state = "A"
        stage(i & 3, tagged(i) + ex, xw=xwait(("X", i + 1, 3)), first=(i == 0))
        vq.wait(p, ("W", i + 2, 1))
        if state == "A" and not fill:
            lq.wait(p, ("LW", 5)); state = "B"; fill.extend(seg1); print("colsum done at stage", i)
        elif state == "B" and not fill:
            state = "done"; print("pub done at stage", i)
        p("s_barrier")
        if 'st1' in dbg and i in (2, 4, 7, 9, 11):
            n_ = (2, 4, 7, 9, 11).index(i) + 1
            p(f"s_memtime s[{80+2*n_}:{81+2*n_}]\ns_waitcnt lgkmcnt(0)")
    assert state == "done" and not fill, (state, len(fill))
    sv = std_vm(0)
    stcode = f"""s_lshl_b32 s{sT0}, s{sRB}, 3
    s_add_u32 s{sT0}, s{sT0}, s{sW}
    s_lshl_b32 s{sT0}, s{sT0}, 8
    s_add_u32 s{sT0}, s{sT0}, {WS_ST}
    v_and_b32 v{vT0}, 15, v1
    v_lshlrev_b32 v{vT0}, 3, v{vT0}
    v_add_u32 v{vT0}, s{sT0}, v{vT0}
    global_load_dwordx2 v[250:251], v{vT0}, s[18:19] sc1
    global_load_dwordx2 v[252:253], v{vT0}, s[18:19] offset:128 sc1
    s_lshl_b32 s{sT0}, s{sHEAD}, 13
    s_lshl_b32 s{sT1}, s{sW}, 7
    s_add_u32 s{sT0}, s{sT0}, s{sT1}
    s_add_u32 s{sT0}, s{sT0}, {WS_CS}
    v_lshrrev_b32 v{vT1}, 3, v1
    v_lshlrev_b32 v{vT1}, 10, v{vT1}
    v_and_b32 v{vT2}, 7, v1
    v_lshl_add_u32 v{vT1}, v{vT2}, 4, v{vT1}
    v_add_u32 v{vT1}, s{sT0}, v{vT1}
    global_load_dwordx4 v[{E}:{E+3}], v{vT1}, s[18:19] sc1"""
    stchk = f"""v_xor_b32 v{vT0}, s{sNON}, v251
    v_xor_b32 v{vT1}, s{sNON}, v253
    v_xor_b32 v{vT2}, s{sNON}, v{E+1}
    v_xor_b32 v{vT3}, s{sNON}, v{E+3}
    v_or3_b32 v{vT0}, v{vT0}, v{vT1}, v{vT2}
    v_or_b32 v{vT0}, v{vT0}, v{vT3}
    v_cmp_ne_u32 vcc, 0, v{vT0}"""
    def stld():
        p(stcode); vq.issue(("ST", 0)); vq.issue(("ST", 1)); vq.issue(("ST", 2))
    def stuse():
        vq.wait(p, ("ST", 2))
        p(stchk)
        p(f"s_mov_b32 s73, {SPIN_MAX}\ns_cbranch_vccnz M_SSPIN")
        p.label("M_SSPIN_RET")
        for c in (E, E + 2): p(f"v_add_f32_dpp v{c}, v{c}, v{c} row_ror:8 row_mask:0xf bank_mask:0xf")
        for sw in ("v_permlane16_swap_b32", "v_permlane32_swap_b32"):
            p(f"v_mov_b32 v{E+1}, v{E}\nv_mov_b32 v{E+3}, v{E+2}")
            p(f"{sw} v{E}, v{E+1}\n{sw} v{E+2}, v{E+3}")
            p(f"v_add_f32 v{E}, v{E}, v{E+1}\nv_add_f32 v{E+2}, v{E+2}, v{E+3}")
        p(f"""
    v_mov_b32 v{E+1}, v{E+2}
    v_and_b32 v{vT0}, 7, v1
    v_lshlrev_b32 v{vT0}, 3, v{vT0}
    s_lshl_b32 s{sT0}, s{sW}, 6
    s_add_u32 s{sT0}, s{sT0}, {L_FP}
    v_add_u32 v{vT0}, s{sT0}, v{vT0}
    ds_write_b64 v{vT0}, v[{E}:{E+1}]
    v_and_b32 v251, 0xffff0000, v250
    v_and_b32 v253, 0xffff0000, v252
    v_rcp_f32 v251, v251
    v_rcp_f32 v253, v253
    v_lshlrev_b32 v250, 16, v250
    v_lshlrev_b32 v252, 16, v252
    v_mul_f32 v251, {fbits(QSCALE)}, v251
    v_mul_f32 v253, {fbits(QSCALE)}, v253
    """)
        lq.issue(("CSW", 0))
    stage(0, tagged(12) + [stld, job_k(0)], xw=xwait(("X", 13, 3)))
    vq.wait(p, ("W", 14, 1)); p("s_barrier")
    stage(1, tagged(13)[:4] + [job_k(1), job_k(2)], xw=xwait(("X", 14, 3)))
    vq.wait(p, ("W", 15, 1)); lq.wait(p, ("B", 0, 3)); p("s_barrier")
    if 'st1' in dbg: p("s_memtime s[92:93]\ns_waitcnt lgkmcnt(0)")
    stage(2, [job_k(3), job_v(0), job_v(1), None, stuse], xw=xwait(("X", 15, 3)))
    vq.wait(p, ("K", 1)); lq.wait(p, ("CSW", 0), ("B", 1, 3)); p("s_barrier")
    stage(3, [job_k(4), job_k(5), job_v(2), job_k(6)], last=True)
    if 'st1' in dbg: p("s_memtime s[94:95]\ns_waitcnt lgkmcnt(0)")
    ST()
    if stamp: lq.q = []
    CSV = 212
    p(f"""
    v_lshrrev_b32 v{vT0}, 4, v1
    v_lshlrev_b32 v{vT0}, 4, v{vT0}
    v_add_u32 v{vT0}, {L_FP}, v{vT0}
    """)
    for T in range(8):
        p(f"ds_read_b128 v[{CSV+4*T}:{CSV+4*T+3}], v{vT0} offset:{T*64}"); lq.issue(("CS", T))
    for j in range(D): k_read(0, j)
    for T in range(8):
        lq.wait(p, ("CS", T))
        for ct in range(2):
            a = QA + (T * 2 + ct) * 4
            for r in range(4): p(f"v_fma_f32 v{a+r}, -v{250+2*ct}, v{CSV+4*T+r}, v{a+r}")
            for r in range(4): p(f"v_mul_f32 v{a+r}, v{251+2*ct}, v{a+r}")
        for ct in range(2):
            a = QA + (T * 2 + ct) * 4
            for k in range(2): p(f"v_cvt_pk_bf16_f32 v{QP + 4*T + 2*ct + k}, v{a+2*k}, v{a+2*k+1}")
        if T > 0:
            for k in range(2): p(f"v_permlane16_swap_b32 v{QP + 4*(T-1) + k}, v{QP + 4*(T-1) + 2 + k}")
    for k in range(2): p(f"v_permlane16_swap_b32 v{QP + 28 + k}, v{QP + 30 + k}")
    def qk(j, sbuf, cinit):
        lq.wait(p, ("K", j % D))
        k = KF + (j % D) * 4; q = QP + 4 * j; d = S + 16 * sbuf
        c = cinit if j == 0 else f"v[{d}:{d+15}]"
        p(f"v_mfma_f32_32x32x16_bf16 v[{d}:{d+15}], v[{k}:{k+3}], v[{q}:{q+3}], {c}")
    def pv(i, pbuf, first=False):
        lq.wait(p, ("V", i % D))
        ks, dt = i >> 2, i & 3
        v = VF + (i % D) * 4; b = P + 8 * pbuf + 4 * ks; d = ACC + 16 * dt
        cc = "0" if (first and ks == 0) else f"v[{d}:{d+15}]"
        p(f"v_mfma_f32_32x32x16_bf16 v[{d}:{d+15}], v[{v}:{v+3}], v[{b}:{b+3}], {cc}")
    for j in range(8):
        qk(j, 0, "0")
        k_read(0 if j + D < 8 else 1, (j + D) % 8)
    vq.wait(p, ("K", 3), ("V", 1)); p("s_barrier")
    p(f"""
    s_cmp_lg_u32 s{sW}, 4
    s_cbranch_scc1 M_NOKEY
    s_lshl_b32 s{sT0}, s{sFL}, 3
    s_add_u32 s{sT0}, s{sT0}, {WS_KEYS}
    v_mov_b32 v{vT0}, s{sT0}
    v_mov_b32 v{FD}, s{sKEY}
    v_mov_b32 v{FD+1}, s{sNON}
    s_mov_b64 exec, 1
    global_store_dwordx2 v{vT0}, v[{FD}:{FD+1}], s[18:19] sc1
    s_mov_b64 exec, -1
M_NOKEY:
    """)
    ST()
    if stamp: lq.q = []
    s0 = S
    p(f"""
    v_max3_f32 v{vT0}, v{s0}, v{s0+1}, v{s0+2}
    v_max3_f32 v{vT1}, v{s0+3}, v{s0+4}, v{s0+5}
    v_max3_f32 v{vT0}, v{vT0}, v{s0+6}, v{s0+7}
    v_max3_f32 v{vT1}, v{vT1}, v{s0+8}, v{s0+9}
    v_max3_f32 v{vT0}, v{vT0}, v{s0+10}, v{s0+11}
    v_max3_f32 v{vT1}, v{vT1}, v{s0+12}, v{s0+13}
    v_max3_f32 v{vT0}, v{vT0}, v{s0+14}, v{s0+15}
    v_max_f32 v{vT0}, v{vT0}, v{vT1}
    v_mov_b32 v{vT1}, v{vT0}
    v_permlane32_swap_b32 v{vT0}, v{vT1}
    v_max_f32 v{vT0}, v{vT0}, v{vT1}
    """)
    for i in range(16): p(f"v_sub_f32 v{NEGM+i}, 0, v{vT0}")
    for i in range(16): p(f"v_sub_f32 v{s0+i}, v{s0+i}, v{vT0}")
    p(f"v_mov_b32 v{vT2}, {L_HI + 2*KSL + 6*1088 + 1024}\nv_mov_b32 v{vT3}, 0")
    p(f"ds_write_b32 v{vT2}, v{vT3}"); lq.issue(("Z", 0))
    p(f"ds_write_b32 v{vT2}, v{vT3} offset:1088"); lq.issue(("Z", 1))
    cold = 'nof' not in dbg
    SRD_P = 68; sPo = 72
    def pf(n):
        if not cold or 'nopf' in dbg: return None
        pre = ""
        if n == 0:
            pre = f"""s_and_b32 s{sT0}, s2, 1
    s_lshl_b32 s{sT0}, s{sT0}, 2
    s_bfe_u32 s{sT1}, s2, 0x20001
    s_add_u32 s{sT0}, s{sT0}, s{sT1}
    s_lshl_b32 s{sT0}, s{sT0}, 5
    s_lshr_b32 s{sT1}, s2, 3
    s_add_u32 s{sT0}, s{sT0}, s{sT1}
    s_lshl_b32 s{sT0}, s{sT0}, 15
    s_add_u32 s{SRD_P}, s10, s{sT0}
    s_addc_u32 s{SRD_P+1}, s11, 0
    s_mov_b32 s{SRD_P+2}, 0x8000
    s_mov_b32 s{SRD_P+3}, 0x20000
    s_mov_b32 s{sPo}, 0
    """
        elif n == 4:
            pre = f"""s_mul_i32 s{sT0}, s2, 28672
    s_add_u32 s{SRD_P}, s16, s{sT0}
    s_addc_u32 s{SRD_P+1}, s17, 0
    s_mov_b32 s{SRD_P+2}, 28672
    s_mov_b32 s{sPo}, 0
    """
        return (("PF", n), pre + f"""s_add_u32 m0, s{sVw}, {VADDR[5]}
    v_lshlrev_b32 v{vT3}, 4, v0
    buffer_load_dwordx4 v{vT3}, s[{SRD_P}:{SRD_P+3}], s{sPo} offen lds
    s_add_u32 s{sPo}, s{sPo}, 8192""")
    flagld = None
    keycode = f"""v_lshlrev_b32 v{vT2}, 5, v1
    v_add_u32 v{vT2}, {WS_KEYS}, v{vT2}
    global_load_dwordx4 v[{FT}:{FT+3}], v{vT2}, s[18:19] sc1
    global_load_dwordx4 v[{FT+4}:{FT+7}], v{vT2}, s[18:19] offset:16 sc1"""
    keychk = f"""v_xor_b32 v{FT+1}, s{sNON}, v{FT+1}
    v_xor_b32 v{FT+3}, s{sNON}, v{FT+3}
    v_xor_b32 v{FT+5}, s{sNON}, v{FT+5}
    v_xor_b32 v{FT+7}, s{sNON}, v{FT+7}
    v_or3_b32 v{FT+1}, v{FT+1}, v{FT+3}, v{FT+5}
    v_or_b32 v{FT+1}, v{FT+1}, v{FT+7}
    v_cmp_ne_u32 vcc, 0, v{FT+1}"""
    KEYL = L_HI + 2*KSL + 5*1088 + 1024
    def keyld():
        p(f"s_cmp_lg_u32 s{sW}, 0\ns_cbranch_scc1 M_KL1\n{keycode}\nM_KL1:")
        vq.issue(("KYmark", 0))
        vq.q.pop()
        keymark.append(len(vq.q)); keypos[0] = list(vq.q)
    keymark = []; keypos = [None]
    def keyred():
        n = len([t for t in vq.q if t not in keypos[0]])
        p(f"s_cmp_lg_u32 s{sW}, 0\ns_cbranch_scc1 M_KL2\ns_waitcnt vmcnt({n})")
        p(keychk)
        p(f"s_mov_b32 s73, {SPIN_MAX}\ns_cbranch_vccnz M_KSPIN")
        p.label("M_KSPIN_RET")
        p(f"v_max3_u32 v{FT}, v{FT}, v{FT+2}, v{FT+4}\nv_max_u32 v{FT}, v{FT}, v{FT+6}")
        wave_max_u32(p, FT, FT + 1)
        p(f"v_mov_b32 v{FT+1}, {KEYL}\nds_write_b32 v{FT+1}, v{FT}\ns_waitcnt lgkmcnt(0)\nM_KL2:")
    def keyrd():
        p(f"v_mov_b32 v{FT+1}, {KEYL}\nds_read_b32 v{FT}, v{FT+1}"); lq.issue(("KR", 0))
    def xsel():
        lq.wait(p, ("KR", 0))
        p(f"""
    v_readfirstlane_b32 s{sKEY}, v{FT}
    s_and_b32 s{sIDX}, s{sKEY}, 0x7ff
    s_sub_u32 s{sIDX}, 2047, s{sIDX}
    s_lshr_b32 s{sT0}, s{sIDX}, 4
    s_lshl_b32 s{sT0}, s{sT0}, 15
    s_and_b32 s{sT1}, s2, 3
    s_lshl_b32 s{sT1}, s{sT1}, 13
    s_add_u32 s{sT0}, s{sT0}, s{sT1}
    s_lshl_b32 s{sT1}, s{sW}, 10
    s_add_u32 s{sT0}, s{sT0}, s{sT1}
    s_and_b32 s{sT1}, s{sIDX}, 15
    s_lshl_b32 s{sT1}, s{sT1}, 4
    s_add_u32 s{sT0}, s{sT0}, s{sT1}
    v_lshrrev_b32 v{vT2}, 4, v1
    v_lshlrev_b32 v{vT2}, 8, v{vT2}
    v_add_u32 v{vT2}, s{sT0}, v{vT2}
    global_load_dwordx4 v[{XS}:{XS+3}], v{vT2}, s[18:19] sc1""")
        vq.issue(("X", 0))
    def ffn_step(f):
        def go():
            if f == 0:
                vq.wait(p, ("X", 0), ("F", 7))
                p(f"""
    v_and_b32 v{vT2}, 15, v1
    v_lshlrev_b32 v{vT2}, 5, v{vT2}
    s_lshl_b32 s{sT0}, s{sW}, 9
    s_add_u32 s{sT0}, s{sT0}, {L_FP}
    v_add_u32 v{vT2}, s{sT0}, v{vT2}""")
            if f > 0:
                p(f"ds_write_b32 v{vT2}, v{FD} offset:{(f-1)*4}"); lq.issue(("FW", f - 1))
            if f < 8:
                j = f >> 1; sel = sPH if f & 1 else sPL
                for pp in range(4):
                    p(f"v_perm_b32 v{FT+pp}, v{FR+(2*pp+1)*4+j}, v{FR+(2*pp)*4+j}, s{sel}")
        return go
    def ffn_mfma():
        p(f"v_mfma_f32_16x16x32_bf16 v[{FD}:{FD+3}], v[{XS}:{XS+3}], v[{FT}:{FT+3}], 0")
    def ffn_final():
        p(f"""
    s_cmp_lg_u32 s{sW}, 0
    s_cbranch_scc1 K2_FSKIP
    s_cmp_ge_u32 s2, 224
    s_cbranch_scc1 K2_FSKIP
    v_lshlrev_b32 v{vT2}, 3, v1
    v_add_u32 v{vT3}, {L_FP}, v{vT2}""")
        for w in range(8): p(f"ds_read_b64 v[{FR+2*w}:{FR+2*w+1}], v{vT3} offset:{w*512}")
        p(f"""
    s_and_b32 s{sT0}, s2, 3
    s_mul_i32 s{sT0}, s{sT0}, {7168*8}
    s_lshr_b32 s{sT1}, s2, 2
    s_lshl_b32 s{sT1}, s{sT1}, 10
    s_add_u32 s{sT0}, s{sT0}, s{sT1}
    s_add_u32 s{sT0}, s{sT0}, {WS_GU}
    v_lshlrev_b32 v{vT2}, 1, v{vT2}
    v_add_u32 v{vT2}, s{sT0}, v{vT2}
    s_waitcnt lgkmcnt(0)""")
        for w in range(1, 8):
            p(f"v_add_f32 v{FR}, v{FR}, v{FR+2*w}\nv_add_f32 v{FR+1}, v{FR+1}, v{FR+2*w+1}")
        p(f"v_mov_b32 v{FR+2}, v{FR+1}\nv_mov_b32 v{FR+1}, s{sNON}\nv_mov_b32 v{FR+3}, s{sNON}")
        p(f"global_store_dwordx4 v{vT2}, v[{FR}:{FR+3}], s[18:19] sc1")
        p.label("K2_FSKIP")
    NEG = f"v[{NEGM}:{NEGM+15}]"
    sONE = 0
    p(f"s_mov_b32 s{sONE}, 0x3f803f80")
    if 'prio' in dbg: p(f"s_cmp_lt_u32 s{sW}, 4\ns_cbranch_scc1 M_NPR\ns_setprio 1\nM_NPR:")
    def iteration(t, extra=(), mid=()):
        doQK = t < 15; doPV = t > 0; prevSM = t > 0
        sb = t & 1
        for j in range(8):
            if doQK: qk(j, sb ^ 1, NEG)
            if (j > 0 or prevSM) and 'novalu' not in dbg:
                e = E + 2 * ((j - 1) & 1)
                pb = sb if j > 0 else sb ^ 1
                pr = P + 8 * pb + ((j - 1) & 7)
                if 'pk' in dbg:
                    p(f"v_pk_add_f32 v[{vL0}:{vL1}], v[{vL0}:{vL1}], v[{e}:{e+1}]\nv_cvt_pk_bf16_f32 v{pr}, v{e}, v{e+1}")
                elif 'dot' in dbg:
                    p(f"v_cvt_pk_bf16_f32 v{pr}, v{e}, v{e+1}\nv_dot2_f32_bf16 v{vL0}, v{pr}, s{sONE}, v{vL0}")
                else:
                    p(f"v_add_f32 v{vL0}, v{vL0}, v{e}\nv_add_f32 v{vL1}, v{vL1}, v{e+1}\nv_cvt_pk_bf16_f32 v{pr}, v{e}, v{e+1}")
            if j < len(mid): run(mid[j])
            if doPV: pv(j, sb ^ 1, first=(t == 1))
            e = E + 2 * (j & 1)
            if 'novalu' not in dbg: p(f"v_exp_f32 v{e}, v{S+16*sb+2*j}\nv_exp_f32 v{e+1}, v{S+16*sb+2*j+1}")
            jj = j + D
            if jj < 8:
                if doQK: k_read(t + 1, jj)
                if doPV: v_read(t - 1, jj)
            else:
                if t + 2 <= 15: k_read(t + 2, jj - 8)
                v_read(t, jj - 8)
            if j < len(extra): run(extra[j])
    F = lambda i: job_f(i) if (ffn and cold and 'nofl' not in dbg) else None
    FT0 = 10
    PL = lambda n: (("PL", n), p3_preload(n))
    sched = {
        0: [job_k(7), None, job_v(3), None, job_v(4), None, F(0)],
        1: [job_v(5), None, None, job_v(6), None, None, F(1)],
        2: [job_k(8), None, job_k(9), None, job_v(7), None, F(2)],
        3: [job_v(8), keyld, job_v(9), None, job_v(10), None, F(3)],
        4: [job_k(10), None, job_k(11), None, job_v(11), None, F(4)],
        5: [job_v(12), None, None, job_v(13), None, keyred, F(5)],
        6: [job_k(12), keyrd, job_k(13), xsel, job_v(14), None, F(6)],
        7: [job_v(15), None, None, None, None, None, F(7)],
        8: [job_k(14), None, job_k(15), None, None, pf(0)],
        9: [None, None, None, None, pf(1)],
        10: [None, None, None, None, pf(2)],
        11: [None, None, None, None, pf(3)],
        12: [None, None, p3_early_setup(), p3_preload(0), PL(1), None, PL(2), None],
        13: [PL(3), None, PL(4), PL(5), None, PL(6), PL(7), p3_preload(8)],
        112: [] if 'notlb' in dbg else [
             (("TL", 0), f"v_min_u32 v{FT}, 40, v1\nv_lshlrev_b32 v{FT}, 20, v{FT}\nglobal_load_dword v{FD}, v{FT}, s[18:19]"), None,
             (("TL", 1), f"v_and_b32 v{FT+1}, 3, v1\nv_lshlrev_b32 v{FT+1}, 20, v{FT+1}\nglobal_load_dword v{FD}, v{FT+1}, s[78:79]"), None,
             (("TL", 2), f"v_and_b32 v{FT+2}, 7, v1\nv_lshlrev_b32 v{FT+2}, 20, v{FT+2}\nglobal_load_dword v{FD}, v{FT+2}, s[10:11]"), None,
             (("TL", 3), f"v_min_u32 v{FT+3}, 6, v1\nv_lshlrev_b32 v{FT+3}, 20, v{FT+3}\nglobal_load_dword v{FD}, v{FT+3}, s[16:17]")],
    }
    if 'nodma' in dbg: sched = {}
    for t in range(16):
        if t > 0 and t % 2 == 0:
            b = t // 2
            need = [("K", x) for x in range(2*b+4)] + [("V", x) for x in range(2*b+2)]
            if b == 6: need = [("K", x) for x in range(16)] + [("V", x) for x in range(16)]
            vq.wait(p, *need)
            if b == 7: vq.wait(p, ("PF", 3))
            if 2 * b == FT0 + 2: lq.wait(p, ("FW", 7))
            p("s_barrier")
            if b == 7: p("s_setprio 2")
        extra = sched.get(t, []); mid = []
        def both(x, y):
            def f():
                run(x); run(y)
            return f
        ex8 = list(extra) + [None] * 8
        if t == FT0:
            extra = [both(ex8[f], ffn_step(f)) for f in range(8)]; mid = [None] + [ffn_mfma] * 7
        if t == FT0 + 1:
            extra = [ex8[0], ffn_step(8)] + ex8[2:8]; mid = [ffn_mfma]
        if t == FT0 + 2:
            extra = [ex8[0], ffn_final] + ex8[2:8]
        if t == 14:
            ED = lambda n: None if 'noew' in dbg else (("EW", n), p3_early_dma(n))
            extra = []
        if t == 15:
            extra = []
        iteration(t, extra, mid)
    e = E + 2
    p(f"v_add_f32 v{vL0}, v{vL0}, v{e}\nv_add_f32 v{vL1}, v{vL1}, v{e+1}\nv_cvt_pk_bf16_f32 v{P+8+7}, v{e}, v{e+1}")
    p(f"""
    v_add_f32 v{vL0}, v{vL0}, v{vL1}
    v_mov_b32 v{vL1}, v{vL0}
    """)
    for i in range(8):
        pv(i, 1)
        if i + D < 8: v_read(15, i + D)
        if i == 0:
            p(f"v_permlane32_swap_b32 v{vL0}, v{vL1}\nv_add_f32 v{vL0}, v{vL0}, v{vL1}")
        if i == 1:
            p(f"""
    v_mov_b32 v{vT1}, 0x5d800000
    v_cmp_nle_f32 vcc, v{vL0}, v{vT1}
    v_rcp_f32 v{vL1}, v{vL0}
    """)
    ST()
    if slow:
        p(f"s_cbranch_vccnz K2_SLOW")
        p.label("K2_SLOW_RET")
    for dt in range(4):
        for c in range(2):
            a = ACC + 16 * dt + 8 * c
            o = S + (dt * 2 + c) * 4
            for r in range(8): p(f"v_mul_f32 v{a+r}, v{a+r}, v{vL1}")
            for r in range(4): p(f"v_cvt_pk_bf16_f32 v{o+r}, v{a+2*r}, v{a+2*r+1}")
            p(f"buffer_store_dwordx4 v[{o}:{o+3}], v{vO}, s[{SRD_OT}:{SRD_OT+3}], s{sOT} offen offset:{c*512} sc1")
        if dt < 3: p(f"s_add_u32 s{sOT}, s{sOT}, 131072")
    phase3(p, ST, stamp)
    p.label("K2_END")
    p("s_endpgm")
    p.label("M_SSPIN")
    p("s_sleep 2")
    p(stcode)
    p("s_waitcnt vmcnt(0)")
    p(stchk)
    p(f"""
    s_cbranch_vccz M_SSPIN_RET
    s_sub_u32 s73, s73, 1
    s_cmp_lg_u32 s73, 0
    s_cbranch_scc1 M_SSPIN
    s_branch M_SSPIN_RET
    """)
    p.label("M_KSPIN")
    p("s_sleep 2")
    p(keycode)
    p("s_waitcnt vmcnt(0)")
    p(keychk)
    p(f"""
    s_cbranch_vccz M_KSPIN_RET
    s_sub_u32 s73, s73, 1
    s_cmp_lg_u32 s73, 0
    s_cbranch_scc1 M_KSPIN
    s_branch M_KSPIN_RET
    """)
    if slow:
        p.label("K2_SLOW")
        p(f"""
    s_waitcnt vmcnt(0) lgkmcnt(0)
    v_and_b32 v{vT0}, 31, v1
    v_lshlrev_b32 v{vT0}, 8, v{vT0}
    v_lshrrev_b32 v{vT1}, 5, v1
    v_lshl_add_u32 v{vT0}, v{vT1}, 4, v{vT0}
    v_and_b32 v{vT2}, 19, v1
    v_bfe_u32 v{vT3}, v1, 2, 1
    v_lshl_add_u32 v{vT2}, v{vT3}, 3, v{vT2}
    v_bfe_u32 v{vT3}, v1, 3, 1
    v_lshl_add_u32 v{vT2}, v{vT3}, 2, v{vT2}
    v_lshlrev_b32 v{vT2}, 1, v{vT2}
    v_lshl_add_u32 v{vT2}, v{vT1}, 10, v{vT2}
    v_mov_b32 v{vT1}, 0xff800000
    s_mov_b32 s{sT1}, 0
    """)
        KS = KF
        def slow_qk(c0):
            for j in range(8):
                p(f"buffer_load_dwordx4 v[{KS+4*j}:{KS+4*j+3}], v{vT0}, s[{SRD_K}:{SRD_K+3}], s{sT1} offen offset:{j*32}")
            p("s_waitcnt vmcnt(0)")
            for j in range(8):
                c = c0 if j == 0 else f"v[{S}:{S+15}]"
                p(f"v_mfma_f32_32x32x16_bf16 v[{S}:{S+15}], v[{KS+4*j}:{KS+4*j+3}], v[{QP+4*j}:{QP+4*j+3}], {c}")
        p.label("K2_SLOW_L1")
        slow_qk("0")
        for i in range(0, 16, 2):
            p(f"v_max3_f32 v{vT1}, v{vT1}, v{S+i}, v{S+i+1}")
        p(f"""
    s_add_u32 s{sT1}, s{sT1}, 8192
    s_cmp_lt_u32 s{sT1}, 131072
    s_cbranch_scc1 K2_SLOW_L1
    v_mov_b32 v{vT3}, v{vT1}
    v_permlane32_swap_b32 v{vT3}, v{vT1}
    v_max_f32 v{vT1}, v{vT3}, v{vT1}
    """)
        for i in range(16): p(f"v_sub_f32 v{NEGM+i}, 0, v{vT1}")
        for i in range(64): p(f"v_mov_b32 v{ACC+i}, 0")
        p(f"v_mov_b32 v{vL0}, 0\ns_mov_b32 s{sT1}, 0")
        p.label("K2_SLOW_L2")
        slow_qk(NEG)
        for i in range(16): p(f"v_exp_f32 v{S+i}, v{S+i}")
        for i in range(16): p(f"v_add_f32 v{vL0}, v{vL0}, v{S+i}")
        for i in range(8): p(f"v_cvt_pk_bf16_f32 v{P+i}, v{S+2*i}, v{S+2*i+1}")
        for ks in range(2):
            p(f"s_add_u32 s{sT2}, s{sT1}, {ks*4096}")
            TM = S + 16
            for dt in range(4):
                r = KS + dt * 4; d = ACC + 16 * dt
                for jj in range(8):
                    key = (jj & 3) + 8 * (jj >> 2)
                    p(f"buffer_load_ushort v{TM + jj}, v{vT2}, s[{SRD_V}:{SRD_V+3}], s{sT2} offen offset:{key*256 + dt*64}")
                p("s_waitcnt vmcnt(0)")
                for jj in range(4): p(f"v_lshl_or_b32 v{r+jj}, v{TM+2*jj+1}, 16, v{TM+2*jj}")
                p(f"v_mfma_f32_32x32x16_bf16 v[{d}:{d+15}], v[{r}:{r+3}], v[{P+4*ks}:{P+4*ks+3}], v[{d}:{d+15}]")
            p("s_nop 7")
        p(f"""
    s_add_u32 s{sT1}, s{sT1}, 8192
    s_cmp_lt_u32 s{sT1}, 131072
    s_cbranch_scc1 K2_SLOW_L2
    v_mov_b32 v{vL1}, v{vL0}
    v_permlane32_swap_b32 v{vL0}, v{vL1}
    v_add_f32 v{vL0}, v{vL0}, v{vL1}
    v_rcp_f32 v{vL1}, v{vL0}
    s_nop 7
    s_branch K2_SLOW_RET
    """)
    n = p.fix_hazards(verbose='v' in dbg)
    import re as _re
    st = lambda m: f"    s_memtime s[{80+2*int(m.group(1))}:{81+2*int(m.group(1))}]\n"
    txt = p.text()
    txt = _re.sub(r"(?m)^ST3_(\d)\n", st if MODE3[0] else "", txt)
    txt = _re.sub(r"(?m)^ST4_(\d)\n", st if 'st4' in dbg else "", txt)
    txt = _re.sub(r"(?m)^STAMPX1\n", "", txt)
    return txt, descriptor(name, 256, 256, 102), f"; @launch grid=(256,1,1) block=(512,1,1) lds={L_TOTAL}"

if __name__ == "__main__":
    import sys, subprocess, re
    dbg = tuple(sys.argv[2].split(',')) if len(sys.argv) > 2 else ()
    t, d, l = gen_mega(stamp=len(sys.argv) > 1 and sys.argv[1] == "1", dbg=dbg)
    out = sys.argv[3] if len(sys.argv) > 3 else "mega.s"
    def write(cs):
        open(out, "w").write(l + '\n.amdgcn_target "amdgcn-amd-amdhsa--gfx950"\n.text\n' + t.replace("CODESIZE", str(cs)) + '.section .rodata,"a"\n' + d)
    write(0x1000)
    subprocess.run(["clang", "-x", "assembler", "-target", "amdgcn-amd-amdhsa", "-mcpu=gfx950", "-c", out, "-o", "mega.o"], check=True)
    r = subprocess.run(["llvm-objdump", "-h", "mega.o"], capture_output=True, text=True).stdout
    sz = int(re.search(r"\.text\s+([0-9a-f]+)", r).group(1), 16)
    write((sz - 256) & ~63)
    print("code size", sz)
```

```python
from gen_common import *
import math, struct

KSL = 8704; VSL = 8192
L_X = 65536
L_HI = 131072
L_FP = 159744
L_TOTAL = L_FP + 4096
L_K = L_HI
KADDR = [L_HI, L_HI + KSL, L_HI + 2 * KSL, L_X, L_X + KSL + 2 * VSL, L_X + 2 * KSL + 2 * VSL, L_X + 3 * KSL + 2 * VSL]
VADDR = [L_X + KSL, L_X + KSL + VSL, L_X + 4 * KSL + 2 * VSL] + [i * VSL for i in range(8)]
assert VADDR[2] + VSL <= L_HI and KADDR[2] + KSL <= L_FP and VADDR[1] + VSL <= L_X + 32768
def Kabs(t): return KADDR[t % 7]
def Vabs(t): return VADDR[t % 11]

vDk, vDv, vKb, vVa, vVb, vO, vL0, vL1, vDf, vKh, vT0, vT1, vT2, vT3 = 2, 3, 4, 5, 6, 7, 8, 9, 10, 11, 12, 13, 14, 15
vPF = 211
ACC = 16; QP = 80; S = 112; NEGM = 144; P = 160; KF = 176; VF = 192; E = 208
QA = 112; AF = 176
def BRr(buf, k): return 212 + (buf & 1) * 16 + k * 4
FR = 212
vA0, vA1, vDq, vDq2, vXB0, vXB1 = 244, 245, 246, 247, 248, 249
vXD = 80
FT = 244; FD = 248; XS = 252
sW = 3
sHEAD, sRB, sG = 20, 21, 22
sN, sWq, sM, sB = 23, 24, 25, 26
sKsrc, sKw, sVsrc, sVw = 27, 28, 29, 30
sPL, sPH = 31, 32
sFsrc, sIDX = 69+32, 35
SRD_WQ, SRD_XN, SRD_K, SRD_V, SRD_F, SRD_OT = 36, 40, 44, 48, 52, 56
sT0, sT1, sT2, sT3 = 60, 61, 62, 63
sOT = 64
sXM = 100
QSCALE = math.log2(math.e) / math.sqrt(128.0)
def fbits(x): return "0x%08x" % struct.unpack("<I", struct.pack("<f", x))[0]
D = 4

class Q:
    def __init__(self, cnt, mx): self.q = []; self.cnt = cnt; self.mx = mx
    def issue(self, tag): self.q.append(tag)
    def wait(self, p, *tags):
        idx = [len(self.q) - 1 - self.q[::-1].index(t) for t in tags if t in self.q]
        if not idx: return
        i = max(idx)
        n = len(self.q) - 1 - i
        assert n <= self.mx, n
        p(f"s_waitcnt {self.cnt}({n})")
        self.q = self.q[i + 1:]


KNAME = "recurrent_scan__sliding_block_cached__moe_arch_mod__prompt_kernel"
sFL, sPC, sKEY = 65, 70, 34
SPIN_MAX = 20000
MODE0 = [False]
DBGT = [False]
NOEW = [False]
MODE3 = [False]
WS_FLG = 0x500000
sNON = 33

LX = 16
def poll32(p, lab, sGrp, stage):
    p(f"""
    v_and_b32 v{vT0}, 31, v1
    v_lshlrev_b32 v{vT0}, 7, v{vT0}
    s_lshl_b32 s{sGrp}, s{sGrp}, 12
    s_add_u32 s{sGrp}, s{sGrp}, {WS_FLG + stage*32768}
    v_add_u32 v{vT0}, s{sGrp}, v{vT0}
    s_mov_b32 s73, {SPIN_MAX}
    """)
    p.label(lab)
    p(f"""
    global_load_dword v{vT1}, v{vT0}, s[18:19] sc1
    s_waitcnt vmcnt(0)
    v_cmp_ne_u32 vcc, s{sNON}, v{vT1}
    s_cbranch_vccz {lab}_OK
    s_sleep 1
    s_sub_u32 s73, s73, 1
    s_cmp_lg_u32 s73, 0
    s_cbranch_scc1 {lab}
    """)
    p.label(lab + "_OK")
def set_flag(p, stage):
    p(f"""
    s_lshl_b32 s{sT0}, s{sFL}, 7
    s_add_u32 s{sT0}, s{sT0}, {WS_FLG + stage*32768}
    v_mov_b32 v{vT0}, s{sT0}
    v_mov_b32 v{vT1}, s{sNON}
    s_mov_b64 exec, 1
    global_store_dword v{vT0}, v{vT1}, s[18:19] sc1
    s_mov_b64 exec, -1
    """)
WS_ST = 0x520000
WS_CS = 0x530000
L_SC = L_K
CSR = 92
def get_nonce(p, lab, vz, vn):
    p(f"""
    s_mov_b32 s73, {SPIN_MAX}
{lab}:
    global_load_dword v{vn}, v{vz}, s[66:67] sc1
    s_waitcnt vmcnt(0)
    v_readfirstlane_b32 s{sNON}, v{vn}
    s_cmp_lg_u32 s{sNON}, 0
    s_cbranch_scc1 {lab}_OK
    s_sub_u32 s73, s73, 1
    s_cmp_lg_u32 s73, 0
    s_cbranch_scc1 {lab}
{lab}_OK:
    """)
class Rec:
    def __init__(self): self.items = []
    def __call__(self, text):
        for line in text.split('\n'):
            if line.strip(): self.items.append(line.strip())
    def call(self, f): self.items.append(f)
LN_X = 16; LN_W = 24
vg0, vg1, vr_, vq_, vNON, vCSA, vLXA = 84, 85, 86, 87, 88, 89, 90
def ln_segments(lq, vq, P):
    X = LN_X; W = LN_W; F = 32; S_ = 48; T = 49; Q0 = 50; Q1 = 51; Dd = 52; va = 68; vw = 69; SD = 70; G = 32
    CA = 72; CT = 52
    p = Rec()
    p(f"""
    v_lshrrev_b32 v{vw}, 6, v0
    v_and_b32 v{va}, 7, v1
    v_xor_b32 v{va}, v{va}, v{vw}
    v_lshlrev_b32 v{va}, 4, v{va}
    v_lshl_add_u32 v{va}, v1, 7, v{va}
    v_add_u32 v{va}, {L_SC}, v{va}
    v_lshrrev_b32 v{vg1}, 3, v0
    v_and_b32 v{vg0}, 7, v{vg1}
    v_and_b32 v{vr_}, 7, v0
    v_xor_b32 v{vg0}, v{vg0}, v{vr_}
    v_lshlrev_b32 v{vg0}, 4, v{vg0}
    v_lshl_add_u32 v{vg0}, v{vg1}, 8, v{vg0}
    s_lshr_b32 s{sT0}, s{sFL}, 1
    s_lshl_b32 s{sT0}, s{sT0}, 15
    s_and_b32 s{sT1}, s{sFL}, 1
    s_lshl_b32 s{sT1}, s{sT1}, 7
    s_add_u32 s{sT0}, s{sT0}, s{sT1}
    v_add_u32 v{vg0}, s{sT0}, v{vg0}
    v_add_u32 v{vg1}, 0x4000, v{vg0}
    v_lshlrev_b32 v{vr_}, 4, v0
    v_add_u32 v{vr_}, {L_SC}, v{vr_}
    """)
    p.call(lambda: vq.wait(P, ("LX", 1)))
    ONE = F
    p(f"v_mov_b32 v{ONE}, 0x3f803f80")
    p(f"v_dot2_f32_bf16 v{S_}, v{X}, v{ONE}, 0\nv_dot2_f32_bf16 v{Q0}, v{X}, v{X}, 0")
    p(f"v_dot2_f32_bf16 v{T}, v{X+1}, v{ONE}, 0\nv_dot2_f32_bf16 v{Q1}, v{X+1}, v{X+1}, 0")
    for i in range(2, 8, 2):
        p(f"v_dot2_f32_bf16 v{S_}, v{X+i}, v{ONE}, v{S_}\nv_dot2_f32_bf16 v{Q0}, v{X+i}, v{X+i}, v{Q0}")
        p(f"v_dot2_f32_bf16 v{T}, v{X+i+1}, v{ONE}, v{T}\nv_dot2_f32_bf16 v{Q1}, v{X+i+1}, v{X+i+1}, v{Q1}")
    p(f"s_nop 1\nv_add_f32 v{S_}, v{S_}, v{T}\nv_add_f32 v{Q0}, v{Q0}, v{Q1}")
    ra = Rec(); wave_sum(ra, S_, T); rb_ = Rec(); wave_sum(rb_, Q0, Q1)
    for x_, y_ in zip(ra.items, rb_.items): p(x_); p(y_)
    p(f"""
    v_mul_f32 v{S_}, 0x3a800000, v{S_}
    v_mul_f32 v{Q0}, 0x3a800000, v{Q0}
    v_fma_f32 v{Q0}, -v{S_}, v{S_}, v{Q0}
    v_max_f32 v{Q0}, 0, v{Q0}
    v_cvt_pk_bf16_f32 v{T}, v{S_}, v{Q0}
    v_lshlrev_b32 v{S_}, 16, v{T}
    v_and_b32 v{Q0}, 0xffff0000, v{T}
    v_add_f32 v{Q0}, 0x3727c5ac, v{Q0}
    v_cvt_pk_bf16_f32 v{Q0}, v{Q0}, v{Q0}
    v_lshlrev_b32 v{Q0}, 16, v{Q0}
    v_sqrt_f32 v{Q0}, v{Q0}
    v_cvt_pk_bf16_f32 v{SD}, v{S_}, v{Q0}
    v_and_b32 v{Q0}, 0xffff0000, v{SD}
    v_rcp_f32 v{Q0}, v{Q0}
    """)
    def dsw(text, tag):
        def f():
            P(text); lq.issue(tag)
        p.call(f)
    p(f"""
    s_lshl_b32 s{sT0}, s{sW}, 2
    s_add_u32 s{sT0}, s{sT0}, {L_SC + 16384}
    v_mov_b32 v{vw}, s{sT0}
    """)
    partA1 = p.items
    p = Rec()
    p.call(lambda: vq.wait(P, ("CS", 3)))
    for i in range(4):
        for j in range(4):
            r = CSR + 4 * i + j
            if i == 0:
                p(f"v_lshlrev_b32 v{CA+2*j}, 16, v{r}\nv_and_b32 v{CA+2*j+1}, 0xffff0000, v{r}")
            else:
                p(f"v_lshlrev_b32 v{CT}, 16, v{r}\nv_and_b32 v{CT+1}, 0xffff0000, v{r}")
                p(f"v_add_f32 v{CA+2*j}, v{CA+2*j}, v{CT}\nv_add_f32 v{CA+2*j+1}, v{CA+2*j+1}, v{CT+1}")
    p(f"""
    v_lshlrev_b32 v{T}, 5, v0
    v_add_u32 v{T}, {L_SC}, v{T}
    """)
    dsw(f"ds_write_b128 v{T}, v[{CA}:{CA+3}]", ("LW", 4))
    dsw(f"ds_write_b128 v{T}, v[{CA+4}:{CA+7}] offset:16", ("LW", 5))
    partA = p.items
    p = Rec()
    exact = True
    for i in range(8):
        p(f"v_lshlrev_b32 v{Dd+2*i}, 16, v{X+i}\nv_and_b32 v{Dd+2*i+1}, 0xffff0000, v{X+i}")
    for i in range(16): p(f"v_sub_f32 v{Dd+i}, v{Dd+i}, v{S_}")
    for i in range(8): p(f"v_cvt_pk_bf16_f32 v{X+i}, v{Dd+2*i}, v{Dd+2*i+1}")
    for i in range(8):
        p(f"v_lshlrev_b32 v{Dd+2*i}, 16, v{X+i}\nv_and_b32 v{Dd+2*i+1}, 0xffff0000, v{X+i}")
    for i in range(16): p(f"v_mul_f32 v{Dd+i}, v{Dd+i}, v{Q0}")
    for i in range(8): p(f"v_cvt_pk_bf16_f32 v{X+i}, v{Dd+2*i}, v{Dd+2*i+1}")
    p.call(lambda: vq.wait(P, ("LX", 3)))
    p(f"v_dot2_f32_bf16 v{S_}, v{X}, v{W}, 0\nv_dot2_f32_bf16 v{Q1}, v{X+1}, v{W+1}, 0")
    for i in range(2, 8, 2):
        p(f"v_dot2_f32_bf16 v{S_}, v{X+i}, v{W+i}, v{S_}\nv_dot2_f32_bf16 v{Q1}, v{X+i+1}, v{W+i+1}, v{Q1}")
    p(f"s_nop 2\nv_add_f32 v{S_}, v{S_}, v{Q1}")
    wave_sum(p, S_, T)
    p(f"""
    v_cvt_pk_bf16_f32 v{S_}, v{S_}, v{S_}
    v_lshlrev_b32 v{S_}, 16, v{S_}
    v_ashrrev_i32 v{T}, 31, v{S_}
    v_or_b32 v{T}, 0x80000000, v{T}
    v_xor_b32 v{S_}, v{S_}, v{T}
    v_and_b32 v{S_}, 0xffff0000, v{S_}
    s_lshl_b32 s{sT1}, s{sFL}, 3
    s_add_u32 s{sT1}, s{sT1}, s{sW}
    s_sub_u32 s{sT0}, 2047, s{sT1}
    v_or_b32 v{S_}, s{sT0}, v{S_}
    v_mov_b32 v{vL0}, 0
    v_mov_b32 v{vL1}, 0
    """)
    dsw(f"ds_write_b128 v{va}, v[{X}:{X+3}]", ("LW", 0))
    dsw(f"ds_write_b128 v{va}, v[{X+4}:{X+7}] offset:8192", ("LW", 1))
    dsw(f"ds_write_b32 v{vw}, v{S_}", ("LW", 2))
    return partA1, partA, p.items
def pub_segments(lq, vq, P):
    R = CSR
    p = Rec()
    def ds(text, tag):
        def f():
            P(text); lq.issue(tag)
        p.call(f)
    def vm(text, tag):
        def f():
            P(text); vq.issue(tag)
        p.call(f)
    p(f"""
    v_lshrrev_b32 v{R+4}, 3, v1
    v_lshlrev_b32 v{R+4}, 9, v{R+4}
    v_and_b32 v{R+5}, 7, v1
    v_lshl_add_u32 v{R+4}, v{R+5}, 3, v{R+4}
    s_lshl_b32 s{sT0}, s{sW}, 6
    s_add_u32 s{sT0}, s{sT0}, {L_SC}
    v_add_u32 v{R+4}, s{sT0}, v{R+4}
    """)
    ds(f"ds_read_b64 v[{R}:{R+1}], v{R+4}", ("PR", 9))
    ds(f"ds_read_b64 v[{R+8}:{R+9}], v{R+4} offset:4096", ("PR", 8))
    p("s_nop 0\ns_nop 0\ns_nop 0\ns_nop 0")
    ds(f"ds_read_b64 v[{R+10}:{R+11}], v{R+4} offset:8192", ("PR", 7))
    ds(f"ds_read_b64 v[{R+12}:{R+13}], v{R+4} offset:12288", ("PR", 0))
    p(f"""
    s_lshl_b32 s{sT0}, s{sHEAD}, 3
    s_add_u32 s{sT0}, s{sT0}, s{sRB}
    s_lshl_b32 s{sT0}, s{sT0}, 3
    s_add_u32 s{sT0}, s{sT0}, s{sW}
    s_lshl_b32 s{sT0}, s{sT0}, 7
    s_add_u32 s{sT0}, s{sT0}, {WS_CS}
    v_lshlrev_b32 v{R+5}, 4, v{R+5}
    v_add_u32 v{R+5}, s{sT0}, v{R+5}
    s_lshl_b32 s{sT0}, s{sFL}, 3
    s_add_u32 s{sT0}, s{sT0}, s{sW}
    s_lshl_b32 s{sT0}, s{sT0}, 3
    s_add_u32 s{sT0}, s{sT0}, {WS_ST}
    v_mov_b32 v{R+6}, s{sT0}
    v_mov_b32 v71, s{sNON}
    """)
    vm(f"s_mov_b64 exec, 1\nglobal_store_dwordx2 v{R+6}, v[70:71], s[18:19] sc1\ns_mov_b64 exec, -1", ("PS", 0))
    p.call(lambda: lq.wait(P, ("PR", 0)))
    p(f"""
    v_add_f32 v{R}, v{R}, v{R+8}
    v_add_f32 v{R+1}, v{R+1}, v{R+9}
    v_add_f32 v{R+10}, v{R+10}, v{R+12}
    v_add_f32 v{R+11}, v{R+11}, v{R+13}
    v_add_f32 v{R}, v{R}, v{R+10}
    v_add_f32 v{R+2}, v{R+1}, v{R+11}
    """)
    for c in (R, R + 2): p(f"v_add_f32_dpp v{c}, v{c}, v{c} row_ror:8 row_mask:0xf bank_mask:0xf")
    for sw in ("v_permlane16_swap_b32", "v_permlane32_swap_b32"):
        p(f"v_mov_b32 v{R+1}, v{R}\nv_mov_b32 v{R+3}, v{R+2}")
        p(f"{sw} v{R}, v{R+1}\n{sw} v{R+2}, v{R+3}")
        p(f"v_add_f32 v{R}, v{R}, v{R+1}\nv_add_f32 v{R+2}, v{R+2}, v{R+3}")
    p(f"v_mov_b32 v{R+1}, s{sNON}\nv_mov_b32 v{R+3}, s{sNON}")
    vm(f"s_mov_b64 exec, 0xff\nglobal_store_dwordx4 v{R+5}, v[{R}:{R+3}], s[18:19] sc1\ns_mov_b64 exec, -1", ("PS", 1))
    seg1 = p.items
    p = Rec()
    X = 16
    ds(f"ds_read_b128 v[{X}:{X+3}], v{vr_}", ("PR", 1))
    ds(f"ds_read_b128 v[{X+4}:{X+7}], v{vr_} offset:8192", ("PR", 2))
    p(f"v_mov_b32 v{vq_}, {L_SC + 16384}")
    ds(f"ds_read_b128 v[{X+8}:{X+11}], v{vq_}", ("PR", 3))
    p("s_nop 0\ns_nop 0\ns_nop 0\ns_nop 0")
    p.call(lambda: lq.wait(P, ("PR", 1)))
    vm(f"global_store_dwordx4 v{vg0}, v[{X}:{X+3}], s[18:19] sc1", ("PS", 2))
    ds(f"ds_read_b128 v[{X+12}:{X+15}], v{vq_} offset:16", ("PR", 4))
    p.call(lambda: lq.wait(P, ("PR", 2)))
    vm(f"global_store_dwordx4 v{vg1}, v[{X+4}:{X+7}], s[18:19] sc1", ("PS", 3))
    p("s_nop 0\ns_nop 0\ns_nop 0\ns_nop 0")
    p.call(lambda: lq.wait(P, ("PR", 4)))
    p(f"""
    v_max3_u32 v{X+8}, v{X+8}, v{X+9}, v{X+10}
    v_max3_u32 v{X+12}, v{X+12}, v{X+13}, v{X+14}
    v_max3_u32 v{X+8}, v{X+8}, v{X+11}, v{X+15}
    v_max_u32 v{X+8}, v{X+8}, v{X+12}
    v_readfirstlane_b32 s{sKEY}, v{X+8}
    """)
    return seg1, p.items
def set_flag2(p):
    pass

def rbf(p, v):
    p(f"v_cvt_pk_bf16_f32 v{v}, v{v}, v{v}\nv_lshlrev_b32 v{v}, 16, v{v}")
def silu(p, d, v, t):
    p(f"""
    v_mul_f32 v{t}, 0xbfb8aa3b, v{v}
    v_exp_f32 v{t}, v{t}
    v_add_f32 v{t}, 1.0, v{t}
    v_rcp_f32 v{t}, v{t}
    v_mul_f32 v{d}, v{v}, v{t}
    """)
sRT, sCT, sIT, sA, sBo, sMb, sMb2, sKH, sKQ, sMH = 20, 21, 23, 24, 25, 26, 27, 28, 29, 30
sKG, sCG = 31, 32
SRD_A, SRD_B = 36, 40
RB1 = 16384; RB2 = 114688
WS_EX = 0x2000000; WS_FLG2 = 0x560000
EW = 244
L_H3 = 148480
CNT_A = L_HI + 2*KSL + 6*1088 + 1024
CNT_B = CNT_A + 1088
def p3_early_setup():
    return f"""s_and_b32 s{sT0}, s2, 7
    s_lshr_b32 s{sT1}, s2, 3
    s_lshr_b32 s{sRT}, s{sT0}, 1
    s_lshl_b32 s{sRT}, s{sRT}, 2
    s_and_b32 s{sT2}, s{sT1}, 3
    s_add_u32 s{sRT}, s{sRT}, s{sT2}
    s_lshr_b32 s{sCT}, s{sT1}, 2
    s_and_b32 s{sKH}, s{sT0}, 1
    s_and_b32 s{sKQ}, s{sW}, 3
    s_lshr_b32 s{sMH}, s{sW}, 2
    s_xor_b32 s{sMH}, s{sMH}, s{sKH}
    s_xor_b32 s{sMH}, s{sMH}, 1
    s_lshl_b32 s{sT1}, s{sKH}, 23
    s_add_u32 s{sT1}, s{sT1}, {WS_OT}
    s_add_u32 s{SRD_A}, s18, s{sT1}
    s_addc_u32 s{SRD_A+1}, s19, 0
    s_mov_b32 s{SRD_A+2}, 0x800000
    s_mov_b32 s{SRD_A+3}, 0x20000
    s_lshl_b32 s{sT1}, s{sKH}, 22
    s_add_u32 s{SRD_B}, s10, s{sT1}
    s_addc_u32 s{SRD_B+1}, s11, 0
    s_mov_b32 s{SRD_B+2}, 0x400000
    s_mov_b32 s{SRD_B+3}, 0x20000
    s_lshl_b32 s{sA}, s{sRT}, 3
    s_add_u32 s{sA}, s{sA}, s{sW}
    s_lshl_b32 s{sA}, s{sA}, 10
    s_lshl_b32 s{sBo}, s{sCT}, 8
    s_lshl_b32 s{sT1}, s{sW}, 14
    s_add_u32 s{sBo}, s{sBo}, s{sT1}
    s_lshl_b32 s{sDW}, s{sW}, 11
    s_add_u32 s{sDW}, s{sDW}, {RB1}
    s_lshl_b32 s{sDO}, s{sW}, 10
    s_add_u32 s{sDO}, s{sDO}, {RB1 + 16384}"""
sDW, sDO = 68, 69
PL_A = 212; PL_B = 228; PL_G = 176; PL_OUT = 248
def gu_loads(GA):
    t = f"""s_mul_i32 s{sT0}, s{sKG}, 224
    s_mul_i32 s{sT1}, s{sKQ}, 56
    s_add_u32 s{sT0}, s{sT0}, s{sT1}
    v_min_u32 v{GA}, 55, v1
    v_add_lshl_u32 v{GA}, v{GA}, s{sT0}, 3
    v_add_u32 v{GA}, {WS_GU}, v{GA}
    """
    for q in range(8):
        t += f"global_load_dwordx2 v[{PL_G+2*q}:{PL_G+2*q+1}], v{GA}, s[18:19] sc1\n"
        if q < 7: t += f"v_add_u32 v{GA}, 28672, v{GA}\n"
    return t
def p3_preload(n):
    A = 249; B = 250
    if n == 0:
        return f"""s_and_b32 s{sKG}, s{sFL}, 15
    s_lshr_b32 s{sCG}, s{sFL}, 4
    s_cmp_lg_u32 s{sMH}, s{sKH}
    s_cbranch_scc1 M_PL_S
    s_lshl_b32 s{sT0}, s{sRT}, 1
    s_add_u32 s{sT0}, s{sT0}, s{sKH}
    s_lshl_b32 s{sT1}, s{sT0}, 17
    s_lshl_b32 s{sT0}, s{sCT}, 2
    s_add_u32 s{sT0}, s{sT0}, s{sKQ}
    s_lshl_b32 s{sT2}, s{sT0}, 6
    s_add_u32 s{sT2}, s{sT1}, s{sT2}
    v_and_b32 v{A}, 15, v1
    v_lshrrev_b32 v{B}, 4, v1
    v_lshlrev_b32 v{PL_OUT}, 11, v{A}
    v_lshl_add_u32 v{PL_OUT}, v{B}, 4, v{PL_OUT}
    v_add_u32 v{PL_OUT}, s{sT2}, v{PL_OUT}
    s_lshl_b32 s{sT2}, s{sT0}, 10
    s_add_u32 s{sT2}, s{sT1}, s{sT2}
    v_lshlrev_b32 v{A}, 4, v{A}
    v_lshl_add_u32 v{A}, v{B}, 8, v{A}
    v_add_u32 v{A}, s{sT2}, v{A}
    v_mov_b32 v{B}, v{PL_OUT}
    s_branch M_PL_E
M_PL_S:
    s_mul_i32 s{sT0}, s{sKG}, 224
    s_mul_i32 s{sT1}, s{sKQ}, 56
    s_add_u32 s{sT0}, s{sT0}, s{sT1}
    s_lshl_b32 s{sT1}, s{sT0}, 11
    s_lshl_b32 s{sT2}, s{sCG}, 7
    s_add_u32 s{sT1}, s{sT1}, s{sT2}
    v_lshrrev_b32 v{A}, 3, v1
    v_lshlrev_b32 v{A}, 11, v{A}
    v_and_b32 v{B}, 7, v1
    v_lshl_add_u32 v{A}, v{B}, 4, v{A}
    v_add_u32 v{A}, s{sT1}, v{A}
    v_mov_b32 v{PL_OUT}, 0
M_PL_E:"""
    if n == 9:
        return f"s_cmp_eq_u32 s{sMH}, s{sKH}\ns_cbranch_scc1 M_PL9\n{gu_loads(B)}M_PL9:"
    i = n - 1
    kl = (f"global_load_dwordx4 v[{PL_B+4*i}:{PL_B+4*i+3}], v{A}, s[18:19] sc1\nv_add_u32 v{A}, 0x8000, v{A}" if i < 4 else
          f"global_load_dwordx4 v[{PL_A+4*(i-4)}:{PL_A+4*(i-4)+3}], v{B}, s[74:75]\nv_add_u32 v{B}, 0x8000, v{B}")
    sl = (f"global_load_dwordx4 v[{PL_A+4*i}:{PL_A+4*i+3}], v{A}, s[16:17]\nv_add_u32 v{A}, 0x4000, v{A}\n" if i < 7 else "")
    return f"s_cmp_lg_u32 s{sMH}, s{sKH}\ns_cbranch_scc1 M_PLS{n}\n{kl}\ns_branch M_PLE{n}\nM_PLS{n}:\n{sl}M_PLE{n}:"
def phase3(p, ST, stamp):
    AC3 = 16; WFB = 48; OFB = 80; PR = 208
    sRM, sNM = 26, 27
    vAo, vAo2, vW, vRW, vRO, vOut, vFa, vFv = 2, 3, 4, 6, 240, 9, 10, 11
    ST(False)
    def wdma(slot):
        return [f"s_add_u32 m0, s{sDW}, {slot*32768}\ns_nop 0\nbuffer_load_dwordx4 v{vW}, s[{SRD_B}:{SRD_B+3}], s{sBo} offen lds",
                f"s_add_u32 m0, s{sDW}, {slot*32768}\ns_nop 0\nbuffer_load_dwordx4 v{vW+1}, s[{SRD_B}:{SRD_B+3}], s{sBo} offen offset:1024 lds\ns_add_u32 s{sBo}, s{sBo}, 131072"]
    def odma(slot):
        return [f"s_add_u32 m0, s{sDO}, {slot*32768}\ns_nop 0\nbuffer_load_dwordx4 v{vAo}, s[{SRD_A}:{SRD_A+3}], s{sA} offen sc1 lds",
                f"s_add_u32 m0, s{sDO}, {slot*32768 + 8192}\ns_nop 0\nbuffer_load_dwordx4 v{vAo2}, s[{SRD_A}:{SRD_A+3}], s{sA} offen sc1 lds\ns_add_u32 s{sA}, s{sA}, 262144"]
    def arrive(lab, n):
        p(f"""
    v_mov_b32 v{vT0}, {CNT_A}
    v_mov_b32 v{vT1}, 1
    s_waitcnt vmcnt({n})
    s_mov_b64 exec, 1
    ds_add_rtn_u32 v{vT2}, v{vT0}, v{vT1}
    s_mov_b64 exec, -1
    s_waitcnt lgkmcnt(0)
    v_readfirstlane_b32 s{sT0}, v{vT2}
    s_cmp_lg_u32 s{sT0}, 7
    s_cbranch_scc1 {lab}
    """)
        set_flag(p, 1)
        p.label(lab)
    NR = PL_B; GG = 144; TT = 176; XU = 176
    p(f"""
    ST3_0
    s_setprio 0
    v_lshrrev_b32 v{vT0}, 4, v1
    v_and_b32 v{vT1}, 3, v1
    v_bfe_u32 v{vT3}, v1, 2, 2
    v_lshlrev_b32 v{vW}, 4, v{vT1}
    v_lshl_add_u32 v{vW}, v{vT0}, 6, v{vW}
    v_lshl_add_u32 v{vW}, v{vT3}, 11, v{vW}
    v_add_u32 v{vW+1}, 7168, v{vW}
    v_mov_b32 v{vOut}, v{PL_OUT}
    s_waitcnt vmcnt(8)
    s_cmp_lg_u32 s{sMH}, s{sKH}
    s_cbranch_scc1 M_SEND0
    """)
    for j in range(16):
        p(f"v_lshlrev_b32 v{GG+2*j}, 16, v{NR+j}\nv_and_b32 v{GG+2*j+1}, 0xffff0000, v{NR+j}")
    for c in range(32): p(f"v_mul_f32 v{TT+c}, 0xbfb8aa3b, v{GG+c}")
    for c in range(32): p(f"v_exp_f32 v{TT+c}, v{TT+c}")
    for c in range(32): p(f"v_add_f32 v{TT+c}, 1.0, v{TT+c}")
    for c in range(32): p(f"v_rcp_f32 v{TT+c}, v{TT+c}")
    for c in range(32): p(f"v_mul_f32 v{GG+c}, v{GG+c}, v{TT+c}")
    arrive("M_ARR0", 0)
    p(f"s_sub_u32 s{sT3}, s{sBo}, 65536\ns_sub_u32 s{sT2}, s{sDW}, 8192")
    for sl in range(3):
        for hf in range(2):
            p(f"s_add_u32 m0, s{sT2}, {sl*32768 + hf*8192}\ns_nop 0")
            p(f"buffer_load_dwordx4 v{vW}, s[{SRD_B}:{SRD_B+3}], s{sT3} offen lds")
            p(f"buffer_load_dwordx4 v{vW+1}, s[{SRD_B}:{SRD_B+3}], s{sT3} offen offset:1024 lds")
            p(f"s_add_u32 s{sT3}, s{sT3}, 65536")
    for c in range(16):
        p(f"v_cvt_pk_bf16_f32 v{vT0}, v{GG+2*c}, v{GG+2*c+1}\nv_lshlrev_b32 v{GG+2*c}, 16, v{vT0}\nv_and_b32 v{GG+2*c+1}, 0xffff0000, v{vT0}")
        p(f"v_lshlrev_b32 v{XU+2*c}, 16, v{PL_A+c}\nv_and_b32 v{XU+2*c+1}, 0xffff0000, v{PL_A+c}")
    p("ST3_6\ns_branch M_JOIN0")
    p.label("M_SEND0")
    WD = PL_A; GR = PL_G; GA = 144; AC = 152; T = 160; SW = 164
    guld = gu_loads(GA)
    p(guld)
    arrive("M_ARR3", 8)
    p(f"s_mov_b32 s73, {SPIN_MAX}\ns_mov_b32 s{sIT}, 1\ns_waitcnt vmcnt(0)")
    p.label("M_POLL2")
    for q in range(8): p(f"v_xor_b32 v{GR+2*q+1}, s{sNON}, v{GR+2*q+1}")
    p(f"""
    v_or3_b32 v{GR+1}, v{GR+1}, v{GR+3}, v{GR+5}
    v_or3_b32 v{GR+7}, v{GR+7}, v{GR+9}, v{GR+11}
    v_or3_b32 v{GR+1}, v{GR+1}, v{GR+13}, v{GR+15}
    v_or_b32 v{GR+1}, v{GR+1}, v{GR+7}
    v_cmp_ne_u32 vcc, 0, v{GR+1}
    s_cbranch_vccz M_POLL2_OK
    s_cmp_lg_u32 s{sIT}, 0
    s_cbranch_scc1 M_ARR2
    s_mov_b32 s{sIT}, 1
    """)
    arrive("M_ARR2", 0)
    p(f"""
    s_sleep 10
    {guld}
    s_waitcnt vmcnt(0)
    s_sub_u32 s73, s73, 1
    s_cmp_lg_u32 s73, 0
    s_cbranch_scc1 M_POLL2
    """)
    p.label("M_POLL2_OK")
    p(f"v_mov_b32 v{GR+1}, v{GR+2}")
    for q in range(1, 4):
        p(f"v_add_f32 v{GR}, v{GR}, v{GR+4*q}\nv_add_f32 v{GR+1}, v{GR+1}, v{GR+4*q+2}")
    rbf(p, GR); rbf(p, GR + 1)
    silu(p, GR, GR, GR + 2)
    rbf(p, GR)
    p(f"v_mul_f32 v{GR}, v{GR}, v{GR+1}")
    rbf(p, GR)
    p(f"""
    s_lshl_b32 s{sT0}, s{sKQ}, 8
    s_add_u32 s{sT0}, s{sT0}, {L_H3}
    v_lshlrev_b32 v{vT0}, 2, v1
    v_add_u32 v{vT0}, s{sT0}, v{vT0}
    ds_write_b32 v{vT0}, v{GR}
    v_lshrrev_b32 v{vT1}, 3, v1
    v_lshlrev_b32 v{vT1}, 2, v{vT1}
    v_add_u32 v{vT1}, s{sT0}, v{vT1}
    s_waitcnt lgkmcnt(0)
    """)
    for i in range(7): p(f"ds_read_b32 v{GR+i}, v{vT1} offset:{i*32}")
    p("s_waitcnt lgkmcnt(0)")
    for i in range(7):
        for j in range(4):
            w = WD + 4 * i + j
            p(f"v_lshlrev_b32 v{T}, 16, v{w}\nv_and_b32 v{T+1}, 0xffff0000, v{w}")
            if i == 0: p(f"v_mul_f32 v{AC+2*j}, v{T}, v{GR}\nv_mul_f32 v{AC+2*j+1}, v{T+1}, v{GR}")
            else: p(f"v_fmac_f32 v{AC+2*j}, v{T}, v{GR+i}\nv_fmac_f32 v{AC+2*j+1}, v{T+1}, v{GR+i}")
    for c in range(8): p(f"v_add_f32_dpp v{AC+c}, v{AC+c}, v{AC+c} row_ror:8 row_mask:0xf bank_mask:0xf")
    for sw in ("v_permlane16_swap_b32", "v_permlane32_swap_b32"):
        for c in range(8): p(f"v_mov_b32 v{SW+c}, v{AC+c}")
        for c in range(8): p(f"{sw} v{AC+c}, v{SW+c}")
        for c in range(8): p(f"v_add_f32 v{AC+c}, v{AC+c}, v{SW+c}")
    p(f"""
    v_and_b32 v{vT0}, 7, v1
    v_lshlrev_b32 v{vT0}, 5, v{vT0}
    s_add_u32 s{sT0}, s{sT0}, 1024
    v_add_u32 v{vT0}, s{sT0}, v{vT0}
    ds_write_b128 v{vT0}, v[{AC}:{AC+3}]
    ds_write_b128 v{vT0}, v[{AC+4}:{AC+7}] offset:16
    v_mov_b32 v{vT0}, {CNT_B}
    v_mov_b32 v{vT1}, 1
    s_waitcnt lgkmcnt(0)
    s_mov_b64 exec, 1
    ds_add_rtn_u32 v{vT2}, v{vT0}, v{vT1}
    s_mov_b64 exec, -1
    s_waitcnt lgkmcnt(0)
    v_readfirstlane_b32 s{sT0}, v{vT2}
    s_cmp_lg_u32 s{sT0}, 3
    s_cbranch_scc1 M_SEND_END
    v_lshlrev_b32 v{vT0}, 2, v1
    v_add_u32 v{vT1}, {L_H3 + 1024}, v{vT0}
    ds_read_b32 v{GR}, v{vT1}
    ds_read_b32 v{GR+1}, v{vT1} offset:256
    ds_read_b32 v{GR+2}, v{vT1} offset:512
    ds_read_b32 v{GR+3}, v{vT1} offset:768
    s_lshl_b32 s{sT0}, s{sKG}, 13
    s_lshl_b32 s{sT1}, s{sCG}, 9
    s_add_u32 s{sT0}, s{sT0}, s{sT1}
    s_add_u32 s{sT0}, s{sT0}, {WS_YP}
    v_lshlrev_b32 v{vT0}, 1, v{vT0}
    v_add_u32 v{vT0}, s{sT0}, v{vT0}
    s_waitcnt lgkmcnt(0)
    v_add_f32 v{GR}, v{GR}, v{GR+1}
    v_add_f32 v{GR+2}, v{GR+2}, v{GR+3}
    v_add_f32 v{GR}, v{GR}, v{GR+2}
    v_mov_b32 v{GR+1}, s{sNON}
    global_store_dwordx2 v{vT0}, v[{GR}:{GR+1}], s[18:19] sc1
    """)
    p.label("M_SEND_END")
    p(f"s_cmp_lg_u32 s{sIT}, 0\ns_cbranch_scc1 M_JOIN0")
    arrive("M_ARR1", 0)
    p("ST3_6")
    p.label("M_JOIN0")
    p(f"""
    ST3_1
    s_add_u32 s{sBo}, s{sBo}, {3*131072}
    s_lshr_b32 s{sT0}, s{sRT}, 1
    s_lshl_b32 s{sT0}, s{sT0}, 1
    s_add_u32 s{sT0}, s{sT0}, s{sKH}
    s_lshl_b32 s{sT0}, s{sT0}, 11
    s_add_u32 s{sT0}, s{sT0}, {WS_FLG + 32768}
    v_and_b32 v{vFa}, 15, v1
    v_lshlrev_b32 v{vFa}, 7, v{vFa}
    v_add_u32 v{vFa}, s{sT0}, v{vFa}
    global_load_dword v{vFv}, v{vFa}, s[18:19] sc1
    v_lshlrev_b32 v{vAo}, 4, v1
    v_add_u32 v{vAo2}, 0x20000, v{vAo}
    s_mov_b32 s{sIT}, 0
    v_lshrrev_b32 v{vT0}, 4, v1
    v_and_b32 v{vT1}, 3, v1
    v_bfe_u32 v{vT3}, v1, 2, 2
    v_lshlrev_b32 v{vRW}, 11, v{vT0}
    v_lshl_add_u32 v{vRW}, v{vT3}, 6, v{vRW}
    v_lshl_add_u32 v{vRW}, v{vT1}, 4, v{vRW}
    s_lshl_b32 s{sT0}, s{sKQ}, 8
    s_add_u32 s{sT0}, s{sT0}, {RB1}
    v_add_u32 v{vRW}, s{sT0}, v{vRW}
    v_add_u32 v{vRW+1}, 0x10000, v{vRW}
    s_lshl_b32 s{sT0}, s{sMH}, 12
    s_add_u32 s{sT0}, s{sT0}, {RB1 + 16384}
    v_add_u32 v{vRO}, s{sT0}, v{vAo}
    v_add_u32 v{vRO+1}, 0x10000, v{vRO}
    """)
    for i in range(32): p(f"v_mov_b32 v{AC3+i}, 0")
    p(f"""
    s_mov_b32 s73, {SPIN_MAX}
M_POLL1:
    s_waitcnt vmcnt(0)
    v_cmp_eq_u32 vcc, s{sNON}, v{vFv}
    s_nop 1
    s_and_b32 s{sRM}, vcc_lo, 0xffff
    s_and_b32 s{sT0}, s{sRM}, 0xf
    s_cmp_eq_u32 s{sT0}, 0xf
    s_cbranch_scc1 M_POLL1_OK
    s_sleep 2
    global_load_dword v{vFv}, v{vFa}, s[18:19] sc1
    s_sub_u32 s73, s73, 1
    s_cmp_lg_u32 s73, 0
    s_cbranch_scc1 M_POLL1
M_POLL1_OK:
    s_mov_b32 s{sNM}, 0x3f
    ST3_2
    """)
    for sl in range(3):
        for t_ in odma(sl): p(t_)
    p("ST3_3\ns_waitcnt vmcnt(2)\nST3_4\ns_barrier\nST3_5")
    ST(False)
    lq = Q("lgkmcnt", 15)
    if stamp: p("s_waitcnt lgkmcnt(0)")
    RL = [("W", 0, 0, 0), ("W", 0, 0, 1), ("O", 0, 0), ("W", 0, 1, 0), ("W", 0, 1, 1), ("O", 0, 1), ("W", 1, 0, 0), ("W", 1, 0, 1),
          ("W", 1, 1, 0), ("W", 1, 1, 1), ("O", 1, 0), ("O", 1, 1), ("O", 2, 0), ("O", 2, 1), ("O", 3, 0), ("O", 3, 1)]
    def rd(slot, item):
        buf = slot & 1; hi = slot >> 1; so = (slot & 1) * 32768
        if item[0] == "W":
            _, e, u, t = item
            r = WFB + buf * 16 + (e * 2 + u) * 4 + 2 * t
            p(f"ds_read_b64_tr_b16 v[{r}:{r+1}], v{vRW+hi} offset:{so + u*8192 + t*1024 + e*8}")
        else:
            _, i, u = item
            r = OFB + buf * 32 + (i * 2 + u) * 4
            p(f"ds_read_b128 v[{r}:{r+3}], v{vRO+hi} offset:{so + u*8192 + i*1024}")
        lq.issue((buf,) + item)
    LAG = 4
    for it_ in RL[:16 - LAG]: rd(0, it_)
    st0 = list(lq.q)
    p(".p2align 6")
    p.label("M_P3")
    for st in range(4):
        n = (st + 3) & 3
        L = wdma(n) + odma(n)
        buf = st & 1
        m = 0
        for i in range(4):
            for e in range(2):
                for u in range(2):
                    lq.wait(p, (buf, "W", e, u, 1), (buf, "O", i, u))
                    d = AC3 + (i * 2 + e) * 4; a = WFB + buf * 16 + (e * 2 + u) * 4; b = OFB + buf * 32 + (i * 2 + u) * 4
                    p(f"v_mfma_f32_16x16x32_bf16 v[{d}:{d+3}], v[{a}:{a+3}], v[{b}:{b+3}], v[{d}:{d+3}]")
                    if m < LAG: rd(st, RL[16 - LAG + m])
                    else: rd((st + 1) & 3, RL[m - LAG])
                    if m % 4 == 1: p(L[m // 4])
                    m += 1
        if st == 3:
            p(f"""
    s_and_b32 s{sT0}, s{sRM}, s{sNM}
    s_cmp_lg_u32 s{sT0}, s{sNM}
    s_cbranch_scc1 M_RP
M_RP_RET:
    s_lshl_b32 s{sNM}, s{sNM}, 2
    s_or_b32 s{sNM}, s{sNM}, 3
    s_and_b32 s{sNM}, s{sNM}, 0xffff
    s_add_u32 s{sIT}, s{sIT}, 1
    s_cmp_lt_u32 s{sIT}, 8
    """)
        p("s_waitcnt vmcnt(4)\ns_barrier")
    assert lq.q == st0, (lq.q, st0)
    p(f"""
    s_cbranch_scc1 M_P3
    s_cmp_eq_u32 s{sMH}, s{sKH}
    s_cselect_b32 s{sT0}, 1, 0
    s_xor_b32 s{sT0}, s2, s{sT0}
    s_lshl_b32 s{sT0}, s{sT0}, 2
    s_add_u32 s{sT0}, s{sT0}, s{sKQ}
    s_lshl_b32 s{sT1}, s{sT0}, 13
    s_add_u32 s{sT1}, s{sT1}, {WS_EX}
    v_add_u32 v{vFa}, s{sT1}, v{vAo}
    v_add_u32 v{vFv}, 4096, v{vFa}
    s_lshl_b32 s{sT0}, s{sT0}, 7
    s_add_u32 s{sT0}, s{sT0}, {WS_FLG2}
    v_mov_b32 v{vT2}, s{sT0}
    v_mov_b32 v{vT3}, s{sNON}
    """)
    ST(False)
    p(f"""
    ST4_0
    s_cmp_eq_u32 s{sMH}, s{sKH}
    s_cbranch_scc1 M_KEEP1
    """)
    for f in range(8):
        p(f"global_store_dwordx4 v{vFv if f >= 4 else vFa}, v[{AC3+4*f}:{AC3+4*f+3}], s[18:19] offset:{(f&3)*1024} sc1")
    p(f"""
    ST4_1
    s_waitcnt vmcnt(0)
    ST4_2
    s_mov_b64 exec, 1
    global_store_dword v{vT2}, v{vT3}, s[18:19] sc1
    s_mov_b64 exec, -1
    """)
    if stamp:
        p("s_memrealtime s[98:99]")
        stamp_out(p, 0x3000000)
    p("s_branch K2_END")
    p.label("M_RP")
    p(f"""
    s_mov_b32 s73, {SPIN_MAX}
M_RP_L:
    global_load_dword v{vFv}, v{vFa}, s[18:19] sc1
    s_waitcnt vmcnt(0)
    v_cmp_eq_u32 vcc, s{sNON}, v{vFv}
    s_nop 1
    s_and_b32 s{sRM}, vcc_lo, 0xffff
    s_and_b32 s{sT0}, s{sRM}, s{sNM}
    s_cmp_eq_u32 s{sT0}, s{sNM}
    s_cbranch_scc1 M_RP_RET
    s_sleep 2
    s_sub_u32 s73, s73, 1
    s_cmp_lg_u32 s73, 0
    s_cbranch_scc1 M_RP_L
    s_branch M_RP_RET
    """)
    p.label("M_KEEP1")
    YR = 48
    p(f"""
    s_waitcnt lgkmcnt(0)
    s_lshl_b32 s{sT0}, s{sRT}, 1
    s_add_u32 s{sT0}, s{sT0}, s{sKH}
    s_lshr_b32 s{sT1}, s{sIDX}, 6
    s_cmp_lg_u32 s{sT0}, s{sT1}
    s_cbranch_scc1 M_H5
    s_mov_b32 s73, {SPIN_MAX}
M_POLL3:
    s_lshl_b32 s{sT0}, s{sCT}, 2
    s_add_u32 s{sT0}, s{sT0}, s{sKQ}
    s_lshl_b32 s{sT0}, s{sT0}, 8
    s_add_u32 s{sT0}, s{sT0}, {WS_YP}
    v_and_b32 v70, 15, v1
    v_lshlrev_b32 v70, 4, v70
    v_lshrrev_b32 v71, 4, v1
    v_lshl_add_u32 v70, v71, 15, v70
    v_add_u32 v70, s{sT0}, v70
    """)
    for q in range(4):
        p(f"global_load_dwordx4 v[{YR+4*q}:{YR+4*q+3}], v70, s[18:19] sc1")
        if q < 3: p(f"v_add_u32 v70, 8192, v70")
    p(f"s_waitcnt vmcnt(0)\nv_mov_b32 v71, 0")
    for q in range(4):
        p(f"v_xor_b32 v{YR+4*q+1}, s{sNON}, v{YR+4*q+1}\nv_xor_b32 v{YR+4*q+3}, s{sNON}, v{YR+4*q+3}")
        p(f"v_or3_b32 v71, v71, v{YR+4*q+1}, v{YR+4*q+3}")
    p(f"""
    v_cmp_ne_u32 vcc, 0, v71
    s_cbranch_vccz M_POLL3_OK
    s_sleep 10
    s_sub_u32 s73, s73, 1
    s_cmp_lg_u32 s73, 0
    s_cbranch_scc1 M_POLL3
M_POLL3_OK:
    s_lshr_b32 s{sT0}, s{sIDX}, 4
    s_lshl_b32 s{sT0}, s{sT0}, 15
    s_lshl_b32 s{sT1}, s{sCT}, 2
    s_add_u32 s{sT1}, s{sT1}, s{sKQ}
    s_lshl_b32 s{sT1}, s{sT1}, 10
    s_add_u32 s{sT0}, s{sT0}, s{sT1}
    s_and_b32 s{sT1}, s{sIDX}, 15
    s_lshl_b32 s{sT1}, s{sT1}, 4
    s_add_u32 s{sT0}, s{sT0}, s{sT1}
    v_bfe_u32 v70, v1, 2, 2
    v_lshlrev_b32 v70, 8, v70
    v_and_b32 v71, 3, v1
    v_lshl_add_u32 v70, v71, 2, v70
    v_add_u32 v70, s{sT0}, v70
    global_load_dword v72, v70, s[18:19] sc1
    s_and_b32 s{sT0}, s{sKEY}, 0xffff0000
    s_ashr_i32 s{sT1}, s{sT0}, 31
    s_not_b32 s{sT1}, s{sT1}
    s_or_b32 s{sT1}, s{sT1}, 0x80000000
    s_xor_b32 s{sT0}, s{sT0}, s{sT1}
    s_and_b32 s{sT0}, s{sT0}, 0xffff0000
    v_mov_b32 v73, s{sT0}
    v_mul_f32 v73, 0xbfb8aa3b, v73
    v_exp_f32 v73, v73
    v_add_f32 v73, 1.0, v73
    v_rcp_f32 v73, v73
    """)
    rbf(p, 73)
    p(f"v_mov_b32 v64, v{YR}\nv_mov_b32 v65, v{YR+2}")
    for q in range(1, 4):
        p(f"v_add_f32 v64, v64, v{YR+4*q}\nv_add_f32 v65, v65, v{YR+4*q+2}")
    for sw in ("v_permlane16_swap_b32", "v_permlane32_swap_b32"):
        p(f"v_mov_b32 v66, v64\nv_mov_b32 v67, v65\n{sw} v64, v66\n{sw} v65, v67\nv_add_f32 v64, v64, v66\nv_add_f32 v65, v65, v67")
    p("s_waitcnt vmcnt(0)\nv_lshlrev_b32 v66, 16, v72\nv_and_b32 v67, 0xffff0000, v72")
    for c in range(2):
        rbf(p, 64 + c)
        p(f"v_mul_f32 v{64+c}, v{64+c}, v73")
        rbf(p, 64 + c)
        p(f"v_add_f32 v{64+c}, v{64+c}, v{66+c}")
        rbf(p, 64 + c)
        silu(p, 64 + c, 64 + c, 68 + c)
        rbf(p, 64 + c)
    p(f"""
    s_lshl_b32 s{sT0}, s{sKQ}, 7
    s_add_u32 s{sT0}, s{sT0}, {L_H3 + 4096}
    v_and_b32 v70, 15, v1
    v_lshlrev_b32 v71, 3, v70
    v_add_u32 v71, s{sT0}, v71
    ds_write_b64 v71, v[64:65]
    v_lshrrev_b32 v71, 4, v1
    v_lshlrev_b32 v71, 5, v71
    v_add_u32 v71, s{sT0}, v71
    s_and_b32 s{sT0}, s{sIDX}, 63
    s_waitcnt lgkmcnt(0)
    ds_read_b128 v[48:51], v71
    ds_read_b128 v[52:55], v71 offset:16
    s_waitcnt lgkmcnt(0)
    """)
    for i in range(4):
        p(f"v_add_u32 v71, {16*i}, v70\nv_cmp_eq_u32 vcc, s{sT0}, v71")
        for c in range(8): p(f"v_cndmask_b32 v{GG+8*i+c}, v{GG+8*i+c}, v{48+c}, vcc")
    p.label("M_H5")
    prl = "\n".join(f"global_load_dwordx4 v[{PR+4*f}:{PR+4*f+3}], v{vFv if f >= 4 else vFa}, s[18:19] offset:{(f&3)*1024} sc1" for f in range(8))
    p(f"""
    ST4_1
    s_mov_b32 s73, {SPIN_MAX}
M_POLL4:
    global_load_dword v{vT3}, v{vT2}, s[18:19] sc1
    s_waitcnt vmcnt(0)
    v_cmp_ne_u32 vcc, s{sNON}, v{vT3}
    s_cbranch_vccz M_POLL4_OK
    s_sleep 1
    s_sub_u32 s73, s73, 1
    s_cmp_lg_u32 s73, 0
    s_cbranch_scc1 M_POLL4
M_POLL4_OK:
    ST4_2
    {prl}
    """)
    for i in range(4):
        p(f"s_waitcnt vmcnt({6 - 2*i + i})")
        for c in range(8): p(f"v_add_f32 v{AC3+8*i+c}, v{AC3+8*i+c}, v{PR+8*i+c}")
        for c in range(8): p(f"v_fmac_f32 v{XU+8*i+c}, v{AC3+8*i+c}, v{GG+8*i+c}")
        o = 48 + i * 4
        for j in range(4): p(f"v_cvt_pk_bf16_f32 v{o+j}, v{XU+i*8+2*j}, v{XU+i*8+2*j+1}")
        p(f"global_store_dwordx4 v{vOut}, v[{o}:{o+3}], s[78:79] sc1")
        if i < 3: p(f"v_add_u32 v{vOut}, 0x8000, v{vOut}")
    if DBGT[0] and stamp:
        p(f"""
    s_waitcnt vmcnt(0)
    s_memrealtime s[98:99]
    s_memtime s[62:63]
    s_lshl_b32 s60, s2, 3
    s_add_u32 s60, s60, s{sW}
    s_cmp_lg_u32 s60, {37*8+4}
    s_cbranch_scc1 M_DBGE
    s_waitcnt lgkmcnt(0)
    v_mov_b32 v16, 0
    """)
        for i in range(7):
            p(f"s_sub_u32 s60, s{82+2*i}, s{80+2*i}\nv_mov_b32 v17, s60\nglobal_store_dword v16, v17, s[66:67] offset:{8+4*i}")
        p("s_sub_u32 s60, s62, s94\nv_mov_b32 v17, s60\nglobal_store_dword v16, v17, s[66:67] offset:36")
        p("s_sub_u32 s60, s98, s96\nv_mov_b32 v17, s60\nglobal_store_dword v16, v17, s[66:67] offset:40")
        p.label("M_DBGE")
    elif DBGT[0]:
        p(f"""
    s_waitcnt vmcnt(0)
    s_memrealtime s[98:99]
    s_waitcnt lgkmcnt(0)
    v_mov_b32 v16, 4
    v_mov_b32 v17, s98
    s_mov_b64 exec, 1
    global_atomic_umax v16, v17, s[66:67] sc1
    s_mov_b64 exec, -1
    """)
    if stamp:
        p("ST4_3\ns_waitcnt vmcnt(0)\nST4_4\ns_memrealtime s[98:99]")
        stamp_out(p, 0x3000000)

def stamp_out(p, base):
    p(f"""
    s_waitcnt lgkmcnt(0)
    s_lshl_b32 s{sT0}, s2, 3
    s_add_u32 s{sT0}, s{sT0}, s{sW}
    s_lshl_b32 s{sT0}, s{sT0}, 6
    s_add_u32 s{sT0}, s{sT0}, {base}
    v_mov_b32 v{vT0}, s{sT0}
    """)
    for i in range(10):
        p(f"v_mov_b32 v{vT1}, s{80+2*i}\nglobal_store_dword v{vT0}, v{vT1}, s[18:19] offset:{4*i}")

def gen_mega(ffn=True, slow=True, stamp=False, dbg=()):
    p = Prog()
    stamps = []
    mode0 = 'st0' in dbg or 'st1' in dbg
    MODE0[0] = mode0
    DBGT[0] = 'dbgt' in dbg
    NOEW[0] = 'noew' in dbg
    MODE3[0] = 'st3' in dbg
    def ST0():
        if stamp and mode0 and 'st1' not in dbg:
            i = len(stamps); stamps.append(i)
            p(f"s_memtime s[{80+2*i}:{81+2*i}]")
    global _ST0
    _ST0 = ST0
    def ST(wait=True):
        if stamp and mode0 and len(stamps) > 0:
            if wait: p("s_waitcnt lgkmcnt(0)")
            return
        if stamp:
            i = len(stamps); stamps.append(i)
            if not (MODE3[0] and i == 6): p(f"s_memtime s[{80+2*i}:{81+2*i}]")
            if i == 0: p("s_memrealtime s[96:97]")
            if wait: p("s_waitcnt lgkmcnt(0)")
    name = KNAME
    kernel_header(p, name)
    p(f"""
    s_getpc_b64 s[{sPC}:{sPC+1}]
    s_cmp_ge_u32 s2, 256
    s_cbranch_scc1 K2_END
    s_load_dwordx2 s[74:75], s[0:1], 0
    s_load_dwordx2 s[76:77], s[0:1], 48
    s_load_dwordx4 s[8:11], s[0:1], 24
    s_load_dwordx2 s[18:19], s[0:1], 96
    s_load_dwordx4 s[4:7], s[0:1], 8
    s_load_dwordx4 s[12:15], s[0:1], 56
    s_load_dwordx2 s[16:17], s[0:1], 72
    s_load_dwordx2 s[78:79], s[0:1], 80
    s_load_dwordx2 s[66:67], s[0:1], 88
    s_setprio 3
    v_lshrrev_b32 v{vT2}, 6, v0
    v_and_b32 v1, 63, v0
    v_readfirstlane_b32 s{sW}, v{vT2}
    s_and_b32 s{sT0}, s2, 7
    s_lshr_b32 s{sT1}, s2, 3
    s_lshr_b32 s{sG}, s{sT0}, 1
    s_and_b32 s{sT0}, s{sT0}, 1
    s_lshl_b32 s{sT0}, s{sT0}, 2
    s_lshr_b32 s{sT2}, s{sT1}, 3
    s_add_u32 s{sRB}, s{sT0}, s{sT2}
    s_and_b32 s{sT1}, s{sT1}, 7
    s_lshl_b32 s{sHEAD}, s{sG}, 3
    s_add_u32 s{sHEAD}, s{sHEAD}, s{sT1}
    s_lshl_b32 s{sFL}, s{sRB}, 5
    s_add_u32 s{sFL}, s{sFL}, s{sHEAD}
    """)
    ST(False)
    p(f"""
    s_bfe_u32 s{sT0}, s2, 0x30003
    s_lshl_b32 s{sT0}, s{sT0}, 3
    s_add_u32 s{sT0}, s{sT0}, s{sW}
    s_lshl_b32 s{sT0}, s{sT0}, 10
    v_and_b32 v{E+1}, 7, v1
    v_lshlrev_b32 v{E+1}, 7, v{E+1}
    v_add_u32 v{E+1}, s{sT0}, v{E+1}
    v_min_u32 v{E+1}, CODESIZE, v{E+1}
    global_load_dword v{E}, v{E+1}, s[{sPC}:{sPC+1}]
    v_lshrrev_b32 v{vT0}, 4, v1
    v_and_b32 v{vT1}, 3, v1
    v_lshlrev_b32 v{vT1}, 4, v{vT1}
    v_lshl_add_u32 v{vT1}, v{vT0}, 6, v{vT1}
    v_bfe_u32 v{vT3}, v1, 2, 2
    v_lshl_add_u32 v{vDq}, v{vT3}, 13, v{vT1}
    v_and_b32 v{vDq2}, 1, v{vT2}
    v_lshlrev_b32 v{vDq2}, 5, v{vDq2}
    v_xor_b32 v{vDq}, v{vDq}, v{vDq2}
    v_add_u32 v{vDq2}, {32768-1024}, v{vDq}
    v_lshrrev_b32 v{vXB1}, 3, v1
    v_and_b32 v{vXD}, 7, v1
    v_xor_b32 v{vXD}, v{vXD}, v{vT0}
    v_lshlrev_b32 v{vXD}, 4, v{vXD}
    v_lshl_add_u32 v{vXD}, v{vXB1}, 11, v{vXD}
    v_xor_b32 v{vXD+1}, 64, v{vXD}
    v_add_u32 v{vXD+1}, {16384-1024}, v{vXD+1}
    v_add_u32 v{vXD+2}, {32768-2048}, v{vXD}
    v_add_u32 v{vXD+3}, {32768-2048}, v{vXD+1}
    s_lshl_b32 s{sXM}, s{sW}, 12
    s_add_u32 s{sXM}, s{sXM}, {L_X}
    s_lshl_b32 s{sWq}, s{sW}, 16
    s_lshl_b32 s{sM}, s{sW}, 11
    s_mov_b32 s{sB}, 0
    s_lshl_b32 s{sT0}, s{sHEAD}, 8
    s_lshl_b32 s{sT1}, s{sRB}, 3
    s_add_u32 s{sT1}, s{sT1}, s{sW}
    s_lshl_b32 s{sT1}, s{sT1}, 16
    s_mov_b32 s{SRD_WQ+3}, 0x20000
    s_sub_u32 s{SRD_WQ+2}, 0x800000, s{sT0}
    s_mov_b32 s{SRD_XN+2}, 0x10000
    s_mov_b32 s{SRD_XN+3}, 0x20000
    v_lshlrev_b32 v{E+2}, 4, v1
    v_lshl_add_u32 v{vLXA}, v{vT2}, 11, v{E+2}
    s_lshl_b32 s{sT2}, s{sFL}, 14
    v_add_u32 v{vLXA}, s{sT2}, v{vLXA}
    s_memrealtime s[{sT2}:{sT3}]
    s_waitcnt lgkmcnt(0)
    s_add_u32 s{SRD_WQ}, s8, s{sT0}
    s_addc_u32 s{SRD_WQ+1}, s9, 0
    s_add_u32 s{SRD_XN}, s74, s{sT1}
    s_addc_u32 s{SRD_XN+1}, s75, 0
    """)
    def dma_wq(slot, e):
        if e == 0:
            return f"""s_add_u32 m0, s{sM}, {slot*16384}
    s_nop 0
    buffer_load_dwordx4 v{vDq}, s[{SRD_WQ}:{SRD_WQ+3}], s{sWq} offen lds"""
        return f"""s_add_u32 m0, s{sM}, {slot*16384}
    s_nop 0
    buffer_load_dwordx4 v{vDq2}, s[{SRD_WQ}:{SRD_WQ+3}], s{sWq} offen offset:1024 lds
    s_add_u32 s{sWq}, s{sWq}, 524288"""
    def load_b(buf, k):
        t = ""
        if k == 0: t = f"s_add_u32 m0, s{sXM}, {(buf & 1)*32768}\ns_nop 0\n"
        t += f"buffer_load_dwordx4 v{vXD+k}, s[{SRD_XN}:{SRD_XN+3}], s{sB} offen offset:{k*1024} lds"
        if k == 3: t += f"\ns_add_u32 s{sB}, s{sB}, 128"
        return t
    lq = Q("lgkmcnt", 15); vq = Q("vmcnt", 63)
    vq.issue(("CP", 0))
    def J(tag, code): p(code); vq.issue(tag)
    LXj = lambda n: (("LX", n), f"global_load_dwordx4 v[{LN_X+4*n}:{LN_X+4*n+3}], v{vLXA}, s[74:75] offset:{n*1024}")
    CSj = lambda n: (("CS", n), f"s_mov_b32 s{sT3}, {n*0x200000}\nbuffer_load_dwordx4 v[{CSR+4*n}:{CSR+4*n+3}], v{vCSA}, s[{SRD_WQ}:{SRD_WQ+3}], s{sT3} offen")
    WRj = lambda n: (("LX", 2 + n), f"global_load_dwordx4 v[{LN_W+4*n}:{LN_W+4*n+3}], v{E+2}, s[76:77] offset:{n*1024}")
    J(*LXj(0)); J(*LXj(1)); J(*WRj(0)); J(*WRj(1))
    J(("W", 0, 0), dma_wq(0, 0)); J(("W", 0, 1), dma_wq(0, 1))
    for kk in range(4): J(("X", 0, kk), load_b(0, kk))
    J(("W", 1, 0), dma_wq(1, 0)); J(("W", 1, 1), dma_wq(1, 1))
    ST0()
    p("s_setprio 0")
    p(f"s_mov_b32 s{sKEY}, s{sT2}\ns_mov_b32 s{sIDX}, s{sT0}")
    partA1, partA2, partB = ln_segments(lq, vq, p)
    for it_ in partA1 + partB:
        if callable(it_): it_()
        else: p(it_)
    p(f"s_mov_b32 s{sT2}, s{sKEY}\ns_mov_b32 s{sT0}, s{sIDX}")
    ST0()
    for kk in range(4): J(("X", 1, kk), load_b(1, kk))
    J(("W", 2, 0), dma_wq(2, 0)); J(("W", 2, 1), dma_wq(2, 1))
    p(f"""
    s_or_b32 s{sT3}, s2, s{sW}
    s_cmp_lg_u32 s{sT3}, 0
    s_cbranch_scc1 M_NONZ
    s_or_b32 s{sT2}, s{sT2}, 1
    v_mov_b32 v{E+2}, 0
    v_mov_b32 v{E+3}, s{sT2}
    s_mov_b64 exec, 1
    global_store_dword v{E+2}, v{E+3}, s[66:67] sc1
    s_mov_b64 exec, -1
M_NONZ:
    v_bfe_u32 v{E+1}, v0, 4, 3
    v_lshlrev_b32 v{E+1}, 13, v{E+1}
    v_lshrrev_b32 v{vNON}, 7, v0
    v_lshl_add_u32 v{E+1}, v{vNON}, 19, v{E+1}
    v_and_b32 v{vNON}, 15, v0
    v_lshl_add_u32 v{E+1}, v{vNON}, 4, v{E+1}
    s_lshl_b32 s{sT2}, s{sRB}, 16
    v_add_u32 v{vCSA}, s{sT2}, v{E+1}
    """)
    J(*CSj(0 if 'cs0' in dbg else 1))
    if 'cs01' in dbg: J(*CSj(0))
    ST0()
    p(f"""
    v_bfe_u32 v{vXB1}, v1, 1, 3
    v_xor_b32 v{vXB1}, v{vXB1}, v{vT0}
    v_lshlrev_b32 v{vXB1}, 4, v{vXB1}
    v_and_b32 v{vXB0}, 15, v1
    v_lshl_add_u32 v{vXB0}, v{vXB0}, 7, v{vXB1}
    v_add_u32 v{vXB0}, s{sXM}, v{vXB0}
    v_xor_b32 v{vXB1}, 64, v{vXB0}
    v_lshl_add_u32 v{vDv}, v{vT3}, 8, v{vT1}
    v_mul_u32_u24 v{vDf}, {8*7168}, v{vT0}
    v_and_b32 v{vT1}, 15, v1
    v_lshl_add_u32 v{vDf}, v{vT1}, 4, v{vDf}
    v_and_b32 v{vT0}, 3, v1
    v_lshrrev_b32 v{vT1}, 2, v1
    v_lshlrev_b32 v{vT1}, 4, v{vT1}
    v_lshl_add_u32 v{vDk}, v{vT0}, 8, v{vT1}
    v_lshrrev_b32 v{vT1}, 4, v1
    v_lshlrev_b32 v{vA0}, 11, v{vT1}
    v_lshl_add_u32 v{vA0}, v{vT3}, 6, v{vA0}
    v_lshl_add_u32 v{vA0}, v{vT0}, 3, v{vA0}
    v_and_b32 v{vT1}, 1, v{vT1}
    v_lshl_add_u32 v{vA0}, v{vT1}, 5, v{vA0}
    v_xor_b32 v{vA1}, 32, v{vA0}
    v_bfe_u32 v{vT0}, v1, 1, 1
    v_and_b32 v{vT2}, 1, v1
    v_lshl_add_u32 v{vT0}, v{vT2}, 1, v{vT0}
    v_lshl_add_u32 v{vT0}, v{vT1}, 2, v{vT0}
    v_lshlrev_b32 v{vT0}, 3, v{vT0}
    v_lshl_add_u32 v{vT0}, v{vT3}, 6, v{vT0}
    v_lshrrev_b32 v{vT1}, 5, v1
    v_lshl_add_u32 v{vVa}, v{vT1}, 10, v{vT0}
    v_add_u32 v{vVb}, {L_X}, v{vVa}
    v_bfe_u32 v{vT0}, v1, 2, 3
    v_mul_u32_u24 v{vT0}, 1088, v{vT0}
    v_lshl_add_u32 v{vT0}, v{vT1}, 6, v{vT0}
    v_and_b32 v{vKb}, 3, v1
    v_lshl_add_u32 v{vKb}, v{vKb}, 4, v{vT0}
    v_add_u32 v{vKh}, {L_HI}, v{vKb}
    v_add_u32 v{vKb}, {L_X}, v{vKb}
    v_bfe_u32 v{vT0}, v1, 4, 1
    v_lshlrev_b32 v{vT0}, 10, v{vT0}
    v_lshl_add_u32 v{vT0}, v{vT1}, 8, v{vT0}
    v_and_b32 v{vO}, 15, v1
    v_lshl_add_u32 v{vO}, v{vO}, 4, v{vT0}
    s_lshl_b32 s{sT0}, s{sG}, 19
    s_add_u32 s{sT0}, s{sT0}, 393216
    s_add_u32 s{SRD_K}, s4, s{sT0}
    s_addc_u32 s{SRD_K+1}, s5, 0
    s_mov_b32 s{SRD_K+2}, 0x20000
    s_mov_b32 s{SRD_K+3}, 0x20000
    s_add_u32 s{SRD_V}, s6, s{sT0}
    s_addc_u32 s{SRD_V+1}, s7, 0
    s_mov_b32 s{SRD_V+2}, 0x20000
    s_mov_b32 s{SRD_V+3}, 0x20000
    s_add_u32 s{SRD_OT}, s18, {WS_OT}
    s_addc_u32 s{SRD_OT+1}, s19, 0
    s_mov_b32 s{SRD_OT+2}, 0x1000000
    s_mov_b32 s{SRD_OT+3}, 0x20000
    s_mul_i32 s{sKw}, s{sW}, 1088
    s_lshl_b32 s{sVw}, s{sW}, 10
    s_mov_b32 s{sKsrc}, s{sVw}
    s_mov_b32 s{sVsrc}, s{sVw}
    s_mov_b32 s{sN}, 0
    s_mov_b32 s{sPL}, 0x05040100
    s_mov_b32 s{sPH}, 0x07060302
    s_lshr_b32 s{sT0}, s2, 2
    s_and_b32 s{sT1}, s2, 3
    s_cmp_ge_u32 s{sT0}, 28
    s_cselect_b32 s{SRD_F}, s14, s12
    s_cselect_b32 s{SRD_F+1}, s15, s13
    s_cselect_b32 s{sT2}, 28, 0
    s_sub_u32 s{sT2}, s{sT0}, s{sT2}
    s_lshl_b32 s{sT2}, s{sT2}, 8
    s_mul_i32 s{sT3}, s{sT1}, {256*7168}
    s_add_u32 s{sT2}, s{sT2}, s{sT3}
    s_add_u32 s{SRD_F}, s{SRD_F}, s{sT2}
    s_addc_u32 s{SRD_F+1}, s{SRD_F+1}, 0
    s_cmp_lt_u32 s2, 224
    s_cselect_b32 s{SRD_F+2}, {255*7168+256}, 0
    s_mov_b32 s{SRD_F+3}, 0x20000
    s_mul_i32 s{sFsrc}, s{sW}, {32*7168}
    s_lshl_b32 s{sOT}, s{sHEAD}, 19
    s_lshl_b32 s{sT1}, s{sRB}, 14
    s_add_u32 s{sOT}, s{sOT}, s{sT1}
    s_lshl_b32 s{sT1}, s{sW}, 11
    s_add_u32 s{sOT}, s{sOT}, s{sT1}
    """)
    ST0()
    vq.wait(p, ("W", 1, 1)); lq.wait(p, ("LW", 2))
    ST0()
    p("s_barrier")
    ST0()
    if 'st1' in dbg: p("s_memtime s[80:81]")
    ST()
    def a_read(slot, T, u, t):
        r = AF + (T & 3) * 8 + u * 4 + t * 2
        p(f"ds_read_b64_tr_b16 v[{r}:{r+1}], v{vA1 if T & 1 else vA0} offset:{slot*16384 + u*8192 + t*1024 + (T>>1)*256}")
        lq.issue(("A", T & 3, u, t))
    def job_k(t):
        return (("K", t), f"""s_add_u32 m0, s{sKw}, {Kabs(t)}
    s_nop 0
    buffer_load_dwordx4 v{vDk}, s[{SRD_K}:{SRD_K+3}], s{sKsrc} offen lds
    s_add_u32 s{sKsrc}, s{sKsrc}, 8192""")
    def job_v(t):
        return (("V", t), f"""s_add_u32 m0, s{sVw}, {Vabs(t)}
    s_nop 0
    buffer_load_dwordx4 v{vDv}, s[{SRD_V}:{SRD_V+3}], s{sVsrc} offen lds
    s_add_u32 s{sVsrc}, s{sVsrc}, 8192""")
    def job_f(i):
        return (("F", i), f"""buffer_load_dwordx4 v[{FR+4*i}:{FR+4*i+3}], v{vDf}, s[{SRD_F}:{SRD_F+3}], s{sFsrc} offen
    s_add_u32 s{sFsrc}, s{sFsrc}, 7168""")
    def run(job):
        if not job: return
        if isinstance(job, str): p(job); return
        if callable(job): job(); return
        tag, code = job
        p(code); vq.issue(tag)
    def k_read(t, j):
        if 'nok' in dbg: return
        r = KF + (j % D) * 4
        ka = Kabs(t); kb, ko = (vKh, ka - L_HI) if ka >= L_HI else (vKb, ka - L_X)
        p(f"ds_read_b128 v[{r}:{r+3}], v{kb} offset:{ko + j*128}")
        lq.issue(("K", j % D))
    def v_read(t, i):
        if 'nov' in dbg: return
        ks, dt = i >> 2, i & 3
        r = VF + (i % D) * 4
        o = Vabs(t); va = vVa
        if o >= L_X: o -= L_X; va = vVb
        p(f"ds_read_b64_tr_b16 v[{r}:{r+1}], v{va} offset:{o + ks*4096 + dt*256}")
        lq.issue(("Va", i % D))
        p(f"ds_read_b64_tr_b16 v[{r+2}:{r+3}], v{va} offset:{o + ks*4096 + 2048 + dt*256}")
        lq.issue(("V", i % D))
    LA = 3 if 'la3' in dbg else 2
    def b_read(buf, k):
        ct, u = k >> 1, k & 1
        r = BRr(buf, k)
        p(f"ds_read_b128 v[{r}:{r+3}], v{vXB1 if u else vXB0} offset:{(buf & 1)*32768 + ct*2048}")
        lq.issue(("B", buf & 1, k))
    for T in range(LA):
        for u in range(2):
            for t in range(2): a_read(0, T, u, t)
        if T < 2: b_read(0, 2 * T); b_read(0, 2 * T + 1)
    fill = []
    FILLRATE = 1
    CSSTART = 4
    for d_ in dbg:
        if d_.startswith('fr'): FILLRATE = float(d_[2:])
    fillacc = [0.0]
    barpassed = [0]
    def stage(slot, vm, last=False, xw="s_waitcnt vmcnt(8)", first=False, vm2=()):
        for T in range(8):
            a = AF + (T & 3) * 8
            Tn = T + LA; ns = slot
            if Tn >= 8: Tn -= 8; ns = (slot + 1) & 3
            rd = not (last and T + LA >= 8)
            k = 0
            for ct in range(2):
                for u in range(2):
                    d = QA + (T * 2 + ct) * 4; b = BRr(slot, ct * 2 + u)
                    if 'w1' in dbg: lq.wait(p, ("A", T & 3, 1, 1), ("B", slot & 1, 3))
                    lq.wait(p, ("A", T & 3, u, 1), ("B", slot & 1, ct * 2 + u))
                    cc = "0" if (first and u == 0) else f"v[{d}:{d+3}]"
                    p(f"v_mfma_f32_16x16x32_bf16 v[{d}:{d+3}], v[{a+4*u}:{a+4*u+3}], v[{b}:{b+3}], {cc}")
                    if rd: a_read(ns, Tn, k >> 1, k & 1)
                    fillacc[0] += FILLRATE
                    while fillacc[0] >= 1.0:
                        fillacc[0] -= 1.0
                        if fill and fill[0] == "BAR":
                            if barpassed[0] >= 1: fill.pop(0)
                        if fill and fill[0] != "BAR": run(fill.pop(0))
                    if k == 1 and T < len(vm2): run(vm2[T])
                    k += 1
            if T < len(vm): run(vm[T])
            if not last:
                if T == 6:
                    run(xw); b_read(slot + 1, 0); b_read(slot + 1, 1)
                if T == 7:
                    b_read(slot + 1, 2); b_read(slot + 1, 3)
    def std_vm(slot):
        n = (slot + 3) & 3
        return [load_b(slot, 0), load_b(slot, 1), load_b(slot, 2), load_b(slot, 3), dma_wq(n, 0), dma_wq(n, 1)]
    xwait = lambda tag: (lambda: vq.wait(p, tag))
    def tagged(i):
        sv = std_vm(i & 3)
        return [(("X", i + 2, kk), sv[kk]) for kk in range(4)] + [(("W", i + 3, 0), sv[4]), (("W", i + 3, 1), sv[5])]
    kvpf = (("KP", 0), f"""s_lshr_b32 s{sT2}, s{sFL}, 6
    s_lshl_b32 s{sT2}, s{sT2}, 19
    s_and_b32 s{sT3}, s{sFL}, 63
    s_lshl_b32 s{sT3}, s{sT3}, 11
    s_add_u32 s{sT2}, s{sT2}, s{sT3}
    s_add_u32 s{sT2}, s{sT2}, 393216
    v_lshlrev_b32 v{E+3}, 2, v0
    v_add_u32 v{E+3}, s{sT2}, v{E+3}
    global_load_dword v{E}, v{E+3}, s[4:5]""")
    kvpf2 = (("KP", 1), f"global_load_dword v{E}, v{E+3}, s[6:7]")
    nonld = f"""s_cmp_lg_u32 s{sW}, 0
    s_cbranch_scc1 M_NL1
    v_mov_b32 v{E+2}, 0
    global_load_dword v{vNON}, v{E+2}, s[66:67] sc1
M_NL1:"""
    def nonchk():
        p(f"""
    s_cmp_lg_u32 s{sW}, 0
    s_cbranch_scc1 M_NL2
    v_readfirstlane_b32 s{sNON}, v{vNON}
    s_cmp_lg_u32 s{sNON}, 0
    s_cbranch_scc1 M_NSPIN_OK
    v_mov_b32 v{E+2}, 0
    """)
        get_nonce(p, "M_NSPIN", E + 2, vNON)
        p(f"""
    v_mov_b32 v{E+2}, {L_SC + 16416}
    ds_write_b32 v{E+2}, v{vNON}
    s_waitcnt lgkmcnt(0)
M_NL2:
    """)
    def nonrd():
        p(f"v_mov_b32 v{E+2}, {L_SC + 16416}\nds_read_b32 v{vNON}, v{E+2}"); lq.issue(("NR", 0))
    def nonrd2():
        lq.wait(p, ("NR", 0)); p(f"v_readfirstlane_b32 s{sNON}, v{vNON}")
    seg1, seg2 = pub_segments(lq, vq, p)
    extra1 = {0: [None if 'cs01' in dbg else CSj(1 if 'cs0' in dbg else 0)], 1: [CSj(2), nonld], 2: [CSj(3), kvpf], 3: [kvpf2], 4: [None, nonchk], 5: [nonrd, nonrd2]}
    state = "X"
    for i in range(12):
        ex = list(extra1.get(i, []))
        if i == 1: fill.extend(seg2)
        if i == CSSTART: assert not fill; fill.extend(partA2); state = "A"
        stage(i & 3, tagged(i) + ex, xw=xwait(("X", i + 1, 3)), first=(i == 0))
        vq.wait(p, ("W", i + 2, 1))
        if state == "A" and not fill:
            lq.wait(p, ("LW", 5)); state = "B"; fill.extend(seg1); print("colsum done at stage", i)
        elif state == "B" and not fill:
            state = "done"; print("pub done at stage", i)
        p("s_barrier")
        if 'st1' in dbg and i in (2, 4, 7, 9, 11):
            n_ = (2, 4, 7, 9, 11).index(i) + 1
            p(f"s_memtime s[{80+2*n_}:{81+2*n_}]\ns_waitcnt lgkmcnt(0)")
    assert state == "done" and not fill, (state, len(fill))
    sv = std_vm(0)
    stcode = f"""s_lshl_b32 s{sT0}, s{sRB}, 3
    s_add_u32 s{sT0}, s{sT0}, s{sW}
    s_lshl_b32 s{sT0}, s{sT0}, 8
    s_add_u32 s{sT0}, s{sT0}, {WS_ST}
    v_and_b32 v{vT0}, 15, v1
    v_lshlrev_b32 v{vT0}, 3, v{vT0}
    v_add_u32 v{vT0}, s{sT0}, v{vT0}
    global_load_dwordx2 v[250:251], v{vT0}, s[18:19] sc1
    global_load_dwordx2 v[252:253], v{vT0}, s[18:19] offset:128 sc1
    s_lshl_b32 s{sT0}, s{sHEAD}, 13
    s_lshl_b32 s{sT1}, s{sW}, 7
    s_add_u32 s{sT0}, s{sT0}, s{sT1}
    s_add_u32 s{sT0}, s{sT0}, {WS_CS}
    v_lshrrev_b32 v{vT1}, 3, v1
    v_lshlrev_b32 v{vT1}, 10, v{vT1}
    v_and_b32 v{vT2}, 7, v1
    v_lshl_add_u32 v{vT1}, v{vT2}, 4, v{vT1}
    v_add_u32 v{vT1}, s{sT0}, v{vT1}
    global_load_dwordx4 v[{E}:{E+3}], v{vT1}, s[18:19] sc1"""
    stchk = f"""v_xor_b32 v{vT0}, s{sNON}, v251
    v_xor_b32 v{vT1}, s{sNON}, v253
    v_xor_b32 v{vT2}, s{sNON}, v{E+1}
    v_xor_b32 v{vT3}, s{sNON}, v{E+3}
    v_or3_b32 v{vT0}, v{vT0}, v{vT1}, v{vT2}
    v_or_b32 v{vT0}, v{vT0}, v{vT3}
    v_cmp_ne_u32 vcc, 0, v{vT0}"""
    def stld():
        p(stcode); vq.issue(("ST", 0)); vq.issue(("ST", 1)); vq.issue(("ST", 2))
    def stuse():
        vq.wait(p, ("ST", 2))
        p(stchk)
        p(f"s_mov_b32 s73, {SPIN_MAX}\ns_cbranch_vccnz M_SSPIN")
        p.label("M_SSPIN_RET")
        for c in (E, E + 2): p(f"v_add_f32_dpp v{c}, v{c}, v{c} row_ror:8 row_mask:0xf bank_mask:0xf")
        for sw in ("v_permlane16_swap_b32", "v_permlane32_swap_b32"):
            p(f"v_mov_b32 v{E+1}, v{E}\nv_mov_b32 v{E+3}, v{E+2}")
            p(f"{sw} v{E}, v{E+1}\n{sw} v{E+2}, v{E+3}")
            p(f"v_add_f32 v{E}, v{E}, v{E+1}\nv_add_f32 v{E+2}, v{E+2}, v{E+3}")
        p(f"""
    v_mov_b32 v{E+1}, v{E+2}
    v_and_b32 v{vT0}, 7, v1
    v_lshlrev_b32 v{vT0}, 3, v{vT0}
    s_lshl_b32 s{sT0}, s{sW}, 6
    s_add_u32 s{sT0}, s{sT0}, {L_FP}
    v_add_u32 v{vT0}, s{sT0}, v{vT0}
    ds_write_b64 v{vT0}, v[{E}:{E+1}]
    v_and_b32 v251, 0xffff0000, v250
    v_and_b32 v253, 0xffff0000, v252
    v_rcp_f32 v251, v251
    v_rcp_f32 v253, v253
    v_lshlrev_b32 v250, 16, v250
    v_lshlrev_b32 v252, 16, v252
    v_mul_f32 v251, {fbits(QSCALE)}, v251
    v_mul_f32 v253, {fbits(QSCALE)}, v253
    """)
        lq.issue(("CSW", 0))
    stage(0, tagged(12) + [stld, job_k(0)], xw=xwait(("X", 13, 3)))
    vq.wait(p, ("W", 14, 1)); p("s_barrier")
    stage(1, tagged(13)[:4] + [job_k(1), job_k(2)], xw=xwait(("X", 14, 3)))
    vq.wait(p, ("W", 15, 1)); lq.wait(p, ("B", 0, 3)); p("s_barrier")
    if 'st1' in dbg: p("s_memtime s[92:93]\ns_waitcnt lgkmcnt(0)")
    stage(2, [job_k(3), job_v(0), job_v(1), None, stuse], xw=xwait(("X", 15, 3)))
    vq.wait(p, ("K", 1)); lq.wait(p, ("CSW", 0), ("B", 1, 3)); p("s_barrier")
    stage(3, [job_k(4), job_k(5), job_v(2), job_k(6)], last=True)
    if 'st1' in dbg: p("s_memtime s[94:95]\ns_waitcnt lgkmcnt(0)")
    ST()
    if stamp: lq.q = []
    CSV = 212
    p(f"""
    v_lshrrev_b32 v{vT0}, 4, v1
    v_lshlrev_b32 v{vT0}, 4, v{vT0}
    v_add_u32 v{vT0}, {L_FP}, v{vT0}
    """)
    for T in range(8):
        p(f"ds_read_b128 v[{CSV+4*T}:{CSV+4*T+3}], v{vT0} offset:{T*64}"); lq.issue(("CS", T))
    for j in range(D): k_read(0, j)
    for T in range(8):
        lq.wait(p, ("CS", T))
        for ct in range(2):
            a = QA + (T * 2 + ct) * 4
            for r in range(4): p(f"v_fma_f32 v{a+r}, -v{250+2*ct}, v{CSV+4*T+r}, v{a+r}")
            for r in range(4): p(f"v_mul_f32 v{a+r}, v{251+2*ct}, v{a+r}")
        for ct in range(2):
            a = QA + (T * 2 + ct) * 4
            for k in range(2): p(f"v_cvt_pk_bf16_f32 v{QP + 4*T + 2*ct + k}, v{a+2*k}, v{a+2*k+1}")
        if T > 0:
            for k in range(2): p(f"v_permlane16_swap_b32 v{QP + 4*(T-1) + k}, v{QP + 4*(T-1) + 2 + k}")
    for k in range(2): p(f"v_permlane16_swap_b32 v{QP + 28 + k}, v{QP + 30 + k}")
    def qk(j, sbuf, cinit):
        lq.wait(p, ("K", j % D))
        k = KF + (j % D) * 4; q = QP + 4 * j; d = S + 16 * sbuf
        c = cinit if j == 0 else f"v[{d}:{d+15}]"
        p(f"v_mfma_f32_32x32x16_bf16 v[{d}:{d+15}], v[{k}:{k+3}], v[{q}:{q+3}], {c}")
    def pv(i, pbuf, first=False):
        lq.wait(p, ("V", i % D))
        ks, dt = i >> 2, i & 3
        v = VF + (i % D) * 4; b = P + 8 * pbuf + 4 * ks; d = ACC + 16 * dt
        cc = "0" if (first and ks == 0) else f"v[{d}:{d+15}]"
        p(f"v_mfma_f32_32x32x16_bf16 v[{d}:{d+15}], v[{v}:{v+3}], v[{b}:{b+3}], {cc}")
    for j in range(8):
        qk(j, 0, "0")
        k_read(0 if j + D < 8 else 1, (j + D) % 8)
    vq.wait(p, ("K", 3), ("V", 1)); p("s_barrier")
    p(f"""
    s_cmp_lg_u32 s{sW}, 4
    s_cbranch_scc1 M_NOKEY
    s_lshl_b32 s{sT0}, s{sFL}, 3
    s_add_u32 s{sT0}, s{sT0}, {WS_KEYS}
    v_mov_b32 v{vT0}, s{sT0}
    v_mov_b32 v{FD}, s{sKEY}
    v_mov_b32 v{FD+1}, s{sNON}
    s_mov_b64 exec, 1
    global_store_dwordx2 v{vT0}, v[{FD}:{FD+1}], s[18:19] sc1
    s_mov_b64 exec, -1
M_NOKEY:
    """)
    ST()
    if stamp: lq.q = []
    s0 = S
    p(f"""
    v_max3_f32 v{vT0}, v{s0}, v{s0+1}, v{s0+2}
    v_max3_f32 v{vT1}, v{s0+3}, v{s0+4}, v{s0+5}
    v_max3_f32 v{vT0}, v{vT0}, v{s0+6}, v{s0+7}
    v_max3_f32 v{vT1}, v{vT1}, v{s0+8}, v{s0+9}
    v_max3_f32 v{vT0}, v{vT0}, v{s0+10}, v{s0+11}
    v_max3_f32 v{vT1}, v{vT1}, v{s0+12}, v{s0+13}
    v_max3_f32 v{vT0}, v{vT0}, v{s0+14}, v{s0+15}
    v_max_f32 v{vT0}, v{vT0}, v{vT1}
    v_mov_b32 v{vT1}, v{vT0}
    v_permlane32_swap_b32 v{vT0}, v{vT1}
    v_max_f32 v{vT0}, v{vT0}, v{vT1}
    """)
    for i in range(16): p(f"v_sub_f32 v{NEGM+i}, 0, v{vT0}")
    for i in range(16): p(f"v_sub_f32 v{s0+i}, v{s0+i}, v{vT0}")
    p(f"v_mov_b32 v{vT2}, {L_HI + 2*KSL + 6*1088 + 1024}\nv_mov_b32 v{vT3}, 0")
    p(f"ds_write_b32 v{vT2}, v{vT3}"); lq.issue(("Z", 0))
    p(f"ds_write_b32 v{vT2}, v{vT3} offset:1088"); lq.issue(("Z", 1))
    cold = 'nof' not in dbg
    SRD_P = 68; sPo = 72
    def pf(n):
        if not cold or 'nopf' in dbg: return None
        pre = ""
        if n == 0:
            pre = f"""s_and_b32 s{sT0}, s2, 1
    s_lshl_b32 s{sT0}, s{sT0}, 2
    s_bfe_u32 s{sT1}, s2, 0x20001
    s_add_u32 s{sT0}, s{sT0}, s{sT1}
    s_lshl_b32 s{sT0}, s{sT0}, 5
    s_lshr_b32 s{sT1}, s2, 3
    s_add_u32 s{sT0}, s{sT0}, s{sT1}
    s_lshl_b32 s{sT0}, s{sT0}, 15
    s_add_u32 s{SRD_P}, s10, s{sT0}
    s_addc_u32 s{SRD_P+1}, s11, 0
    s_mov_b32 s{SRD_P+2}, 0x8000
    s_mov_b32 s{SRD_P+3}, 0x20000
    s_mov_b32 s{sPo}, 0
    """
        elif n == 4:
            pre = f"""s_mul_i32 s{sT0}, s2, 28672
    s_add_u32 s{SRD_P}, s16, s{sT0}
    s_addc_u32 s{SRD_P+1}, s17, 0
    s_mov_b32 s{SRD_P+2}, 28672
    s_mov_b32 s{sPo}, 0
    """
        return (("PF", n), pre + f"""s_add_u32 m0, s{sVw}, {VADDR[5]}
    v_lshlrev_b32 v{vT3}, 4, v0
    buffer_load_dwordx4 v{vT3}, s[{SRD_P}:{SRD_P+3}], s{sPo} offen lds
    s_add_u32 s{sPo}, s{sPo}, 8192""")
    flagld = None
    keycode = f"""v_lshlrev_b32 v{vT2}, 5, v1
    v_add_u32 v{vT2}, {WS_KEYS}, v{vT2}
    global_load_dwordx4 v[{FT}:{FT+3}], v{vT2}, s[18:19] sc1
    global_load_dwordx4 v[{FT+4}:{FT+7}], v{vT2}, s[18:19] offset:16 sc1"""
    keychk = f"""v_xor_b32 v{FT+1}, s{sNON}, v{FT+1}
    v_xor_b32 v{FT+3}, s{sNON}, v{FT+3}
    v_xor_b32 v{FT+5}, s{sNON}, v{FT+5}
    v_xor_b32 v{FT+7}, s{sNON}, v{FT+7}
    v_or3_b32 v{FT+1}, v{FT+1}, v{FT+3}, v{FT+5}
    v_or_b32 v{FT+1}, v{FT+1}, v{FT+7}
    v_cmp_ne_u32 vcc, 0, v{FT+1}"""
    KEYL = L_HI + 2*KSL + 5*1088 + 1024
    def keyld():
        p(f"s_cmp_lg_u32 s{sW}, 0\ns_cbranch_scc1 M_KL1\n{keycode}\nM_KL1:")
        vq.issue(("KYmark", 0))
        vq.q.pop()
        keymark.append(len(vq.q)); keypos[0] = list(vq.q)
    keymark = []; keypos = [None]
    def keyred():
        n = len([t for t in vq.q if t not in keypos[0]])
        p(f"s_cmp_lg_u32 s{sW}, 0\ns_cbranch_scc1 M_KL2\ns_waitcnt vmcnt({n})")
        p(keychk)
        p(f"s_mov_b32 s73, {SPIN_MAX}\ns_cbranch_vccnz M_KSPIN")
        p.label("M_KSPIN_RET")
        p(f"v_max3_u32 v{FT}, v{FT}, v{FT+2}, v{FT+4}\nv_max_u32 v{FT}, v{FT}, v{FT+6}")
        wave_max_u32(p, FT, FT + 1)
        p(f"v_mov_b32 v{FT+1}, {KEYL}\nds_write_b32 v{FT+1}, v{FT}\ns_waitcnt lgkmcnt(0)\nM_KL2:")
    def keyrd():
        p(f"v_mov_b32 v{FT+1}, {KEYL}\nds_read_b32 v{FT}, v{FT+1}"); lq.issue(("KR", 0))
    def xsel():
        lq.wait(p, ("KR", 0))
        p(f"""
    v_readfirstlane_b32 s{sKEY}, v{FT}
    s_and_b32 s{sIDX}, s{sKEY}, 0x7ff
    s_sub_u32 s{sIDX}, 2047, s{sIDX}
    s_lshr_b32 s{sT0}, s{sIDX}, 4
    s_lshl_b32 s{sT0}, s{sT0}, 15
    s_and_b32 s{sT1}, s2, 3
    s_lshl_b32 s{sT1}, s{sT1}, 13
    s_add_u32 s{sT0}, s{sT0}, s{sT1}
    s_lshl_b32 s{sT1}, s{sW}, 10
    s_add_u32 s{sT0}, s{sT0}, s{sT1}
    s_and_b32 s{sT1}, s{sIDX}, 15
    s_lshl_b32 s{sT1}, s{sT1}, 4
    s_add_u32 s{sT0}, s{sT0}, s{sT1}
    v_lshrrev_b32 v{vT2}, 4, v1
    v_lshlrev_b32 v{vT2}, 8, v{vT2}
    v_add_u32 v{vT2}, s{sT0}, v{vT2}
    global_load_dwordx4 v[{XS}:{XS+3}], v{vT2}, s[18:19] sc1""")
        vq.issue(("X", 0))
    def ffn_step(f):
        def go():
            if f == 0:
                vq.wait(p, ("X", 0), ("F", 7))
                p(f"""
    v_and_b32 v{vT2}, 15, v1
    v_lshlrev_b32 v{vT2}, 5, v{vT2}
    s_lshl_b32 s{sT0}, s{sW}, 9
    s_add_u32 s{sT0}, s{sT0}, {L_FP}
    v_add_u32 v{vT2}, s{sT0}, v{vT2}""")
            if f > 0:
                p(f"ds_write_b32 v{vT2}, v{FD} offset:{(f-1)*4}"); lq.issue(("FW", f - 1))
            if f < 8:
                j = f >> 1; sel = sPH if f & 1 else sPL
                for pp in range(4):
                    p(f"v_perm_b32 v{FT+pp}, v{FR+(2*pp+1)*4+j}, v{FR+(2*pp)*4+j}, s{sel}")
        return go
    def ffn_mfma():
        p(f"v_mfma_f32_16x16x32_bf16 v[{FD}:{FD+3}], v[{XS}:{XS+3}], v[{FT}:{FT+3}], 0")
    def ffn_final():
        p(f"""
    s_cmp_lg_u32 s{sW}, 0
    s_cbranch_scc1 K2_FSKIP
    s_cmp_ge_u32 s2, 224
    s_cbranch_scc1 K2_FSKIP
    v_lshlrev_b32 v{vT2}, 3, v1
    v_add_u32 v{vT3}, {L_FP}, v{vT2}""")
        for w in range(8): p(f"ds_read_b64 v[{FR+2*w}:{FR+2*w+1}], v{vT3} offset:{w*512}")
        p(f"""
    s_and_b32 s{sT0}, s2, 3
    s_mul_i32 s{sT0}, s{sT0}, {7168*8}
    s_lshr_b32 s{sT1}, s2, 2
    s_lshl_b32 s{sT1}, s{sT1}, 10
    s_add_u32 s{sT0}, s{sT0}, s{sT1}
    s_add_u32 s{sT0}, s{sT0}, {WS_GU}
    v_lshlrev_b32 v{vT2}, 1, v{vT2}
    v_add_u32 v{vT2}, s{sT0}, v{vT2}
    s_waitcnt lgkmcnt(0)""")
        for w in range(1, 8):
            p(f"v_add_f32 v{FR}, v{FR}, v{FR+2*w}\nv_add_f32 v{FR+1}, v{FR+1}, v{FR+2*w+1}")
        p(f"v_mov_b32 v{FR+2}, v{FR+1}\nv_mov_b32 v{FR+1}, s{sNON}\nv_mov_b32 v{FR+3}, s{sNON}")
        p(f"global_store_dwordx4 v{vT2}, v[{FR}:{FR+3}], s[18:19] sc1")
        p.label("K2_FSKIP")
    NEG = f"v[{NEGM}:{NEGM+15}]"
    sONE = 0
    p(f"s_mov_b32 s{sONE}, 0x3f803f80")
    if 'prio' in dbg: p(f"s_cmp_lt_u32 s{sW}, 4\ns_cbranch_scc1 M_NPR\ns_setprio 1\nM_NPR:")
    def iteration(t, extra=(), mid=()):
        doQK = t < 15; doPV = t > 0; prevSM = t > 0
        sb = t & 1
        for j in range(8):
            if doQK: qk(j, sb ^ 1, NEG)
            if (j > 0 or prevSM) and 'novalu' not in dbg:
                e = E + 2 * ((j - 1) & 1)
                pb = sb if j > 0 else sb ^ 1
                pr = P + 8 * pb + ((j - 1) & 7)
                if 'pk' in dbg:
                    p(f"v_pk_add_f32 v[{vL0}:{vL1}], v[{vL0}:{vL1}], v[{e}:{e+1}]\nv_cvt_pk_bf16_f32 v{pr}, v{e}, v{e+1}")
                elif 'dot' in dbg:
                    p(f"v_cvt_pk_bf16_f32 v{pr}, v{e}, v{e+1}\nv_dot2_f32_bf16 v{vL0}, v{pr}, s{sONE}, v{vL0}")
                else:
                    p(f"v_add_f32 v{vL0}, v{vL0}, v{e}\nv_add_f32 v{vL1}, v{vL1}, v{e+1}\nv_cvt_pk_bf16_f32 v{pr}, v{e}, v{e+1}")
            if j < len(mid): run(mid[j])
            if doPV: pv(j, sb ^ 1, first=(t == 1))
            e = E + 2 * (j & 1)
            if 'novalu' not in dbg: p(f"v_exp_f32 v{e}, v{S+16*sb+2*j}\nv_exp_f32 v{e+1}, v{S+16*sb+2*j+1}")
            jj = j + D
            if jj < 8:
                if doQK: k_read(t + 1, jj)
                if doPV: v_read(t - 1, jj)
            else:
                if t + 2 <= 15: k_read(t + 2, jj - 8)
                v_read(t, jj - 8)
            if j < len(extra): run(extra[j])
    F = lambda i: job_f(i) if (ffn and cold and 'nofl' not in dbg) else None
    FT0 = 10
    PL = lambda n: (("PL", n), p3_preload(n))
    sched = {
        0: [job_k(7), None, job_v(3), None, job_v(4), None, F(0)],
        1: [job_v(5), None, None, job_v(6), None, None, F(1)],
        2: [job_k(8), None, job_k(9), None, job_v(7), None, F(2)],
        3: [job_v(8), keyld, job_v(9), None, job_v(10), None, F(3)],
        4: [job_k(10), None, job_k(11), None, job_v(11), None, F(4)],
        5: [job_v(12), None, None, job_v(13), None, keyred, F(5)],
        6: [job_k(12), keyrd, job_k(13), xsel, job_v(14), None, F(6)],
        7: [job_v(15), None, None, None, None, None, F(7)],
        8: [job_k(14), None, job_k(15), None, None, pf(0)],
        9: [None, None, None, None, pf(1)],
        10: [None, None, None, None, pf(2)],
        11: [None, None, None, None, pf(3)],
        12: [None, None, p3_early_setup(), p3_preload(0), PL(1), None, PL(2), None],
        13: [PL(3), None, PL(4), PL(5), None, PL(6), PL(7), p3_preload(8)],
        112: [] if 'notlb' in dbg else [
             (("TL", 0), f"v_min_u32 v{FT}, 40, v1\nv_lshlrev_b32 v{FT}, 20, v{FT}\nglobal_load_dword v{FD}, v{FT}, s[18:19]"), None,
             (("TL", 1), f"v_and_b32 v{FT+1}, 3, v1\nv_lshlrev_b32 v{FT+1}, 20, v{FT+1}\nglobal_load_dword v{FD}, v{FT+1}, s[78:79]"), None,
             (("TL", 2), f"v_and_b32 v{FT+2}, 7, v1\nv_lshlrev_b32 v{FT+2}, 20, v{FT+2}\nglobal_load_dword v{FD}, v{FT+2}, s[10:11]"), None,
             (("TL", 3), f"v_min_u32 v{FT+3}, 6, v1\nv_lshlrev_b32 v{FT+3}, 20, v{FT+3}\nglobal_load_dword v{FD}, v{FT+3}, s[16:17]")],
    }
    if 'nodma' in dbg: sched = {}
    for t in range(16):
        if t > 0 and t % 2 == 0:
            b = t // 2
            need = [("K", x) for x in range(2*b+4)] + [("V", x) for x in range(2*b+2)]
            if b == 6: need = [("K", x) for x in range(16)] + [("V", x) for x in range(16)]
            vq.wait(p, *need)
            if b == 7: vq.wait(p, ("PF", 3))
            if 2 * b == FT0 + 2: lq.wait(p, ("FW", 7))
            p("s_barrier")
            if b == 7: p("s_setprio 2")
        extra = sched.get(t, []); mid = []
        def both(x, y):
            def f():
                run(x); run(y)
            return f
        ex8 = list(extra) + [None] * 8
        if t == FT0:
            extra = [both(ex8[f], ffn_step(f)) for f in range(8)]; mid = [None] + [ffn_mfma] * 7
        if t == FT0 + 1:
            extra = [ex8[0], ffn_step(8)] + ex8[2:8]; mid = [ffn_mfma]
        if t == FT0 + 2:
            extra = [ex8[0], ffn_final] + ex8[2:8]
        if t == 14:
            ED = lambda n: None if 'noew' in dbg else (("EW", n), p3_early_dma(n))
            extra = []
        if t == 15:
            extra = []
        iteration(t, extra, mid)
    e = E + 2
    p(f"v_add_f32 v{vL0}, v{vL0}, v{e}\nv_add_f32 v{vL1}, v{vL1}, v{e+1}\nv_cvt_pk_bf16_f32 v{P+8+7}, v{e}, v{e+1}")
    p(f"""
    v_add_f32 v{vL0}, v{vL0}, v{vL1}
    v_mov_b32 v{vL1}, v{vL0}
    """)
    for i in range(8):
        pv(i, 1)
        if i + D < 8: v_read(15, i + D)
        if i == 0:
            p(f"v_permlane32_swap_b32 v{vL0}, v{vL1}\nv_add_f32 v{vL0}, v{vL0}, v{vL1}")
        if i == 1:
            p(f"""
    v_mov_b32 v{vT1}, 0x5d800000
    v_cmp_nle_f32 vcc, v{vL0}, v{vT1}
    v_rcp_f32 v{vL1}, v{vL0}
    """)
    ST()
    if slow:
        p(f"s_cbranch_vccnz K2_SLOW")
        p.label("K2_SLOW_RET")
    for dt in range(4):
        for c in range(2):
            a = ACC + 16 * dt + 8 * c
            o = S + (dt * 2 + c) * 4
            for r in range(8): p(f"v_mul_f32 v{a+r}, v{a+r}, v{vL1}")
            for r in range(4): p(f"v_cvt_pk_bf16_f32 v{o+r}, v{a+2*r}, v{a+2*r+1}")
            p(f"buffer_store_dwordx4 v[{o}:{o+3}], v{vO}, s[{SRD_OT}:{SRD_OT+3}], s{sOT} offen offset:{c*512} sc1")
        if dt < 3: p(f"s_add_u32 s{sOT}, s{sOT}, 131072")
    phase3(p, ST, stamp)
    p.label("K2_END")
    p("s_endpgm")
    p.label("M_SSPIN")
    p("s_sleep 2")
    p(stcode)
    p("s_waitcnt vmcnt(0)")
    p(stchk)
    p(f"""
    s_cbranch_vccz M_SSPIN_RET
    s_sub_u32 s73, s73, 1
    s_cmp_lg_u32 s73, 0
    s_cbranch_scc1 M_SSPIN
    s_branch M_SSPIN_RET
    """)
    p.label("M_KSPIN")
    p("s_sleep 2")
    p(keycode)
    p("s_waitcnt vmcnt(0)")
    p(keychk)
    p(f"""
    s_cbranch_vccz M_KSPIN_RET
    s_sub_u32 s73, s73, 1
    s_cmp_lg_u32 s73, 0
    s_cbranch_scc1 M_KSPIN
    s_branch M_KSPIN_RET
    """)
    if slow:
        p.label("K2_SLOW")
        p(f"""
    s_waitcnt vmcnt(0) lgkmcnt(0)
    v_and_b32 v{vT0}, 31, v1
    v_lshlrev_b32 v{vT0}, 8, v{vT0}
    v_lshrrev_b32 v{vT1}, 5, v1
    v_lshl_add_u32 v{vT0}, v{vT1}, 4, v{vT0}
    v_and_b32 v{vT2}, 19, v1
    v_bfe_u32 v{vT3}, v1, 2, 1
    v_lshl_add_u32 v{vT2}, v{vT3}, 3, v{vT2}
    v_bfe_u32 v{vT3}, v1, 3, 1
    v_lshl_add_u32 v{vT2}, v{vT3}, 2, v{vT2}
    v_lshlrev_b32 v{vT2}, 1, v{vT2}
    v_lshl_add_u32 v{vT2}, v{vT1}, 10, v{vT2}
    v_mov_b32 v{vT1}, 0xff800000
    s_mov_b32 s{sT1}, 0
    """)
        KS = KF
        def slow_qk(c0):
            for j in range(8):
                p(f"buffer_load_dwordx4 v[{KS+4*j}:{KS+4*j+3}], v{vT0}, s[{SRD_K}:{SRD_K+3}], s{sT1} offen offset:{j*32}")
            p("s_waitcnt vmcnt(0)")
            for j in range(8):
                c = c0 if j == 0 else f"v[{S}:{S+15}]"
                p(f"v_mfma_f32_32x32x16_bf16 v[{S}:{S+15}], v[{KS+4*j}:{KS+4*j+3}], v[{QP+4*j}:{QP+4*j+3}], {c}")
        p.label("K2_SLOW_L1")
        slow_qk("0")
        for i in range(0, 16, 2):
            p(f"v_max3_f32 v{vT1}, v{vT1}, v{S+i}, v{S+i+1}")
        p(f"""
    s_add_u32 s{sT1}, s{sT1}, 8192
    s_cmp_lt_u32 s{sT1}, 131072
    s_cbranch_scc1 K2_SLOW_L1
    v_mov_b32 v{vT3}, v{vT1}
    v_permlane32_swap_b32 v{vT3}, v{vT1}
    v_max_f32 v{vT1}, v{vT3}, v{vT1}
    """)
        for i in range(16): p(f"v_sub_f32 v{NEGM+i}, 0, v{vT1}")
        for i in range(64): p(f"v_mov_b32 v{ACC+i}, 0")
        p(f"v_mov_b32 v{vL0}, 0\ns_mov_b32 s{sT1}, 0")
        p.label("K2_SLOW_L2")
        slow_qk(NEG)
        for i in range(16): p(f"v_exp_f32 v{S+i}, v{S+i}")
        for i in range(16): p(f"v_add_f32 v{vL0}, v{vL0}, v{S+i}")
        for i in range(8): p(f"v_cvt_pk_bf16_f32 v{P+i}, v{S+2*i}, v{S+2*i+1}")
        for ks in range(2):
            p(f"s_add_u32 s{sT2}, s{sT1}, {ks*4096}")
            TM = S + 16
            for dt in range(4):
                r = KS + dt * 4; d = ACC + 16 * dt
                for jj in range(8):
                    key = (jj & 3) + 8 * (jj >> 2)
                    p(f"buffer_load_ushort v{TM + jj}, v{vT2}, s[{SRD_V}:{SRD_V+3}], s{sT2} offen offset:{key*256 + dt*64}")
                p("s_waitcnt vmcnt(0)")
                for jj in range(4): p(f"v_lshl_or_b32 v{r+jj}, v{TM+2*jj+1}, 16, v{TM+2*jj}")
                p(f"v_mfma_f32_32x32x16_bf16 v[{d}:{d+15}], v[{r}:{r+3}], v[{P+4*ks}:{P+4*ks+3}], v[{d}:{d+15}]")
            p("s_nop 7")
        p(f"""
    s_add_u32 s{sT1}, s{sT1}, 8192
    s_cmp_lt_u32 s{sT1}, 131072
    s_cbranch_scc1 K2_SLOW_L2
    v_mov_b32 v{vL1}, v{vL0}
    v_permlane32_swap_b32 v{vL0}, v{vL1}
    v_add_f32 v{vL0}, v{vL0}, v{vL1}
    v_rcp_f32 v{vL1}, v{vL0}
    s_nop 7
    s_branch K2_SLOW_RET
    """)
    n = p.fix_hazards(verbose='v' in dbg)
    import re as _re
    st = lambda m: f"    s_memtime s[{80+2*int(m.group(1))}:{81+2*int(m.group(1))}]\n"
    txt = p.text()
    txt = _re.sub(r"(?m)^ST3_(\d)\n", st if MODE3[0] else "", txt)
    txt = _re.sub(r"(?m)^ST4_(\d)\n", st if 'st4' in dbg else "", txt)
    txt = _re.sub(r"(?m)^STAMPX1\n", "", txt)
    return txt, descriptor(name, 256, 256, 102), f"; @launch grid=(256,1,1) block=(512,1,1) lds={L_TOTAL}"

if __name__ == "__main__":
    import sys, subprocess, re
    dbg = tuple(sys.argv[2].split(',')) if len(sys.argv) > 2 else ()
    t, d, l = gen_mega(stamp=len(sys.argv) > 1 and sys.argv[1] == "1", dbg=dbg)
    out = sys.argv[3] if len(sys.argv) > 3 else "mega.s"
    def write(cs):
        open(out, "w").write(l + '\n.amdgcn_target "amdgcn-amd-amdhsa--gfx950"\n.text\n' + t.replace("CODESIZE", str(cs)) + '.section .rodata,"a"\n' + d)
    write(0x1000)
    subprocess.run(["clang", "-x", "assembler", "-target", "amdgcn-amd-amdhsa", "-mcpu=gfx950", "-c", out, "-o", "mega.o"], check=True)
    r = subprocess.run(["llvm-objdump", "-h", "mega.o"], capture_output=True, text=True).stdout
    sz = int(re.search(r"\.text\s+([0-9a-f]+)", r).group(1), 16)
    write((sz - 256) & ~63)
    print("code size", sz)
```
